```python
import torch

def _softmax(x, axis=-1):
    return torch.softmax(x, dim=axis)
def _gelu(x):
    return torch.nn.functional.gelu(x, approximate="tanh")
def _silu(x):
    return torch.nn.functional.silu(x)
def _sigmoid(x):
    return torch.sigmoid(x)
def _layernorm(x, axis=-1, eps=1e-5):
    m = x.mean(dim=axis, keepdim=True)
    v = x.var(dim=axis, keepdim=True, unbiased=False)
    return (x - m) / torch.sqrt(v + eps)
def _scatter_add(tgt, idx, src, axis=0):
    return tgt.clone().index_add_(axis, idx, src)
def _segment_sum(src, seg, n):
    out = torch.zeros((n,) + src.shape[1:], dtype=src.dtype)
    return out.index_add_(0, seg, src)
def _pad(x, pw):
    flat = tuple(v for pair in reversed(pw) for v in pair)
    return torch.nn.functional.pad(x, flat)

kernel_name = 'standalone__mha_softmax__near_ridge'

def setup_inputs():

    _w = (lambda a: (lambda t: t.to(torch.bfloat16) if t.is_floating_point() else t)(torch.as_tensor(a)))
    B, H, Sq, Sk, D = 16, 32, 384, 512, 128
    return {
        "q": _w((lambda *s: torch.randn(*s, dtype=torch.bfloat16) * 0.8)(B, H, Sq, D)),
        "k": _w((lambda *s: torch.randn(*s, dtype=torch.bfloat16) * 0.8)(B, H, Sk, D)),
        "v": _w((lambda *s: torch.randn(*s, dtype=torch.bfloat16) * 0.05)(B, H, Sk, D)),
    }

def reference(q, k, v):
    scale = q.shape[-1] ** -0.5
    scores = torch.einsum("bhqd,bhkd->bhqk", q, k) * scale
    p = _softmax(scores, axis=-1)
    return torch.einsum("bhqk,bhkd->bhqd", p, v)
```

```python
class Reg:
    __slots__ = ("k", "i", "n")
    def __init__(s, k, i, n=1): s.k, s.i, s.n = k, i, n
    def __str__(s): return f"{s.k}{s.i}" if s.n == 1 else f"{s.k}[{s.i}:{s.i+s.n-1}]"
    __repr__ = __str__
    def set(s): return {f"{s.k}{s.i+j}" for j in range(s.n)}
    def __getitem__(s, j):
        if isinstance(j, slice):
            a = j.start or 0; b = s.n if j.stop is None else j.stop
            assert 0 <= a < b <= s.n
            return Reg(s.k, s.i + a, b - a)
        assert 0 <= j < s.n
        return Reg(s.k, s.i + j, 1)
def V(i, n=1): return Reg("v", i, n)
def A(i, n=1): return Reg("a", i, n)
def S(i, n=1): return Reg("s", i, n)
def rs(*xs):
    o = set()
    for x in xs:
        if isinstance(x, Reg): o |= x.set()
        elif isinstance(x, str) and x in ("m0", "vcc", "scc", "exec"): o.add(x)
    return o

class Inst:
    def __init__(s, text, kind, rd=(), wr=(), **m):
        s.text, s.kind, s.rd, s.wr, s.m = text, kind, set(rd), set(wr), m
    def __repr__(s): return s.text

TRANS = ("v_exp_f32", "v_rcp_f32", "v_log_f32", "v_rsq_f32", "v_sqrt_f32")
def valu(op, d, *src, mods="", rmw=False, extra_rd=(), extra_wr=()):
    t = f"{op} {d}, " + ", ".join(str(x) for x in src) + (" " + mods if mods else "")
    kind = "trans" if op in TRANS else "valu"
    rd = rs(*src) | set(extra_rd)
    if rmw: rd |= rs(d)
    return Inst(t, kind, rd, rs(d) | set(extra_wr), op=op)
def swap(op, x, y):
    return Inst(f"{op} {x}, {y}", "valu", rs(x, y), rs(x, y), op=op, perm=True)
def mfma(d, a, b, c, big=False):
    op = "v_mfma_f32_32x32x16_bf16" if big else "v_mfma_f32_16x16x32_bf16"
    assert d.n == (16 if big else 4) and a.n == 4 and b.n == 4
    if isinstance(c, Reg): assert c.k == d.k and c.n == d.n
    return Inst(f"{op} {d}, {a}, {b}, {c}", "mfma", rs(a, b, c), rs(d), big=big, d=str(d), c=str(c),
                ab=rs(a, b), cs=rs(c))
def salu(op, d, *src):
    t = f"{op} {d}" + "".join(f", {x}" for x in src)
    wr = rs(d)
    if op not in ("s_mov_b32", "s_mov_b64", "s_mul_i32", "s_getpc_b64", "s_cselect_b32", "s_mul_hi_u32"): wr = wr | {"scc"}
    rd = rs(*src)
    if op in ("s_addc_u32", "s_subb_u32", "s_cselect_b32"): rd.add("scc")
    return Inst(t, "salu", rd, wr)
def scmp(op, a, b): return Inst(f"{op} {a}, {b}", "salu", rs(a, b), {"scc"})
def raw(text, kind="salu", rd=(), wr=(), **m): return Inst(text, kind, rd, wr, **m)
def nop(n): return Inst(f"s_nop {n}", "nop", w=n + 1)
def label(n): return Inst(f"{n}:", "label")
def comment(t): return Inst(f"; {t}", "label")
def ds_read(op, d, addr, off, reg=None):
    assert 0 <= off < 65536
    return Inst(f"{op} {d}, {addr}" + (f" offset:{off}" if off else ""), "dsr", rs(addr), rs(d), reg=reg)
def ds_write(op, addr, data, off, reg=None):
    assert 0 <= off < 65536
    return Inst(f"{op} {addr}, {data}" + (f" offset:{off}" if off else ""), "dsw", rs(addr, data), (), reg=reg)
def dma(voff, srd, soff, imm, reg, flags="nt"):
    assert 0 <= imm < 4096
    return Inst(f"buffer_load_dwordx4 {voff}, {srd}, {soff} offen" + (f" offset:{imm}" if imm else "") + f" {flags} lds",
                "dma", rs(voff, srd, soff, "m0"), (), reg=reg)
def vload(d, voff, srd, soff, imm, flags=""):
    return Inst(f"buffer_load_dwordx4 {d}, {voff}, {srd}, {soff} offen" + (f" offset:{imm}" if imm else "") + f" {flags}",
                "vld", rs(voff, srd, soff), rs(d))
def vstore(data, voff, srd, soff, imm, flags="", op="buffer_store_dwordx4"):
    assert 0 <= imm < 4096
    return Inst(f"{op} {data}, {voff}, {srd}, {soff} offen" + (f" offset:{imm}" if imm else "") + f" {flags}",
                "vst", rs(data, voff, srd, soff), (), data=rs(data))
def wait(vm=None, lgkm=None):
    return Inst("s_waitcnt ?", "wait", vm=vm, lgkm=lgkm)
def barrier(): return Inst("s_barrier", "barrier")

class CheckError(Exception): pass

def resolve_and_check(trace, verbose=False):
    def absreg(inst, ctx):
        r = inst.m.get("reg")
        return None if r is None else ctx(r)
    for inst, ctx in trace:
        if inst.kind == "wait": inst.m["nvm"] = None; inst.m["nlg"] = None
    for rnd in range(2):
        vq, lq = [], []
        for inst, ctx in trace:
            k = inst.kind
            if k in ("dma", "vld", "vst"): vq.append((inst, absreg(inst, ctx)))
            elif k in ("dsr", "dsw"): lq.append(inst)
            elif k == "smem": lq.append(inst); lq.append(inst)
            elif k == "wait":
                vm, lg = inst.m["vm"], inst.m["lgkm"]
                if vm is not None:
                    if isinstance(vm, int): n = vm
                    else:
                        keys = [ctx(x) for x in vm if not isinstance(x, Reg)]
                        regs = rs(*[x for x in vm if isinstance(x, Reg)])
                        n = 63
                        for idx, (q, ar) in enumerate(vq):
                            if (ar is not None and ar in keys) or (q.wr & regs): n = min(n, len(vq) - 1 - idx)
                    o = inst.m["nvm"]; inst.m["nvm"] = n if o is None else min(o, n)
                    n = inst.m["nvm"]
                    if len(vq) > n: vq = vq[len(vq) - n:]
                if lg is not None:
                    if isinstance(lg, int): n = lg
                    else:
                        regs = rs(*lg); n = 15
                        for idx, q in enumerate(lq):
                            if q.wr & regs: n = min(n, len(lq) - 1 - idx)
                        if any(q.kind == "smem" for q in lq): n = 0
                    o = inst.m["nlg"]; inst.m["nlg"] = n if o is None else min(o, n)
                    n = inst.m["nlg"]
                    if len(lq) > n: lq = lq[len(lq) - n:]
    for inst, ctx in trace:
        if inst.kind == "wait":
            p = []
            if inst.m["nvm"] is not None: p.append(f"vmcnt({inst.m['nvm']})")
            if inst.m["nlg"] is not None: p.append(f"lgkmcnt({inst.m['nlg']})")
            inst.text = "s_waitcnt " + " ".join(p)
    errs = []
    def err(i, msg): errs.append(f"[{i}] {trace[i][0].text}: {msg}")
    vq, lq = [], []
    region = {}
    epoch = 0
    hist = []
    pos = 0
    maxv = maxl = 0
    for i, (inst, ctx) in enumerate(trace):
        k = inst.kind
        if k == "label": continue
        touched = inst.rd | inst.wr
        for q in lq:
            if q[0].wr & touched: err(i, f"touches pending lgkm dest of '{q[0].text}'")
        for q in vq:
            if q[0].wr & touched: err(i, f"touches pending vm dest of '{q[0].text}'")
        for (pp, p) in reversed(hist):
            d = pos - pp
            if d > 20: break
            need = 0; why = ""
            pk = p.kind
            if pk in ("valu", "trans"):
                vw = {r for r in p.wr if r[0] in "va" and r != "vcc"}
                sw = {r for r in p.wr if r[0] == "s" or r == "vcc"} - {"scc"}
                if k == "mfma" and vw & inst.rd: need, why = 2, "valu->mfma"
                if k in ("valu", "trans") and pk == "trans" and vw & inst.rd: need, why = max(need, 1), "trans->valu"
                if inst.m.get("perm") and vw & inst.rd: need, why = max(need, 2), "valu->permlane"
                if inst.m.get("op") in ("v_readfirstlane_b32", "v_readlane_b32") and vw & inst.rd: need, why = max(need, 1), "valu->readlane"
                if k in ("valu", "trans") and sw & inst.rd: need, why = max(need, 2), "valu sgpr->valu"
                if k in ("dma", "vld", "vst") and sw & inst.rd: need, why = max(need, 5), "valu sgpr->vmem"
                if "exec" in p.wr and k == "mfma": need, why = max(need, 4), "exec->mfma"
            if pk == "mfma":
                big = p.m["big"]
                if k == "mfma":
                    if p.wr & inst.m["ab"]: need, why = (12 if big else 8), "mfma D->AB"
                    if p.wr & inst.m["cs"] and not (p.m["d"] == inst.m["c"] and big == inst.m["big"]):
                        need, why = max(need, 10 if big else 6), "mfma D->C overlap"
                    if p.wr & inst.wr and not (p.m["d"] == inst.m["c"] and big == inst.m["big"]) and big != inst.m["big"]:
                        need, why = max(need, 10), "mfma WAW shape"
                elif k in ("valu", "trans", "dsr", "dsw", "dma", "vld", "vst"):
                    if p.wr & touched: need, why = (12 if big else 8), "mfma D->other"
                    if p.m["cs"] & inst.wr: need, why = max(need, 7 if big else 3), "mfma C WAR"
            if pk == "salu" and "m0" in p.wr and k == "dma": need, why = 1, "m0->dma"
            if pk == "vst" and p.m["data"] & inst.wr: need, why = 2, "store data WAR"
            if need > d: err(i, f"hazard {why} after '{p.text}': have {d} need {need}")
        ar = absreg(inst, ctx)
        if k == "dma":
            phys, content, shared = ar
            st = region.setdefault(phys, dict(content=None, pend=0, vis=True, rd_out=0, rd_epoch=-1))
            if st["content"] != content:
                if st["rd_out"]: err(i, f"DMA into {phys} with reads outstanding")
                if shared and st["rd_epoch"] >= epoch: err(i, f"DMA into {phys}: last reads not separated by a barrier")
                if st["pend"]: err(i, f"DMA into {phys} over pending DMA of other content")
            st["content"] = content; st["pend"] += 1; st["vis"] = False; st["shared"] = shared
            vq.append((inst, phys))
        elif k in ("vld", "vst"): vq.append((inst, None))
        elif k == "dsr":
            ph = []
            if ar is not None:
                for (phys, content, shared) in (ar if isinstance(ar, list) else [ar]):
                    st = region.get(phys)
                    if st is None or st["content"] != content: err(i, f"reads {phys} expecting {content}, has {st and st['content']}")
                    elif st["pend"] or not st["vis"]: err(i, f"reads {phys} before visible (pend={st['pend']})")
                    if st is not None: st["rd_out"] += 1; ph.append(phys)
            lq.append((inst, ph))
        elif k == "dsw":
            if ar is not None:
                for (phys, content, shared) in (ar if isinstance(ar, list) else [ar]):
                    st = region.setdefault(phys, dict(content=None, pend=0, vis=True, rd_out=0, rd_epoch=-1))
                    assert not shared
                    if st["pend"]: err(i, f"ds_write into {phys} with DMA pending")
                    st["content"] = content; st["vis"] = True; st["shared"] = False
            lq.append((inst, []))
        elif k == "smem": lq.append((inst, [])); lq.append((inst, []))
        elif k == "wait":
            n = inst.m["nvm"]
            if n is not None:
                while len(vq) > n:
                    q, phys = vq.pop(0)
                    if phys is not None:
                        st = region[phys]; st["pend"] -= 1
                        if st["pend"] == 0 and not st["shared"]: st["vis"] = True
            n = inst.m["nlg"]
            if n is not None:
                if n > 0 and any(q[0].kind == "smem" for q in lq): err(i, "counted lgkm wait with smem outstanding")
                while len(lq) > n:
                    q, ph = lq.pop(0)
                    for phys in ph:
                        region[phys]["rd_out"] -= 1; region[phys]["rd_epoch"] = epoch
        elif k == "barrier":
            epoch += 1
            for st in region.values():
                if st["pend"] == 0: st["vis"] = True
        maxv = max(maxv, len(vq)); maxl = max(maxl, len(lq))
        if len(vq) > 63: err(i, "vmcnt overflow")
        w = inst.m.get("w", 1)
        pos += w
        hist.append((pos, inst))
        if len(hist) > 40: hist.pop(0)
    if verbose: print(f"trace {len(trace)} insts, max vm {maxv}, max lgkm {maxl}, barriers {epoch}")
    if errs:
        raise CheckError("\n".join(errs[:40]) + f"\n({len(errs)} errors)")
```

```python
import sys, math, struct
from ir import *

class Opt:
    stamps = False
    st_flags = "sc0 sc1"
    ld_flags = "nt"
    prefetch_code = True
    pf_rounds = 2
O_ = Opt()

NB = 6
def f32bits(x): return struct.unpack("<I", struct.pack("<f", x))[0]
CSCALE = f32bits(math.log2(math.e) / math.sqrt(128.0))
THRESH = f32bits(2.0 ** 40)

def Sreg(b, a): return V(8*b + 4*a, 4)
def Preg(par, b): return V(48 + 24*par + 4*b, 4)
def negM(b): return V(96 + 4*b, 4)
kaddr = [V(120 + s) for s in range(4)]
vaddr = [V(124 + t) for t in range(8)]
vkv = V(132); vsd0 = V(133); vsd1 = V(134); vlin = V(135); vlane = V(136)
T = [V(137 + i) for i in range(7)]
def Oreg(b, t):
    n = 8*b + t
    return V(144 + 4*n, 4) if n < 28 else A(176 + 4*(n - 28), 4)
def Qreg(b, s): return A(16*b + 4*s, 4)
def F(i): return A(96 + 4*i, 4)
def lacc(b): return A(128 + 4*b, 4)
ones = A(152, 4)
stmp = [A(156, 4), A(160, 4)]
sQ, sK, sV, sO = S(12, 4), S(16, 4), S(20, 4), S(24, 4)
sW = S(28); sKVoff = S(29); sM0kv = S(30); sStg = S(31); sSide = S(32); sT0 = S(33); sT1 = S(34); sT2 = S(35)
sFlag = S(36); sThr = S(37); sC = S(38, 2); sCmp = S(40, 2); sStamp = S(42, 2)
STAMP0 = 48

def rK(J): return (("ring", (J - 2) % 4, "K"), ("K", J), True)
def rV(J): return (("ring", J % 4, "V"), ("V", J), True)
def rQ(h, p): return (("stg", p), ("Q", h), False)
def rO(h, p): return (("stg", p), ("O", h), False)
def blockreg(f, h, b): return [f(h, 4*b + i) for i in range(4)]

prog = []
def E(*xs):
    for x in xs:
        if isinstance(x, (list, tuple)): E(*x)
        else: prog.append(x)
nstamp = [0]
def stamp_issue():
    return [raw(f"s_memtime {sStamp}", "smem", (), rs(sStamp))] if O_.stamps else []
def stamp_save():
    if not O_.stamps: return []
    k = nstamp[0]; nstamp[0] += 1
    return [salu("s_mov_b32", S(STAMP0 + k), sStamp[0])]
def stamp_now():
    if not O_.stamps: return []
    return stamp_issue() + [wait(lgkm=0)] + stamp_save()

def kread(J, a, s, dst): return ds_read("ds_read_b128", dst, kaddr[s], ((J - 2) % 4)*16384 + a*8192, rK(J))
def vread(J, t, a, dst): return ds_read("ds_read_b64_tr_b16", dst[2*a:2*a+2], vaddr[t], (J % 4)*16384 + a*8192, rV(J))
def dma_group(J, withV=True):
    pre = [salu("s_add_u32", "m0", sM0kv, (J % 4)*16384), salu("s_mov_b32", sKVoff, (J + 2)*8192)]
    ops = []
    if withV and J < 32: ops.append(dma(vkv, sV, sKVoff, 1024, rV(J), O_.ld_flags))
    if J + 2 < 32: ops.append(dma(vkv, sK, sKVoff, 0, rK(J + 2), O_.ld_flags))
    if withV and J < 32: ops.append(dma(vkv, sV, sKVoff, 3072, rV(J), O_.ld_flags))
    if J + 2 < 32: ops.append(dma(vkv, sK, sKVoff, 2048, rK(J + 2), O_.ld_flags))
    return (pre if ops else []), ops

def setup():
    E(comment("---- setup"),
      scmp("s_cmp_ge_u32", S(2), 256), raw("s_cbranch_scc1 L_end", "salu", {"scc"}),
      raw("s_load_dwordx4 s[4:7], s[0:1], 0", "smem", (), rs(S(4, 4))),
      raw("s_load_dwordx4 s[8:11], s[0:1], 16", "smem", (), rs(S(8, 4))))
    if O_.stamps:
        E(raw("s_load_dwordx2 s[44:45], s[0:1], 40", "smem", (), rs(S(44, 2))),
          raw("s_memrealtime s[46:47]", "smem", (), rs(S(46, 2))))
    v0, v1, vi, vu, t0, t1, t2 = V(0), V(1), V(2), V(3), V(4), V(5), V(6)
    E(valu("v_lshrrev_b32", v1, 6, v0), valu("v_and_b32", vlane, 63, v0),
      valu("v_readfirstlane_b32", sW, v1),
      valu("v_and_b32", vi, 15, vlane), valu("v_lshrrev_b32", vu, 4, vlane),
      valu("v_lshlrev_b32", t0, 1, vu), valu("v_xor_b32", t0, t0, vi), valu("v_lshlrev_b32", t0, 4, t0),
      valu("v_lshl_add_u32", vsd0, vu, 8, t0), valu("v_xor_b32", vsd1, 128, vsd0),
      salu("s_and_b32", sT0, sW, 1), salu("s_lshr_b32", sT1, sW, 1),
      salu("s_lshl_b32", sT2, sT0, 7), salu("s_lshl_b32", sT0, sT0, 10), salu("s_lshl_b32", sT1, sT1, 12),
      salu("s_add_u32", sT0, sT0, sT1),
      valu("v_xor_b32", vkv, sT2, vsd0), valu("v_add_u32", vkv, sT0, vkv),
      salu("s_lshl_b32", sM0kv, sW, 12), salu("s_mul_i32", sStg, sW, 24576),
      wait(lgkm=0))
    E(salu("s_mul_i32", sT0, S(2), 196608), salu("s_add_u32", sT0, sT0, sStg), salu("s_add_u32", sStg, sStg, 65536),
      salu("s_lshl_b32", sT1, S(2), 18),
      salu("s_add_u32", sK[0], S(6), sT1), salu("s_addc_u32", sK[1], S(7), 0), salu("s_and_b32", sK[1], sK[1], "0xffff"),
      salu("s_mov_b32", sK[2], 262144), salu("s_mov_b32", sK[3], "0x20000"),
      salu("s_add_u32", sQ[0], S(4), sT0), salu("s_addc_u32", sQ[1], S(5), 0), salu("s_and_b32", sQ[1], sQ[1], "0xffff"),
      salu("s_mov_b32", sQ[2], 98304 + 24576), salu("s_mov_b32", sQ[3], "0x20000"))
    pre, ops = dma_group(-2, False); E(pre, ops)
    for b in range(NB): E(q_dma_block(0, b))
    pre, ops = dma_group(-1, False); E(pre, ops)
    E(salu("s_add_u32", sV[0], S(8), sT1), salu("s_addc_u32", sV[1], S(9), 0),
      salu("s_sub_u32", sV[0], sV[0], 1024 + 16384), salu("s_subb_u32", sV[1], sV[1], 0), salu("s_and_b32", sV[1], sV[1], "0xffff"),
      salu("s_mov_b32", sV[2], 262144 + 1024 + 16384), salu("s_mov_b32", sV[3], "0x20000"))
    for J in (0, 1):
        pre, ops = dma_group(J); E(pre, ops)
    if O_.prefetch_code:
        E(raw("s_getpc_b64 s[40:41]", "salu", (), rs(S(40, 2))), label("L_pc"),
          valu("v_lshlrev_b32", t0, 7, v0))
        for k in range(O_.pf_rounds):
            E(valu("v_min_u32", t1, "L_end-L_pc", t0))
            E(Inst(f"global_load_dword {T[k]}, {t1}, s[40:41]", "vld", rs(t1, S(40, 2)), rs(T[k])))
            if k + 1 < O_.pf_rounds: E(valu("v_add_u32", t0, 32768, t0))
    E(salu("s_add_u32", sO[0], S(10), sT0), salu("s_addc_u32", sO[1], S(11), 0), salu("s_and_b32", sO[1], sO[1], "0xffff"),
      salu("s_mov_b32", sO[2], 98304 + 24576), salu("s_mov_b32", sO[3], "0x20000"),
      salu("s_mov_b32", sC[0], hex(CSCALE)), salu("s_mov_b32", sC[1], hex(CSCALE)),
      salu("s_mov_b32", sThr, hex(THRESH)), salu("s_mov_b32", sFlag, 0))
    E(valu("v_and_b32", t0, 7, vi), valu("v_lshlrev_b32", t0, 1, t0), valu("v_xor_b32", t0, t0, vu), valu("v_lshlrev_b32", t0, 4, t0),
      valu("v_and_b32", t1, 3, vi), valu("v_lshl_add_u32", t0, t1, 8, t0),
      valu("v_lshrrev_b32", t1, 3, vi), valu("v_lshl_add_u32", t0, t1, 11, t0),
      valu("v_bfe_u32", t1, vi, 2, 1), valu("v_lshl_add_u32", kaddr[0], t1, 12, t0))
    for s in range(1, 4): E(valu("v_xor_b32", kaddr[s], s << 6, kaddr[0]))
    E(valu("v_lshrrev_b32", t1, 2, vi), valu("v_and_b32", t2, 1, vu), valu("v_lshl_add_u32", t0, t2, 2, t1),
      valu("v_lshlrev_b32", t0, 5, t0), valu("v_lshl_add_u32", t0, t1, 8, t0), valu("v_lshl_add_u32", t0, t2, 12, t0),
      valu("v_lshrrev_b32", t2, 1, vu), valu("v_lshl_add_u32", t0, t2, 11, t0),
      valu("v_and_b32", t1, 3, vi), valu("v_lshl_add_u32", t0, t1, 3, t0), valu("v_add_u32", vaddr[0], 1024, t0))
    for t in range(1, 8): E(valu("v_xor_b32", vaddr[t], t << 5, vaddr[0]))
    E(valu("v_lshlrev_b32", vlin, 4, vlane), valu("v_mov_b32", t0, "0x3f803f80"))
    for r in range(4): E(valu("v_accvgpr_write_b32", ones[r], t0))

def q_dma_block(h, b):
    o = [salu("s_add_u32", "m0", sStg, b*4096), salu("s_mov_b32", sSide, h*98304 + b*4096)]
    for i in range(4): o.append(dma(vsd1 if i & 1 else vsd0, sQ, sSide, i*1024, rQ(h, 4*b + i), O_.ld_flags))
    return o

def q_phase(h):
    E(comment(f"---- Q phase head {h}"))
    qa = [V(40 + s) for s in range(4)]
    t0, t1 = V(44), V(45)
    E(valu("v_and_b32", t0, 7, vlane), valu("v_lshlrev_b32", t0, 1, t0), valu("v_lshrrev_b32", t1, 4, vlane),
      valu("v_xor_b32", t0, t0, t1), valu("v_lshlrev_b32", t0, 4, t0), valu("v_and_b32", t1, 15, vlane),
      valu("v_lshl_add_u32", t0, t1, 8, t0), valu("v_add_u32", qa[0], sStg, t0))
    for s in range(1, 4): E(valu("v_xor_b32", qa[s], s << 6, qa[0]))
    rawr = lambda b, s: V(48 + 16*(b % 3) + 4*s, 4)
    def rd(b):
        return [wait(vm=blockreg(rQ, h, b))] + [ds_read("ds_read_b128", rawr(b, s), qa[s], b*4096, blockreg(rQ, h, b)) for s in range(4)]
    pre = 1 if h == 0 else 2
    for b in range(pre): E(rd(b))
    for b in range(NB):
        if h > 0 and b + pre < NB: E(rd(b + pre))
        E(wait(lgkm=[rawr(b, s) for s in range(4)]))
        for s in range(4):
            x = rawr(b, s); w = V(8*(s % 2), 8); y = V(16 + 4*(s % 2), 4)
            for r in range(4):
                E(valu("v_lshlrev_b32", w[2*r], 16, x[r]), valu("v_and_b32", w[2*r+1], "0xffff0000", x[r]))
            for r in range(4): E(valu("v_pk_mul_f32", w[2*r:2*r+2], w[2*r:2*r+2], sC))
            for r in range(4): E(valu("v_cvt_pk_bf16_f32", y[r], w[2*r], w[2*r+1]))
            for r in range(4): E(valu("v_accvgpr_write_b32", Qreg(b, s)[r], y[r]))
        if h == 0 and b + 1 < NB: E(rd(b + 1))

def sm_ops(par, b, a):
    s = Sreg(b, a); p = Preg(par, b)
    return [("e", valu("v_exp_f32", s[0], s[0])), ("e", valu("v_exp_f32", s[1], s[1])),
            ("c", valu("v_cvt_pk_bf16_f32", p[2*a], s[0], s[1])),
            ("e", valu("v_exp_f32", s[2], s[2])), ("e", valu("v_exp_f32", s[3], s[3])),
            ("c", valu("v_cvt_pk_bf16_f32", p[2*a+1], s[2], s[3]))]
def sm_stream(par):
    o = []
    for a in range(2):
        for b in range(NB): o += sm_ops(par, b, a)
    return o
EG_A = list(range(24, 102, 2))
NE_A = 38
EG_B = list(range(0, 20, 2))
assert NE_A + len(EG_B) == 48
def sm_split(par):
    st = sm_stream(par); ne = 0
    for idx, (k, _) in enumerate(st):
        if k == "e":
            if ne == NE_A: return st[:idx], st[idx:]
            ne += 1
def place_sm(gaps, ops, eg):
    g = None; n = 0
    for k, inst in ops:
        if k == "e": g = eg[n]; n += 1; gaps[g].append(inst)
        else: gaps[g + 1].append(inst)

def kfrag_early(h):
    J = 16*h
    E(comment(f"---- first K tile head {h}"))
    if h == 0: E(wait(vm=[rK(0)]), barrier())
    for a in range(2):
        for s in range(4): E(kread(J, a, s, F(4*a + s)))
def free_first(h):
    J = 16*h
    E(stamp_issue(), wait(vm=[rK(J + 1)], lgkm=0), barrier(), stamp_save())
    pre, ops = dma_group(J + 2); E(pre, ops)

def prologue(h):
    J = 16*h
    E(comment(f"---- prologue head {h}: S(0), row max stand-in, first softmax part"), nop(1))
    for b in range(NB):
        for a in range(2):
            for s in range(4): E(mfma(Sreg(b, a), F(4*a + s), Qreg(b, s), 0 if s == 0 else Sreg(b, a)))
    for s in range(4): E(kread(J + 1, 0, s, F(s)))
    m = [negM(b)[0] for b in range(NB)]; t = [negM(b)[1] for b in range(NB)]
    sv = lambda b, r: V(8*b + r)
    E(nop(3))
    for b in range(NB): E(valu("v_max3_f32", m[b], sv(b, 0), sv(b, 1), sv(b, 2)))
    for b in range(NB): E(valu("v_max3_f32", m[b], m[b], sv(b, 3), sv(b, 4)))
    for b in range(NB): E(valu("v_max3_f32", m[b], m[b], sv(b, 5), sv(b, 6)))
    for b in range(NB): E(valu("v_max_f32", m[b], m[b], sv(b, 7)))
    for op in ("v_permlane32_swap_b32", "v_permlane16_swap_b32"):
        for b in range(NB): E(valu("v_mov_b32", t[b], m[b]))
        for b in range(NB): E(swap(op, m[b], t[b]))
        for b in range(NB): E(valu("v_max_f32", m[b], m[b], t[b]))
    for b in range(NB):
        for r in (1, 2, 3, 0): E(valu("v_sub_f32", negM(b)[r], 0, m[b]))
    for b in range(NB):
        for r in range(4): E(valu("v_pk_add_f32", V(8*b + 2*r, 2), V(8*b + 2*r, 2), negM(b)[0:2]))
    first, _ = sm_split(0)
    pend = []
    for k, inst in first:
        if k == "e":
            E(inst)
            if len(pend) > 1: E(pend.pop(0))
        else: pend.append(inst)
    E(nop(0), pend)
    E(wait(lgkm=[F(s) for s in range(4)]))

def o_piece_read(h, p, dst):
    ad = vsd1 if p & 1 else vsd0
    if (p >> 1) & 1:
        return [ds_read("ds_read_b64", dst[0:2], ad, p*1024 + 8, rO(h, p)), ds_read("ds_read_b64", dst[2:4], ad, p*1024, rO(h, p))]
    return [ds_read("ds_read_b128", dst, ad, p*1024, rO(h, p))]

def iteration(h, j):
    J = 16*h + j; par = j & 1; last = (j == 15)
    E(comment(f"---- head {h} iter {j}"))
    mf = []
    for a in range(2):
        for b in range(NB):
            for s in range(4): mf.append(mfma(Sreg(b, a), F(4*a + s), Qreg(b, s), negM(b) if s == 0 else Sreg(b, a)))
    tstart = {}
    for t in range(8):
        tstart[t] = len(mf)
        for b in range(NB): mf.append(mfma(Oreg(b, t), F(t), Preg(par, b), 0 if j == 0 else Oreg(b, t)))
        if t < NB: mf.append(mfma(lacc(t), ones, Preg(par, t), 0 if j == 0 else lacc(t)))
    n = len(mf); assert n == 102
    gaps = [[] for _ in range(n)]
    def put(g, *x):
        for y in x:
            if isinstance(y, list): gaps[g] += y
            else: gaps[g].append(y)
    if not last:
        for s in range(4): put(1 + 2*s, kread(J + 1, 1, s, F(4 + s)))
    put(22, stamp_issue())
    put(23, wait(vm=[rV(J), rK(J + 2)], lgkm=0), barrier(), stamp_save())
    pre, ops = dma_group(J + 3) if not last else ([], [])
    if pre: put(21, pre)
    seq = []
    vr = [vread(J, t, a, F(t)) for t in range(4) for a in range(2)]
    for k in range(4):
        if k < len(ops): seq.append(ops[k])
        seq += vr[2*k:2*k + 2]
    for k, x in enumerate(seq): put(25 + 2*k, x)
    for k, x in enumerate([vread(J, t, a, F(t)) for t in range(4, 8) for a in range(2)]): put(49 + 2*k, x)
    if not last:
        for s in range(4): put(77 + 2*s, kread(J + 2, 0, s, F(s))) if j < 14 else None
    if j < 12:
        if h == 0:
            put(63, salu("s_mov_b32", sSide, 98304 + j*2048))
            put(65, salu("s_add_u32", "m0", sStg, j*2048))
            put(67, dma(vsd0, sQ, sSide, 0, rQ(1, 2*j), O_.ld_flags))
            put(71, dma(vsd1, sQ, sSide, 1024, rQ(1, 2*j + 1), O_.ld_flags))
        else:
            r0 = o_piece_read(0, 2*j, stmp[0]); r1 = o_piece_read(0, 2*j + 1, stmp[1])
            for k, x in enumerate(r0 + r1): put(65 + 2*k, x)
            put(85, salu("s_mov_b32", sSide, j*2048))
            put(85, wait(lgkm=[stmp[0], stmp[1]]))
            put(87, vstore(stmp[0], vlin, sO, sSide, 0, O_.st_flags))
            put(91, vstore(stmp[1], vlin, sO, sSide, 1024, O_.st_flags))
    put(45, wait(lgkm=[F(0), F(1)]))
    put(57, wait(lgkm=[F(2), F(3)]))
    put(73, wait(lgkm=[F(4), F(5), F(6), F(7)]))
    if not last and j < 14: put(101, wait(lgkm=[F(s) for s in range(4)]))
    _, tail = sm_split(par)
    place_sm(gaps, tail, EG_B)
    if not last:
        first, _ = sm_split(1 - par)
        place_sm(gaps, first, EG_A)
    for g in range(n):
        if last and g < 48:
            for x in gaps[g]:
                if x.m.get("op") == "v_cvt_pk_bf16_f32": E(nop(0))
                E(x)
        else:
            E(mf[g], gaps[g])

def epilogue(h, final):
    E(comment(f"---- epilogue head {h}"))
    ow = [V(40 + k) for k in range(4)]
    t0, t1, t2 = V(44), V(45), V(46)
    E(valu("v_lshrrev_b32", t0, 5, vlane), valu("v_and_b32", t1, 7, vlane), valu("v_xor_b32", t0, t0, t1),
      valu("v_lshlrev_b32", t0, 4, t0), valu("v_lshrrev_b32", t1, 4, vlane), valu("v_lshrrev_b32", t2, 3, vlane),
      valu("v_xor_b32", t1, t1, t2), valu("v_and_b32", t1, 1, t1), valu("v_lshl_add_u32", t0, t1, 3, t0),
      valu("v_and_b32", t1, 15, vlane), valu("v_lshl_add_u32", t0, t1, 8, t0), valu("v_add_u32", ow[0], sStg, t0))
    for k in range(1, 4): E(valu("v_xor_b32", ow[k], k << 5, ow[0]))
    if h == 0:
        E(valu("v_lshrrev_b32", t0, 4, vlane), valu("v_xor_b32", t1, t1, t0), valu("v_lshlrev_b32", t1, 4, t1),
          valu("v_lshl_add_u32", t0, t0, 8, t1), valu("v_add_u32", vsd0, sStg, t0), valu("v_xor_b32", vsd1, 64, vsd0))
    rl = [V(24 + 2*b, 2) for b in range(NB)]
    for b in range(NB): E(valu("v_accvgpr_read_b32", rl[b][1], lacc(b)[0]))
    for b in range(NB): E(valu("v_rcp_f32", rl[b][0], rl[b][1]))
    E(valu("v_add_f32", t1, rl[0][1], rl[1][1]))
    for b in range(2, NB): E(valu("v_add_f32", t1, t1, rl[b][1]))
    E(Inst(f"v_cmp_nlt_f32 {sCmp}, {t1}, {sThr}", "valu", rs(t1, sThr), rs(sCmp)),
      nop(0), scmp("s_cmp_lg_u64", sCmp, 0), salu("s_cselect_b32", sT0, 1 << h, 0), salu("s_or_b32", sFlag, sFlag, sT0))
    for b in range(NB):
        for th in range(2):
            w = V(48 + 16*((2*b + th) % 2), 16); y = V(80 + 8*((2*b + th) % 2), 8)
            for k in range(4):
                o = Oreg(b, 4*th + k)
                if o.k == "a":
                    for r in range(4): E(valu("v_accvgpr_read_b32", w[4*k + r], o[r]))
            for k in range(4):
                o = Oreg(b, 4*th + k); src = o if o.k == "v" else w[4*k:4*k + 4]
                for r in range(2): E(valu("v_pk_mul_f32", w[4*k + 2*r:4*k + 2*r + 2], src[2*r:2*r + 2], rl[b], mods="op_sel_hi:[1,0]"))
            for k in range(8): E(valu("v_cvt_pk_bf16_f32", y[k], w[2*k], w[2*k + 1]))
            for k in range(4): E(ds_write("ds_write_b64", ow[k], y[2*k:2*k + 2], b*4096 + th*128, blockreg(rO, h, b)))
        if final:
            dst = [F((4*b + i) % 8) for i in range(4)]
            for i in range(4): E(o_piece_read(h, 4*b + i, dst[i]))
            if b > 0: E(final_store(h, b - 1))
    if final: E(final_store(h, NB - 1))
def final_store(h, b):
    dst = [F((4*b + i) % 8) for i in range(4)]
    o = [salu("s_mov_b32", sSide, h*98304 + b*4096), wait(lgkm=dst)]
    for i in range(4): o.append(vstore(dst[i], vlin, sO, sSide, i*1024, O_.st_flags))
    return o

def finish():
    if O_.stamps:
        E(wait(vm=0), raw("s_memrealtime s[42:43]", "smem", (), rs(S(42, 2))), wait(lgkm=0),
          salu("s_mov_b32", S(47), S(42)))
        E(salu("s_lshl_b32", sT0, S(2), 2), salu("s_add_u32", sT0, sT0, sW), salu("s_lshl_b32", sT0, sT0, 8))
        n = nstamp[0] + 2
        E(valu("v_mov_b32", V(1), sT0))
        for k in range(n):
            E(valu("v_mov_b32", V(2), S(46 + k)),
              Inst(f"global_store_dword v1, v2, s[44:45] offset:{4*k}", "vst", rs(V(1), V(2), S(44, 2)), (), data=set()), nop(1))
    E(label("L_end"))

def build():
    setup()
    for h in range(2):
        kfrag_early(h)
        if h == 1: free_first(h)
        q_phase(h)
        if h == 0: free_first(h)
        if h == 1:
            E(stamp_now()); epilogue(0, False); E(stamp_now())
        prologue(h)
        for j in range(16): iteration(h, j)
        E(stamp_now())
        E(nop(7))
    epilogue(1, True)
    E(stamp_now())
    finish()
    resolve_and_check([(i, lambda r: r) for i in prog], verbose=True)

HEAD = """; MHA forward, B=16 H=32 Sq=384 Sk=512 D=128, bf16.  Generated by gen/gen.py
; @launch grid=(256,1,1) block=(256,1,1) lds=163840
.amdgcn_target "amdgcn-amd-amdhsa--gfx950"
.text
.globl standalone__mha_softmax__near_ridge_kernel
.p2align 8
.type standalone__mha_softmax__near_ridge_kernel,@function
standalone__mha_softmax__near_ridge_kernel:
"""
TAIL = """s_endpgm
%s
.section .rodata,"a"
.p2align 6
.amdhsa_kernel standalone__mha_softmax__near_ridge_kernel
  .amdhsa_next_free_vgpr 512
  .amdhsa_next_free_sgpr 102
  .amdhsa_accum_offset 256
  .amdhsa_group_segment_fixed_size 0
  .amdhsa_kernarg_size 48
  .amdhsa_user_sgpr_count 2
  .amdhsa_user_sgpr_kernarg_segment_ptr 1
  .amdhsa_system_sgpr_workgroup_id_x 1
.end_amdhsa_kernel
"""
if __name__ == "__main__":
    out = sys.argv[1]
    for a in sys.argv[2:]:
        k, v = a.split("=")
        cur = getattr(O_, k)
        setattr(O_, k, (v not in ("0", "False")) if isinstance(cur, bool) else type(cur)(v))
    build()
    body = "\n".join((i.text if i.kind == "label" else "    " + i.text) for i in prog)
    pad = ""
    open(out, "w").write(HEAD + body + "\n" + TAIL % pad)
```

```python
import sys, math, struct
from ir import *

class Opt:
    stamps = 0
    st_flags = "sc0 sc1"
    ld_flags = "nt"
    prefetch_code = True
    pf_rounds = 2
O_ = Opt()

NB = 6
def f32bits(x): return struct.unpack("<I", struct.pack("<f", x))[0]
CSCALE = f32bits(math.log2(math.e) / math.sqrt(128.0))
THRESH = f32bits(2.0 ** 40)

def Sreg(b, a): return V(8*b + 4*a, 4)
def Preg(par, b): return V(48 + 24*par + 4*b, 4)
def negM(b): return V(96 + 4*b, 4)
kaddr = [V(120 + s) for s in range(4)]
vaddr = [V(124 + t) for t in range(8)]
vkv = V(132); vsd0 = V(133); vsd1 = V(134); vlin = V(135); vlane = V(136)
T = [V(137 + i) for i in range(7)]
def Oreg(b, t):
    n = 8*b + t
    return V(144 + 4*n, 4) if n < 28 else A(176 + 4*(n - 28), 4)
def Qreg(b, s): return A(16*b + 4*s, 4)
def F(i): return A(96 + 4*i, 4)
def lacc(b): return A(128 + 4*b, 4)
ones = A(152, 4)
stmp = [A(156, 4), A(160, 4)]
sQ, sK, sV, sO = S(12, 4), S(16, 4), S(20, 4), S(24, 4)
sW = S(28); sKVoff = S(29); sM0kv = S(30); sStg = S(31); sSide = S(32); sT0 = S(33); sT1 = S(34); sT2 = S(35)
sFlag = S(36); sThr = S(37); sC = S(38, 2); sCmp = S(40, 2); sStamp = S(42, 2)
STAMP0 = 48

def rK(J): return (("ring", (J - 2) % 4, "K"), ("K", J), True)
def rV(J): return (("ring", J % 4, "V"), ("V", J), True)
def rQ(h, p): return (("stg", p), ("Q", h), False)
def rO(h, p): return (("stg", p), ("O", h), False)
def blockreg(f, h, b): return [f(h, 4*b + i) for i in range(4)]

prog = []
def E(*xs):
    for x in xs:
        if isinstance(x, (list, tuple)): E(*x)
        else: prog.append(x)
nstamp = [0]
def stamp_issue():
    op = "s_memtime" if O_.stamps == 1 else "s_memrealtime"
    return [raw(f"{op} {sStamp}", "smem", (), rs(sStamp))] if O_.stamps else []
def stamp_save():
    if not O_.stamps: return []
    k = nstamp[0]; nstamp[0] += 1
    return [salu("s_mov_b32", S(STAMP0 + k), sStamp[0])]
def stamp_now():
    if not O_.stamps: return []
    return stamp_issue() + [wait(lgkm=0)] + stamp_save()

def kread(J, a, s, dst): return ds_read("ds_read_b128", dst, kaddr[s], ((J - 2) % 4)*16384 + a*8192, rK(J))
def vread(J, t, a, dst): return ds_read("ds_read_b64_tr_b16", dst[2*a:2*a+2], vaddr[t], (J % 4)*16384 + a*8192, rV(J))
def dma_group(J, withV=True):
    pre = [salu("s_add_u32", "m0", sM0kv, (J % 4)*16384), salu("s_mov_b32", sKVoff, (J + 2)*8192)]
    ops = []
    if withV and J < 32: ops.append(dma(vkv, sV, sKVoff, 1024, rV(J), O_.ld_flags))
    if J + 2 < 32: ops.append(dma(vkv, sK, sKVoff, 0, rK(J + 2), O_.ld_flags))
    if withV and J < 32: ops.append(dma(vkv, sV, sKVoff, 3072, rV(J), O_.ld_flags))
    if J + 2 < 32: ops.append(dma(vkv, sK, sKVoff, 2048, rK(J + 2), O_.ld_flags))
    return (pre if ops else []), ops

def setup():
    E(comment("---- setup"),
      scmp("s_cmp_ge_u32", S(2), 256), raw("s_cbranch_scc1 L_end", "salu", {"scc"}),
      raw("s_load_dwordx4 s[4:7], s[0:1], 0", "smem", (), rs(S(4, 4))),
      raw("s_load_dwordx4 s[8:11], s[0:1], 16", "smem", (), rs(S(8, 4))))
    if O_.stamps:
        E(raw("s_load_dwordx2 s[44:45], s[0:1], 40", "smem", (), rs(S(44, 2))),
          raw("s_memrealtime s[46:47]", "smem", (), rs(S(46, 2))))
    v0, v1, vi, vu, t0, t1, t2 = V(0), V(1), V(2), V(3), V(4), V(5), V(6)
    E(valu("v_lshrrev_b32", v1, 6, v0), valu("v_and_b32", vlane, 63, v0),
      valu("v_readfirstlane_b32", sW, v1),
      valu("v_and_b32", vi, 15, vlane), valu("v_lshrrev_b32", vu, 4, vlane),
      valu("v_lshlrev_b32", t0, 1, vu), valu("v_xor_b32", t0, t0, vi), valu("v_lshlrev_b32", t0, 4, t0),
      valu("v_lshl_add_u32", vsd0, vu, 8, t0), valu("v_xor_b32", vsd1, 128, vsd0),
      salu("s_and_b32", sT0, sW, 1), salu("s_lshr_b32", sT1, sW, 1),
      salu("s_lshl_b32", sT2, sT0, 7), salu("s_lshl_b32", sT0, sT0, 10), salu("s_lshl_b32", sT1, sT1, 12),
      salu("s_add_u32", sT0, sT0, sT1),
      valu("v_xor_b32", vkv, sT2, vsd0), valu("v_add_u32", vkv, sT0, vkv),
      salu("s_lshl_b32", sM0kv, sW, 12), salu("s_mul_i32", sStg, sW, 24576),
      wait(lgkm=0))
    E(salu("s_mul_i32", sT0, S(2), 196608), salu("s_add_u32", sT0, sT0, sStg), salu("s_add_u32", sStg, sStg, 65536),
      salu("s_lshl_b32", sT1, S(2), 18),
      salu("s_add_u32", sK[0], S(6), sT1), salu("s_addc_u32", sK[1], S(7), 0), salu("s_and_b32", sK[1], sK[1], "0xffff"),
      salu("s_mov_b32", sK[2], 262144), salu("s_mov_b32", sK[3], "0x20000"),
      salu("s_add_u32", sQ[0], S(4), sT0), salu("s_addc_u32", sQ[1], S(5), 0), salu("s_and_b32", sQ[1], sQ[1], "0xffff"),
      salu("s_mov_b32", sQ[2], 98304 + 24576), salu("s_mov_b32", sQ[3], "0x20000"))
    pre, ops = dma_group(-2, False); E(pre, ops)
    for b in range(NB): E(q_dma_block(0, b))
    pre, ops = dma_group(-1, False); E(pre, ops)
    E(salu("s_add_u32", sV[0], S(8), sT1), salu("s_addc_u32", sV[1], S(9), 0),
      salu("s_sub_u32", sV[0], sV[0], 1024 + 16384), salu("s_subb_u32", sV[1], sV[1], 0), salu("s_and_b32", sV[1], sV[1], "0xffff"),
      salu("s_mov_b32", sV[2], 262144 + 1024 + 16384), salu("s_mov_b32", sV[3], "0x20000"))
    for J in (0, 1):
        pre, ops = dma_group(J); E(pre, ops)
    if O_.prefetch_code:
        E(raw("s_getpc_b64 s[40:41]", "salu", (), rs(S(40, 2))), label("L_pc"),
          valu("v_lshlrev_b32", t0, 7, v0))
        for k in range(O_.pf_rounds):
            E(valu("v_min_u32", t1, "L_end-L_pc", t0))
            E(Inst(f"global_load_dword {T[k]}, {t1}, s[40:41]", "vld", rs(t1, S(40, 2)), rs(T[k])))
            if k + 1 < O_.pf_rounds: E(valu("v_add_u32", t0, 32768, t0))
    E(salu("s_add_u32", sO[0], S(10), sT0), salu("s_addc_u32", sO[1], S(11), 0), salu("s_and_b32", sO[1], sO[1], "0xffff"),
      salu("s_mov_b32", sO[2], 98304 + 24576), salu("s_mov_b32", sO[3], "0x20000"),
      salu("s_mov_b32", sC[0], hex(CSCALE)), salu("s_mov_b32", sC[1], hex(CSCALE)),
      salu("s_mov_b32", sThr, hex(THRESH)), salu("s_mov_b32", sFlag, 0))
    E(valu("v_and_b32", t0, 7, vi), valu("v_lshlrev_b32", t0, 1, t0), valu("v_xor_b32", t0, t0, vu), valu("v_lshlrev_b32", t0, 4, t0),
      valu("v_and_b32", t1, 3, vi), valu("v_lshl_add_u32", t0, t1, 8, t0),
      valu("v_lshrrev_b32", t1, 3, vi), valu("v_lshl_add_u32", t0, t1, 11, t0),
      valu("v_bfe_u32", t1, vi, 2, 1), valu("v_lshl_add_u32", kaddr[0], t1, 12, t0))
    for s in range(1, 4): E(valu("v_xor_b32", kaddr[s], s << 6, kaddr[0]))
    E(valu("v_lshrrev_b32", t1, 2, vi), valu("v_and_b32", t2, 1, vu), valu("v_lshl_add_u32", t0, t2, 2, t1),
      valu("v_lshlrev_b32", t0, 5, t0), valu("v_lshl_add_u32", t0, t1, 8, t0), valu("v_lshl_add_u32", t0, t2, 12, t0),
      valu("v_lshrrev_b32", t2, 1, vu), valu("v_lshl_add_u32", t0, t2, 11, t0),
      valu("v_and_b32", t1, 3, vi), valu("v_lshl_add_u32", t0, t1, 3, t0), valu("v_add_u32", vaddr[0], 1024, t0))
    for t in range(1, 8): E(valu("v_xor_b32", vaddr[t], t << 5, vaddr[0]))
    E(valu("v_lshlrev_b32", vlin, 4, vlane), valu("v_mov_b32", t0, "0x3f803f80"))
    for r in range(4): E(valu("v_accvgpr_write_b32", ones[r], t0))

def q_dma_block(h, b):
    o = [salu("s_add_u32", "m0", sStg, b*4096), salu("s_mov_b32", sSide, h*98304 + b*4096)]
    for i in range(4): o.append(dma(vsd1 if i & 1 else vsd0, sQ, sSide, i*1024, rQ(h, 4*b + i), O_.ld_flags))
    return o

def q_phase(h):
    E(comment(f"---- Q phase head {h}"))
    qa = [V(40 + s) for s in range(4)]
    t0, t1 = V(44), V(45)
    E(valu("v_and_b32", t0, 7, vlane), valu("v_lshlrev_b32", t0, 1, t0), valu("v_lshrrev_b32", t1, 4, vlane),
      valu("v_xor_b32", t0, t0, t1), valu("v_lshlrev_b32", t0, 4, t0), valu("v_and_b32", t1, 15, vlane),
      valu("v_lshl_add_u32", t0, t1, 8, t0), valu("v_add_u32", qa[0], sStg, t0))
    for s in range(1, 4): E(valu("v_xor_b32", qa[s], s << 6, qa[0]))
    rawr = lambda b, s: V(48 + 16*(b % 3) + 4*s, 4)
    def rd(b):
        return [wait(vm=blockreg(rQ, h, b))] + [ds_read("ds_read_b128", rawr(b, s), qa[s], b*4096, blockreg(rQ, h, b)) for s in range(4)]
    pre = 1 if h == 0 else 2
    for b in range(pre): E(rd(b))
    for b in range(NB):
        if h > 0 and b + pre < NB: E(rd(b + pre))
        E(wait(lgkm=[rawr(b, s) for s in range(4)]))
        for s in range(4):
            x = rawr(b, s); w = V(8*(s % 2), 8); y = V(16 + 4*(s % 2), 4)
            for r in range(4):
                E(valu("v_lshlrev_b32", w[2*r], 16, x[r]), valu("v_and_b32", w[2*r+1], "0xffff0000", x[r]))
            for r in range(4): E(valu("v_pk_mul_f32", w[2*r:2*r+2], w[2*r:2*r+2], sC))
            for r in range(4): E(valu("v_cvt_pk_bf16_f32", y[r], w[2*r], w[2*r+1]))
            for r in range(4): E(valu("v_accvgpr_write_b32", Qreg(b, s)[r], y[r]))
        if h == 0 and b + 1 < NB: E(rd(b + 1))

def sm_ops(par, b, a):
    s = Sreg(b, a); p = Preg(par, b)
    return [("e", valu("v_exp_f32", s[0], s[0])), ("e", valu("v_exp_f32", s[1], s[1])),
            ("c", valu("v_cvt_pk_bf16_f32", p[2*a], s[0], s[1])),
            ("e", valu("v_exp_f32", s[2], s[2])), ("e", valu("v_exp_f32", s[3], s[3])),
            ("c", valu("v_cvt_pk_bf16_f32", p[2*a+1], s[2], s[3]))]
def sm_stream(par):
    o = []
    for a in range(2):
        for b in range(NB): o += sm_ops(par, b, a)
    return o
EG_A = list(range(24, 102, 2))
NE_A = 38
EG_B = list(range(0, 20, 2))
assert NE_A + len(EG_B) == 48
def sm_split(par):
    st = sm_stream(par); ne = 0
    for idx, (k, _) in enumerate(st):
        if k == "e":
            if ne == NE_A: return st[:idx], st[idx:]
            ne += 1
def place_sm(gaps, ops, eg):
    g = None; n = 0
    for k, inst in ops:
        if k == "e": g = eg[n]; n += 1; gaps[g].append(inst)
        else: gaps[g + 1].append(inst)

def kfrag_early(h):
    J = 16*h
    E(comment(f"---- first K tile head {h}"))
    if h == 0: E(stamp_now(), wait(vm=[rK(0)]), barrier(), stamp_now())
    for a in range(2):
        for s in range(4): E(kread(J, a, s, F(4*a + s)))
def free_first(h):
    J = 16*h
    E(stamp_issue(), wait(vm=[rK(J + 1)], lgkm=0), barrier(), stamp_save())
    pre, ops = dma_group(J + 2); E(pre, ops)

def prologue(h):
    J = 16*h
    E(comment(f"---- prologue head {h}: S(0), row max stand-in, first softmax part"), nop(1))
    for b in range(NB):
        for a in range(2):
            for s in range(4): E(mfma(Sreg(b, a), F(4*a + s), Qreg(b, s), 0 if s == 0 else Sreg(b, a)))
    for s in range(4): E(kread(J + 1, 0, s, F(s)))
    m = [negM(b)[0] for b in range(NB)]; t = [negM(b)[1] for b in range(NB)]
    sv = lambda b, r: V(8*b + r)
    E(nop(3))
    for b in range(NB): E(valu("v_max3_f32", m[b], sv(b, 0), sv(b, 1), sv(b, 2)))
    for b in range(NB): E(valu("v_max3_f32", m[b], m[b], sv(b, 3), sv(b, 4)))
    for b in range(NB): E(valu("v_max3_f32", m[b], m[b], sv(b, 5), sv(b, 6)))
    for b in range(NB): E(valu("v_max_f32", m[b], m[b], sv(b, 7)))
    for op in ("v_permlane32_swap_b32", "v_permlane16_swap_b32"):
        for b in range(NB): E(valu("v_mov_b32", t[b], m[b]))
        for b in range(NB): E(swap(op, m[b], t[b]))
        for b in range(NB): E(valu("v_max_f32", m[b], m[b], t[b]))
    for b in range(NB):
        for r in (1, 2, 3, 0): E(valu("v_sub_f32", negM(b)[r], 0, m[b]))
    for b in range(NB):
        for r in range(4): E(valu("v_pk_add_f32", V(8*b + 2*r, 2), V(8*b + 2*r, 2), negM(b)[0:2]))
    first, _ = sm_split(0)
    pend = []
    for k, inst in first:
        if k == "e":
            E(inst)
            if len(pend) > 1: E(pend.pop(0))
        else: pend.append(inst)
    E(nop(0), pend)
    E(wait(lgkm=[F(s) for s in range(4)]))

def o_piece_read(h, p, dst):
    ad = vsd1 if p & 1 else vsd0
    if (p >> 1) & 1:
        return [ds_read("ds_read_b64", dst[0:2], ad, p*1024 + 8, rO(h, p)), ds_read("ds_read_b64", dst[2:4], ad, p*1024, rO(h, p))]
    return [ds_read("ds_read_b128", dst, ad, p*1024, rO(h, p))]

def iteration(h, j):
    J = 16*h + j; par = j & 1; last = (j == 15)
    E(comment(f"---- head {h} iter {j}"))
    mf = []
    for a in range(2):
        for b in range(NB):
            for s in range(4): mf.append(mfma(Sreg(b, a), F(4*a + s), Qreg(b, s), negM(b) if s == 0 else Sreg(b, a)))
    tstart = {}
    for t in range(8):
        tstart[t] = len(mf)
        for b in range(NB): mf.append(mfma(Oreg(b, t), F(t), Preg(par, b), 0 if j == 0 else Oreg(b, t)))
        if t < NB: mf.append(mfma(lacc(t), ones, Preg(par, t), 0 if j == 0 else lacc(t)))
    n = len(mf); assert n == 102
    gaps = [[] for _ in range(n)]
    def put(g, *x):
        for y in x:
            if isinstance(y, list): gaps[g] += y
            else: gaps[g].append(y)
    if not last:
        for s in range(4): put(1 + 2*s, kread(J + 1, 1, s, F(4 + s)))
    put(22, stamp_issue())
    put(23, wait(vm=[rV(J), rK(J + 2)], lgkm=0), barrier(), stamp_save())
    pre, ops = dma_group(J + 3) if not last else ([], [])
    if pre: put(21, pre)
    seq = []
    vr = [vread(J, t, a, F(t)) for t in range(4) for a in range(2)]
    for k in range(4):
        if k < len(ops): seq.append(ops[k])
        seq += vr[2*k:2*k + 2]
    for k, x in enumerate(seq): put(25 + 2*k, x)
    for k, x in enumerate([vread(J, t, a, F(t)) for t in range(4, 8) for a in range(2)]): put(49 + 2*k, x)
    if not last:
        for s in range(4): put(77 + 2*s, kread(J + 2, 0, s, F(s))) if j < 14 else None
    if j < 12:
        if h == 0:
            put(63, salu("s_mov_b32", sSide, 98304 + j*2048))
            put(65, salu("s_add_u32", "m0", sStg, j*2048))
            put(67, dma(vsd0, sQ, sSide, 0, rQ(1, 2*j), O_.ld_flags))
            put(71, dma(vsd1, sQ, sSide, 1024, rQ(1, 2*j + 1), O_.ld_flags))
        else:
            r0 = o_piece_read(0, 2*j, stmp[0]); r1 = o_piece_read(0, 2*j + 1, stmp[1])
            for k, x in enumerate(r0 + r1): put(65 + 2*k, x)
            put(85, salu("s_mov_b32", sSide, j*2048))
            put(85, wait(lgkm=[stmp[0], stmp[1]]))
            put(87, vstore(stmp[0], vlin, sO, sSide, 0, O_.st_flags))
            put(91, vstore(stmp[1], vlin, sO, sSide, 1024, O_.st_flags))
    put(45, wait(lgkm=[F(0), F(1)]))
    put(57, wait(lgkm=[F(2), F(3)]))
    put(73, wait(lgkm=[F(4), F(5), F(6), F(7)]))
    if not last and j < 14: put(101, wait(lgkm=[F(s) for s in range(4)]))
    _, tail = sm_split(par)
    place_sm(gaps, tail, EG_B)
    if not last:
        first, _ = sm_split(1 - par)
        place_sm(gaps, first, EG_A)
    for g in range(n):
        if last and g < 48:
            for x in gaps[g]:
                if x.m.get("op") == "v_cvt_pk_bf16_f32": E(nop(0))
                E(x)
        else:
            E(mf[g], gaps[g])

def epilogue(h, final):
    E(comment(f"---- epilogue head {h}"))
    ow = [V(40 + k) for k in range(4)]
    t0, t1, t2 = V(44), V(45), V(46)
    E(valu("v_lshrrev_b32", t0, 5, vlane), valu("v_and_b32", t1, 7, vlane), valu("v_xor_b32", t0, t0, t1),
      valu("v_lshlrev_b32", t0, 4, t0), valu("v_lshrrev_b32", t1, 4, vlane), valu("v_lshrrev_b32", t2, 3, vlane),
      valu("v_xor_b32", t1, t1, t2), valu("v_and_b32", t1, 1, t1), valu("v_lshl_add_u32", t0, t1, 3, t0),
      valu("v_and_b32", t1, 15, vlane), valu("v_lshl_add_u32", t0, t1, 8, t0), valu("v_add_u32", ow[0], sStg, t0))
    for k in range(1, 4): E(valu("v_xor_b32", ow[k], k << 5, ow[0]))
    if h == 0:
        E(valu("v_lshrrev_b32", t0, 4, vlane), valu("v_xor_b32", t1, t1, t0), valu("v_lshlrev_b32", t1, 4, t1),
          valu("v_lshl_add_u32", t0, t0, 8, t1), valu("v_add_u32", vsd0, sStg, t0), valu("v_xor_b32", vsd1, 64, vsd0))
    rl = [V(24 + 2*b, 2) for b in range(NB)]
    for b in range(NB): E(valu("v_accvgpr_read_b32", rl[b][1], lacc(b)[0]))
    for b in range(NB): E(valu("v_rcp_f32", rl[b][0], rl[b][1]))
    E(valu("v_add_f32", t1, rl[0][1], rl[1][1]))
    for b in range(2, NB): E(valu("v_add_f32", t1, t1, rl[b][1]))
    E(Inst(f"v_cmp_nlt_f32 {sCmp}, {t1}, {sThr}", "valu", rs(t1, sThr), rs(sCmp)),
      nop(0), scmp("s_cmp_lg_u64", sCmp, 0), salu("s_cselect_b32", sT0, 1 << h, 0), salu("s_or_b32", sFlag, sFlag, sT0))
    for b in range(NB):
        for th in range(2):
            w = V(48 + 16*((2*b + th) % 2), 16); y = V(80 + 8*((2*b + th) % 2), 8)
            for k in range(4):
                o = Oreg(b, 4*th + k)
                if o.k == "a":
                    for r in range(4): E(valu("v_accvgpr_read_b32", w[4*k + r], o[r]))
            for k in range(4):
                o = Oreg(b, 4*th + k); src = o if o.k == "v" else w[4*k:4*k + 4]
                for r in range(2): E(valu("v_pk_mul_f32", w[4*k + 2*r:4*k + 2*r + 2], src[2*r:2*r + 2], rl[b], mods="op_sel_hi:[1,0]"))
            for k in range(8): E(valu("v_cvt_pk_bf16_f32", y[k], w[2*k], w[2*k + 1]))
            for k in range(4): E(ds_write("ds_write_b64", ow[k], y[2*k:2*k + 2], b*4096 + th*128, blockreg(rO, h, b)))
        if final:
            dst = [F((4*b + i) % 8) for i in range(4)]
            for i in range(4): E(o_piece_read(h, 4*b + i, dst[i]))
            if b > 0: E(final_store(h, b - 1))
    if final: E(final_store(h, NB - 1))
def final_store(h, b):
    dst = [F((4*b + i) % 8) for i in range(4)]
    o = [salu("s_mov_b32", sSide, h*98304 + b*4096), wait(lgkm=dst)]
    for i in range(4): o.append(vstore(dst[i], vlin, sO, sSide, i*1024, O_.st_flags))
    return o

def finish():
    if O_.stamps:
        E(wait(vm=0), raw("s_memrealtime s[42:43]", "smem", (), rs(S(42, 2))), wait(lgkm=0),
          salu("s_mov_b32", S(47), S(42)))
        E(salu("s_lshl_b32", sT0, S(2), 2), salu("s_add_u32", sT0, sT0, sW), salu("s_lshl_b32", sT0, sT0, 8))
        n = nstamp[0] + 2
        E(valu("v_mov_b32", V(1), sT0))
        for k in range(n):
            E(valu("v_mov_b32", V(2), S(46 + k)),
              Inst(f"global_store_dword v1, v2, s[44:45] offset:{4*k}", "vst", rs(V(1), V(2), S(44, 2)), (), data=set()), nop(1))
    E(label("L_end"))

def build():
    setup()
    for h in range(2):
        kfrag_early(h)
        if h == 1: free_first(h)
        q_phase(h)
        if h == 0: free_first(h)
        if h == 1:
            E(stamp_now()); epilogue(0, False); E(stamp_now())
        prologue(h)
        for j in range(16): iteration(h, j)
        E(stamp_now())
        E(nop(7))
    epilogue(1, True)
    E(stamp_now())
    finish()
    resolve_and_check([(i, lambda r: r) for i in prog], verbose=True)

HEAD = """; MHA forward, B=16 H=32 Sq=384 Sk=512 D=128, bf16.  Generated by gen/gen.py
; @launch grid=(256,1,1) block=(256,1,1) lds=163840
.amdgcn_target "amdgcn-amd-amdhsa--gfx950"
.text
.globl standalone__mha_softmax__near_ridge_kernel
.p2align 8
.type standalone__mha_softmax__near_ridge_kernel,@function
standalone__mha_softmax__near_ridge_kernel:
"""
TAIL = """s_endpgm
%s
.section .rodata,"a"
.p2align 6
.amdhsa_kernel standalone__mha_softmax__near_ridge_kernel
  .amdhsa_next_free_vgpr 512
  .amdhsa_next_free_sgpr 102
  .amdhsa_accum_offset 256
  .amdhsa_group_segment_fixed_size 0
  .amdhsa_kernarg_size 48
  .amdhsa_user_sgpr_count 2
  .amdhsa_user_sgpr_kernarg_segment_ptr 1
  .amdhsa_system_sgpr_workgroup_id_x 1
.end_amdhsa_kernel
"""
if __name__ == "__main__":
    out = sys.argv[1]
    for a in sys.argv[2:]:
        k, v = a.split("=")
        cur = getattr(O_, k)
        setattr(O_, k, (v not in ("0", "False")) if isinstance(cur, bool) else type(cur)(v))
    build()
    body = "\n".join((i.text if i.kind == "label" else "    " + i.text) for i in prog)
    pad = ""
    open(out, "w").write(HEAD + body + "\n" + TAIL % pad)
```

```python
import sys, math, struct
from ir import *

class Opt:
    stamps = 0
    st_flags = ""
    ld_flags = "nt"
    prefetch_code = True
    pf_rounds = 2
    probe = 0
    fin_flags = ""
    o_sched = "2222222222220000"
O_ = Opt()

NB = 6
def f32bits(x): return struct.unpack("<I", struct.pack("<f", x))[0]
CSCALE = f32bits(math.log2(math.e) / math.sqrt(128.0))
THRESH = f32bits(2.0 ** 40)

def Sreg(b, a): return V(8*b + 4*a, 4)
def Preg(par, b): return V(48 + 24*par + 4*b, 4)
def negM(b): return V(96 + 4*b, 4)
kaddr = [V(120 + s) for s in range(4)]
vaddr = [V(124 + t) for t in range(8)]
vkv = V(132); vsd0 = V(133); vsd1 = V(134); vlin = V(135); vlane = V(136)
T = [V(137 + i) for i in range(7)]
def Oreg(b, t):
    n = 8*b + t
    return V(144 + 4*n, 4) if n < 28 else A(176 + 4*(n - 28), 4)
def Qreg(b, s): return A(16*b + 4*s, 4)
def F(i): return A(96 + 4*i, 4)
def lacc(b): return A(128 + 4*b, 4)
ones = A(152, 4)
stmp = [A(156, 4), A(160, 4)]
sQ, sK, sV, sO = S(12, 4), S(16, 4), S(20, 4), S(24, 4)
sW = S(28); sKVoff = S(29); sM0kv = S(30); sStg = S(31); sSide = S(32); sT0 = S(33); sT1 = S(34); sT2 = S(35)
sFlag = S(36); sThr = S(37); sC = S(38, 2); sCmp = S(40, 2); sStamp = S(42, 2)
STAMP0 = 48

def rK(J): return (("ring", (J - 2) % 4, "K"), ("K", J), True)
def rV(J): return (("ring", J % 4, "V"), ("V", J), True)
def rQ(h, p): return (("stg", p), ("Q", h), False)
def rO(h, p): return (("stg", p), ("O", h), False)
def blockreg(f, h, b): return [f(h, 4*b + i) for i in range(4)]

prog = []
def E(*xs):
    for x in xs:
        if isinstance(x, (list, tuple)): E(*x)
        else: prog.append(x)
nstamp = [0]
def stamp_issue():
    op = "s_memtime" if O_.stamps == 1 else "s_memrealtime"
    return [raw(f"{op} {sStamp}", "smem", (), rs(sStamp))] if O_.stamps else []
def stamp_save():
    if not O_.stamps: return []
    k = nstamp[0]; nstamp[0] += 1
    return [salu("s_mov_b32", S(STAMP0 + k), sStamp[0])]
def stamp_now():
    if not O_.stamps: return []
    return stamp_issue() + [wait(lgkm=0)] + stamp_save()

def kread(J, a, s, dst): return ds_read("ds_read_b128", dst, kaddr[s], ((J - 2) % 4)*16384 + a*8192, rK(J))
def vread(J, t, a, dst): return ds_read("ds_read_b64_tr_b16", dst[2*a:2*a+2], vaddr[t], (J % 4)*16384 + a*8192, rV(J))
def dma_group(J, withV=True):
    pre = [salu("s_add_u32", "m0", sM0kv, (J % 4)*16384), salu("s_mov_b32", sKVoff, (J + 2)*8192)]
    ops = []
    if withV and J < 32: ops.append(dma(vkv, sV, sKVoff, 1024, rV(J), O_.ld_flags))
    if J + 2 < 32: ops.append(dma(vkv, sK, sKVoff, 0, rK(J + 2), O_.ld_flags))
    if withV and J < 32: ops.append(dma(vkv, sV, sKVoff, 3072, rV(J), O_.ld_flags))
    if J + 2 < 32: ops.append(dma(vkv, sK, sKVoff, 2048, rK(J + 2), O_.ld_flags))
    return (pre if ops else []), ops

def setup():
    E(comment("---- setup"),
      scmp("s_cmp_ge_u32", S(2), 256), raw("s_cbranch_scc1 L_end", "salu", {"scc"}),
      raw("s_load_dwordx4 s[4:7], s[0:1], 0", "smem", (), rs(S(4, 4))),
      raw("s_load_dwordx4 s[8:11], s[0:1], 16", "smem", (), rs(S(8, 4))))
    if O_.stamps:
        E(raw("s_load_dwordx2 s[44:45], s[0:1], 40", "smem", (), rs(S(44, 2))),
          raw("s_memrealtime s[46:47]", "smem", (), rs(S(46, 2))))
    v0, v1, vi, vu, t0, t1, t2 = V(0), V(1), V(2), V(3), V(4), V(5), V(6)
    E(valu("v_lshrrev_b32", v1, 6, v0), valu("v_and_b32", vlane, 63, v0),
      valu("v_readfirstlane_b32", sW, v1),
      valu("v_and_b32", vi, 15, vlane), valu("v_lshrrev_b32", vu, 4, vlane),
      valu("v_lshlrev_b32", t0, 1, vu), valu("v_xor_b32", t0, t0, vi), valu("v_lshlrev_b32", t0, 4, t0),
      valu("v_lshl_add_u32", vsd0, vu, 8, t0), valu("v_xor_b32", vsd1, 128, vsd0),
      salu("s_and_b32", sT0, sW, 1), salu("s_lshr_b32", sT1, sW, 1),
      salu("s_lshl_b32", sT2, sT0, 7), salu("s_lshl_b32", sT0, sT0, 10), salu("s_lshl_b32", sT1, sT1, 12),
      salu("s_add_u32", sT0, sT0, sT1),
      valu("v_xor_b32", vkv, sT2, vsd0), valu("v_add_u32", vkv, sT0, vkv),
      salu("s_lshl_b32", sM0kv, sW, 12), salu("s_mul_i32", sStg, sW, 24576),
      wait(lgkm=0))
    if O_.probe: E(stamp_now())
    E(salu("s_mul_i32", sT0, S(2), 196608), salu("s_add_u32", sT0, sT0, sStg), salu("s_add_u32", sStg, sStg, 65536),
      salu("s_lshl_b32", sT1, S(2), 18),
      salu("s_add_u32", sK[0], S(6), sT1), salu("s_addc_u32", sK[1], S(7), 0), salu("s_and_b32", sK[1], sK[1], "0xffff"),
      salu("s_mov_b32", sK[2], 262144), salu("s_mov_b32", sK[3], "0x20000"),
      salu("s_add_u32", sQ[0], S(4), sT0), salu("s_addc_u32", sQ[1], S(5), 0), salu("s_and_b32", sQ[1], sQ[1], "0xffff"),
      salu("s_mov_b32", sQ[2], 98304 + 24576), salu("s_mov_b32", sQ[3], "0x20000"))
    pre, ops = dma_group(-2, False); E(pre, ops)
    for b in range(NB):
        E(q_dma_block(0, b))
        if O_.probe: E(stamp_now())
    if O_.probe:
        E(wait(vm=[rK(0)]), stamp_now())
        for b in range(NB): E(wait(vm=blockreg(rQ, 0, b)), stamp_now())
    pre, ops = dma_group(-1, False); E(pre, ops)
    E(salu("s_add_u32", sV[0], S(8), sT1), salu("s_addc_u32", sV[1], S(9), 0),
      salu("s_sub_u32", sV[0], sV[0], 1024 + 16384), salu("s_subb_u32", sV[1], sV[1], 0), salu("s_and_b32", sV[1], sV[1], "0xffff"),
      salu("s_mov_b32", sV[2], 262144 + 1024 + 16384), salu("s_mov_b32", sV[3], "0x20000"))
    for J in (0, 1):
        pre, ops = dma_group(J); E(pre, ops)
    if O_.prefetch_code:
        E(raw("s_getpc_b64 s[40:41]", "salu", (), rs(S(40, 2))), label("L_pc"),
          valu("v_lshlrev_b32", t0, 7, v0))
        for k in range(O_.pf_rounds):
            E(valu("v_min_u32", t1, "L_end-L_pc", t0))
            E(Inst(f"global_load_dword {T[k]}, {t1}, s[40:41]", "vld", rs(t1, S(40, 2)), rs(T[k])))
            if k + 1 < O_.pf_rounds: E(valu("v_add_u32", t0, 32768, t0))
    E(salu("s_add_u32", sO[0], S(10), sT0), salu("s_addc_u32", sO[1], S(11), 0), salu("s_and_b32", sO[1], sO[1], "0xffff"),
      salu("s_mov_b32", sO[2], 98304 + 24576), salu("s_mov_b32", sO[3], "0x20000"),
      salu("s_mov_b32", sC[0], hex(CSCALE)), salu("s_mov_b32", sC[1], hex(CSCALE)),
      salu("s_mov_b32", sThr, hex(THRESH)), salu("s_mov_b32", sFlag, 0))
    E(valu("v_and_b32", t0, 7, vi), valu("v_lshlrev_b32", t0, 1, t0), valu("v_xor_b32", t0, t0, vu), valu("v_lshlrev_b32", t0, 4, t0),
      valu("v_and_b32", t1, 3, vi), valu("v_lshl_add_u32", t0, t1, 8, t0),
      valu("v_lshrrev_b32", t1, 3, vi), valu("v_lshl_add_u32", t0, t1, 11, t0),
      valu("v_bfe_u32", t1, vi, 2, 1), valu("v_lshl_add_u32", kaddr[0], t1, 12, t0))
    for s in range(1, 4): E(valu("v_xor_b32", kaddr[s], s << 6, kaddr[0]))
    E(valu("v_lshrrev_b32", t1, 2, vi), valu("v_and_b32", t2, 1, vu), valu("v_lshl_add_u32", t0, t2, 2, t1),
      valu("v_lshlrev_b32", t0, 5, t0), valu("v_lshl_add_u32", t0, t1, 8, t0), valu("v_lshl_add_u32", t0, t2, 12, t0),
      valu("v_lshrrev_b32", t2, 1, vu), valu("v_lshl_add_u32", t0, t2, 11, t0),
      valu("v_and_b32", t1, 3, vi), valu("v_lshl_add_u32", t0, t1, 3, t0), valu("v_add_u32", vaddr[0], 1024, t0))
    for t in range(1, 8): E(valu("v_xor_b32", vaddr[t], t << 5, vaddr[0]))
    E(valu("v_lshlrev_b32", vlin, 4, vlane), valu("v_mov_b32", t0, "0x3f803f80"))
    for r in range(4): E(valu("v_accvgpr_write_b32", ones[r], t0))

def q_dma_block(h, b):
    o = [salu("s_add_u32", "m0", sStg, b*4096), salu("s_mov_b32", sSide, h*98304 + b*4096)]
    for i in range(4): o.append(dma(vsd1 if i & 1 else vsd0, sQ, sSide, i*1024, rQ(h, 4*b + i), O_.ld_flags))
    return o

def q_phase(h):
    E(comment(f"---- Q phase head {h}"))
    qa = [V(40 + s) for s in range(4)]
    t0, t1 = V(44), V(45)
    E(valu("v_and_b32", t0, 7, vlane), valu("v_lshlrev_b32", t0, 1, t0), valu("v_lshrrev_b32", t1, 4, vlane),
      valu("v_xor_b32", t0, t0, t1), valu("v_lshlrev_b32", t0, 4, t0), valu("v_and_b32", t1, 15, vlane),
      valu("v_lshl_add_u32", t0, t1, 8, t0), valu("v_add_u32", qa[0], sStg, t0))
    for s in range(1, 4): E(valu("v_xor_b32", qa[s], s << 6, qa[0]))
    rawr = lambda b, s: V(48 + 16*(b % 3) + 4*s, 4)
    def rd(b):
        return [wait(vm=blockreg(rQ, h, b))] + [ds_read("ds_read_b128", rawr(b, s), qa[s], b*4096, blockreg(rQ, h, b)) for s in range(4)]
    pre = 1 if h == 0 else 2
    for b in range(pre): E(rd(b))
    for b in range(NB):
        if h > 0 and b + pre < NB: E(rd(b + pre))
        E(wait(lgkm=[rawr(b, s) for s in range(4)]))
        for s in range(4):
            x = rawr(b, s); w = V(8*(s % 2), 8); y = V(16 + 4*(s % 2), 4)
            for r in range(4):
                E(valu("v_lshlrev_b32", w[2*r], 16, x[r]), valu("v_and_b32", w[2*r+1], "0xffff0000", x[r]))
            for r in range(4): E(valu("v_pk_mul_f32", w[2*r:2*r+2], w[2*r:2*r+2], sC))
            for r in range(4): E(valu("v_cvt_pk_bf16_f32", y[r], w[2*r], w[2*r+1]))
            for r in range(4): E(valu("v_accvgpr_write_b32", Qreg(b, s)[r], y[r]))
        if h == 0 and b + 1 < NB: E(rd(b + 1))

def sm_ops(par, b, a):
    s = Sreg(b, a); p = Preg(par, b)
    return [("e", valu("v_exp_f32", s[0], s[0])), ("e", valu("v_exp_f32", s[1], s[1])),
            ("c", valu("v_cvt_pk_bf16_f32", p[2*a], s[0], s[1])),
            ("e", valu("v_exp_f32", s[2], s[2])), ("e", valu("v_exp_f32", s[3], s[3])),
            ("c", valu("v_cvt_pk_bf16_f32", p[2*a+1], s[2], s[3]))]
def sm_stream(par):
    o = []
    for a in range(2):
        for b in range(NB): o += sm_ops(par, b, a)
    return o
EG_A = list(range(24, 102, 2))
NE_A = 38
EG_B = list(range(0, 20, 2))
assert NE_A + len(EG_B) == 48
def sm_split(par):
    st = sm_stream(par); ne = 0
    for idx, (k, _) in enumerate(st):
        if k == "e":
            if ne == NE_A: return st[:idx], st[idx:]
            ne += 1
def place_sm(gaps, ops, eg):
    g = None; n = 0
    for k, inst in ops:
        if k == "e": g = eg[n]; n += 1; gaps[g].append(inst)
        else: gaps[g + 1].append(inst)

def kfrag_early(h):
    J = 16*h
    E(comment(f"---- first K tile head {h}"))
    if h == 0: E(stamp_now(), wait(vm=[rK(0)]), barrier(), stamp_now())
    for a in range(2):
        for s in range(4): E(kread(J, a, s, F(4*a + s)))
def free_first(h):
    J = 16*h
    E(stamp_issue(), wait(vm=[rK(J + 1)], lgkm=0), barrier(), stamp_save())
    pre, ops = dma_group(J + 2); E(pre, ops)

def prologue(h):
    J = 16*h
    E(comment(f"---- prologue head {h}: S(0), row max stand-in, first softmax part"), nop(1))
    for b in range(NB):
        for a in range(2):
            for s in range(4): E(mfma(Sreg(b, a), F(4*a + s), Qreg(b, s), 0 if s == 0 else Sreg(b, a)))
    for s in range(4): E(kread(J + 1, 0, s, F(s)))
    m = [negM(b)[0] for b in range(NB)]; t = [negM(b)[1] for b in range(NB)]
    sv = lambda b, r: V(8*b + r)
    E(nop(3))
    for b in range(NB): E(valu("v_max3_f32", m[b], sv(b, 0), sv(b, 1), sv(b, 2)))
    for b in range(NB): E(valu("v_max3_f32", m[b], m[b], sv(b, 3), sv(b, 4)))
    for b in range(NB): E(valu("v_max3_f32", m[b], m[b], sv(b, 5), sv(b, 6)))
    for b in range(NB): E(valu("v_max_f32", m[b], m[b], sv(b, 7)))
    for op in ("v_permlane32_swap_b32", "v_permlane16_swap_b32"):
        for b in range(NB): E(valu("v_mov_b32", t[b], m[b]))
        for b in range(NB): E(swap(op, m[b], t[b]))
        for b in range(NB): E(valu("v_max_f32", m[b], m[b], t[b]))
    for b in range(NB):
        for r in (1, 2, 3, 0): E(valu("v_sub_f32", negM(b)[r], 0, m[b]))
    for b in range(NB):
        for r in range(4): E(valu("v_pk_add_f32", V(8*b + 2*r, 2), V(8*b + 2*r, 2), negM(b)[0:2]))
    first, _ = sm_split(0)
    pend = []
    for k, inst in first:
        if k == "e":
            E(inst)
            if len(pend) > 1: E(pend.pop(0))
        else: pend.append(inst)
    E(nop(0), pend)
    E(wait(lgkm=[F(s) for s in range(4)]))

def o_piece_read(h, p, dst):
    ad = vsd1 if p & 1 else vsd0
    if (p >> 1) & 1:
        return [ds_read("ds_read_b64", dst[0:2], ad, p*1024 + 8, rO(h, p)), ds_read("ds_read_b64", dst[2:4], ad, p*1024, rO(h, p))]
    return [ds_read("ds_read_b128", dst, ad, p*1024, rO(h, p))]

def iteration(h, j):
    J = 16*h + j; par = j & 1; last = (j == 15)
    E(comment(f"---- head {h} iter {j}"))
    mf = []
    for a in range(2):
        for b in range(NB):
            for s in range(4): mf.append(mfma(Sreg(b, a), F(4*a + s), Qreg(b, s), negM(b) if s == 0 else Sreg(b, a)))
    tstart = {}
    for t in range(8):
        tstart[t] = len(mf)
        for b in range(NB): mf.append(mfma(Oreg(b, t), F(t), Preg(par, b), 0 if j == 0 else Oreg(b, t)))
        if t < NB: mf.append(mfma(lacc(t), ones, Preg(par, t), 0 if j == 0 else lacc(t)))
    n = len(mf); assert n == 102
    gaps = [[] for _ in range(n)]
    def put(g, *x):
        for y in x:
            if isinstance(y, list): gaps[g] += y
            else: gaps[g].append(y)
    if not last:
        for s in range(4): put(1 + 2*s, kread(J + 1, 1, s, F(4 + s)))
    if O_.probe and (j & 1):
        put(23, wait(vm=[rV(J), rK(J + 2)], lgkm=0), barrier())
    else:
        put(22, stamp_issue())
        put(23, wait(vm=[rV(J), rK(J + 2)], lgkm=0), barrier(), stamp_save())
    pre, ops = dma_group(J + 3) if not last else ([], [])
    if pre: put(21, pre)
    seq = []
    vr = [vread(J, t, a, F(t)) for t in range(4) for a in range(2)]
    for k in range(4):
        if k < len(ops): seq.append(ops[k])
        seq += vr[2*k:2*k + 2]
    for k, x in enumerate(seq): put(25 + 2*k, x)
    for k, x in enumerate([vread(J, t, a, F(t)) for t in range(4, 8) for a in range(2)]): put(49 + 2*k, x)
    if not last:
        for s in range(4): put(77 + 2*s, kread(J + 2, 0, s, F(s))) if j < 14 else None
    if j < 12:
        if h == 0:
            put(63, salu("s_mov_b32", sSide, 98304 + j*2048))
            put(65, salu("s_add_u32", "m0", sStg, j*2048))
            put(67, dma(vsd0, sQ, sSide, 0, rQ(1, 2*j), O_.ld_flags))
            put(71, dma(vsd1, sQ, sSide, 1024, rQ(1, 2*j + 1), O_.ld_flags))
    if h == 1:
        cnt = [int(c) for c in O_.o_sched]; assert sum(cnt) == 24
        p0 = sum(cnt[:j]); ps = list(range(p0, p0 + cnt[j]))
        tm = [A(156 + 4*k, 4) for k in range(5)]
        rds = []
        for k, p in enumerate(ps): rds += o_piece_read(0, p, tm[k])
        rg = [65, 67, 69, 71, 75, 9, 11, 13, 15, 17]
        if len(rds) > 5: rg = [9, 11, 13, 15, 17, 65, 67, 69, 71, 75]
        for k, x in enumerate(rds): put(rg[k], x)
        if ps:
            put(85, salu("s_mov_b32", sSide, p0*1024))
            put(85, wait(lgkm=tm[:len(ps)]))
            for k, p in enumerate(ps): put(87 + 4*k, vstore(tm[k], vlin, sO, sSide, 1024*k, O_.st_flags))
    put(45, wait(lgkm=[F(0), F(1)]))
    put(57, wait(lgkm=[F(2), F(3)]))
    put(73, wait(lgkm=[F(4), F(5), F(6), F(7)]))
    if not last and j < 14: put(101, wait(lgkm=[F(s) for s in range(4)]))
    _, tail = sm_split(par)
    place_sm(gaps, tail, EG_B)
    if not last:
        first, _ = sm_split(1 - par)
        place_sm(gaps, first, EG_A)
    for g in range(n):
        if last and g < 48:
            for x in gaps[g]:
                if x.m.get("op") == "v_cvt_pk_bf16_f32": E(nop(0))
                E(x)
        else:
            E(mf[g], gaps[g])

def epilogue(h, final):
    E(comment(f"---- epilogue head {h}"))
    ow = [V(40 + k) for k in range(4)]
    t0, t1, t2 = V(44), V(45), V(46)
    E(valu("v_lshrrev_b32", t0, 5, vlane), valu("v_and_b32", t1, 7, vlane), valu("v_xor_b32", t0, t0, t1),
      valu("v_lshlrev_b32", t0, 4, t0), valu("v_lshrrev_b32", t1, 4, vlane), valu("v_lshrrev_b32", t2, 3, vlane),
      valu("v_xor_b32", t1, t1, t2), valu("v_and_b32", t1, 1, t1), valu("v_lshl_add_u32", t0, t1, 3, t0),
      valu("v_and_b32", t1, 15, vlane), valu("v_lshl_add_u32", t0, t1, 8, t0), valu("v_add_u32", ow[0], sStg, t0))
    for k in range(1, 4): E(valu("v_xor_b32", ow[k], k << 5, ow[0]))
    if h == 0:
        E(valu("v_lshrrev_b32", t0, 4, vlane), valu("v_xor_b32", t1, t1, t0), valu("v_lshlrev_b32", t1, 4, t1),
          valu("v_lshl_add_u32", t0, t0, 8, t1), valu("v_add_u32", vsd0, sStg, t0), valu("v_xor_b32", vsd1, 64, vsd0))
    rl = [V(24 + 2*b, 2) for b in range(NB)]
    for b in range(NB): E(valu("v_accvgpr_read_b32", rl[b][1], lacc(b)[0]))
    for b in range(NB): E(valu("v_rcp_f32", rl[b][0], rl[b][1]))
    E(valu("v_add_f32", t1, rl[0][1], rl[1][1]))
    for b in range(2, NB): E(valu("v_add_f32", t1, t1, rl[b][1]))
    E(Inst(f"v_cmp_nlt_f32 {sCmp}, {t1}, {sThr}", "valu", rs(t1, sThr), rs(sCmp)),
      nop(0), scmp("s_cmp_lg_u64", sCmp, 0), salu("s_cselect_b32", sT0, 1 << h, 0), salu("s_or_b32", sFlag, sFlag, sT0))
    for b in range(NB):
        for th in range(2):
            w = V(48 + 16*((2*b + th) % 2), 16); y = V(80 + 8*((2*b + th) % 2), 8)
            for k in range(4):
                o = Oreg(b, 4*th + k)
                if o.k == "a":
                    for r in range(4): E(valu("v_accvgpr_read_b32", w[4*k + r], o[r]))
            for k in range(4):
                o = Oreg(b, 4*th + k); src = o if o.k == "v" else w[4*k:4*k + 4]
                for r in range(2): E(valu("v_pk_mul_f32", w[4*k + 2*r:4*k + 2*r + 2], src[2*r:2*r + 2], rl[b], mods="op_sel_hi:[1,0]"))
            for k in range(8): E(valu("v_cvt_pk_bf16_f32", y[k], w[2*k], w[2*k + 1]))
            for k in range(4): E(ds_write("ds_write_b64", ow[k], y[2*k:2*k + 2], b*4096 + th*128, blockreg(rO, h, b)))
        if final:
            dst = [F((4*b + i) % 8) for i in range(4)]
            for i in range(4): E(o_piece_read(h, 4*b + i, dst[i]))
            if b > 0: E(final_store(h, b - 1))
    if final: E(final_store(h, NB - 1))
def final_store(h, b):
    dst = [F((4*b + i) % 8) for i in range(4)]
    o = [salu("s_mov_b32", sSide, h*98304 + b*4096), wait(lgkm=dst)]
    for i in range(4): o.append(vstore(dst[i], vlin, sO, sSide, i*1024, O_.fin_flags))
    return o

def finish():
    if O_.stamps:
        E(wait(vm=0), raw("s_memrealtime s[42:43]", "smem", (), rs(S(42, 2))), wait(lgkm=0),
          salu("s_mov_b32", S(47), S(42)))
        E(salu("s_lshl_b32", sT0, S(2), 2), salu("s_add_u32", sT0, sT0, sW), salu("s_lshl_b32", sT0, sT0, 8))
        n = nstamp[0] + 2
        E(valu("v_mov_b32", V(1), sT0))
        for k in range(n):
            E(valu("v_mov_b32", V(2), S(46 + k)),
              Inst(f"global_store_dword v1, v2, s[44:45] offset:{4*k}", "vst", rs(V(1), V(2), S(44, 2)), (), data=set()), nop(1))
    E(label("L_end"))

def build():
    setup()
    for h in range(2):
        kfrag_early(h)
        if h == 1: free_first(h)
        q_phase(h)
        if h == 0: free_first(h)
        if h == 1:
            E(stamp_now()); epilogue(0, False); E(stamp_now())
        prologue(h)
        for j in range(16): iteration(h, j)
        E(stamp_now())
        E(nop(7))
    epilogue(1, True)
    E(stamp_now())
    finish()
    resolve_and_check([(i, lambda r: r) for i in prog], verbose=True)

HEAD = """; MHA forward, B=16 H=32 Sq=384 Sk=512 D=128, bf16.  Generated by gen/gen.py
; @launch grid=(256,1,1) block=(256,1,1) lds=163840
.amdgcn_target "amdgcn-amd-amdhsa--gfx950"
.text
.globl standalone__mha_softmax__near_ridge_kernel
.p2align 8
.type standalone__mha_softmax__near_ridge_kernel,@function
standalone__mha_softmax__near_ridge_kernel:
"""
TAIL = """s_endpgm
%s
.section .rodata,"a"
.p2align 6
.amdhsa_kernel standalone__mha_softmax__near_ridge_kernel
  .amdhsa_next_free_vgpr 512
  .amdhsa_next_free_sgpr 102
  .amdhsa_accum_offset 256
  .amdhsa_group_segment_fixed_size 0
  .amdhsa_kernarg_size 48
  .amdhsa_user_sgpr_count 2
  .amdhsa_user_sgpr_kernarg_segment_ptr 1
  .amdhsa_system_sgpr_workgroup_id_x 1
.end_amdhsa_kernel
"""
if __name__ == "__main__":
    out = sys.argv[1]
    for a in sys.argv[2:]:
        k, v = a.split("=")
        cur = getattr(O_, k)
        setattr(O_, k, (v not in ("0", "False")) if isinstance(cur, bool) else type(cur)(v))
    build()
    body = "\n".join((i.text if i.kind == "label" else "    " + i.text) for i in prog)
    pad = ""
    open(out, "w").write(HEAD + body + "\n" + TAIL % pad)
```

```python
import sys, math, struct
from ir import *

class Opt:
    stamps = 0
    st_flags = ""
    ld_flags = "nt"
    prefetch_code = True
    pf_rounds = 2
    probe = 0
    calib = 0
    fin_flags = ""
    o_sched = "2222222222220000"
O_ = Opt()

NB = 6
def f32bits(x): return struct.unpack("<I", struct.pack("<f", x))[0]
CSCALE = f32bits(math.log2(math.e) / math.sqrt(128.0))
THRESH = f32bits(2.0 ** 40)

def Sreg(b, a): return V(8*b + 4*a, 4)
def Preg(par, b): return V(48 + 24*par + 4*b, 4)
def negM(b): return V(96 + 4*b, 4)
kaddr = [V(120 + s) for s in range(4)]
vaddr = [V(124 + t) for t in range(8)]
vkv = V(132); vsd0 = V(133); vsd1 = V(134); vlin = V(135); vlane = V(136)
T = [V(137 + i) for i in range(7)]
def Oreg(b, t):
    n = 8*b + t
    return V(144 + 4*n, 4) if n < 28 else A(176 + 4*(n - 28), 4)
def Qreg(b, s): return A(16*b + 4*s, 4)
def F(i): return A(96 + 4*i, 4)
def lacc(b): return A(128 + 4*b, 4)
ones = A(152, 4)
stmp = [A(156, 4), A(160, 4)]
sQ, sK, sV, sO = S(12, 4), S(16, 4), S(20, 4), S(24, 4)
sW = S(28); sKVoff = S(29); sM0kv = S(30); sStg = S(31); sSide = S(32); sT0 = S(33); sT1 = S(34); sT2 = S(35)
sFlag = S(36); sThr = S(37); sC = S(38, 2); sCmp = S(40, 2); sStamp = S(42, 2)
STAMP0 = 48

def rK(J): return (("ring", (J - 2) % 4, "K"), ("K", J), True)
def rV(J): return (("ring", J % 4, "V"), ("V", J), True)
def rQ(h, p): return (("stg", p), ("Q", h), False)
def rO(h, p): return (("stg", p), ("O", h), False)
def blockreg(f, h, b): return [f(h, 4*b + i) for i in range(4)]

prog = []
def E(*xs):
    for x in xs:
        if isinstance(x, (list, tuple)): E(*x)
        else: prog.append(x)
nstamp = [0]
def stamp_issue():
    op = "s_memtime" if O_.stamps == 1 else "s_memrealtime"
    return [raw(f"{op} {sStamp}", "smem", (), rs(sStamp))] if O_.stamps else []
def stamp_save():
    if not O_.stamps: return []
    k = nstamp[0]; nstamp[0] += 1
    return [salu("s_mov_b32", S(STAMP0 + k), sStamp[0])]
def stamp_now():
    if not O_.stamps: return []
    return stamp_issue() + [wait(lgkm=0)] + stamp_save()

def kread(J, a, s, dst): return ds_read("ds_read_b128", dst, kaddr[s], ((J - 2) % 4)*16384 + a*8192, rK(J))
def vread(J, t, a, dst): return ds_read("ds_read_b64_tr_b16", dst[2*a:2*a+2], vaddr[t], (J % 4)*16384 + a*8192, rV(J))
def dma_group(J, withV=True):
    pre = [salu("s_add_u32", "m0", sM0kv, (J % 4)*16384), salu("s_mov_b32", sKVoff, (J + 2)*8192)]
    ops = []
    if withV and J < 32: ops.append(dma(vkv, sV, sKVoff, 1024, rV(J), O_.ld_flags))
    if J + 2 < 32: ops.append(dma(vkv, sK, sKVoff, 0, rK(J + 2), O_.ld_flags))
    if withV and J < 32: ops.append(dma(vkv, sV, sKVoff, 3072, rV(J), O_.ld_flags))
    if J + 2 < 32: ops.append(dma(vkv, sK, sKVoff, 2048, rK(J + 2), O_.ld_flags))
    return (pre if ops else []), ops

def setup():
    E(comment("---- setup"),
      scmp("s_cmp_ge_u32", S(2), 256), raw("s_cbranch_scc1 L_end", "salu", {"scc"}),
      raw("s_load_dwordx4 s[4:7], s[0:1], 0", "smem", (), rs(S(4, 4))),
      raw("s_load_dwordx4 s[8:11], s[0:1], 16", "smem", (), rs(S(8, 4))))
    if O_.stamps:
        E(raw("s_load_dwordx2 s[44:45], s[0:1], 40", "smem", (), rs(S(44, 2))),
          raw("s_memrealtime s[46:47]", "smem", (), rs(S(46, 2))))
    if O_.calib: E(raw("s_memrealtime s[46:47]", "smem", (), rs(S(46, 2))))
    v0, v1, vi, vu, t0, t1, t2 = V(0), V(1), V(2), V(3), V(4), V(5), V(6)
    E(valu("v_lshrrev_b32", v1, 6, v0), valu("v_and_b32", vlane, 63, v0),
      valu("v_readfirstlane_b32", sW, v1),
      valu("v_and_b32", vi, 15, vlane), valu("v_lshrrev_b32", vu, 4, vlane),
      valu("v_lshlrev_b32", t0, 1, vu), valu("v_xor_b32", t0, t0, vi), valu("v_lshlrev_b32", t0, 4, t0),
      valu("v_lshl_add_u32", vsd0, vu, 8, t0), valu("v_xor_b32", vsd1, 128, vsd0),
      salu("s_and_b32", sT0, sW, 1), salu("s_lshr_b32", sT1, sW, 1),
      salu("s_lshl_b32", sT2, sT0, 7), salu("s_lshl_b32", sT0, sT0, 10), salu("s_lshl_b32", sT1, sT1, 12),
      salu("s_add_u32", sT0, sT0, sT1),
      valu("v_xor_b32", vkv, sT2, vsd0), valu("v_add_u32", vkv, sT0, vkv),
      salu("s_lshl_b32", sM0kv, sW, 12), salu("s_mul_i32", sStg, sW, 24576),
      wait(lgkm=0))
    if O_.probe: E(stamp_now())
    E(salu("s_mul_i32", sT0, S(2), 196608), salu("s_add_u32", sT0, sT0, sStg), salu("s_add_u32", sStg, sStg, 65536),
      salu("s_lshl_b32", sT1, S(2), 18),
      salu("s_add_u32", sK[0], S(6), sT1), salu("s_addc_u32", sK[1], S(7), 0), salu("s_and_b32", sK[1], sK[1], "0xffff"),
      salu("s_mov_b32", sK[2], 262144), salu("s_mov_b32", sK[3], "0x20000"),
      salu("s_add_u32", sQ[0], S(4), sT0), salu("s_addc_u32", sQ[1], S(5), 0), salu("s_and_b32", sQ[1], sQ[1], "0xffff"),
      salu("s_mov_b32", sQ[2], 98304 + 24576), salu("s_mov_b32", sQ[3], "0x20000"))
    pre, ops = dma_group(-2, False); E(pre, ops)
    for b in range(NB):
        E(q_dma_block(0, b))
        if O_.probe: E(stamp_now())
    if O_.probe:
        E(wait(vm=[rK(0)]), stamp_now())
        for b in range(NB): E(wait(vm=blockreg(rQ, 0, b)), stamp_now())
    pre, ops = dma_group(-1, False); E(pre, ops)
    E(salu("s_add_u32", sV[0], S(8), sT1), salu("s_addc_u32", sV[1], S(9), 0),
      salu("s_sub_u32", sV[0], sV[0], 1024 + 16384), salu("s_subb_u32", sV[1], sV[1], 0), salu("s_and_b32", sV[1], sV[1], "0xffff"),
      salu("s_mov_b32", sV[2], 262144 + 1024 + 16384), salu("s_mov_b32", sV[3], "0x20000"))
    for J in (0, 1):
        pre, ops = dma_group(J); E(pre, ops)
    if O_.prefetch_code:
        E(raw("s_getpc_b64 s[40:41]", "salu", (), rs(S(40, 2))), label("L_pc"),
          valu("v_lshlrev_b32", t0, 7, v0))
        for k in range(O_.pf_rounds):
            E(valu("v_min_u32", t1, "L_end-L_pc", t0))
            E(Inst(f"global_load_dword {T[k]}, {t1}, s[40:41]", "vld", rs(t1, S(40, 2)), rs(T[k])))
            if k + 1 < O_.pf_rounds: E(valu("v_add_u32", t0, 32768, t0))
    E(salu("s_add_u32", sO[0], S(10), sT0), salu("s_addc_u32", sO[1], S(11), 0), salu("s_and_b32", sO[1], sO[1], "0xffff"),
      salu("s_mov_b32", sO[2], 98304 + 24576), salu("s_mov_b32", sO[3], "0x20000"),
      salu("s_mov_b32", sC[0], hex(CSCALE)), salu("s_mov_b32", sC[1], hex(CSCALE)),
      salu("s_mov_b32", sThr, hex(THRESH)), salu("s_mov_b32", sFlag, 0))
    E(valu("v_and_b32", t0, 7, vi), valu("v_lshlrev_b32", t0, 1, t0), valu("v_xor_b32", t0, t0, vu), valu("v_lshlrev_b32", t0, 4, t0),
      valu("v_and_b32", t1, 3, vi), valu("v_lshl_add_u32", t0, t1, 8, t0),
      valu("v_lshrrev_b32", t1, 3, vi), valu("v_lshl_add_u32", t0, t1, 11, t0),
      valu("v_bfe_u32", t1, vi, 2, 1), valu("v_lshl_add_u32", kaddr[0], t1, 12, t0))
    for s in range(1, 4): E(valu("v_xor_b32", kaddr[s], s << 6, kaddr[0]))
    E(valu("v_lshrrev_b32", t1, 2, vi), valu("v_and_b32", t2, 1, vu), valu("v_lshl_add_u32", t0, t2, 2, t1),
      valu("v_lshlrev_b32", t0, 5, t0), valu("v_lshl_add_u32", t0, t1, 8, t0), valu("v_lshl_add_u32", t0, t2, 12, t0),
      valu("v_lshrrev_b32", t2, 1, vu), valu("v_lshl_add_u32", t0, t2, 11, t0),
      valu("v_and_b32", t1, 3, vi), valu("v_lshl_add_u32", t0, t1, 3, t0), valu("v_add_u32", vaddr[0], 1024, t0))
    for t in range(1, 8): E(valu("v_xor_b32", vaddr[t], t << 5, vaddr[0]))
    E(valu("v_lshlrev_b32", vlin, 4, vlane), valu("v_mov_b32", t0, "0x3f803f80"))
    for r in range(4): E(valu("v_accvgpr_write_b32", ones[r], t0))

def q_dma_block(h, b):
    o = [salu("s_add_u32", "m0", sStg, b*4096), salu("s_mov_b32", sSide, h*98304 + b*4096)]
    for i in range(4): o.append(dma(vsd1 if i & 1 else vsd0, sQ, sSide, i*1024, rQ(h, 4*b + i), O_.ld_flags))
    return o

def q_phase(h):
    E(comment(f"---- Q phase head {h}"))
    qa = [V(40 + s) for s in range(4)]
    t0, t1 = V(44), V(45)
    E(valu("v_and_b32", t0, 7, vlane), valu("v_lshlrev_b32", t0, 1, t0), valu("v_lshrrev_b32", t1, 4, vlane),
      valu("v_xor_b32", t0, t0, t1), valu("v_lshlrev_b32", t0, 4, t0), valu("v_and_b32", t1, 15, vlane),
      valu("v_lshl_add_u32", t0, t1, 8, t0), valu("v_add_u32", qa[0], sStg, t0))
    for s in range(1, 4): E(valu("v_xor_b32", qa[s], s << 6, qa[0]))
    rawr = lambda b, s: V(48 + 16*(b % 3) + 4*s, 4)
    def rd(b):
        return [wait(vm=blockreg(rQ, h, b))] + [ds_read("ds_read_b128", rawr(b, s), qa[s], b*4096, blockreg(rQ, h, b)) for s in range(4)]
    pre = 1 if h == 0 else 2
    for b in range(pre): E(rd(b))
    for b in range(NB):
        if h > 0 and b + pre < NB: E(rd(b + pre))
        E(wait(lgkm=[rawr(b, s) for s in range(4)]))
        for s in range(4):
            x = rawr(b, s); w = V(8*(s % 2), 8); y = V(16 + 4*(s % 2), 4)
            for r in range(4):
                E(valu("v_lshlrev_b32", w[2*r], 16, x[r]), valu("v_and_b32", w[2*r+1], "0xffff0000", x[r]))
            for r in range(4): E(valu("v_pk_mul_f32", w[2*r:2*r+2], w[2*r:2*r+2], sC))
            for r in range(4): E(valu("v_cvt_pk_bf16_f32", y[r], w[2*r], w[2*r+1]))
            for r in range(4): E(valu("v_accvgpr_write_b32", Qreg(b, s)[r], y[r]))
        if h == 0 and b + 1 < NB: E(rd(b + 1))

def sm_ops(par, b, a):
    s = Sreg(b, a); p = Preg(par, b)
    return [("e", valu("v_exp_f32", s[0], s[0])), ("e", valu("v_exp_f32", s[1], s[1])),
            ("c", valu("v_cvt_pk_bf16_f32", p[2*a], s[0], s[1])),
            ("e", valu("v_exp_f32", s[2], s[2])), ("e", valu("v_exp_f32", s[3], s[3])),
            ("c", valu("v_cvt_pk_bf16_f32", p[2*a+1], s[2], s[3]))]
def sm_stream(par):
    o = []
    for a in range(2):
        for b in range(NB): o += sm_ops(par, b, a)
    return o
EG_A = list(range(24, 102, 2))
NE_A = 38
EG_B = list(range(0, 20, 2))
assert NE_A + len(EG_B) == 48
def sm_split(par):
    st = sm_stream(par); ne = 0
    for idx, (k, _) in enumerate(st):
        if k == "e":
            if ne == NE_A: return st[:idx], st[idx:]
            ne += 1
def place_sm(gaps, ops, eg):
    g = None; n = 0
    for k, inst in ops:
        if k == "e": g = eg[n]; n += 1; gaps[g].append(inst)
        else: gaps[g + 1].append(inst)

def kfrag_early(h):
    J = 16*h
    E(comment(f"---- first K tile head {h}"))
    if h == 0: E(stamp_now(), wait(vm=[rK(0)]), barrier(), stamp_now())
    for a in range(2):
        for s in range(4): E(kread(J, a, s, F(4*a + s)))
def free_first(h):
    J = 16*h
    E(stamp_issue(), wait(vm=[rK(J + 1)], lgkm=0), barrier(), stamp_save())
    pre, ops = dma_group(J + 2); E(pre, ops)

def prologue(h):
    J = 16*h
    E(comment(f"---- prologue head {h}: S(0), row max stand-in, first softmax part"), nop(1))
    for b in range(NB):
        for a in range(2):
            for s in range(4): E(mfma(Sreg(b, a), F(4*a + s), Qreg(b, s), 0 if s == 0 else Sreg(b, a)))
    for s in range(4): E(kread(J + 1, 0, s, F(s)))
    m = [negM(b)[0] for b in range(NB)]; t = [negM(b)[1] for b in range(NB)]
    sv = lambda b, r: V(8*b + r)
    E(nop(3))
    for b in range(NB): E(valu("v_max3_f32", m[b], sv(b, 0), sv(b, 1), sv(b, 2)))
    for b in range(NB): E(valu("v_max3_f32", m[b], m[b], sv(b, 3), sv(b, 4)))
    for b in range(NB): E(valu("v_max3_f32", m[b], m[b], sv(b, 5), sv(b, 6)))
    for b in range(NB): E(valu("v_max_f32", m[b], m[b], sv(b, 7)))
    for op in ("v_permlane32_swap_b32", "v_permlane16_swap_b32"):
        for b in range(NB): E(valu("v_mov_b32", t[b], m[b]))
        for b in range(NB): E(swap(op, m[b], t[b]))
        for b in range(NB): E(valu("v_max_f32", m[b], m[b], t[b]))
    for b in range(NB):
        for r in (1, 2, 3, 0): E(valu("v_sub_f32", negM(b)[r], 0, m[b]))
    for b in range(NB):
        for r in range(4): E(valu("v_pk_add_f32", V(8*b + 2*r, 2), V(8*b + 2*r, 2), negM(b)[0:2]))
    first, _ = sm_split(0)
    pend = []
    for k, inst in first:
        if k == "e":
            E(inst)
            if len(pend) > 1: E(pend.pop(0))
        else: pend.append(inst)
    E(nop(0), pend)
    E(wait(lgkm=[F(s) for s in range(4)]))

def o_piece_read(h, p, dst):
    ad = vsd1 if p & 1 else vsd0
    if (p >> 1) & 1:
        return [ds_read("ds_read_b64", dst[0:2], ad, p*1024 + 8, rO(h, p)), ds_read("ds_read_b64", dst[2:4], ad, p*1024, rO(h, p))]
    return [ds_read("ds_read_b128", dst, ad, p*1024, rO(h, p))]

def iteration(h, j):
    J = 16*h + j; par = j & 1; last = (j == 15)
    E(comment(f"---- head {h} iter {j}"))
    mf = []
    for a in range(2):
        for b in range(NB):
            for s in range(4): mf.append(mfma(Sreg(b, a), F(4*a + s), Qreg(b, s), negM(b) if s == 0 else Sreg(b, a)))
    tstart = {}
    for t in range(8):
        tstart[t] = len(mf)
        for b in range(NB): mf.append(mfma(Oreg(b, t), F(t), Preg(par, b), 0 if j == 0 else Oreg(b, t)))
        if t < NB: mf.append(mfma(lacc(t), ones, Preg(par, t), 0 if j == 0 else lacc(t)))
    n = len(mf); assert n == 102
    gaps = [[] for _ in range(n)]
    def put(g, *x):
        for y in x:
            if isinstance(y, list): gaps[g] += y
            else: gaps[g].append(y)
    if not last:
        for s in range(4): put(1 + 2*s, kread(J + 1, 1, s, F(4 + s)))
    if O_.probe and (j & 1):
        put(23, wait(vm=[rV(J), rK(J + 2)], lgkm=0), barrier())
    else:
        put(22, stamp_issue())
        put(23, wait(vm=[rV(J), rK(J + 2)], lgkm=0), barrier(), stamp_save())
    pre, ops = dma_group(J + 3) if not last else ([], [])
    if pre: put(21, pre)
    seq = []
    vr = [vread(J, t, a, F(t)) for t in range(4) for a in range(2)]
    for k in range(4):
        if k < len(ops): seq.append(ops[k])
        seq += vr[2*k:2*k + 2]
    for k, x in enumerate(seq): put(25 + 2*k, x)
    for k, x in enumerate([vread(J, t, a, F(t)) for t in range(4, 8) for a in range(2)]): put(49 + 2*k, x)
    if not last:
        for s in range(4): put(77 + 2*s, kread(J + 2, 0, s, F(s))) if j < 14 else None
    if j < 12:
        if h == 0:
            put(63, salu("s_mov_b32", sSide, 98304 + j*2048))
            put(65, salu("s_add_u32", "m0", sStg, j*2048))
            put(67, dma(vsd0, sQ, sSide, 0, rQ(1, 2*j), O_.ld_flags))
            put(71, dma(vsd1, sQ, sSide, 1024, rQ(1, 2*j + 1), O_.ld_flags))
    if h == 1:
        cnt = [int(c) for c in O_.o_sched]; assert sum(cnt) == 24
        p0 = sum(cnt[:j]); ps = list(range(p0, p0 + cnt[j]))
        tm = [A(156 + 4*k, 4) for k in range(5)]
        rds = []
        for k, p in enumerate(ps): rds += o_piece_read(0, p, tm[k])
        rg = [65, 67, 69, 71, 75, 9, 11, 13, 15, 17]
        if len(rds) > 5: rg = [9, 11, 13, 15, 17, 65, 67, 69, 71, 75]
        for k, x in enumerate(rds): put(rg[k], x)
        if ps:
            put(85, salu("s_mov_b32", sSide, p0*1024))
            put(85, wait(lgkm=tm[:len(ps)]))
            for k, p in enumerate(ps): put(87 + 4*k, vstore(tm[k], vlin, sO, sSide, 1024*k, O_.st_flags))
    put(45, wait(lgkm=[F(0), F(1)]))
    put(57, wait(lgkm=[F(2), F(3)]))
    put(73, wait(lgkm=[F(4), F(5), F(6), F(7)]))
    if not last and j < 14: put(101, wait(lgkm=[F(s) for s in range(4)]))
    _, tail = sm_split(par)
    place_sm(gaps, tail, EG_B)
    if not last:
        first, _ = sm_split(1 - par)
        place_sm(gaps, first, EG_A)
    for g in range(n):
        if last and g < 48:
            for x in gaps[g]:
                if x.m.get("op") == "v_cvt_pk_bf16_f32": E(nop(0))
                E(x)
        else:
            E(mf[g], gaps[g])

def epilogue(h, final):
    E(comment(f"---- epilogue head {h}"))
    ow = [V(40 + k) for k in range(4)]
    t0, t1, t2 = V(44), V(45), V(46)
    E(valu("v_lshrrev_b32", t0, 5, vlane), valu("v_and_b32", t1, 7, vlane), valu("v_xor_b32", t0, t0, t1),
      valu("v_lshlrev_b32", t0, 4, t0), valu("v_lshrrev_b32", t1, 4, vlane), valu("v_lshrrev_b32", t2, 3, vlane),
      valu("v_xor_b32", t1, t1, t2), valu("v_and_b32", t1, 1, t1), valu("v_lshl_add_u32", t0, t1, 3, t0),
      valu("v_and_b32", t1, 15, vlane), valu("v_lshl_add_u32", t0, t1, 8, t0), valu("v_add_u32", ow[0], sStg, t0))
    for k in range(1, 4): E(valu("v_xor_b32", ow[k], k << 5, ow[0]))
    if h == 0:
        E(valu("v_lshrrev_b32", t0, 4, vlane), valu("v_xor_b32", t1, t1, t0), valu("v_lshlrev_b32", t1, 4, t1),
          valu("v_lshl_add_u32", t0, t0, 8, t1), valu("v_add_u32", vsd0, sStg, t0), valu("v_xor_b32", vsd1, 64, vsd0))
    rl = [V(24 + 2*b, 2) for b in range(NB)]
    for b in range(NB): E(valu("v_accvgpr_read_b32", rl[b][1], lacc(b)[0]))
    for b in range(NB): E(valu("v_rcp_f32", rl[b][0], rl[b][1]))
    E(valu("v_add_f32", t1, rl[0][1], rl[1][1]))
    for b in range(2, NB): E(valu("v_add_f32", t1, t1, rl[b][1]))
    E(Inst(f"v_cmp_nlt_f32 {sCmp}, {t1}, {sThr}", "valu", rs(t1, sThr), rs(sCmp)),
      nop(0), scmp("s_cmp_lg_u64", sCmp, 0), salu("s_cselect_b32", sT0, 1 << h, 0), salu("s_or_b32", sFlag, sFlag, sT0))
    for b in range(NB):
        for th in range(2):
            w = V(48 + 16*((2*b + th) % 2), 16); y = V(80 + 8*((2*b + th) % 2), 8)
            for k in range(4):
                o = Oreg(b, 4*th + k)
                if o.k == "a":
                    for r in range(4): E(valu("v_accvgpr_read_b32", w[4*k + r], o[r]))
            for k in range(4):
                o = Oreg(b, 4*th + k); src = o if o.k == "v" else w[4*k:4*k + 4]
                for r in range(2): E(valu("v_pk_mul_f32", w[4*k + 2*r:4*k + 2*r + 2], src[2*r:2*r + 2], rl[b], mods="op_sel_hi:[1,0]"))
            for k in range(8): E(valu("v_cvt_pk_bf16_f32", y[k], w[2*k], w[2*k + 1]))
            for k in range(4): E(ds_write("ds_write_b64", ow[k], y[2*k:2*k + 2], b*4096 + th*128, blockreg(rO, h, b)))
        if final:
            dst = [F((4*b + i) % 8) for i in range(4)]
            for i in range(4): E(o_piece_read(h, 4*b + i, dst[i]))
            if b > 0: E(final_store(h, b - 1))
    if final: E(final_store(h, NB - 1))
def final_store(h, b):
    dst = [F((4*b + i) % 8) for i in range(4)]
    o = [salu("s_mov_b32", sSide, h*98304 + b*4096), wait(lgkm=dst)]
    for i in range(4): o.append(vstore(dst[i], vlin, sO, sSide, i*1024, O_.fin_flags))
    return o

def finish():
    if O_.calib:
        E(wait(vm=0), label("L_spin"), raw("s_memrealtime s[42:43]", "smem", (), rs(S(42, 2))), wait(lgkm=0),
          salu("s_sub_u32", S(42), S(42), S(46)), scmp("s_cmp_lt_u32", S(42), O_.calib), raw("s_cbranch_scc1 L_spin", "salu", {"scc"}))
    if O_.stamps:
        E(wait(vm=0), raw("s_memrealtime s[42:43]", "smem", (), rs(S(42, 2))), wait(lgkm=0),
          salu("s_mov_b32", S(47), S(42)))
        E(salu("s_lshl_b32", sT0, S(2), 2), salu("s_add_u32", sT0, sT0, sW), salu("s_lshl_b32", sT0, sT0, 8))
        n = nstamp[0] + 2
        E(valu("v_mov_b32", V(1), sT0))
        for k in range(n):
            E(valu("v_mov_b32", V(2), S(46 + k)),
              Inst(f"global_store_dword v1, v2, s[44:45] offset:{4*k}", "vst", rs(V(1), V(2), S(44, 2)), (), data=set()), nop(1))
    E(label("L_end"))

def build():
    setup()
    for h in range(2):
        kfrag_early(h)
        if h == 1: free_first(h)
        q_phase(h)
        if h == 0: free_first(h)
        if h == 1:
            E(stamp_now()); epilogue(0, False); E(stamp_now())
        prologue(h)
        for j in range(16): iteration(h, j)
        E(stamp_now())
        E(nop(7))
    epilogue(1, True)
    E(stamp_now())
    finish()
    resolve_and_check([(i, lambda r: r) for i in prog], verbose=True)

HEAD = """; MHA forward, B=16 H=32 Sq=384 Sk=512 D=128, bf16.  Generated by gen/gen.py
; @launch grid=(256,1,1) block=(256,1,1) lds=163840
.amdgcn_target "amdgcn-amd-amdhsa--gfx950"
.text
.globl standalone__mha_softmax__near_ridge_kernel
.p2align 8
.type standalone__mha_softmax__near_ridge_kernel,@function
standalone__mha_softmax__near_ridge_kernel:
"""
TAIL = """s_endpgm
%s
.section .rodata,"a"
.p2align 6
.amdhsa_kernel standalone__mha_softmax__near_ridge_kernel
  .amdhsa_next_free_vgpr 512
  .amdhsa_next_free_sgpr 102
  .amdhsa_accum_offset 256
  .amdhsa_group_segment_fixed_size 0
  .amdhsa_kernarg_size 48
  .amdhsa_user_sgpr_count 2
  .amdhsa_user_sgpr_kernarg_segment_ptr 1
  .amdhsa_system_sgpr_workgroup_id_x 1
.end_amdhsa_kernel
"""
if __name__ == "__main__":
    out = sys.argv[1]
    for a in sys.argv[2:]:
        k, v = a.split("=")
        cur = getattr(O_, k)
        setattr(O_, k, (v not in ("0", "False")) if isinstance(cur, bool) else type(cur)(v))
    build()
    body = "\n".join((i.text if i.kind == "label" else "    " + i.text) for i in prog)
    pad = ""
    open(out, "w").write(HEAD + body + "\n" + TAIL % pad)
```

```python
import sys, math, struct
from ir import *

class Opt:
    stamps = 0
    st_flags = ""
    ld_flags = "nt"
    prefetch_code = True
    pf_rounds = 2
    probe = 0
    calib = 0
    calib_glob = 0
    fin_flags = ""
    o_sched = "2222222222220000"
O_ = Opt()

NB = 6
def f32bits(x): return struct.unpack("<I", struct.pack("<f", x))[0]
CSCALE = f32bits(math.log2(math.e) / math.sqrt(128.0))
THRESH = f32bits(2.0 ** 40)

def Sreg(b, a): return V(8*b + 4*a, 4)
def Preg(par, b): return V(48 + 24*par + 4*b, 4)
def negM(b): return V(96 + 4*b, 4)
kaddr = [V(120 + s) for s in range(4)]
vaddr = [V(124 + t) for t in range(8)]
vkv = V(132); vsd0 = V(133); vsd1 = V(134); vlin = V(135); vlane = V(136)
T = [V(137 + i) for i in range(7)]
def Oreg(b, t):
    n = 8*b + t
    return V(144 + 4*n, 4) if n < 28 else A(176 + 4*(n - 28), 4)
def Qreg(b, s): return A(16*b + 4*s, 4)
def F(i): return A(96 + 4*i, 4)
def lacc(b): return A(128 + 4*b, 4)
ones = A(152, 4)
stmp = [A(156, 4), A(160, 4)]
sQ, sK, sV, sO = S(12, 4), S(16, 4), S(20, 4), S(24, 4)
sW = S(28); sKVoff = S(29); sM0kv = S(30); sStg = S(31); sSide = S(32); sT0 = S(33); sT1 = S(34); sT2 = S(35)
sFlag = S(36); sThr = S(37); sC = S(38, 2); sCmp = S(40, 2); sStamp = S(42, 2)
STAMP0 = 48

def rK(J): return (("ring", (J - 2) % 4, "K"), ("K", J), True)
def rV(J): return (("ring", J % 4, "V"), ("V", J), True)
def rQ(h, p): return (("stg", p), ("Q", h), False)
def rO(h, p): return (("stg", p), ("O", h), False)
def blockreg(f, h, b): return [f(h, 4*b + i) for i in range(4)]

prog = []
def E(*xs):
    for x in xs:
        if isinstance(x, (list, tuple)): E(*x)
        else: prog.append(x)
nstamp = [0]
def stamp_issue():
    op = "s_memtime" if O_.stamps == 1 else "s_memrealtime"
    return [raw(f"{op} {sStamp}", "smem", (), rs(sStamp))] if O_.stamps else []
def stamp_save():
    if not O_.stamps: return []
    k = nstamp[0]; nstamp[0] += 1
    return [salu("s_mov_b32", S(STAMP0 + k), sStamp[0])]
def stamp_now():
    if not O_.stamps: return []
    return stamp_issue() + [wait(lgkm=0)] + stamp_save()

def kread(J, a, s, dst): return ds_read("ds_read_b128", dst, kaddr[s], ((J - 2) % 4)*16384 + a*8192, rK(J))
def vread(J, t, a, dst): return ds_read("ds_read_b64_tr_b16", dst[2*a:2*a+2], vaddr[t], (J % 4)*16384 + a*8192, rV(J))
def dma_group(J, withV=True):
    pre = [salu("s_add_u32", "m0", sM0kv, (J % 4)*16384), salu("s_mov_b32", sKVoff, (J + 2)*8192)]
    ops = []
    if withV and J < 32: ops.append(dma(vkv, sV, sKVoff, 1024, rV(J), O_.ld_flags))
    if J + 2 < 32: ops.append(dma(vkv, sK, sKVoff, 0, rK(J + 2), O_.ld_flags))
    if withV and J < 32: ops.append(dma(vkv, sV, sKVoff, 3072, rV(J), O_.ld_flags))
    if J + 2 < 32: ops.append(dma(vkv, sK, sKVoff, 2048, rK(J + 2), O_.ld_flags))
    return (pre if ops else []), ops

def setup():
    E(comment("---- setup"),
      scmp("s_cmp_ge_u32", S(2), 256), raw("s_cbranch_scc1 L_end", "salu", {"scc"}),
      raw("s_load_dwordx4 s[4:7], s[0:1], 0", "smem", (), rs(S(4, 4))),
      raw("s_load_dwordx4 s[8:11], s[0:1], 16", "smem", (), rs(S(8, 4))))
    if O_.stamps:
        E(raw("s_load_dwordx2 s[44:45], s[0:1], 40", "smem", (), rs(S(44, 2))),
          raw("s_memrealtime s[46:47]", "smem", (), rs(S(46, 2))))
    if O_.calib: E(raw("s_memrealtime s[46:47]", "smem", (), rs(S(46, 2))), raw("s_load_dwordx2 s[44:45], s[0:1], 32", "smem", (), rs(S(44, 2))))
    v0, v1, vi, vu, t0, t1, t2 = V(0), V(1), V(2), V(3), V(4), V(5), V(6)
    E(valu("v_lshrrev_b32", v1, 6, v0), valu("v_and_b32", vlane, 63, v0),
      valu("v_readfirstlane_b32", sW, v1),
      valu("v_and_b32", vi, 15, vlane), valu("v_lshrrev_b32", vu, 4, vlane),
      valu("v_lshlrev_b32", t0, 1, vu), valu("v_xor_b32", t0, t0, vi), valu("v_lshlrev_b32", t0, 4, t0),
      valu("v_lshl_add_u32", vsd0, vu, 8, t0), valu("v_xor_b32", vsd1, 128, vsd0),
      salu("s_and_b32", sT0, sW, 1), salu("s_lshr_b32", sT1, sW, 1),
      salu("s_lshl_b32", sT2, sT0, 7), salu("s_lshl_b32", sT0, sT0, 10), salu("s_lshl_b32", sT1, sT1, 12),
      salu("s_add_u32", sT0, sT0, sT1),
      valu("v_xor_b32", vkv, sT2, vsd0), valu("v_add_u32", vkv, sT0, vkv),
      salu("s_lshl_b32", sM0kv, sW, 12), salu("s_mul_i32", sStg, sW, 24576),
      wait(lgkm=0))
    if O_.probe: E(stamp_now())
    E(salu("s_mul_i32", sT0, S(2), 196608), salu("s_add_u32", sT0, sT0, sStg), salu("s_add_u32", sStg, sStg, 65536),
      salu("s_lshl_b32", sT1, S(2), 18),
      salu("s_add_u32", sK[0], S(6), sT1), salu("s_addc_u32", sK[1], S(7), 0), salu("s_and_b32", sK[1], sK[1], "0xffff"),
      salu("s_mov_b32", sK[2], 262144), salu("s_mov_b32", sK[3], "0x20000"),
      salu("s_add_u32", sQ[0], S(4), sT0), salu("s_addc_u32", sQ[1], S(5), 0), salu("s_and_b32", sQ[1], sQ[1], "0xffff"),
      salu("s_mov_b32", sQ[2], 98304 + 24576), salu("s_mov_b32", sQ[3], "0x20000"))
    pre, ops = dma_group(-2, False); E(pre, ops)
    for b in range(NB):
        E(q_dma_block(0, b))
        if O_.probe: E(stamp_now())
    if O_.probe:
        E(wait(vm=[rK(0)]), stamp_now())
        for b in range(NB): E(wait(vm=blockreg(rQ, 0, b)), stamp_now())
    pre, ops = dma_group(-1, False); E(pre, ops)
    E(salu("s_add_u32", sV[0], S(8), sT1), salu("s_addc_u32", sV[1], S(9), 0),
      salu("s_sub_u32", sV[0], sV[0], 1024 + 16384), salu("s_subb_u32", sV[1], sV[1], 0), salu("s_and_b32", sV[1], sV[1], "0xffff"),
      salu("s_mov_b32", sV[2], 262144 + 1024 + 16384), salu("s_mov_b32", sV[3], "0x20000"))
    for J in (0, 1):
        pre, ops = dma_group(J); E(pre, ops)
    if O_.prefetch_code:
        E(raw("s_getpc_b64 s[40:41]", "salu", (), rs(S(40, 2))), label("L_pc"),
          valu("v_lshlrev_b32", t0, 7, v0))
        for k in range(O_.pf_rounds):
            E(valu("v_min_u32", t1, "L_end-L_pc", t0))
            E(Inst(f"global_load_dword {T[k]}, {t1}, s[40:41]", "vld", rs(t1, S(40, 2)), rs(T[k])))
            if k + 1 < O_.pf_rounds: E(valu("v_add_u32", t0, 32768, t0))
    E(salu("s_add_u32", sO[0], S(10), sT0), salu("s_addc_u32", sO[1], S(11), 0), salu("s_and_b32", sO[1], sO[1], "0xffff"),
      salu("s_mov_b32", sO[2], 98304 + 24576), salu("s_mov_b32", sO[3], "0x20000"),
      salu("s_mov_b32", sC[0], hex(CSCALE)), salu("s_mov_b32", sC[1], hex(CSCALE)),
      salu("s_mov_b32", sThr, hex(THRESH)), salu("s_mov_b32", sFlag, 0))
    E(valu("v_and_b32", t0, 7, vi), valu("v_lshlrev_b32", t0, 1, t0), valu("v_xor_b32", t0, t0, vu), valu("v_lshlrev_b32", t0, 4, t0),
      valu("v_and_b32", t1, 3, vi), valu("v_lshl_add_u32", t0, t1, 8, t0),
      valu("v_lshrrev_b32", t1, 3, vi), valu("v_lshl_add_u32", t0, t1, 11, t0),
      valu("v_bfe_u32", t1, vi, 2, 1), valu("v_lshl_add_u32", kaddr[0], t1, 12, t0))
    for s in range(1, 4): E(valu("v_xor_b32", kaddr[s], s << 6, kaddr[0]))
    E(valu("v_lshrrev_b32", t1, 2, vi), valu("v_and_b32", t2, 1, vu), valu("v_lshl_add_u32", t0, t2, 2, t1),
      valu("v_lshlrev_b32", t0, 5, t0), valu("v_lshl_add_u32", t0, t1, 8, t0), valu("v_lshl_add_u32", t0, t2, 12, t0),
      valu("v_lshrrev_b32", t2, 1, vu), valu("v_lshl_add_u32", t0, t2, 11, t0),
      valu("v_and_b32", t1, 3, vi), valu("v_lshl_add_u32", t0, t1, 3, t0), valu("v_add_u32", vaddr[0], 1024, t0))
    for t in range(1, 8): E(valu("v_xor_b32", vaddr[t], t << 5, vaddr[0]))
    E(valu("v_lshlrev_b32", vlin, 4, vlane), valu("v_mov_b32", t0, "0x3f803f80"))
    for r in range(4): E(valu("v_accvgpr_write_b32", ones[r], t0))

def q_dma_block(h, b):
    o = [salu("s_add_u32", "m0", sStg, b*4096), salu("s_mov_b32", sSide, h*98304 + b*4096)]
    for i in range(4): o.append(dma(vsd1 if i & 1 else vsd0, sQ, sSide, i*1024, rQ(h, 4*b + i), O_.ld_flags))
    return o

def q_phase(h):
    E(comment(f"---- Q phase head {h}"))
    qa = [V(40 + s) for s in range(4)]
    t0, t1 = V(44), V(45)
    E(valu("v_and_b32", t0, 7, vlane), valu("v_lshlrev_b32", t0, 1, t0), valu("v_lshrrev_b32", t1, 4, vlane),
      valu("v_xor_b32", t0, t0, t1), valu("v_lshlrev_b32", t0, 4, t0), valu("v_and_b32", t1, 15, vlane),
      valu("v_lshl_add_u32", t0, t1, 8, t0), valu("v_add_u32", qa[0], sStg, t0))
    for s in range(1, 4): E(valu("v_xor_b32", qa[s], s << 6, qa[0]))
    rawr = lambda b, s: V(48 + 16*(b % 3) + 4*s, 4)
    def rd(b):
        return [wait(vm=blockreg(rQ, h, b))] + [ds_read("ds_read_b128", rawr(b, s), qa[s], b*4096, blockreg(rQ, h, b)) for s in range(4)]
    pre = 1 if h == 0 else 2
    for b in range(pre): E(rd(b))
    for b in range(NB):
        if h > 0 and b + pre < NB: E(rd(b + pre))
        E(wait(lgkm=[rawr(b, s) for s in range(4)]))
        for s in range(4):
            x = rawr(b, s); w = V(8*(s % 2), 8); y = V(16 + 4*(s % 2), 4)
            for r in range(4):
                E(valu("v_lshlrev_b32", w[2*r], 16, x[r]), valu("v_and_b32", w[2*r+1], "0xffff0000", x[r]))
            for r in range(4): E(valu("v_pk_mul_f32", w[2*r:2*r+2], w[2*r:2*r+2], sC))
            for r in range(4): E(valu("v_cvt_pk_bf16_f32", y[r], w[2*r], w[2*r+1]))
            for r in range(4): E(valu("v_accvgpr_write_b32", Qreg(b, s)[r], y[r]))
        if h == 0 and b + 1 < NB: E(rd(b + 1))

def sm_ops(par, b, a):
    s = Sreg(b, a); p = Preg(par, b)
    return [("e", valu("v_exp_f32", s[0], s[0])), ("e", valu("v_exp_f32", s[1], s[1])),
            ("c", valu("v_cvt_pk_bf16_f32", p[2*a], s[0], s[1])),
            ("e", valu("v_exp_f32", s[2], s[2])), ("e", valu("v_exp_f32", s[3], s[3])),
            ("c", valu("v_cvt_pk_bf16_f32", p[2*a+1], s[2], s[3]))]
def sm_stream(par):
    o = []
    for a in range(2):
        for b in range(NB): o += sm_ops(par, b, a)
    return o
EG_A = list(range(24, 102, 2))
NE_A = 38
EG_B = list(range(0, 20, 2))
assert NE_A + len(EG_B) == 48
def sm_split(par):
    st = sm_stream(par); ne = 0
    for idx, (k, _) in enumerate(st):
        if k == "e":
            if ne == NE_A: return st[:idx], st[idx:]
            ne += 1
def place_sm(gaps, ops, eg):
    g = None; n = 0
    for k, inst in ops:
        if k == "e": g = eg[n]; n += 1; gaps[g].append(inst)
        else: gaps[g + 1].append(inst)

def kfrag_early(h):
    J = 16*h
    E(comment(f"---- first K tile head {h}"))
    if h == 0: E(stamp_now(), wait(vm=[rK(0)]), barrier(), stamp_now())
    for a in range(2):
        for s in range(4): E(kread(J, a, s, F(4*a + s)))
def free_first(h):
    J = 16*h
    E(stamp_issue(), wait(vm=[rK(J + 1)], lgkm=0), barrier(), stamp_save())
    pre, ops = dma_group(J + 2); E(pre, ops)

def prologue(h):
    J = 16*h
    E(comment(f"---- prologue head {h}: S(0), row max stand-in, first softmax part"), nop(1))
    for b in range(NB):
        for a in range(2):
            for s in range(4): E(mfma(Sreg(b, a), F(4*a + s), Qreg(b, s), 0 if s == 0 else Sreg(b, a)))
    for s in range(4): E(kread(J + 1, 0, s, F(s)))
    m = [negM(b)[0] for b in range(NB)]; t = [negM(b)[1] for b in range(NB)]
    sv = lambda b, r: V(8*b + r)
    E(nop(3))
    for b in range(NB): E(valu("v_max3_f32", m[b], sv(b, 0), sv(b, 1), sv(b, 2)))
    for b in range(NB): E(valu("v_max3_f32", m[b], m[b], sv(b, 3), sv(b, 4)))
    for b in range(NB): E(valu("v_max3_f32", m[b], m[b], sv(b, 5), sv(b, 6)))
    for b in range(NB): E(valu("v_max_f32", m[b], m[b], sv(b, 7)))
    for op in ("v_permlane32_swap_b32", "v_permlane16_swap_b32"):
        for b in range(NB): E(valu("v_mov_b32", t[b], m[b]))
        for b in range(NB): E(swap(op, m[b], t[b]))
        for b in range(NB): E(valu("v_max_f32", m[b], m[b], t[b]))
    for b in range(NB):
        for r in (1, 2, 3, 0): E(valu("v_sub_f32", negM(b)[r], 0, m[b]))
    for b in range(NB):
        for r in range(4): E(valu("v_pk_add_f32", V(8*b + 2*r, 2), V(8*b + 2*r, 2), negM(b)[0:2]))
    first, _ = sm_split(0)
    pend = []
    for k, inst in first:
        if k == "e":
            E(inst)
            if len(pend) > 1: E(pend.pop(0))
        else: pend.append(inst)
    E(nop(0), pend)
    E(wait(lgkm=[F(s) for s in range(4)]))

def o_piece_read(h, p, dst):
    ad = vsd1 if p & 1 else vsd0
    if (p >> 1) & 1:
        return [ds_read("ds_read_b64", dst[0:2], ad, p*1024 + 8, rO(h, p)), ds_read("ds_read_b64", dst[2:4], ad, p*1024, rO(h, p))]
    return [ds_read("ds_read_b128", dst, ad, p*1024, rO(h, p))]

def iteration(h, j):
    J = 16*h + j; par = j & 1; last = (j == 15)
    E(comment(f"---- head {h} iter {j}"))
    mf = []
    for a in range(2):
        for b in range(NB):
            for s in range(4): mf.append(mfma(Sreg(b, a), F(4*a + s), Qreg(b, s), negM(b) if s == 0 else Sreg(b, a)))
    tstart = {}
    for t in range(8):
        tstart[t] = len(mf)
        for b in range(NB): mf.append(mfma(Oreg(b, t), F(t), Preg(par, b), 0 if j == 0 else Oreg(b, t)))
        if t < NB: mf.append(mfma(lacc(t), ones, Preg(par, t), 0 if j == 0 else lacc(t)))
    n = len(mf); assert n == 102
    gaps = [[] for _ in range(n)]
    def put(g, *x):
        for y in x:
            if isinstance(y, list): gaps[g] += y
            else: gaps[g].append(y)
    if not last:
        for s in range(4): put(1 + 2*s, kread(J + 1, 1, s, F(4 + s)))
    if O_.probe and (j & 1):
        put(23, wait(vm=[rV(J), rK(J + 2)], lgkm=0), barrier())
    else:
        put(22, stamp_issue())
        put(23, wait(vm=[rV(J), rK(J + 2)], lgkm=0), barrier(), stamp_save())
    pre, ops = dma_group(J + 3) if not last else ([], [])
    if pre: put(21, pre)
    seq = []
    vr = [vread(J, t, a, F(t)) for t in range(4) for a in range(2)]
    for k in range(4):
        if k < len(ops): seq.append(ops[k])
        seq += vr[2*k:2*k + 2]
    for k, x in enumerate(seq): put(25 + 2*k, x)
    for k, x in enumerate([vread(J, t, a, F(t)) for t in range(4, 8) for a in range(2)]): put(49 + 2*k, x)
    if not last:
        for s in range(4): put(77 + 2*s, kread(J + 2, 0, s, F(s))) if j < 14 else None
    if j < 12:
        if h == 0:
            put(63, salu("s_mov_b32", sSide, 98304 + j*2048))
            put(65, salu("s_add_u32", "m0", sStg, j*2048))
            put(67, dma(vsd0, sQ, sSide, 0, rQ(1, 2*j), O_.ld_flags))
            put(71, dma(vsd1, sQ, sSide, 1024, rQ(1, 2*j + 1), O_.ld_flags))
    if h == 1:
        cnt = [int(c) for c in O_.o_sched]; assert sum(cnt) == 24
        p0 = sum(cnt[:j]); ps = list(range(p0, p0 + cnt[j]))
        tm = [A(156 + 4*k, 4) for k in range(5)]
        rds = []
        for k, p in enumerate(ps): rds += o_piece_read(0, p, tm[k])
        rg = [65, 67, 69, 71, 75, 9, 11, 13, 15, 17]
        if len(rds) > 5: rg = [9, 11, 13, 15, 17, 65, 67, 69, 71, 75]
        for k, x in enumerate(rds): put(rg[k], x)
        if ps:
            put(85, salu("s_mov_b32", sSide, p0*1024))
            put(85, wait(lgkm=tm[:len(ps)]))
            for k, p in enumerate(ps): put(87 + 4*k, vstore(tm[k], vlin, sO, sSide, 1024*k, O_.st_flags))
    put(45, wait(lgkm=[F(0), F(1)]))
    put(57, wait(lgkm=[F(2), F(3)]))
    put(73, wait(lgkm=[F(4), F(5), F(6), F(7)]))
    if not last and j < 14: put(101, wait(lgkm=[F(s) for s in range(4)]))
    _, tail = sm_split(par)
    place_sm(gaps, tail, EG_B)
    if not last:
        first, _ = sm_split(1 - par)
        place_sm(gaps, first, EG_A)
    for g in range(n):
        if last and g < 48:
            for x in gaps[g]:
                if x.m.get("op") == "v_cvt_pk_bf16_f32": E(nop(0))
                E(x)
        else:
            E(mf[g], gaps[g])

def epilogue(h, final):
    E(comment(f"---- epilogue head {h}"))
    ow = [V(40 + k) for k in range(4)]
    t0, t1, t2 = V(44), V(45), V(46)
    E(valu("v_lshrrev_b32", t0, 5, vlane), valu("v_and_b32", t1, 7, vlane), valu("v_xor_b32", t0, t0, t1),
      valu("v_lshlrev_b32", t0, 4, t0), valu("v_lshrrev_b32", t1, 4, vlane), valu("v_lshrrev_b32", t2, 3, vlane),
      valu("v_xor_b32", t1, t1, t2), valu("v_and_b32", t1, 1, t1), valu("v_lshl_add_u32", t0, t1, 3, t0),
      valu("v_and_b32", t1, 15, vlane), valu("v_lshl_add_u32", t0, t1, 8, t0), valu("v_add_u32", ow[0], sStg, t0))
    for k in range(1, 4): E(valu("v_xor_b32", ow[k], k << 5, ow[0]))
    if h == 0:
        E(valu("v_lshrrev_b32", t0, 4, vlane), valu("v_xor_b32", t1, t1, t0), valu("v_lshlrev_b32", t1, 4, t1),
          valu("v_lshl_add_u32", t0, t0, 8, t1), valu("v_add_u32", vsd0, sStg, t0), valu("v_xor_b32", vsd1, 64, vsd0))
    rl = [V(24 + 2*b, 2) for b in range(NB)]
    for b in range(NB): E(valu("v_accvgpr_read_b32", rl[b][1], lacc(b)[0]))
    for b in range(NB): E(valu("v_rcp_f32", rl[b][0], rl[b][1]))
    E(valu("v_add_f32", t1, rl[0][1], rl[1][1]))
    for b in range(2, NB): E(valu("v_add_f32", t1, t1, rl[b][1]))
    E(Inst(f"v_cmp_nlt_f32 {sCmp}, {t1}, {sThr}", "valu", rs(t1, sThr), rs(sCmp)),
      nop(0), scmp("s_cmp_lg_u64", sCmp, 0), salu("s_cselect_b32", sT0, 1 << h, 0), salu("s_or_b32", sFlag, sFlag, sT0))
    for b in range(NB):
        for th in range(2):
            w = V(48 + 16*((2*b + th) % 2), 16); y = V(80 + 8*((2*b + th) % 2), 8)
            for k in range(4):
                o = Oreg(b, 4*th + k)
                if o.k == "a":
                    for r in range(4): E(valu("v_accvgpr_read_b32", w[4*k + r], o[r]))
            for k in range(4):
                o = Oreg(b, 4*th + k); src = o if o.k == "v" else w[4*k:4*k + 4]
                for r in range(2): E(valu("v_pk_mul_f32", w[4*k + 2*r:4*k + 2*r + 2], src[2*r:2*r + 2], rl[b], mods="op_sel_hi:[1,0]"))
            for k in range(8): E(valu("v_cvt_pk_bf16_f32", y[k], w[2*k], w[2*k + 1]))
            for k in range(4): E(ds_write("ds_write_b64", ow[k], y[2*k:2*k + 2], b*4096 + th*128, blockreg(rO, h, b)))
        if final:
            dst = [F((4*b + i) % 8) for i in range(4)]
            for i in range(4): E(o_piece_read(h, 4*b + i, dst[i]))
            if b > 0: E(final_store(h, b - 1))
    if final: E(final_store(h, NB - 1))
def final_store(h, b):
    dst = [F((4*b + i) % 8) for i in range(4)]
    o = [salu("s_mov_b32", sSide, h*98304 + b*4096), wait(lgkm=dst)]
    for i in range(4): o.append(vstore(dst[i], vlin, sO, sSide, i*1024, O_.fin_flags))
    return o

def finish():
    if O_.calib and O_.calib_glob:
        if O_.calib_glob == 1: E(salu("s_not_b32", S(46), S(46)))
        E(valu("v_mov_b32", V(1), 0), valu("v_mov_b32", V(2), S(46)), raw("s_mov_b64 exec, 1"),
          Inst("global_atomic_umax v1, v2, s[44:45] sc1", "vst", rs(V(1), V(2), S(44, 2)), (), data=set()), wait(vm=0))
        E(label("L_spin0"), raw("s_memrealtime s[42:43]", "smem", (), rs(S(42, 2))),
          Inst("global_load_dword v3, v1, s[44:45] sc0 sc1", "vld", rs(V(1), S(44, 2)), rs(V(3))), wait(vm=0, lgkm=0),
          valu("v_readfirstlane_b32", S(46), V(3)), nop(3))
        if O_.calib_glob == 1: E(salu("s_not_b32", S(46), S(46)))
        E(salu("s_sub_u32", S(42), S(42), S(46)), scmp("s_cmp_lt_u32", S(42), O_.calib - 1000), raw("s_sleep 32"), raw("s_cbranch_scc1 L_spin0", "salu", {"scc"}))
    if O_.calib:
        E(wait(vm=0), label("L_spin"), raw("s_memrealtime s[42:43]", "smem", (), rs(S(42, 2))), wait(lgkm=0),
          salu("s_sub_u32", S(42), S(42), S(46)), scmp("s_cmp_lt_u32", S(42), O_.calib), raw("s_cbranch_scc1 L_spin", "salu", {"scc"}))
    if O_.stamps:
        E(wait(vm=0), raw("s_memrealtime s[42:43]", "smem", (), rs(S(42, 2))), wait(lgkm=0),
          salu("s_mov_b32", S(47), S(42)))
        E(salu("s_lshl_b32", sT0, S(2), 2), salu("s_add_u32", sT0, sT0, sW), salu("s_lshl_b32", sT0, sT0, 8))
        n = nstamp[0] + 2
        E(valu("v_mov_b32", V(1), sT0))
        for k in range(n):
            E(valu("v_mov_b32", V(2), S(46 + k)),
              Inst(f"global_store_dword v1, v2, s[44:45] offset:{4*k}", "vst", rs(V(1), V(2), S(44, 2)), (), data=set()), nop(1))
    E(label("L_end"))

def build():
    setup()
    for h in range(2):
        kfrag_early(h)
        if h == 1: free_first(h)
        q_phase(h)
        if h == 0: free_first(h)
        if h == 1:
            E(stamp_now()); epilogue(0, False); E(stamp_now())
        prologue(h)
        for j in range(16): iteration(h, j)
        E(stamp_now())
        E(nop(7))
    epilogue(1, True)
    E(stamp_now())
    finish()
    resolve_and_check([(i, lambda r: r) for i in prog], verbose=True)

HEAD = """; MHA forward, B=16 H=32 Sq=384 Sk=512 D=128, bf16.  Generated by gen/gen.py
; @launch grid=(256,1,1) block=(256,1,1) lds=163840
.amdgcn_target "amdgcn-amd-amdhsa--gfx950"
.text
.globl standalone__mha_softmax__near_ridge_kernel
.p2align 8
.type standalone__mha_softmax__near_ridge_kernel,@function
standalone__mha_softmax__near_ridge_kernel:
"""
TAIL = """s_endpgm
%s
.section .rodata,"a"
.p2align 6
.amdhsa_kernel standalone__mha_softmax__near_ridge_kernel
  .amdhsa_next_free_vgpr 512
  .amdhsa_next_free_sgpr 102
  .amdhsa_accum_offset 256
  .amdhsa_group_segment_fixed_size 0
  .amdhsa_kernarg_size 48
  .amdhsa_user_sgpr_count 2
  .amdhsa_user_sgpr_kernarg_segment_ptr 1
  .amdhsa_system_sgpr_workgroup_id_x 1
.end_amdhsa_kernel
"""
if __name__ == "__main__":
    out = sys.argv[1]
    for a in sys.argv[2:]:
        k, v = a.split("=")
        cur = getattr(O_, k)
        setattr(O_, k, (v not in ("0", "False")) if isinstance(cur, bool) else type(cur)(v))
    build()
    body = "\n".join((i.text if i.kind == "label" else "    " + i.text) for i in prog)
    pad = ""
    open(out, "w").write(HEAD + body + "\n" + TAIL % pad)
```

```python
class Reg:
    __slots__ = ("k", "i", "n")
    def __init__(s, k, i, n=1): s.k, s.i, s.n = k, i, n
    def __str__(s): return f"{s.k}{s.i}" if s.n == 1 else f"{s.k}[{s.i}:{s.i+s.n-1}]"
    __repr__ = __str__
    def set(s): return {f"{s.k}{s.i+j}" for j in range(s.n)}
    def __getitem__(s, j):
        if isinstance(j, slice):
            a = j.start or 0; b = s.n if j.stop is None else j.stop
            assert 0 <= a < b <= s.n
            return Reg(s.k, s.i + a, b - a)
        assert 0 <= j < s.n
        return Reg(s.k, s.i + j, 1)
def V(i, n=1): return Reg("v", i, n)
def A(i, n=1): return Reg("a", i, n)
def S(i, n=1): return Reg("s", i, n)
def rs(*xs):
    o = set()
    for x in xs:
        if isinstance(x, Reg): o |= x.set()
        elif isinstance(x, str) and x in ("m0", "vcc", "scc", "exec"): o.add(x)
    return o

class Inst:
    def __init__(s, text, kind, rd=(), wr=(), **m):
        s.text, s.kind, s.rd, s.wr, s.m = text, kind, set(rd), set(wr), m
    def __repr__(s): return s.text

TRANS = ("v_exp_f32", "v_rcp_f32", "v_log_f32", "v_rsq_f32", "v_sqrt_f32")
def valu(op, d, *src, mods="", rmw=False, extra_rd=(), extra_wr=()):
    t = f"{op} {d}, " + ", ".join(str(x) for x in src) + (" " + mods if mods else "")
    kind = "trans" if op in TRANS else "valu"
    rd = rs(*src) | set(extra_rd)
    if rmw: rd |= rs(d)
    return Inst(t, kind, rd, rs(d) | set(extra_wr), op=op)
def swap(op, x, y):
    return Inst(f"{op} {x}, {y}", "valu", rs(x, y), rs(x, y), op=op, perm=True)
def mfma(d, a, b, c, big=False):
    op = "v_mfma_f32_32x32x16_bf16" if big else "v_mfma_f32_16x16x32_bf16"
    assert d.n == (16 if big else 4) and a.n == 4 and b.n == 4
    if isinstance(c, Reg): assert c.k == d.k and c.n == d.n
    return Inst(f"{op} {d}, {a}, {b}, {c}", "mfma", rs(a, b, c), rs(d), big=big, d=str(d), c=str(c),
                ab=rs(a, b), cs=rs(c))
def salu(op, d, *src):
    t = f"{op} {d}" + "".join(f", {x}" for x in src)
    wr = rs(d)
    if op not in ("s_mov_b32", "s_mov_b64", "s_mul_i32", "s_getpc_b64", "s_cselect_b32", "s_mul_hi_u32"): wr = wr | {"scc"}
    rd = rs(*src)
    if op in ("s_addc_u32", "s_subb_u32", "s_cselect_b32"): rd.add("scc")
    return Inst(t, "salu", rd, wr)
def scmp(op, a, b): return Inst(f"{op} {a}, {b}", "salu", rs(a, b), {"scc"})
def raw(text, kind="salu", rd=(), wr=(), **m): return Inst(text, kind, rd, wr, **m)
def nop(n): return Inst(f"s_nop {n}", "nop", w=n + 1)
def label(n): return Inst(f"{n}:", "label")
def comment(t): return Inst(f"; {t}", "label")
def ds_read(op, d, addr, off, reg=None):
    assert 0 <= off < 65536
    return Inst(f"{op} {d}, {addr}" + (f" offset:{off}" if off else ""), "dsr", rs(addr), rs(d), reg=reg)
def ds_write(op, addr, data, off, reg=None):
    assert 0 <= off < 65536
    return Inst(f"{op} {addr}, {data}" + (f" offset:{off}" if off else ""), "dsw", rs(addr, data), (), reg=reg)
def dma(voff, srd, soff, imm, reg, flags="nt"):
    assert 0 <= imm < 4096
    return Inst(f"buffer_load_dwordx4 {voff}, {srd}, {soff} offen" + (f" offset:{imm}" if imm else "") + f" {flags} lds",
                "dma", rs(voff, srd, soff, "m0"), (), reg=reg)
def vload(d, voff, srd, soff, imm, flags=""):
    return Inst(f"buffer_load_dwordx4 {d}, {voff}, {srd}, {soff} offen" + (f" offset:{imm}" if imm else "") + f" {flags}",
                "vld", rs(voff, srd, soff), rs(d))
def vstore(data, voff, srd, soff, imm, flags="", op="buffer_store_dwordx4"):
    assert 0 <= imm < 4096
    return Inst(f"{op} {data}, {voff}, {srd}, {soff} offen" + (f" offset:{imm}" if imm else "") + f" {flags}",
                "vst", rs(data, voff, srd, soff), (), data=rs(data))
def wait(vm=None, lgkm=None):
    return Inst("s_waitcnt ?", "wait", vm=vm, lgkm=lgkm)
def barrier(): return Inst("s_barrier", "barrier")

class CheckError(Exception): pass

def resolve_and_check(trace, verbose=False, fix=None):
    def absreg(inst, ctx):
        r = inst.m.get("reg")
        return None if r is None else ctx(r)
    for inst, ctx in trace:
        if inst.kind == "wait": inst.m["nvm"] = None; inst.m["nlg"] = None
    for rnd in range(2):
        vq, lq = [], []
        for inst, ctx in trace:
            k = inst.kind
            if k in ("dma", "vld", "vst"): vq.append((inst, absreg(inst, ctx)))
            elif k in ("dsr", "dsw"): lq.append(inst)
            elif k == "smem": lq.append(inst); lq.append(inst)
            elif k == "wait":
                vm, lg = inst.m["vm"], inst.m["lgkm"]
                if vm is not None:
                    if isinstance(vm, int): n = vm
                    else:
                        keys = [ctx(x) for x in vm if not isinstance(x, Reg)]
                        regs = rs(*[x for x in vm if isinstance(x, Reg)])
                        n = 63
                        for idx, (q, ar) in enumerate(vq):
                            if (ar is not None and ar in keys) or (q.wr & regs): n = min(n, len(vq) - 1 - idx)
                    o = inst.m["nvm"]; inst.m["nvm"] = n if o is None else min(o, n)
                    n = inst.m["nvm"]
                    if len(vq) > n: vq = vq[len(vq) - n:]
                if lg is not None:
                    if isinstance(lg, int): n = lg
                    else:
                        regs = rs(*lg); n = 15
                        for idx, q in enumerate(lq):
                            if q.wr & regs: n = min(n, len(lq) - 1 - idx)
                        if any(q.kind == "smem" for q in lq): n = 0
                    o = inst.m["nlg"]; inst.m["nlg"] = n if o is None else min(o, n)
                    n = inst.m["nlg"]
                    if len(lq) > n: lq = lq[len(lq) - n:]
    for inst, ctx in trace:
        if inst.kind == "wait":
            p = []
            if inst.m["nvm"] is not None: p.append(f"vmcnt({inst.m['nvm']})")
            if inst.m["nlg"] is not None: p.append(f"lgkmcnt({inst.m['nlg']})")
            inst.text = "s_waitcnt " + " ".join(p)
    errs = []
    def err(i, msg): errs.append(f"[{i}] {trace[i][0].text}: {msg}")
    vq, lq = [], []
    region = {}
    epoch = 0
    hist = []
    pos = 0
    maxv = maxl = 0
    for i, (inst, ctx) in enumerate(trace):
        k = inst.kind
        if k == "label": continue
        touched = inst.rd | inst.wr
        for q in lq:
            if q[0].wr & touched: err(i, f"touches pending lgkm dest of '{q[0].text}'")
        for q in vq:
            if q[0].wr & touched: err(i, f"touches pending vm dest of '{q[0].text}'")
        for (pp, p) in reversed(hist):
            d = pos - pp
            if d > 20: break
            need = 0; why = ""
            pk = p.kind
            if pk in ("valu", "trans"):
                vw = {r for r in p.wr if r[0] in "va" and r != "vcc"}
                sw = {r for r in p.wr if r[0] == "s" or r == "vcc"} - {"scc"}
                if k == "mfma" and vw & inst.rd: need, why = 2, "valu->mfma"
                if k in ("valu", "trans") and pk == "trans" and vw & inst.rd: need, why = max(need, 1), "trans->valu"
                if inst.m.get("perm") and vw & inst.rd: need, why = max(need, 2), "valu->permlane"
                if inst.m.get("op") in ("v_readfirstlane_b32", "v_readlane_b32") and vw & inst.rd: need, why = max(need, 1), "valu->readlane"
                if k in ("valu", "trans") and sw & inst.rd: need, why = max(need, 2), "valu sgpr->valu"
                if k in ("dma", "vld", "vst") and sw & inst.rd: need, why = max(need, 5), "valu sgpr->vmem"
                if "exec" in p.wr and k == "mfma": need, why = max(need, 4), "exec->mfma"
            if pk == "mfma":
                big = p.m["big"]
                if k == "mfma":
                    if p.wr & inst.m["ab"]: need, why = (12 if big else 8), "mfma D->AB"
                    if p.wr & inst.m["cs"] and not (p.m["d"] == inst.m["c"] and big == inst.m["big"]):
                        need, why = max(need, 10 if big else 6), "mfma D->C overlap"
                    if p.wr & inst.wr and not (p.m["d"] == inst.m["c"] and big == inst.m["big"]) and big != inst.m["big"]:
                        need, why = max(need, 10), "mfma WAW shape"
                elif k in ("valu", "trans", "dsr", "dsw", "dma", "vld", "vst"):
                    if p.wr & touched: need, why = (12 if big else 8), "mfma D->other"
                    if p.m["cs"] & inst.wr: need, why = max(need, 7 if big else 3), "mfma C WAR"
            if pk == "salu" and "m0" in p.wr and k == "dma": need, why = 1, "m0->dma"
            if pk == "vst" and p.m["data"] & inst.wr: need, why = 2, "store data WAR"
            if need > d:
                if fix is not None: fix[id(inst)] = max(fix.get(id(inst), 0), need - d)
                else: err(i, f"hazard {why} after '{p.text}': have {d} need {need}")
        ar = absreg(inst, ctx)
        if k == "dma":
            phys, content, shared = ar
            st = region.setdefault(phys, dict(content=None, pend=0, vis=True, rd_out=0, rd_epoch=-1))
            if st["content"] != content:
                if st["rd_out"]: err(i, f"DMA into {phys} with reads outstanding")
                if shared and st["rd_epoch"] >= epoch: err(i, f"DMA into {phys}: last reads not separated by a barrier")
                if st["pend"]: err(i, f"DMA into {phys} over pending DMA of other content")
            st["content"] = content; st["pend"] += 1; st["vis"] = False; st["shared"] = shared
            vq.append((inst, phys))
        elif k in ("vld", "vst"): vq.append((inst, None))
        elif k == "dsr":
            ph = []
            if ar is not None:
                for (phys, content, shared) in (ar if isinstance(ar, list) else [ar]):
                    st = region.get(phys)
                    if st is None or st["content"] != content: err(i, f"reads {phys} expecting {content}, has {st and st['content']}")
                    elif st["pend"] or not st["vis"]: err(i, f"reads {phys} before visible (pend={st['pend']})")
                    if st is not None: st["rd_out"] += 1; ph.append(phys)
            lq.append((inst, ph))
        elif k == "dsw":
            if ar is not None:
                for (phys, content, shared) in (ar if isinstance(ar, list) else [ar]):
                    st = region.setdefault(phys, dict(content=None, pend=0, vis=True, rd_out=0, rd_epoch=-1))
                    assert not shared
                    if st["pend"]: err(i, f"ds_write into {phys} with DMA pending")
                    st["content"] = content; st["vis"] = True; st["shared"] = False
            lq.append((inst, []))
        elif k == "smem": lq.append((inst, [])); lq.append((inst, []))
        elif k == "wait":
            n = inst.m["nvm"]
            if n is not None:
                while len(vq) > n:
                    q, phys = vq.pop(0)
                    if phys is not None:
                        st = region[phys]; st["pend"] -= 1
                        if st["pend"] == 0 and not st["shared"]: st["vis"] = True
            n = inst.m["nlg"]
            if n is not None:
                if n > 0 and any(q[0].kind == "smem" for q in lq): err(i, "counted lgkm wait with smem outstanding")
                while len(lq) > n:
                    q, ph = lq.pop(0)
                    for phys in ph:
                        region[phys]["rd_out"] -= 1; region[phys]["rd_epoch"] = epoch
        elif k == "barrier":
            epoch += 1
            for st in region.values():
                if st["pend"] == 0: st["vis"] = True
        maxv = max(maxv, len(vq)); maxl = max(maxl, len(lq))
        if len(vq) > 63: err(i, "vmcnt overflow")
        w = inst.m.get("w", 1)
        pos += w
        hist.append((pos, inst))
        if len(hist) > 40: hist.pop(0)
    if verbose: print(f"trace {len(trace)} insts, max vm {maxv}, max lgkm {maxl}, barriers {epoch}")
    if errs:
        raise CheckError("\n".join(errs[:40]) + f"\n({len(errs)} errors)")


def cost_estimate(insts):
    t = 0; mf_free = 0; prev = None
    for x in insts:
        k = x.kind
        if k == "label": continue
        if k == "mfma":
            t = max(t, mf_free); mf_free = t + (32 if x.m["big"] else 16); t += 8
        elif k == "trans": t += 8
        elif k == "nop": t += 4 * x.m["w"]
        elif k in ("dsr", "dsw", "dma", "vld", "vst"):
            t += 12 if prev in ("valu", "trans") else (8 if prev in ("dsr", "dsw", "dma", "vld", "vst") else 4)
        elif k == "barrier": t += 36
        elif k == "valu" and x.m.get("op", "").startswith("v_pk_"):
            t = max(t, mf_free + 4) + 4
        else: t += 4
        prev = k
    return max(t, mf_free)
```

```python
import sys, math, struct
from ir import *

class Opt:
    stamps = 0
    st_flags = "sc1"
    fin_flags = "sc1"
    ld_flags = "nt"
    prefetch_code = True
    nC = 5
O_ = Opt()

NB = 6
def f32bits(x): return struct.unpack("<I", struct.pack("<f", x))[0]
CSCALE = f32bits(math.log2(math.e) / math.sqrt(128.0))
THRESH = f32bits(2.0 ** 40)

def Sreg(b, a): return V(8*b + 4*a, 4)
def Preg(par, b): return V(48 + 24*par + 4*b, 4)
def negM(b): return V(96 + 4*b, 4)
kaddr = [V(120 + s) for s in range(4)]
vaddr = [V(124 + t) for t in range(8)]
vkv = V(132); vsd0 = V(133); vsd1 = V(134); vlin = V(135)
qa = [V(136 + s) for s in range(4)]
zero4 = V(140, 4)
def Oreg(b, t):
    n = 8*b + t
    return V(144 + 4*n, 4) if n < 28 else A(176 + 4*(n - 28), 4)
def Qreg(b, s): return A(16*b + 4*s, 4)
def F(i): return A(96 + 4*i, 4)
def lacc(b): return A(128 + 4*b, 4)
ones = A(152, 4)
X = [A(156 + 4*k, 4) for k in range(5)]
sQ, sK, sV, sO = S(12, 4), S(16, 4), S(20, 4), S(24, 4)
sW = S(28); sKVoff = S(29); sM0 = S(30); sStg = S(31); sSide = S(32); sT0 = S(33); sT1 = S(34); sT2 = S(35)
sFlag = S(36); sThr = S(37); sC = S(38, 2); sCmp = S(40, 2); sStamp = S(42, 2); sCnt = S(3); sQd = S(4)
STAMP0 = 48

def aK(J): return (("ring", (J - 2) % 4, "K"), ("K", J), True)
def aV(J): return (("ring", J % 4, "V"), ("V", J), True)
def rK(d): return lambda c: aK(c["J"] + d)
def rV(d): return lambda c: aV(c["J"] + d)
def aQ(h, p): return (("stg", p), ("Q", h), False)
def aO(h, p): return (("stg", p), ("O", h), False)
def blk(f, h, b): return [f(h, 4*b + i) for i in range(4)]
def mkctx(c):
    def f(r):
        if callable(r): return r(c)
        return r
    return f

segs = []
path = []
cur = None
def seg(name):
    global cur
    cur = []; segs.append([name, cur]); return len(segs) - 1
def E(*xs):
    for x in xs:
        if x is None: continue
        if isinstance(x, (list, tuple)): E(*x)
        else: cur.append(x)
nstamp = [0]
def stamp_now():
    if not O_.stamps: return []
    k = nstamp[0]; nstamp[0] += 1
    op = "s_memtime" if O_.stamps == 1 else "s_memrealtime"
    return [raw(f"{op} {sStamp}", "smem", (), rs(sStamp)), wait(lgkm=0), salu("s_mov_b32", S(STAMP0 + k), sStamp[0])]

MEM = ("dsr", "dsw", "dma", "vld", "vst")
class Sched:
    def __init__(s, mf):
        s.mf = mf; s.n = len(mf); s.g = [[] for _ in mf]
        s.cap = [24 if m.m["big"] else 8 for m in mf]
    def cost(s, x): return 8 if x.kind == "trans" else 4
    def fits(s, g, x):
        if s.cap[g] < s.cost(x): return False
        if x.kind in MEM and any(y.kind in MEM for y in s.g[g]): return False
        return True
    def put(s, g, *xs):
        for x in xs:
            if isinstance(x, list): s.put(g, *x); continue
            s.g[g].append(x); s.cap[g] -= s.cost(x)
        return g
    def place(s, x, lo, hi=None):
        hi = s.n - 1 if hi is None else hi
        for g in range(lo, hi + 1):
            if s.fits(g, x): return s.put(g, x)
        raise Exception(f"cannot place {x} in [{lo},{hi}]")
    def chain(s, xs, lo, hi=None, step=1):
        g = lo - step
        for x in xs: g = s.place(x, g + step, hi)
        return g
    def pour(s, xs, lo, hi=None):
        hi = s.n - 1 if hi is None else hi
        xs = list(xs); g = lo; pend = []
        while g <= hi and (xs or pend):
            if pend and pend[0][1] < g and s.fits(g, pend[0][0]): s.put(g, pend.pop(0)[0]); continue
            if xs and xs[0].kind in MEM: pend.append((xs.pop(0), g)); continue
            if xs and xs[0].kind == "wait" and pend: g += 1; continue
            if xs and len(pend) < 2 and s.fits(g, xs[0]):
                x = xs.pop(0); s.put(g, x)
                if x.kind == "wait": g += 1
                continue
            g += 1
        return [p[0] for p in pend] + xs
    def emit(s):
        for m, g in zip(s.mf, s.g):
            E(m)
            key = lambda x: 3 if x.m.get("last") else (2 if x.kind in ("valu", "trans") else (0 if x.kind in MEM else 1))
            E(sorted(g, key=key))

def kread(d, a, s, dst, hi): return ds_read("ds_read_b128", dst, kaddr[s], hi*16384 + a*8192, rK(d))
def vread(d, t, a, dst, hi): return ds_read("ds_read_b64_tr_b16", dst[2*a:2*a+2], vaddr[t], hi*16384 + a*8192, rV(d))
def kv_dmas(d, withV=True):
    o = []
    for im in (0, 2048):
        if withV: o.append(dma(vkv, sV, sKVoff, im + 1024, rV(d), O_.ld_flags))
        o.append(dma(vkv, sK, sKVoff, im, rK(d + 2), O_.ld_flags))
    return o
def start_group(J, withV=True):
    op, im = ("s_add_u32", (J % 4)*16384 - 32768) if J % 4 >= 2 else ("s_sub_u32", 32768 - (J % 4)*16384)
    return [salu(op, "m0", sM0, im), salu("s_mov_b32", sKVoff, (J + 2)*8192)] + kv_dmas(J, withV)
def q_dma_block(h, b):
    o = [salu("s_add_u32", "m0", sStg, b*4096), salu("s_mov_b32", sSide, h*98304 + b*4096)]
    for i in range(4): o.append(dma(vsd1 if i & 1 else vsd0, sQ, sSide, i*1024, aQ(h, 4*b + i), O_.ld_flags))
    return o
def pad_vm(n):
    return [Inst(f"buffer_load_dword {X[4][0]}, {vlin}, {sQ}, {sThr} offen", "vld", rs(vlin, sQ, sThr), ()) for _ in range(n)]
def zero_mfmas():
    o = [mfma(V(144 + 16*k, 16), zero4, zero4, 0, big=True) for k in range(7)]
    o += [mfma(A(176 + 16*k, 16), zero4, zero4, 0, big=True) for k in range(5)]
    o += [mfma(A(128, 16), zero4, zero4, 0, big=True), mfma(A(144, 4), zero4, zero4, 0), mfma(A(148, 4), zero4, zero4, 0)]
    return o

def sm_ops(par, b, a):
    s = Sreg(b, a); p = Preg(par, b)
    return [valu("v_exp_f32", s[0], s[0]), valu("v_exp_f32", s[1], s[1]), valu("v_cvt_pk_bf16_f32", p[2*a], s[0], s[1]),
            valu("v_exp_f32", s[2], s[2]), valu("v_exp_f32", s[3], s[3]), valu("v_cvt_pk_bf16_f32", p[2*a+1], s[2], s[3])]
NE_A = 38
def sm_split(par):
    st = []
    for a in range(2):
        for b in range(NB): st += [(b, x) for x in sm_ops(par, b, a)]
    k = NE_A // 2 * 3
    return st[:k], st[k:]
def place_sm(sc, ops, g0):
    g = g0 - 2
    for _, x in ops:
        if x.kind == "trans": g += 2; sc.put(g, x)
        else: sc.put(g + 1, x)
def delay_cvts(xs):
    o = []; pend = []
    for x in xs:
        if x.kind == "trans":
            o.append(x)
            if pend: o.append(pend.pop(0))
        else: pend.append(x)
    return o + pend
def rowmax_ops(bs, pk=True):
    o = []
    m = {b: negM(b)[0] for b in bs}; t = {b: negM(b)[1] for b in bs}
    sv = lambda b, r: V(8*b + r)
    for b in bs: o.append(valu("v_max3_f32", m[b], sv(b, 0), sv(b, 1), sv(b, 2)))
    for b in bs: o.append(valu("v_max3_f32", t[b], sv(b, 3), sv(b, 4), sv(b, 5)))
    for b in bs: o.append(valu("v_max3_f32", m[b], m[b], sv(b, 6), sv(b, 7)))
    for b in bs: o.append(valu("v_max_f32", m[b], m[b], t[b]))
    for op in ("v_permlane32_swap_b32", "v_permlane16_swap_b32"):
        for b in bs: o.append(valu("v_mov_b32", t[b], m[b]))
        for b in bs: o.append(swap(op, m[b], t[b]))
        for b in bs: o.append(valu("v_max_f32", m[b], m[b], t[b]))
    for b in bs:
        for r in (1, 2, 3, 0): o.append(valu("v_sub_f32", negM(b)[r], 0, m[b]))
    sub = []
    for b in bs:
        for r in range(4): sub.append(valu("v_pk_add_f32", V(8*b + 2*r, 2), V(8*b + 2*r, 2), negM(b)[0:2]))
    return o, sub
def scale_frag(x, dst, w, y, pk=True):
    o = []
    if pk:
        for r in range(4): o += [valu("v_lshlrev_b32", w[2*r], 16, x[r]), valu("v_and_b32", w[2*r+1], "0xffff0000", x[r])]
        for r in range(4): o.append(valu("v_pk_mul_f32", w[2*r:2*r+2], w[2*r:2*r+2], sC))
    else:
        for r in range(4):
            o += [valu("v_lshlrev_b32", w[2*r], 16, x[r]), valu("v_and_b32", w[2*r+1], "0xffff0000", x[r]),
                  valu("v_mul_f32", w[2*r], sC[0], w[2*r]), valu("v_mul_f32", w[2*r+1], sC[0], w[2*r+1])]
    for r in range(4): o.append(valu("v_cvt_pk_bf16_f32", y[r], w[2*r], w[2*r+1]))
    for r in range(4): o.append(valu("v_accvgpr_write_b32", dst[r], y[r]))
    return o
def qk_first(b): return [mfma(Sreg(b, a), F(4*a + s), Qreg(b, s), 0 if s == 0 else Sreg(b, a)) for a in range(2) for s in range(4)]

def startup():
    v0, vl, vi, vu, t0, t1, t2 = V(0), V(1), V(2), V(3), V(4), V(5), V(6)
    E(comment("---- setup"),
      raw("s_load_dwordx4 s[4:7], s[0:1], 0", "smem", (), rs(S(4, 4))),
      raw("s_load_dwordx4 s[8:11], s[0:1], 16", "smem", (), rs(S(8, 4))),
      scmp("s_cmp_ge_u32", S(2), 256), raw("s_cbranch_scc1 L_end", "salu", {"scc"}))
    if O_.stamps:
        E(raw("s_load_dwordx2 s[44:45], s[0:1], 40", "smem", (), rs(S(44, 2))),
          raw("s_memrealtime s[46:47]", "smem", (), rs(S(46, 2))))
    if O_.prefetch_code:
        E(raw("s_getpc_b64 s[40:41]", "salu", (), rs(S(40, 2))), label("L_pc"),
          valu("v_lshlrev_b32", t0, 7, v0), valu("v_min_u32", t0, "L_end-L_pc", t0),
          Inst(f"global_load_dword v7, {t0}, s[40:41]", "vld", rs(t0, S(40, 2)), rs(V(7))))
    E(valu("v_lshrrev_b32", t1, 6, v0), valu("v_and_b32", vl, 63, v0),
      valu("v_readfirstlane_b32", sW, t1),
      valu("v_and_b32", vi, 15, vl), valu("v_lshrrev_b32", vu, 4, vl),
      valu("v_lshlrev_b32", t0, 1, vu), valu("v_xor_b32", t0, t0, vi), valu("v_lshlrev_b32", t0, 4, t0),
      valu("v_lshl_add_u32", vsd0, vu, 8, t0), valu("v_xor_b32", vsd1, 128, vsd0),
      salu("s_and_b32", sT0, sW, 1), salu("s_lshr_b32", sT1, sW, 1),
      salu("s_lshl_b32", sT2, sT0, 7), salu("s_lshl_b32", sT0, sT0, 10), salu("s_lshl_b32", sT1, sT1, 12),
      salu("s_add_u32", sT0, sT0, sT1),
      valu("v_xor_b32", vkv, sT2, vsd0), valu("v_add_u32", vkv, sT0, vkv),
      salu("s_lshl_b32", sM0, sW, 12), salu("s_add_u32", sM0, sM0, 32768), salu("s_mul_i32", sStg, sW, 24576),
      salu("s_mul_i32", sT0, S(2), 196608), salu("s_add_u32", sT0, sT0, sStg), salu("s_add_u32", sStg, sStg, 65536),
      salu("s_lshl_b32", sT1, S(2), 18),
      salu("s_mov_b32", sK[2], 262144), salu("s_mov_b32", sK[3], "0x20000"),
      salu("s_mov_b32", sQ[2], 98304 + 24576), salu("s_mov_b32", sQ[3], "0x20000"),
      wait(lgkm=0),
      salu("s_add_u32", sK[0], S(6), sT1), salu("s_addc_u32", sK[1], S(7), 0), salu("s_and_b32", sK[1], sK[1], "0xffff"),
      salu("s_add_u32", sQ[0], S(4), sT0), salu("s_addc_u32", sQ[1], S(5), 0), salu("s_and_b32", sQ[1], sQ[1], "0xffff"))
    E(start_group(-2, False))
    for b in range(3): E(q_dma_block(0, b))
    E(salu("s_add_u32", sV[0], S(8), sT1), salu("s_addc_u32", sV[1], S(9), 0),
      salu("s_sub_u32", sV[0], sV[0], 1024 + 16384), salu("s_subb_u32", sV[1], sV[1], 0), salu("s_and_b32", sV[1], sV[1], "0xffff"),
      salu("s_mov_b32", sV[2], 262144 + 1024 + 16384), salu("s_mov_b32", sV[3], "0x20000"),
      salu("s_add_u32", sO[0], S(10), sT0), salu("s_addc_u32", sO[1], S(11), 0), salu("s_and_b32", sO[1], sO[1], "0xffff"),
      salu("s_mov_b32", sO[2], 98304 + 24576), salu("s_mov_b32", sO[3], "0x20000"),
      salu("s_mov_b32", sC[0], hex(CSCALE)), salu("s_mov_b32", sC[1], hex(CSCALE)),
      salu("s_mov_b32", sThr, hex(THRESH)), salu("s_mov_b32", sFlag, 0), salu("s_sub_u32", sQd, sStg, 98304))
    E(valu("v_and_b32", t0, 7, vi), valu("v_lshlrev_b32", t0, 1, t0), valu("v_xor_b32", t0, t0, vu), valu("v_lshlrev_b32", t0, 4, t0),
      valu("v_lshl_add_u32", t2, vi, 8, t0), valu("v_add_u32", qa[0], sStg, t2),
      valu("v_and_b32", t1, 3, vi), valu("v_lshl_add_u32", t0, t1, 8, t0),
      valu("v_lshrrev_b32", t1, 3, vi), valu("v_lshl_add_u32", t0, t1, 11, t0),
      valu("v_bfe_u32", t1, vi, 2, 1), valu("v_lshl_add_u32", t0, t1, 12, t0), valu("v_add_u32", kaddr[0], 32768, t0))
    for s in range(1, 4): E(valu("v_xor_b32", kaddr[s], s << 6, kaddr[0]), valu("v_xor_b32", qa[s], s << 6, qa[0]))
    E(valu("v_lshrrev_b32", t1, 2, vi), valu("v_and_b32", t2, 1, vu), valu("v_lshl_add_u32", t0, t2, 2, t1),
      valu("v_lshlrev_b32", t0, 5, t0), valu("v_lshl_add_u32", t0, t1, 8, t0), valu("v_lshl_add_u32", t0, t2, 12, t0),
      valu("v_lshrrev_b32", t2, 1, vu), valu("v_lshl_add_u32", t0, t2, 11, t0),
      valu("v_and_b32", t1, 3, vi), valu("v_lshl_add_u32", t0, t1, 3, t0), valu("v_add_u32", vaddr[0], 1024, t0))
    for t in range(1, 8): E(valu("v_xor_b32", vaddr[t], t << 5, vaddr[0]))
    E(valu("v_lshlrev_b32", vlin, 4, vl), valu("v_mov_b32", t0, "0x3f803f80"))
    for r in range(4): E(valu("v_accvgpr_write_b32", ones[r], t0), valu("v_mov_b32", zero4[r], 0))
    E(zero_mfmas())
    E(stamp_now())
    E(comment("---- first K tile"), wait(vm=[aK(0)]), barrier())
    for a in range(2):
        for s in range(4): E(kread(0, a, s, F(4*a + s), 0))
    later = [q_dma_block(0, 3), q_dma_block(0, 4), q_dma_block(0, 5), start_group(-1, False) + start_group(0), start_group(1) + pad_vm(3), []]
    first, _ = sm_split(0)
    rawr = lambda s: V(72 + 4*s, 4)
    for b in range(NB):
        E(comment(f"---- start-up block {b}"), later[b], wait(vm=blk(aQ, 0, b)))
        for s in range(4): E(ds_read("ds_read_b128", rawr(s), qa[s], b*4096, blk(aQ, 0, b)))
        for s in range(4):
            E(wait(lgkm=[rawr(s)] + ([F(k) for k in range(8)] if b == 0 else [])))
            E(scale_frag(rawr(s), Qreg(b, s), V(88, 8), Sreg(b, s & 1)))
        E(qk_first(b))
        if b == NB - 1:
            E(wait(vm=[aK(1)]), barrier())
            for s in range(4): E(kread(1, 0, s, F(s), 1))
            E(salu("s_mov_b32", "m0", sM0), salu("s_mov_b32", sKVoff, 4*8192), kv_dmas(2))
        mx, sub = rowmax_ops([b])
        E(mx, sub, delay_cvts([x for bb, x in first if bb == b]))
    E(salu("s_mov_b32", sSide, 98304), salu("s_mov_b32", sCnt, 7), wait(lgkm=[F(s) for s in range(4)]))
    E(stamp_now())

def o_reads(h, pf, dst, off):
    o = []
    for i in range(4):
        ad = vsd1 if i & 1 else vsd0
        if i >> 1: o += [ds_read("ds_read_b64", dst[i][0:2], ad, off + i*1024 + 8, pf(i)), ds_read("ds_read_b64", dst[i][2:4], ad, off + i*1024, pf(i))]
        else: o.append(ds_read("ds_read_b128", dst[i], ad, off + i*1024, pf(i)))
    return o

def pv_mfmas(par, frags):
    mf = []
    for t in range(8):
        for b in range(NB): mf.append(mfma(Oreg(b, t), frags[t], Preg(par, b), Oreg(b, t)))
        if t < NB: mf.append(mfma(lacc(t), ones, Preg(par, t), lacc(t)))
    return mf

def side_O(sc, rlo, slo):
    j0 = 2*O_.nC
    pf = lambda i: (lambda c: aO(0, 4*(c["J"] - 16 - j0) + i))
    g = sc.chain(o_reads(0, pf, X, 0), rlo)
    g = sc.place(wait(lgkm=X[:4]), max(g + 6, slo))
    g2 = sc.chain([vstore(X[i], vlin, sO, sSide, i*1024, O_.st_flags) for i in range(4)], g + 1, step=3)
    sc.chain([valu("v_add_u32", vsd0, 4096, vsd0), valu("v_add_u32", vsd1, 4096, vsd1)], g)
    sc.place(salu("s_add_u32", sSide, sSide, 4096), g2 + 1)

def iteration(par, side, ctl):
    mf = [mfma(Sreg(b, a), F(4*a + s), Qreg(b, s), negM(b) if s == 0 else Sreg(b, a)) for a in range(2) for b in range(NB) for s in range(4)]
    mf += pv_mfmas(par, [F(t) for t in range(8)])
    sc = Sched(mf)
    place_sm(sc, sm_split(par)[1], 0)
    place_sm(sc, sm_split(1 - par)[0], 24)
    sc.put(101, ctl)
    sc.chain([kread(1, 1, s, F(4 + s), 1 - par) for s in range(4)], 1)
    sc.put(22, wait(vm=[rV(0), rK(2)], lgkm=0)); sc.put(23, barrier()); sc.cap[23] = 0
    if par == 0:
        sc.put(21, salu("s_add_u32", "m0", sM0, 16384)); sc.put(22, salu("s_xor_b32", sM0, sM0, 32768))
        sc.chain([valu("v_xor_b32", r, 32768, r) for r in kaddr], 9, 21, step=0)
    else: sc.put(21, salu("s_mov_b32", "m0", sM0))
    sc.place(salu("s_add_u32", sKVoff, sKVoff, 8192), 9, 21)
    ops = kv_dmas(3); vr = [vread(0, t, a, F(t), par) for t in range(4) for a in range(2)]
    seq = []
    for k in range(4): seq += [ops[k]] + vr[2*k:2*k + 2]
    sc.chain(seq, 25, 47)
    gv = sc.chain([vread(0, t, a, F(t), par) for t in range(4, 8) for a in range(2)], 49)
    sc.chain([kread(2, 0, s, F(s), par) for s in range(4)], 77)
    sc.place(wait(lgkm=[F(0), F(1)]), 45, 47)
    sc.place(wait(lgkm=[F(2), F(3)]), 57, 61)
    sc.place(wait(lgkm=[F(4), F(5), F(6), F(7)]), 73, 75)
    sc.place(wait(lgkm=[F(s) for s in range(4)]), 97, 101)
    if side == "Q" and par == 0:
        pf = lambda k: (lambda c: aQ(1, 3*(c["J"]//2) + k))
        g = sc.place(salu("s_add_u32", "m0", sSide, sQd), 49)
        g = sc.chain([dma(vsd1 if k & 1 else vsd0, sQ, sSide, k*1024, pf(k), O_.ld_flags) for k in range(3)], gv + 1, step=3)
        sc.chain([salu("s_add_u32", sSide, sSide, 3072), valu("v_xor_b32", vsd0, 128, vsd0), valu("v_xor_b32", vsd1, 128, vsd1)], g + 1, step=0)
    if side == "O": side_O(sc, 9, 65)
    if par == 1: sc.chain([valu("v_xor_b32", r, 32768, r) for r in vaddr], gv + 1, 100, step=0)
    sc.emit()

def br(text): return raw(text, "salu", {"scc"}, (), last=True)
def dec():
    x = salu("s_sub_u32", sCnt, sCnt, 1); x.m["last"] = True; return x
def loop(name, side, J0, n_iter):
    e = seg(name + "_even"); E(raw(".p2align 3", "label"), label(f"L_{name}"))
    if n_iter & 1:
        iteration(0, side, [dec(), br(f"s_cbranch_scc1 L_{name}_exit")])
        o = seg(name + "_odd"); iteration(1, side, [br(f"s_branch L_{name}")]); E(label(f"L_{name}_exit"))
    else:
        iteration(0, side, [])
        o = seg(name + "_odd"); iteration(1, side, [dec(), br(f"s_cbranch_scc0 L_{name}")])
    for k in range(n_iter): path.append((o if k & 1 else e, {"J": J0 + k}))

def o_addr_ops(t0, t1, t2, first):
    o = []
    if first:
        o += [valu("v_lshrrev_b32", t0, 9, vlin), valu("v_bfe_u32", t1, vlin, 4, 3), valu("v_xor_b32", t0, t0, t1),
              valu("v_lshlrev_b32", t0, 4, t0), valu("v_lshrrev_b32", t1, 8, vlin), valu("v_lshrrev_b32", t2, 7, vlin),
              valu("v_xor_b32", t2, t1, t2), valu("v_and_b32", t2, 1, t2), valu("v_lshl_add_u32", t0, t2, 3, t0),
              valu("v_bfe_u32", t2, vlin, 4, 4), valu("v_lshl_add_u32", t0, t2, 8, t0), valu("v_add_u32", qa[0], sStg, t0)]
        o += [valu("v_xor_b32", qa[k], k << 5, qa[0]) for k in range(1, 4)]
    o += [valu("v_lshrrev_b32", t1, 4, vlin), valu("v_and_b32", t1, "0x30", t1), valu("v_xor_b32", t1, t1, vlin),
          valu("v_add_u32", vsd0, sStg, t1), valu("v_xor_b32", vsd1, 64, vsd0)]
    return o
def l_ops(h, rl, t1):
    o = [valu("v_accvgpr_read_b32", rl[b][1], lacc(b)[0]) for b in range(NB)]
    o += [valu("v_rcp_f32", rl[b][0], rl[b][1]) for b in range(NB)]
    o.append(valu("v_add_f32", t1, rl[0][1], rl[1][1]))
    o += [valu("v_add_f32", t1, t1, rl[b][1]) for b in range(2, NB)]
    o += [Inst(f"v_cmp_nlt_f32 {sCmp}, {t1}, {sThr}", "valu", rs(t1, sThr), rs(sCmp)),
          nop(0), scmp("s_cmp_lg_u64", sCmp, 0), salu("s_cselect_b32", sT0, 1 << h, 0), salu("s_or_b32", sFlag, sFlag, sT0)]
    return o
def epi_tiles(h, b, ts, rl, w, y, pk=True):
    o = []
    for k, t in enumerate(ts):
        r = Oreg(b, t)
        if r.k == "a": o += [valu("v_accvgpr_read_b32", w[4*k + i], r[i]) for i in range(4)]
    for k, t in enumerate(ts):
        r = Oreg(b, t); src = r if r.k == "v" else w[4*k:4*k + 4]
        if pk: o += [valu("v_pk_mul_f32", w[4*k + 2*i:4*k + 2*i + 2], src[2*i:2*i + 2], rl[b], mods="op_sel_hi:[1,0]") for i in range(2)]
        else: o += [valu("v_mul_f32", w[4*k + i], src[i], rl[b][0]) for i in range(4)]
    o += [valu("v_cvt_pk_bf16_f32", y[k], w[2*k], w[2*k + 1]) for k in range(2*len(ts))]
    o += [ds_write("ds_write_b64", qa[t & 3], y[2*k:2*k + 2], b*4096 + (t >> 2)*128, blk(aO, h, b)) for k, t in enumerate(ts)]
    return o

def last_head(sc_fill, vf):
    E(wait(vm=[rV(0), rK(2)]), barrier())
    vr = [vread(0, t, a, vf[t], 1) for t in range(8) for a in range(2)]
    E(vr[:4], delay_cvts([x for _, x in sm_split(1)[1]]), wait(lgkm=[vf[0]]))
    sc = Sched(pv_mfmas(1, vf))
    gv = sc.chain(vr[4:], 0)
    sc.place(wait(lgkm=[vf[1]]), 5, 6); sc.place(wait(lgkm=[vf[2], vf[3]]), 12, 13); sc.place(wait(lgkm=vf[4:]), 24, 27)
    rest = sc_fill(sc, gv)
    sc.emit()
    return rest

def transition():
    s = seg("trans"); path.append((s, {"J": 15}))
    E(stamp_now(), comment("---- head 0 last tile + head switch"))
    vf = X[:4] + [F(4), F(5), F(6), X[4]]
    rawr = lambda n: V(4*(n % 8), 4)
    def qrd(n):
        b, s_ = divmod(n, 4)
        return ([wait(vm=blk(aQ, 1, b))] if s_ == 0 else []) + [ds_read("ds_read_b128", rawr(n), qa[s_], b*4096, blk(aQ, 1, b))]
    NSH = 3
    def fill(sc, gv):
        g = gv + 1
        for n in range(8):
            for x in qrd(n): g = sc.place(x, g) + 1
        sc.chain([valu("v_xor_b32", r, 32768, r) for r in vaddr], gv + 1, step=0)
        sc.place(kread(1, 1, 3, F(7), 0), g)
        for k in range(3): sc.place(kread(1, 1, k, F(4 + k), 0), 35 + 7*k - (k == 2))
        st = []
        for n in range(NSH): st += [wait(lgkm=[rawr(n)])] + scale_frag(rawr(n), Qreg(*divmod(n, 4)), V(32, 8), V(40 + 4*(n & 1), 4), pk=False)
        return sc.pour(st, gv + 7)
    E(last_head(fill, vf))
    for n in range(NSH): E(qrd(8 + n))
    for n in range(NSH, 24):
        E(wait(lgkm=[rawr(n)]), scale_frag(rawr(n), Qreg(*divmod(n, 4)), V(32, 8), V(40 + 4*(n & 1), 4)))
        if n == NSH:
            E(wait(lgkm=[F(k) for k in range(8)]), barrier(), salu("s_mov_b32", "m0", sM0), salu("s_add_u32", sKVoff, sKVoff, 8192), kv_dmas(3))
        if n + 8 < 24: E(qrd(n + 8))
    E(stamp_now(), comment("---- S(0) of head 1 over the epilogue of head 0"))
    rl = [V(96 + 2*b, 2) for b in range(NB)]; t0, t1, t2 = V(108), V(109), V(110)
    E(l_ops(0, rl, t1))
    sc = Sched([m for b in range(NB) for m in qk_first(b)])
    tiles = [(b, t) for b in reversed(range(NB)) for t in range(8)]
    st = o_addr_ops(t0, t1, t2, True); NT = 7
    for k, (b, t) in enumerate(tiles[:NT]): st += epi_tiles(0, b, [t], rl, V(48 + 4*(k % 4), 4), V(80 + 2*(k % 8), 2), pk=False)
    for s_ in range(4): sc.place(kread(2, 0, s_, F(s_), 1), 44 + s_)
    rest = sc.pour(st, 0); sc.emit(); E(rest)
    todo = tiles[NT:]; k = 0
    while todo:
        b = todo[0][0]; ts = [t for bb, t in todo[:4] if bb == b]; todo = todo[len(ts):]
        E(epi_tiles(0, b, ts, rl, V(48 + 16*(k % 2), 16), V(80 + 8*(k % 2), 8))); k += 1
    E(stamp_now(), comment("---- row max stand-in, first softmax part, clear accumulators"))
    mx, sub = rowmax_ops(range(NB))
    z = zero_mfmas()
    sc = Sched(z[:13]); rest = sc.pour(mx, 0); sc.emit(); E(rest, z[13:], sub)
    E(delay_cvts([x for _, x in sm_split(0)[0]]))
    E(salu("s_mov_b32", sSide, 0), salu("s_mov_b32", sCnt, O_.nC - 1), wait(lgkm=[F(s_) for s_ in range(4)]))
    E(stamp_now())

def final():
    s = seg("final"); path.append((s, {"J": 31}))
    E(stamp_now(), comment("---- head 1 last tile + epilogue"))
    nB = 15 - 2*O_.nC
    def fill(sc, gv):
        if nB < 6: side_O(sc, gv + 1, 0)
        return []
    E(wait(lgkm=0))
    last_head(fill, [F(t) for t in range(8)])
    rl = [V(96 + 2*b, 2) for b in range(NB)]; t0, t1, t2 = V(108), V(109), V(110)
    E(stamp_now(), o_addr_ops(t0, t1, t2, False), l_ops(1, rl, t1))
    def st(b):
        dst = [F((4*b + i) % 8) for i in range(4)]
        return [salu("s_mov_b32", sSide, 98304 + b*4096), wait(lgkm=dst)] + [vstore(dst[i], vlin, sO, sSide, i*1024, O_.fin_flags) for i in range(4)]
    for b in range(NB):
        for th in range(2):
            E(epi_tiles(1, b, range(4*th, 4*th + 4), rl, V(48 + 16*th, 16), V(80 + 8*th, 8)))
            if th == 0 and b > 0: E(st(b - 1))
        E(o_reads(1, lambda i: aO(1, 4*b + i), [F((4*b + i) % 8) for i in range(4)], b*4096))
    E(st(NB - 1), stamp_now())
    if O_.stamps:
        E(wait(vm=0), raw("s_memrealtime s[42:43]", "smem", (), rs(S(42, 2))), wait(lgkm=0), salu("s_mov_b32", S(47), S(42)))
        E(salu("s_lshl_b32", sT0, S(2), 2), salu("s_add_u32", sT0, sT0, sW), salu("s_lshl_b32", sT0, sT0, 8))
        E(valu("v_mov_b32", V(1), sT0))
        for k in range(nstamp[0] + 2):
            E(valu("v_mov_b32", V(2), S(46 + k)),
              Inst(f"global_store_dword v1, v2, s[44:45] offset:{4*k}", "vst", rs(V(1), V(2), S(44, 2)), (), data=set()), nop(1))
    E(label("L_end"))

def build():
    s = seg("start"); path.append((s, {"J": 0})); startup()
    loop("A", "Q", 0, 15)
    transition()
    loop("C", None, 16, 2*O_.nC)
    nB = 15 - 2*O_.nC
    assert nB in (5,), "side-O schedule expects 5 loop iterations + the last tile"
    s = seg("CB"); path.append((s, {"J": 0})); E(stamp_now(), salu("s_mov_b32", sCnt, nB // 2), pad_vm(12))
    loop("B", "O", 16 + 2*O_.nC, nB)
    final()
    def trace(): return [(i, mkctx(c)) for sidx, c in path for i in segs[sidx][1]]
    for rnd in range(4):
        fix = {}
        resolve_and_check(trace(), fix=fix)
        if not fix: break
        for sg in segs:
            new = []
            for i in sg[1]:
                if id(i) in fix: new.append(nop(fix[id(i)] - 1))
                new.append(i)
            sg[1][:] = new
    resolve_and_check(trace(), verbose=True)
    for name, ins in segs: print(f"  seg {name:8s} insts {len(ins):5d} est cycles {cost_estimate(ins):6d} nops {sum(1 for i in ins if i.kind == 'nop')}")

HEAD = """; MHA forward, B=16 H=32 Sq=384 Sk=512 D=128, bf16.  Generated by gen/gen2.py
; @launch grid=(256,1,1) block=(256,1,1) lds=163840
.amdgcn_target "amdgcn-amd-amdhsa--gfx950"
.text
.globl standalone__mha_softmax__near_ridge_kernel
.p2align 8
.type standalone__mha_softmax__near_ridge_kernel,@function
standalone__mha_softmax__near_ridge_kernel:
"""
TAIL = """    s_endpgm
.section .rodata,"a"
.p2align 6
.amdhsa_kernel standalone__mha_softmax__near_ridge_kernel
  .amdhsa_next_free_vgpr 512
  .amdhsa_next_free_sgpr 102
  .amdhsa_accum_offset 256
  .amdhsa_group_segment_fixed_size 0
  .amdhsa_kernarg_size 48
  .amdhsa_user_sgpr_count 2
  .amdhsa_user_sgpr_kernarg_segment_ptr 1
  .amdhsa_system_sgpr_workgroup_id_x 1
.end_amdhsa_kernel
"""
if __name__ == "__main__":
    out = sys.argv[1]
    for a in sys.argv[2:]:
        k, v = a.split("=")
        c = getattr(O_, k)
        setattr(O_, k, (v not in ("0", "False")) if isinstance(c, bool) else type(c)(v))
    build()
    body = "\n".join((i.text if i.kind == "label" else "    " + i.text) for _, ins in segs for i in ins)
    open(out, "w").write(HEAD + body + "\n" + TAIL)
```

```python
import sys, math, struct
from ir import *

class Opt:
    stamps = 0
    st_flags = "sc1"
    fin_flags = "sc1"
    ld_flags = "nt"
    prefetch_code = True
    probe = 0
    stag = ""
    stagbit = 3
    n0 = 14
    nper = 4
    nC = 5
O_ = Opt()

NB = 6
def f32bits(x): return struct.unpack("<I", struct.pack("<f", x))[0]
CSCALE = f32bits(math.log2(math.e) / math.sqrt(128.0))
THRESH = f32bits(2.0 ** 40)

def Sreg(b, a): return V(8*b + 4*a, 4)
def Preg(par, b): return V(48 + 24*par + 4*b, 4)
def negM(b): return V(96 + 4*b, 4)
kaddr = [V(120 + s) for s in range(4)]
vaddr = [V(124 + t) for t in range(8)]
vkv = V(132); vsd0 = V(133); vsd1 = V(134); vlin = V(135)
qa = [V(136 + s) for s in range(4)]
zero4 = V(140, 4)
def Oreg(b, t):
    n = 8*b + t
    return V(144 + 4*n, 4) if n < 28 else A(176 + 4*(n - 28), 4)
def Qreg(b, s): return A(16*b + 4*s, 4)
def F(i): return A(96 + 4*i, 4)
def lacc(b): return A(128 + 4*b, 4)
ones = A(152, 4)
X = [A(156 + 4*k, 4) for k in range(5)]
sQ, sK, sV, sO = S(12, 4), S(16, 4), S(20, 4), S(24, 4)
sW = S(28); sKVoff = S(29); sM0 = S(30); sStg = S(31); sSide = S(32); sT0 = S(33); sT1 = S(34); sT2 = S(35)
sFlag = S(36); sThr = S(37); sC = S(38, 2); sCmp = S(40, 2); sStamp = S(42, 2); sCnt = S(3); sQd = S(4)
STAMP0 = 48

def aK(J): return (("ring", (J - 2) % 4, "K"), ("K", J), True)
def aV(J): return (("ring", J % 4, "V"), ("V", J), True)
def rK(d): return lambda c: aK(c["J"] + d)
def rV(d): return lambda c: aV(c["J"] + d)
def aQ(h, p): return (("stg", p), ("Q", h), False)
def aO(h, p): return (("stg", p), ("O", h), False)
def blk(f, h, b): return [f(h, 4*b + i) for i in range(4)]
def mkctx(c):
    def f(r):
        if callable(r): return r(c)
        return r
    return f

segs = []
path = []
cur = None
def seg(name):
    global cur
    cur = []; segs.append([name, cur]); return len(segs) - 1
def E(*xs):
    for x in xs:
        if x is None: continue
        if isinstance(x, (list, tuple)): E(*x)
        else: cur.append(x)
nstamp = [0]
def stamp_now():
    if not O_.stamps: return []
    k = nstamp[0]; nstamp[0] += 1
    op = "s_memtime" if O_.stamps == 1 else "s_memrealtime"
    return [raw(f"{op} {sStamp}", "smem", (), rs(sStamp)), wait(lgkm=0), salu("s_mov_b32", S(STAMP0 + k), sStamp[0])]

MEM = ("dsr", "dsw", "dma", "vld", "vst")
class Sched:
    def __init__(s, mf):
        s.mf = mf; s.n = len(mf); s.g = [[] for _ in mf]
        s.cap = [24 if m.m["big"] else 8 for m in mf]
    def cost(s, x): return 8 if x.kind == "trans" else 4
    def fits(s, g, x):
        if s.cap[g] < s.cost(x): return False
        if x.kind in MEM and any(y.kind in MEM for y in s.g[g]): return False
        return True
    def put(s, g, *xs):
        for x in xs:
            if isinstance(x, list): s.put(g, *x); continue
            s.g[g].append(x); s.cap[g] -= s.cost(x)
        return g
    def place(s, x, lo, hi=None):
        hi = s.n - 1 if hi is None else hi
        for g in range(lo, hi + 1):
            if s.fits(g, x): return s.put(g, x)
        raise Exception(f"cannot place {x} in [{lo},{hi}]")
    def chain(s, xs, lo, hi=None, step=1):
        g = lo - step
        for x in xs: g = s.place(x, g + step, hi)
        return g
    def pour(s, xs, lo, hi=None):
        hi = s.n - 1 if hi is None else hi
        xs = list(xs); g = lo; pend = []
        while g <= hi and (xs or pend):
            if pend and pend[0][1] < g and s.fits(g, pend[0][0]): s.put(g, pend.pop(0)[0]); continue
            if xs and xs[0].kind in MEM: pend.append((xs.pop(0), g)); continue
            if xs and xs[0].kind == "wait" and pend: g += 1; continue
            if xs and len(pend) < 2 and s.fits(g, xs[0]):
                x = xs.pop(0); s.put(g, x)
                if x.kind == "wait": g += 1
                continue
            g += 1
        return [p[0] for p in pend] + xs
    def emit(s):
        for m, g in zip(s.mf, s.g):
            E(m)
            key = lambda x: 3 if x.m.get("last") else (2 if x.kind in ("valu", "trans") else (0 if x.kind in MEM else 1))
            E(sorted(g, key=key))

def kread(d, a, s, dst, hi): return ds_read("ds_read_b128", dst, kaddr[s], hi*16384 + a*8192, rK(d))
def vread(d, t, a, dst, hi): return ds_read("ds_read_b64_tr_b16", dst[2*a:2*a+2], vaddr[t], hi*16384 + a*8192, rV(d))
def kv_dmas(d, withV=True):
    o = []
    for im in (0, 2048):
        if withV: o.append(dma(vkv, sV, sKVoff, im + 1024, rV(d), O_.ld_flags))
        o.append(dma(vkv, sK, sKVoff, im, rK(d + 2), O_.ld_flags))
    return o
def start_group(J, withV=True):
    op, im = ("s_add_u32", (J % 4)*16384 - 32768) if J % 4 >= 2 else ("s_sub_u32", 32768 - (J % 4)*16384)
    return [salu(op, "m0", sM0, im), salu("s_mov_b32", sKVoff, (J + 2)*8192)] + kv_dmas(J, withV)
def q_dma_block(h, b):
    o = [salu("s_add_u32", "m0", sStg, b*4096), salu("s_mov_b32", sSide, h*98304 + b*4096)]
    for i in range(4): o.append(dma(vsd1 if i & 1 else vsd0, sQ, sSide, i*1024, aQ(h, 4*b + i), O_.ld_flags))
    return o
def pad_vm(n):
    return [Inst(f"buffer_load_dword {X[4][0]}, {vlin}, {sQ}, {sThr} offen", "vld", rs(vlin, sQ, sThr), ()) for _ in range(n)]
def zero_mfmas():
    o = [mfma(V(144 + 16*k, 16), zero4, zero4, 0, big=True) for k in range(7)]
    o += [mfma(A(176 + 16*k, 16), zero4, zero4, 0, big=True) for k in range(5)]
    o += [mfma(A(128, 16), zero4, zero4, 0, big=True), mfma(A(144, 4), zero4, zero4, 0), mfma(A(148, 4), zero4, zero4, 0)]
    return o

def sm_ops(par, b, a):
    s = Sreg(b, a); p = Preg(par, b)
    return [valu("v_exp_f32", s[0], s[0]), valu("v_exp_f32", s[1], s[1]), valu("v_cvt_pk_bf16_f32", p[2*a], s[0], s[1]),
            valu("v_exp_f32", s[2], s[2]), valu("v_exp_f32", s[3], s[3]), valu("v_cvt_pk_bf16_f32", p[2*a+1], s[2], s[3])]
NE_A = 38
def sm_split(par):
    st = []
    for a in range(2):
        for b in range(NB): st += [(b, x) for x in sm_ops(par, b, a)]
    k = NE_A // 2 * 3
    return st[:k], st[k:]
def place_sm(sc, ops, g0):
    g = g0 - 2
    for _, x in ops:
        if x.kind == "trans": g += 2; sc.put(g, x)
        else: sc.put(g + 1, x)
def delay_cvts(xs):
    o = []; pend = []
    for x in xs:
        if x.kind == "trans":
            o.append(x)
            if pend: o.append(pend.pop(0))
        else: pend.append(x)
    return o + pend
def rowmax_ops(bs, pk=True):
    o = []
    m = {b: negM(b)[0] for b in bs}; t = {b: negM(b)[1] for b in bs}
    sv = lambda b, r: V(8*b + r)
    for b in bs: o.append(valu("v_max3_f32", m[b], sv(b, 0), sv(b, 1), sv(b, 2)))
    for b in bs: o.append(valu("v_max3_f32", t[b], sv(b, 3), sv(b, 4), sv(b, 5)))
    for b in bs: o.append(valu("v_max3_f32", m[b], m[b], sv(b, 6), sv(b, 7)))
    for b in bs: o.append(valu("v_max_f32", m[b], m[b], t[b]))
    for op in ("v_permlane32_swap_b32", "v_permlane16_swap_b32"):
        for b in bs: o.append(valu("v_mov_b32", t[b], m[b]))
        for b in bs: o.append(swap(op, m[b], t[b]))
        for b in bs: o.append(valu("v_max_f32", m[b], m[b], t[b]))
    for b in bs:
        for r in (1, 2, 3, 0): o.append(valu("v_sub_f32", negM(b)[r], 0, m[b]))
    sub = []
    for b in bs:
        for r in range(4): sub.append(valu("v_pk_add_f32", V(8*b + 2*r, 2), V(8*b + 2*r, 2), negM(b)[0:2]))
    return o, sub
def scale_frag(x, dst, w, y, pk=True):
    o = []
    if pk:
        for r in range(4): o += [valu("v_lshlrev_b32", w[2*r], 16, x[r]), valu("v_and_b32", w[2*r+1], "0xffff0000", x[r])]
        for r in range(4): o.append(valu("v_pk_mul_f32", w[2*r:2*r+2], w[2*r:2*r+2], sC))
    else:
        for r in range(4):
            o += [valu("v_lshlrev_b32", w[2*r], 16, x[r]), valu("v_and_b32", w[2*r+1], "0xffff0000", x[r]),
                  valu("v_mul_f32", w[2*r], sC[0], w[2*r]), valu("v_mul_f32", w[2*r+1], sC[0], w[2*r+1])]
    for r in range(4): o.append(valu("v_cvt_pk_bf16_f32", y[r], w[2*r], w[2*r+1]))
    for r in range(4): o.append(valu("v_accvgpr_write_b32", dst[r], y[r]))
    return o
def qk_first(b): return [mfma(Sreg(b, a), F(4*a + s), Qreg(b, s), 0 if s == 0 else Sreg(b, a)) for a in range(2) for s in range(4)]

def startup():
    v0, vl, vi, vu, t0, t1, t2 = V(0), V(1), V(2), V(3), V(4), V(5), V(6)
    E(comment("---- setup"),
      raw("s_load_dwordx4 s[4:7], s[0:1], 0", "smem", (), rs(S(4, 4))),
      raw("s_load_dwordx4 s[8:11], s[0:1], 16", "smem", (), rs(S(8, 4))),
      scmp("s_cmp_ge_u32", S(2), 256), raw("s_cbranch_scc1 L_end", "salu", {"scc"}))
    if O_.stamps:
        E(raw("s_load_dwordx2 s[44:45], s[0:1], 40", "smem", (), rs(S(44, 2))),
          raw("s_memrealtime s[46:47]", "smem", (), rs(S(46, 2))))
    if O_.prefetch_code:
        E(raw("s_getpc_b64 s[40:41]", "salu", (), rs(S(40, 2))), label("L_pc"),
          valu("v_lshlrev_b32", t0, 7, v0), valu("v_min_u32", t0, "L_end-L_pc", t0),
          Inst(f"global_load_dword v7, {t0}, s[40:41]", "vld", rs(t0, S(40, 2)), rs(V(7))))
    E(valu("v_lshrrev_b32", t1, 6, v0), valu("v_and_b32", vl, 63, v0),
      valu("v_readfirstlane_b32", sW, t1),
      valu("v_and_b32", vi, 15, vl), valu("v_lshrrev_b32", vu, 4, vl),
      valu("v_lshlrev_b32", t0, 1, vu), valu("v_xor_b32", t0, t0, vi), valu("v_lshlrev_b32", t0, 4, t0),
      valu("v_lshl_add_u32", vsd0, vu, 8, t0), valu("v_xor_b32", vsd1, 128, vsd0),
      salu("s_and_b32", sT0, sW, 1), salu("s_lshr_b32", sT1, sW, 1),
      salu("s_lshl_b32", sT2, sT0, 7), salu("s_lshl_b32", sT0, sT0, 10), salu("s_lshl_b32", sT1, sT1, 12),
      salu("s_add_u32", sT0, sT0, sT1),
      valu("v_xor_b32", vkv, sT2, vsd0), valu("v_add_u32", vkv, sT0, vkv),
      salu("s_lshl_b32", sM0, sW, 12), salu("s_add_u32", sM0, sM0, 32768), salu("s_mul_i32", sStg, sW, 24576),
      salu("s_mul_i32", sT0, S(2), 196608), salu("s_add_u32", sT0, sT0, sStg), salu("s_add_u32", sStg, sStg, 65536),
      salu("s_lshl_b32", sT1, S(2), 18),
      salu("s_mov_b32", sK[2], 262144), salu("s_mov_b32", sK[3], "0x20000"),
      salu("s_mov_b32", sQ[2], 98304 + 24576), salu("s_mov_b32", sQ[3], "0x20000"),
      wait(lgkm=0),
      salu("s_add_u32", sK[0], S(6), sT1), salu("s_addc_u32", sK[1], S(7), 0), salu("s_and_b32", sK[1], sK[1], "0xffff"),
      salu("s_add_u32", sQ[0], S(4), sT0), salu("s_addc_u32", sQ[1], S(5), 0), salu("s_and_b32", sQ[1], sQ[1], "0xffff"))
    stream = []
    for grp in [start_group(-2, False)] + [q_dma_block(0, b) for b in range(NB)] + [start_group(-1, False), start_group(0), start_group(1), pad_vm(3)]:
        pre = []
        for x in grp:
            if x.kind == "salu": pre.append(x)
            else: stream.append(pre + [x]); pre = []
    def more(n):
        o = stream[:n]; del stream[:n]; return o
    n_iss = 0
    for k, ch in enumerate(O_.stag):
        E(more(int(ch)), raw(f"s_bitcmp1_b32 s2, {O_.stagbit}", "salu", (), {"scc"}), raw(f"s_cbranch_scc0 L_st{k}", "salu", {"scc"}),
          raw("s_waitcnt vmcnt(0)"), label(f"L_st{k}")); n_iss += int(ch)
    E(more(10 - n_iss))
    E(salu("s_add_u32", sV[0], S(8), sT1), salu("s_addc_u32", sV[1], S(9), 0),
      salu("s_sub_u32", sV[0], sV[0], 1024 + 16384), salu("s_subb_u32", sV[1], sV[1], 0), salu("s_and_b32", sV[1], sV[1], "0xffff"),
      salu("s_mov_b32", sV[2], 262144 + 1024 + 16384), salu("s_mov_b32", sV[3], "0x20000"),
      salu("s_add_u32", sO[0], S(10), sT0), salu("s_addc_u32", sO[1], S(11), 0), salu("s_and_b32", sO[1], sO[1], "0xffff"),
      salu("s_mov_b32", sO[2], 98304 + 24576), salu("s_mov_b32", sO[3], "0x20000"),
      salu("s_mov_b32", sC[0], hex(CSCALE)), salu("s_mov_b32", sC[1], hex(CSCALE)),
      salu("s_mov_b32", sThr, hex(THRESH)), salu("s_mov_b32", sFlag, 0), salu("s_sub_u32", sQd, sStg, 98304))
    E(valu("v_and_b32", t0, 7, vi), valu("v_lshlrev_b32", t0, 1, t0), valu("v_xor_b32", t0, t0, vu), valu("v_lshlrev_b32", t0, 4, t0),
      valu("v_lshl_add_u32", t2, vi, 8, t0), valu("v_add_u32", qa[0], sStg, t2),
      valu("v_and_b32", t1, 3, vi), valu("v_lshl_add_u32", t0, t1, 8, t0),
      valu("v_lshrrev_b32", t1, 3, vi), valu("v_lshl_add_u32", t0, t1, 11, t0),
      valu("v_bfe_u32", t1, vi, 2, 1), valu("v_lshl_add_u32", t0, t1, 12, t0), valu("v_add_u32", kaddr[0], 32768, t0))
    for s in range(1, 4): E(valu("v_xor_b32", kaddr[s], s << 6, kaddr[0]), valu("v_xor_b32", qa[s], s << 6, qa[0]))
    E(valu("v_lshrrev_b32", t1, 2, vi), valu("v_and_b32", t2, 1, vu), valu("v_lshl_add_u32", t0, t2, 2, t1),
      valu("v_lshlrev_b32", t0, 5, t0), valu("v_lshl_add_u32", t0, t1, 8, t0), valu("v_lshl_add_u32", t0, t2, 12, t0),
      valu("v_lshrrev_b32", t2, 1, vu), valu("v_lshl_add_u32", t0, t2, 11, t0),
      valu("v_and_b32", t1, 3, vi), valu("v_lshl_add_u32", t0, t1, 3, t0), valu("v_add_u32", vaddr[0], 1024, t0))
    for t in range(1, 8): E(valu("v_xor_b32", vaddr[t], t << 5, vaddr[0]))
    E(valu("v_lshlrev_b32", vlin, 4, vl), valu("v_mov_b32", t0, "0x3f803f80"))
    for r in range(4): E(valu("v_accvgpr_write_b32", ones[r], t0), valu("v_mov_b32", zero4[r], 0))
    E(zero_mfmas(), more(O_.n0 - 10))
    E(stamp_now())
    E(comment("---- first K tile"), wait(vm=[aK(0)]), barrier())
    for a in range(2):
        for s in range(4): E(kread(0, a, s, F(4*a + s), 0))
    first, _ = sm_split(0)
    rawr = lambda s: V(72 + 4*s, 4)
    for b in range(NB):
        E(comment(f"---- start-up block {b}"), stamp_now() if O_.probe else None, wait(vm=blk(aQ, 0, b)), stamp_now() if O_.probe else None)
        for s in range(4): E(ds_read("ds_read_b128", rawr(s), qa[s], b*4096, blk(aQ, 0, b)))
        for s in range(4):
            E(wait(lgkm=[rawr(s)] + ([F(k) for k in range(8)] if b == 0 else [])))
            E(more(1), scale_frag(rawr(s), Qreg(b, s), V(88, 8), Sreg(b, s & 1)))
        E(qk_first(b), more(O_.nper - 4))
        if b == NB - 1:
            E(stamp_now() if O_.probe else None, wait(vm=[aK(1)]), barrier(), stamp_now() if O_.probe else None)
            for s in range(4): E(kread(1, 0, s, F(s), 1))
        mx, sub = rowmax_ops([b])
        E(mx, sub, delay_cvts([x for bb, x in first if bb == b]))
    E(more(99), salu("s_mov_b32", "m0", sM0), salu("s_mov_b32", sKVoff, 4*8192), kv_dmas(2))
    E(salu("s_mov_b32", sSide, 98304), salu("s_mov_b32", sCnt, 7), wait(lgkm=[F(s) for s in range(4)]))
    E(stamp_now())

def o_reads(h, pf, dst, off):
    o = []
    for i in range(4):
        ad = vsd1 if i & 1 else vsd0
        if i >> 1: o += [ds_read("ds_read_b64", dst[i][0:2], ad, off + i*1024 + 8, pf(i)), ds_read("ds_read_b64", dst[i][2:4], ad, off + i*1024, pf(i))]
        else: o.append(ds_read("ds_read_b128", dst[i], ad, off + i*1024, pf(i)))
    return o

def pv_mfmas(par, frags):
    mf = []
    for t in range(8):
        for b in range(NB): mf.append(mfma(Oreg(b, t), frags[t], Preg(par, b), Oreg(b, t)))
        if t < NB: mf.append(mfma(lacc(t), ones, Preg(par, t), lacc(t)))
    return mf

def side_O(sc, rlo, slo):
    j0 = 2*O_.nC
    pf = lambda i: (lambda c: aO(0, 4*(c["J"] - 16 - j0) + i))
    g = sc.chain(o_reads(0, pf, X, 0), rlo)
    g = sc.place(wait(lgkm=X[:4]), max(g + 6, slo))
    g2 = sc.chain([vstore(X[i], vlin, sO, sSide, i*1024, O_.st_flags) for i in range(4)], g + 1, step=3)
    sc.chain([valu("v_add_u32", vsd0, 4096, vsd0), valu("v_add_u32", vsd1, 4096, vsd1)], g)
    sc.place(salu("s_add_u32", sSide, sSide, 4096), g2 + 1)

def iteration(par, side, ctl):
    mf = [mfma(Sreg(b, a), F(4*a + s), Qreg(b, s), negM(b) if s == 0 else Sreg(b, a)) for a in range(2) for b in range(NB) for s in range(4)]
    mf += pv_mfmas(par, [F(t) for t in range(8)])
    sc = Sched(mf)
    place_sm(sc, sm_split(par)[1], 0)
    place_sm(sc, sm_split(1 - par)[0], 24)
    sc.put(101, ctl)
    sc.chain([kread(1, 1, s, F(4 + s), 1 - par) for s in range(4)], 1)
    sc.put(22, wait(vm=[rV(0), rK(2)], lgkm=0)); sc.put(23, barrier()); sc.cap[23] = 0
    if par == 0:
        sc.put(21, salu("s_add_u32", "m0", sM0, 16384)); sc.put(22, salu("s_xor_b32", sM0, sM0, 32768))
        sc.chain([valu("v_xor_b32", r, 32768, r) for r in kaddr], 9, 21, step=0)
    else: sc.put(21, salu("s_mov_b32", "m0", sM0))
    sc.place(salu("s_add_u32", sKVoff, sKVoff, 8192), 9, 21)
    ops = kv_dmas(3); vr = [vread(0, t, a, F(t), par) for t in range(4) for a in range(2)]
    seq = []
    for k in range(4): seq += [ops[k]] + vr[2*k:2*k + 2]
    sc.chain(seq, 25, 47)
    gv = sc.chain([vread(0, t, a, F(t), par) for t in range(4, 8) for a in range(2)], 49)
    sc.chain([kread(2, 0, s, F(s), par) for s in range(4)], 77)
    sc.place(wait(lgkm=[F(0), F(1)]), 45, 47)
    sc.place(wait(lgkm=[F(2), F(3)]), 57, 61)
    sc.place(wait(lgkm=[F(4), F(5), F(6), F(7)]), 73, 75)
    sc.place(wait(lgkm=[F(s) for s in range(4)]), 97, 101)
    if side == "Q" and par == 0:
        pf = lambda k: (lambda c: aQ(1, 3*(c["J"]//2) + k))
        g = sc.place(salu("s_add_u32", "m0", sSide, sQd), 49)
        g = sc.chain([dma(vsd1 if k & 1 else vsd0, sQ, sSide, k*1024, pf(k), O_.ld_flags) for k in range(3)], gv + 1, step=3)
        sc.chain([salu("s_add_u32", sSide, sSide, 3072), valu("v_xor_b32", vsd0, 128, vsd0), valu("v_xor_b32", vsd1, 128, vsd1)], g + 1, step=0)
    if side == "O": side_O(sc, 9, 65)
    if par == 1: sc.chain([valu("v_xor_b32", r, 32768, r) for r in vaddr], gv + 1, 100, step=0)
    sc.emit()

def br(text): return raw(text, "salu", {"scc"}, (), last=True)
def dec():
    x = salu("s_sub_u32", sCnt, sCnt, 1); x.m["last"] = True; return x
def loop(name, side, J0, n_iter):
    e = seg(name + "_even"); E(raw(".p2align 3", "label"), label(f"L_{name}"))
    if n_iter & 1:
        iteration(0, side, [dec(), br(f"s_cbranch_scc1 L_{name}_exit")])
        o = seg(name + "_odd"); iteration(1, side, [br(f"s_branch L_{name}")]); E(label(f"L_{name}_exit"))
    else:
        iteration(0, side, [])
        o = seg(name + "_odd"); iteration(1, side, [dec(), br(f"s_cbranch_scc0 L_{name}")])
    for k in range(n_iter): path.append((o if k & 1 else e, {"J": J0 + k}))

def o_addr_ops(t0, t1, t2, first):
    o = []
    if first:
        o += [valu("v_lshrrev_b32", t0, 9, vlin), valu("v_bfe_u32", t1, vlin, 4, 3), valu("v_xor_b32", t0, t0, t1),
              valu("v_lshlrev_b32", t0, 4, t0), valu("v_lshrrev_b32", t1, 8, vlin), valu("v_lshrrev_b32", t2, 7, vlin),
              valu("v_xor_b32", t2, t1, t2), valu("v_and_b32", t2, 1, t2), valu("v_lshl_add_u32", t0, t2, 3, t0),
              valu("v_bfe_u32", t2, vlin, 4, 4), valu("v_lshl_add_u32", t0, t2, 8, t0), valu("v_add_u32", qa[0], sStg, t0)]
        o += [valu("v_xor_b32", qa[k], k << 5, qa[0]) for k in range(1, 4)]
    o += [valu("v_lshrrev_b32", t1, 4, vlin), valu("v_and_b32", t1, "0x30", t1), valu("v_xor_b32", t1, t1, vlin),
          valu("v_add_u32", vsd0, sStg, t1), valu("v_xor_b32", vsd1, 64, vsd0)]
    return o
def l_ops(h, rl, t1):
    o = [valu("v_accvgpr_read_b32", rl[b][1], lacc(b)[0]) for b in range(NB)]
    o += [valu("v_rcp_f32", rl[b][0], rl[b][1]) for b in range(NB)]
    o.append(valu("v_add_f32", t1, rl[0][1], rl[1][1]))
    o += [valu("v_add_f32", t1, t1, rl[b][1]) for b in range(2, NB)]
    o += [Inst(f"v_cmp_nlt_f32 {sCmp}, {t1}, {sThr}", "valu", rs(t1, sThr), rs(sCmp)),
          nop(0), scmp("s_cmp_lg_u64", sCmp, 0), salu("s_cselect_b32", sT0, 1 << h, 0), salu("s_or_b32", sFlag, sFlag, sT0)]
    return o
def epi_tiles(h, b, ts, rl, w, y, pk=True):
    o = []
    for k, t in enumerate(ts):
        r = Oreg(b, t)
        if r.k == "a": o += [valu("v_accvgpr_read_b32", w[4*k + i], r[i]) for i in range(4)]
    for k, t in enumerate(ts):
        r = Oreg(b, t); src = r if r.k == "v" else w[4*k:4*k + 4]
        if pk: o += [valu("v_pk_mul_f32", w[4*k + 2*i:4*k + 2*i + 2], src[2*i:2*i + 2], rl[b], mods="op_sel_hi:[1,0]") for i in range(2)]
        else: o += [valu("v_mul_f32", w[4*k + i], src[i], rl[b][0]) for i in range(4)]
    o += [valu("v_cvt_pk_bf16_f32", y[k], w[2*k], w[2*k + 1]) for k in range(2*len(ts))]
    o += [ds_write("ds_write_b64", qa[t & 3], y[2*k:2*k + 2], b*4096 + (t >> 2)*128, blk(aO, h, b)) for k, t in enumerate(ts)]
    return o

def last_head(sc_fill, vf):
    E(wait(vm=[rV(0), rK(2)]), barrier())
    vr = [vread(0, t, a, vf[t], 1) for t in range(8) for a in range(2)]
    E(vr[:4], delay_cvts([x for _, x in sm_split(1)[1]]), wait(lgkm=[vf[0]]))
    sc = Sched(pv_mfmas(1, vf))
    gv = sc.chain(vr[4:], 0)
    sc.place(wait(lgkm=[vf[1]]), 5, 6); sc.place(wait(lgkm=[vf[2], vf[3]]), 12, 13); sc.place(wait(lgkm=vf[4:]), 24, 27)
    rest = sc_fill(sc, gv)
    sc.emit()
    return rest

def transition():
    s = seg("trans"); path.append((s, {"J": 15}))
    E(stamp_now(), comment("---- head 0 last tile + head switch"))
    vf = X[:4] + [F(4), F(5), F(6), X[4]]
    rawr = lambda n: V(4*(n % 8), 4)
    def qrd(n):
        b, s_ = divmod(n, 4)
        return ([wait(vm=blk(aQ, 1, b))] if s_ == 0 else []) + [ds_read("ds_read_b128", rawr(n), qa[s_], b*4096, blk(aQ, 1, b))]
    NSH = 3
    def fill(sc, gv):
        g = gv + 1
        for n in range(8):
            for x in qrd(n): g = sc.place(x, g) + 1
        sc.chain([valu("v_xor_b32", r, 32768, r) for r in vaddr], gv + 1, step=0)
        sc.place(kread(1, 1, 3, F(7), 0), g)
        for k in range(3): sc.place(kread(1, 1, k, F(4 + k), 0), 35 + 7*k - (k == 2))
        st = []
        for n in range(NSH): st += [wait(lgkm=[rawr(n)])] + scale_frag(rawr(n), Qreg(*divmod(n, 4)), V(32, 8), V(40 + 4*(n & 1), 4), pk=False)
        return sc.pour(st, gv + 7)
    E(last_head(fill, vf))
    for n in range(NSH): E(qrd(8 + n))
    for n in range(NSH, 24):
        E(wait(lgkm=[rawr(n)]), scale_frag(rawr(n), Qreg(*divmod(n, 4)), V(32, 8), V(40 + 4*(n & 1), 4)))
        if n == NSH:
            E(wait(lgkm=[F(k) for k in range(8)]), barrier(), salu("s_mov_b32", "m0", sM0), salu("s_add_u32", sKVoff, sKVoff, 8192), kv_dmas(3))
        if n + 8 < 24: E(qrd(n + 8))
    E(stamp_now(), comment("---- S(0) of head 1 over the epilogue of head 0"))
    rl = [V(96 + 2*b, 2) for b in range(NB)]; t0, t1, t2 = V(108), V(109), V(110)
    E(l_ops(0, rl, t1))
    sc = Sched([m for b in range(NB) for m in qk_first(b)])
    tiles = [(b, t) for b in reversed(range(NB)) for t in range(8)]
    st = o_addr_ops(t0, t1, t2, True); NT = 7
    for k, (b, t) in enumerate(tiles[:NT]): st += epi_tiles(0, b, [t], rl, V(48 + 4*(k % 4), 4), V(80 + 2*(k % 8), 2), pk=False)
    for s_ in range(4): sc.place(kread(2, 0, s_, F(s_), 1), 44 + s_)
    rest = sc.pour(st, 0); sc.emit(); E(rest)
    todo = tiles[NT:]; k = 0
    while todo:
        b = todo[0][0]; ts = [t for bb, t in todo[:4] if bb == b]; todo = todo[len(ts):]
        E(epi_tiles(0, b, ts, rl, V(48 + 16*(k % 2), 16), V(80 + 8*(k % 2), 8))); k += 1
    E(stamp_now(), comment("---- row max stand-in, first softmax part, clear accumulators"))
    mx, sub = rowmax_ops(range(NB))
    z = zero_mfmas()
    sc = Sched(z[:13]); rest = sc.pour(mx, 0); sc.emit(); E(rest, z[13:], sub)
    E(delay_cvts([x for _, x in sm_split(0)[0]]))
    E(salu("s_mov_b32", sSide, 0), salu("s_mov_b32", sCnt, O_.nC - 1), wait(lgkm=[F(s_) for s_ in range(4)]))
    E(stamp_now())

def final():
    s = seg("final"); path.append((s, {"J": 31}))
    E(stamp_now(), comment("---- head 1 last tile + epilogue"))
    nB = 15 - 2*O_.nC
    def fill(sc, gv):
        if nB < 6: side_O(sc, gv + 1, 0)
        return []
    E(wait(lgkm=0))
    last_head(fill, [F(t) for t in range(8)])
    rl = [V(96 + 2*b, 2) for b in range(NB)]; t0, t1, t2 = V(108), V(109), V(110)
    E(stamp_now(), o_addr_ops(t0, t1, t2, False), l_ops(1, rl, t1))
    def st(b):
        dst = [F((4*b + i) % 8) for i in range(4)]
        return [salu("s_mov_b32", sSide, 98304 + b*4096), wait(lgkm=dst)] + [vstore(dst[i], vlin, sO, sSide, i*1024, O_.fin_flags) for i in range(4)]
    for b in range(NB):
        for th in range(2):
            E(epi_tiles(1, b, range(4*th, 4*th + 4), rl, V(48 + 16*th, 16), V(80 + 8*th, 8)))
            if th == 0 and b > 0: E(st(b - 1))
        E(o_reads(1, lambda i: aO(1, 4*b + i), [F((4*b + i) % 8) for i in range(4)], b*4096))
    E(st(NB - 1), stamp_now())
    if O_.stamps:
        E(wait(vm=0), raw("s_memrealtime s[42:43]", "smem", (), rs(S(42, 2))), wait(lgkm=0), salu("s_mov_b32", S(47), S(42)))
        E(salu("s_lshl_b32", sT0, S(2), 2), salu("s_add_u32", sT0, sT0, sW), salu("s_lshl_b32", sT0, sT0, 8))
        E(valu("v_mov_b32", V(1), sT0))
        for k in range(nstamp[0] + 2):
            E(valu("v_mov_b32", V(2), S(46 + k)),
              Inst(f"global_store_dword v1, v2, s[44:45] offset:{4*k}", "vst", rs(V(1), V(2), S(44, 2)), (), data=set()), nop(1))
    E(label("L_end"))

def build():
    s = seg("start"); path.append((s, {"J": 0})); startup()
    loop("A", "Q", 0, 15)
    transition()
    loop("C", None, 16, 2*O_.nC)
    nB = 15 - 2*O_.nC
    assert nB in (5,), "side-O schedule expects 5 loop iterations + the last tile"
    s = seg("CB"); path.append((s, {"J": 0})); E(stamp_now(), salu("s_mov_b32", sCnt, nB // 2), pad_vm(12))
    loop("B", "O", 16 + 2*O_.nC, nB)
    final()
    def trace(): return [(i, mkctx(c)) for sidx, c in path for i in segs[sidx][1]]
    for rnd in range(4):
        fix = {}
        resolve_and_check(trace(), fix=fix)
        if not fix: break
        for sg in segs:
            new = []
            for i in sg[1]:
                if id(i) in fix: new.append(nop(fix[id(i)] - 1))
                new.append(i)
            sg[1][:] = new
    resolve_and_check(trace(), verbose=True)
    if O_.stamps:
        tr = [i for i, _ in trace()]; cuts = [k for k, i in enumerate(tr) if i.kind == "smem" and "s[42:43]" in i.text]
        print("  est between stamps:", [cost_estimate(tr[a:b]) for a, b in zip(cuts, cuts[1:])])
    for name, ins in segs: print(f"  seg {name:8s} insts {len(ins):5d} est cycles {cost_estimate(ins):6d} nops {sum(1 for i in ins if i.kind == 'nop')}")

HEAD = """; MHA forward, B=16 H=32 Sq=384 Sk=512 D=128, bf16.  Generated by gen/gen2.py
; @launch grid=(256,1,1) block=(256,1,1) lds=163840
.amdgcn_target "amdgcn-amd-amdhsa--gfx950"
.text
.globl standalone__mha_softmax__near_ridge_kernel
.p2align 8
.type standalone__mha_softmax__near_ridge_kernel,@function
standalone__mha_softmax__near_ridge_kernel:
"""
TAIL = """    s_endpgm
.section .rodata,"a"
.p2align 6
.amdhsa_kernel standalone__mha_softmax__near_ridge_kernel
  .amdhsa_next_free_vgpr 512
  .amdhsa_next_free_sgpr 102
  .amdhsa_accum_offset 256
  .amdhsa_group_segment_fixed_size 0
  .amdhsa_kernarg_size 48
  .amdhsa_user_sgpr_count 2
  .amdhsa_user_sgpr_kernarg_segment_ptr 1
  .amdhsa_system_sgpr_workgroup_id_x 1
.end_amdhsa_kernel
"""
if __name__ == "__main__":
    out = sys.argv[1]
    for a in sys.argv[2:]:
        k, v = a.split("=")
        c = getattr(O_, k)
        setattr(O_, k, (v not in ("0", "False")) if isinstance(c, bool) else type(c)(v))
    build()
    body = "\n".join((i.text if i.kind == "label" else "    " + i.text) for _, ins in segs for i in ins)
    open(out, "w").write(HEAD + body + "\n" + TAIL)
```

```python
import sys, math, struct
from ir import *

class Opt:
    stamps = 0
    st_flags = "sc1"
    fin_flags = "sc1"
    ld_flags = "nt"
    prefetch_code = True
    probe = 0
    diag = ""
    stag = ""
    stagbit = 3
    n0 = 14
    nper = 4
    nC = 5
O_ = Opt()

NB = 6
def f32bits(x): return struct.unpack("<I", struct.pack("<f", x))[0]
CSCALE = f32bits(math.log2(math.e) / math.sqrt(128.0))
THRESH = f32bits(2.0 ** 40)

def Sreg(b, a): return V(8*b + 4*a, 4)
def Preg(par, b): return V(48 + 24*par + 4*b, 4)
def negM(b): return V(96 + 4*b, 4)
kaddr = [V(120 + s) for s in range(4)]
vaddr = [V(124 + t) for t in range(8)]
vkv = V(132); vsd0 = V(133); vsd1 = V(134); vlin = V(135)
qa = [V(136 + s) for s in range(4)]
zero4 = V(140, 4)
def Oreg(b, t):
    n = 8*b + t
    return V(144 + 4*n, 4) if n < 28 else A(176 + 4*(n - 28), 4)
def Qreg(b, s): return A(16*b + 4*s, 4)
def F(i): return A(96 + 4*i, 4)
def lacc(b): return A(128 + 4*b, 4)
ones = A(152, 4)
X = [A(156 + 4*k, 4) for k in range(5)]
sQ, sK, sV, sO = S(12, 4), S(16, 4), S(20, 4), S(24, 4)
sW = S(28); sKVoff = S(29); sM0 = S(30); sStg = S(31); sSide = S(32); sT0 = S(33); sT1 = S(34); sT2 = S(35)
sFlag = S(36); sThr = S(37); sC = S(38, 2); sCmp = S(40, 2); sStamp = S(42, 2); sCnt = S(3); sQd = S(4)
STAMP0 = 48

def aK(J): return (("ring", (J - 2) % 4, "K"), ("K", J), True)
def aV(J): return (("ring", J % 4, "V"), ("V", J), True)
def rK(d): return lambda c: aK(c["J"] + d)
def rV(d): return lambda c: aV(c["J"] + d)
def aQ(h, p): return (("stg", p), ("Q", h), False)
def aO(h, p): return (("stg", p), ("O", h), False)
def blk(f, h, b): return [f(h, 4*b + i) for i in range(4)]
def mkctx(c):
    def f(r):
        if callable(r): return r(c)
        return r
    return f

segs = []
path = []
cur = None
def seg(name):
    global cur
    cur = []; segs.append([name, cur]); return len(segs) - 1
def E(*xs):
    for x in xs:
        if x is None: continue
        if isinstance(x, (list, tuple)): E(*x)
        else: cur.append(x)
nstamp = [0]
def stamp_now():
    if not O_.stamps: return []
    k = nstamp[0]; nstamp[0] += 1
    op = "s_memtime" if O_.stamps == 1 else "s_memrealtime"
    return [raw(f"{op} {sStamp}", "smem", (), rs(sStamp)), wait(lgkm=0), salu("s_mov_b32", S(STAMP0 + k), sStamp[0])]

MEM = ("dsr", "dsw", "dma", "vld", "vst")
class Sched:
    def __init__(s, mf):
        s.mf = mf; s.n = len(mf); s.g = [[] for _ in mf]
        s.cap = [24 if m.m["big"] else 8 for m in mf]
    def cost(s, x): return 8 if x.kind == "trans" else 4
    def fits(s, g, x):
        if s.cap[g] < s.cost(x): return False
        if x.kind in MEM and any(y.kind in MEM for y in s.g[g]): return False
        return True
    def put(s, g, *xs):
        for x in xs:
            if isinstance(x, list): s.put(g, *x); continue
            s.g[g].append(x); s.cap[g] -= s.cost(x)
        return g
    def place(s, x, lo, hi=None):
        hi = s.n - 1 if hi is None else hi
        for g in range(lo, hi + 1):
            if s.fits(g, x): return s.put(g, x)
        raise Exception(f"cannot place {x} in [{lo},{hi}]")
    def chain(s, xs, lo, hi=None, step=1):
        g = lo - step
        for x in xs: g = s.place(x, g + step, hi)
        return g
    def pour(s, xs, lo, hi=None):
        hi = s.n - 1 if hi is None else hi
        xs = list(xs); g = lo; pend = []
        while g <= hi and (xs or pend):
            if pend and pend[0][1] < g and s.fits(g, pend[0][0]): s.put(g, pend.pop(0)[0]); continue
            if xs and xs[0].kind in MEM: pend.append((xs.pop(0), g)); continue
            if xs and xs[0].kind == "wait" and pend: g += 1; continue
            if xs and len(pend) < 2 and s.fits(g, xs[0]):
                x = xs.pop(0); s.put(g, x)
                if x.kind == "wait": g += 1
                continue
            g += 1
        return [p[0] for p in pend] + xs
    def emit(s):
        for m, g in zip(s.mf, s.g):
            E(m)
            key = lambda x: 3 if x.m.get("last") else (2 if x.kind in ("valu", "trans") else (0 if x.kind in MEM else 1))
            E(sorted(g, key=key))

def kread(d, a, s, dst, hi): return ds_read("ds_read_b128", dst, kaddr[s], hi*16384 + a*8192, rK(d))
def vread(d, t, a, dst, hi): return ds_read("ds_read_b64_tr_b16", dst[2*a:2*a+2], vaddr[t], hi*16384 + a*8192, rV(d))
def kv_dmas(d, withV=True):
    o = []
    for im in (0, 2048):
        if withV: o.append(dma(vkv, sV, sKVoff, im + 1024, rV(d), O_.ld_flags))
        o.append(dma(vkv, sK, sKVoff, im, rK(d + 2), O_.ld_flags))
    return o
def start_group(J, withV=True):
    op, im = ("s_add_u32", (J % 4)*16384 - 32768) if J % 4 >= 2 else ("s_sub_u32", 32768 - (J % 4)*16384)
    return [salu(op, "m0", sM0, im), salu("s_mov_b32", sKVoff, (J + 2)*8192)] + kv_dmas(J, withV)
def q_dma_block(h, b):
    o = [salu("s_add_u32", "m0", sStg, b*4096), salu("s_mov_b32", sSide, h*98304 + b*4096)]
    for i in range(4): o.append(dma(vsd1 if i & 1 else vsd0, sQ, sSide, i*1024, aQ(h, 4*b + i), O_.ld_flags))
    return o
def pad_vm(n):
    return [Inst(f"buffer_load_dword {X[4][0]}, {vlin}, {sQ}, {sThr} offen", "vld", rs(vlin, sQ, sThr), ()) for _ in range(n)]
def zero_mfmas():
    o = [mfma(V(144 + 16*k, 16), zero4, zero4, 0, big=True) for k in range(7)]
    o += [mfma(A(176 + 16*k, 16), zero4, zero4, 0, big=True) for k in range(5)]
    o += [mfma(A(128, 16), zero4, zero4, 0, big=True), mfma(A(144, 4), zero4, zero4, 0), mfma(A(148, 4), zero4, zero4, 0)]
    return o

def sm_ops(par, b, a):
    s = Sreg(b, a); p = Preg(par, b)
    return [valu("v_exp_f32", s[0], s[0]), valu("v_exp_f32", s[1], s[1]), valu("v_cvt_pk_bf16_f32", p[2*a], s[0], s[1]),
            valu("v_exp_f32", s[2], s[2]), valu("v_exp_f32", s[3], s[3]), valu("v_cvt_pk_bf16_f32", p[2*a+1], s[2], s[3])]
NE_A = 38
def sm_split(par):
    st = []
    for a in range(2):
        for b in range(NB): st += [(b, x) for x in sm_ops(par, b, a)]
    k = NE_A // 2 * 3
    return st[:k], st[k:]
def place_sm(sc, ops, g0):
    g = g0 - 2
    for _, x in ops:
        if x.kind == "trans": g += 2; sc.put(g, x)
        else: sc.put(g + 1, x)
def delay_cvts(xs):
    o = []; pend = []
    for x in xs:
        if x.kind == "trans":
            o.append(x)
            if pend: o.append(pend.pop(0))
        else: pend.append(x)
    return o + pend
def rowmax_ops(bs, pk=True):
    o = []
    m = {b: negM(b)[0] for b in bs}; t = {b: negM(b)[1] for b in bs}
    sv = lambda b, r: V(8*b + r)
    for b in bs: o.append(valu("v_max3_f32", m[b], sv(b, 0), sv(b, 1), sv(b, 2)))
    for b in bs: o.append(valu("v_max3_f32", t[b], sv(b, 3), sv(b, 4), sv(b, 5)))
    for b in bs: o.append(valu("v_max3_f32", m[b], m[b], sv(b, 6), sv(b, 7)))
    for b in bs: o.append(valu("v_max_f32", m[b], m[b], t[b]))
    for op in ("v_permlane32_swap_b32", "v_permlane16_swap_b32"):
        for b in bs: o.append(valu("v_mov_b32", t[b], m[b]))
        for b in bs: o.append(swap(op, m[b], t[b]))
        for b in bs: o.append(valu("v_max_f32", m[b], m[b], t[b]))
    for b in bs:
        for r in (1, 2, 3, 0): o.append(valu("v_sub_f32", negM(b)[r], 0, m[b]))
    sub = []
    for b in bs:
        for r in range(4): sub.append(valu("v_pk_add_f32", V(8*b + 2*r, 2), V(8*b + 2*r, 2), negM(b)[0:2]))
    return o, sub
def scale_frag(x, dst, w, y, pk=True):
    o = []
    if pk:
        for r in range(4): o += [valu("v_lshlrev_b32", w[2*r], 16, x[r]), valu("v_and_b32", w[2*r+1], "0xffff0000", x[r])]
        for r in range(4): o.append(valu("v_pk_mul_f32", w[2*r:2*r+2], w[2*r:2*r+2], sC))
    else:
        for r in range(4):
            o += [valu("v_lshlrev_b32", w[2*r], 16, x[r]), valu("v_and_b32", w[2*r+1], "0xffff0000", x[r]),
                  valu("v_mul_f32", w[2*r], sC[0], w[2*r]), valu("v_mul_f32", w[2*r+1], sC[0], w[2*r+1])]
    for r in range(4): o.append(valu("v_cvt_pk_bf16_f32", y[r], w[2*r], w[2*r+1]))
    for r in range(4): o.append(valu("v_accvgpr_write_b32", dst[r], y[r]))
    return o
def qk_first(b): return [mfma(Sreg(b, a), F(4*a + s), Qreg(b, s), 0 if s == 0 else Sreg(b, a)) for a in range(2) for s in range(4)]

def startup():
    v0, vl, vi, vu, t0, t1, t2 = V(0), V(1), V(2), V(3), V(4), V(5), V(6)
    E(comment("---- setup"),
      raw("s_load_dwordx4 s[4:7], s[0:1], 0", "smem", (), rs(S(4, 4))),
      raw("s_load_dwordx4 s[8:11], s[0:1], 16", "smem", (), rs(S(8, 4))),
      scmp("s_cmp_ge_u32", S(2), 256), raw("s_cbranch_scc1 L_end", "salu", {"scc"}))
    if O_.stamps:
        E(raw("s_load_dwordx2 s[44:45], s[0:1], 40", "smem", (), rs(S(44, 2))),
          raw("s_memrealtime s[46:47]", "smem", (), rs(S(46, 2))))
    if O_.prefetch_code:
        E(raw("s_getpc_b64 s[40:41]", "salu", (), rs(S(40, 2))), label("L_pc"),
          valu("v_lshlrev_b32", t0, 7, v0), valu("v_min_u32", t0, "L_end-L_pc", t0),
          Inst(f"global_load_dword v7, {t0}, s[40:41]", "vld", rs(t0, S(40, 2)), rs(V(7))))
    E(valu("v_lshrrev_b32", t1, 6, v0), valu("v_and_b32", vl, 63, v0),
      valu("v_readfirstlane_b32", sW, t1),
      valu("v_and_b32", vi, 15, vl), valu("v_lshrrev_b32", vu, 4, vl),
      valu("v_lshlrev_b32", t0, 1, vu), valu("v_xor_b32", t0, t0, vi), valu("v_lshlrev_b32", t0, 4, t0),
      valu("v_lshl_add_u32", vsd0, vu, 8, t0), valu("v_xor_b32", vsd1, 128, vsd0),
      salu("s_and_b32", sT0, sW, 1), salu("s_lshr_b32", sT1, sW, 1),
      salu("s_lshl_b32", sT2, sT0, 7), salu("s_lshl_b32", sT0, sT0, 10), salu("s_lshl_b32", sT1, sT1, 12),
      salu("s_add_u32", sT0, sT0, sT1),
      valu("v_xor_b32", vkv, sT2, vsd0), valu("v_add_u32", vkv, sT0, vkv),
      salu("s_lshl_b32", sM0, sW, 12), salu("s_add_u32", sM0, sM0, 32768), salu("s_mul_i32", sStg, sW, 24576),
      salu("s_mul_i32", sT0, S(2), 196608), salu("s_add_u32", sT0, sT0, sStg), salu("s_add_u32", sStg, sStg, 65536),
      salu("s_lshl_b32", sT1, S(2), 18),
      salu("s_mov_b32", sK[2], 262144), salu("s_mov_b32", sK[3], "0x20000"),
      salu("s_mov_b32", sQ[2], 98304 + 24576), salu("s_mov_b32", sQ[3], "0x20000"),
      wait(lgkm=0),
      salu("s_add_u32", sK[0], S(6), sT1), salu("s_addc_u32", sK[1], S(7), 0), salu("s_and_b32", sK[1], sK[1], "0xffff"),
      salu("s_add_u32", sQ[0], S(4), sT0), salu("s_addc_u32", sQ[1], S(5), 0), salu("s_and_b32", sQ[1], sQ[1], "0xffff"))
    stream = []
    for grp in [start_group(-2, False)] + [q_dma_block(0, b) for b in range(NB)] + [start_group(-1, False), start_group(0), start_group(1), pad_vm(3)]:
        pre = []
        for x in grp:
            if x.kind == "salu": pre.append(x)
            else: stream.append(pre + [x]); pre = []
    def more(n):
        o = stream[:n]; del stream[:n]; return o
    n_iss = 0
    for k, ch in enumerate(O_.stag):
        E(more(int(ch)), raw(f"s_bitcmp1_b32 s2, {O_.stagbit}", "salu", (), {"scc"}), raw(f"s_cbranch_scc0 L_st{k}", "salu", {"scc"}),
          raw("s_waitcnt vmcnt(0)"), label(f"L_st{k}")); n_iss += int(ch)
    E(more(10 - n_iss))
    E(salu("s_add_u32", sV[0], S(8), sT1), salu("s_addc_u32", sV[1], S(9), 0),
      salu("s_sub_u32", sV[0], sV[0], 1024 + 16384), salu("s_subb_u32", sV[1], sV[1], 0), salu("s_and_b32", sV[1], sV[1], "0xffff"),
      salu("s_mov_b32", sV[2], 262144 + 1024 + 16384), salu("s_mov_b32", sV[3], "0x20000"),
      salu("s_add_u32", sO[0], S(10), sT0), salu("s_addc_u32", sO[1], S(11), 0), salu("s_and_b32", sO[1], sO[1], "0xffff"),
      salu("s_mov_b32", sO[2], 98304 + 24576), salu("s_mov_b32", sO[3], "0x20000"),
      salu("s_mov_b32", sC[0], hex(CSCALE)), salu("s_mov_b32", sC[1], hex(CSCALE)),
      salu("s_mov_b32", sThr, hex(THRESH)), salu("s_mov_b32", sFlag, 0), salu("s_sub_u32", sQd, sStg, 98304))
    E(valu("v_and_b32", t0, 7, vi), valu("v_lshlrev_b32", t0, 1, t0), valu("v_xor_b32", t0, t0, vu), valu("v_lshlrev_b32", t0, 4, t0),
      valu("v_lshl_add_u32", t2, vi, 8, t0), valu("v_add_u32", qa[0], sStg, t2),
      valu("v_and_b32", t1, 3, vi), valu("v_lshl_add_u32", t0, t1, 8, t0),
      valu("v_lshrrev_b32", t1, 3, vi), valu("v_lshl_add_u32", t0, t1, 11, t0),
      valu("v_bfe_u32", t1, vi, 2, 1), valu("v_lshl_add_u32", t0, t1, 12, t0), valu("v_add_u32", kaddr[0], 32768, t0))
    for s in range(1, 4): E(valu("v_xor_b32", kaddr[s], s << 6, kaddr[0]), valu("v_xor_b32", qa[s], s << 6, qa[0]))
    E(valu("v_lshrrev_b32", t1, 2, vi), valu("v_and_b32", t2, 1, vu), valu("v_lshl_add_u32", t0, t2, 2, t1),
      valu("v_lshlrev_b32", t0, 5, t0), valu("v_lshl_add_u32", t0, t1, 8, t0), valu("v_lshl_add_u32", t0, t2, 12, t0),
      valu("v_lshrrev_b32", t2, 1, vu), valu("v_lshl_add_u32", t0, t2, 11, t0),
      valu("v_and_b32", t1, 3, vi), valu("v_lshl_add_u32", t0, t1, 3, t0), valu("v_add_u32", vaddr[0], 1024, t0))
    for t in range(1, 8): E(valu("v_xor_b32", vaddr[t], t << 5, vaddr[0]))
    E(valu("v_lshlrev_b32", vlin, 4, vl), valu("v_mov_b32", t0, "0x3f803f80"))
    for r in range(4): E(valu("v_accvgpr_write_b32", ones[r], t0), valu("v_mov_b32", zero4[r], 0))
    E(zero_mfmas(), more(O_.n0 - 10))
    E(stamp_now())
    E(comment("---- first K tile"), wait(vm=[aK(0)]), barrier())
    for a in range(2):
        for s in range(4): E(kread(0, a, s, F(4*a + s), 0))
    first, _ = sm_split(0)
    rawr = lambda s: V(72 + 4*s, 4)
    for b in range(NB):
        E(comment(f"---- start-up block {b}"), stamp_now() if O_.probe else None, wait(vm=blk(aQ, 0, b)), stamp_now() if O_.probe else None)
        for s in range(4): E(ds_read("ds_read_b128", rawr(s), qa[s], b*4096, blk(aQ, 0, b)))
        for s in range(4):
            E(wait(lgkm=[rawr(s)] + ([F(k) for k in range(8)] if b == 0 else [])))
            E(more(1), scale_frag(rawr(s), Qreg(b, s), V(88, 8), Sreg(b, s & 1)))
        E(qk_first(b), more(O_.nper - 4))
        if b == NB - 1:
            E(stamp_now() if O_.probe else None, wait(vm=[aK(1)]), barrier(), stamp_now() if O_.probe else None)
            for s in range(4): E(kread(1, 0, s, F(s), 1))
        mx, sub = rowmax_ops([b])
        E(mx, sub, delay_cvts([x for bb, x in first if bb == b]))
    E(more(99), salu("s_mov_b32", "m0", sM0), salu("s_mov_b32", sKVoff, 4*8192), kv_dmas(2))
    E(salu("s_mov_b32", sSide, 98304), salu("s_mov_b32", sCnt, 7), wait(lgkm=[F(s) for s in range(4)]))
    E(stamp_now())

def o_reads(h, pf, dst, off):
    o = []
    for i in range(4):
        ad = vsd1 if i & 1 else vsd0
        if i >> 1: o += [ds_read("ds_read_b64", dst[i][0:2], ad, off + i*1024 + 8, pf(i)), ds_read("ds_read_b64", dst[i][2:4], ad, off + i*1024, pf(i))]
        else: o.append(ds_read("ds_read_b128", dst[i], ad, off + i*1024, pf(i)))
    return o

def pv_mfmas(par, frags):
    mf = []
    for t in range(8):
        for b in range(NB): mf.append(mfma(Oreg(b, t), frags[t], Preg(par, b), Oreg(b, t)))
        if t < NB: mf.append(mfma(lacc(t), ones, Preg(par, t), lacc(t)))
    return mf

def side_O(sc, rlo, slo):
    j0 = 2*O_.nC
    pf = lambda i: (lambda c: aO(0, 4*(c["J"] - 16 - j0) + i))
    g = sc.chain(o_reads(0, pf, X, 0), rlo)
    g = sc.place(wait(lgkm=X[:4]), max(g + 6, slo))
    g2 = sc.chain([vstore(X[i], vlin, sO, sSide, i*1024, O_.st_flags) for i in range(4)], g + 1, step=3)
    sc.chain([valu("v_add_u32", vsd0, 4096, vsd0), valu("v_add_u32", vsd1, 4096, vsd1)], g)
    sc.place(salu("s_add_u32", sSide, sSide, 4096), g2 + 1)

def iteration(par, side, ctl):
    mf = [mfma(Sreg(b, a), F(4*a + s), Qreg(b, s), negM(b) if s == 0 else Sreg(b, a)) for a in range(2) for b in range(NB) for s in range(4)]
    mf += pv_mfmas(par, [F(t) for t in range(8)])
    sc = Sched(mf)
    place_sm(sc, sm_split(par)[1], 0)
    place_sm(sc, sm_split(1 - par)[0], 24)
    sc.put(101, ctl)
    sc.chain([kread(1, 1, s, F(4 + s), 1 - par) for s in range(4)], 1)
    sc.put(22, wait(vm=[rV(0), rK(2)], lgkm=0)); sc.put(23, barrier()); sc.cap[23] = 0
    if par == 0:
        sc.put(21, salu("s_add_u32", "m0", sM0, 16384)); sc.put(22, salu("s_xor_b32", sM0, sM0, 32768))
        sc.chain([valu("v_xor_b32", r, 32768, r) for r in kaddr], 9, 21, step=0)
    else: sc.put(21, salu("s_mov_b32", "m0", sM0))
    sc.place(salu("s_add_u32", sKVoff, sKVoff, 8192), 9, 21)
    ops = kv_dmas(3); vr = [vread(0, t, a, F(t), par) for t in range(4) for a in range(2)]
    seq = []
    for k in range(4): seq += [ops[k]] + vr[2*k:2*k + 2]
    sc.chain(seq, 25, 47)
    gv = sc.chain([vread(0, t, a, F(t), par) for t in range(4, 8) for a in range(2)], 49)
    sc.chain([kread(2, 0, s, F(s), par) for s in range(4)], 77)
    sc.place(wait(lgkm=[F(0), F(1)]), 45, 47)
    sc.place(wait(lgkm=[F(2), F(3)]), 57, 61)
    sc.place(wait(lgkm=[F(4), F(5), F(6), F(7)]), 73, 75)
    sc.place(wait(lgkm=[F(s) for s in range(4)]), 97, 101)
    if side == "Q" and par == 0:
        pf = lambda k: (lambda c: aQ(1, 3*(c["J"]//2) + k))
        g = sc.place(salu("s_add_u32", "m0", sSide, sQd), 49)
        g = sc.chain([dma(vsd1 if k & 1 else vsd0, sQ, sSide, k*1024, pf(k), O_.ld_flags) for k in range(3)], gv + 1, step=3)
        sc.chain([salu("s_add_u32", sSide, sSide, 3072), valu("v_xor_b32", vsd0, 128, vsd0), valu("v_xor_b32", vsd1, 128, vsd1)], g + 1, step=0)
    if side == "O": side_O(sc, 9, 65)
    if par == 1: sc.chain([valu("v_xor_b32", r, 32768, r) for r in vaddr], gv + 1, 100, step=0)
    sc.emit()

def br(text): return raw(text, "salu", {"scc"}, (), last=True)
def dec():
    x = salu("s_sub_u32", sCnt, sCnt, 1); x.m["last"] = True; return x
def loop(name, side, J0, n_iter):
    e = seg(name + "_even"); E(raw(".p2align 3", "label"), label(f"L_{name}"))
    if n_iter & 1:
        iteration(0, side, [dec(), br(f"s_cbranch_scc1 L_{name}_exit")])
        o = seg(name + "_odd"); iteration(1, side, [br(f"s_branch L_{name}")]); E(label(f"L_{name}_exit"))
    else:
        iteration(0, side, [])
        o = seg(name + "_odd"); iteration(1, side, [dec(), br(f"s_cbranch_scc0 L_{name}")])
    for k in range(n_iter): path.append((o if k & 1 else e, {"J": J0 + k}))

def o_addr_ops(t0, t1, t2, first):
    o = []
    if first:
        o += [valu("v_lshrrev_b32", t0, 9, vlin), valu("v_bfe_u32", t1, vlin, 4, 3), valu("v_xor_b32", t0, t0, t1),
              valu("v_lshlrev_b32", t0, 4, t0), valu("v_lshrrev_b32", t1, 8, vlin), valu("v_lshrrev_b32", t2, 7, vlin),
              valu("v_xor_b32", t2, t1, t2), valu("v_and_b32", t2, 1, t2), valu("v_lshl_add_u32", t0, t2, 3, t0),
              valu("v_bfe_u32", t2, vlin, 4, 4), valu("v_lshl_add_u32", t0, t2, 8, t0), valu("v_add_u32", qa[0], sStg, t0)]
        o += [valu("v_xor_b32", qa[k], k << 5, qa[0]) for k in range(1, 4)]
    o += [valu("v_lshrrev_b32", t1, 4, vlin), valu("v_and_b32", t1, "0x30", t1), valu("v_xor_b32", t1, t1, vlin),
          valu("v_add_u32", vsd0, sStg, t1), valu("v_xor_b32", vsd1, 64, vsd0)]
    return o
def l_ops(h, rl, t1):
    o = [valu("v_accvgpr_read_b32", rl[b][1], lacc(b)[0]) for b in range(NB)]
    o += [valu("v_rcp_f32", rl[b][0], rl[b][1]) for b in range(NB)]
    o.append(valu("v_add_f32", t1, rl[0][1], rl[1][1]))
    o += [valu("v_add_f32", t1, t1, rl[b][1]) for b in range(2, NB)]
    o += [Inst(f"v_cmp_nlt_f32 {sCmp}, {t1}, {sThr}", "valu", rs(t1, sThr), rs(sCmp)),
          nop(0), scmp("s_cmp_lg_u64", sCmp, 0), salu("s_cselect_b32", sT0, 1 << h, 0), salu("s_or_b32", sFlag, sFlag, sT0)]
    return o
def epi_tiles(h, b, ts, rl, w, y, pk=True):
    o = []
    for k, t in enumerate(ts):
        r = Oreg(b, t)
        if r.k == "a": o += [valu("v_accvgpr_read_b32", w[4*k + i], r[i]) for i in range(4)]
    for k, t in enumerate(ts):
        r = Oreg(b, t); src = r if r.k == "v" else w[4*k:4*k + 4]
        if pk: o += [valu("v_pk_mul_f32", w[4*k + 2*i:4*k + 2*i + 2], src[2*i:2*i + 2], rl[b], mods="op_sel_hi:[1,0]") for i in range(2)]
        else: o += [valu("v_mul_f32", w[4*k + i], src[i], rl[b][0]) for i in range(4)]
    o += [valu("v_cvt_pk_bf16_f32", y[k], w[2*k], w[2*k + 1]) for k in range(2*len(ts))]
    o += [ds_write("ds_write_b64", qa[t & 3], y[2*k:2*k + 2], b*4096 + (t >> 2)*128, blk(aO, h, b)) for k, t in enumerate(ts)]
    return o

def last_head(sc_fill, vf):
    E(wait(vm=[rV(0), rK(2)]), barrier())
    vr = [vread(0, t, a, vf[t], 1) for t in range(8) for a in range(2)]
    E(vr[:4], delay_cvts([x for _, x in sm_split(1)[1]]), wait(lgkm=[vf[0]]))
    sc = Sched(pv_mfmas(1, vf))
    gv = sc.chain(vr[4:], 0)
    sc.place(wait(lgkm=[vf[1]]), 5, 6); sc.place(wait(lgkm=[vf[2], vf[3]]), 12, 13); sc.place(wait(lgkm=vf[4:]), 24, 27)
    rest = sc_fill(sc, gv)
    sc.emit()
    return rest

def transition():
    s = seg("trans"); path.append((s, {"J": 15}))
    E(stamp_now(), comment("---- head 0 last tile + head switch"))
    vf = X[:4] + [F(4), F(5), F(6), X[4]]
    rawr = lambda n: V(4*(n % 8), 4)
    def qrd(n):
        b, s_ = divmod(n, 4)
        return ([wait(vm=blk(aQ, 1, b))] if s_ == 0 else []) + [ds_read("ds_read_b128", rawr(n), qa[s_], b*4096, blk(aQ, 1, b))]
    NSH = 3
    def fill(sc, gv):
        g = gv + 1
        for n in range(8):
            for x in qrd(n): g = sc.place(x, g) + 1
        sc.chain([valu("v_xor_b32", r, 32768, r) for r in vaddr], gv + 1, step=0)
        sc.place(kread(1, 1, 3, F(7), 0), g)
        for k in range(3): sc.place(kread(1, 1, k, F(4 + k), 0), 35 + 7*k - (k == 2))
        st = []
        for n in range(NSH): st += [wait(lgkm=[rawr(n)])] + scale_frag(rawr(n), Qreg(*divmod(n, 4)), V(32, 8), V(40 + 4*(n & 1), 4), pk=False)
        return sc.pour(st, gv + 7)
    E(last_head(fill, vf))
    for n in range(NSH): E(qrd(8 + n))
    for n in range(NSH, 24):
        E(wait(lgkm=[rawr(n)]), scale_frag(rawr(n), Qreg(*divmod(n, 4)), V(32, 8), V(40 + 4*(n & 1), 4)))
        if n == NSH:
            E(wait(lgkm=[F(k) for k in range(8)]), barrier(), salu("s_mov_b32", "m0", sM0), salu("s_add_u32", sKVoff, sKVoff, 8192), kv_dmas(3))
        if n + 8 < 24: E(qrd(n + 8))
    E(stamp_now(), comment("---- S(0) of head 1 over the epilogue of head 0"))
    rl = [V(96 + 2*b, 2) for b in range(NB)]; t0, t1, t2 = V(108), V(109), V(110)
    E(l_ops(0, rl, t1))
    sc = Sched([m for b in range(NB) for m in qk_first(b)])
    tiles = [(b, t) for b in reversed(range(NB)) for t in range(8)]
    st = o_addr_ops(t0, t1, t2, True); NT = 7
    for k, (b, t) in enumerate(tiles[:NT]): st += epi_tiles(0, b, [t], rl, V(48 + 4*(k % 4), 4), V(80 + 2*(k % 8), 2), pk=False)
    for s_ in range(4): sc.place(kread(2, 0, s_, F(s_), 1), 44 + s_)
    rest = sc.pour(st, 0); sc.emit(); E(rest)
    todo = tiles[NT:]; k = 0
    while todo:
        b = todo[0][0]; ts = [t for bb, t in todo[:4] if bb == b]; todo = todo[len(ts):]
        E(epi_tiles(0, b, ts, rl, V(48 + 16*(k % 2), 16), V(80 + 8*(k % 2), 8))); k += 1
    E(stamp_now(), comment("---- row max stand-in, first softmax part, clear accumulators"))
    mx, sub = rowmax_ops(range(NB))
    z = zero_mfmas()
    sc = Sched(z[:13]); rest = sc.pour(mx, 0); sc.emit(); E(rest, z[13:], sub)
    E(delay_cvts([x for _, x in sm_split(0)[0]]))
    E(salu("s_mov_b32", sSide, 0), salu("s_mov_b32", sCnt, O_.nC - 1), wait(lgkm=[F(s_) for s_ in range(4)]))
    E(stamp_now())

def final():
    s = seg("final"); path.append((s, {"J": 31}))
    E(stamp_now(), comment("---- head 1 last tile + epilogue"))
    nB = 15 - 2*O_.nC
    def fill(sc, gv):
        if nB < 6: side_O(sc, gv + 1, 0)
        return []
    E(wait(lgkm=0))
    last_head(fill, [F(t) for t in range(8)])
    rl = [V(96 + 2*b, 2) for b in range(NB)]; t0, t1, t2 = V(108), V(109), V(110)
    E(stamp_now(), o_addr_ops(t0, t1, t2, False), l_ops(1, rl, t1))
    def st(b):
        dst = [F((4*b + i) % 8) for i in range(4)]
        return [salu("s_mov_b32", sSide, 98304 + b*4096), wait(lgkm=dst)] + [vstore(dst[i], vlin, sO, sSide, i*1024, O_.fin_flags) for i in range(4)]
    for b in range(NB):
        for th in range(2):
            E(epi_tiles(1, b, range(4*th, 4*th + 4), rl, V(48 + 16*th, 16), V(80 + 8*th, 8)))
            if th == 0 and b > 0: E(st(b - 1))
        E(o_reads(1, lambda i: aO(1, 4*b + i), [F((4*b + i) % 8) for i in range(4)], b*4096))
    E(st(NB - 1), stamp_now())
    if O_.diag:
        a, b = [int(x) for x in O_.diag.split(":")]
        E(wait(vm=0), raw("s_memrealtime s[42:43]", "smem", (), rs(S(42, 2))), wait(lgkm=0), salu("s_mov_b32", S(47), S(42)),
          salu("s_sub_u32", sT0, S(STAMP0 + b), S(STAMP0 + a)), salu("s_lshr_b32", sT0, sT0, 3 if O_.stamps == 1 else 0), salu("s_add_u32", sT0, sT0, 7000),
          label("L_spin"), raw("s_memrealtime s[42:43]", "smem", (), rs(S(42, 2))), wait(lgkm=0),
          salu("s_sub_u32", S(42), S(42), S(46)), scmp("s_cmp_lt_u32", S(42), sT0), raw("s_cbranch_scc1 L_spin", "salu", {"scc"}))
    elif O_.stamps:
        E(wait(vm=0), raw("s_memrealtime s[42:43]", "smem", (), rs(S(42, 2))), wait(lgkm=0), salu("s_mov_b32", S(47), S(42)))
        E(salu("s_lshl_b32", sT0, S(2), 2), salu("s_add_u32", sT0, sT0, sW), salu("s_lshl_b32", sT0, sT0, 8))
        E(valu("v_mov_b32", V(1), sT0))
        for k in range(nstamp[0] + 2):
            E(valu("v_mov_b32", V(2), S(46 + k)),
              Inst(f"global_store_dword v1, v2, s[44:45] offset:{4*k}", "vst", rs(V(1), V(2), S(44, 2)), (), data=set()), nop(1))
    E(label("L_end"))

def build():
    s = seg("start"); path.append((s, {"J": 0})); startup()
    loop("A", "Q", 0, 15)
    transition()
    loop("C", None, 16, 2*O_.nC)
    nB = 15 - 2*O_.nC
    assert nB in (5,), "side-O schedule expects 5 loop iterations + the last tile"
    s = seg("CB"); path.append((s, {"J": 0})); E(stamp_now(), salu("s_mov_b32", sCnt, nB // 2), pad_vm(12))
    loop("B", "O", 16 + 2*O_.nC, nB)
    final()
    def trace(): return [(i, mkctx(c)) for sidx, c in path for i in segs[sidx][1]]
    for rnd in range(4):
        fix = {}
        resolve_and_check(trace(), fix=fix)
        if not fix: break
        for sg in segs:
            new = []
            for i in sg[1]:
                if id(i) in fix: new.append(nop(fix[id(i)] - 1))
                new.append(i)
            sg[1][:] = new
    resolve_and_check(trace(), verbose=True)
    if O_.stamps:
        tr = [i for i, _ in trace()]; cuts = [k for k, i in enumerate(tr) if i.kind == "smem" and "s[42:43]" in i.text]
        print("  est between stamps:", [cost_estimate(tr[a:b]) for a, b in zip(cuts, cuts[1:])])
    for name, ins in segs: print(f"  seg {name:8s} insts {len(ins):5d} est cycles {cost_estimate(ins):6d} nops {sum(1 for i in ins if i.kind == 'nop')}")

HEAD = """; MHA forward, B=16 H=32 Sq=384 Sk=512 D=128, bf16.  Generated by gen/gen2.py
; @launch grid=(256,1,1) block=(256,1,1) lds=163840
.amdgcn_target "amdgcn-amd-amdhsa--gfx950"
.text
.globl standalone__mha_softmax__near_ridge_kernel
.p2align 8
.type standalone__mha_softmax__near_ridge_kernel,@function
standalone__mha_softmax__near_ridge_kernel:
"""
TAIL = """    s_endpgm
.section .rodata,"a"
.p2align 6
.amdhsa_kernel standalone__mha_softmax__near_ridge_kernel
  .amdhsa_next_free_vgpr 512
  .amdhsa_next_free_sgpr 102
  .amdhsa_accum_offset 256
  .amdhsa_group_segment_fixed_size 0
  .amdhsa_kernarg_size 48
  .amdhsa_user_sgpr_count 2
  .amdhsa_user_sgpr_kernarg_segment_ptr 1
  .amdhsa_system_sgpr_workgroup_id_x 1
.end_amdhsa_kernel
"""
if __name__ == "__main__":
    out = sys.argv[1]
    for a in sys.argv[2:]:
        k, v = a.split("=")
        c = getattr(O_, k)
        setattr(O_, k, (v not in ("0", "False")) if isinstance(c, bool) else type(c)(v))
    build()
    body = "\n".join((i.text if i.kind == "label" else "    " + i.text) for _, ins in segs for i in ins)
    open(out, "w").write(HEAD + body + "\n" + TAIL)
```

```python
import sys, math, struct
from ir import *

class Opt:
    stamps = 0
    st_flags = "sc1"
    fin_flags = "sc1"
    fq = "nt"
    fk = "nt"
    fv = "nt"
    prefetch_code = True
    probe = 0
    itst = 0
    diag = ""
    stag = ""
    stagbit = 3
    n0 = 14
    nper = 4
    nC = 5
O_ = Opt()

NB = 6
def f32bits(x): return struct.unpack("<I", struct.pack("<f", x))[0]
CSCALE = f32bits(math.log2(math.e) / math.sqrt(128.0))
THRESH = f32bits(2.0 ** 40)

def Sreg(b, a): return V(8*b + 4*a, 4)
def Preg(par, b): return V(48 + 24*par + 4*b, 4)
def negM(b): return V(96 + 4*b, 4)
kaddr = [V(120 + s) for s in range(4)]
vaddr = [V(124 + t) for t in range(8)]
vkv = V(132); vsd0 = V(133); vsd1 = V(134); vlin = V(135)
qa = [V(136 + s) for s in range(4)]
zero4 = V(140, 4)
def Oreg(b, t):
    n = 8*b + t
    return V(144 + 4*n, 4) if n < 28 else A(176 + 4*(n - 28), 4)
def Qreg(b, s): return A(16*b + 4*s, 4)
def F(i): return A(96 + 4*i, 4)
def lacc(b): return A(128 + 4*b, 4)
ones = A(152, 4)
X = [A(156 + 4*k, 4) for k in range(5)]
sQ, sK, sV, sO = S(12, 4), S(16, 4), S(20, 4), S(24, 4)
sW = S(28); sKVoff = S(29); sM0 = S(30); sStg = S(31); sSide = S(32); sT0 = S(33); sT1 = S(34); sT2 = S(35)
sFlag = S(36); sThr = S(37); sC = S(38, 2); sCmp = S(40, 2); sStamp = S(42, 2); sCnt = S(3); sQd = S(4)
STAMP0 = 48

def aK(J): return (("ring", (J - 2) % 4, "K"), ("K", J), True)
def aV(J): return (("ring", J % 4, "V"), ("V", J), True)
def rK(d): return lambda c: aK(c["J"] + d)
def rV(d): return lambda c: aV(c["J"] + d)
def aQ(h, p): return (("stg", p), ("Q", h), False)
def aO(h, p): return (("stg", p), ("O", h), False)
def blk(f, h, b): return [f(h, 4*b + i) for i in range(4)]
def mkctx(c):
    def f(r):
        if callable(r): return r(c)
        return r
    return f

segs = []
path = []
cur = None
def seg(name):
    global cur
    cur = []; segs.append([name, cur]); return len(segs) - 1
def E(*xs):
    for x in xs:
        if x is None: continue
        if isinstance(x, (list, tuple)): E(*x)
        else: cur.append(x)
nstamp = [0]
def stamp_now():
    if not O_.stamps: return []
    k = nstamp[0]; nstamp[0] += 1
    op = "s_memtime" if O_.stamps == 1 else "s_memrealtime"
    return [raw(f"{op} {sStamp}", "smem", (), rs(sStamp)), wait(lgkm=0), salu("s_mov_b32", S(STAMP0 + k), sStamp[0])]

MEM = ("dsr", "dsw", "dma", "vld", "vst")
class Sched:
    def __init__(s, mf):
        s.mf = mf; s.n = len(mf); s.g = [[] for _ in mf]
        s.cap = [24 if m.m["big"] else 8 for m in mf]
    def cost(s, x): return 8 if x.kind == "trans" else 4
    def fits(s, g, x):
        if s.cap[g] < s.cost(x): return False
        if x.kind in MEM and any(y.kind in MEM for y in s.g[g]): return False
        return True
    def put(s, g, *xs):
        for x in xs:
            if isinstance(x, list): s.put(g, *x); continue
            s.g[g].append(x); s.cap[g] -= s.cost(x)
        return g
    def place(s, x, lo, hi=None):
        hi = s.n - 1 if hi is None else hi
        for g in range(lo, hi + 1):
            if s.fits(g, x): return s.put(g, x)
        raise Exception(f"cannot place {x} in [{lo},{hi}]")
    def chain(s, xs, lo, hi=None, step=1):
        g = lo - step
        for x in xs: g = s.place(x, g + step, hi)
        return g
    def pour(s, xs, lo, hi=None):
        hi = s.n - 1 if hi is None else hi
        xs = list(xs); g = lo; pend = []
        while g <= hi and (xs or pend):
            if pend and pend[0][1] < g and s.fits(g, pend[0][0]): s.put(g, pend.pop(0)[0]); continue
            if xs and xs[0].kind in MEM: pend.append((xs.pop(0), g)); continue
            if xs and xs[0].kind == "wait" and pend: g += 1; continue
            if xs and len(pend) < 2 and s.fits(g, xs[0]):
                x = xs.pop(0); s.put(g, x)
                if x.kind == "wait": g += 1
                continue
            g += 1
        return [p[0] for p in pend] + xs
    def emit(s):
        for m, g in zip(s.mf, s.g):
            E(m)
            key = lambda x: 3 if x.m.get("last") else (2 if x.kind in ("valu", "trans") else (0 if x.kind in MEM else 1))
            E(sorted(g, key=key))

def kread(d, a, s, dst, hi): return ds_read("ds_read_b128", dst, kaddr[s], hi*16384 + a*8192, rK(d))
def vread(d, t, a, dst, hi): return ds_read("ds_read_b64_tr_b16", dst[2*a:2*a+2], vaddr[t], hi*16384 + a*8192, rV(d))
def kv_dmas(d, withV=True):
    o = []
    for im in (0, 2048):
        if withV: o.append(dma(vkv, sV, sKVoff, im + 1024, rV(d), O_.fv))
        o.append(dma(vkv, sK, sKVoff, im, rK(d + 2), O_.fk))
    return o
def start_group(J, withV=True):
    op, im = ("s_add_u32", (J % 4)*16384 - 32768) if J % 4 >= 2 else ("s_sub_u32", 32768 - (J % 4)*16384)
    return [salu(op, "m0", sM0, im), salu("s_mov_b32", sKVoff, (J + 2)*8192)] + kv_dmas(J, withV)
def q_dma_block(h, b):
    o = [salu("s_add_u32", "m0", sStg, b*4096), salu("s_mov_b32", sSide, h*98304 + b*4096)]
    for i in range(4): o.append(dma(vsd1 if i & 1 else vsd0, sQ, sSide, i*1024, aQ(h, 4*b + i), O_.fq))
    return o
def pad_vm(n):
    return [Inst(f"buffer_load_dword {X[4][0]}, {vlin}, {sQ}, {sThr} offen", "vld", rs(vlin, sQ, sThr), ()) for _ in range(n)]
def zero_mfmas():
    o = [mfma(V(144 + 16*k, 16), zero4, zero4, 0, big=True) for k in range(7)]
    o += [mfma(A(176 + 16*k, 16), zero4, zero4, 0, big=True) for k in range(5)]
    o += [mfma(A(128, 16), zero4, zero4, 0, big=True), mfma(A(144, 4), zero4, zero4, 0), mfma(A(148, 4), zero4, zero4, 0)]
    return o

def sm_ops(par, b, a):
    s = Sreg(b, a); p = Preg(par, b)
    return [valu("v_exp_f32", s[0], s[0]), valu("v_exp_f32", s[1], s[1]), valu("v_cvt_pk_bf16_f32", p[2*a], s[0], s[1]),
            valu("v_exp_f32", s[2], s[2]), valu("v_exp_f32", s[3], s[3]), valu("v_cvt_pk_bf16_f32", p[2*a+1], s[2], s[3])]
NE_A = 38
def sm_split(par):
    st = []
    for a in range(2):
        for b in range(NB): st += [(b, x) for x in sm_ops(par, b, a)]
    k = NE_A // 2 * 3
    return st[:k], st[k:]
def place_sm(sc, ops, g0):
    g = g0 - 2
    for _, x in ops:
        if x.kind == "trans": g += 2; sc.put(g, x)
        else: sc.put(g + 1, x)
def delay_cvts(xs):
    o = []; pend = []
    for x in xs:
        if x.kind == "trans":
            o.append(x)
            if pend: o.append(pend.pop(0))
        else: pend.append(x)
    return o + pend
def rowmax_ops(bs, pk=True):
    o = []
    m = {b: negM(b)[0] for b in bs}; t = {b: negM(b)[1] for b in bs}
    sv = lambda b, r: V(8*b + r)
    for b in bs: o.append(valu("v_max3_f32", m[b], sv(b, 0), sv(b, 1), sv(b, 2)))
    for b in bs: o.append(valu("v_max3_f32", t[b], sv(b, 3), sv(b, 4), sv(b, 5)))
    for b in bs: o.append(valu("v_max3_f32", m[b], m[b], sv(b, 6), sv(b, 7)))
    for b in bs: o.append(valu("v_max_f32", m[b], m[b], t[b]))
    for op in ("v_permlane32_swap_b32", "v_permlane16_swap_b32"):
        for b in bs: o.append(valu("v_mov_b32", t[b], m[b]))
        for b in bs: o.append(swap(op, m[b], t[b]))
        for b in bs: o.append(valu("v_max_f32", m[b], m[b], t[b]))
    for b in bs:
        for r in (1, 2, 3, 0): o.append(valu("v_sub_f32", negM(b)[r], 0, m[b]))
    sub = []
    for b in bs:
        for r in range(4): sub.append(valu("v_pk_add_f32", V(8*b + 2*r, 2), V(8*b + 2*r, 2), negM(b)[0:2]))
    return o, sub
def scale_frag(x, dst, w, y, pk=True):
    o = []
    if pk:
        for r in range(4): o += [valu("v_lshlrev_b32", w[2*r], 16, x[r]), valu("v_and_b32", w[2*r+1], "0xffff0000", x[r])]
        for r in range(4): o.append(valu("v_pk_mul_f32", w[2*r:2*r+2], w[2*r:2*r+2], sC))
    else:
        for r in range(4):
            o += [valu("v_lshlrev_b32", w[2*r], 16, x[r]), valu("v_and_b32", w[2*r+1], "0xffff0000", x[r]),
                  valu("v_mul_f32", w[2*r], sC[0], w[2*r]), valu("v_mul_f32", w[2*r+1], sC[0], w[2*r+1])]
    for r in range(4): o.append(valu("v_cvt_pk_bf16_f32", y[r], w[2*r], w[2*r+1]))
    for r in range(4): o.append(valu("v_accvgpr_write_b32", dst[r], y[r]))
    return o
def qk_first(b): return [mfma(Sreg(b, a), F(4*a + s), Qreg(b, s), 0 if s == 0 else Sreg(b, a)) for a in range(2) for s in range(4)]

def startup():
    v0, vl, vi, vu, t0, t1, t2 = V(0), V(1), V(2), V(3), V(4), V(5), V(6)
    E(comment("---- setup"),
      raw("s_load_dwordx4 s[4:7], s[0:1], 0", "smem", (), rs(S(4, 4))),
      raw("s_load_dwordx4 s[8:11], s[0:1], 16", "smem", (), rs(S(8, 4))),
      scmp("s_cmp_ge_u32", S(2), 256), raw("s_cbranch_scc1 L_end", "salu", {"scc"}))
    if O_.stamps:
        E(raw("s_load_dwordx2 s[44:45], s[0:1], 40", "smem", (), rs(S(44, 2))),
          raw("s_memrealtime s[46:47]", "smem", (), rs(S(46, 2))))
    if O_.prefetch_code:
        E(raw("s_getpc_b64 s[40:41]", "salu", (), rs(S(40, 2))), label("L_pc"),
          valu("v_lshlrev_b32", t0, 7, v0), valu("v_min_u32", t0, "L_end-L_pc", t0),
          Inst(f"global_load_dword v7, {t0}, s[40:41]", "vld", rs(t0, S(40, 2)), rs(V(7))))
    E(valu("v_lshrrev_b32", t1, 6, v0), valu("v_and_b32", vl, 63, v0),
      valu("v_readfirstlane_b32", sW, t1),
      valu("v_and_b32", vi, 15, vl), valu("v_lshrrev_b32", vu, 4, vl),
      valu("v_lshlrev_b32", t0, 1, vu), valu("v_xor_b32", t0, t0, vi), valu("v_lshlrev_b32", t0, 4, t0),
      valu("v_lshl_add_u32", vsd0, vu, 8, t0), valu("v_xor_b32", vsd1, 128, vsd0),
      salu("s_and_b32", sT0, sW, 1), salu("s_lshr_b32", sT1, sW, 1),
      salu("s_lshl_b32", sT2, sT0, 7), salu("s_lshl_b32", sT0, sT0, 10), salu("s_lshl_b32", sT1, sT1, 12),
      salu("s_add_u32", sT0, sT0, sT1),
      valu("v_xor_b32", vkv, sT2, vsd0), valu("v_add_u32", vkv, sT0, vkv),
      salu("s_lshl_b32", sM0, sW, 12), salu("s_add_u32", sM0, sM0, 32768), salu("s_mul_i32", sStg, sW, 24576),
      salu("s_mul_i32", sT0, S(2), 196608), salu("s_add_u32", sT0, sT0, sStg), salu("s_add_u32", sStg, sStg, 65536),
      salu("s_lshl_b32", sT1, S(2), 18),
      salu("s_mov_b32", sK[2], 262144), salu("s_mov_b32", sK[3], "0x20000"),
      salu("s_mov_b32", sQ[2], 98304 + 24576), salu("s_mov_b32", sQ[3], "0x20000"),
      wait(lgkm=0),
      salu("s_add_u32", sK[0], S(6), sT1), salu("s_addc_u32", sK[1], S(7), 0), salu("s_and_b32", sK[1], sK[1], "0xffff"),
      salu("s_add_u32", sQ[0], S(4), sT0), salu("s_addc_u32", sQ[1], S(5), 0), salu("s_and_b32", sQ[1], sQ[1], "0xffff"))
    stream = []
    for grp in [start_group(-2, False)] + [q_dma_block(0, b) for b in range(NB)] + [start_group(-1, False), start_group(0), start_group(1), pad_vm(3)]:
        pre = []
        for x in grp:
            if x.kind == "salu": pre.append(x)
            else: stream.append(pre + [x]); pre = []
    def more(n):
        o = stream[:n]; del stream[:n]; return o
    n_iss = 0
    for k, ch in enumerate(O_.stag):
        E(more(int(ch)), raw(f"s_bitcmp1_b32 s2, {O_.stagbit}", "salu", (), {"scc"}), raw(f"s_cbranch_scc0 L_st{k}", "salu", {"scc"}),
          raw("s_waitcnt vmcnt(0)"), label(f"L_st{k}")); n_iss += int(ch)
    E(more(10 - n_iss))
    E(salu("s_add_u32", sV[0], S(8), sT1), salu("s_addc_u32", sV[1], S(9), 0),
      salu("s_sub_u32", sV[0], sV[0], 1024 + 16384), salu("s_subb_u32", sV[1], sV[1], 0), salu("s_and_b32", sV[1], sV[1], "0xffff"),
      salu("s_mov_b32", sV[2], 262144 + 1024 + 16384), salu("s_mov_b32", sV[3], "0x20000"),
      salu("s_add_u32", sO[0], S(10), sT0), salu("s_addc_u32", sO[1], S(11), 0), salu("s_and_b32", sO[1], sO[1], "0xffff"),
      salu("s_mov_b32", sO[2], 98304 + 24576), salu("s_mov_b32", sO[3], "0x20000"),
      salu("s_mov_b32", sC[0], hex(CSCALE)), salu("s_mov_b32", sC[1], hex(CSCALE)),
      salu("s_mov_b32", sThr, hex(THRESH)), salu("s_mov_b32", sFlag, 0), salu("s_sub_u32", sQd, sStg, 98304))
    E(valu("v_and_b32", t0, 7, vi), valu("v_lshlrev_b32", t0, 1, t0), valu("v_xor_b32", t0, t0, vu), valu("v_lshlrev_b32", t0, 4, t0),
      valu("v_lshl_add_u32", t2, vi, 8, t0), valu("v_add_u32", qa[0], sStg, t2),
      valu("v_and_b32", t1, 3, vi), valu("v_lshl_add_u32", t0, t1, 8, t0),
      valu("v_lshrrev_b32", t1, 3, vi), valu("v_lshl_add_u32", t0, t1, 11, t0),
      valu("v_bfe_u32", t1, vi, 2, 1), valu("v_lshl_add_u32", t0, t1, 12, t0), valu("v_add_u32", kaddr[0], 32768, t0))
    for s in range(1, 4): E(valu("v_xor_b32", kaddr[s], s << 6, kaddr[0]), valu("v_xor_b32", qa[s], s << 6, qa[0]))
    E(valu("v_lshrrev_b32", t1, 2, vi), valu("v_and_b32", t2, 1, vu), valu("v_lshl_add_u32", t0, t2, 2, t1),
      valu("v_lshlrev_b32", t0, 5, t0), valu("v_lshl_add_u32", t0, t1, 8, t0), valu("v_lshl_add_u32", t0, t2, 12, t0),
      valu("v_lshrrev_b32", t2, 1, vu), valu("v_lshl_add_u32", t0, t2, 11, t0),
      valu("v_and_b32", t1, 3, vi), valu("v_lshl_add_u32", t0, t1, 3, t0), valu("v_add_u32", vaddr[0], 1024, t0))
    for t in range(1, 8): E(valu("v_xor_b32", vaddr[t], t << 5, vaddr[0]))
    E(valu("v_lshlrev_b32", vlin, 4, vl), valu("v_mov_b32", t0, "0x3f803f80"))
    for r in range(4): E(valu("v_accvgpr_write_b32", ones[r], t0), valu("v_mov_b32", zero4[r], 0))
    E(zero_mfmas(), more(O_.n0 - 10))
    E(stamp_now())
    E(comment("---- first K tile"), wait(vm=[aK(0)]), barrier())
    for a in range(2):
        for s in range(4): E(kread(0, a, s, F(4*a + s), 0))
    first, _ = sm_split(0)
    rawr = lambda s: V(72 + 4*s, 4)
    for b in range(NB):
        E(comment(f"---- start-up block {b}"), stamp_now() if O_.probe else None, wait(vm=blk(aQ, 0, b)), stamp_now() if O_.probe else None)
        for s in range(4): E(ds_read("ds_read_b128", rawr(s), qa[s], b*4096, blk(aQ, 0, b)))
        for s in range(4):
            E(wait(lgkm=[rawr(s)] + ([F(k) for k in range(8)] if b == 0 else [])))
            E(more(1), scale_frag(rawr(s), Qreg(b, s), V(88, 8), Sreg(b, s & 1)))
        E(qk_first(b), more(O_.nper - 4))
        if b == NB - 1:
            E(stamp_now() if O_.probe else None, wait(vm=[aK(1)]), barrier(), stamp_now() if O_.probe else None)
            for s in range(4): E(kread(1, 0, s, F(s), 1))
        mx, sub = rowmax_ops([b])
        E(mx, sub, delay_cvts([x for bb, x in first if bb == b]))
    E(more(99), salu("s_mov_b32", "m0", sM0), salu("s_mov_b32", sKVoff, 4*8192), kv_dmas(2))
    E(salu("s_mov_b32", sSide, 98304), salu("s_mov_b32", sCnt, 7), wait(lgkm=[F(s) for s in range(4)]))
    if O_.itst: E(salu("s_mov_b32", S(5), 0))
    E(stamp_now())

def o_reads(h, pf, dst, off):
    o = []
    for i in range(4):
        ad = vsd1 if i & 1 else vsd0
        if i >> 1: o += [ds_read("ds_read_b64", dst[i][0:2], ad, off + i*1024 + 8, pf(i)), ds_read("ds_read_b64", dst[i][2:4], ad, off + i*1024, pf(i))]
        else: o.append(ds_read("ds_read_b128", dst[i], ad, off + i*1024, pf(i)))
    return o

def pv_mfmas(par, frags):
    mf = []
    for t in range(8):
        for b in range(NB): mf.append(mfma(Oreg(b, t), frags[t], Preg(par, b), Oreg(b, t)))
        if t < NB: mf.append(mfma(lacc(t), ones, Preg(par, t), lacc(t)))
    return mf

def side_O(sc, rlo, slo):
    j0 = 2*O_.nC
    pf = lambda i: (lambda c: aO(0, 4*(c["J"] - 16 - j0) + i))
    g = sc.chain(o_reads(0, pf, X, 0), rlo)
    g = sc.place(wait(lgkm=X[:4]), max(g + 6, slo))
    g2 = sc.chain([vstore(X[i], vlin, sO, sSide, i*1024, O_.st_flags) for i in range(4)], g + 1, step=3)
    sc.chain([valu("v_add_u32", vsd0, 4096, vsd0), valu("v_add_u32", vsd1, 4096, vsd1)], g)
    sc.place(salu("s_add_u32", sSide, sSide, 4096), g2 + 1)

def iteration(par, side, ctl):
    mf = [mfma(Sreg(b, a), F(4*a + s), Qreg(b, s), negM(b) if s == 0 else Sreg(b, a)) for a in range(2) for b in range(NB) for s in range(4)]
    mf += pv_mfmas(par, [F(t) for t in range(8)])
    sc = Sched(mf)
    place_sm(sc, sm_split(par)[1], 0)
    place_sm(sc, sm_split(1 - par)[0], 24)
    sc.put(101, ctl)
    sc.chain([kread(1, 1, s, F(4 + s), 1 - par) for s in range(4)], 1)
    sc.put(22, wait(vm=[rV(0), rK(2)], lgkm=0)); sc.put(23, barrier()); sc.cap[23] = 0
    if O_.itst:
        x = [raw("s_memrealtime s[42:43]", "smem", (), rs(S(42, 2)), last=True), wait(lgkm=0),
             raw("s_lshl_b64 exec, 1, s5"), Inst("v_mov_b32 v143, s42", "valu", rs(S(42)), rs(V(143))), raw("s_mov_b64 exec, -1"), salu("s_add_u32", S(5), S(5), 1)]
        for y in x: y.m["last"] = True
        sc.put(23, x)
    if par == 0:
        sc.put(21, salu("s_add_u32", "m0", sM0, 16384)); sc.put(22, salu("s_xor_b32", sM0, sM0, 32768))
        sc.chain([valu("v_xor_b32", r, 32768, r) for r in kaddr], 9, 21, step=0)
    else: sc.put(21, salu("s_mov_b32", "m0", sM0))
    sc.place(salu("s_add_u32", sKVoff, sKVoff, 8192), 9, 21)
    ops = kv_dmas(3); vr = [vread(0, t, a, F(t), par) for t in range(4) for a in range(2)]
    seq = []
    for k in range(4): seq += [ops[k]] + vr[2*k:2*k + 2]
    sc.chain(seq, 25, 47)
    gv = sc.chain([vread(0, t, a, F(t), par) for t in range(4, 8) for a in range(2)], 49)
    sc.chain([kread(2, 0, s, F(s), par) for s in range(4)], 77)
    sc.place(wait(lgkm=[F(0), F(1)]), 45, 47)
    sc.place(wait(lgkm=[F(2), F(3)]), 57, 61)
    sc.place(wait(lgkm=[F(4), F(5), F(6), F(7)]), 73, 75)
    sc.place(wait(lgkm=[F(s) for s in range(4)]), 97, 101)
    if side == "Q" and par == 0:
        pf = lambda k: (lambda c: aQ(1, 3*(c["J"]//2) + k))
        g = sc.place(salu("s_add_u32", "m0", sSide, sQd), 49)
        g = sc.chain([dma(vsd1 if k & 1 else vsd0, sQ, sSide, k*1024, pf(k), O_.fq) for k in range(3)], gv + 1, step=3)
        sc.chain([salu("s_add_u32", sSide, sSide, 3072), valu("v_xor_b32", vsd0, 128, vsd0), valu("v_xor_b32", vsd1, 128, vsd1)], g + 1, step=0)
    if side == "O": side_O(sc, 9, 65)
    if par == 1: sc.chain([valu("v_xor_b32", r, 32768, r) for r in vaddr], gv + 1, 100, step=0)
    sc.emit()

def br(text): return raw(text, "salu", {"scc"}, (), last=True)
def dec():
    x = salu("s_sub_u32", sCnt, sCnt, 1); x.m["last"] = True; return x
def loop(name, side, J0, n_iter):
    e = seg(name + "_even"); E(raw(".p2align 3", "label"), label(f"L_{name}"))
    if n_iter & 1:
        iteration(0, side, [dec(), br(f"s_cbranch_scc1 L_{name}_exit")])
        o = seg(name + "_odd"); iteration(1, side, [br(f"s_branch L_{name}")]); E(label(f"L_{name}_exit"))
    else:
        iteration(0, side, [])
        o = seg(name + "_odd"); iteration(1, side, [dec(), br(f"s_cbranch_scc0 L_{name}")])
    for k in range(n_iter): path.append((o if k & 1 else e, {"J": J0 + k}))

def o_addr_ops(t0, t1, t2, first):
    o = []
    if first:
        o += [valu("v_lshrrev_b32", t0, 9, vlin), valu("v_bfe_u32", t1, vlin, 4, 3), valu("v_xor_b32", t0, t0, t1),
              valu("v_lshlrev_b32", t0, 4, t0), valu("v_lshrrev_b32", t1, 8, vlin), valu("v_lshrrev_b32", t2, 7, vlin),
              valu("v_xor_b32", t2, t1, t2), valu("v_and_b32", t2, 1, t2), valu("v_lshl_add_u32", t0, t2, 3, t0),
              valu("v_bfe_u32", t2, vlin, 4, 4), valu("v_lshl_add_u32", t0, t2, 8, t0), valu("v_add_u32", qa[0], sStg, t0)]
        o += [valu("v_xor_b32", qa[k], k << 5, qa[0]) for k in range(1, 4)]
    o += [valu("v_lshrrev_b32", t1, 4, vlin), valu("v_and_b32", t1, "0x30", t1), valu("v_xor_b32", t1, t1, vlin),
          valu("v_add_u32", vsd0, sStg, t1), valu("v_xor_b32", vsd1, 64, vsd0)]
    return o
def l_ops(h, rl, t1):
    o = [valu("v_accvgpr_read_b32", rl[b][1], lacc(b)[0]) for b in range(NB)]
    o += [valu("v_rcp_f32", rl[b][0], rl[b][1]) for b in range(NB)]
    o.append(valu("v_add_f32", t1, rl[0][1], rl[1][1]))
    o += [valu("v_add_f32", t1, t1, rl[b][1]) for b in range(2, NB)]
    o += [Inst(f"v_cmp_nlt_f32 {sCmp}, {t1}, {sThr}", "valu", rs(t1, sThr), rs(sCmp)),
          nop(0), scmp("s_cmp_lg_u64", sCmp, 0), salu("s_cselect_b32", sT0, 1 << h, 0), salu("s_or_b32", sFlag, sFlag, sT0)]
    return o
def epi_tiles(h, b, ts, rl, w, y, pk=True):
    o = []
    for k, t in enumerate(ts):
        r = Oreg(b, t)
        if r.k == "a": o += [valu("v_accvgpr_read_b32", w[4*k + i], r[i]) for i in range(4)]
    for k, t in enumerate(ts):
        r = Oreg(b, t); src = r if r.k == "v" else w[4*k:4*k + 4]
        if pk: o += [valu("v_pk_mul_f32", w[4*k + 2*i:4*k + 2*i + 2], src[2*i:2*i + 2], rl[b], mods="op_sel_hi:[1,0]") for i in range(2)]
        else: o += [valu("v_mul_f32", w[4*k + i], src[i], rl[b][0]) for i in range(4)]
    o += [valu("v_cvt_pk_bf16_f32", y[k], w[2*k], w[2*k + 1]) for k in range(2*len(ts))]
    o += [ds_write("ds_write_b64", qa[t & 3], y[2*k:2*k + 2], b*4096 + (t >> 2)*128, blk(aO, h, b)) for k, t in enumerate(ts)]
    return o

def last_head(sc_fill, vf):
    E(wait(vm=[rV(0), rK(2)]), barrier())
    vr = [vread(0, t, a, vf[t], 1) for t in range(8) for a in range(2)]
    E(vr[:4], delay_cvts([x for _, x in sm_split(1)[1]]), wait(lgkm=[vf[0]]))
    sc = Sched(pv_mfmas(1, vf))
    gv = sc.chain(vr[4:], 0)
    sc.place(wait(lgkm=[vf[1]]), 5, 6); sc.place(wait(lgkm=[vf[2], vf[3]]), 12, 13); sc.place(wait(lgkm=vf[4:]), 24, 27)
    rest = sc_fill(sc, gv)
    sc.emit()
    return rest

def transition():
    s = seg("trans"); path.append((s, {"J": 15}))
    E(stamp_now(), comment("---- head 0 last tile + head switch"))
    vf = X[:4] + [F(4), F(5), F(6), X[4]]
    rawr = lambda n: V(4*(n % 8), 4)
    def qrd(n):
        b, s_ = divmod(n, 4)
        return ([wait(vm=blk(aQ, 1, b))] if s_ == 0 else []) + [ds_read("ds_read_b128", rawr(n), qa[s_], b*4096, blk(aQ, 1, b))]
    NSH = 3
    def fill(sc, gv):
        g = gv + 1
        for n in range(8):
            for x in qrd(n): g = sc.place(x, g) + 1
        sc.chain([valu("v_xor_b32", r, 32768, r) for r in vaddr], gv + 1, step=0)
        sc.place(kread(1, 1, 3, F(7), 0), g)
        for k in range(3): sc.place(kread(1, 1, k, F(4 + k), 0), 35 + 7*k - (k == 2))
        st = []
        for n in range(NSH): st += [wait(lgkm=[rawr(n)])] + scale_frag(rawr(n), Qreg(*divmod(n, 4)), V(32, 8), V(40 + 4*(n & 1), 4), pk=False)
        return sc.pour(st, gv + 7)
    E(last_head(fill, vf))
    for n in range(NSH): E(qrd(8 + n))
    for n in range(NSH, 24):
        E(wait(lgkm=[rawr(n)]), scale_frag(rawr(n), Qreg(*divmod(n, 4)), V(32, 8), V(40 + 4*(n & 1), 4)))
        if n == NSH:
            E(wait(lgkm=[F(k) for k in range(8)]), barrier(), salu("s_mov_b32", "m0", sM0), salu("s_add_u32", sKVoff, sKVoff, 8192), kv_dmas(3))
        if n + 8 < 24: E(qrd(n + 8))
    E(stamp_now(), comment("---- S(0) of head 1 over the epilogue of head 0"))
    rl = [V(96 + 2*b, 2) for b in range(NB)]; t0, t1, t2 = V(108), V(109), V(110)
    E(l_ops(0, rl, t1))
    sc = Sched([m for b in range(NB) for m in qk_first(b)])
    tiles = [(b, t) for b in reversed(range(NB)) for t in range(8)]
    st = o_addr_ops(t0, t1, t2, True); NT = 7
    for k, (b, t) in enumerate(tiles[:NT]): st += epi_tiles(0, b, [t], rl, V(48 + 4*(k % 4), 4), V(80 + 2*(k % 8), 2), pk=False)
    for s_ in range(4): sc.place(kread(2, 0, s_, F(s_), 1), 44 + s_)
    rest = sc.pour(st, 0); sc.emit(); E(rest)
    todo = tiles[NT:]; k = 0
    while todo:
        b = todo[0][0]; ts = [t for bb, t in todo[:4] if bb == b]; todo = todo[len(ts):]
        E(epi_tiles(0, b, ts, rl, V(48 + 16*(k % 2), 16), V(80 + 8*(k % 2), 8))); k += 1
    E(stamp_now(), comment("---- row max stand-in, first softmax part, clear accumulators"))
    mx, sub = rowmax_ops(range(NB))
    z = zero_mfmas()
    if O_.itst: E(valu("v_accvgpr_write_b32", X[0][0], V(143)), valu("v_mov_b32", V(143), 0))
    sc = Sched(z[:13]); rest = sc.pour(mx, 0); sc.emit(); E(rest, z[13:], sub)
    if O_.itst: E(valu("v_accvgpr_read_b32", V(143), X[0][0]))
    E(delay_cvts([x for _, x in sm_split(0)[0]]))
    E(salu("s_mov_b32", sSide, 0), salu("s_mov_b32", sCnt, O_.nC - 1), wait(lgkm=[F(s_) for s_ in range(4)]))
    E(stamp_now())

def final():
    s = seg("final"); path.append((s, {"J": 31}))
    E(stamp_now(), comment("---- head 1 last tile + epilogue"))
    nB = 15 - 2*O_.nC
    def fill(sc, gv):
        if nB < 6: side_O(sc, gv + 1, 0)
        return []
    E(wait(lgkm=0))
    last_head(fill, [F(t) for t in range(8)])
    rl = [V(96 + 2*b, 2) for b in range(NB)]; t0, t1, t2 = V(108), V(109), V(110)
    E(stamp_now(), o_addr_ops(t0, t1, t2, False), l_ops(1, rl, t1))
    def st(b):
        dst = [F((4*b + i) % 8) for i in range(4)]
        return [salu("s_mov_b32", sSide, 98304 + b*4096), wait(lgkm=dst)] + [vstore(dst[i], vlin, sO, sSide, i*1024, O_.fin_flags) for i in range(4)]
    for b in range(NB):
        for th in range(2):
            E(epi_tiles(1, b, range(4*th, 4*th + 4), rl, V(48 + 16*th, 16), V(80 + 8*th, 8)))
            if th == 0 and b > 0: E(st(b - 1))
        E(o_reads(1, lambda i: aO(1, 4*b + i), [F((4*b + i) % 8) for i in range(4)], b*4096))
    E(st(NB - 1), stamp_now())
    if O_.diag:
        a, b = [int(x) for x in O_.diag.split(":")]
        E(wait(vm=0), raw("s_memrealtime s[42:43]", "smem", (), rs(S(42, 2))), wait(lgkm=0), salu("s_mov_b32", S(47), S(42)),
          salu("s_sub_u32", sT0, S(STAMP0 + b), S(STAMP0 + a)), salu("s_lshr_b32", sT0, sT0, 3 if O_.stamps == 1 else 0), salu("s_add_u32", sT0, sT0, 7000),
          label("L_spin"), raw("s_memrealtime s[42:43]", "smem", (), rs(S(42, 2))), wait(lgkm=0),
          salu("s_sub_u32", S(42), S(42), S(46)), scmp("s_cmp_lt_u32", S(42), sT0), raw("s_cbranch_scc1 L_spin", "salu", {"scc"}))
    elif O_.stamps:
        E(wait(vm=0), raw("s_memrealtime s[42:43]", "smem", (), rs(S(42, 2))), wait(lgkm=0), salu("s_mov_b32", S(47), S(42)))
        E(salu("s_lshl_b32", sT0, S(2), 2), salu("s_add_u32", sT0, sT0, sW), salu("s_lshl_b32", sT0, sT0, 8))
        E(valu("v_mov_b32", V(1), sT0))
        for k in range(nstamp[0] + 2):
            E(valu("v_mov_b32", V(2), S(46 + k)),
              Inst(f"global_store_dword v1, v2, s[44:45] offset:{4*k}", "vst", rs(V(1), V(2), S(44, 2)), (), data=set()), nop(1))
    if O_.itst:
        E(valu("v_lshrrev_b32", V(2), 2, vlin), valu("v_add_u32", V(1), V(1), V(2)), valu("v_add_u32", V(1), 1 << 20, V(1)),
          Inst("global_store_dword v1, v143, s[44:45]", "vst", rs(V(1), V(143), S(44, 2)), (), data=set()),
          raw("s_getreg_b32 s42, hwreg(HW_REG_XCC_ID)", "salu", (), rs(S(42))), valu("v_mov_b32", V(1), sT0), valu("v_mov_b32", V(2), S(42)),
          Inst("global_store_dword v1, v2, s[44:45] offset:252", "vst", rs(V(1), V(2), S(44, 2)), (), data=set()))
    E(label("L_end"))

def build():
    s = seg("start"); path.append((s, {"J": 0})); startup()
    loop("A", "Q", 0, 15)
    transition()
    loop("C", None, 16, 2*O_.nC)
    nB = 15 - 2*O_.nC
    assert nB in (5,), "side-O schedule expects 5 loop iterations + the last tile"
    s = seg("CB"); path.append((s, {"J": 0})); E(stamp_now(), salu("s_mov_b32", sCnt, nB // 2), pad_vm(12))
    loop("B", "O", 16 + 2*O_.nC, nB)
    final()
    def trace(): return [(i, mkctx(c)) for sidx, c in path for i in segs[sidx][1]]
    for rnd in range(4):
        fix = {}
        resolve_and_check(trace(), fix=fix)
        if not fix: break
        for sg in segs:
            new = []
            for i in sg[1]:
                if id(i) in fix: new.append(nop(fix[id(i)] - 1))
                new.append(i)
            sg[1][:] = new
    resolve_and_check(trace(), verbose=True)
    if O_.stamps:
        tr = [i for i, _ in trace()]; cuts = [k for k, i in enumerate(tr) if i.kind == "smem" and "s[42:43]" in i.text]
        print("  est between stamps:", [cost_estimate(tr[a:b]) for a, b in zip(cuts, cuts[1:])])
    for name, ins in segs: print(f"  seg {name:8s} insts {len(ins):5d} est cycles {cost_estimate(ins):6d} nops {sum(1 for i in ins if i.kind == 'nop')}")

HEAD = """; MHA forward, B=16 H=32 Sq=384 Sk=512 D=128, bf16.  Generated by gen/gen2.py
; @launch grid=(256,1,1) block=(256,1,1) lds=163840
.amdgcn_target "amdgcn-amd-amdhsa--gfx950"
.text
.globl standalone__mha_softmax__near_ridge_kernel
.p2align 8
.type standalone__mha_softmax__near_ridge_kernel,@function
standalone__mha_softmax__near_ridge_kernel:
"""
TAIL = """    s_endpgm
.section .rodata,"a"
.p2align 6
.amdhsa_kernel standalone__mha_softmax__near_ridge_kernel
  .amdhsa_next_free_vgpr 512
  .amdhsa_next_free_sgpr 102
  .amdhsa_accum_offset 256
  .amdhsa_group_segment_fixed_size 0
  .amdhsa_kernarg_size 48
  .amdhsa_user_sgpr_count 2
  .amdhsa_user_sgpr_kernarg_segment_ptr 1
  .amdhsa_system_sgpr_workgroup_id_x 1
.end_amdhsa_kernel
"""
if __name__ == "__main__":
    out = sys.argv[1]
    for a in sys.argv[2:]:
        k, v = a.split("=")
        c = getattr(O_, k)
        setattr(O_, k, (v not in ("0", "False")) if isinstance(c, bool) else type(c)(v))
    build()
    body = "\n".join((i.text if i.kind == "label" else "    " + i.text) for _, ins in segs for i in ins)
    open(out, "w").write(HEAD + body + "\n" + TAIL)
```

```python
class Reg:
    __slots__ = ("k", "i", "n")
    def __init__(s, k, i, n=1): s.k, s.i, s.n = k, i, n
    def __str__(s): return f"{s.k}{s.i}" if s.n == 1 else f"{s.k}[{s.i}:{s.i+s.n-1}]"
    __repr__ = __str__
    def set(s): return {f"{s.k}{s.i+j}" for j in range(s.n)}
    def __getitem__(s, j):
        if isinstance(j, slice):
            a = j.start or 0; b = s.n if j.stop is None else j.stop
            assert 0 <= a < b <= s.n
            return Reg(s.k, s.i + a, b - a)
        assert 0 <= j < s.n
        return Reg(s.k, s.i + j, 1)
def V(i, n=1): return Reg("v", i, n)
def A(i, n=1): return Reg("a", i, n)
def S(i, n=1): return Reg("s", i, n)
def rs(*xs):
    o = set()
    for x in xs:
        if isinstance(x, Reg): o |= x.set()
        elif isinstance(x, str) and x in ("m0", "vcc", "scc", "exec"): o.add(x)
    return o

class Inst:
    def __init__(s, text, kind, rd=(), wr=(), **m):
        s.text, s.kind, s.rd, s.wr, s.m = text, kind, set(rd), set(wr), m
    def __repr__(s): return s.text

TRANS = ("v_exp_f32", "v_rcp_f32", "v_log_f32", "v_rsq_f32", "v_sqrt_f32")
def valu(op, d, *src, mods="", rmw=False, extra_rd=(), extra_wr=()):
    t = f"{op} {d}, " + ", ".join(str(x) for x in src) + (" " + mods if mods else "")
    kind = "trans" if op in TRANS else "valu"
    rd = rs(*src) | set(extra_rd)
    if rmw: rd |= rs(d)
    return Inst(t, kind, rd, rs(d) | set(extra_wr), op=op)
def swap(op, x, y):
    return Inst(f"{op} {x}, {y}", "valu", rs(x, y), rs(x, y), op=op, perm=True)
def mfma(d, a, b, c, big=False):
    op = "v_mfma_f32_32x32x16_bf16" if big else "v_mfma_f32_16x16x32_bf16"
    assert d.n == (16 if big else 4) and a.n == 4 and b.n == 4
    if isinstance(c, Reg): assert c.k == d.k and c.n == d.n
    return Inst(f"{op} {d}, {a}, {b}, {c}", "mfma", rs(a, b, c), rs(d), big=big, d=str(d), c=str(c),
                ab=rs(a, b), cs=rs(c))
def salu(op, d, *src):
    t = f"{op} {d}" + "".join(f", {x}" for x in src)
    wr = rs(d)
    if op not in ("s_mov_b32", "s_mov_b64", "s_mul_i32", "s_getpc_b64", "s_cselect_b32", "s_mul_hi_u32"): wr = wr | {"scc"}
    rd = rs(*src)
    if op in ("s_addc_u32", "s_subb_u32", "s_cselect_b32"): rd.add("scc")
    return Inst(t, "salu", rd, wr)
def scmp(op, a, b): return Inst(f"{op} {a}, {b}", "salu", rs(a, b), {"scc"})
def raw(text, kind="salu", rd=(), wr=(), **m): return Inst(text, kind, rd, wr, **m)
def nop(n): return Inst(f"s_nop {n}", "nop", w=n + 1)
def label(n): return Inst(f"{n}:", "label")
def comment(t): return Inst(f"; {t}", "label")
def ds_read(op, d, addr, off, reg=None):
    assert 0 <= off < 65536
    return Inst(f"{op} {d}, {addr}" + (f" offset:{off}" if off else ""), "dsr", rs(addr), rs(d), reg=reg)
def ds_write(op, addr, data, off, reg=None):
    assert 0 <= off < 65536
    return Inst(f"{op} {addr}, {data}" + (f" offset:{off}" if off else ""), "dsw", rs(addr, data), (), reg=reg)
def dma(voff, srd, soff, imm, reg, flags="nt"):
    assert 0 <= imm < 4096
    return Inst(f"buffer_load_dwordx4 {voff}, {srd}, {soff} offen" + (f" offset:{imm}" if imm else "") + f" {flags} lds",
                "dma", rs(voff, srd, soff, "m0"), (), reg=reg)
def gdma(voff, base, imm, reg, flags="nt"):
    assert 0 <= imm < 4096
    return Inst(f"global_load_lds_dwordx4 {voff}, {base}" + (f" offset:{imm}" if imm else "") + f" {flags}",
                "dma", rs(voff, base, "m0"), (), reg=reg, glob=True)
def gload(d, voff, base, imm):
    return Inst(f"global_load_dwordx4 {d}, {voff}, {base}" + (f" offset:{imm}" if imm else ""), "vld", rs(voff, base), rs(d))
def vload(d, voff, srd, soff, imm, flags=""):
    return Inst(f"buffer_load_dwordx4 {d}, {voff}, {srd}, {soff} offen" + (f" offset:{imm}" if imm else "") + f" {flags}",
                "vld", rs(voff, srd, soff), rs(d))
def vstore(data, voff, srd, soff, imm, flags="", op="buffer_store_dwordx4"):
    assert 0 <= imm < 4096
    return Inst(f"{op} {data}, {voff}, {srd}, {soff} offen" + (f" offset:{imm}" if imm else "") + f" {flags}",
                "vst", rs(data, voff, srd, soff), (), data=rs(data))
def wait(vm=None, lgkm=None):
    return Inst("s_waitcnt ?", "wait", vm=vm, lgkm=lgkm)
def barrier(): return Inst("s_barrier", "barrier")

class CheckError(Exception): pass

def resolve_and_check(trace, verbose=False, fix=None):
    def absreg(inst, ctx):
        r = inst.m.get("reg")
        return None if r is None else ctx(r)
    for inst, ctx in trace:
        if inst.kind == "wait": inst.m["nvm"] = None; inst.m["nlg"] = None
    for rnd in range(2):
        vq, lq = [], []
        for inst, ctx in trace:
            k = inst.kind
            if k in ("dma", "vld", "vst"): vq.append((inst, absreg(inst, ctx)))
            elif k in ("dsr", "dsw"): lq.append(inst)
            elif k == "smem": lq.append(inst); lq.append(inst)
            elif k == "wait":
                vm, lg = inst.m["vm"], inst.m["lgkm"]
                if vm is not None:
                    if isinstance(vm, int): n = vm
                    else:
                        keys = [ctx(x) for x in vm if not isinstance(x, Reg)]
                        regs = rs(*[x for x in vm if isinstance(x, Reg)])
                        n = 63
                        for idx, (q, ar) in enumerate(vq):
                            if (ar is not None and ar in keys) or (q.wr & regs): n = min(n, len(vq) - 1 - idx)
                    o = inst.m["nvm"]; inst.m["nvm"] = n if o is None else min(o, n)
                    n = inst.m["nvm"]
                    if len(vq) > n: vq = vq[len(vq) - n:]
                if lg is not None:
                    if isinstance(lg, int): n = lg
                    else:
                        regs = rs(*lg); n = 15
                        for idx, q in enumerate(lq):
                            if q.wr & regs: n = min(n, len(lq) - 1 - idx)
                        if any(q.kind == "smem" for q in lq): n = 0
                    o = inst.m["nlg"]; inst.m["nlg"] = n if o is None else min(o, n)
                    n = inst.m["nlg"]
                    if len(lq) > n: lq = lq[len(lq) - n:]
    for inst, ctx in trace:
        if inst.kind == "wait":
            p = []
            if inst.m["nvm"] is not None: p.append(f"vmcnt({inst.m['nvm']})")
            if inst.m["nlg"] is not None: p.append(f"lgkmcnt({inst.m['nlg']})")
            inst.text = "s_waitcnt " + " ".join(p)
    errs = []
    def err(i, msg): errs.append(f"[{i}] {trace[i][0].text}: {msg}")
    vq, lq = [], []
    region = {}
    epoch = 0
    hist = []
    pos = 0
    maxv = maxl = 0
    for i, (inst, ctx) in enumerate(trace):
        k = inst.kind
        if k == "label": continue
        touched = inst.rd | inst.wr
        for q in lq:
            if q[0].wr & touched: err(i, f"touches pending lgkm dest of '{q[0].text}'")
        for q in vq:
            if q[0].wr & touched: err(i, f"touches pending vm dest of '{q[0].text}'")
        for (pp, p) in reversed(hist):
            d = pos - pp
            if d > 20: break
            need = 0; why = ""
            pk = p.kind
            if pk in ("valu", "trans"):
                vw = {r for r in p.wr if r[0] in "va" and r != "vcc"}
                sw = {r for r in p.wr if r[0] == "s" or r == "vcc"} - {"scc"}
                if k == "mfma" and vw & inst.rd: need, why = 2, "valu->mfma"
                if k in ("valu", "trans") and pk == "trans" and vw & inst.rd: need, why = max(need, 1), "trans->valu"
                if inst.m.get("perm") and vw & inst.rd: need, why = max(need, 2), "valu->permlane"
                if inst.m.get("op") in ("v_readfirstlane_b32", "v_readlane_b32") and vw & inst.rd: need, why = max(need, 1), "valu->readlane"
                if k in ("valu", "trans") and sw & inst.rd: need, why = max(need, 2), "valu sgpr->valu"
                if k in ("dma", "vld", "vst") and sw & inst.rd: need, why = max(need, 5), "valu sgpr->vmem"
                if "exec" in p.wr and k == "mfma": need, why = max(need, 4), "exec->mfma"
            if pk == "mfma":
                big = p.m["big"]
                if k == "mfma":
                    if p.wr & inst.m["ab"]: need, why = (12 if big else 8), "mfma D->AB"
                    if p.wr & inst.m["cs"] and not (p.m["d"] == inst.m["c"] and big == inst.m["big"]):
                        need, why = max(need, 10 if big else 6), "mfma D->C overlap"
                    if p.wr & inst.wr and not (p.m["d"] == inst.m["c"] and big == inst.m["big"]) and big != inst.m["big"]:
                        need, why = max(need, 10), "mfma WAW shape"
                elif k in ("valu", "trans", "dsr", "dsw", "dma", "vld", "vst"):
                    if p.wr & touched: need, why = (12 if big else 8), "mfma D->other"
                    if p.m["cs"] & inst.wr: need, why = max(need, 7 if big else 3), "mfma C WAR"
            if pk == "salu" and "m0" in p.wr and k == "dma": need, why = 1, "m0->dma"
            if pk == "vst" and p.m["data"] & inst.wr: need, why = 2, "store data WAR"
            if need > d:
                if fix is not None: fix[id(inst)] = max(fix.get(id(inst), 0), need - d)
                else: err(i, f"hazard {why} after '{p.text}': have {d} need {need}")
        ar = absreg(inst, ctx)
        if k == "dma":
            phys, content, shared = ar
            st = region.setdefault(phys, dict(content=None, pend=0, vis=True, rd_out=0, rd_epoch=-1))
            if st["content"] != content:
                if st["rd_out"]: err(i, f"DMA into {phys} with reads outstanding")
                if shared and st["rd_epoch"] >= epoch: err(i, f"DMA into {phys}: last reads not separated by a barrier")
                if st["pend"]: err(i, f"DMA into {phys} over pending DMA of other content")
            st["content"] = content; st["pend"] += 1; st["vis"] = False; st["shared"] = shared
            vq.append((inst, phys))
        elif k in ("vld", "vst"): vq.append((inst, None))
        elif k == "dsr":
            ph = []
            if ar is not None:
                for (phys, content, shared) in (ar if isinstance(ar, list) else [ar]):
                    st = region.get(phys)
                    if st is None or st["content"] != content: err(i, f"reads {phys} expecting {content}, has {st and st['content']}")
                    elif st["pend"] or not st["vis"]: err(i, f"reads {phys} before visible (pend={st['pend']})")
                    if st is not None: st["rd_out"] += 1; ph.append(phys)
            lq.append((inst, ph))
        elif k == "dsw":
            if ar is not None:
                for (phys, content, shared) in (ar if isinstance(ar, list) else [ar]):
                    st = region.setdefault(phys, dict(content=None, pend=0, vis=True, rd_out=0, rd_epoch=-1))
                    assert not shared
                    if st["pend"]: err(i, f"ds_write into {phys} with DMA pending")
                    st["content"] = content; st["vis"] = True; st["shared"] = False
            lq.append((inst, []))
        elif k == "smem": lq.append((inst, [])); lq.append((inst, []))
        elif k == "wait":
            n = inst.m["nvm"]
            if n is not None:
                while len(vq) > n:
                    q, phys = vq.pop(0)
                    if phys is not None:
                        st = region[phys]; st["pend"] -= 1
                        if st["pend"] == 0 and not st["shared"]: st["vis"] = True
            n = inst.m["nlg"]
            if n is not None:
                if n > 0 and any(q[0].kind == "smem" for q in lq): err(i, "counted lgkm wait with smem outstanding")
                while len(lq) > n:
                    q, ph = lq.pop(0)
                    for phys in ph:
                        region[phys]["rd_out"] -= 1; region[phys]["rd_epoch"] = epoch
        elif k == "barrier":
            epoch += 1
            for st in region.values():
                if st["pend"] == 0: st["vis"] = True
        maxv = max(maxv, len(vq)); maxl = max(maxl, len(lq))
        if len(vq) > 63: err(i, "vmcnt overflow")
        w = inst.m.get("w", 1)
        pos += w
        hist.append((pos, inst))
        if len(hist) > 40: hist.pop(0)
    if verbose: print(f"trace {len(trace)} insts, max vm {maxv}, max lgkm {maxl}, barriers {epoch}")
    if errs:
        raise CheckError("\n".join(errs[:40]) + f"\n({len(errs)} errors)")


def cost_estimate(insts):
    t = 0; mf_free = 0; prev = None; valu_end = -99
    for x in insts:
        k = x.kind
        if k == "label": continue
        if k == "mfma":
            t = max(t, mf_free); mf_free = t + (32 if x.m["big"] else 16); t += 8
        elif k == "trans" or x.m.get("perm"): t += 8; valu_end = t
        elif k == "nop": t += 4 * x.m["w"]
        elif k in ("dsr", "dsw"):
            t = max(t, valu_end + 8) + (8 if prev == "dsr" else 4) + (8 if k == "dsw" else 0)
        elif k in ("dma", "vld", "vst"):
            t = max(t, valu_end + 12) + (24 if k == "vst" else (8 if x.m.get("glob") else 12))
        elif k == "barrier": t += 30
        elif k == "valu":
            if x.m.get("op", "").startswith("v_pk_"): t = max(t, mf_free + 4)
            t += 4; valu_end = t
        else: t += 4
        prev = k
    return max(t, mf_free)
```

```python
import sys, math, struct
from ir import *

class Opt:
    stamps = 0
    st_flags = "sc1"
    fin_flags = "sc1"
    fq = "nt"
    fk = "nt"
    fv = "nt"
    prefetch_code = True
    probe = 0
    ones4 = 1
    pvb = 0
    la = 2
    waitall = 0
    pf2 = True
    dq = -1
    itst = 0
    diag = ""
    stag = ""
    stagbit = 3
    n0 = 14
    nper = 4
    qpp = 2
    c1 = 6
    r1 = 2
    r2 = 0
    olate = "4440"
O_ = Opt()

NB = 6
def f32bits(x): return struct.unpack("<I", struct.pack("<f", x))[0]
CSCALE = f32bits(math.log2(math.e) / math.sqrt(128.0))
THRESH = f32bits(2.0 ** 40)

def Sreg(b, a): return V(8*b + 4*a, 4)
def Preg(par, b): return V(48 + 24*par + 4*b, 4)
def negM(b): return V(96 + 4*b, 4)
kaddr = [V(120 + s) for s in range(4)]
vaddr = [V(124 + t) for t in range(8)]
vkv = V(132); vsd0 = V(133); vsd1 = V(134); vlin = V(135)
qa = [V(136 + s) for s in range(4)]
zero4 = V(140, 4)
def Oreg(b, t):
    n = 8*b + t
    return V(144 + 4*n, 4) if n < 28 else A(176 + 4*(n - 28), 4)
def Qreg(b, s): return A(16*b + 4*s, 4)
def F(i): return A(96 + 4*i, 4)
def lacc(b): return A(128 + 4*b, 4)
ones = A(152, 4)
X = [A(156 + 4*k, 4) for k in range(5)]
sQ, sK, sV, sO = S(12, 4), S(16, 4), S(20, 4), S(24, 4)
sW = S(28); sKVoff = S(29); sM0 = S(30); sStg = S(31); sSide = S(32); sT0 = S(33); sT1 = S(34); sT2 = S(35)
sFlag = S(36); sThr = S(37); sC = S(38, 2); sCmp = S(40, 2); sStamp = S(42, 2); sCnt = S(3); sQd = S(4)
STAMP0 = 48

def aK(J): return (("ring", (J - 2) % 4, "K"), ("K", J), True)
def aV(J): return (("ring", J % 4, "V"), ("V", J), True)
def rK(d): return lambda c: aK(c["J"] + d)
def rV(d): return lambda c: aV(c["J"] + d)
def aQ(h, p): return (("stg", p), ("Q", h), False)
def aO(h, p): return (("stg", p), ("O", h), False)
def blk(f, h, b): return [f(h, 4*b + i) for i in range(4)]
def mkctx(c):
    def f(r):
        if callable(r): return r(c)
        return r
    return f

segs = []
path = []
cur = None
def seg(name):
    global cur
    cur = []; segs.append([name, cur]); return len(segs) - 1
def E(*xs):
    for x in xs:
        if x is None: continue
        if isinstance(x, (list, tuple)): E(*x)
        else: cur.append(x)
nstamp = [0]
def stamp_now():
    if not O_.stamps: return []
    k = nstamp[0]; nstamp[0] += 1
    op = "s_memtime" if O_.stamps == 1 else "s_memrealtime"
    return [raw(f"{op} {sStamp}", "smem", (), rs(sStamp)), wait(lgkm=0), salu("s_mov_b32", S(STAMP0 + k), sStamp[0])]

MEM = ("dsr", "dsw", "dma", "vld", "vst")
class Sched:
    def __init__(s, mf):
        s.mf = mf; s.n = len(mf); s.g = [[] for _ in mf]
        s.cap = [24 if m.m["big"] else 8 for m in mf]
    def cost(s, x): return 8 if x.kind == "trans" or x.m.get("perm") else 4
    def fits(s, g, x):
        if s.cap[g] < s.cost(x): return False
        if x.kind in MEM and any(y.kind in MEM for y in s.g[g]): return False
        return True
    def put(s, g, *xs):
        for x in xs:
            if isinstance(x, list): s.put(g, *x); continue
            s.g[g].append(x); s.cap[g] -= s.cost(x)
        return g
    def place(s, x, lo, hi=None):
        hi = s.n - 1 if hi is None else hi
        for g in range(lo, hi + 1):
            if s.fits(g, x): return s.put(g, x)
        raise Exception(f"cannot place {x} in [{lo},{hi}]")
    def chain(s, xs, lo, hi=None, step=1):
        g = lo - step
        for x in xs: g = s.place(x, g + step, hi)
        return g
    def pour(s, xs, lo, hi=None):
        hi = s.n - 1 if hi is None else hi
        xs = list(xs); g = lo; pend = []
        while g <= hi and (xs or pend):
            if pend and pend[0][1] < g and s.fits(g, pend[0][0]): s.put(g, pend.pop(0)[0]); continue
            if xs and xs[0].kind in MEM: pend.append((xs.pop(0), g)); continue
            if xs and xs[0].kind == "wait" and pend: g += 1; continue
            if xs and len(pend) < 2 and s.fits(g, xs[0]):
                x = xs.pop(0); s.put(g, x)
                if x.kind == "wait": g += 1
                continue
            g += 1
        return [p[0] for p in pend] + xs
    def emit(s):
        for m, g in zip(s.mf, s.g):
            E(m)
            key = lambda x: 3 if x.m.get("last") else (2 if x.kind in ("valu", "trans") else (0 if x.kind in MEM else 1))
            E(sorted(g, key=key))

class Task:
    def __init__(s, x, lo, hi, preds): s.x, s.lo, s.hi, s.preds, s.gap = x, lo, hi, preds, None
class EDF(Sched):
    def __init__(s, mf): super().__init__(mf); s.t = []
    def add(s, x, lo=0, hi=None, preds=()):
        t = Task(x, lo, s.n - 1 if hi is None else min(hi, s.n - 1), [p for p in preds if p[0] is not None]); s.t.append(t); return t
    def seq(s, xs, lo=0, hi=None, after=None, hard=1):
        p = after
        for x in xs: p = s.add(x, lo, hi, [(p, hard, hard)])
        return p
    def run(s):
        for t in reversed(s.t):
            for p, h, so in t.preds: p.hi = min(p.hi, t.hi - so)
        for t in s.t:
            for p, h, so in t.preds: t.lo = max(t.lo, p.lo + h)
            t.hi = max(t.hi, t.lo)
        left = list(s.t)
        for g in range(s.n):
            while True:
                rdy = [t for t in left if t.lo <= g and all(p.gap is not None and g >= p.gap + h for p, h, so in t.preds)]
                rdy = [t for t in rdy if t.hi <= g or all(g >= p.gap + so for p, h, so in t.preds)]
                rdy.sort(key=lambda t: t.hi)
                pick = next((t for t in rdy if t.hi <= g or s.fits(g, t.x)), None)
                if pick is None: break
                s.put(g, pick.x); pick.gap = g; left.remove(pick)
                if pick.x.kind == "barrier": s.cap[g] = 0
        assert not left, left[0].x
        s.emit()

def kread(d, a, s, dst, hi): return ds_read("ds_read_b128", dst, kaddr[s], hi*16384 + a*8192, rK(d))
def vread(d, t, a, dst, hi): return ds_read("ds_read_b64_tr_b16", dst[2*a:2*a+2], vaddr[t], hi*16384 + a*8192, rV(d))
def kv_dmas(d, withV=True):
    o = []
    for im in (0, 2048):
        if withV: o.append(dma(vkv, sV, sKVoff, im + 1024, rV(d), O_.fv))
        o.append(dma(vkv, sK, sKVoff, im, rK(d + 2), O_.fk))
    return o
def start_group(J, withV=True):
    op, im = ("s_add_u32", (J % 4)*16384 - 32768) if J % 4 >= 2 else ("s_sub_u32", 32768 - (J % 4)*16384)
    return [salu(op, "m0", sM0, im), salu("s_mov_b32", sKVoff, (J + 2)*8192)] + kv_dmas(J, withV)
def q_dma_block(h, b):
    o = [salu("s_add_u32", "m0", sStg, b*4096), salu("s_mov_b32", sSide, h*98304 + b*4096)]
    for i in range(4): o.append(dma(vsd1 if i & 1 else vsd0, sQ, sSide, i*1024, aQ(h, 4*b + i), O_.fq))
    return o
def pad_vm(n):
    return [Inst(f"buffer_load_dword {X[4][0]}, {vlin}, {sQ}, {sThr} offen", "vld", rs(vlin, sQ, sThr), ()) for _ in range(n)]
def zero_mfmas():
    o = [mfma(V(144 + 16*k, 16), zero4, zero4, 0, big=True) for k in range(7)]
    o += [mfma(A(176 + 16*k, 16), zero4, zero4, 0, big=True) for k in range(5)]
    o += [mfma(A(128, 16), zero4, zero4, 0, big=True), mfma(A(144, 4), zero4, zero4, 0), mfma(A(148, 4), zero4, zero4, 0)]
    return o

def sm_ops(par, b, a):
    s = Sreg(b, a); p = Preg(par, b)
    return [valu("v_exp_f32", s[0], s[0]), valu("v_exp_f32", s[1], s[1]), valu("v_cvt_pk_bf16_f32", p[2*a], s[0], s[1]),
            valu("v_exp_f32", s[2], s[2]), valu("v_exp_f32", s[3], s[3]), valu("v_cvt_pk_bf16_f32", p[2*a+1], s[2], s[3])]
NE_A = 38
def sm_split(par):
    st = []
    for a in range(2):
        for b in range(NB): st += [(b, x) for x in sm_ops(par, b, a)]
    k = NE_A // 2 * 3
    return st[:k], st[k:]
def place_sm(sc, ops, g0):
    g = g0 - 2
    for _, x in ops:
        if x.kind == "trans": g += 2; sc.put(g, x)
        else: sc.put(g + 1, x)
def delay_cvts(xs):
    o = []; pend = []
    for x in xs:
        if x.kind == "trans":
            o.append(x)
            if pend: o.append(pend.pop(0))
        else: pend.append(x)
    return o + pend
def rowmax_ops(bs, pk=True):
    o = []
    m = {b: negM(b)[0] for b in bs}; t = {b: negM(b)[1] for b in bs}
    sv = lambda b, r: V(8*b + r)
    for b in bs: o.append(valu("v_max3_f32", m[b], sv(b, 0), sv(b, 1), sv(b, 2)))
    for b in bs: o.append(valu("v_max3_f32", t[b], sv(b, 3), sv(b, 4), sv(b, 5)))
    for b in bs: o.append(valu("v_max3_f32", m[b], m[b], sv(b, 6), sv(b, 7)))
    for b in bs: o.append(valu("v_max_f32", m[b], m[b], t[b]))
    for op in ("v_permlane32_swap_b32", "v_permlane16_swap_b32"):
        for b in bs: o.append(valu("v_mov_b32", t[b], m[b]))
        for b in bs: o.append(swap(op, m[b], t[b]))
        for b in bs: o.append(valu("v_max_f32", m[b], m[b], t[b]))
    for b in bs:
        for r in (1, 2, 3, 0): o.append(valu("v_sub_f32", negM(b)[r], 0, m[b]))
    sub = []
    for b in bs:
        for r in range(4): sub.append(valu("v_pk_add_f32", V(8*b + 2*r, 2), V(8*b + 2*r, 2), negM(b)[0:2]))
    return o, sub
def scale_frag(x, dst, w, y, pk=True):
    o = []
    if pk:
        for r in range(4): o += [valu("v_lshlrev_b32", w[2*r], 16, x[r]), valu("v_and_b32", w[2*r+1], "0xffff0000", x[r])]
        for r in range(4): o.append(valu("v_pk_mul_f32", w[2*r:2*r+2], w[2*r:2*r+2], sC))
    else:
        for r in range(4):
            o += [valu("v_lshlrev_b32", w[2*r], 16, x[r]), valu("v_and_b32", w[2*r+1], "0xffff0000", x[r]),
                  valu("v_mul_f32", w[2*r], sC[0], w[2*r]), valu("v_mul_f32", w[2*r+1], sC[0], w[2*r+1])]
    for r in range(4): o.append(valu("v_cvt_pk_bf16_f32", y[r], w[2*r], w[2*r+1]))
    for r in range(4): o.append(valu("v_accvgpr_write_b32", dst[r], y[r]))
    return o
def qk_first(b): return [mfma(Sreg(b, a), F(4*a + s), Qreg(b, s), 0 if s == 0 else Sreg(b, a)) for a in range(2) for s in range(4)]

def startup():
    v0, vl, vi, vu, t0, t1, t2 = V(0), V(1), V(2), V(3), V(4), V(5), V(6)
    E(comment("---- setup"),
      raw("s_load_dwordx4 s[4:7], s[0:1], 0", "smem", (), rs(S(4, 4))),
      raw("s_load_dwordx4 s[8:11], s[0:1], 16", "smem", (), rs(S(8, 4))),
      scmp("s_cmp_ge_u32", S(2), 256), raw("s_cbranch_scc1 L_end", "salu", {"scc"}))
    if O_.stamps:
        E(raw("s_load_dwordx2 s[44:45], s[0:1], 40", "smem", (), rs(S(44, 2))),
          raw("s_memrealtime s[46:47]", "smem", (), rs(S(46, 2))))
    if O_.prefetch_code:
        E(raw("s_getpc_b64 s[40:41]", "salu", (), rs(S(40, 2))), label("L_pc"),
          valu("v_lshlrev_b32", t0, 7, v0), valu("v_min_u32", t1, "L_end-L_pc", t0),
          Inst(f"global_load_dword v7, {t1}, s[40:41]", "vld", rs(t1, S(40, 2)), rs(V(7))))
        if O_.pf2:
            E(valu("v_add_u32", t0, 32768, t0), valu("v_min_u32", t1, "L_end-L_pc", t0),
              Inst(f"global_load_dword v8, {t1}, s[40:41]", "vld", rs(t1, S(40, 2)), rs(V(8))))
    E(valu("v_lshrrev_b32", t1, 6, v0), valu("v_and_b32", vl, 63, v0),
      valu("v_readfirstlane_b32", sW, t1),
      valu("v_and_b32", vi, 15, vl), valu("v_lshrrev_b32", vu, 4, vl),
      valu("v_lshlrev_b32", t0, 1, vu), valu("v_xor_b32", t0, t0, vi), valu("v_lshlrev_b32", t0, 4, t0),
      valu("v_lshl_add_u32", vsd0, vu, 8, t0), valu("v_xor_b32", vsd1, 128, vsd0),
      salu("s_and_b32", sT0, sW, 1), salu("s_lshr_b32", sT1, sW, 1),
      salu("s_lshl_b32", sT2, sT0, 7), salu("s_lshl_b32", sT0, sT0, 10), salu("s_lshl_b32", sT1, sT1, 12),
      salu("s_add_u32", sT0, sT0, sT1),
      valu("v_xor_b32", vkv, sT2, vsd0), valu("v_add_u32", vkv, sT0, vkv),
      salu("s_lshl_b32", sM0, sW, 12), salu("s_add_u32", sM0, sM0, 32768), salu("s_mul_i32", sStg, sW, 24576),
      salu("s_mul_i32", sT0, S(2), 196608), salu("s_add_u32", sT0, sT0, sStg), salu("s_add_u32", sStg, sStg, 65536),
      salu("s_lshl_b32", sT1, S(2), 18),
      salu("s_mov_b32", sK[2], 262144), salu("s_mov_b32", sK[3], "0x20000"),
      salu("s_mov_b32", sQ[2], 98304 + 24576), salu("s_mov_b32", sQ[3], "0x20000"),
      wait(lgkm=0),
      salu("s_add_u32", sK[0], S(6), sT1), salu("s_addc_u32", sK[1], S(7), 0), salu("s_and_b32", sK[1], sK[1], "0xffff"),
      salu("s_add_u32", sQ[0], S(4), sT0), salu("s_addc_u32", sQ[1], S(5), 0), salu("s_and_b32", sQ[1], sQ[1], "0xffff"))
    stream = []
    for grp in [start_group(-2, False)] + [q_dma_block(0, b) for b in range(NB)] + [start_group(-1, False), start_group(0), *([start_group(1), pad_vm(O_.qpp)] if O_.la == 3 else [pad_vm(O_.qpp), start_group(1)])]:
        pre = []
        for x in grp:
            if x.kind == "salu": pre.append(x)
            else: stream.append(pre + [x]); pre = []
    def more(n):
        o = stream[:n]; del stream[:n]; return o
    E(more(10))
    E(salu("s_add_u32", sV[0], S(8), sT1), salu("s_addc_u32", sV[1], S(9), 0),
      salu("s_sub_u32", sV[0], sV[0], 1024 + 16384), salu("s_subb_u32", sV[1], sV[1], 0), salu("s_and_b32", sV[1], sV[1], "0xffff"),
      salu("s_mov_b32", sV[2], 262144 + 1024 + 16384), salu("s_mov_b32", sV[3], "0x20000"),
      salu("s_add_u32", sO[0], S(10), sT0), salu("s_addc_u32", sO[1], S(11), 0), salu("s_and_b32", sO[1], sO[1], "0xffff"),
      salu("s_mov_b32", sO[2], 98304 + 24576), salu("s_mov_b32", sO[3], "0x20000"),
      salu("s_mov_b32", sC[0], hex(CSCALE)), salu("s_mov_b32", sC[1], hex(CSCALE)),
      salu("s_mov_b32", sThr, hex(THRESH)), salu("s_mov_b32", sFlag, 0), salu("s_sub_u32", sQd, sStg, 98304))
    E(valu("v_and_b32", t0, 7, vi), valu("v_lshlrev_b32", t0, 1, t0), valu("v_xor_b32", t0, t0, vu), valu("v_lshlrev_b32", t0, 4, t0),
      valu("v_lshl_add_u32", t2, vi, 8, t0), valu("v_add_u32", qa[0], sStg, t2),
      valu("v_and_b32", t1, 3, vi), valu("v_lshl_add_u32", t0, t1, 8, t0),
      valu("v_lshrrev_b32", t1, 3, vi), valu("v_lshl_add_u32", t0, t1, 11, t0),
      valu("v_bfe_u32", t1, vi, 2, 1), valu("v_lshl_add_u32", t0, t1, 12, t0), valu("v_add_u32", kaddr[0], 32768, t0))
    for s in range(1, 4): E(valu("v_xor_b32", kaddr[s], s << 6, kaddr[0]), valu("v_xor_b32", qa[s], s << 6, qa[0]))
    E(valu("v_lshrrev_b32", t1, 2, vi), valu("v_and_b32", t2, 1, vu), valu("v_lshl_add_u32", t0, t2, 2, t1),
      valu("v_lshlrev_b32", t0, 5, t0), valu("v_lshl_add_u32", t0, t1, 8, t0), valu("v_lshl_add_u32", t0, t2, 12, t0),
      valu("v_lshrrev_b32", t2, 1, vu), valu("v_lshl_add_u32", t0, t2, 11, t0),
      valu("v_and_b32", t1, 3, vi), valu("v_lshl_add_u32", t0, t1, 3, t0), valu("v_add_u32", vaddr[0], 1024, t0))
    for t in range(1, 8): E(valu("v_xor_b32", vaddr[t], t << 5, vaddr[0]))
    E(valu("v_lshlrev_b32", vlin, 4, vl), valu("v_mov_b32", t0, "0x3f803f80"))
    if O_.ones4:
        E(Inst(f"v_cmp_eq_u32 vcc, 0, {t1}", "valu", rs(t1), {"vcc"}), nop(1), Inst(f"v_cndmask_b32 {t0}, 0, {t0}, vcc", "valu", rs(t0, "vcc"), rs(t0)))
    for r in range(4): E(valu("v_accvgpr_write_b32", ones[r], t0), valu("v_mov_b32", zero4[r], 0))
    E(zero_mfmas(), more(O_.n0 - 10))
    E(stamp_now())
    E(comment("---- first K tile"), wait(vm=[aK(0)]), barrier())
    for a in range(2):
        for s in range(4): E(kread(0, a, s, F(4*a + s), 0))
    first, _ = sm_split(0)
    rawr = lambda s: V(72 + 4*s, 4)
    for b in range(NB):
        E(comment(f"---- start-up block {b}"), stamp_now() if O_.probe else None, wait(vm=blk(aQ, 0, b)), stamp_now() if O_.probe else None)
        for s in range(4): E(ds_read("ds_read_b128", rawr(s), qa[s], b*4096, blk(aQ, 0, b)))
        for s in range(4):
            E(wait(lgkm=[rawr(s)] + ([F(k) for k in range(8)] if b == 0 else [])))
            E(more(1), scale_frag(rawr(s), Qreg(b, s), V(88, 8), Sreg(b, s & 1)))
        E(qk_first(b), more(O_.nper - 4))
        if b == NB - 1:
            E(stamp_now() if O_.probe else None, wait(vm=[aK(1)]), barrier(), stamp_now() if O_.probe else None)
            for s in range(4): E(kread(1, 0, s, F(s), 1))
        mx, sub = rowmax_ops([b])
        E(mx, sub, delay_cvts([x for bb, x in first if bb == b]))
    E(more(99))
    if O_.la == 3: E(salu("s_mov_b32", "m0", sM0), salu("s_mov_b32", sKVoff, 4*8192), kv_dmas(2))
    if O_.waitall: E(wait(vm=0))
    E(salu("s_mov_b32", sSide, 98304), salu("s_mov_b32", sCnt, 7), wait(lgkm=[F(s) for s in range(4)]))
    if O_.itst: E(salu("s_mov_b32", S(5), 0))
    E(stamp_now())

def o_read(key, p, dst, off): return ds_read("ds_read_b128", dst, vsd1 if p & 1 else vsd0, off, key)

def pv_mfmas(par, frags, bmajor=False):
    mf = []
    if bmajor:
        for th in range(2):
            for b in range(NB):
                for t in range(4*th, 4*th + 4): mf.append(mfma(Oreg(b, t), frags[t], Preg(par, b), Oreg(b, t)))
                if (b < 4) == (th == 0): mf.append(mfma(lacc(b), ones, Preg(par, b), lacc(b)))
        return mf
    for t in range(8):
        for b in range(NB): mf.append(mfma(Oreg(b, t), frags[t], Preg(par, b), Oreg(b, t)))
        if t < NB: mf.append(mfma(lacc(t), ones, Preg(par, t), lacc(t)))
    return mf

def nloop(): return O_.c1*O_.r1 + (6 - O_.c1)*O_.r2
def late_pieces(k):
    cnt = [int(c, 16) for c in O_.olate]; assert nloop() <= 12 and nloop() + sum(cnt) == 24
    n0 = nloop() + sum(cnt[:k])
    return [(12 + n) % 24 for n in range(n0, n0 + cnt[k])]
def iteration(par, side, ctl):
    mf = [mfma(Sreg(b, a), F(4*a + s), Qreg(b, s), negM(b) if s == 0 else Sreg(b, a)) for a in range(2) for b in range(NB) for s in range(4)]
    mf += pv_mfmas(par, [F(t) for t in range(8)], O_.pvb)
    sc = Sched(mf)
    place_sm(sc, sm_split(par)[1], 0)
    place_sm(sc, sm_split(1 - par)[0], 24)
    sc.put(101, ctl)
    sc.chain([kread(1, 1, s, F(4 + s), 1 - par) for s in range(4)], 1)
    sc.put(22, wait(vm=[rV(0), rK(2)], lgkm=0)); sc.put(23, barrier()); sc.cap[23] = 0
    if O_.itst:
        x = [raw("s_memrealtime s[42:43]", "smem", (), rs(S(42, 2)), last=True), wait(lgkm=0),
             raw("s_lshl_b64 exec, 1, s5"), Inst("v_mov_b32 v143, s42", "valu", rs(S(42)), rs(V(143))), raw("s_mov_b64 exec, -1"), salu("s_add_u32", S(5), S(5), 1)]
        for y in x: y.m["last"] = True
        sc.put(23, x)
    if par == 0: sc.chain([valu("v_xor_b32", r, 32768, r) for r in kaddr], 9, 20, step=0)
    if par == (O_.la + 1) % 2:
        sc.put(21, salu("s_add_u32", "m0", sM0, 16384)); sc.put(22, salu("s_xor_b32", sM0, sM0, 32768))
    else: sc.put(21, salu("s_mov_b32", "m0", sM0))
    sc.place(salu("s_add_u32", sKVoff, sKVoff, 8192), 9, 21)
    ops = kv_dmas(O_.la)
    if side == "O4": ops = [ops[0], None, ops[2], None]
    vr = [vread(0, t, a, F(t), par) for t in range(4) for a in range(2)]
    seq = []
    for k in range(4): seq += ([ops[k]] if ops[k] else []) + vr[2*k:2*k + 2]
    if O_.pvb: seq = vr + [x for x in ops if x]
    sc.chain(seq, 25, 47)
    gv = sc.chain([vread(0, t, a, F(t), par) for t in range(4, 8) for a in range(2)], 49)
    if side == "O4" and O_.la == 2:
        g = sc.chain([salu("s_add_u32", "m0", sM0, 16384), salu("s_add_u32", sKVoff, sKVoff, 8192)], 49 if O_.pvb else 41, 64, step=0)
        ex = kv_dmas(3); sc.chain([ex[0], ex[2]], g + 1)
    sc.chain([kread(2, 0, s, F(s), par) for s in range(4)], 77)
    if O_.pvb: sc.place(wait(lgkm=[F(0), F(1), F(2), F(3)]), 45, 47)
    else:
        sc.place(wait(lgkm=[F(0), F(1)]), 45, 47)
        sc.place(wait(lgkm=[F(2), F(3)]), 57, 61)
    sc.place(wait(lgkm=[F(4), F(5), F(6), F(7)]), 73, 75)
    sc.place(wait(lgkm=[F(s) for s in range(4)]), 97, 101)
    if side == "Q" and par == 0 and O_.qpp:
        n = O_.qpp
        pf = lambda k: (lambda c: aQ(1, n*(c["J"]//2) + k))
        g = sc.place(salu("s_add_u32", "m0", sSide, sQd), 49)
        g = sc.chain([dma(vsd1 if k & 1 else vsd0, sQ, sSide, k*1024, pf(k), O_.fq) for k in range(n)], gv + 1, step=3)
        sc.place(salu("s_add_u32", sSide, sSide, 1024*n), g + 1)
        if n & 1: sc.chain([valu("v_xor_b32", vsd0, 128, vsd0), valu("v_xor_b32", vsd1, 128, vsd1)], g + 1, step=0)
    if isinstance(side, tuple) and side[0] == "O":
        _, r, n0, J0 = side
        ks = range(par*(r//2), (par + 1)*(r//2))
        sc.chain([o_read((lambda k: lambda c: aO(0, 12 + n0 + r*((c["J"] - J0)//2) + k))(k), k, X[i], 12288 + k*1024) for i, k in enumerate(ks)], 9, 21)
        g = sc.chain([vstore(X[i], vlin, sO, sSide, k*1024, O_.st_flags) for i, k in enumerate(ks)], gv + 1, step=6)
        if par == 1 and r: sc.chain([salu("s_add_u32", sSide, sSide, 1024*r), valu("v_add_u32", vsd0, 1024*r, vsd0), valu("v_add_u32", vsd1, 1024*r, vsd1)], g + 1, step=0)
    if side == "O4":
        nl = nloop()
        if nl: sc.chain([valu("v_subrev_u32", vsd0, 1024*nl, vsd0), valu("v_subrev_u32", vsd1, 1024*nl, vsd1)], 1, 9, step=0)
        ps = late_pieces(0)
        sc.chain([o_read(aO(0, p), p, X[i], p*1024) for i, p in enumerate(ps)], 11, 21)
        g = gv
        for i, p in enumerate(ps):
            if i == 0 or p == 0: g = sc.place(salu("s_mov_b32", sSide, p*1024), g + 1); p0 = p
            g = sc.place(vstore(X[i], vlin, sO, sSide, (p - p0)*1024, O_.st_flags), g + (1 if p == p0 else 5))
    if par == 1: sc.chain([valu("v_xor_b32", r, 32768, r) for r in vaddr], gv + 1, 100, step=0)
    sc.emit()

def br(text): return raw(text, "salu", {"scc"}, (), last=True)
def dec():
    x = salu("s_sub_u32", sCnt, sCnt, 1); x.m["last"] = True; return x
def loop(name, side, J0, n_iter):
    e = seg(name + "_even"); E(raw(".p2align 3", "label"), label(f"L_{name}"))
    if n_iter & 1:
        iteration(0, side, [dec(), br(f"s_cbranch_scc1 L_{name}_exit")])
        o = seg(name + "_odd"); iteration(1, side, [br(f"s_branch L_{name}")]); E(label(f"L_{name}_exit"))
    else:
        iteration(0, side, [])
        o = seg(name + "_odd"); iteration(1, side, [dec(), br(f"s_cbranch_scc0 L_{name}")])
    for k in range(n_iter): path.append((o if k & 1 else e, {"J": J0 + k}))

def o_addr_ops(ow, t0, t1):
    o = [valu("v_lshrrev_b32", t0, 9, vlin), valu("v_bfe_u32", t1, vlin, 4, 3), valu("v_xor_b32", t0, t0, t1),
         valu("v_lshlrev_b32", t0, 4, t0), valu("v_bfe_u32", t1, vlin, 8, 1), valu("v_lshl_add_u32", t0, t1, 3, t0),
         valu("v_bfe_u32", t1, vlin, 4, 4), valu("v_lshl_add_u32", t0, t1, 8, t0), valu("v_add_u32", ow[0], sStg, t0)]
    return o + [valu("v_xor_b32", ow[k], k << 5, ow[0]) for k in range(1, 4)]
def o_rd_addr_ops(t1):
    return [valu("v_lshrrev_b32", t1, 4, vlin), valu("v_and_b32", t1, "0x30", t1), valu("v_xor_b32", t1, t1, vlin),
            valu("v_add_u32", vsd0, sStg, t1), valu("v_xor_b32", vsd1, 64, vsd0)]
def l_ops(h, bs, rl, t1):
    o = [valu("v_accvgpr_read_b32", rl[b][1], lacc(b)[0]) for b in bs]
    o += [valu("v_rcp_f32", rl[b][0], rl[b][1]) for b in bs]
    o.append(valu("v_add_f32", t1, rl[bs[0]][1], rl[bs[1]][1]))
    o += [valu("v_add_f32", t1, t1, rl[b][1]) for b in bs[2:]]
    o += [Inst(f"v_cmp_nlt_f32 {sCmp}, {t1}, {sThr}", "valu", rs(t1, sThr), rs(sCmp)),
          nop(0), scmp("s_cmp_lg_u64", sCmp, 0), salu("s_cselect_b32", sT0, 1 << h, 0), salu("s_or_b32", sFlag, sFlag, sT0)]
    return o
def epi_block(h, b, rl, ow, tmp):
    o = []
    for th in range(2):
        ts = range(4*th, 4*th + 4)
        r0 = Oreg(b, 4*th); w = V(r0.i, 16) if r0.k == "v" else tmp[th]
        if r0.k == "a": o += [valu("v_accvgpr_read_b32", w[i], A(r0.i + i)) for i in range(16)]
        o += [valu("v_pk_mul_f32", w[2*i:2*i + 2], w[2*i:2*i + 2], rl[b], mods="op_sel_hi:[1,0]") for i in range(8)]
        o += [valu("v_cvt_pk_bf16_f32", w[i], w[2*i], w[2*i + 1]) for i in range(8)]
        o += [ds_write("ds_write_b64", ow[k], w[2*k:2*k + 2], b*4096 + th*128, blk(aO, h, b)) for k in range(4)]
    return o

def last_head(sc_fill, vf):
    E(wait(vm=[rV(0), rK(2)]), barrier())
    vr = [vread(0, t, a, vf[t], 1) for t in range(8) for a in range(2)]
    E(vr[:4], delay_cvts([x for _, x in sm_split(1)[1]]), wait(lgkm=[vf[0]]))
    sc = Sched(pv_mfmas(1, vf))
    gv = sc.chain(vr[4:], 0)
    sc.place(wait(lgkm=[vf[1]]), 5, 6); sc.place(wait(lgkm=[vf[2], vf[3]]), 12, 13); sc.place(wait(lgkm=vf[4:]), 24, 27)
    rest = sc_fill(sc, gv)
    sc.emit()
    return rest

def transition():
    s = seg("trans"); path.append((s, {"J": 15}))
    E(stamp_now(), comment("---- head 0 last tile + head switch"))
    vf = X[:4] + [F(4), F(5), F(6), X[4]]
    def rawr(b, s_): return (V(16 + 16*b + 4*s_, 4) if b < 2 else V(144 + 16*(b & 1) + 4*s_, 4))
    def qrd(b): return [wait(vm=blk(aQ, 1, b))] + [ds_read("ds_read_b128", rawr(b, s_), qa[s_], b*4096, blk(aQ, 1, b)) for s_ in range(4)]
    ow = [V(48 + 24 + 20 + k) for k in range(4)]
    rl = [V(72 + 2*b, 2) for b in range(NB)]; wt = V(84, 8)
    NSH = 3 if O_.qpp else 0
    stream = []
    for b in range(2*O_.qpp, NB):
        blkops = q_dma_block(1, b); stream += [blkops[:3]] + [[x] for x in blkops[3:]]
    def more(n):
        o = stream[:n]; del stream[:n]; return o
    def fill(sc, gv):
        g = gv + 1
        if O_.qpp:
            for x in qrd(0) + qrd(1): g = sc.place(x, g) + 1
        sc.chain([valu("v_xor_b32", r, 32768, r) for r in vaddr], gv + 1, step=0)
        g = sc.place(kread(1, 1, 3, F(7), 0), g)
        for k in range(3): sc.place(kread(1, 1, k, F(4 + k), 0), 35 + 7*k - (k == 2))
        g = 0
        for grp in more(8):
            for x in grp: g = sc.place(x, g if x.kind == "salu" else max(g, gv + 1)) + 1
        st = []
        for n in range(NSH): st += [wait(lgkm=[rawr(0, n)])] + scale_frag(rawr(0, n), Qreg(0, n), V(0, 8), V(8 + 4*(n & 1), 4), pk=False)
        return sc.pour(st, gv + 7)
    if not O_.qpp: E(more(4))
    E(last_head(fill, vf))
    first = sm_split(0)[0]; gdone = []
    z = zero_mfmas()
    def finish(b, zs):
        E(rowmax_ops([b])[1])
        sm = delay_cvts([x for bb, x in first if bb == b])
        sc = Sched(zs); rest = sc.pour(sm, 0); sc.emit(); E(rest)
    for b in range(NB):
        E(comment(f"---- switch block {b}"))
        if b == 0 and not O_.qpp: E(qrd(0))
        for n in range(NSH if b == 0 else 0, 4):
            if b == 0 and n == 2 and not O_.qpp: E(qrd(1))
            E(wait(lgkm=[rawr(b, n)]), more(4 if b == 0 and NSH else 1), scale_frag(rawr(b, n), Qreg(b, n), V(0, 8) if b == 0 else wt, V(8, 4) if b == 0 else Sreg(b, n & 1)))
        if b == 0:
            E(l_ops(0, list(range(NB)), rl, wt[0]), wait(lgkm=[F(k) for k in range(8)]))
        if not stream and not gdone:
            gdone.append(1)
            if O_.la == 3: E(barrier(), salu("s_mov_b32", "m0", sM0), salu("s_add_u32", sKVoff, sKVoff, 8192), kv_dmas(3))
            else: E(salu("s_add_u32", "m0", sM0, 16384), salu("s_xor_b32", sM0, sM0, 32768), salu("s_add_u32", sKVoff, sKVoff, 8192), kv_dmas(2))
        sc = Sched(qk_first(b))
        if b == NB - 1:
            for s_ in range(4): sc.put(4 + s_, kread(2, 0, s_, F(s_), 1))
        rest = sc.pour(o_addr_ops(ow, wt[0], wt[1]) if b == 0 else rowmax_ops([b - 1])[0], 0); sc.emit(); E(rest)
        if 1 <= b and b + 1 < NB: E(qrd(b + 1))
        E(epi_block(0, b, rl, ow, [V(176, 16), V(192, 16)]))
        if b >= 1: finish(b - 1, {1: z[12:15], 2: [], 3: z[4:6], 4: z[6:8], 5: z[8:10]}[b])
    E(stamp_now())
    sc = Sched(z[0:4] + z[10:12])
    rest = sc.pour(rowmax_ops([NB - 1])[0] + o_rd_addr_ops(wt[0]) + [valu("v_mov_b32", qa[k], ow[k]) for k in range(4)], 0); sc.emit(); E(rest)
    finish(NB - 1, [])
    E(salu("s_mov_b32", sSide, 12288), salu("s_mov_b32", sCnt, O_.c1 - 1), wait(lgkm=[F(s_) for s_ in range(4)]), pad_vm(O_.la*O_.r1//2))
    E(stamp_now())

def endgame():
    s = seg("end"); path.append((s, {"J": 29}))
    E(stamp_now())
    rl = [V(96 + 2*b, 2) for b in range(NB)]
    def st(b, dst): return [vstore(dst[i], vlin, sO, sSide, i*1024, O_.fin_flags) for i in range(4)]
    for ps, H in enumerate(([3, 4, 5], [0, 1, 2])):
        E(comment(f"---- pass {ps}"))
        subs = [("Q", 1, 0), ("Q", 1, 1), ("P", 0, 0), ("P", 0, 1), ("Q", 2, 0), ("Q", 2, 1), ("P", 1, 0), ("P", 1, 1), ("P", 2, 0), ("P", 2, 1)]
        mf = []; use = []; cend = {}; cstart = {}; pstart = {}; pend_ = {}
        for kind, d, x in subs:
            u = {}
            if kind == "Q":
                for b in H:
                    cstart[(d, b, x)] = len(mf)
                    for s_ in range(4):
                        u.setdefault(s_, []).append(len(mf))
                        mf.append(mfma(Sreg(b, x), F(4*x + s_), Qreg(b, s_), negM(b) if s_ == 0 else Sreg(b, x)))
                    cend[(d, b, x)] = len(mf) - 1
            else:
                par = (d + 1) & 1
                if x == 0: pstart[d] = len(mf)
                for k in range(4):
                    for b in H:
                        u.setdefault(k, []).append(len(mf))
                        mf.append(mfma(Oreg(b, 4*x + k), F(4*x + k), Preg(par, b), Oreg(b, 4*x + k)))
                    if x == 0 and k < 3: mf.append(mfma(lacc(H[k]), ones, Preg(par, H[k]), lacc(H[k])))
                pend_[d] = len(mf) - 1
            use.append(u)
        sc = EDF(mf)
        bar = {}
        if ps == 0:
            for d, g in ((0, 10), (1, use[4][3][-1] - 1), (2, use[6][0][-1] - 1)):
                w = sc.add(wait(vm=[rV(d)] + ([rK(2)] if d == 0 else [])), g, g)
                bar[d] = sc.add(barrier(), g + 1, g + 1, [(w, 1, 1)])
        prev = None
        for i, (kind, d, x) in enumerate(subs):
            if i == 0: continue
            grp = []
            for k in range(4):
                lo = use[i - 2][k][-1] if i >= 2 else 0
                rds = [kread(d, x, k, F(4*x + k), d - 1)] if kind == "Q" else [vread(d, 4*x + k, a, F(4*x + k), d + 1) for a in range(2)]
                bp = bar.get(d if kind == "P" else (0 if d == 2 else None))
                for r in rds: prev = sc.add(r, lo, None, [(prev, 1, 1), (bp, 1, 1)])
                grp.append(k)
                if k & 1:
                    sc.add(wait(lgkm=[F(4*x + kk) for kk in grp]), 0, use[i][grp[0]][0] - 1, [(prev, 1, 7)]); grp = []
        if ps == 0:
            for k in range(4): prev = sc.add(kread(1, 0, k, F(k), 0), use[8][k][-1], None, [(prev, 1, 1)])
        def sm(ops, lo, hi):
            e = []
            for x in ops:
                if x.kind == "trans": e.append(sc.add(x, lo, hi))
                else: sc.add(x, lo, hi, [(e[-1], 1, 1), (e[-2], 1, 1)])
        for b in H:
            ops = [x for bb, x in sm_split(1)[1] if bb == b]
            if ops: sm(ops, 0, cstart[(1, b, 1)] - 1)
        for d in (1, 2):
            for a in range(2):
                for b in H:
                    hi = pstart[d] - 2
                    if d == 1: hi = min(hi, cstart[(2, b, a)] - 1)
                    lo = cend[(d, b, a)] + 4
                    if d == 2: lo = max(lo, pend_[0])
                    sm(sm_ops((d + 1) & 1, b, a), lo, hi)
        p = None
        for pcs, lo0, span in ([(late_pieces(1), 0, 60), (late_pieces(2), 60, 60)] if ps == 0 else [(late_pieces(3), 0, 120)]):
            chunks = []
            for q in pcs:
                if not chunks or len(chunks[-1]) == 4 or q == 0: chunks.append([])
                chunks[-1].append(q)
            for ci, ch in enumerate(chunks):
                ln = span // len(chunks); lo = lo0 + ci*ln
                p = sc.add(salu("s_mov_b32", sSide, ch[0]*1024), lo, lo + ln, [(p, 1, 1)])
                r = sc.seq([o_read(aO(0, q), q, X[i], q*1024) for i, q in enumerate(ch)], lo, lo + ln, p)
                p = sc.add(wait(lgkm=X[:len(ch)]), lo, lo + ln, [(r, 1, 7)])
                for i in range(len(ch)): p = sc.add(vstore(X[i], vlin, sO, sSide, i*1024, O_.st_flags), lo, lo + ln, [(p, 1, 3)])
        sc.run()
        E(stamp_now(), comment("---- epilogue"))
        rlh = {b: V(negM(H[0]).i + 2*k, 2) for k, b in enumerate(H)}; t1 = V(negM(H[0]).i + 6)
        E(l_ops(1, H, rlh, t1))
        tmp = [V(24, 16), V(24, 16)]
        dsts = [X[:4], [F(4 + i) for i in range(4)]]
        for k, b in enumerate(H):
            ep = epi_block(1, b, rlh, qa, tmp); half = [i for i, x in enumerate(ep) if x.kind == "dsw"][3] + 1
            E(ep[:half])
            if k > 0: E(wait(lgkm=dsts[(k - 1) & 1]), st(H[k - 1], dsts[(k - 1) & 1]))
            E(ep[half:], salu("s_mov_b32", sSide, 98304 + b*4096))
            E([o_read(aO(1, 4*b + i), i, dsts[k & 1][i], b*4096 + i*1024) for i in range(4)])
        E(wait(lgkm=0), st(H[2], dsts[0]), stamp_now())

def final():
    if O_.diag:
        a, b = [int(x) for x in O_.diag.split(":")]
        E(wait(vm=0), raw("s_memrealtime s[42:43]", "smem", (), rs(S(42, 2))), wait(lgkm=0), salu("s_mov_b32", S(47), S(42)),
          salu("s_sub_u32", sT0, S(STAMP0 + b), S(STAMP0 + a)), salu("s_lshr_b32", sT0, sT0, 3 if O_.stamps == 1 else 0),
          ([salu("s_lshr_b32", sT1, S(2), 6), scmp("s_cmp_eq_u32", sT1, O_.dq), salu("s_cselect_b32", sT0, sT0, 0)] if O_.dq >= 0 else None),
          salu("s_add_u32", sT0, sT0, 7000),
          label("L_spin"), raw("s_memrealtime s[42:43]", "smem", (), rs(S(42, 2))), wait(lgkm=0),
          salu("s_sub_u32", S(42), S(42), S(46)), scmp("s_cmp_lt_u32", S(42), sT0), raw("s_cbranch_scc1 L_spin", "salu", {"scc"}))
    elif O_.stamps:
        E(wait(vm=0), raw("s_memrealtime s[42:43]", "smem", (), rs(S(42, 2))), wait(lgkm=0), salu("s_mov_b32", S(47), S(42)))
        E(salu("s_lshl_b32", sT0, S(2), 2), salu("s_add_u32", sT0, sT0, sW), salu("s_lshl_b32", sT0, sT0, 8))
        E(valu("v_mov_b32", V(1), sT0))
        for k in range(nstamp[0] + 2):
            E(valu("v_mov_b32", V(2), S(46 + k)),
              Inst(f"global_store_dword v1, v2, s[44:45] offset:{4*k}", "vst", rs(V(1), V(2), S(44, 2)), (), data=set()), nop(1))
    if O_.itst:
        E(valu("v_lshrrev_b32", V(2), 2, vlin), valu("v_add_u32", V(1), V(1), V(2)), valu("v_add_u32", V(1), 1 << 20, V(1)),
          Inst("global_store_dword v1, v143, s[44:45]", "vst", rs(V(1), V(143), S(44, 2)), (), data=set()),
          raw("s_getreg_b32 s42, hwreg(HW_REG_XCC_ID)", "salu", (), rs(S(42))), valu("v_mov_b32", V(1), sT0), valu("v_mov_b32", V(2), S(42)),
          Inst("global_store_dword v1, v2, s[44:45] offset:252", "vst", rs(V(1), V(2), S(44, 2)), (), data=set()))
    E(label("L_end"))

def build():
    s = seg("start"); path.append((s, {"J": 0})); startup()
    loop("A", "Q", 0, 15)
    transition()
    loop("C", ("O", O_.r1, 0, 16), 16, 2*O_.c1)
    if O_.c1 < 6:
        s = seg("CD"); path.append((s, {"J": 0})); E(salu("s_mov_b32", sCnt, 6 - O_.c1 - 1), pad_vm(max(0, O_.la*(O_.r2 - O_.r1)//2)))
        loop("D", ("O", O_.r2, O_.c1*O_.r1, 16 + 2*O_.c1), 16 + 2*O_.c1, 12 - 2*O_.c1)
    s = seg("j12"); path.append((s, {"J": 28})); E(stamp_now()); iteration(0, "O4", [])
    endgame()
    final()
    def trace(): return [(i, mkctx(c)) for sidx, c in path for i in segs[sidx][1]]
    for rnd in range(4):
        fix = {}
        resolve_and_check(trace(), fix=fix)
        if not fix: break
        for sg in segs:
            new = []
            for i in sg[1]:
                if id(i) in fix: new.append(nop(fix[id(i)] - 1))
                new.append(i)
            sg[1][:] = new
    resolve_and_check(trace(), verbose=True)
    if O_.stamps:
        tr = [i for i, _ in trace()]; cuts = [k for k, i in enumerate(tr) if i.kind == "smem" and "s[42:43]" in i.text]
        print("  est between stamps:", [cost_estimate(tr[a:b]) for a, b in zip(cuts, cuts[1:])])
    for name, ins in segs: print(f"  seg {name:8s} insts {len(ins):5d} est cycles {cost_estimate(ins):6d} nops {sum(1 for i in ins if i.kind == 'nop')}")

HEAD = """; MHA forward, B=16 H=32 Sq=384 Sk=512 D=128, bf16.  Generated by gen/gen3.py
; @launch grid=(256,1,1) block=(256,1,1) lds=163840
.amdgcn_target "amdgcn-amd-amdhsa--gfx950"
.text
.globl standalone__mha_softmax__near_ridge_kernel
.p2align 8
.type standalone__mha_softmax__near_ridge_kernel,@function
standalone__mha_softmax__near_ridge_kernel:
"""
TAIL = """    s_endpgm
.section .rodata,"a"
.p2align 6
.amdhsa_kernel standalone__mha_softmax__near_ridge_kernel
  .amdhsa_next_free_vgpr 512
  .amdhsa_next_free_sgpr 102
  .amdhsa_accum_offset 256
  .amdhsa_group_segment_fixed_size 0
  .amdhsa_kernarg_size 48
  .amdhsa_user_sgpr_count 2
  .amdhsa_user_sgpr_kernarg_segment_ptr 1
  .amdhsa_system_sgpr_workgroup_id_x 1
.end_amdhsa_kernel
"""
if __name__ == "__main__":
    out = sys.argv[1]
    for a in sys.argv[2:]:
        k, v = a.split("=")
        c = getattr(O_, k)
        setattr(O_, k, (v not in ("0", "False")) if isinstance(c, bool) else type(c)(v))
    build()
    body = "\n".join((i.text if i.kind == "label" else "    " + i.text) for _, ins in segs for i in ins)
    open(out, "w").write(HEAD + body + "\n" + TAIL)
```

```python
import sys, math, struct
from ir import *

class Opt:
    stamps = 0; diag = ""; dq = -1; itst = 0
    st_flags = "sc1"; fin_flags = "sc1"; fq = "nt"; fk = "nt"; fv = "nt"
    n0 = 14
    qpp = 2
    r1 = 2
    olate = "4440"
    nsh = 2
    slow = 1
    probe = 0
    tq = 4
    tstep = 6
    force = 0
O_ = Opt()

NB = 6
def f32bits(x): return struct.unpack("<I", struct.pack("<f", x))[0]
CSCALE = f32bits(math.log2(math.e) / math.sqrt(128.0))
THRESH = f32bits(2.0 ** 64)

def Sreg(b, a): return V(8*b + 4*a, 4)
def Preg(par, b): return V(48 + 24*par + 4*b, 4)
def negM(b): return V(96 + 4*b, 4)
kaddr = [V(120 + s) for s in range(4)]
vaddr = [V(124 + t) for t in range(8)]
vkv = V(132); vsd0 = V(133); vsd1 = V(134); vlin = V(135)
qa = [V(136 + s) for s in range(4)]
zero4 = V(140, 4)
def Oreg(b, t):
    n = 8*b + t
    return V(144 + 4*n, 4) if n < 28 else A(176 + 4*(n - 28), 4)
def Qreg(b, s): return A(16*b + 4*s, 4)
def F(i): return A(96 + 4*i, 4)
def lacc(b): return A(128 + 4*b, 4)
ones = A(152, 4)
X = [A(156 + 4*k, 4) for k in range(5)]
sQ, sO = S(12, 4), S(24, 4); sKb, sVb = S(16, 2), S(18, 2)
sW = S(28); sM0 = S(30); sStg = S(31); sSide = S(32); sT0 = S(33); sT1 = S(34); sT2 = S(35)
sFlag = S(36); sThr = S(37); sC = S(38, 2); sCmp = S(40, 2); sStamp = S(42, 2); sCnt = S(3); sQd = S(29)
STAMP0 = 48

def aK(J): return (("ring", (J - 2) % 4, "K"), ("K", J), True)
def aV(J): return (("ring", J % 4, "V"), ("V", J), True)
def rK(d): return lambda c: aK(c["J"] + d)
def rV(d): return lambda c: aV(c["J"] + d)
def aQ(h, p): return (("stg", p), ("Q", h), False)
def aO(h, p): return (("stg", p), ("O", h), False)
def blk(f, h, b): return [f(h, 4*b + i) for i in range(4)]
def mkctx(c): return lambda r: r(c) if callable(r) else r

segs = []; path = []; path2 = []; cur = None
def seg(name):
    global cur
    cur = []; segs.append([name, cur]); return len(segs) - 1
def E(*xs):
    for x in xs:
        if x is None: continue
        if isinstance(x, (list, tuple)): E(*x)
        else: cur.append(x)
nstamp = [0]
def stamp_now():
    if not O_.stamps: return []
    k = nstamp[0]; nstamp[0] += 1
    op = "s_memtime" if O_.stamps == 1 else "s_memrealtime"
    return [raw(f"{op} {sStamp}", "smem", (), rs(sStamp)), wait(lgkm=0), salu("s_mov_b32", S(STAMP0 + k), sStamp[0])]

MEM = ("dsr", "dsw", "dma", "vld", "vst"); VAL = ("valu", "trans")
class Task:
    def __init__(s, x, lo, hi, preds): s.x, s.lo, s.hi, s.preds, s.gap = x, lo, hi, preds, None
class Sched:
    def __init__(s, mf):
        s.mf = mf; s.n = len(mf); s.g = [[] for _ in mf]; s.t = []
        s.cap = [24 if m.m["big"] else 8 for m in mf]; s.novalu = set()
    def cost(s, x): return 8 if x.kind == "trans" or x.m.get("perm") else 4
    def fits(s, g, x):
        if s.cap[g] < s.cost(x): return False
        if x.kind in MEM and any(y.kind in MEM for y in s.g[g]): return False
        if x.kind in VAL and g in s.novalu: return False
        return True
    def put(s, g, x): s.g[g].append(x); s.cap[g] -= s.cost(x)
    def fix(s, x, g):
        t = Task(x, g, g, []); t.gap = g; s.put(g, x)
        if x.kind in ("dma", "vst", "vld"): s.cap[g] = 0; s.novalu.add(g - 1)
        if x.kind == "barrier": s.cap[g] = 0
        return t
    def add(s, x, lo=0, hi=None, preds=()):
        t = Task(x, max(lo, 0), s.n - 1 if hi is None else min(hi, s.n - 1), [p for p in preds if p[0] is not None]); s.t.append(t); return t
    def seq(s, xs, lo=0, hi=None, after=None, hard=1):
        p = after
        for x in xs: p = s.add(x, lo, hi, [(p, hard, hard)])
        return p
    def sm(s, ops, lo, hi, spread=None):
        e = []; ne = sum(1 for x in ops if x.kind == "trans")
        for x in ops:
            if x.kind == "trans":
                l, h = lo, hi
                if spread: l = max(lo, spread[0] + (spread[1] - spread[0])*len(e)//ne); h = min(hi, l + 6)
                e.append(s.add(x, l, h))
            else: s.add(x, lo, min(hi, e[-1].hi + 4), [(e[-1], 1, 1), (e[-2], 1, 1)])
    def run(s):
        for t in reversed(s.t):
            for p, h, so in t.preds:
                if p.gap is None: p.hi = min(p.hi, t.hi - so)
        for t in s.t:
            for p, h, so in t.preds: t.lo = max(t.lo, p.lo + h)
            t.hi = max(t.hi, t.lo)
        left = list(s.t)
        for g in range(s.n):
            while True:
                rdy = [t for t in left if t.lo <= g and all(p.gap is not None and g >= p.gap + h for p, h, so in t.preds)]
                rdy = [t for t in rdy if t.hi <= g or all(g >= p.gap + so for p, h, so in t.preds)]
                rdy.sort(key=lambda t: t.hi)
                pick = next((t for t in rdy if t.hi <= g or s.fits(g, t.x)), None)
                if pick is None: break
                s.put(g, pick.x); pick.gap = g; left.remove(pick)
        assert not left, left[0].x
        s.t = []
    def pour(s, xs, lo=0):
        xs = list(xs); g = lo
        while g < s.n and xs:
            if s.fits(g, xs[0]):
                x = xs.pop(0); s.put(g, x)
                if x.kind not in VAL or (xs and xs[0].kind not in VAL): g += 1
            else: g += 1
        return xs
    def emit(s):
        for m, g in zip(s.mf, s.g):
            key = lambda x: 3 if x.m.get("last") else (2 if x.kind in VAL else (0 if x.kind in MEM else 1))
            E(m, sorted(g, key=key))

def kread(d, a, s, dst, hi): return ds_read("ds_read_b128", dst, kaddr[s], hi*16384 + a*8192, rK(d))
def vread(d, t, a, dst, hi): return ds_read("ds_read_b64_tr_b16", dst[2*a:2*a+2], vaddr[t], hi*16384 + a*8192, rV(d))
def kv_dmas(d, withV=True, withK=True):
    o = []
    for im in (0, 2048):
        if withV: o.append(gdma(vkv, sVb, im + 1024, rV(d), O_.fv))
        if withK: o.append(gdma(vkv, sKb, im, rK(d + 2), O_.fk))
    return o
def kv_step(): return valu("v_add_u32", vkv, 8192, vkv)
def q_dma_block(h, b):
    o = [salu("s_add_u32", "m0", sStg, b*4096), salu("s_mov_b32", sSide, h*98304 + b*4096)]
    for i in range(4): o.append(dma(vsd1 if i & 1 else vsd0, sQ, sSide, i*1024, aQ(h, 4*b + i), O_.fq))
    return o
def pad_vm(n):
    return [Inst(f"buffer_load_dword {X[4][0]}, {vlin}, {sQ}, {sThr} offen", "vld", rs(vlin, sQ, sThr), ()) for _ in range(n)]
def piecemeal(groups):
    st = []; pre = []
    for grp in groups:
        for x in grp:
            if x.kind in MEM: st.append(pre + [x]); pre = []
            else: pre.append(x)
    if pre: st[-1] += pre
    def more(n):
        o = st[:n]; del st[:n]; return o
    more.left = lambda: len(st)
    return more
def zero_mfmas():
    o = [mfma(V(144 + 16*k, 16), zero4, zero4, 0, big=True) for k in range(7)]
    o += [mfma(A(176 + 16*k, 16), zero4, zero4, 0, big=True) for k in range(5)]
    o += [mfma(A(128, 16), zero4, zero4, 0, big=True), mfma(A(144, 4), zero4, zero4, 0), mfma(A(148, 4), zero4, zero4, 0)]
    return o

def sm_ops(par, b, a):
    s = Sreg(b, a); p = Preg(par, b)
    return [valu("v_exp_f32", s[0], s[0]), valu("v_exp_f32", s[1], s[1]), valu("v_cvt_pk_bf16_f32", p[2*a], s[0], s[1]),
            valu("v_exp_f32", s[2], s[2]), valu("v_exp_f32", s[3], s[3]), valu("v_cvt_pk_bf16_f32", p[2*a+1], s[2], s[3])]
NE_A = 40
def sm_split(par):
    st = []
    for a in range(2):
        for b in range(NB): st += [(b, x) for x in sm_ops(par, b, a)]
    k = NE_A // 2 * 3
    return st[:k], st[k:]
def delay_cvts(xs):
    o = []; pend = []
    for x in xs:
        if x.kind == "trans":
            o.append(x)
            if pend: o.append(pend.pop(0))
        else: pend.append(x)
    return o + pend
def xlane_max(m, t):
    o = []
    for op in ("v_permlane32_swap_b32", "v_permlane16_swap_b32"):
        o += [valu("v_mov_b32", t, m), swap(op, m, t), valu("v_max_f32", m, m, t)]
    return o
def rowmax_ops(b):
    m, t = negM(b)[0], negM(b)[1]; sv = lambda r: V(8*b + r)
    o = [valu("v_max3_f32", m, sv(0), sv(1), sv(2)), valu("v_max3_f32", t, sv(3), sv(4), sv(5)),
         valu("v_max3_f32", m, m, sv(6), sv(7)), valu("v_max_f32", m, m, t)] + xlane_max(m, t)
    o += [valu("v_sub_f32", negM(b)[r], 0, m) for r in (1, 2, 3, 0)]
    return o, [valu("v_pk_add_f32", V(8*b + 2*r, 2), V(8*b + 2*r, 2), negM(b)[0:2]) for r in range(4)]
def scale_frag(x, dst, w, y, pk=True):
    o = []
    if pk:
        for r in range(4): o += [valu("v_lshlrev_b32", w[2*r], 16, x[r]), valu("v_and_b32", w[2*r+1], "0xffff0000", x[r])]
        for r in range(4): o.append(valu("v_pk_mul_f32", w[2*r:2*r+2], w[2*r:2*r+2], sC))
    else:
        for r in range(4):
            o += [valu("v_lshlrev_b32", w[2*r], 16, x[r]), valu("v_and_b32", w[2*r+1], "0xffff0000", x[r]),
                  valu("v_mul_f32", w[2*r], sC[0], w[2*r]), valu("v_mul_f32", w[2*r+1], sC[0], w[2*r+1])]
    if dst.k == "v": return o + [valu("v_cvt_pk_bf16_f32", dst[r], w[2*r], w[2*r+1]) for r in range(4)]
    for r in range(4): o.append(valu("v_cvt_pk_bf16_f32", y[r], w[2*r], w[2*r+1]))
    for r in range(4): o.append(valu("v_accvgpr_write_b32", dst[r], y[r]))
    return o
def qk_first(b): return [mfma(Sreg(b, a), F(4*a + s), Qreg(b, s), 0 if s == 0 else Sreg(b, a)) for a in range(2) for s in range(4)]

def startup():
    v0, vl, vi, vu, t0, t1, t2 = V(0), V(1), V(2), V(3), V(4), V(5), V(6)
    E(comment("---- setup"),
      raw("s_load_dwordx4 s[4:7], s[0:1], 0", "smem", (), rs(S(4, 4))),
      raw("s_load_dwordx4 s[8:11], s[0:1], 16", "smem", (), rs(S(8, 4))),
      scmp("s_cmp_ge_u32", S(2), 256), raw("s_cbranch_scc1 L_end", "salu", {"scc"}))
    if O_.stamps:
        E(raw("s_load_dwordx2 s[44:45], s[0:1], 40", "smem", (), rs(S(44, 2))),
          raw("s_memrealtime s[46:47]", "smem", (), rs(S(46, 2))))
    E(comment("pull the kernel's own code into L2 (one dword per 128-byte line)"),
      raw("s_getpc_b64 s[40:41]", "salu", (), rs(S(40, 2))), label("L_pc"),
      valu("v_lshlrev_b32", t0, 7, v0), valu("v_min_u32", t1, "L_fast_end-L_pc", t0),
      Inst(f"global_load_dword v7, {t1}, s[40:41]", "vld", rs(t1, S(40, 2)), rs(V(7))))
    E(valu("v_lshrrev_b32", t1, 6, v0), valu("v_and_b32", vl, 63, v0),
      valu("v_readfirstlane_b32", sW, t1),
      valu("v_and_b32", vi, 15, vl), valu("v_lshrrev_b32", vu, 4, vl),
      valu("v_lshlrev_b32", t0, 1, vu), valu("v_xor_b32", t0, t0, vi), valu("v_lshlrev_b32", t0, 4, t0),
      valu("v_lshl_add_u32", vsd0, vu, 8, t0), valu("v_xor_b32", vsd1, 128, vsd0),
      salu("s_and_b32", sT0, sW, 1), salu("s_lshr_b32", sT1, sW, 1),
      salu("s_lshl_b32", sT2, sT0, 7), salu("s_lshl_b32", sT0, sT0, 10), salu("s_lshl_b32", sT1, sT1, 12),
      salu("s_add_u32", sT0, sT0, sT1),
      valu("v_xor_b32", vkv, sT2, vsd0), valu("v_add_u32", vkv, sT0, vkv),
      salu("s_lshl_b32", sM0, sW, 12), salu("s_add_u32", sM0, sM0, 32768), salu("s_mul_i32", sStg, sW, 24576),
      salu("s_mul_i32", sT0, S(2), 196608), salu("s_add_u32", sT0, sT0, sStg), salu("s_add_u32", sStg, sStg, 65536),
      salu("s_lshl_b32", sT1, S(2), 18),
      salu("s_mov_b32", sQ[2], 98304 + 24576), salu("s_mov_b32", sQ[3], "0x20000"),
      wait(lgkm=0),
      salu("s_add_u32", sKb[0], S(6), sT1), salu("s_addc_u32", sKb[1], S(7), 0),
      salu("s_add_u32", sQ[0], S(4), sT0), salu("s_addc_u32", sQ[1], S(5), 0), salu("s_and_b32", sQ[1], sQ[1], "0xffff"))
    def grp(J, withV=True):
        op, im = ("s_add_u32", (J % 4)*16384 - 32768) if J % 4 >= 2 else ("s_sub_u32", 32768 - (J % 4)*16384)
        return [salu(op, "m0", sM0, im), nop(0)] + kv_dmas(J, withV) + [kv_step()]
    more = piecemeal([grp(-2, False)] + [q_dma_block(0, b) for b in range(NB)] + [grp(-1, False), grp(0), pad_vm(O_.qpp), grp(1)])
    E(more(10))
    E(salu("s_add_u32", sVb[0], S(8), sT1), salu("s_addc_u32", sVb[1], S(9), 0),
      salu("s_sub_u32", sVb[0], sVb[0], 1024 + 16384), salu("s_subb_u32", sVb[1], sVb[1], 0),
      salu("s_add_u32", sO[0], S(10), sT0), salu("s_addc_u32", sO[1], S(11), 0), salu("s_and_b32", sO[1], sO[1], "0xffff"),
      salu("s_mov_b32", sO[2], 98304 + 24576), salu("s_mov_b32", sO[3], "0x20000"),
      salu("s_mov_b32", sC[0], hex(CSCALE)), salu("s_mov_b32", sC[1], hex(CSCALE)),
      salu("s_mov_b32", sThr, hex(THRESH)), salu("s_mov_b32", sFlag, O_.force), salu("s_sub_u32", sQd, sStg, 98304))
    E(valu("v_and_b32", t0, 7, vi), valu("v_lshlrev_b32", t0, 1, t0), valu("v_xor_b32", t0, t0, vu), valu("v_lshlrev_b32", t0, 4, t0),
      valu("v_lshl_add_u32", t2, vi, 8, t0), valu("v_add_u32", qa[0], sStg, t2),
      valu("v_and_b32", t1, 3, vi), valu("v_lshl_add_u32", t0, t1, 8, t0),
      valu("v_lshrrev_b32", t1, 3, vi), valu("v_lshl_add_u32", t0, t1, 11, t0),
      valu("v_bfe_u32", t1, vi, 2, 1), valu("v_lshl_add_u32", t0, t1, 12, t0), valu("v_add_u32", kaddr[0], 32768, t0))
    for s in range(1, 4): E(valu("v_xor_b32", kaddr[s], s << 6, kaddr[0]), valu("v_xor_b32", qa[s], s << 6, qa[0]))
    E(valu("v_lshrrev_b32", t1, 2, vi), valu("v_and_b32", t2, 1, vu), valu("v_lshl_add_u32", t0, t2, 2, t1),
      valu("v_lshlrev_b32", t0, 5, t0), valu("v_lshl_add_u32", t0, t1, 8, t0), valu("v_lshl_add_u32", t0, t2, 12, t0),
      valu("v_lshrrev_b32", t2, 1, vu), valu("v_lshl_add_u32", t0, t2, 11, t0),
      valu("v_and_b32", t1, 3, vi), valu("v_lshl_add_u32", t0, t1, 3, t0), valu("v_add_u32", vaddr[0], 1024, t0))
    for t in range(1, 8): E(valu("v_xor_b32", vaddr[t], t << 5, vaddr[0]))
    E(Inst(f"v_cmp_eq_u32 vcc, 0, {t1}", "valu", rs(t1), {"vcc"}), valu("v_lshlrev_b32", vlin, 4, vl), valu("v_mov_b32", t0, "0x3f803f80"),
      Inst(f"v_cndmask_b32 {t0}, 0, {t0}, vcc", "valu", rs(t0, "vcc"), rs(t0)))
    for r in range(4): E(valu("v_accvgpr_write_b32", ones[r], t0), valu("v_mov_b32", zero4[r], 0))
    E(zero_mfmas(), more(O_.n0 - 10), stamp_now())
    E(comment("---- first K tile"), wait(vm=[aK(0)]), barrier())
    for a in range(2):
        for s in range(4): E(kread(0, a, s, F(4*a + s), 0))
    first, _ = sm_split(0)
    rawr = lambda s: V(72 + 4*s, 4)
    for b in range(NB):
        E(comment(f"---- start-up block {b}"), wait(vm=blk(aQ, 0, b)))
        for s in range(4): E(ds_read("ds_read_b128", rawr(s), qa[s], b*4096, blk(aQ, 0, b)))
        for s in range(4):
            E(wait(lgkm=[rawr(s)] + ([F(k) for k in range(8)] if b == 0 else [])))
            E(more(1), scale_frag(rawr(s), Qreg(b, s), V(88, 8), Sreg(b, s & 1)))
        E(qk_first(b))
        if b == NB - 1:
            E(wait(vm=[aK(1)]), barrier())
            for s in range(4): E(kread(1, 0, s, F(s), 1))
        E(rowmax_ops(b), delay_cvts([x for bb, x in first if bb == b]))
    E(more(99), salu("s_mov_b32", sSide, 98304), salu("s_mov_b32", sCnt, 7), wait(lgkm=[F(s) for s in range(4)]))
    if O_.itst: E(salu("s_mov_b32", S(5), 0))
    E(stamp_now())

def o_read(key, p, dst, off): return ds_read("ds_read_b128", dst, vsd1 if p & 1 else vsd0, off, key)
def pv_mfmas(par, frags, sums_first=False):
    mf = [mfma(lacc(b), ones, Preg(par, b), lacc(b)) for b in range(NB)] if sums_first else []
    for t in range(8):
        for b in range(NB): mf.append(mfma(Oreg(b, t), frags[t], Preg(par, b), Oreg(b, t)))
        if t < NB and not sums_first: mf.append(mfma(lacc(t), ones, Preg(par, t), lacc(t)))
    return mf
def late_pieces(k):
    cnt = [int(c, 16) for c in O_.olate]; nl = 6*O_.r1; assert nl <= 12 and nl + sum(cnt) == 24
    n0 = nl + sum(cnt[:k])
    return [(12 + n) % 24 for n in range(n0, n0 + cnt[k])]

def iteration(par, side, ctl):
    mf = [mfma(Sreg(b, a), F(4*a + s), Qreg(b, s), negM(b) if s == 0 else Sreg(b, a)) for a in range(2) for b in range(NB) for s in range(4)]
    mf += pv_mfmas(par, [F(t) for t in range(8)])
    sc = Sched(mf)
    for x in ctl: sc.fix(x, 101)
    sc.cap[101] = 0 if ctl else sc.cap[101]
    last = side == "last"
    ops = kv_dmas(2) if not last else kv_dmas(2, withK=False)
    dg = [2, 7, 12, 17]
    sc.fix(salu("s_mov_b32", "m0", sM0) if par == 0 else salu("s_add_u32", "m0", sM0, 16384), 0)
    if par == 1: sc.fix(salu("s_xor_b32", sM0, sM0, 32768), 1)
    for s in range(4): tk = sc.fix(kread(1, 1, s, F(4 + s), 1 - par), dg[s] - 1 if s < 3 else 13)
    for k, x in enumerate(ops): td = sc.fix(x, dg[k])
    st = sc.add(kv_step(), 0, 40, [(td, 1, 1)])
    sc.fix(wait(vm=[rV(0), rK(2)], lgkm=0), 23); tb = sc.fix(barrier(), 23)
    if O_.itst:
        for y in [raw("s_memrealtime s[42:43]", "smem", (), rs(S(42, 2))), wait(lgkm=0), raw("s_lshl_b64 exec, 1, s5"),
                  Inst("v_mov_b32 v143, s42", "valu", rs(S(42)), rs(V(143))), raw("s_mov_b64 exec, -1"), salu("s_add_u32", S(5), S(5), 1)]:
            y.m["last"] = True; sc.put(23, y)
    if last:
        sc.fix(salu("s_add_u32", "m0", sM0, 16384), 24); st.hi = 24
        for k, x in enumerate(kv_dmas(3, withK=False)): sc.fix(x, 27 + 5*k)
    if side == "Q" and par == 0 and O_.qpp:
        n = O_.qpp; assert n == 2
        sc.add(salu("s_add_u32", "m0", sSide, sQd), 30, 60)
        for k in range(n): t = sc.fix(dma(vsd1 if k & 1 else vsd0, sQ, sSide, k*1024, (lambda k: lambda c: aQ(1, n*(c["J"]//2) + k))(k), O_.fq), 66 + 14*k)
        sc.add(salu("s_add_u32", sSide, sSide, 1024*n), 0, 99, [(t, 1, 1)])
    if side == "O" and O_.r1 and par == 0:
        assert O_.r1 == 2
        for k in range(2):
            sc.fix(o_read((lambda k: lambda c: aO(0, 12 + c["J"] - 16 + k))(k), k, X[k], 12288 + k*1024), 16 + 3*k)
            t = sc.fix(vstore(X[k], vlin, sO, sSide, k*1024, O_.st_flags), 66 + 14*k)
        sc.add(salu("s_add_u32", sSide, sSide, 2048), 0, 99, [(t, 1, 1)])
        sc.seq([valu("v_add_u32", vsd0, 2048, vsd0), valu("v_add_u32", vsd1, 2048, vsd1)], 24, 99, hard=0)
    if last:
        nl = 6*O_.r1; ps = late_pieces(0)
        t = sc.seq([valu("v_subrev_u32", vsd0, 1024*nl, vsd0), valu("v_subrev_u32", vsd1, 1024*nl, vsd1)], 0, 10, hard=0) if nl else None
        sc.seq([o_read(aO(0, p), p, X[i], p*1024) for i, p in enumerate(ps)], 0, 21, t)
        sc.add(salu("s_mov_b32", sSide, ps[0]*1024), 24, 50)
        for i, p in enumerate(ps): sc.fix(vstore(X[i], vlin, sO, sSide, (p - ps[0])*1024, O_.st_flags), 56 + 12*i)
    tstart = [48 + 7*t - max(0, t - 6) for t in range(8)]
    p = tb
    for t in range(8):
        for a in range(2): p = sc.add(vread(0, t, a, F(t), par), 24 if t < 4 else 48, None, [(p, 1, 1)])
        if t in (1, 3): sc.add(wait(lgkm=[F(t - 1), F(t)]), 0, tstart[t - 1] - 1, [(p, 1, 8)])
    tv = p
    sc.add(wait(lgkm=[F(4), F(5), F(6), F(7)]), 0, tstart[4] - 1, [(p, 1, 8)])
    for s in range(4): p = sc.add(kread(2, 0, s, F(s), par), tstart[4], None, [(p, 1, 1)])
    sc.add(wait(lgkm=[F(s) for s in range(4)]), 0, 100, [(p, 1, 8)])
    if par == 0: sc.seq([valu("v_xor_b32", r, 32768, r) for r in kaddr], 24, tstart[4] - 1, hard=0)
    if par == 1:
        for r in vaddr: sc.add(valu("v_xor_b32", r, 32768, r), 0, 100, [(tv, 1, 1)])
    sc.sm([x for _, x in sm_split(par)[1]], 0, 30, (1, 21))
    sc.sm([x for _, x in sm_split(1 - par)[0]], 24, 100, (24, 98))
    sc.run(); sc.emit()

def br(text): return raw(text, "salu", {"scc"}, (), last=True)
def dec():
    x = salu("s_sub_u32", sCnt, sCnt, 1); x.m["last"] = True; return x
def loop(name, side, J0, n_iter):
    e = seg(name + "_even"); E(raw(".p2align 3", "label"), label(f"L_{name}"))
    if n_iter & 1:
        iteration(0, side, [dec(), br(f"s_cbranch_scc1 L_{name}_exit")])
        o = seg(name + "_odd"); iteration(1, side, [br(f"s_branch L_{name}")]); E(label(f"L_{name}_exit"))
    else:
        iteration(0, side, [])
        o = seg(name + "_odd"); iteration(1, side, [dec(), br(f"s_cbranch_scc0 L_{name}")])
    for k in range(n_iter): path.append((o if k & 1 else e, {"J": J0 + k}))

def o_addr_ops(ow, t0, t1):
    o = [valu("v_lshrrev_b32", t0, 9, vlin), valu("v_bfe_u32", t1, vlin, 4, 3), valu("v_xor_b32", t0, t0, t1),
         valu("v_lshlrev_b32", t0, 4, t0), valu("v_bfe_u32", t1, vlin, 8, 1), valu("v_lshl_add_u32", t0, t1, 3, t0),
         valu("v_bfe_u32", t1, vlin, 4, 4), valu("v_lshl_add_u32", t0, t1, 8, t0), valu("v_add_u32", ow[0], sStg, t0)]
    return o + [valu("v_xor_b32", ow[k], k << 5, ow[0]) for k in range(1, 4)]
def o_rd_addr_ops(t1):
    return [valu("v_lshrrev_b32", t1, 4, vlin), valu("v_and_b32", t1, "0x30", t1), valu("v_xor_b32", t1, t1, vlin),
            valu("v_add_u32", vsd0, sStg, t1), valu("v_xor_b32", vsd1, 64, vsd0)]
def l_ops(h, bs, rl, t1):
    o = [valu("v_accvgpr_read_b32", rl[b][1], lacc(b)[0]) for b in bs]
    o += [valu("v_rcp_f32", rl[b][0], rl[b][1]) for b in bs]
    o.append(valu("v_add_f32", t1, rl[bs[0]][1], rl[bs[1]][1]))
    o += [valu("v_add_f32", t1, t1, rl[b][1]) for b in bs[2:]]
    o.append(Inst(f"v_cmp_nlt_f32 {sCmp}, {t1}, {sThr}", "valu", rs(t1, sThr), rs(sCmp)))
    return o, [scmp("s_cmp_lg_u64", sCmp, 0), salu("s_cselect_b32", sT0, 1 << h, 0), salu("s_or_b32", sFlag, sFlag, sT0)]
def epi_half(h, b, th, rl, ow, tmp):
    r0 = Oreg(b, 4*th); w = V(r0.i, 16) if r0.k == "v" else tmp; o = []
    if r0.k == "a": o += [valu("v_accvgpr_read_b32", w[i], A(r0.i + i)) for i in range(16)]
    o += [valu("v_pk_mul_f32", w[2*i:2*i + 2], w[2*i:2*i + 2], rl[b], mods="op_sel_hi:[1,0]") for i in range(8)]
    o += [valu("v_cvt_pk_bf16_f32", w[i], w[2*i], w[2*i + 1]) for i in range(8)]
    o += [ds_write("ds_write_b64", ow[k], w[2*k:2*k + 2], b*4096 + th*128, blk(aO, h, b)) for k in range(4)]
    return o

def transition():
    s = seg("trans"); path.append((s, {"J": 15}))
    E(stamp_now(), comment("---- head 0: last PV; switch to head 1"))
    vf = X[:4] + [F(4), F(5), F(6), X[4]]
    def rawr(b, s_): return V(16 + 16*b + 4*s_, 4) if b < 2 else V(144 + 16*(b & 1) + 4*s_, 4)
    def qrd(b): return [ds_read("ds_read_b128", rawr(b, s_), qa[s_], b*4096, blk(aQ, 1, b)) for s_ in range(4)]
    rl = [V(72 + 2*b, 2) for b in range(NB)]; wt = V(84, 8); ow = [V(92 + k) for k in range(4)]
    rl0 = [V(48 + 2*b, 2) for b in range(NB)]
    more = piecemeal([q_dma_block(1, b) for b in range(2*O_.qpp, NB)])
    E(wait(vm=[rV(0), rK(2)] + blk(aQ, 1, 0) + blk(aQ, 1, 1)), barrier())
    vr = [vread(0, t, a, vf[t], 1) for t in range(8) for a in range(2)]
    E(vr[:2], delay_cvts([x for _, x in sm_split(1)[1]]))
    sc = Sched(pv_mfmas(1, vf, True))
    ts = [6 + 6*t for t in range(8)]
    sc.fix(salu("s_add_u32", "m0", sM0, 16384), 0); sc.fix(salu("s_xor_b32", sM0, sM0, 32768), 1)
    g = 2
    for x in kv_dmas(2): td = sc.fix(x, g); g += O_.tstep
    sc.add(kv_step(), 0, None, [(td, 1, 1)])
    for grp in more(O_.tq):
        for x in grp:
            if x.kind == "salu": sc.fix(x, g - 2)
            else: sc.fix(x, g); g += O_.tstep
    sc.add(wait(lgkm=[vf[0]]), 4, ts[0] - 1)
    p = None
    for t in range(1, 8):
        for a in range(2): p = sc.add(vr[2*t + a], 0, None, [(p, 1, 1)])
        sc.add(wait(lgkm=[vf[t]]), 0, ts[t] - 1, [(p, 1, 7)])
        if t == 2: p = q0 = sc.seq(qrd(0), 0, None, p)
    for r in vaddr: sc.add(valu("v_xor_b32", r, 32768, r), 0, None, [(p, 1, 1)])
    p = sc.seq(qrd(1) + [kread(1, 1, 3, F(7), 0)], 0, None, p)
    for k in range(3): p = sc.add(kread(1, 1, k, F(4 + k), 0), ts[5 + k] - 1, None, [(p, 1, 1)])
    sc.run()
    lv, ls = l_ops(0, list(range(NB)), rl0, V(60))
    st = list(lv)
    for n in range(O_.nsh): st += scale_frag(rawr(0, n), Qreg(0, n), V(0, 8), V(8 + 4*(n & 1), 4), pk=False)
    rest = sc.pour(st, 10); sc.emit(); E(rest, ls)
    first = sm_split(0)[0]; z = zero_mfmas()
    def finish(b, zs):
        E(rowmax_ops(b)[1])
        sc = Sched(zs); rest = sc.pour(delay_cvts([x for bb, x in first if bb == b])); sc.emit(); E(rest)
    for b in range(NB):
        E(comment(f"---- switch block {b}"), stamp_now() if O_.probe else None)
        if b >= 1: E(wait(lgkm=[rawr(b, n) for n in range(4)]))
        for n in range(O_.nsh if b == 0 else 0, 4):
            E(more(1), scale_frag(rawr(b, n), Qreg(b, n), V(0, 8) if b == 0 else wt, V(8, 4) if b == 0 else Sreg(b, n & 1)))
        if b == 0: E(wait(lgkm=[F(k) for k in range(8)]), barrier())
        sc = Sched(qk_first(b))
        if b == NB - 1:
            for s_ in range(4): sc.fix(kread(2, 0, s_, F(s_), 1), 4 + s_)
        elif b >= 1:
            sc.fix(wait(vm=blk(aQ, 1, b + 1)), 0)
            for s_, x in enumerate(qrd(b + 1)): sc.fix(x, 1 + 2*s_)
        st = o_addr_ops(ow, wt[0], wt[1]) + [valu("v_mov_b32", rl[k][0], rl0[k][0]) for k in range(NB)] if b == 0 else rowmax_ops(b - 1)[0]
        rest = sc.pour(st); sc.emit(); E(rest)
        for th in range(2): E(epi_half(0, b, th, rl, ow, V(176 + 16*th, 16)))
        if b >= 1: finish(b - 1, {1: z[12:15], 2: [], 3: z[4:6], 4: z[6:8], 5: z[8:10]}[b])
    if O_.itst: raise Exception("itst needs v143")
    sc = Sched(z[0:4] + z[10:12])
    rest = sc.pour(rowmax_ops(NB - 1)[0] + o_rd_addr_ops(wt[0]) + [valu("v_mov_b32", qa[k], ow[k]) for k in range(4)]); sc.emit(); E(rest)
    finish(NB - 1, [])
    E(salu("s_mov_b32", sSide, 12288), salu("s_mov_b32", sCnt, 5), wait(lgkm=[F(s_) for s_ in range(4)]), pad_vm(O_.r1))
    E(stamp_now())

def endgame():
    s = seg("end"); path.append((s, {"J": 29}))
    E(stamp_now())
    carry = []
    for ps, H in enumerate(([3, 4, 5], [0, 1, 2])):
        E(comment(f"---- pass {ps}"))
        subs = [("Q", 1, 0), ("Q", 1, 1), ("P", 0, 0), ("P", 0, 1), ("Q", 2, 0), ("Q", 2, 1), ("P", 1, 0), ("P", 1, 1), ("P", 2, 0), ("P", 2, 1)]
        mf = []; use = []; cend = {}; cstart = {}; pstart = {}; lend = 0
        for kind, d, x in subs:
            u = {}
            if kind == "Q":
                for b in H:
                    cstart[(d, b, x)] = len(mf)
                    for s_ in range(4):
                        u.setdefault(s_, []).append(len(mf))
                        mf.append(mfma(Sreg(b, x), F(4*x + s_), Qreg(b, s_), negM(b) if s_ == 0 else Sreg(b, x)))
                    cend[(d, b, x)] = len(mf) - 1
            else:
                par = (d + 1) & 1
                if x == 0: pstart[d] = len(mf)
                for k in range(4):
                    for b in H:
                        u.setdefault(k, []).append(len(mf))
                        mf.append(mfma(Oreg(b, 4*x + k), F(4*x + k), Preg(par, b), Oreg(b, 4*x + k)))
                    if x == 0 and k < 3: lend = len(mf); mf.append(mfma(lacc(H[k]), ones, Preg(par, H[k]), lacc(H[k])))
            use.append(u)
        sc = Sched(mf); bar = {}
        if ps == 0:
            for d, g in ((0, 9), (1, use[4][1][-1]), (2, use[6][0][-1])):
                sc.fix(wait(vm=[rV(d)] + ([rK(2)] if d == 0 else [])), g); bar[d] = sc.fix(barrier(), g)
        pcs = [(0, q) for q in late_pieces(1) + late_pieces(2)] if ps == 0 else [(0, q) for q in late_pieces(3)] + carry
        taken = {t.gap + k for t in bar.values() for k in (-1, 0, 1)}
        prev_st = [None]*4; pst = None; base = None
        for i, (h, q) in enumerate(pcs):
            g = 12 + (len(mf) - 16)*i//len(pcs)
            while g in taken or g - 1 in taken: g += 1
            off = h*98304 + q*1024
            if base is None or not 0 <= off - base < 4096:
                base = off; sc.add(salu("s_mov_b32", sSide, base), 0, g - 1, [(pst, 1, 1)])
            r = sc.add(o_read(aO(h, q), q, X[i & 3], q*1024), g - 30, g - 9, [(prev_st[i & 3], 1, 1)])
            sc.add(wait(lgkm=[X[i & 3]]), 0, g - 1, [(r, 1, 7)])
            pst = prev_st[i & 3] = sc.fix(vstore(X[i & 3], vlin, sO, sSide, off - base, O_.fin_flags if h else O_.st_flags), g)
        prev = None
        for i, (kind, d, x) in enumerate(subs):
            if i == 0: continue
            for k in range(4):
                lo = use[i - 2][k][-1] if i >= 2 else 0
                rds = [kread(d, x, k, F(4*x + k), d - 1)] if kind == "Q" else [vread(d, 4*x + k, a, F(4*x + k), d + 1) for a in range(2)]
                bp = bar.get(d if kind == "P" else (0 if d == 2 else None))
                for r in rds: prev = sc.add(r, lo, None, [(prev, 1, 1), (bp, 1, 1)])
                if k & 1: sc.add(wait(lgkm=[F(4*x + k - 1), F(4*x + k)]), 0, use[i][k - 1][0] - 1, [(prev, 1, 6)])
        if ps == 0:
            for k in range(4): prev = sc.add(kread(1, 0, k, F(k), 0), use[8][k][-1], None, [(prev, 1, 1)])
        for b in H:
            ops = [x for bb, x in sm_split(1)[1] if bb == b]
            if ops: sc.sm(ops, 0, cstart[(1, b, 1)] - 1)
        for d in (1, 2):
            for a in range(2):
                for b in H:
                    hi = pstart[d] - 2
                    if d == 1: hi = min(hi, cstart[(2, b, a)] - 1)
                    sc.sm(sm_ops((d + 1) & 1, b, a), cend[(d, b, a)] + 4, hi)
        sc.run()
        rl = {b: V(negM(H[0]).i + 2*k, 2) for k, b in enumerate(H)}
        lv, ls = l_ops(1, H, rl, V(negM(H[0]).i + 6))
        rest = sc.pour(lv, lend + 5); sc.emit()
        E(rest, ls, stamp_now(), comment("---- epilogue"))
        dsts = [X[:4], [F(4 + i) for i in range(4)]]
        pend = []
        for k, b in enumerate(H):
            for th in range(2):
                ep = epi_half(1, b, th, rl, qa, V(24, 16))
                E(ep)
                E(pend[:2]); del pend[:2]
            if ps == 0 and k > 0: carry += [(1, 4*b + i) for i in range(4)]; continue
            d_ = dsts[k & 1]
            E([o_read(aO(1, 4*b + i), i, d_[i], b*4096 + i*1024) for i in range(4)])
            sts = [vstore(d_[i], vlin, sO, sSide, i*1024, O_.fin_flags) for i in range(4)]
            pre = [salu("s_mov_b32", sSide, 98304 + b*4096), wait(lgkm=d_)]
            pend = [pre + [sts[0]], None, sts[1], None, sts[2], None, sts[3]] if ps == 0 else [pre + [sts[0]], sts[1], sts[2], sts[3]]
        E(pend, wait(lgkm=0), stamp_now())

def slow_path():
    sH, sB, sI, sKo, sQo = S(4), S(5), S(6), S(7), S(8)
    Qf = [V(4*s, 4) for s in range(4)]; Kf = [V(16 + 4*i, 4) for i in range(8)]; St = [V(48, 4), V(52, 4)]; Pf = V(56, 4)
    nm = V(60, 4); Vf = V(64, 4); Of = [V(68 + 4*t, 4) for t in range(8)]; L = V(100, 4); w = V(104, 8)
    vrow, vk, vv, vtr, vst_, t0, t1 = V(112), V(113), V(114), V(115), V(116), V(117), V(118)
    def S_(name, J=0):
        s = seg(name); return s
    s0 = S_("slow0")
    E(comment("---- fallback: a row sum left the safe range, redo this wave's rows with the true row max"),
      label("L_slow"), wait(vm=0, lgkm=0),
      valu("v_bfe_u32", t0, vlin, 4, 4), valu("v_lshrrev_b32", t1, 8, vlin),
      valu("v_lshlrev_b32", vrow, 8, t0), valu("v_lshl_add_u32", vst_, t1, 3, vrow), valu("v_lshl_add_u32", vrow, t1, 4, vrow),
      valu("v_lshrrev_b32", vtr, 2, t0), valu("v_lshl_add_u32", vtr, t1, 2, vtr), valu("v_lshlrev_b32", vtr, 8, vtr),
      valu("v_and_b32", t0, 3, t0), valu("v_lshl_add_u32", vtr, t0, 3, vtr), valu("v_add_u32", vtr, sStg, vtr),
      salu("s_mov_b32", sH, 0))
    s1 = S_("slow_head")
    E(label("L_sl_head"), salu("s_lshr_b32", sT0, sFlag, sH), salu("s_and_b32", sT0, sT0, 1), raw("s_cbranch_scc0 L_sl_next", "salu", {"scc"}),
      salu("s_lshl_b32", sKo, sH, 17), salu("s_mul_i32", sQo, sH, 98304), salu("s_mov_b32", sB, 0))
    s2 = S_("slow_blk")
    E(label("L_sl_blk"))
    for s in range(4): E(vload(Kf[s], vrow, sQ, sQo, 64*s))
    E(wait(vm=0))
    for s in range(4): E(scale_frag(Kf[s], Qf[s], w, None))
    E(valu("v_mov_b32", nm[0], "0xff800000"), valu("v_add_u32", vk, sKo, vrow), salu("s_mov_b32", sI, 32))
    s3 = S_("slow_p1")
    E(label("L_sl_p1"))
    for s in range(4): E(gload(Kf[s], vk, sKb, 64*s))
    E(valu("v_add_u32", vk, 4096, vk), wait(vm=0))
    for s in range(4): E(mfma(St[0], Kf[s], Qf[s], 0 if s == 0 else St[0]))
    E(salu("s_sub_u32", sI, sI, 1), scmp("s_cmp_lg_u32", sI, 0), nop(7),
      valu("v_max3_f32", nm[0], nm[0], St[0][0], St[0][1]), valu("v_max3_f32", nm[0], nm[0], St[0][2], St[0][3]),
      raw("s_cbranch_scc1 L_sl_p1", "salu", {"scc"}))
    s4 = S_("slow_mid")
    E(xlane_max(nm[0], nm[1]), [valu("v_sub_f32", nm[r], 0, nm[0]) for r in (1, 2, 3, 0)])
    for r in range(36): E(valu("v_mov_b32", V(68 + r), 0))
    E(valu("v_add_u32", vk, sKo, vrow), valu("v_add_u32", vv, sKo, vlin), valu("v_add_u32", vv, 1024 + 16384, vv), salu("s_mov_b32", sI, 16))
    s5 = S_("slow_p2")
    E(label("L_sl_p2"))
    key = (("stg", "slow"), ("Vs",), False)
    for half in range(2):
        E(salu("s_add_u32", "m0", sStg, 4096*half))
        for s in range(4): E(gload(Kf[4*half + s], vk, sKb, 64*s))
        for k in range(4): E(gdma(vv, sVb, 1024*k, key, ""))
        E(valu("v_add_u32", vk, 4096, vk), valu("v_add_u32", vv, 4096, vv))
    E(wait(vm=0))
    for a in range(2):
        for s in range(4): E(mfma(St[a], Kf[4*a + s], Qf[s], nm if s == 0 else St[a]))
    E(nop(7))
    for r in range(8): E(valu("v_exp_f32", V(48 + r), V(48 + r)))
    for r in range(4): E(valu("v_cvt_pk_bf16_f32", Pf[r], V(48 + 2*r), V(49 + 2*r)))
    E(mfma(L, ones, Pf, L))
    for t in range(8):
        for a in range(2): E(ds_read("ds_read_b64_tr_b16", Vf[2*a:2*a + 2], vtr, a*4096 + 32*t, key))
        E(wait(lgkm=0), mfma(Of[t], Vf, Pf, Of[t]), nop(1))
    E(salu("s_sub_u32", sI, sI, 1), scmp("s_cmp_lg_u32", sI, 0), raw("s_cbranch_scc1 L_sl_p2", "salu", {"scc"}))
    s6 = S_("slow_epi")
    E(nop(7), valu("v_rcp_f32", t0, L[0]), nop(0))
    for t in range(8):
        for r in range(4): E(valu("v_mul_f32", Of[t][r], t0, Of[t][r]))
        E(valu("v_cvt_pk_bf16_f32", Of[t][0], Of[t][0], Of[t][1]), valu("v_cvt_pk_bf16_f32", Of[t][1], Of[t][2], Of[t][3]),
          vstore(Of[t][0:2], vst_, sO, sQo, 32*t, "", "buffer_store_dwordx2"))
    E(salu("s_add_u32", sQo, sQo, 4096), salu("s_add_u32", sB, sB, 1), scmp("s_cmp_lt_u32", sB, NB), raw("s_cbranch_scc1 L_sl_blk", "salu", {"scc"}))
    s7 = S_("slow_next")
    E(label("L_sl_next"), salu("s_add_u32", sH, sH, 1), scmp("s_cmp_lt_u32", sH, 2), raw("s_cbranch_scc1 L_sl_head", "salu", {"scc"}))
    blkp = [s2, s3, s3, s4, s5, s5, s6]
    path2.extend((x, {"J": 0}) for x in [s0, s1] + blkp + blkp + [s7, s1] + blkp + [s7])

def finish():
    if O_.diag:
        a, b = [int(x) for x in O_.diag.split(":")]
        E(wait(vm=0), raw("s_memrealtime s[42:43]", "smem", (), rs(S(42, 2))), wait(lgkm=0), salu("s_mov_b32", S(47), S(42)),
          salu("s_sub_u32", sT0, S(STAMP0 + b), S(STAMP0 + a)), salu("s_lshr_b32", sT0, sT0, 3 if O_.stamps == 1 else 0),
          salu("s_add_u32", sT0, sT0, 7000),
          label("L_spin"), raw("s_memrealtime s[42:43]", "smem", (), rs(S(42, 2))), wait(lgkm=0),
          salu("s_sub_u32", S(42), S(42), S(46)), scmp("s_cmp_lt_u32", S(42), sT0), raw("s_cbranch_scc1 L_spin", "salu", {"scc"}))
    elif O_.stamps:
        E(wait(vm=0), raw("s_memrealtime s[42:43]", "smem", (), rs(S(42, 2))), wait(lgkm=0), salu("s_mov_b32", S(47), S(42)))
        E(salu("s_lshl_b32", sT0, S(2), 2), salu("s_add_u32", sT0, sT0, sW), salu("s_lshl_b32", sT0, sT0, 8))
        E(valu("v_mov_b32", V(1), sT0))
        for k in range(nstamp[0] + 2):
            E(valu("v_mov_b32", V(2), S(46 + k)),
              Inst(f"global_store_dword v1, v2, s[44:45] offset:{4*k}", "vst", rs(V(1), V(2), S(44, 2)), (), data=set()), nop(1))
    E(scmp("s_cmp_eq_u32", sFlag, 0), raw("s_cbranch_scc1 L_end", "salu", {"scc"}), label("L_fast_end"))

def build():
    s = seg("start"); path.append((s, {"J": 0})); startup()
    loop("A", "Q", 0, 15)
    transition()
    loop("C", "O", 16, 12)
    s = seg("j12"); path.append((s, {"J": 28})); E(stamp_now()); iteration(0, "last", [])
    endgame()
    finish()
    if O_.slow: slow_path()
    seg("exit"); E(label("L_end"))
    def trace(): return [(i, mkctx(c)) for sidx, c in path + path2 for i in segs[sidx][1]]
    for rnd in range(5):
        fix = {}
        resolve_and_check(trace(), fix=fix)
        for sg in segs:
            new = []
            for i in sg[1]:
                if i.kind == "wait" and i.m["nvm"] in (None, 63) and i.m["nlg"] in (None, 15): fix[0] = 1; continue
                if id(i) in fix: new.append(nop(fix[id(i)] - 1))
                new.append(i)
            sg[1][:] = new
        if not fix: break
    resolve_and_check(trace(), verbose=True)
    if O_.stamps:
        tr = [i for sidx, c in path for i in segs[sidx][1]]; cuts = [k for k, i in enumerate(tr) if i.kind == "smem" and "s[42:43]" in i.text]
        print("  est between stamps:", [cost_estimate(tr[a:b]) for a, b in zip(cuts, cuts[1:])])
    for name, ins in segs:
        if not name.startswith("slow"): print(f"  seg {name:8s} insts {len(ins):5d} est cycles {cost_estimate(ins):6d} nops {sum(1 for i in ins if i.kind == 'nop')}")

HEAD = """; MHA forward, B=16 H=32 Sq=384 Sk=512 D=128, bf16 in/out.  Generated by the author's own script (gen/gen4.py).
; row max (L_slow).
; @launch grid=(256,1,1) block=(256,1,1) lds=163840
.amdgcn_target "amdgcn-amd-amdhsa--gfx950"
.text
.globl standalone__mha_softmax__near_ridge_kernel
.p2align 8
.type standalone__mha_softmax__near_ridge_kernel,@function
standalone__mha_softmax__near_ridge_kernel:
"""
TAIL = """    s_endpgm
.section .rodata,"a"
.p2align 6
.amdhsa_kernel standalone__mha_softmax__near_ridge_kernel
  .amdhsa_next_free_vgpr 512
  .amdhsa_next_free_sgpr 102
  .amdhsa_accum_offset 256
  .amdhsa_group_segment_fixed_size 0
  .amdhsa_kernarg_size 48
  .amdhsa_user_sgpr_count 2
  .amdhsa_user_sgpr_kernarg_segment_ptr 1
  .amdhsa_system_sgpr_workgroup_id_x 1
.end_amdhsa_kernel
"""
if __name__ == "__main__":
    out = sys.argv[1]
    for a in sys.argv[2:]:
        k, v = a.split("=")
        setattr(O_, k, type(getattr(O_, k))(v))
    build()
    body = "\n".join((i.text if i.kind == "label" else "    " + i.text) for _, ins in segs for i in ins)
    open(out, "w").write(HEAD + body + "\n" + TAIL)
```

```python
class Reg:
    __slots__ = ("k", "i", "n")
    def __init__(s, k, i, n=1): s.k, s.i, s.n = k, i, n
    def __str__(s): return f"{s.k}{s.i}" if s.n == 1 else f"{s.k}[{s.i}:{s.i+s.n-1}]"
    __repr__ = __str__
    def set(s): return {f"{s.k}{s.i+j}" for j in range(s.n)}
    def __getitem__(s, j):
        if isinstance(j, slice):
            a = j.start or 0; b = s.n if j.stop is None else j.stop
            assert 0 <= a < b <= s.n
            return Reg(s.k, s.i + a, b - a)
        assert 0 <= j < s.n
        return Reg(s.k, s.i + j, 1)
def V(i, n=1): return Reg("v", i, n)
def A(i, n=1): return Reg("a", i, n)
def S(i, n=1): return Reg("s", i, n)
def rs(*xs):
    o = set()
    for x in xs:
        if isinstance(x, Reg): o |= x.set()
        elif isinstance(x, str) and x in ("m0", "vcc", "scc", "exec"): o.add(x)
    return o

class Inst:
    def __init__(s, text, kind, rd=(), wr=(), **m):
        s.text, s.kind, s.rd, s.wr, s.m = text, kind, set(rd), set(wr), m
    def __repr__(s): return s.text

TRANS = ("v_exp_f32", "v_rcp_f32", "v_log_f32", "v_rsq_f32", "v_sqrt_f32")
def valu(op, d, *src, mods="", rmw=False, extra_rd=(), extra_wr=()):
    t = f"{op} {d}, " + ", ".join(str(x) for x in src) + (" " + mods if mods else "")
    kind = "trans" if op in TRANS else "valu"
    rd = rs(*src) | set(extra_rd)
    if rmw: rd |= rs(d)
    return Inst(t, kind, rd, rs(d) | set(extra_wr), op=op)
def swap(op, x, y):
    return Inst(f"{op} {x}, {y}", "valu", rs(x, y), rs(x, y), op=op, perm=True)
def mfma(d, a, b, c, big=False):
    op = "v_mfma_f32_32x32x16_bf16" if big else "v_mfma_f32_16x16x32_bf16"
    assert d.n == (16 if big else 4) and a.n == 4 and b.n == 4
    if isinstance(c, Reg): assert c.k == d.k and c.n == d.n
    return Inst(f"{op} {d}, {a}, {b}, {c}", "mfma", rs(a, b, c), rs(d), big=big, d=str(d), c=str(c),
                ab=rs(a, b), cs=rs(c))
def salu(op, d, *src):
    t = f"{op} {d}" + "".join(f", {x}" for x in src)
    wr = rs(d)
    if op not in ("s_mov_b32", "s_mov_b64", "s_mul_i32", "s_getpc_b64", "s_cselect_b32", "s_mul_hi_u32"): wr = wr | {"scc"}
    rd = rs(*src)
    if op in ("s_addc_u32", "s_subb_u32", "s_cselect_b32"): rd.add("scc")
    return Inst(t, "salu", rd, wr)
def scmp(op, a, b): return Inst(f"{op} {a}, {b}", "salu", rs(a, b), {"scc"})
def raw(text, kind="salu", rd=(), wr=(), **m): return Inst(text, kind, rd, wr, **m)
def nop(n): return Inst(f"s_nop {n}", "nop", w=n + 1)
def label(n): return Inst(f"{n}:", "label")
def comment(t): return Inst(f"; {t}", "label")
def ds_read(op, d, addr, off, reg=None):
    assert 0 <= off < 65536
    return Inst(f"{op} {d}, {addr}" + (f" offset:{off}" if off else ""), "dsr", rs(addr), rs(d), reg=reg)
def ds_write(op, addr, data, off, reg=None):
    assert 0 <= off < 65536
    return Inst(f"{op} {addr}, {data}" + (f" offset:{off}" if off else ""), "dsw", rs(addr, data), (), reg=reg)
def ds_write2st64(addr, d0, d1, o0, o1, reg=None):
    assert 0 <= o0 < 256 and 0 <= o1 < 256
    return Inst(f"ds_write2st64_b64 {addr}, {d0}, {d1} offset0:{o0} offset1:{o1}", "dsw", rs(addr, d0, d1), (), reg=reg, wide=True)
def dma(voff, srd, soff, imm, reg, flags="nt"):
    assert 0 <= imm < 4096
    return Inst(f"buffer_load_dwordx4 {voff}, {srd}, {soff} offen" + (f" offset:{imm}" if imm else "") + f" {flags} lds",
                "dma", rs(voff, srd, soff, "m0"), (), reg=reg)
def gdma(voff, base, imm, reg, flags="nt"):
    assert 0 <= imm < 4096
    return Inst(f"global_load_lds_dwordx4 {voff}, {base}" + (f" offset:{imm}" if imm else "") + f" {flags}",
                "dma", rs(voff, base, "m0"), (), reg=reg, glob=True)
def gload(d, voff, base, imm):
    return Inst(f"global_load_dwordx4 {d}, {voff}, {base}" + (f" offset:{imm}" if imm else ""), "vld", rs(voff, base), rs(d))
def vload(d, voff, srd, soff, imm, flags=""):
    return Inst(f"buffer_load_dwordx4 {d}, {voff}, {srd}, {soff} offen" + (f" offset:{imm}" if imm else "") + f" {flags}",
                "vld", rs(voff, srd, soff), rs(d))
def vstore(data, voff, srd, soff, imm, flags="", op="buffer_store_dwordx4"):
    assert 0 <= imm < 4096
    return Inst(f"{op} {data}, {voff}, {srd}, {soff} offen" + (f" offset:{imm}" if imm else "") + f" {flags}",
                "vst", rs(data, voff, srd, soff), (), data=rs(data))
def wait(vm=None, lgkm=None):
    return Inst("s_waitcnt ?", "wait", vm=vm, lgkm=lgkm)
def barrier(): return Inst("s_barrier", "barrier")

class CheckError(Exception): pass

def resolve_and_check(trace, verbose=False, fix=None):
    def absreg(inst, ctx):
        r = inst.m.get("reg")
        return None if r is None else ctx(r)
    for inst, ctx in trace:
        if inst.kind == "wait": inst.m["nvm"] = None; inst.m["nlg"] = None
    for rnd in range(2):
        vq, lq = [], []
        for inst, ctx in trace:
            k = inst.kind
            if k in ("dma", "vld", "vst"): vq.append((inst, absreg(inst, ctx)))
            elif k in ("dsr", "dsw"): lq.append(inst)
            elif k == "smem": lq.append(inst); lq.append(inst)
            elif k == "wait":
                vm, lg = inst.m["vm"], inst.m["lgkm"]
                if vm is not None:
                    if isinstance(vm, int): n = vm
                    else:
                        keys = [ctx(x) for x in vm if not isinstance(x, Reg)]
                        regs = rs(*[x for x in vm if isinstance(x, Reg)])
                        n = 63
                        for idx, (q, ar) in enumerate(vq):
                            if (ar is not None and ar in keys) or (q.wr & regs): n = min(n, 62, len(vq) - 1 - idx)
                    o = inst.m["nvm"]; inst.m["nvm"] = n if o is None else min(o, n)
                    n = inst.m["nvm"]
                    if len(vq) > n: vq = vq[len(vq) - n:]
                if lg is not None:
                    if isinstance(lg, int): n = lg
                    else:
                        regs = rs(*lg); n = 15
                        for idx, q in enumerate(lq):
                            if q.wr & regs: n = min(n, 14, len(lq) - 1 - idx)
                        if any(q.kind == "smem" for q in lq): n = 0
                    o = inst.m["nlg"]; inst.m["nlg"] = n if o is None else min(o, n)
                    n = inst.m["nlg"]
                    if len(lq) > n: lq = lq[len(lq) - n:]
    for inst, ctx in trace:
        if inst.kind == "wait":
            p = []
            if inst.m["nvm"] is not None: p.append(f"vmcnt({inst.m['nvm']})")
            if inst.m["nlg"] is not None: p.append(f"lgkmcnt({inst.m['nlg']})")
            inst.text = "s_waitcnt " + " ".join(p)
    errs = []
    def err(i, msg): errs.append(f"[{i}] {trace[i][0].text}: {msg}")
    vq, lq = [], []
    region = {}
    epoch = 0
    hist = []
    pos = 0
    maxv = maxl = 0
    for i, (inst, ctx) in enumerate(trace):
        k = inst.kind
        if k == "label": continue
        touched = inst.rd | inst.wr
        for q in lq:
            if q[0].wr & touched: err(i, f"touches pending lgkm dest of '{q[0].text}'")
        for q in vq:
            if q[0].wr & touched: err(i, f"touches pending vm dest of '{q[0].text}'")
        for (pp, p) in reversed(hist):
            d = pos - pp
            if d > 20: break
            need = 0; why = ""
            pk = p.kind
            if pk in ("valu", "trans"):
                vw = {r for r in p.wr if r[0] in "va" and r != "vcc"}
                sw = {r for r in p.wr if r[0] == "s" or r == "vcc"} - {"scc"}
                if k == "mfma" and vw & inst.rd: need, why = 2, "valu->mfma"
                if k in ("valu", "trans") and pk == "trans" and vw & inst.rd: need, why = max(need, 1), "trans->valu"
                if (inst.m.get("perm") or inst.m.get("dpp")) and vw & inst.rd: need, why = max(need, 2), "valu->permlane/dpp"
                if inst.m.get("op") in ("v_readfirstlane_b32", "v_readlane_b32") and vw & inst.rd: need, why = max(need, 1), "valu->readlane"
                if k in ("valu", "trans") and sw & inst.rd: need, why = max(need, 2), "valu sgpr->valu"
                if k in ("dma", "vld", "vst") and sw & inst.rd: need, why = max(need, 5), "valu sgpr->vmem"
                if "exec" in p.wr and k == "mfma": need, why = max(need, 4), "exec->mfma"
            if pk == "mfma":
                big = p.m["big"]
                if k == "mfma":
                    if p.wr & inst.m["ab"]: need, why = (12 if big else 8), "mfma D->AB"
                    if p.wr & inst.m["cs"] and not (p.m["d"] == inst.m["c"] and big == inst.m["big"]):
                        need, why = max(need, 10 if big else 6), "mfma D->C overlap"
                    if p.wr & inst.wr and not (p.m["d"] == inst.m["c"] and big == inst.m["big"]) and big != inst.m["big"]:
                        need, why = max(need, 10), "mfma WAW shape"
                elif k in ("valu", "trans", "dsr", "dsw", "dma", "vld", "vst"):
                    if p.wr & touched: need, why = (12 if big else 8), "mfma D->other"
                    if p.m["cs"] & inst.wr: need, why = max(need, 7 if big else 3), "mfma C WAR"
            if pk == "salu" and "m0" in p.wr and k == "dma": need, why = 1, "m0->dma"
            if pk == "vst" and p.m["data"] & inst.wr: need, why = 2, "store data WAR"
            if need > d:
                if fix is not None: fix[id(inst)] = max(fix.get(id(inst), 0), need - d)
                else: err(i, f"hazard {why} after '{p.text}': have {d} need {need}")
        ar = absreg(inst, ctx)
        if k == "dma":
            phys, content, shared = ar
            st = region.setdefault(phys, dict(content=None, pend=0, vis=True, rd_out=0, rd_epoch=-1))
            if st["content"] != content:
                if st["rd_out"]: err(i, f"DMA into {phys} with reads outstanding")
                if shared and st["rd_epoch"] >= epoch: err(i, f"DMA into {phys}: last reads not separated by a barrier")
                if st["pend"]: err(i, f"DMA into {phys} over pending DMA of other content")
            st["content"] = content; st["pend"] += 1; st["vis"] = False; st["shared"] = shared
            vq.append((inst, phys))
        elif k in ("vld", "vst"): vq.append((inst, None))
        elif k == "dsr":
            ph = []
            if ar is not None:
                for (phys, content, shared) in (ar if isinstance(ar, list) else [ar]):
                    st = region.get(phys)
                    if st is None or st["content"] != content: err(i, f"reads {phys} expecting {content}, has {st and st['content']}")
                    elif st["pend"] or not st["vis"]: err(i, f"reads {phys} before visible (pend={st['pend']})")
                    if st is not None: st["rd_out"] += 1; ph.append(phys)
            lq.append((inst, ph))
        elif k == "dsw":
            if ar is not None:
                for (phys, content, shared) in (ar if isinstance(ar, list) else [ar]):
                    st = region.setdefault(phys, dict(content=None, pend=0, vis=True, rd_out=0, rd_epoch=-1))
                    assert not shared
                    if st["pend"]: err(i, f"ds_write into {phys} with DMA pending")
                    st["content"] = content; st["vis"] = True; st["shared"] = False
            lq.append((inst, []))
        elif k == "smem": lq.append((inst, [])); lq.append((inst, []))
        elif k == "wait":
            n = inst.m["nvm"]
            if n is not None:
                while len(vq) > n:
                    q, phys = vq.pop(0)
                    if phys is not None:
                        st = region[phys]; st["pend"] -= 1
                        if st["pend"] == 0 and not st["shared"]: st["vis"] = True
            n = inst.m["nlg"]
            if n is not None:
                if n > 0 and any(q[0].kind == "smem" for q in lq): err(i, "counted lgkm wait with smem outstanding")
                while len(lq) > n:
                    q, ph = lq.pop(0)
                    for phys in ph:
                        region[phys]["rd_out"] -= 1; region[phys]["rd_epoch"] = epoch
        elif k == "barrier":
            epoch += 1
            for st in region.values():
                if st["pend"] == 0: st["vis"] = True
        maxv = max(maxv, len(vq)); maxl = max(maxl, len(lq))
        if len(vq) > 63: err(i, "vmcnt overflow")
        w = inst.m.get("w", 1)
        pos += w
        hist.append((pos, inst))
        if len(hist) > 40: hist.pop(0)
    if verbose: print(f"trace {len(trace)} insts, max vm {maxv}, max lgkm {maxl}, barriers {epoch}")
    if errs:
        raise CheckError("\n".join(errs[:8]) + f"\n({len(errs)} errors)")


def cost_estimate(insts):
    t = 0; mf_free = 0; prev = None; valu_end = -99
    for x in insts:
        k = x.kind
        if k == "label": continue
        if k == "mfma":
            t = max(t, mf_free); mf_free = t + (32 if x.m["big"] else 16); t += 8
        elif k == "trans" or x.m.get("perm"): t += 8; valu_end = t
        elif k == "nop": t += 4 * x.m["w"]
        elif k in ("dsr", "dsw"):
            t = max(t, valu_end + 8) + (8 if prev == "dsr" else 4) + ((16 if x.m.get("wide") else 8) if k == "dsw" else 0)
        elif k in ("dma", "vld", "vst"):
            t = max(t, valu_end + 12) + (24 if k == "vst" else (8 if x.m.get("glob") else 12))
        elif k == "barrier": t += 30
        elif k == "valu":
            if x.m.get("op", "").startswith("v_pk_"): t = max(t, mf_free + 4)
            t += 4; valu_end = t
        else: t += 4
        prev = k
    return max(t, mf_free)
```

```python
import sys, math, struct
from ir import *

class Opt:
    stamps = 0; diag = ""; dq = -1; itst = 0
    st_flags = "sc1"; fin_flags = "sc1"; fq = "nt"; fk = "nt"; fv = "nt"
    n0 = 14
    qa0 = 3
    qpp = 3
    oc0 = 3
    r1 = 2
    dg = 76
    olate = "4446"
    nsh = 2
    slow = 1
    g12 = 16
    pvo = "bs2"
    qks = 1
    la1 = 3
    wgmap = 0
    probe = 0
    tq = 4
    tstep = 12
    force = 0
O_ = Opt()

NB = 6
def f32bits(x): return struct.unpack("<I", struct.pack("<f", x))[0]
CSCALE = f32bits(math.log2(math.e) / math.sqrt(128.0))
THRESH = f32bits(2.0 ** 64)

def Sreg(b, a): return V(8*b + 4*a, 4)
def Preg(par, b): return V(48 + 24*par + 4*b, 4)
def negM(b): return V(96 + 4*b, 4)
kaddr = [V(120 + s) for s in range(4)]
vaddr = [V(124 + t) for t in range(8)]
vkv = V(132); vsd0 = V(133); vsd1 = V(134); vlin = V(135)
qa = [V(136 + s) for s in range(4)]
ow = V(140)
ovr = V(141)
def Oreg(b, t):
    n = 8*b + t
    return V(144 + 4*n, 4) if n < 28 else A(176 + 4*(n - 28), 4)
def Qreg(b, s): return A(16*b + 4*s, 4)
def F(i): return A(96 + 4*i, 4)
def lacc(b): return A(128 + 4*(b//3), 4)
def sel(b): return A(136 + 4*(b % 3), 4)
X = [A(148 + 4*k, 4) for k in range(7)]
sQ, sO = S(12, 4), S(24, 4); sKb, sVb, sKx, sVx = S(16, 2), S(22, 2), S(18, 2), S(6, 2)
sW = S(28); sM0 = S(30); sStg = S(31); sSide = S(32); sT0 = S(33); sT1 = S(34); sT2 = S(35)
sFlag = S(36); sThr = S(37); sC = S(38, 2); sCmp = S(40, 2); sStamp = S(42, 2); sCnt = S(3); sQd = S(29); sHead = S(20)
STAMP0 = 48

def aK(J): return (("ring", (J - 2) % 4, "K"), ("K", J), True)
def aV(J): return (("ring", J % 4, "V"), ("V", J), True) if J < 31 else (("ring", 2, "K"), ("V", J), True)
def rK(d): return lambda c: aK(c["J"] + d)
def rV(d): return lambda c: aV(c["J"] + d)
def aQ(h, p): return (("stg", p), ("Q", h), False)
def aO(h, p): return (("stg", p), ("O", h), False)
def blk(f, h, b): return [f(h, 4*b + i) for i in range(4)]
def mkctx(c): return lambda r: r(c) if callable(r) else r

segs = []; path = []; path2 = []; cur = None
def seg(name):
    global cur
    cur = []; segs.append([name, cur]); return len(segs) - 1
def E(*xs):
    for x in xs:
        if x is None: continue
        if isinstance(x, (list, tuple)): E(*x)
        else: cur.append(x)
nstamp = [0]
def stamp_now():
    if O_.stamps not in (1, 2): return []
    k = nstamp[0]; nstamp[0] += 1
    op = "s_memtime" if O_.stamps == 1 else "s_memrealtime"
    return [raw(f"{op} {sStamp}", "smem", (), rs(sStamp)), wait(lgkm=0), salu("s_mov_b32", S(STAMP0 + k), sStamp[0])]

MEM = ("dsr", "dsw", "dma", "vld", "vst"); VAL = ("valu", "trans")
class Task:
    def __init__(s, x, lo, hi, preds): s.x, s.lo, s.hi, s.preds, s.gap = x, lo, hi, preds, None
class Sched:
    def __init__(s, mf):
        s.mf = mf; s.n = len(mf); s.g = [[] for _ in mf]; s.t = []
        s.cap = [24 if m.m["big"] else 8 for m in mf]; s.novalu = set()
    def cost(s, x): return 8 if x.kind == "trans" or x.m.get("perm") else 4
    def fits(s, g, x):
        if s.cap[g] < s.cost(x): return False
        if x.kind in MEM and any(y.kind in MEM for y in s.g[g]): return False
        if x.kind in VAL and g in s.novalu: return False
        return True
    def put(s, g, x): s.g[g].append(x); s.cap[g] -= s.cost(x)
    def fix(s, x, g):
        t = Task(x, g, g, []); t.gap = g; s.put(g, x)
        if x.kind in ("dma", "vst", "vld"): s.cap[g] = 0; s.novalu.add(g - 1)
        if x.kind == "barrier": s.cap[g] = 0
        return t
    def add(s, x, lo=0, hi=None, preds=()):
        t = Task(x, max(lo, 0), s.n - 1 if hi is None else min(hi, s.n - 1), [p for p in preds if p[0] is not None]); s.t.append(t); return t
    def seq(s, xs, lo=0, hi=None, after=None, hard=1):
        p = after
        for x in xs: p = s.add(x, lo, hi, [(p, hard, hard)])
        return p
    def sm(s, groups, smax=2.0):
        ex = [(x, lo, hi) for ops, lo, hi in groups for x in ops if x.kind == "trans"]
        sig = smax
        while True:
            pos = []; t = -9.0; ok = True
            for x, lo, hi in ex:
                t = max(lo, t + sig); g = int(t)
                while g < s.n and (not s.fits(g, x) or (pos and g <= pos[-1])): g += 1
                if g > hi - 1: ok = False; break
                pos.append(g); t = max(t, g - 0.5)
            if ok: break
            sig -= 0.05
            assert sig > 0.3, "softmax does not fit"
        k = 0
        for ops, lo, hi in groups:
            e = []
            for x in ops:
                if x.kind == "trans": e.append(s.fix(x, pos[k])); k += 1
                else: s.add(x, lo, min(hi, e[-1].gap + 5), [(e[-1], 1, 1)])
    def run(s):
        for t in reversed(s.t):
            for p, h, so in t.preds:
                if p.gap is None: p.hi = min(p.hi, t.hi - so)
        for t in s.t:
            for p, h, so in t.preds: t.lo = max(t.lo, p.lo + h)
            t.hi = max(t.hi, t.lo)
        left = list(s.t)
        for g in range(s.n):
            while True:
                rdy = [t for t in left if t.lo <= g and all(p.gap is not None and g >= p.gap + h for p, h, so in t.preds)]
                rdy = [t for t in rdy if t.hi <= g or all(g >= p.gap + so for p, h, so in t.preds)]
                rdy.sort(key=lambda t: t.hi)
                pick = next((t for t in rdy if t.hi <= g or s.fits(g, t.x)), None)
                if pick is None: break
                s.put(g, pick.x); pick.gap = g; left.remove(pick)
        assert not left, left[0].x
        s.t = []
    def pour(s, *streams):
        st = [[list(xs), lo] for xs, lo in streams]
        for g in range(s.n):
            again = True
            while again:
                again = False
                for q in st:
                    if q[0] and q[1] <= g and s.fits(g, q[0][0]): s.put(g, q[0].pop(0)); again = True; break
        return [x for q in st for x in q[0]]
    def emit(s):
        for m, g in zip(s.mf, s.g):
            key = lambda x: 3 if x.m.get("last") else (2 if x.kind in VAL else (0 if x.kind in MEM else 1))
            E(m, sorted(g, key=key))

def kread(d, a, s, dst, hi): return ds_read("ds_read_b128", dst, kaddr[s], hi*16384 + a*8192, rK(d))
def vread(d, t, a, dst, hi): return ds_read("ds_read_b64_tr_b16", dst[2*a:2*a+2], vaddr[t], (hi*16384 if hi < 3 else 32768 - 1024) + a*8192, rV(d))
def kv_dmas(d, withV=True, withK=True, checked=False):
    la = (lambda c: d) if d is not None else (lambda c: O_.la1 if c["J"] >= 16 else 2)
    o = []
    for im in (0, 2048):
        if withV: o.append(gdma(vkv, sVb, im + 1024, lambda c: aV(c["J"] + la(c)), O_.fv))
        key = lambda c: aK(c["J"] + la(c) + 2) if c["J"] + la(c) < 30 else aV(31)
        if withK: o.append(gdma(vkv, sKx if checked else sKb, im, key, O_.fk))
    return o
def m0_next():
    return [salu("s_mov_b32", "m0", sM0), salu("s_add_u32", sM0, sM0, 16384), salu("s_and_b32", sM0, sM0, "0xffff")]
def kv_step(): return valu("v_add_u32", vkv, 8192, vkv)
def q_dma_block(h, b):
    o = [salu("s_add_u32", "m0", sStg, b*4096), salu("s_mov_b32", sSide, h*98304 + b*4096)]
    for i in range(4): o.append(dma(vsd1 if i & 1 else vsd0, sQ, sSide, i*1024, aQ(h, 4*b + i), O_.fq))
    return o
def piecemeal(groups):
    st = []; pre = []
    for grp in groups:
        for x in grp:
            if x.kind in MEM: st.append(pre + [x]); pre = []
            else: pre.append(x)
    if pre: st[-1] += pre
    def more(n):
        o = st[:n]; del st[:n]; return o
    more.left = lambda: len(st)
    return more

def sm_ops(par, b, a):
    s = Sreg(b, a); p = Preg(par, b)
    return [valu("v_exp_f32", s[0], s[0]), valu("v_exp_f32", s[1], s[1]), valu("v_cvt_pk_bf16_f32", p[2*a], s[0], s[1]),
            valu("v_exp_f32", s[2], s[2]), valu("v_exp_f32", s[3], s[3]), valu("v_cvt_pk_bf16_f32", p[2*a+1], s[2], s[3])]
NE_A = 40
def sm_split(par):
    st = []
    for a in range(2):
        for b in range(NB): st += [(b, x) for x in sm_ops(par, b, a)]
    k = NE_A // 2 * 3
    return st[:k], st[k:]
def delay_cvts(xs):
    o = []; pend = []
    for x in xs:
        if x.kind == "trans":
            o.append(x)
            if pend: o.append(pend.pop(0))
        else: pend.append(x)
    return o + pend
def xlane_max(m, t):
    o = []
    for op in ("v_permlane32_swap_b32", "v_permlane16_swap_b32"):
        o += [valu("v_mov_b32", t, m), swap(op, m, t), valu("v_max_f32", m, m, t)]
    return o
def rowmax_ops(b):
    m, t = negM(b)[0], negM(b)[1]; sv = lambda r: V(8*b + r)
    o = [valu("v_max3_f32", m, sv(0), sv(1), sv(2)), valu("v_max3_f32", t, sv(3), sv(4), sv(5)),
         valu("v_max3_f32", m, m, sv(6), sv(7)), valu("v_max_f32", m, m, t)] + xlane_max(m, t)
    o += [valu("v_sub_f32", negM(b)[r], 0, m) for r in (1, 2, 3, 0)]
    return o, [valu("v_pk_add_f32", V(8*b + 2*r, 2), V(8*b + 2*r, 2), negM(b)[0:2]) for r in range(4)]
def scale_frag(x, dst, w, y, pk=True):
    o = []
    if pk:
        for r in range(4): o += [valu("v_lshlrev_b32", w[2*r], 16, x[r]), valu("v_and_b32", w[2*r+1], "0xffff0000", x[r])]
        for r in range(4): o.append(valu("v_pk_mul_f32", w[2*r:2*r+2], w[2*r:2*r+2], sC))
    else:
        for r in range(4):
            o += [valu("v_lshlrev_b32", w[2*r], 16, x[r]), valu("v_and_b32", w[2*r+1], "0xffff0000", x[r]),
                  valu("v_mul_f32", w[2*r], sC[0], w[2*r]), valu("v_mul_f32", w[2*r+1], sC[0], w[2*r+1])]
    if dst.k == "v": return o + [valu("v_cvt_pk_bf16_f32", dst[r], w[2*r], w[2*r+1]) for r in range(4)]
    for r in range(4): o.append(valu("v_cvt_pk_bf16_f32", y[r], w[2*r], w[2*r+1]))
    for r in range(4): o.append(valu("v_accvgpr_write_b32", dst[r], y[r]))
    return o
def chain(b, a, fr, c0, rev):
    return [(s, mfma(Sreg(b, a), fr[s], Qreg(b, s), c0 if n == 0 else Sreg(b, a))) for n, s in enumerate(range(3, -1, -1) if rev and O_.qks else range(4))]
def qk_first(b): return [m for a in range(2) for _, m in chain(b, a, [F(4*a + s) for s in range(4)], 0, a)]
def pv_pair(par, bs, t0, fr, init, sums):
    o = []
    if O_.pvo in ("t", "ts"):
        bs = sorted(bs)
        if 5 in sums and init: sums = []; o += [(None, rowsum(par, 5, init)), (None, rowsum(par, 4, init))]
        for k in range(2):
            for b in (bs if k == 0 or O_.pvo == "t" else bs[::-1]):
                o.append((t0 + k, mfma(Oreg(b, t0 + k), Preg(par, b), fr[k], 0 if init else Oreg(b, t0 + k))))
                if k == 0 and b in sums: o.append((None, rowsum(par, b, init)))
        return o
    for n, b in enumerate(bs):
        for k in ((0, 1) if n % 2 == 0 or O_.pvo == "pp2" else (1, 0)): o.append((t0 + k, mfma(Oreg(b, t0 + k), Preg(par, b), fr[k], 0 if init else Oreg(b, t0 + k))))
        if b in sums: o.insert(len(o) - 1, (None, rowsum(par, b, init)))
    return o
def rowsum(par, b, init=False): return mfma(lacc(b), Preg(par, b), sel(b), 0 if init and b in (0, 5) else lacc(b))

def startup():
    v0, vl, vi, vu, t0, t1, t2 = V(0), V(1), V(2), V(3), V(4), V(5), V(6)
    E(comment("---- setup"),
      raw("s_load_dwordx4 s[4:7], s[0:1], 0", "smem", (), rs(S(4, 4))),
      raw("s_load_dwordx4 s[8:11], s[0:1], 16", "smem", (), rs(S(8, 4))),
      scmp("s_cmp_ge_u32", S(2), 256), raw("s_cbranch_scc1 L_end", "salu", {"scc"}))
    if O_.wgmap == 1:
        E(salu("s_and_b32", sT0, S(2), 7), salu("s_lshr_b32", S(2), S(2), 3), salu("s_lshl_b32", sT0, sT0, 5), salu("s_or_b32", S(2), S(2), sT0))
    if O_.wgmap == 2: E(salu("s_and_b32", S(2), S(2), 7))
    if O_.stamps:
        E(raw("s_load_dwordx2 s[44:45], s[0:1], 40", "smem", (), rs(S(44, 2))),
          raw("s_memrealtime s[46:47]", "smem", (), rs(S(46, 2))))
    E(comment("pull the kernel's own code into L2 (one dword per 128-byte line)"),
      raw("s_getpc_b64 s[40:41]", "salu", (), rs(S(40, 2))), label("L_pc"),
      valu("v_lshlrev_b32", t0, 7, v0), valu("v_min_u32", t1, "L_fast_end-L_pc", t0),
      Inst(f"global_load_dword v7, {t1}, s[40:41]", "vld", rs(t1, S(40, 2)), rs(V(7))),
      valu("v_add_u32", t0, 32768, t0), valu("v_min_u32", t1, "L_fast_end-L_pc", t0),
      Inst(f"global_load_dword v8, {t1}, s[40:41]", "vld", rs(t1, S(40, 2)), rs(V(8))))
    E(valu("v_lshrrev_b32", t1, 6, v0), valu("v_and_b32", vl, 63, v0),
      valu("v_readfirstlane_b32", sW, t1),
      valu("v_and_b32", vi, 15, vl), valu("v_lshrrev_b32", vu, 4, vl),
      valu("v_lshlrev_b32", t0, 1, vu), valu("v_xor_b32", t0, t0, vi), valu("v_lshlrev_b32", t0, 4, t0),
      valu("v_lshl_add_u32", vsd0, vu, 8, t0), valu("v_xor_b32", vsd1, 128, vsd0),
      salu("s_and_b32", sT0, sW, 1), salu("s_lshr_b32", sT1, sW, 1),
      salu("s_lshl_b32", sT2, sT0, 7), salu("s_lshl_b32", sT0, sT0, 10), salu("s_lshl_b32", sT1, sT1, 12),
      salu("s_add_u32", sT0, sT0, sT1),
      valu("v_xor_b32", vkv, sT2, vsd0), valu("v_add_u32", vkv, sT0, vkv),
      salu("s_lshl_b32", sM0, sW, 12), salu("s_add_u32", sM0, sM0, 32768), salu("s_mul_i32", sStg, sW, 24576),
      salu("s_mul_i32", sT0, S(2), 196608), salu("s_add_u32", sT0, sT0, sStg), salu("s_add_u32", sStg, sStg, 65536),
      salu("s_lshl_b32", sT1, S(2), 18),
      salu("s_mov_b32", sQ[2], 98304 + 24576), salu("s_mov_b32", sQ[3], "0x20000"),
      wait(lgkm=0),
      salu("s_add_u32", sKb[0], S(6), sT1), salu("s_addc_u32", sKb[1], S(7), 0),
      salu("s_add_u32", sQ[0], S(4), sT0), salu("s_addc_u32", sQ[1], S(5), 0), salu("s_and_b32", sQ[1], sQ[1], "0xffff"))
    def grp(J, withV=True):
        ops = kv_dmas(J, withV)
        if J == 0: ops = ops[0::2] + ops[1::2]
        return m0_next() + ops + [kv_step()]
    more = piecemeal([grp(-2, False)] + [q_dma_block(0, b) for b in range(NB)] + [grp(-1, False), grp(0), grp(1)])
    E(more(10))
    E(salu("s_add_u32", sVb[0], S(8), sT1), salu("s_addc_u32", sVb[1], S(9), 0),
      salu("s_sub_u32", sVb[0], sVb[0], 1024 + 16384), salu("s_subb_u32", sVb[1], sVb[1], 0),
      salu("s_add_u32", sO[0], S(10), sT0), salu("s_addc_u32", sO[1], S(11), 0), salu("s_and_b32", sO[1], sO[1], "0xffff"),
      salu("s_mov_b32", sO[2], 98304 + 24576), salu("s_mov_b32", sO[3], "0x20000"),
      salu("s_add_u32", sVx[0], sVb[0], 1024 + 8192), salu("s_addc_u32", sVx[1], sVb[1], 0),
      salu("s_mov_b32", sC[0], hex(CSCALE)), salu("s_mov_b32", sC[1], hex(CSCALE)),
      salu("s_mov_b32", sThr, hex(THRESH)), salu("s_mov_b32", sFlag, O_.force), salu("s_sub_u32", sQd, sStg, 98304))
    E(valu("v_and_b32", t0, 7, vi), valu("v_lshlrev_b32", t0, 1, t0), valu("v_xor_b32", t0, t0, vu), valu("v_lshlrev_b32", t0, 4, t0),
      valu("v_lshl_add_u32", t2, vi, 8, t0), valu("v_add_u32", qa[0], sStg, t2),
      valu("v_and_b32", t1, 3, vi), valu("v_lshl_add_u32", t0, t1, 8, t0),
      valu("v_lshrrev_b32", t1, 3, vi), valu("v_lshl_add_u32", t0, t1, 11, t0),
      valu("v_bfe_u32", t1, vi, 2, 1), valu("v_lshl_add_u32", t0, t1, 12, t0), valu("v_add_u32", kaddr[0], 32768, t0))
    for s in range(1, 4): E(valu("v_xor_b32", kaddr[s], s << 6, kaddr[0]), valu("v_xor_b32", qa[s], s << 6, qa[0]))
    E(valu("v_lshrrev_b32", t1, 2, vi), valu("v_and_b32", t2, 1, vu), valu("v_lshl_add_u32", t0, t2, 2, t1),
      valu("v_lshlrev_b32", t0, 5, t0), valu("v_lshl_add_u32", t0, t1, 8, t0), valu("v_lshl_add_u32", t0, t2, 12, t0),
      valu("v_lshrrev_b32", t2, 1, vu), valu("v_lshl_add_u32", t0, t2, 11, t0),
      valu("v_and_b32", t1, 3, vi), valu("v_lshl_add_u32", t0, t1, 3, t0), valu("v_add_u32", vaddr[0], 32768 + 1024, t0))
    for t in range(1, 8): E(valu("v_xor_b32", vaddr[t], t << 5, vaddr[0]))
    E(valu("v_mov_b32", t2, "0x3f803f80"))
    for k in range(3):
        E(Inst(f"v_cmp_eq_u32 vcc, {k}, {vi}", "valu", rs(vi), {"vcc"}), nop(1), Inst(f"v_cndmask_b32 {t0}, 0, {t2}, vcc", "valu", rs(t2, "vcc"), rs(t0)),
          [valu("v_accvgpr_write_b32", sel(k)[r], t0) for r in range(4)])
    E(valu("v_lshlrev_b32", t0, 3, vl), valu("v_add_u32", ow, sStg, t0),
      valu("v_bfe_u32", t1, vi, 1, 1), valu("v_lshl_add_u32", t0, t1, 2, vu), valu("v_lshlrev_b32", t0, 9, t0),
      valu("v_and_b32", t1, 1, vi), valu("v_lshl_add_u32", t0, t1, 6, t0), valu("v_lshrrev_b32", t1, 2, vi),
      valu("v_lshl_add_u32", t0, t1, 3, t0), valu("v_add_u32", ovr, sStg, t0),
      valu("v_and_b32", t2, 3, vi), valu("v_lshlrev_b32", t0, 5, t2), valu("v_lshl_add_u32", t0, vu, 8, t0),
      valu("v_and_b32", t2, 1, t1), valu("v_lshl_add_u32", t0, t2, 4, t0), valu("v_lshrrev_b32", t2, 1, t1), valu("v_lshl_add_u32", vlin, t2, 7, t0))
    E(more(O_.n0 - 10), stamp_now())
    E(comment("---- first K tile"), wait(vm=[aK(0)]), barrier())
    for a in range(2):
        for s in range(4): E(kread(0, a, s, F(4*a + s), 0))
    first, _ = sm_split(0)
    rawr = lambda s: V(72 + 4*s, 4)
    for b in range(NB):
        E(comment(f"---- start-up block {b}"), wait(vm=blk(aQ, 0, b)))
        for s in range(4): E(ds_read("ds_read_b128", rawr(s), qa[s], b*4096, blk(aQ, 0, b)))
        for s in range(4):
            E(wait(lgkm=[rawr(s)] + ([F(k) for k in range(8)] if b == 0 else [])))
            E(more(1), scale_frag(rawr(s), Qreg(b, s), V(88, 8), Sreg(b, s & 1)))
        E(qk_first(b))
        if b == NB - 1:
            E(wait(vm=[aK(1)]), barrier())
            for s in range(4): E(kread(1, 0, s, F(s), 1))
        E(rowmax_ops(b), delay_cvts([x for bb, x in first if bb == b]))
    E(more(99), salu("s_mov_b32", sSide, 98304), salu("s_mov_b32", sCnt, O_.qa0 - 1), salu("s_mov_b32", sHead, 0), wait(lgkm=[F(s) for s in range(4)]))
    if O_.itst: E(salu("s_mov_b32", S(5), 0))
    E(stamp_now())

def o_read(key, p, dst):
    return [ds_read("ds_read_b64_tr_b16", dst[2*hi:2*hi + 2], ovr, (p >> 2)*4096 + (p & 3)*128 + hi*32, key) for hi in range(2)]
def pv_mfmas(par, frags, sums_first=False, init=False):
    mf = [rowsum(par, b) for b in range(NB)] if sums_first else []; st = []
    for h in range(4):
        st.append(len(mf))
        sums = [] if sums_first else [(0, 1), (5, 4), (2,), (3,)][h]
        mf += [m for _, m in pv_pair(par, range(NB) if h % 2 == 0 else range(NB - 1, -1, -1), 2*h, frags[2*h:2*h + 2], init, sums)]
    return mf, st
def late_pieces(k):
    cnt = [int(c, 16) for c in O_.olate]
    order = [p for p in list(range(12, 24)) + list(range(12)) if not (p >> 2 >= O_.oc0 and (p & 3) < O_.r1)]; assert sum(cnt) == len(order), len(order)
    return order[sum(cnt[:k]):sum(cnt[:k + 1])]

def iteration(par, side, ctl):
    mf = [m for a in range(2) for b in range(NB) for _, m in chain(b, a, [F(4*a + s) for s in range(4)], negM(b), b & 1)]
    pv, pst = pv_mfmas(par, [F(t) for t in range(8)], init=(side == "first"))
    mf += pv; pst = [48 + x for x in pst]
    sc = Sched(mf)
    for x in ctl: sc.fix(x, 101)
    sc.cap[101] = 0 if ctl else sc.cap[101]
    last = side == "last"
    d0 = O_.dg
    for s in range(4): tk = sc.fix(kread(1, 1, s, F(4 + s), 1 - par), [1, 6, 11, 13][s])
    if not last:
        chk = side == "O" and par == 1
        mm = m0_next(); tm = sc.fix(mm[0], d0 - 2); tm = sc.seq(mm[1:], 0, 99, tm)
        for k, x in enumerate(kv_dmas(None, checked=chk)): td = sc.fix(x, d0 + 5*k)
        sc.add(kv_step(), 0, 100, [(td, 1, 1)])
        if chk:
            sc.fix(scmp("s_cmp_eq_u32", sCnt, 0), 21); sc.fix(raw(f"s_cselect_b64 {sKx}, {sVx}, {sKb}", "salu", rs(sVx, sKb, "scc"), rs(sKx)), 21)
    sg = [56, 68, 80, 92] if d0 < 40 else [30, 40, 52, 62]
    tb2 = None
    if side == "first":
        sc.fix(wait(vm=[rV(0)], lgkm=0), 23); tb = sc.fix(barrier(), 23)
        sc.fix(wait(vm=[rK(2)]), 72); tb2 = sc.fix(barrier(), 72)
    else:
        sc.fix(wait(vm=[rV(0), rK(2)], lgkm=0), 23); tb = sc.fix(barrier(), 23)
    if O_.itst:
        for y in [raw("s_memrealtime s[42:43]", "smem", (), rs(S(42, 2))), wait(lgkm=0), raw("s_lshl_b64 exec, 1, s5"),
                  Inst("v_accvgpr_write_b32 a175, s42", "valu", rs(S(42)), rs(A(175))), raw("s_mov_b64 exec, -1"), salu("s_add_u32", S(5), S(5), 1)]:
            y.m["last"] = True; sc.put(23, y)
    if side == "Q" and par == 0 and O_.qpp:
        n = O_.qpp
        sc.fix(salu("s_add_u32", "m0", sSide, sQd), sg[0] - 2)
        for k in range(n): t = sc.fix(dma(vsd1 if k & 1 else vsd0, sQ, sSide, k*1024, (lambda k: lambda c: aQ(1, n*(c["J"]//2 - O_.qa0) + k))(k), O_.fq), sg[k])
        sc.add(salu("s_add_u32", sSide, sSide, 1024*n), 0, 99, [(t, 1, 1)])
        if n & 1:
            for r in (vsd0, vsd1): sc.add(valu("v_xor_b32", r, 128, r), 0, 99, [(t, 1, 1)])
    if side == "O" and par == 0:
        rds = [x for k in range(O_.r1) for x in o_read((lambda k: lambda c: aO(0, 2*(c["J"] - 16) + k))(k), 4*O_.oc0 + k, X[k])]
        sc.seq(rds, 0, 20)
        for k in range(O_.r1): t = sc.fix(vstore(X[k], vlin, sO, sSide, k*1024, O_.st_flags), sg[k])
        sc.add(salu("s_add_u32", sSide, sSide, 4096), 0, 99, [(t, 1, 1)])
        sc.add(valu("v_add_u32", ovr, 4096, ovr), 24, 99)
    if last:
        nl = 4*(6 - O_.oc0); ps = late_pieces(0)
        t = sc.add(valu("v_subrev_u32", ovr, 1024*nl, ovr), 0, 3) if nl else None
        base = None
        for i, p in enumerate(ps):
            g = O_.g12 + (96 - O_.g12)*i//max(1, len(ps) - 1)
            while g in (22, 23, 24): g += 1
            t = sc.seq(o_read(aO(0, p), p, X[i]), 0, g - 8, t); sc.add(wait(lgkm=[X[i]]), 0, g - 1, [(t, 1, 6)])
            if base is None or not 0 <= p - base < 4: base = p; sc.fix(salu("s_mov_b32", sSide, p*1024), g - 1)
            sc.fix(vstore(X[i], vlin, sO, sSide, (p - base)*1024, O_.st_flags), g)
    tstart = [pst[t//2] for t in range(8)]
    p = tb
    for t in range(8):
        for a in range(2): p = sc.add(vread(0, t, a, F(t), par), 24 if t < 4 else 48, None, [(p, 1, 1)])
        if t in (1, 3): sc.add(wait(lgkm=[F(t - 1), F(t)]), 0, tstart[t - 1] - 1, [(p, 1, 8)])
    tv = p
    sc.add(wait(lgkm=[F(4), F(5), F(6), F(7)]), 0, tstart[4] - 1, [(p, 1, 8)])
    for s in range(4): p = sc.add(kread(2, 0, s, F(s), par), tstart[4], None, [(p, 1, 1), (tb2, 1, 1)])
    sc.add(wait(lgkm=[F(s) for s in range(4)]), 0, 100, [(p, 1, 8)])
    if par == 0: sc.seq([valu("v_xor_b32", r, 32768, r) for r in kaddr], 24, tstart[4] - 1, hard=0)
    if par == 0:
        for t, r in enumerate(vaddr): sc.add(valu("v_xor_b32", r, 32768, r), 0, 22 if t < 4 else 46)
    sc.sm([([x for _, x in sm_split(par)[1]], 0, 30)], 2.4)
    sc.sm([([x for _, x in sm_split(1 - par)[0]], 24, 100)])
    sc.run(); sc.emit()

def br(text): return raw(text, "salu", {"scc"}, (), last=True)
def dec():
    x = salu("s_sub_u32", sCnt, sCnt, 1); x.m["last"] = True; return x
def loop(name, side, J0, n_iter):
    e = seg(name + "_even"); E(raw(".p2align 3", "label"), label(f"L_{name}"))
    if n_iter & 1:
        iteration(0, side, [dec(), br(f"s_cbranch_scc1 L_{name}_exit")])
        o = seg(name + "_odd"); iteration(1, side, [br(f"s_branch L_{name}")]); E(label(f"L_{name}_exit"))
    else:
        iteration(0, side, [])
        o = seg(name + "_odd"); iteration(1, side, [dec(), br(f"s_cbranch_scc0 L_{name}")])
    for k in range(n_iter): path.append((o if k & 1 else e, {"J": J0 + k}))

def l_ops(h, b0, r, t1):
    o = [valu("v_accvgpr_read_b32", r[k], lacc(b0)[k]) for k in range(4)]
    o += [valu("v_add_f32", t1, r[0], r[1]), valu("v_add_f32", t1, t1, r[2]), valu("v_add_f32", t1, t1, r[3])]
    o += [valu("v_rcp_f32", r[k], r[k]) for k in range(4)]
    return o
def l_flag(h, t1):
    return [Inst(f"v_cmp_nlt_f32 {sCmp}, {t1}, {sThr}", "valu", rs(t1, sThr), rs(sCmp)), nop(0),
            scmp("s_cmp_lg_u64", sCmp, 0), salu("s_cselect_b32", sT0, 1 << h, 0), salu("s_or_b32", sFlag, sFlag, sT0)]
def l_bcast(b, r, dst):
    o = [valu("v_mov_b64_dpp", dst[2*k:2*k + 2], r[2*k:2*k + 2], mods=f"row_newbcast:{b % 3} row_mask:0xf bank_mask:0xf") for k in range(2)]
    for x in o: x.m["dpp"] = True
    return o
def epi_half(h, b, th, rl, tmp, y):
    r0 = Oreg(b, 4*th); w = V(r0.i, 16) if r0.k == "v" else tmp; o = []
    if r0.k == "a": o += [valu("v_accvgpr_read_b32", w[i], A(r0.i + i)) for i in range(16)]
    o += [valu("v_pk_mul_f32", w[2*i:2*i + 2], w[2*i:2*i + 2], rl[2*(i & 1):2*(i & 1) + 2]) for i in range(8)]
    o += [valu("v_cvt_pk_bf16_f32", y[2*r + k], w[8*k + r], w[8*k + 4 + r]) for r in range(4) for k in range(2)]
    o += [ds_write2st64(ow, y[4*k:4*k + 2], y[4*k + 2:4*k + 4], 8*b + 4*th + 2*k, 8*b + 4*th + 2*k + 1, blk(aO, h, b)) for k in range(2)]
    return o

def transition():
    s = seg("trans"); path.append((s, {"J": 15}))
    E(stamp_now(), comment("---- head 0: last PV; switch to head 1"))
    vf = X[:4] + [F(4), F(5), X[4], X[5]]
    def rawr(b, s_): return V(16 + 16*b + 4*s_, 4) if b < 2 else V(144 + 16*(b & 1) + 4*s_, 4)
    def qrd(b): return [ds_read("ds_read_b128", rawr(b, s_), qa[s_], b*4096, blk(aQ, 1, b)) for s_ in range(4)]
    rc = [negM(4), negM(5)]; wt = V(84, 8)
    rl = V(72, 4); y = V(76, 8)
    npre = O_.qpp*(8 - O_.qa0); assert npre >= 8
    if npre & 1: E(valu("v_xor_b32", vsd0, 128, vsd0), valu("v_xor_b32", vsd1, 128, vsd1))
    more = piecemeal([[x for k, x in enumerate(q_dma_block(1, b)) if k < 2 or 4*b + k - 2 >= npre] for b in range(npre//4, NB)]
                     + [m0_next() + kv_dmas(2) + [kv_step()], m0_next() + kv_dmas(3) + [kv_step()]])
    E(wait(vm=[rV(0), rK(2)] + blk(aQ, 1, 0)), barrier())
    vr = [vread(0, t, a, vf[t], 1) for t in range(8) for a in range(2)]
    E(vr[:4], delay_cvts([x for _, x in sm_split(1)[1]]))
    pv, pst = pv_mfmas(1, vf, True)
    sc = Sched(pv)
    g = 8
    for grp in more(O_.tq):
        for x in grp:
            if x.kind == "salu": sc.fix(x, g - 2)
            else: sc.fix(x, g); g += O_.tstep
    sc.add(wait(lgkm=vf[:2]), 4, pst[0] - 1)
    p = sc.seq(qrd(0), 0); wq = sc.add(wait(lgkm=[rawr(0, 3)]), 0, 12, [(p, 1, 6)])
    p = sc.seq(vr[4:8], 0, None, p); sc.add(wait(lgkm=vf[2:4]), 0, pst[1] - 1, [(p, 1, 6)])
    p = sc.seq(vr[8:], 0, None, p); sc.add(wait(lgkm=vf[4:]), 0, pst[2] - 1, [(p, 1, 6)])
    p = sc.seq([kread(1, 1, 2, F(6), 0), kread(1, 1, 3, F(7), 0), wait(vm=blk(aQ, 1, 1))] + qrd(1), 28, None, p)
    for k in range(2): p = sc.add(kread(1, 1, k, F(4 + k), 0), pst[3] - 1, None, [(p, 1, 1)])
    sc.run()
    lv = l_ops(0, 0, rc[0], V(60)) + l_ops(0, 3, rc[1], V(61)) + [valu("v_add_f32", V(60), V(60), V(61))]; ls = l_flag(0, V(60))
    st = []
    for n in range(O_.nsh): st += scale_frag(rawr(0, n), Qreg(0, n), V(0, 8), V(8 + 4*(n & 1), 4), pk=False)
    rest = sc.pour((lv, 10), (st, wq.gap + 1)); sc.emit(); E(rest, ls)
    first = sm_split(0)[0]
    def finish(b): return rowmax_ops(b)[1] + delay_cvts([x for bb, x in first if bb == b])
    for b in range(NB):
        E(comment(f"---- switch block {b}"), stamp_now() if O_.probe else None)
        if b >= 2: E(wait(lgkm=[rawr(b, n) for n in range(4)]))
        for n in range([O_.nsh, 1, 0, 0, 0, 0][b], 4):
            E(more(1), scale_frag(rawr(b, n), Qreg(b, n), V(0, 8) if b == 0 else wt, V(8, 4) if b == 0 else Sreg(b, n & 1)))
        if b == 0: E(wait(lgkm=[F(k) for k in range(8)] + [rawr(1, n) for n in range(4)]), barrier())
        sc = Sched(qk_first(b))
        if b == NB - 1:
            for s_ in range(4): sc.fix(kread(2, 0, s_, F(s_), 1), 4 + s_)
        elif b >= 1:
            sc.fix(wait(vm=blk(aQ, 1, b + 1)), 0)
            for s_, x in enumerate(qrd(b + 1)): sc.fix(x, 1 + 2*s_)
        rest = sc.pour((rowmax_ops(b - 1)[0] if b else scale_frag(rawr(1, 0), Qreg(1, 0), wt, Sreg(1, 0), pk=False), 0)); sc.emit(); E(rest)
        E(l_bcast(b, rc[b//3], rl), epi_half(0, b, 0, rl, V(176, 16), y), finish(b - 1) if b else None, epi_half(0, b, 1, rl, V(192, 16), y))
    assert more.left() == 0
    E(rowmax_ops(NB - 1)[0], finish(NB - 1))
    E(salu("s_mov_b32", sSide, 4096*O_.oc0), salu("s_mov_b32", sCnt, O_.oc0 - 1), salu("s_mov_b32", sHead, 1), wait(lgkm=[F(s_) for s_ in range(4)]))
    E(stamp_now(), raw("s_branch L_first"))

def endgame():
    s = seg("end"); path.append((s, {"J": 29}))
    E(stamp_now())
    carry = []
    for ps, H in enumerate(([3, 4, 5], [0, 1, 2])):
        E(comment(f"---- pass {ps}"))
        subs = [("Q", 1, 0), ("Q", 1, 1), ("P", 0, 0), ("P", 0, 1), ("Q", 2, 0), ("Q", 2, 1), ("P", 1, 0), ("P", 1, 1), ("P", 2, 0), ("P", 2, 1)]
        FA, FB = [F(k) for k in range(4)], [F(4 + k) for k in range(4)]
        G = [[Qreg(3 + n, k) for k in range(4)] for n in range(3)]; Hh = [[A(176 + 16*n + 4*k, 4) for k in range(4)] for n in range(5)]
        fr = [FA, FB, FA, FB, FA, FB, FA] + G if ps == 0 else [FA, FB] + Hh + G
        mf = []; use = []; cend = {}; cstart = {}; pstart = {}; bstart = {}
        for i, (kind, d, x) in enumerate(subs):
            u = {}
            if kind == "Q":
                for n, b in enumerate(H):
                    cstart[(d, b, x)] = len(mf)
                    for s_, m in chain(b, x, fr[i], negM(b), n & 1): u.setdefault(s_, []).append(len(mf)); mf.append(m)
                    cend[(d, b, x)] = len(mf) - 1
            elif d == 2:
                if x == 0:
                    u2 = {}
                    for n, b in enumerate(H):
                        bstart[b] = len(mf); mf.append(rowsum(1, b))
                        for t in range(8):
                            (u if t < 4 else u2).setdefault(t & 3, []).append(len(mf))
                            mf.append(mfma(Oreg(b, t), Preg(1, b), fr[i + (t >> 2)][t & 3], Oreg(b, t)))
                else: u = u2
            else:
                par = (d + 1) & 1
                if x == 0: pstart[d] = len(mf)
                for hh in range(2):
                    for t, m in pv_pair(par, H if hh == 0 else H[::-1], 4*x + 2*hh, fr[i][2*hh:2*hh + 2], False, H[2*x + hh:2*x + hh + 1]):
                        if t is not None: u.setdefault(t & 3, []).append(len(mf))
                        mf.append(m)
            use.append(u)
        sc = Sched(mf); bar = {}
        if ps == 0:
            for d, g, keys in ((0, 9, [rV(0), rK(2)]), (1, use[4][1][-1], [rV(1), rV(2)])):
                sc.fix(wait(vm=keys), g); bar[d] = bar[2] = sc.fix(barrier(), g)
        pcs = [(0, q) for q in late_pieces(1) + late_pieces(2)] if ps == 0 else [(0, q) for q in late_pieces(3)] + carry
        taken = {t.gap + k for t in bar.values() for k in (-1, 0, 1)}
        prev_st = [None]*4; pst = None; base = None
        for i, (h, q) in enumerate(pcs):
            g = 12 + (len(mf) - 16)*i//max(1, len(pcs) - 1) if ps == 0 else 10 + (len(mf) - 14)*i//len(pcs)
            while g in taken or g - 1 in taken: g += 1
            off = h*98304 + q*1024
            if base is None or not 0 <= off - base < 4096:
                base = off; sc.add(salu("s_mov_b32", sSide, base), 0, g - 1, [(pst, 1, 1)])
            r = sc.seq(o_read(aO(h, q), q, X[i & 3]), g - 30, g - 8, prev_st[i & 3])
            sc.add(wait(lgkm=[X[i & 3]]), 0, g - 1, [(r, 1, 7)])
            pst = prev_st[i & 3] = sc.fix(vstore(X[i & 3], vlin, sO, sSide, off - base, O_.fin_flags if h else O_.st_flags), g)
        prev = None
        for i, (kind, d, x) in enumerate(subs):
            if i == 0 or (ps == 1 and (i == 1 or i >= 7)): continue
            tight = ps == 0 and i < 7
            for k in range(4):
                lo = (use[i - 2][k][-1] if i >= 2 else 0) if tight else (cend[(2, 3 + i - 7, 1)] if ps == 0 else 0)
                rds = [kread(d, x, k, fr[i][k], d - 1)] if kind == "Q" else [vread(d, 4*x + k, a, fr[i][k], d + 1) for a in range(2)]
                bp = bar.get(d if kind == "P" else (0 if d == 2 else None))
                for r in rds: prev = sc.add(r, lo, None, [(prev, 1, 1), (bp, 1, 1)])
                if tight and kind == "P" and k & 1: sc.add(wait(lgkm=fr[i][k - 1:k + 1]), 0, min(use[i][k - 1][0], use[i][k][0]) - 1, [(prev, 1, 6)])
            if not (tight and kind == "P"): sc.add(wait(lgkm=fr[i]), 0, use[i][0][0] - 1, [(prev, 1, 6)])
        if ps == 0:
            for a in range(2):
                for k in range(4): prev = sc.add(kread(1, a, k, F(4*a + k), 0), use[6][k][-1], None, [(prev, 1, 1)])
        grp = [([x for bb, x in sm_split(1)[1] if bb == b], 0, cstart[(1, b, 1)] - 1) for b in H]
        for a in range(2):
            for k, b in enumerate(H): grp.append((sm_ops(0, b, a), cend[(1, b, a)] + 4, min(pstart[1] - 2 + 2*k, cstart[(2, b, a)] - 1)))
        sc.sm(grp)
        order = [(H[0], 0), (H[1], 0), (H[0], 1), (H[2], 0), (H[1], 1), (H[2], 1)]
        sc.sm([(sm_ops(1, b, a), cend[(2, b, a)] + 4, bstart[b] - 2) for b, a in order], 2.4)
        sc.run()
        rc, rl, t1 = negM(H[0]), negM(H[1]), negM(H[2])[0]
        rest = sc.pour((l_ops(1, H[0], rc, t1), bstart[H[2]] + 4)); sc.emit()
        E(rest, l_flag(1, t1), stamp_now(), comment("---- epilogue"))
        dsts = [X[:4], [F(4 + i) for i in range(4)]]
        pend = []
        for k, b in enumerate(H):
            E(l_bcast(b, rc, rl))
            for th in range(2):
                ep = epi_half(1, b, th, rl, V(24, 16), V(40, 8))
                E(ep)
                E(pend[:2]); del pend[:2]
            if ps == 0 and k > 0: carry += [(1, 4*b + i) for i in range(4)]; continue
            d_ = dsts[k & 1]
            E([o_read(aO(1, 4*b + i), 4*b + i, d_[i]) for i in range(4)])
            sts = [vstore(d_[i], vlin, sO, sSide, i*1024, O_.fin_flags) for i in range(4)]
            pre = [salu("s_mov_b32", sSide, 98304 + b*4096), wait(lgkm=d_)]
            pend = [pre + [sts[0]], None, sts[1], None, sts[2], None, sts[3]] if ps == 0 else [pre + [sts[0]], sts[1], sts[2], sts[3]]
        E(pend, wait(lgkm=0), stamp_now())

def slow_path():
    sH, sB, sI, sKo, sQo = S(4), S(5), S(6), S(7), S(8)
    Qf = [V(4*s, 4) for s in range(4)]; Kf = [V(16 + 4*i, 4) for i in range(8)]; St = [V(48, 4), V(52, 4)]; Pf = V(56, 4)
    nm = V(60, 4); Vf = V(64, 4); Of = [V(68 + 4*t, 4) for t in range(8)]; L = V(100, 4); w = V(104, 8)
    ones = V(120, 4)
    vrow, vk, vv, vtr, vst_, t0, t1 = V(112), V(113), V(114), V(115), V(116), V(117), V(118)
    def S_(name, J=0):
        s = seg(name); return s
    s0 = S_("slow0")
    E(comment("---- fallback: a row sum left the safe range, redo this wave's rows with the true row max"),
      label("L_slow"), wait(vm=0, lgkm=0),
      valu("v_mbcnt_lo_u32_b32", t0, -1, 0), valu("v_mbcnt_hi_u32_b32", t0, -1, t0), valu("v_lshlrev_b32", vlin, 4, t0),
      [valu("v_mov_b32", ones[r], "0x3f803f80") for r in range(4)],
      valu("v_bfe_u32", t0, vlin, 4, 4), valu("v_lshrrev_b32", t1, 8, vlin),
      valu("v_lshlrev_b32", vrow, 8, t0), valu("v_lshl_add_u32", vst_, t1, 3, vrow), valu("v_lshl_add_u32", vrow, t1, 4, vrow),
      valu("v_lshrrev_b32", vtr, 2, t0), valu("v_lshl_add_u32", vtr, t1, 2, vtr), valu("v_lshlrev_b32", vtr, 8, vtr),
      valu("v_and_b32", t0, 3, t0), valu("v_lshl_add_u32", vtr, t0, 3, vtr), valu("v_add_u32", vtr, sStg, vtr),
      salu("s_mov_b32", sH, 0))
    s1 = S_("slow_head")
    E(label("L_sl_head"), salu("s_lshr_b32", sT0, sFlag, sH), salu("s_and_b32", sT0, sT0, 1), raw("s_cbranch_scc0 L_sl_next", "salu", {"scc"}),
      salu("s_lshl_b32", sKo, sH, 17), salu("s_mul_i32", sQo, sH, 98304), salu("s_mov_b32", sB, 0))
    s2 = S_("slow_blk")
    E(label("L_sl_blk"))
    for s in range(4): E(vload(Kf[s], vrow, sQ, sQo, 64*s))
    E(wait(vm=0))
    for s in range(4): E(scale_frag(Kf[s], Qf[s], w, None))
    E(valu("v_mov_b32", nm[0], "0xff800000"), valu("v_add_u32", vk, sKo, vrow), salu("s_mov_b32", sI, 32))
    s3 = S_("slow_p1")
    E(label("L_sl_p1"))
    for s in range(4): E(gload(Kf[s], vk, sKb, 64*s))
    E(valu("v_add_u32", vk, 4096, vk), wait(vm=0))
    for s in range(4): E(mfma(St[0], Kf[s], Qf[s], 0 if s == 0 else St[0]))
    E(salu("s_sub_u32", sI, sI, 1), scmp("s_cmp_lg_u32", sI, 0), nop(7),
      valu("v_max3_f32", nm[0], nm[0], St[0][0], St[0][1]), valu("v_max3_f32", nm[0], nm[0], St[0][2], St[0][3]),
      raw("s_cbranch_scc1 L_sl_p1", "salu", {"scc"}))
    s4 = S_("slow_mid")
    E(xlane_max(nm[0], nm[1]), [valu("v_sub_f32", nm[r], 0, nm[0]) for r in (1, 2, 3, 0)])
    for r in range(36): E(valu("v_mov_b32", V(68 + r), 0))
    E(valu("v_add_u32", vk, sKo, vrow), valu("v_add_u32", vv, sKo, vlin), valu("v_add_u32", vv, 1024 + 16384, vv), salu("s_mov_b32", sI, 16))
    s5 = S_("slow_p2")
    E(label("L_sl_p2"))
    key = (("stg", "slow"), ("Vs",), False)
    for half in range(2):
        E(salu("s_add_u32", "m0", sStg, 4096*half))
        for s in range(4): E(gload(Kf[4*half + s], vk, sKb, 64*s))
        for k in range(4): E(gdma(vv, sVb, 1024*k, key, ""))
        E(valu("v_add_u32", vk, 4096, vk), valu("v_add_u32", vv, 4096, vv))
    E(wait(vm=0))
    for a in range(2):
        for s in range(4): E(mfma(St[a], Kf[4*a + s], Qf[s], nm if s == 0 else St[a]))
    E(nop(7))
    for r in range(8): E(valu("v_exp_f32", V(48 + r), V(48 + r)))
    for r in range(4): E(valu("v_cvt_pk_bf16_f32", Pf[r], V(48 + 2*r), V(49 + 2*r)))
    E(mfma(L, ones, Pf, L))
    for t in range(8):
        for a in range(2): E(ds_read("ds_read_b64_tr_b16", Vf[2*a:2*a + 2], vtr, a*4096 + 32*t, key))
        E(wait(lgkm=0), mfma(Of[t], Vf, Pf, Of[t]), nop(1))
    E(salu("s_sub_u32", sI, sI, 1), scmp("s_cmp_lg_u32", sI, 0), raw("s_cbranch_scc1 L_sl_p2", "salu", {"scc"}))
    s6 = S_("slow_epi")
    E(nop(7), valu("v_rcp_f32", t0, L[0]), nop(0))
    for t in range(8):
        for r in range(4): E(valu("v_mul_f32", Of[t][r], t0, Of[t][r]))
        E(valu("v_cvt_pk_bf16_f32", Of[t][0], Of[t][0], Of[t][1]), valu("v_cvt_pk_bf16_f32", Of[t][1], Of[t][2], Of[t][3]),
          vstore(Of[t][0:2], vst_, sO, sQo, 32*t, "", "buffer_store_dwordx2"))
    E(salu("s_add_u32", sQo, sQo, 4096), salu("s_add_u32", sB, sB, 1), scmp("s_cmp_lt_u32", sB, NB), raw("s_cbranch_scc1 L_sl_blk", "salu", {"scc"}))
    s7 = S_("slow_next")
    E(label("L_sl_next"), salu("s_add_u32", sH, sH, 1), scmp("s_cmp_lt_u32", sH, 2), raw("s_cbranch_scc1 L_sl_head", "salu", {"scc"}))
    blkp = [s2, s3, s3, s4, s5, s5, s6]
    path2.extend((x, {"J": 0}) for x in [s0, s1] + blkp + blkp + [s7, s1] + blkp + [s7])

def finish():
    if O_.diag:
        a, b = [int(x) for x in O_.diag.split(":")]
        E(wait(vm=0), raw("s_memrealtime s[42:43]", "smem", (), rs(S(42, 2))), wait(lgkm=0), salu("s_mov_b32", S(47), S(42)),
          salu("s_sub_u32", sT0, S(STAMP0 + b), S(STAMP0 + a)), salu("s_lshr_b32", sT0, sT0, 3 if O_.stamps == 1 else 0),
          salu("s_add_u32", sT0, sT0, 7000),
          label("L_spin"), raw("s_memrealtime s[42:43]", "smem", (), rs(S(42, 2))), wait(lgkm=0),
          salu("s_sub_u32", S(42), S(42), S(46)), scmp("s_cmp_lt_u32", S(42), sT0), raw("s_cbranch_scc1 L_spin", "salu", {"scc"}))
    elif O_.stamps:
        E(wait(vm=0), raw("s_memrealtime s[42:43]", "smem", (), rs(S(42, 2))), wait(lgkm=0), salu("s_mov_b32", S(47), S(42)))
        E(salu("s_lshl_b32", sT0, S(2), 2), salu("s_add_u32", sT0, sT0, sW), salu("s_lshl_b32", sT0, sT0, 8))
        E(valu("v_mov_b32", V(1), sT0))
        for k in range(nstamp[0] + 2):
            E(valu("v_mov_b32", V(2), S(46 + k)),
              Inst(f"global_store_dword v1, v2, s[44:45] offset:{4*k}", "vst", rs(V(1), V(2), S(44, 2)), (), data=set()), nop(1))
    if O_.itst:
        E(valu("v_mbcnt_lo_u32_b32", V(2), -1, 0), valu("v_mbcnt_hi_u32_b32", V(2), -1, V(2)), valu("v_lshlrev_b32", V(2), 2, V(2)), valu("v_add_u32", V(1), V(1), V(2)), valu("v_add_u32", V(1), 1 << 20, V(1)),
          Inst("global_store_dword v1, a175, s[44:45]", "vst", rs(V(1), A(175), S(44, 2)), (), data=set()))
    if O_.stamps and not O_.diag:
        E(raw("s_getreg_b32 s42, hwreg(HW_REG_XCC_ID)", "salu", (), rs(S(42))), valu("v_mov_b32", V(1), sT0), valu("v_mov_b32", V(2), S(42)),
          Inst("global_store_dword v1, v2, s[44:45] offset:252", "vst", rs(V(1), V(2), S(44, 2)), (), data=set()))
    E(scmp("s_cmp_eq_u32", sFlag, 0), raw("s_cbranch_scc1 L_end", "salu", {"scc"}), label("L_fast_end"))

def build():
    assert O_.la1 == 3 and O_.oc0 < 6 and O_.dg >= 40
    s = seg("start"); path.append((s, {"J": 0})); startup()
    f = seg("first"); E(raw(".p2align 3", "label"), label("L_first")); iteration(0, "first", [])
    no = seg("N_odd"); E(label("L_N")); iteration(1, None, [dec(), br("s_cbranch_scc1 L_N_exit")])
    ne = seg("N_even"); iteration(0, None, [br("s_branch L_N")])
    nx = seg("N_exit"); E(label("L_N_exit"), scmp("s_cmp_lg_u32", sHead, 0), raw("s_cbranch_scc1 L_N_head1", "salu", {"scc"}))
    def lead(J0, pairs):
        path.append((f, {"J": J0}))
        for k in range(1, 2*pairs): path.append((no if k & 1 else ne, {"J": J0 + k}))
        path.append((nx, {"J": 0}))
    lead(0, O_.qa0)
    s = seg("A_pre"); path.append((s, {"J": 0})); E(salu("s_mov_b32", sCnt, 7 - O_.qa0))
    loop("A", "Q", 2*O_.qa0, 15 - 2*O_.qa0)
    transition()
    lead(16, O_.oc0)
    s = seg("C_pre"); path.append((s, {"J": 0})); E(label("L_N_head1"))
    if O_.oc0 < 6:
        E(salu("s_mov_b32", sCnt, 5 - O_.oc0))
        loop("C", "O", 16 + 2*O_.oc0, 12 - 2*O_.oc0)
    s = seg("j12"); path.append((s, {"J": 28})); E(stamp_now()); iteration(0, "last", [])
    endgame()
    finish()
    if O_.slow: slow_path()
    seg("exit"); E(label("L_end"))
    def trace(): return [(i, mkctx(c)) for sidx, c in path + path2 for i in segs[sidx][1]]
    for rnd in range(5):
        fix = {}
        resolve_and_check(trace(), fix=fix)
        for sg in segs:
            new = []
            for i in sg[1]:
                if i.kind == "wait" and i.m["nvm"] in (None, 63) and i.m["nlg"] in (None, 15): fix[0] = 1; continue
                if id(i) in fix: new.append(nop(fix[id(i)] - 1))
                new.append(i)
            sg[1][:] = new
        if not fix: break
    resolve_and_check(trace(), verbose=True)
    if O_.stamps:
        tr = [i for sidx, c in path for i in segs[sidx][1]]; cuts = [k for k, i in enumerate(tr) if i.kind == "smem" and "s[42:43]" in i.text]
        print("  est between stamps:", [cost_estimate(tr[a:b]) for a, b in zip(cuts, cuts[1:])])
    for name, ins in segs:
        if not name.startswith("slow"): print(f"  seg {name:8s} insts {len(ins):5d} est cycles {cost_estimate(ins):6d} nops {sum(1 for i in ins if i.kind == 'nop')}")

HEAD = """; MHA forward, B=16 H=32 Sq=384 Sk=512 D=128, bf16 in/out.  Generated by the author's own script (gen/gen6.py).
; Softmax: Q is pre-scaled by log2(e)/sqrt(D); the row max of the first 32 keys is subtracted through the MFMA
; C operand; the final row sums are checked (NaN or >= 2^64) and a failing wave redoes its rows with the true
; row max (L_slow).
; @launch grid=(256,1,1) block=(256,1,1) lds=163840
.amdgcn_target "amdgcn-amd-amdhsa--gfx950"
.text
.globl standalone__mha_softmax__near_ridge_kernel
.p2align 8
.type standalone__mha_softmax__near_ridge_kernel,@function
standalone__mha_softmax__near_ridge_kernel:
"""
TAIL = """    s_endpgm
.section .rodata,"a"
.p2align 6
.amdhsa_kernel standalone__mha_softmax__near_ridge_kernel
  .amdhsa_next_free_vgpr 512
  .amdhsa_next_free_sgpr 102
  .amdhsa_accum_offset 256
  .amdhsa_group_segment_fixed_size 0
  .amdhsa_kernarg_size 48
  .amdhsa_user_sgpr_count 2
  .amdhsa_user_sgpr_kernarg_segment_ptr 1
  .amdhsa_system_sgpr_workgroup_id_x 1
.end_amdhsa_kernel
"""
if __name__ == "__main__":
    out = sys.argv[1]
    for a in sys.argv[2:]:
        k, v = a.split("=")
        setattr(O_, k, type(getattr(O_, k))(v))
    build()
    body = "\n".join((i.text if i.kind == "label" else "    " + i.text) for _, ins in segs for i in ins)
    open(out, "w").write(HEAD + body + "\n" + TAIL)
```

```python
import sys, math, struct
from ir import *

class Opt:
    stamps = 0; diag = ""; dq = -1; itst = 0
    st_flags = "sc1"; late_flags = "sc1"; h0_flags = "sc1"; fin_flags = "sc1"; wb = ""; fq = "nt"; fk = "nt"; fv = "nt"
    n0 = 14
    qa0 = 2
    qpp = 3
    oc0 = 4
    r1 = 4
    dg = 76
    olate = "4444"
    nsh = 2
    slow = 1
    xtra = ""
    pads = 1
    g1late = 1
    vtouch = 0
    g12 = 16
    pvo = "bs2"
    qks = 1
    la1 = 3
    wgmap = 0
    probe = 0
    tq = 4
    tstep = 12
    force = 0
O_ = Opt()

NB = 6
def f32bits(x): return struct.unpack("<I", struct.pack("<f", x))[0]
CSCALE = f32bits(math.log2(math.e) / math.sqrt(128.0))
THRESH = f32bits(2.0 ** 64)

def Sreg(b, a): return V(8*b + 4*a, 4)
def Preg(par, b): return V(48 + 24*par + 4*b, 4)
def negM(b): return V(96 + 4*b, 4)
kaddr = [V(120 + s) for s in range(4)]
vaddr = [V(124 + t) for t in range(8)]
vkv = V(132); vsd0 = V(133); vsd1 = V(134); vlin = V(135)
qa = [V(136 + s) for s in range(4)]
ow = V(140)
ovr = V(141)
def Oreg(b, t):
    n = 8*b + t
    return V(144 + 4*n, 4) if n < 28 else A(176 + 4*(n - 28), 4)
def Qreg(b, s): return A(16*b + 4*s, 4)
def F(i): return A(96 + 4*i, 4)
def lacc(b): return A(128 + 4*(b//3), 4)
def sel(b): return A(136 + 4*(b % 3), 4)
X = [A(148 + 4*k, 4) for k in range(7)]
sQ, sO = S(12, 4), S(24, 4); sKb, sVb, sKx, sVx = S(16, 2), S(22, 2), S(18, 2), S(6, 2)
sW = S(28); sM0 = S(30); sStg = S(31); sSide = S(32); sT0 = S(33); sT1 = S(34); sT2 = S(35)
sFlag = S(36); sThr = S(37); sC = S(38, 2); sCmp = S(40, 2); sStamp = S(42, 2); sCnt = S(3); sQd = S(29); sHead = S(20)
STAMP0 = 48

def aK(J): return (("ring", (J - 2) % 4, "K"), ("K", J), True)
def aV(J): return (("ring", J % 4, "V"), ("V", J), True) if J < 31 else (("ring", 2, "K"), ("V", J), True)
def rK(d): return lambda c: aK(c["J"] + d)
def rV(d): return lambda c: aV(c["J"] + d)
def aQ(h, p): return (("stg", p), ("Q", h), False)
def aO(h, p): return (("stg", p), ("O", h), False)
def blk(f, h, b): return [f(h, 4*b + i) for i in range(4)]
def mkctx(c): return lambda r: r(c) if callable(r) else r

segs = []; path = []; path2 = []; cur = None
def seg(name):
    global cur
    cur = []; segs.append([name, cur]); return len(segs) - 1
def E(*xs):
    for x in xs:
        if x is None: continue
        if isinstance(x, (list, tuple)): E(*x)
        else: cur.append(x)
nstamp = [0]
def stamp_now():
    if O_.stamps not in (1, 2): return []
    k = nstamp[0]; nstamp[0] += 1
    op = "s_memtime" if O_.stamps == 1 else "s_memrealtime"
    return [raw(f"{op} {sStamp}", "smem", (), rs(sStamp)), wait(lgkm=0), salu("s_mov_b32", S(STAMP0 + k), sStamp[0])]

MEM = ("dsr", "dsw", "dma", "vld", "vst"); VAL = ("valu", "trans")
class Task:
    def __init__(s, x, lo, hi, preds): s.x, s.lo, s.hi, s.preds, s.gap = x, lo, hi, preds, None
class Sched:
    def __init__(s, mf):
        s.mf = mf; s.n = len(mf); s.g = [[] for _ in mf]; s.t = []
        s.cap = [24 if m.m["big"] else 8 for m in mf]; s.novalu = set()
    def cost(s, x): return 8 if x.kind == "trans" or x.m.get("perm") else 4
    def fits(s, g, x):
        if s.cap[g] < s.cost(x): return False
        if x.kind in MEM and any(y.kind in MEM for y in s.g[g]): return False
        if x.kind in VAL and g in s.novalu: return False
        return True
    def put(s, g, x): s.g[g].append(x); s.cap[g] -= s.cost(x)
    def fix(s, x, g):
        t = Task(x, g, g, []); t.gap = g; s.put(g, x)
        if x.kind in ("dma", "vst", "vld"): s.cap[g] = 0; s.novalu.add(g - 1)
        if x.kind == "barrier": s.cap[g] = 0
        return t
    def add(s, x, lo=0, hi=None, preds=()):
        t = Task(x, max(lo, 0), s.n - 1 if hi is None else min(hi, s.n - 1), [p for p in preds if p[0] is not None]); s.t.append(t); return t
    def seq(s, xs, lo=0, hi=None, after=None, hard=1):
        p = after
        for x in xs: p = s.add(x, lo, hi, [(p, hard, hard)])
        return p
    def sm(s, groups, smax=2.0):
        ex = [(x, lo, hi) for ops, lo, hi in groups for x in ops if x.kind == "trans"]
        sig = smax
        while True:
            pos = []; t = -9.0; ok = True
            for x, lo, hi in ex:
                t = max(lo, t + sig); g = int(t)
                while g < s.n and (not s.fits(g, x) or (pos and g <= pos[-1])): g += 1
                if g > hi - 1: ok = False; break
                pos.append(g); t = max(t, g - 0.5)
            if ok: break
            sig -= 0.05
            assert sig > 0.3, "softmax does not fit"
        k = 0
        for ops, lo, hi in groups:
            e = []
            for x in ops:
                if x.kind == "trans": e.append(s.fix(x, pos[k])); k += 1
                else: s.add(x, lo, min(hi, e[-1].gap + 5), [(e[-1], 1, 1)])
    def run(s):
        for t in reversed(s.t):
            for p, h, so in t.preds:
                if p.gap is None: p.hi = min(p.hi, t.hi - so)
        for t in s.t:
            for p, h, so in t.preds: t.lo = max(t.lo, p.lo + h)
            t.hi = max(t.hi, t.lo)
        left = list(s.t)
        for g in range(s.n):
            while True:
                rdy = [t for t in left if t.lo <= g and all(p.gap is not None and g >= p.gap + h for p, h, so in t.preds)]
                rdy = [t for t in rdy if t.hi <= g or all(g >= p.gap + so for p, h, so in t.preds)]
                rdy.sort(key=lambda t: t.hi)
                pick = next((t for t in rdy if t.hi <= g or s.fits(g, t.x)), None)
                if pick is None: break
                s.put(g, pick.x); pick.gap = g; left.remove(pick)
        assert not left, left[0].x
        s.t = []
    def pour(s, *streams):
        st = [[list(xs), lo] for xs, lo in streams]
        for g in range(s.n):
            again = True
            while again:
                again = False
                for q in st:
                    if q[0] and q[1] <= g and s.fits(g, q[0][0]): s.put(g, q[0].pop(0)); again = True; break
        return [x for q in st for x in q[0]]
    def emit(s):
        for m, g in zip(s.mf, s.g):
            key = lambda x: 3 if x.m.get("last") else (2 if x.kind in VAL else (0 if x.kind in MEM else 1))
            E(m, sorted(g, key=key))

def kread(d, a, s, dst, hi): return ds_read("ds_read_b128", dst, kaddr[s], hi*16384 + a*8192, rK(d))
def vread(d, t, a, dst, hi): return ds_read("ds_read_b64_tr_b16", dst[2*a:2*a+2], vaddr[t], (hi*16384 if hi < 3 else 32768 - 1024) + a*8192, rV(d))
def kv_dmas(d, withV=True, withK=True, checked=False):
    la = (lambda c: d) if d is not None else (lambda c: O_.la1 if c["J"] >= 16 else 2)
    o = []
    for im in (0, 2048):
        if withV: o.append(gdma(vkv, sVb, im + 1024, lambda c: aV(c["J"] + la(c)), O_.fv))
        key = lambda c: aK(c["J"] + la(c) + 2) if c["J"] + la(c) < 30 else aV(31)
        if withK: o.append(gdma(vkv, sKx if checked else sKb, im, key, O_.fk))
    return o
def m0_next():
    return [salu("s_mov_b32", "m0", sM0), salu("s_add_u32", sM0, sM0, 16384), salu("s_and_b32", sM0, sM0, "0xffff")]
def kv_step(): return valu("v_add_u32", vkv, 8192, vkv)
def q_dma_block(h, b):
    o = [salu("s_add_u32", "m0", sStg, b*4096), salu("s_mov_b32", sSide, h*98304 + b*4096)]
    for i in range(4): o.append(dma(vsd1 if i & 1 else vsd0, sQ, sSide, i*1024, aQ(h, 4*b + i), O_.fq))
    return o
def piecemeal(groups):
    st = []; pre = []
    for grp in groups:
        for x in grp:
            if x.kind in MEM: st.append(pre + [x]); pre = []
            else: pre.append(x)
    if pre: st[-1] += pre
    def more(n):
        o = st[:n]; del st[:n]; return o
    more.left = lambda: len(st)
    return more

def sm_ops(par, b, a):
    s = Sreg(b, a); p = Preg(par, b)
    return [valu("v_exp_f32", s[0], s[0]), valu("v_exp_f32", s[1], s[1]), valu("v_cvt_pk_bf16_f32", p[2*a], s[0], s[1]),
            valu("v_exp_f32", s[2], s[2]), valu("v_exp_f32", s[3], s[3]), valu("v_cvt_pk_bf16_f32", p[2*a+1], s[2], s[3])]
NE_A = 40
def sm_split(par):
    st = []
    for a in range(2):
        for b in range(NB): st += [(b, x) for x in sm_ops(par, b, a)]
    k = NE_A // 2 * 3
    return st[:k], st[k:]
def delay_cvts(xs):
    o = []; pend = []
    for x in xs:
        if x.kind == "trans":
            o.append(x)
            if pend: o.append(pend.pop(0))
        else: pend.append(x)
    return o + pend
def xlane_max(m, t):
    o = []
    for op in ("v_permlane32_swap_b32", "v_permlane16_swap_b32"):
        o += [valu("v_mov_b32", t, m), swap(op, m, t), valu("v_max_f32", m, m, t)]
    return o
def rowmax_ops(b):
    m, t = negM(b)[0], negM(b)[1]; sv = lambda r: V(8*b + r)
    o = [valu("v_max3_f32", m, sv(0), sv(1), sv(2)), valu("v_max3_f32", t, sv(3), sv(4), sv(5)),
         valu("v_max3_f32", m, m, sv(6), sv(7)), valu("v_max_f32", m, m, t)] + xlane_max(m, t)
    o += [valu("v_sub_f32", negM(b)[r], 0, m) for r in (1, 2, 3, 0)]
    return o, [valu("v_pk_add_f32", V(8*b + 2*r, 2), V(8*b + 2*r, 2), negM(b)[0:2]) for r in range(4)]
def scale_frag(x, dst, w, y, pk=True):
    o = []
    if pk:
        for r in range(4): o += [valu("v_lshlrev_b32", w[2*r], 16, x[r]), valu("v_and_b32", w[2*r+1], "0xffff0000", x[r])]
        for r in range(4): o.append(valu("v_pk_mul_f32", w[2*r:2*r+2], w[2*r:2*r+2], sC))
    else:
        for r in range(4):
            o += [valu("v_lshlrev_b32", w[2*r], 16, x[r]), valu("v_and_b32", w[2*r+1], "0xffff0000", x[r]),
                  valu("v_mul_f32", w[2*r], sC[0], w[2*r]), valu("v_mul_f32", w[2*r+1], sC[0], w[2*r+1])]
    if dst.k == "v": return o + [valu("v_cvt_pk_bf16_f32", dst[r], w[2*r], w[2*r+1]) for r in range(4)]
    for r in range(4): o.append(valu("v_cvt_pk_bf16_f32", y[r], w[2*r], w[2*r+1]))
    for r in range(4): o.append(valu("v_accvgpr_write_b32", dst[r], y[r]))
    return o
def chain(b, a, fr, c0, rev):
    return [(s, mfma(Sreg(b, a), fr[s], Qreg(b, s), c0 if n == 0 else Sreg(b, a))) for n, s in enumerate(range(3, -1, -1) if rev and O_.qks else range(4))]
def qk_first(b): return [m for a in range(2) for _, m in chain(b, a, [F(4*a + s) for s in range(4)], 0, a)]
def pv_pair(par, bs, t0, fr, init, sums):
    o = []
    if O_.pvo in ("t", "ts"):
        bs = sorted(bs)
        if 5 in sums and init: sums = []; o += [(None, rowsum(par, 5, init)), (None, rowsum(par, 4, init))]
        for k in range(2):
            for b in (bs if k == 0 or O_.pvo == "t" else bs[::-1]):
                o.append((t0 + k, mfma(Oreg(b, t0 + k), Preg(par, b), fr[k], 0 if init else Oreg(b, t0 + k))))
                if k == 0 and b in sums: o.append((None, rowsum(par, b, init)))
        return o
    for n, b in enumerate(bs):
        for k in ((0, 1) if n % 2 == 0 or O_.pvo == "pp2" else (1, 0)): o.append((t0 + k, mfma(Oreg(b, t0 + k), Preg(par, b), fr[k], 0 if init else Oreg(b, t0 + k))))
        if b in sums: o.insert(len(o) - 1, (None, rowsum(par, b, init)))
    return o
def rowsum(par, b, init=False): return mfma(lacc(b), Preg(par, b), sel(b), 0 if init and b in (0, 5) else lacc(b))

def startup():
    v0, vl, vi, vu, t0, t1, t2 = V(0), V(1), V(2), V(3), V(4), V(5), V(6)
    E(comment("---- setup"),
      raw("s_load_dwordx4 s[4:7], s[0:1], 0", "smem", (), rs(S(4, 4))),
      raw("s_load_dwordx4 s[8:11], s[0:1], 16", "smem", (), rs(S(8, 4))),
      scmp("s_cmp_ge_u32", S(2), 256), raw("s_cbranch_scc1 L_end", "salu", {"scc"}))
    if O_.wgmap == 1:
        E(salu("s_and_b32", sT0, S(2), 7), salu("s_lshr_b32", S(2), S(2), 3), salu("s_lshl_b32", sT0, sT0, 5), salu("s_or_b32", S(2), S(2), sT0))
    if O_.wgmap == 2: E(salu("s_and_b32", S(2), S(2), 7))
    if O_.stamps:
        E(raw("s_load_dwordx2 s[44:45], s[0:1], 40", "smem", (), rs(S(44, 2))),
          raw("s_memrealtime s[46:47]", "smem", (), rs(S(46, 2))))
    E(comment("pull the kernel's own code into L2 (one dword per 128-byte line)"),
      raw("s_getpc_b64 s[40:41]", "salu", (), rs(S(40, 2))), label("L_pc"),
      valu("v_lshlrev_b32", t0, 7, v0), valu("v_min_u32", t1, "L_fast_end-L_pc", t0),
      Inst(f"global_load_dword v7, {t1}, s[40:41]", "vld", rs(t1, S(40, 2)), rs(V(7))),
      valu("v_add_u32", t0, 32768, t0), valu("v_min_u32", t1, "L_fast_end-L_pc", t0),
      Inst(f"global_load_dword v8, {t1}, s[40:41]", "vld", rs(t1, S(40, 2)), rs(V(8))))
    E(valu("v_lshrrev_b32", t1, 6, v0), valu("v_and_b32", vl, 63, v0),
      valu("v_readfirstlane_b32", sW, t1),
      valu("v_and_b32", vi, 15, vl), valu("v_lshrrev_b32", vu, 4, vl),
      valu("v_lshlrev_b32", t0, 1, vu), valu("v_xor_b32", t0, t0, vi), valu("v_lshlrev_b32", t0, 4, t0),
      valu("v_lshl_add_u32", vsd0, vu, 8, t0), valu("v_xor_b32", vsd1, 128, vsd0),
      salu("s_and_b32", sT0, sW, 1), salu("s_lshr_b32", sT1, sW, 1),
      salu("s_lshl_b32", sT2, sT0, 7), salu("s_lshl_b32", sT0, sT0, 10), salu("s_lshl_b32", sT1, sT1, 12),
      salu("s_add_u32", sT0, sT0, sT1),
      valu("v_xor_b32", vkv, sT2, vsd0), valu("v_add_u32", vkv, sT0, vkv),
      salu("s_lshl_b32", sM0, sW, 12), salu("s_add_u32", sM0, sM0, 32768), salu("s_mul_i32", sStg, sW, 24576),
      salu("s_mul_i32", sT0, S(2), 196608), salu("s_add_u32", sT0, sT0, sStg), salu("s_add_u32", sStg, sStg, 65536),
      salu("s_lshl_b32", sT1, S(2), 18),
      salu("s_mov_b32", sQ[2], 98304 + 24576), salu("s_mov_b32", sQ[3], "0x20000"),
      wait(lgkm=0),
      salu("s_add_u32", sKb[0], S(6), sT1), salu("s_addc_u32", sKb[1], S(7), 0),
      salu("s_add_u32", sQ[0], S(4), sT0), salu("s_addc_u32", sQ[1], S(5), 0), salu("s_and_b32", sQ[1], sQ[1], "0xffff"))
    def grp(J, withV=True):
        ops = kv_dmas(J, withV)
        if J == 0: ops = ops[0::2] + ops[1::2]
        return m0_next() + ops + [kv_step()]
    more = piecemeal([grp(-2, False)] + [q_dma_block(0, b) for b in range(NB)] + [grp(-1, False), grp(0), grp(1)])
    E(more(10))
    if O_.pads: E(raw("s_branch L_main"), raw(".p2align 12", "label"), label("L_main"))
    E(salu("s_add_u32", sVb[0], S(8), sT1), salu("s_addc_u32", sVb[1], S(9), 0),
      (Inst(f"global_load_dword v9, {vsd0}, {sVb} nt", "vld", rs(vsd0, sVb), rs(V(9))) if O_.vtouch else None),
      salu("s_sub_u32", sVb[0], sVb[0], 1024 + 16384), salu("s_subb_u32", sVb[1], sVb[1], 0),
      salu("s_add_u32", sO[0], S(10), sT0), salu("s_addc_u32", sO[1], S(11), 0), salu("s_and_b32", sO[1], sO[1], "0xffff"),
      salu("s_mov_b32", sO[2], 98304 + 24576), salu("s_mov_b32", sO[3], "0x20000"),
      salu("s_add_u32", sVx[0], sVb[0], 1024 + 8192), salu("s_addc_u32", sVx[1], sVb[1], 0), salu("s_mov_b64", sKx, sKb),
      salu("s_mov_b32", sC[0], hex(CSCALE)), salu("s_mov_b32", sC[1], hex(CSCALE)),
      salu("s_mov_b32", sThr, hex(THRESH)), salu("s_mov_b32", sFlag, O_.force), salu("s_sub_u32", sQd, sStg, 98304))
    E(valu("v_and_b32", t0, 7, vi), valu("v_lshlrev_b32", t0, 1, t0), valu("v_xor_b32", t0, t0, vu), valu("v_lshlrev_b32", t0, 4, t0),
      valu("v_lshl_add_u32", t2, vi, 8, t0), valu("v_add_u32", qa[0], sStg, t2),
      valu("v_and_b32", t1, 3, vi), valu("v_lshl_add_u32", t0, t1, 8, t0),
      valu("v_lshrrev_b32", t1, 3, vi), valu("v_lshl_add_u32", t0, t1, 11, t0),
      valu("v_bfe_u32", t1, vi, 2, 1), valu("v_lshl_add_u32", t0, t1, 12, t0), valu("v_add_u32", kaddr[0], 32768, t0))
    for s in range(1, 4): E(valu("v_xor_b32", kaddr[s], s << 6, kaddr[0]), valu("v_xor_b32", qa[s], s << 6, qa[0]))
    E(valu("v_lshrrev_b32", t1, 2, vi), valu("v_and_b32", t2, 1, vu), valu("v_lshl_add_u32", t0, t2, 2, t1),
      valu("v_lshlrev_b32", t0, 5, t0), valu("v_lshl_add_u32", t0, t1, 8, t0), valu("v_lshl_add_u32", t0, t2, 12, t0),
      valu("v_lshrrev_b32", t2, 1, vu), valu("v_lshl_add_u32", t0, t2, 11, t0),
      valu("v_and_b32", t1, 3, vi), valu("v_lshl_add_u32", t0, t1, 3, t0), valu("v_add_u32", vaddr[0], 32768 + 1024, t0))
    for t in range(1, 8): E(valu("v_xor_b32", vaddr[t], t << 5, vaddr[0]))
    E(valu("v_mov_b32", t2, "0x3f803f80"))
    for k in range(3):
        E(Inst(f"v_cmp_eq_u32 vcc, {k}, {vi}", "valu", rs(vi), {"vcc"}), nop(1), Inst(f"v_cndmask_b32 {t0}, 0, {t2}, vcc", "valu", rs(t2, "vcc"), rs(t0)),
          [valu("v_accvgpr_write_b32", sel(k)[r], t0) for r in range(4)])
    E(valu("v_lshlrev_b32", t0, 3, vl), valu("v_add_u32", ow, sStg, t0),
      valu("v_bfe_u32", t1, vi, 1, 1), valu("v_lshl_add_u32", t0, t1, 2, vu), valu("v_lshlrev_b32", t0, 9, t0),
      valu("v_and_b32", t1, 1, vi), valu("v_lshl_add_u32", t0, t1, 6, t0), valu("v_lshrrev_b32", t1, 2, vi),
      valu("v_lshl_add_u32", t0, t1, 3, t0), valu("v_add_u32", ovr, sStg, t0),
      valu("v_and_b32", t2, 3, vi), valu("v_lshlrev_b32", t0, 5, t2), valu("v_lshl_add_u32", t0, vu, 8, t0),
      valu("v_and_b32", t2, 1, t1), valu("v_lshl_add_u32", t0, t2, 4, t0), valu("v_lshrrev_b32", t2, 1, t1), valu("v_lshl_add_u32", vlin, t2, 7, t0))
    E(more(O_.n0 - 10), stamp_now())
    E(comment("---- first K tile"), wait(vm=[aK(0)]), barrier())
    for a in range(2):
        for s in range(4): E(kread(0, a, s, F(4*a + s), 0))
    if O_.pads:
        E(comment("visit the start of each code page once (wave w: pages w+1, w+5, ..); every stop jumps straight on while vcc = 0"),
          raw("s_mov_b64 vcc, 0"))
        for w in range(3): E(scmp("s_cmp_eq_u32", sW, w), raw(f"s_cbranch_scc1 L_pad{w + 1}", "salu", {"scc"}))
        E(raw("s_branch L_pad4"), label("L_padret"), raw("s_mov_b64 vcc, -1"))
    first, _ = sm_split(0)
    rawr = lambda s: V(72 + 4*s, 4)
    for b in range(NB):
        E(comment(f"---- start-up block {b}"), wait(vm=blk(aQ, 0, b) + ([V(9)] if b == 1 else [])), stamp_now() if O_.probe == 2 else None)
        for s in range(4): E(ds_read("ds_read_b128", rawr(s), qa[s], b*4096, blk(aQ, 0, b)))
        for s in range(4):
            E(wait(lgkm=[rawr(s)] + ([F(k) for k in range(8)] if b == 0 else [])))
            E(more(1) if more.left() > 4*O_.g1late else None, scale_frag(rawr(s), Qreg(b, s), V(88, 8), Sreg(b, s & 1)))
        E(qk_first(b))
        if b == NB - 1:
            E(stamp_now() if O_.probe == 2 else None, wait(vm=[aK(1)]), barrier(), stamp_now() if O_.probe == 2 else None)
            for s in range(4): E(kread(1, 0, s, F(s), 1))
        E(rowmax_ops(b), delay_cvts([x for bb, x in first if bb == b]))
    E(more(99), salu("s_mov_b32", sSide, 98304), salu("s_mov_b32", sCnt, O_.qa0 - 1), salu("s_mov_b32", sHead, 0), wait(lgkm=[F(s) for s in range(4)]))
    if O_.itst: E(salu("s_mov_b32", S(5), 0))
    E(stamp_now())

def o_read(key, p, dst):
    return [ds_read("ds_read_b64_tr_b16", dst[2*hi:2*hi + 2], ovr, (p >> 2)*4096 + (p & 3)*128 + hi*32, key) for hi in range(2)]
def pv_mfmas(par, frags, sums_first=False, init=False):
    mf = [rowsum(par, b) for b in range(NB)] if sums_first else []; st = []
    for h in range(4):
        st.append(len(mf))
        sums = [] if sums_first else [(0, 1), (5, 4), (2,), (3,)][h]
        mf += [m for _, m in pv_pair(par, range(NB) if h % 2 == 0 else range(NB - 1, -1, -1), 2*h, frags[2*h:2*h + 2], init, sums)]
    return mf, st
def late_pieces(k):
    cnt = [int(c, 16) for c in O_.olate]
    order = [p for p in list(range(12, 24)) + list(range(12)) if not (p >> 2 >= O_.oc0 and (p & 3) < O_.r1)]; assert sum(cnt) == len(order), len(order)
    return order[sum(cnt[:k]):sum(cnt[:k + 1])]

def iteration(par, side, ctl):
    mf = [m for a in range(2) for b in range(NB) for _, m in chain(b, a, [F(4*a + s) for s in range(4)], negM(b), b & 1)]
    pv, pst = pv_mfmas(par, [F(t) for t in range(8)], init=(side == "first"))
    mf += pv; pst = [48 + x for x in pst]
    sc = Sched(mf)
    for x in ctl: sc.fix(x, 101)
    sc.cap[101] = 0 if ctl else sc.cap[101]
    last = side == "last"
    d0 = O_.dg
    for s in range(4): tk = sc.fix(kread(1, 1, s, F(4 + s), 1 - par), [1, 6, 11, 13][s])
    if not last:
        chk = side == "O" and par == 1
        mm = m0_next(); tm = sc.fix(mm[0], d0 - 2); tm = sc.seq(mm[1:], 0, 99, tm)
        for k, x in enumerate(kv_dmas(None, checked=chk)): td = sc.fix(x, d0 + 5*k)
        sc.add(kv_step(), 0, 100, [(td, 1, 1)])
        if chk:
            sc.fix(scmp("s_cmp_eq_u32", sCnt, 0), 21); sc.fix(raw(f"s_cselect_b64 {sKx}, {sVx}, {sKb}", "salu", rs(sVx, sKb, "scc"), rs(sKx)), 21)
    sg = [56, 68, 80, 92] if d0 < 40 else [30, 40, 52, 62]
    tb2 = None
    if side == "first":
        sc.fix(wait(vm=[rV(0)], lgkm=0), 23); tb = sc.fix(barrier(), 23)
        sc.fix(wait(vm=[rK(2)]), 72); tb2 = sc.fix(barrier(), 72)
    else:
        sc.fix(wait(vm=[rV(0), rK(2)], lgkm=0), 23); tb = sc.fix(barrier(), 23)
    if O_.itst:
        for y in [raw("s_memrealtime s[42:43]", "smem", (), rs(S(42, 2))), wait(lgkm=0), raw("s_lshl_b64 exec, 1, s5"),
                  Inst("v_accvgpr_write_b32 a175, s42", "valu", rs(S(42)), rs(A(175))), raw("s_mov_b64 exec, -1"), salu("s_add_u32", S(5), S(5), 1)]:
            y.m["last"] = True; sc.put(23, y)
    if side == "Q" and par == 0 and O_.qpp:
        n = O_.qpp
        sc.fix(salu("s_add_u32", "m0", sSide, sQd), sg[0] - 2)
        for k in range(n): t = sc.fix(dma(vsd1 if k & 1 else vsd0, sQ, sSide, k*1024, (lambda k: lambda c: aQ(1, n*(c["J"]//2 - O_.qa0) + k))(k), O_.fq), sg[k])
        sc.add(salu("s_add_u32", sSide, sSide, 1024*n), 0, 99, [(t, 1, 1)])
        if n & 1:
            for r in (vsd0, vsd1): sc.add(valu("v_xor_b32", r, 128, r), 0, 99, [(t, 1, 1)])
    if side == "O" and par == 0:
        rds = [x for k in range(O_.r1) for x in o_read((lambda k: lambda c: aO(0, 2*(c["J"] - 16) + k))(k), 4*O_.oc0 + k, X[k])]
        sc.seq(rds, 0, 20)
        for k in range(O_.r1): t = sc.fix(vstore(X[k], vlin, sO, sSide, k*1024, O_.st_flags), sg[k])
        sc.add(salu("s_add_u32", sSide, sSide, 4096), 0, 99, [(t, 1, 1)])
        sc.add(valu("v_add_u32", ovr, 4096, ovr), 24, 99)
    if last:
        nl = 4*(6 - O_.oc0); ps = late_pieces(0)
        t = sc.add(valu("v_subrev_u32", ovr, 1024*nl, ovr), 0, 3) if nl else None
        base = None
        for i, p in enumerate(ps):
            g = O_.g12 + (96 - O_.g12)*i//max(1, len(ps) - 1)
            while g in (22, 23, 24): g += 1
            t = sc.seq(o_read(aO(0, p), p, X[i]), 0, g - 8, t); sc.add(wait(lgkm=[X[i]]), 0, g - 1, [(t, 1, 6)])
            if base is None or not 0 <= p - base < 4: base = p; sc.fix(salu("s_mov_b32", sSide, p*1024), g - 1)
            sc.fix(vstore(X[i], vlin, sO, sSide, (p - base)*1024, O_.late_flags), g)
    tstart = [pst[t//2] for t in range(8)]
    p = tb
    for t in range(8):
        for a in range(2): p = sc.add(vread(0, t, a, F(t), par), 24 if t < 4 else 48, None, [(p, 1, 1)])
        if t in (1, 3): sc.add(wait(lgkm=[F(t - 1), F(t)]), 0, tstart[t - 1] - 1, [(p, 1, 8)])
    tv = p
    sc.add(wait(lgkm=[F(4), F(5), F(6), F(7)]), 0, tstart[4] - 1, [(p, 1, 8)])
    for s in range(4): p = sc.add(kread(2, 0, s, F(s), par), tstart[4], None, [(p, 1, 1), (tb2, 1, 1)])
    sc.add(wait(lgkm=[F(s) for s in range(4)]), 0, 100, [(p, 1, 8)])
    if par == 0: sc.seq([valu("v_xor_b32", r, 32768, r) for r in kaddr], 24, tstart[4] - 1, hard=0)
    if par == 0:
        for t, r in enumerate(vaddr): sc.add(valu("v_xor_b32", r, 32768, r), 0, 22 if t < 4 else 46)
    sc.sm([([x for _, x in sm_split(par)[1]], 0, 30)], 2.4)
    sc.sm([([x for _, x in sm_split(1 - par)[0]], 24, 100)])
    sc.run()
    if O_.xtra and side in (None, "Q", "first"):
        xk, xn = O_.xtra[0], int(O_.xtra[1:])
        mk = {"c": lambda i: Inst(f"v_cvt_pk_bf16_f32 v142, v{144 + 2*i}, v{145 + 2*i}", "valu"),
              "e": lambda i: Inst(f"v_exp_f32 v142, v{144 + 5*i}", "trans"),
              "x": lambda i: Inst(f"v_xor_b32 v142, 32768, v{120 + i % 12}", "valu"),
              "r": lambda i: Inst(f"ds_read_b128 {X[6]}, {kaddr[i % 4]} offset:{8192*(i % 4)}", "dsr"),
              "t": lambda i: Inst(f"ds_read_b64_tr_b16 {X[6][0:2]}, {vaddr[i % 8]} offset:{8192*(i % 4)}", "dsr")}[xk]
        left = sc.pour(([mk(i) for i in range(xn)], 0)); assert not left, len(left)
    sc.emit()

def br(text): return raw(text, "salu", {"scc"}, (), last=True)
def dec():
    x = salu("s_sub_u32", sCnt, sCnt, 1); x.m["last"] = True; return x
def loop(name, side, J0, n_iter):
    e = seg(name + "_even"); E(raw(".p2align 3", "label"), label(f"L_{name}"))
    if n_iter & 1:
        iteration(0, side, [dec(), br(f"s_cbranch_scc1 L_{name}_exit")])
        o = seg(name + "_odd"); iteration(1, side, [br(f"s_branch L_{name}")]); E(label(f"L_{name}_exit"))
    else:
        iteration(0, side, [])
        o = seg(name + "_odd"); iteration(1, side, [dec(), br(f"s_cbranch_scc0 L_{name}")])
    for k in range(n_iter): path.append((o if k & 1 else e, {"J": J0 + k}))

def l_ops(h, b0, r, t1):
    o = [valu("v_accvgpr_read_b32", r[k], lacc(b0)[k]) for k in range(4)]
    o += [valu("v_add_f32", t1, r[0], r[1]), valu("v_add_f32", t1, t1, r[2]), valu("v_add_f32", t1, t1, r[3])]
    o += [valu("v_rcp_f32", r[k], r[k]) for k in range(4)]
    return o
def l_flag(h, t1):
    return [Inst(f"v_cmp_nlt_f32 {sCmp}, {t1}, {sThr}", "valu", rs(t1, sThr), rs(sCmp)), nop(0),
            scmp("s_cmp_lg_u64", sCmp, 0), salu("s_cselect_b32", sT0, 1 << h, 0), salu("s_or_b32", sFlag, sFlag, sT0)]
def l_bcast(b, r, dst):
    o = [valu("v_mov_b64_dpp", dst[2*k:2*k + 2], r[2*k:2*k + 2], mods=f"row_newbcast:{b % 3} row_mask:0xf bank_mask:0xf") for k in range(2)]
    for x in o: x.m["dpp"] = True
    return o
def epi_half(h, b, th, rl, tmp, y):
    r0 = Oreg(b, 4*th); w = V(r0.i, 16) if r0.k == "v" else tmp; o = []
    if r0.k == "a": o += [valu("v_accvgpr_read_b32", w[i], A(r0.i + i)) for i in range(16)]
    o += [valu("v_pk_mul_f32", w[2*i:2*i + 2], w[2*i:2*i + 2], rl[2*(i & 1):2*(i & 1) + 2]) for i in range(8)]
    o += [valu("v_cvt_pk_bf16_f32", y[2*r + k], w[8*k + r], w[8*k + 4 + r]) for r in range(4) for k in range(2)]
    o += [ds_write2st64(ow, y[4*k:4*k + 2], y[4*k + 2:4*k + 4], 8*b + 4*th + 2*k, 8*b + 4*th + 2*k + 1, blk(aO, h, b)) for k in range(2)]
    return o

def transition():
    s = seg("trans"); path.append((s, {"J": 15}))
    E(stamp_now(), comment("---- head 0: last PV; switch to head 1"))
    vf = X[:4] + [F(4), F(5), X[4], X[5]]
    def rawr(b, s_): return V(16 + 16*b + 4*s_, 4) if b < 2 else V(144 + 16*(b & 1) + 4*s_, 4)
    def qrd(b): return [ds_read("ds_read_b128", rawr(b, s_), qa[s_], b*4096, blk(aQ, 1, b)) for s_ in range(4)]
    rc = [negM(4), negM(5)]; wt = V(84, 8)
    rl = V(72, 4); y = V(76, 8)
    npre = O_.qpp*(8 - O_.qa0); assert npre >= 8
    if npre & 1: E(valu("v_xor_b32", vsd0, 128, vsd0), valu("v_xor_b32", vsd1, 128, vsd1))
    more = piecemeal([[x for k, x in enumerate(q_dma_block(1, b)) if k < 2 or 4*b + k - 2 >= npre] for b in range(npre//4, NB)]
                     + [m0_next() + kv_dmas(2) + [kv_step()], m0_next() + kv_dmas(3) + [kv_step()]])
    E(wait(vm=[rV(0), rK(2)] + blk(aQ, 1, 0)), barrier())
    vr = [vread(0, t, a, vf[t], 1) for t in range(8) for a in range(2)]
    E(vr[:4], delay_cvts([x for _, x in sm_split(1)[1]]))
    pv, pst = pv_mfmas(1, vf, True)
    sc = Sched(pv)
    g = 8
    for grp in more(O_.tq):
        for x in grp:
            if x.kind == "salu": sc.fix(x, g - 2)
            else: sc.fix(x, g); g += O_.tstep
    sc.add(wait(lgkm=vf[:2]), 4, pst[0] - 1)
    p = sc.seq(qrd(0), 0); wq = sc.add(wait(lgkm=[rawr(0, 3)]), 0, 12, [(p, 1, 6)])
    p = sc.seq(vr[4:8], 0, None, p); sc.add(wait(lgkm=vf[2:4]), 0, pst[1] - 1, [(p, 1, 6)])
    p = sc.seq(vr[8:], 0, None, p); sc.add(wait(lgkm=vf[4:]), 0, pst[2] - 1, [(p, 1, 6)])
    p = sc.seq([kread(1, 1, 2, F(6), 0), kread(1, 1, 3, F(7), 0), wait(vm=blk(aQ, 1, 1))] + qrd(1), 28, None, p)
    for k in range(2): p = sc.add(kread(1, 1, k, F(4 + k), 0), pst[3] - 1, None, [(p, 1, 1)])
    sc.run()
    lv = l_ops(0, 0, rc[0], V(60)) + l_ops(0, 3, rc[1], V(61)) + [valu("v_add_f32", V(60), V(60), V(61))]; ls = l_flag(0, V(60))
    st = []
    for n in range(O_.nsh): st += scale_frag(rawr(0, n), Qreg(0, n), V(0, 8), V(8 + 4*(n & 1), 4), pk=False)
    rest = sc.pour((lv, 10), (st, wq.gap + 1)); sc.emit(); E(rest, ls)
    first = sm_split(0)[0]
    def finish(b): return rowmax_ops(b)[1] + delay_cvts([x for bb, x in first if bb == b])
    for b in range(NB):
        E(comment(f"---- switch block {b}"), stamp_now() if O_.probe == 1 else None)
        if b >= 2: E(wait(lgkm=[rawr(b, n) for n in range(4)]))
        for n in range([O_.nsh, 1, 0, 0, 0, 0][b], 4):
            E(more(1), scale_frag(rawr(b, n), Qreg(b, n), V(0, 8) if b == 0 else wt, V(8, 4) if b == 0 else Sreg(b, n & 1)))
        if b == 0: E(wait(lgkm=[F(k) for k in range(8)] + [rawr(1, n) for n in range(4)]), barrier())
        sc = Sched(qk_first(b))
        if b == NB - 1:
            for s_ in range(4): sc.fix(kread(2, 0, s_, F(s_), 1), 4 + s_)
        elif b >= 1:
            sc.fix(wait(vm=blk(aQ, 1, b + 1)), 0)
            for s_, x in enumerate(qrd(b + 1)): sc.fix(x, 1 + 2*s_)
        rest = sc.pour((rowmax_ops(b - 1)[0] if b else scale_frag(rawr(1, 0), Qreg(1, 0), wt, Sreg(1, 0), pk=False), 0)); sc.emit(); E(rest)
        E(l_bcast(b, rc[b//3], rl), epi_half(0, b, 0, rl, V(176, 16), y), finish(b - 1) if b else None, epi_half(0, b, 1, rl, V(192, 16), y))
    assert more.left() == 0
    E(rowmax_ops(NB - 1)[0], finish(NB - 1))
    E(salu("s_mov_b32", sSide, 4096*O_.oc0), salu("s_mov_b32", sCnt, O_.oc0 - 1), salu("s_mov_b32", sHead, 1), wait(lgkm=[F(s_) for s_ in range(4)]))
    E(stamp_now(), raw("s_branch L_first"))

def wbl2(k):
    if str(k) not in O_.wb: return []
    return [salu("s_lshr_b32", sT0, S(2), 3), salu("s_lshl_b32", sT0, sT0, 2), salu("s_add_u32", sT0, sT0, sW), scmp("s_cmp_lg_u32", sT0, 4*(5 + 6*k)),
            raw(f"s_cbranch_scc1 L_wb{k}", "salu", {"scc"}), raw("buffer_wbl2 sc1"), label(f"L_wb{k}")]
def endgame():
    s = seg("end"); path.append((s, {"J": 29}))
    E(stamp_now())
    carry = []
    for ps, H in enumerate(([3, 4, 5], [0, 1, 2])):
        E(comment(f"---- pass {ps}"))
        subs = [("Q", 1, 0), ("Q", 1, 1), ("P", 0, 0), ("P", 0, 1), ("Q", 2, 0), ("Q", 2, 1), ("P", 1, 0), ("P", 1, 1), ("P", 2, 0), ("P", 2, 1)]
        FA, FB = [F(k) for k in range(4)], [F(4 + k) for k in range(4)]
        G = [[Qreg(3 + n, k) for k in range(4)] for n in range(3)]; Hh = [[A(176 + 16*n + 4*k, 4) for k in range(4)] for n in range(5)]
        fr = [FA, FB, FA, FB, FA, FB, FA] + G if ps == 0 else [FA, FB] + Hh + G
        mf = []; use = []; cend = {}; cstart = {}; pstart = {}; bstart = {}
        for i, (kind, d, x) in enumerate(subs):
            u = {}
            if kind == "Q":
                for n, b in enumerate(H):
                    cstart[(d, b, x)] = len(mf)
                    for s_, m in chain(b, x, fr[i], negM(b), n & 1): u.setdefault(s_, []).append(len(mf)); mf.append(m)
                    cend[(d, b, x)] = len(mf) - 1
            elif d == 2:
                if x == 0:
                    u2 = {}
                    for n, b in enumerate(H):
                        bstart[b] = len(mf); mf.append(rowsum(1, b))
                        for t in range(8):
                            (u if t < 4 else u2).setdefault(t & 3, []).append(len(mf))
                            mf.append(mfma(Oreg(b, t), Preg(1, b), fr[i + (t >> 2)][t & 3], Oreg(b, t)))
                else: u = u2
            else:
                par = (d + 1) & 1
                if x == 0: pstart[d] = len(mf)
                for hh in range(2):
                    for t, m in pv_pair(par, H if hh == 0 else H[::-1], 4*x + 2*hh, fr[i][2*hh:2*hh + 2], False, H[2*x + hh:2*x + hh + 1]):
                        if t is not None: u.setdefault(t & 3, []).append(len(mf))
                        mf.append(m)
            use.append(u)
        sc = Sched(mf); bar = {}
        if ps == 0:
            for d, g, keys in ((0, 9, [rV(0), rK(2)]), (1, use[4][1][-1], [rV(1), rV(2)])):
                sc.fix(wait(vm=keys), g); bar[d] = bar[2] = sc.fix(barrier(), g)
        pcs = [(0, q) for q in late_pieces(1) + late_pieces(2)] if ps == 0 else [(0, q) for q in late_pieces(3)] + carry
        taken = {t.gap + k for t in bar.values() for k in (-1, 0, 1)}
        prev_st = [None]*4; pst = None; base = None
        for i, (h, q) in enumerate(pcs):
            g = 12 + (len(mf) - 16)*i//max(1, len(pcs) - 1) if ps == 0 else 10 + (len(mf) - 14)*i//len(pcs)
            while g in taken or g - 1 in taken: g += 1
            off = h*98304 + q*1024
            if base is None or not 0 <= off - base < 4096:
                base = off; sc.add(salu("s_mov_b32", sSide, base), 0, g - 1, [(pst, 1, 1)])
            r = sc.seq(o_read(aO(h, q), q, X[i & 3]), g - 30, g - 8, prev_st[i & 3])
            sc.add(wait(lgkm=[X[i & 3]]), 0, g - 1, [(r, 1, 7)])
            pst = prev_st[i & 3] = sc.fix(vstore(X[i & 3], vlin, sO, sSide, off - base, O_.h0_flags if h else O_.late_flags), g)
        prev = None
        for i, (kind, d, x) in enumerate(subs):
            if i == 0 or (ps == 1 and (i == 1 or i >= 7)): continue
            tight = ps == 0 and i < 7
            for k in range(4):
                lo = (use[i - 2][k][-1] if i >= 2 else 0) if tight else (cend[(2, 3 + i - 7, 1)] if ps == 0 else 0)
                rds = [kread(d, x, k, fr[i][k], d - 1)] if kind == "Q" else [vread(d, 4*x + k, a, fr[i][k], d + 1) for a in range(2)]
                bp = bar.get(d if kind == "P" else (0 if d == 2 else None))
                for r in rds: prev = sc.add(r, lo, None, [(prev, 1, 1), (bp, 1, 1)])
                if tight and kind == "P" and k & 1: sc.add(wait(lgkm=fr[i][k - 1:k + 1]), 0, min(use[i][k - 1][0], use[i][k][0]) - 1, [(prev, 1, 6)])
            if not (tight and kind == "P"): sc.add(wait(lgkm=fr[i]), 0, use[i][0][0] - 1, [(prev, 1, 6)])
        if ps == 0:
            for a in range(2):
                for k in range(4): prev = sc.add(kread(1, a, k, F(4*a + k), 0), use[6][k][-1], None, [(prev, 1, 1)])
        grp = [([x for bb, x in sm_split(1)[1] if bb == b], 0, cstart[(1, b, 1)] - 1) for b in H]
        for a in range(2):
            for k, b in enumerate(H): grp.append((sm_ops(0, b, a), cend[(1, b, a)] + 4, min(pstart[1] - 2 + 2*k, cstart[(2, b, a)] - 1)))
        sc.sm(grp)
        order = [(H[0], 0), (H[1], 0), (H[0], 1), (H[2], 0), (H[1], 1), (H[2], 1)]
        sc.sm([(sm_ops(1, b, a), cend[(2, b, a)] + 4, bstart[b] - 2) for b, a in order], 2.4)
        sc.run()
        rc, rl, t1 = negM(H[0]), negM(H[1]), negM(H[2])[0]
        rest = sc.pour((l_ops(1, H[0], rc, t1), bstart[H[2]] + 4)); sc.emit()
        E(rest, l_flag(1, t1), wbl2(2*ps), stamp_now(), comment("---- epilogue"))
        dsts = [X[:4], [F(4 + i) for i in range(4)]]
        pend = []
        for k, b in enumerate(H):
            E(l_bcast(b, rc, rl))
            for th in range(2):
                ep = epi_half(1, b, th, rl, V(24, 16), V(40, 8))
                E(ep)
                E(pend[:2]); del pend[:2]
            if ps == 0 and k > 0: carry += [(1, 4*b + i) for i in range(4)]; continue
            d_ = dsts[k & 1]
            E([o_read(aO(1, 4*b + i), 4*b + i, d_[i]) for i in range(4)])
            sts = [vstore(d_[i], vlin, sO, sSide, i*1024, O_.fin_flags if ps else O_.h0_flags) for i in range(4)]
            pre = [salu("s_mov_b32", sSide, 98304 + b*4096), wait(lgkm=d_)]
            pend = [pre + [sts[0]], None, sts[1], None, sts[2], None, sts[3]] if ps == 0 else [pre + [sts[0]], sts[1], sts[2], sts[3]]
        E(pend, wait(lgkm=0), wbl2(2*ps + 1), stamp_now())

def slow_path():
    sH, sB, sI, sKo, sQo = S(4), S(5), S(6), S(7), S(8)
    Qf = [V(4*s, 4) for s in range(4)]; Kf = [V(16 + 4*i, 4) for i in range(8)]; St = [V(48, 4), V(52, 4)]; Pf = V(56, 4)
    nm = V(60, 4); Vf = V(64, 4); Of = [V(68 + 4*t, 4) for t in range(8)]; L = V(100, 4); w = V(104, 8)
    ones = V(120, 4)
    vrow, vk, vv, vtr, vst_, t0, t1 = V(112), V(113), V(114), V(115), V(116), V(117), V(118)
    def S_(name, J=0):
        s = seg(name); return s
    s0 = S_("slow0")
    E(comment("---- fallback: a row sum left the safe range, redo this wave's rows with the true row max"),
      label("L_slow"), wait(vm=0, lgkm=0),
      valu("v_mbcnt_lo_u32_b32", t0, -1, 0), valu("v_mbcnt_hi_u32_b32", t0, -1, t0), valu("v_lshlrev_b32", vlin, 4, t0),
      [valu("v_mov_b32", ones[r], "0x3f803f80") for r in range(4)],
      valu("v_bfe_u32", t0, vlin, 4, 4), valu("v_lshrrev_b32", t1, 8, vlin),
      valu("v_lshlrev_b32", vrow, 8, t0), valu("v_lshl_add_u32", vst_, t1, 3, vrow), valu("v_lshl_add_u32", vrow, t1, 4, vrow),
      valu("v_lshrrev_b32", vtr, 2, t0), valu("v_lshl_add_u32", vtr, t1, 2, vtr), valu("v_lshlrev_b32", vtr, 8, vtr),
      valu("v_and_b32", t0, 3, t0), valu("v_lshl_add_u32", vtr, t0, 3, vtr), valu("v_add_u32", vtr, sStg, vtr),
      salu("s_mov_b32", sH, 0))
    s1 = S_("slow_head")
    E(label("L_sl_head"), salu("s_lshr_b32", sT0, sFlag, sH), salu("s_and_b32", sT0, sT0, 1), raw("s_cbranch_scc0 L_sl_next", "salu", {"scc"}),
      salu("s_lshl_b32", sKo, sH, 17), salu("s_mul_i32", sQo, sH, 98304), salu("s_mov_b32", sB, 0))
    s2 = S_("slow_blk")
    E(label("L_sl_blk"))
    for s in range(4): E(vload(Kf[s], vrow, sQ, sQo, 64*s))
    E(wait(vm=0))
    for s in range(4): E(scale_frag(Kf[s], Qf[s], w, None))
    E(valu("v_mov_b32", nm[0], "0xff800000"), valu("v_add_u32", vk, sKo, vrow), salu("s_mov_b32", sI, 32))
    s3 = S_("slow_p1")
    E(label("L_sl_p1"))
    for s in range(4): E(gload(Kf[s], vk, sKb, 64*s))
    E(valu("v_add_u32", vk, 4096, vk), wait(vm=0))
    for s in range(4): E(mfma(St[0], Kf[s], Qf[s], 0 if s == 0 else St[0]))
    E(salu("s_sub_u32", sI, sI, 1), scmp("s_cmp_lg_u32", sI, 0), nop(7),
      valu("v_max3_f32", nm[0], nm[0], St[0][0], St[0][1]), valu("v_max3_f32", nm[0], nm[0], St[0][2], St[0][3]),
      raw("s_cbranch_scc1 L_sl_p1", "salu", {"scc"}))
    s4 = S_("slow_mid")
    E(xlane_max(nm[0], nm[1]), [valu("v_sub_f32", nm[r], 0, nm[0]) for r in (1, 2, 3, 0)])
    for r in range(36): E(valu("v_mov_b32", V(68 + r), 0))
    E(valu("v_add_u32", vk, sKo, vrow), valu("v_add_u32", vv, sKo, vlin), valu("v_add_u32", vv, 1024 + 16384, vv), salu("s_mov_b32", sI, 16))
    s5 = S_("slow_p2")
    E(label("L_sl_p2"))
    key = (("stg", "slow"), ("Vs",), False)
    for half in range(2):
        E(salu("s_add_u32", "m0", sStg, 4096*half))
        for s in range(4): E(gload(Kf[4*half + s], vk, sKb, 64*s))
        for k in range(4): E(gdma(vv, sVb, 1024*k, key, ""))
        E(valu("v_add_u32", vk, 4096, vk), valu("v_add_u32", vv, 4096, vv))
    E(wait(vm=0))
    for a in range(2):
        for s in range(4): E(mfma(St[a], Kf[4*a + s], Qf[s], nm if s == 0 else St[a]))
    E(nop(7))
    for r in range(8): E(valu("v_exp_f32", V(48 + r), V(48 + r)))
    for r in range(4): E(valu("v_cvt_pk_bf16_f32", Pf[r], V(48 + 2*r), V(49 + 2*r)))
    E(mfma(L, ones, Pf, L))
    for t in range(8):
        for a in range(2): E(ds_read("ds_read_b64_tr_b16", Vf[2*a:2*a + 2], vtr, a*4096 + 32*t, key))
        E(wait(lgkm=0), mfma(Of[t], Vf, Pf, Of[t]), nop(1))
    E(salu("s_sub_u32", sI, sI, 1), scmp("s_cmp_lg_u32", sI, 0), raw("s_cbranch_scc1 L_sl_p2", "salu", {"scc"}))
    s6 = S_("slow_epi")
    E(nop(7), valu("v_rcp_f32", t0, L[0]), nop(0))
    for t in range(8):
        for r in range(4): E(valu("v_mul_f32", Of[t][r], t0, Of[t][r]))
        E(valu("v_cvt_pk_bf16_f32", Of[t][0], Of[t][0], Of[t][1]), valu("v_cvt_pk_bf16_f32", Of[t][1], Of[t][2], Of[t][3]),
          vstore(Of[t][0:2], vst_, sO, sQo, 32*t, "", "buffer_store_dwordx2"))
    E(salu("s_add_u32", sQo, sQo, 4096), salu("s_add_u32", sB, sB, 1), scmp("s_cmp_lt_u32", sB, NB), raw("s_cbranch_scc1 L_sl_blk", "salu", {"scc"}))
    s7 = S_("slow_next")
    E(label("L_sl_next"), salu("s_add_u32", sH, sH, 1), scmp("s_cmp_lt_u32", sH, 2), raw("s_cbranch_scc1 L_sl_head", "salu", {"scc"}))
    blkp = [s2, s3, s3, s4, s5, s5, s6]
    path2.extend((x, {"J": 0}) for x in [s0, s1] + blkp + blkp + [s7, s1] + blkp + [s7])

def finish():
    if O_.diag:
        a, b = [int(x) for x in O_.diag.split(":")]
        E(wait(vm=0), raw("s_memrealtime s[42:43]", "smem", (), rs(S(42, 2))), wait(lgkm=0), salu("s_mov_b32", S(47), S(42)),
          salu("s_sub_u32", sT0, S(STAMP0 + b), S(STAMP0 + a)), salu("s_lshr_b32", sT0, sT0, 3 if O_.stamps == 1 else 0),
          salu("s_add_u32", sT0, sT0, 7000),
          label("L_spin"), raw("s_memrealtime s[42:43]", "smem", (), rs(S(42, 2))), wait(lgkm=0),
          salu("s_sub_u32", S(42), S(42), S(46)), scmp("s_cmp_lt_u32", S(42), sT0), raw("s_cbranch_scc1 L_spin", "salu", {"scc"}))
    elif O_.stamps:
        E(wait(vm=0), raw("s_memrealtime s[42:43]", "smem", (), rs(S(42, 2))), wait(lgkm=0), salu("s_mov_b32", S(47), S(42)))
        E(salu("s_lshl_b32", sT0, S(2), 2), salu("s_add_u32", sT0, sT0, sW), salu("s_lshl_b32", sT0, sT0, 8))
        E(valu("v_mov_b32", V(1), sT0))
        for k in range(nstamp[0] + 2):
            E(valu("v_mov_b32", V(2), S(46 + k)),
              Inst(f"global_store_dword v1, v2, s[44:45] offset:{4*k}", "vst", rs(V(1), V(2), S(44, 2)), (), data=set()), nop(1))
    if O_.itst:
        E(valu("v_mbcnt_lo_u32_b32", V(2), -1, 0), valu("v_mbcnt_hi_u32_b32", V(2), -1, V(2)), valu("v_lshlrev_b32", V(2), 2, V(2)), valu("v_add_u32", V(1), V(1), V(2)), valu("v_add_u32", V(1), 1 << 20, V(1)),
          Inst("global_store_dword v1, a175, s[44:45]", "vst", rs(V(1), A(175), S(44, 2)), (), data=set()))
    if O_.stamps and not O_.diag:
        E(raw("s_getreg_b32 s42, hwreg(HW_REG_XCC_ID)", "salu", (), rs(S(42))), valu("v_mov_b32", V(1), sT0), valu("v_mov_b32", V(2), S(42)),
          Inst("global_store_dword v1, v2, s[44:45] offset:252", "vst", rs(V(1), V(2), S(44, 2)), (), data=set()))
    E(scmp("s_cmp_eq_u32", sFlag, 0), raw("s_cbranch_scc1 L_end", "salu", {"scc"}), label("L_fast_end"))

def build():
    assert O_.la1 == 3 and O_.oc0 < 6 and O_.dg >= 40
    s = seg("start"); path.append((s, {"J": 0})); startup()
    f = seg("first"); E(raw(".p2align 3", "label"), label("L_first")); iteration(0, "first", [])
    once = O_.qa0 == 1 and O_.oc0 == 1
    no = seg("N_odd"); E(label("L_N")); iteration(1, None, [] if once else [dec(), br("s_cbranch_scc1 L_N_exit")])
    if not once: ne = seg("N_even"); iteration(0, None, [br("s_branch L_N")])
    nx = seg("N_exit"); E(label("L_N_exit"), scmp("s_cmp_lg_u32", sHead, 0), raw("s_cbranch_scc1 L_N_head1", "salu", {"scc"}))
    def lead(J0, pairs):
        path.append((f, {"J": J0}))
        for k in range(1, 2*pairs): path.append((no if k & 1 else ne, {"J": J0 + k}))
        path.append((nx, {"J": 0}))
    lead(0, O_.qa0)
    s = seg("A_pre"); path.append((s, {"J": 0})); E(salu("s_mov_b32", sCnt, 7 - O_.qa0))
    loop("A", "Q", 2*O_.qa0, 15 - 2*O_.qa0)
    transition()
    lead(16, O_.oc0)
    s = seg("C_pre"); path.append((s, {"J": 0})); E(label("L_N_head1"))
    if O_.oc0 < 6:
        E(salu("s_mov_b32", sCnt, 5 - O_.oc0))
        loop("C", "O", 16 + 2*O_.oc0, 12 - 2*O_.oc0)
    s = seg("j12"); path.append((s, {"J": 28})); E(stamp_now()); iteration(0, "last", [])
    endgame()
    finish()
    if O_.slow: slow_path()
    seg("exit"); E(label("L_end"))
    def trace(): return [(i, mkctx(c)) for sidx, c in path + path2 for i in segs[sidx][1]]
    for rnd in range(5):
        fix = {}
        resolve_and_check(trace(), fix=fix)
        for sg in segs:
            new = []
            for i in sg[1]:
                if i.kind == "wait" and i.m["nvm"] in (None, 63) and i.m["nlg"] in (None, 15): fix[0] = 1; continue
                if id(i) in fix: new.append(nop(fix[id(i)] - 1))
                new.append(i)
            sg[1][:] = new
        if not fix: break
    resolve_and_check(trace(), verbose=True)
    if O_.stamps:
        tr = [i for sidx, c in path for i in segs[sidx][1]]; cuts = [k for k, i in enumerate(tr) if i.kind == "smem" and "s[42:43]" in i.text]
        print("  est between stamps:", [cost_estimate(tr[a:b]) for a, b in zip(cuts, cuts[1:])])
    for name, ins in segs:
        if not name.startswith("slow"): print(f"  seg {name:8s} insts {len(ins):5d} est cycles {cost_estimate(ins):6d} nops {sum(1 for i in ins if i.kind == 'nop')}")

HEAD = """; MHA forward, B=16 H=32 Sq=384 Sk=512 D=128, bf16 in/out.  Generated by the author's own script (gen/gen6.py).
; Softmax: Q is pre-scaled by log2(e)/sqrt(D); the row max of the first 32 keys is subtracted through the MFMA
; C operand; the final row sums are checked (NaN or >= 2^64) and a failing wave redoes its rows with the true
; row max (L_slow).
; @launch grid=(256,1,1) block=(256,1,1) lds=163840
.amdgcn_target "amdgcn-amd-amdhsa--gfx950"
.text
.globl standalone__mha_softmax__near_ridge_kernel
.p2align 8
.type standalone__mha_softmax__near_ridge_kernel,@function
standalone__mha_softmax__near_ridge_kernel:
"""
TAIL = """    s_endpgm
.section .rodata,"a"
.p2align 6
.amdhsa_kernel standalone__mha_softmax__near_ridge_kernel
  .amdhsa_next_free_vgpr 512
  .amdhsa_next_free_sgpr 102
  .amdhsa_accum_offset 256
  .amdhsa_group_segment_fixed_size 0
  .amdhsa_kernarg_size 48
  .amdhsa_user_sgpr_count 2
  .amdhsa_user_sgpr_kernarg_segment_ptr 1
  .amdhsa_system_sgpr_workgroup_id_x 1
.end_amdhsa_kernel
"""
def insert_pads(text):
    import subprocess, re, tempfile, os
    def offsets(npads):
        d = tempfile.mkdtemp(); t = text()
        t = t.replace("L_padret:", "L_padret:\n" + "".join(f"L_pad{k}:\n" for k in range(npads + 1, 40)))
        open(d + "/a.s", "w").write(t)
        subprocess.run(["clang", "-x", "assembler", "-target", "amdgcn-amd-amdhsa", "-mcpu=gfx950", "-c", d + "/a.s", "-o", d + "/a.o"], check=True)
        dis = subprocess.run(["llvm-objdump", "-d", "--mcpu=gfx950", d + "/a.o"], capture_output=True, text=True).stdout
        dis = dis[dis.index("<L_main>:"):]
        ad = [(int(m.group(2), 16), m.group(1)) for m in re.finditer(r"^\s+(\S+).*// ([0-9A-F]{12}):", dis, re.M)]
        flat = [(sg, k) for sg in segs for k in range(len(sg[1]))]
        flat = flat[[i for i, (sg, k) in enumerate(flat) if sg[1][k].text == "L_main:"][0]:]
        o = []; j = 0
        for sg, k in flat:
            x = sg[1][k]
            if x.kind == "label":
                if x.text == "L_fast_end:": break
                if x.text.startswith(".p2align") and ad[j][0] % 8: j += 1
                continue
            assert ad[j][1].startswith(x.text.split()[0][:12]), (ad[j], x.text)
            o.append((ad[j][0] - ad[0][0], sg, k)); j += 1
        return o
    page = 1; pads = []
    while True:
        off = offsets(page - 1)
        cand = [n for n, (a, sg, k) in enumerate(off) if 4096*page <= a <= 4096*page + 56]
        if not cand: break
        def score(n):
            a, sg, k = off[n]; lo = max(0, k - 8); w = sg[1][lo:k + 8]
            return cost_estimate(w[:k - lo] + [raw("pad")] + w[k - lo:]) - cost_estimate(w)
        n = min(cand, key=score); _, sg, k = off[n]
        p = raw(f"s_cbranch_vccz L_pad{page + 4}"); pads.append(p)
        sg[1][k:k] = [label(f"L_pad{page}"), p]
        page += 1
    for i, p in enumerate(pads):
        if i + 1 + 4 >= page: p.text = "s_cbranch_vccz L_padret"
    assert page > 4
    print(f"  {page - 1} page pads")

if __name__ == "__main__":
    out = sys.argv[1]
    for a in sys.argv[2:]:
        k, v = a.split("=")
        setattr(O_, k, type(getattr(O_, k))(v))
    build()
    def text(): return HEAD + "\n".join((i.text if i.kind == "label" else "    " + i.text) for _, ins in segs for i in ins) + "\n" + TAIL
    if O_.pads: insert_pads(text)
    open(out, "w").write(text())
    import subprocess
    r = subprocess.run([sys.executable, "cdna_unwritten_srd_check.py", out], capture_output=True, text=True)
    print("  check:", r.stdout.strip()[-300:], r.stderr.strip()[-300:])
```

```python
import sys, math, struct
from ir import *

class Opt:
    stamps = 0; diag = ""; dq = -1; itst = 0
    st_flags = "sc1"; late_flags = "sc1"; h0_flags = "sc1"; fin_flags = "sc1"; fq = "nt"; fk = "nt"; fv = "nt"
    n0 = 14
    qa0 = 2
    qpp = 3
    oc0 = 4
    r1 = 4
    dg = 76
    olate = "4444"
    nsh = 2
    slow = 1
    xtra = ""
    pads = 1
    g1late = 1
    vtouch = 0
    g12 = 16
    pvo = "bs2"
    qks = 1
    la1 = 3
    wgmap = 0
    probe = 0
    tq = 4
    tstep = 12
    force = 0
O_ = Opt()

NB = 6
def f32bits(x): return struct.unpack("<I", struct.pack("<f", x))[0]
CSCALE = f32bits(math.log2(math.e) / math.sqrt(128.0))
THRESH = f32bits(2.0 ** 64)

def Sreg(b, a): return V(8*b + 4*a, 4)
def Preg(par, b): return V(48 + 24*par + 4*b, 4)
def negM(b): return V(96 + 4*b, 4)
kaddr = [V(120 + s) for s in range(4)]
vaddr = [V(124 + t) for t in range(8)]
vkv = V(132); vsd0 = V(133); vsd1 = V(134); vlin = V(135)
qa = [V(136 + s) for s in range(4)]
ow = V(140)
ovr = V(141)
def Oreg(b, t):
    n = 8*b + t
    return V(144 + 4*n, 4) if n < 28 else A(176 + 4*(n - 28), 4)
def Qreg(b, s): return A(16*b + 4*s, 4)
def F(i): return A(96 + 4*i, 4)
def lacc(b): return A(128 + 4*(b//3), 4)
def sel(b): return A(136 + 4*(b % 3), 4)
X = [A(148 + 4*k, 4) for k in range(7)]
sQ, sO = S(12, 4), S(24, 4); sKb, sVb, sKx, sVx = S(16, 2), S(22, 2), S(18, 2), S(6, 2)
sW = S(28); sM0 = S(30); sStg = S(31); sSide = S(32); sT0 = S(33); sT1 = S(34); sT2 = S(35)
sFlag = S(36); sThr = S(37); sC = S(38, 2); sCmp = S(40, 2); sStamp = S(42, 2); sCnt = S(3); sQd = S(29); sHead = S(20)
STAMP0 = 48

def aK(J): return (("ring", (J - 2) % 4, "K"), ("K", J), True)
def aV(J): return (("ring", J % 4, "V"), ("V", J), True) if J < 31 else (("ring", 2, "K"), ("V", J), True)
def rK(d): return lambda c: aK(c["J"] + d)
def rV(d): return lambda c: aV(c["J"] + d)
def aQ(h, p): return (("stg", p), ("Q", h), False)
def aO(h, p): return (("stg", p), ("O", h), False)
def blk(f, h, b): return [f(h, 4*b + i) for i in range(4)]
def mkctx(c): return lambda r: r(c) if callable(r) else r

segs = []; path = []; path2 = []; cur = None
def seg(name):
    global cur
    cur = []; segs.append([name, cur]); return len(segs) - 1
def E(*xs):
    for x in xs:
        if x is None: continue
        if isinstance(x, (list, tuple)): E(*x)
        else: cur.append(x)
nstamp = [0]
def stamp_now():
    if O_.stamps not in (1, 2): return []
    k = nstamp[0]; nstamp[0] += 1
    op = "s_memtime" if O_.stamps == 1 else "s_memrealtime"
    return [raw(f"{op} {sStamp}", "smem", (), rs(sStamp)), wait(lgkm=0), salu("s_mov_b32", S(STAMP0 + k), sStamp[0])]

MEM = ("dsr", "dsw", "dma", "vld", "vst"); VAL = ("valu", "trans")
class Task:
    def __init__(s, x, lo, hi, preds): s.x, s.lo, s.hi, s.preds, s.gap = x, lo, hi, preds, None
class Sched:
    def __init__(s, mf):
        s.mf = mf; s.n = len(mf); s.g = [[] for _ in mf]; s.t = []
        s.cap = [24 if m.m["big"] else 8 for m in mf]; s.novalu = set()
    def cost(s, x): return 8 if x.kind == "trans" or x.m.get("perm") else 4
    def fits(s, g, x):
        if s.cap[g] < s.cost(x): return False
        if x.kind in MEM and any(y.kind in MEM for y in s.g[g]): return False
        if x.kind in VAL and g in s.novalu: return False
        return True
    def put(s, g, x): s.g[g].append(x); s.cap[g] -= s.cost(x)
    def fix(s, x, g):
        t = Task(x, g, g, []); t.gap = g; s.put(g, x)
        if x.kind in ("dma", "vst", "vld"): s.cap[g] = 0; s.novalu.add(g - 1)
        if x.kind == "barrier": s.cap[g] = 0
        return t
    def add(s, x, lo=0, hi=None, preds=()):
        t = Task(x, max(lo, 0), s.n - 1 if hi is None else min(hi, s.n - 1), [p for p in preds if p[0] is not None]); s.t.append(t); return t
    def seq(s, xs, lo=0, hi=None, after=None, hard=1):
        p = after
        for x in xs: p = s.add(x, lo, hi, [(p, hard, hard)])
        return p
    def sm(s, groups, smax=2.0):
        ex = [(x, lo, hi) for ops, lo, hi in groups for x in ops if x.kind == "trans"]
        sig = smax
        while True:
            pos = []; t = -9.0; ok = True
            for x, lo, hi in ex:
                t = max(lo, t + sig); g = int(t)
                while g < s.n and (not s.fits(g, x) or (pos and g <= pos[-1])): g += 1
                if g > hi - 1: ok = False; break
                pos.append(g); t = max(t, g - 0.5)
            if ok: break
            sig -= 0.05
            assert sig > 0.3, "softmax does not fit"
        k = 0
        for ops, lo, hi in groups:
            e = []
            for x in ops:
                if x.kind == "trans": e.append(s.fix(x, pos[k])); k += 1
                else: s.add(x, lo, min(hi, e[-1].gap + 5), [(e[-1], 1, 1)])
    def run(s):
        for t in reversed(s.t):
            for p, h, so in t.preds:
                if p.gap is None: p.hi = min(p.hi, t.hi - so)
        for t in s.t:
            for p, h, so in t.preds: t.lo = max(t.lo, p.lo + h)
            t.hi = max(t.hi, t.lo)
        left = list(s.t)
        for g in range(s.n):
            while True:
                rdy = [t for t in left if t.lo <= g and all(p.gap is not None and g >= p.gap + h for p, h, so in t.preds)]
                rdy = [t for t in rdy if t.hi <= g or all(g >= p.gap + so for p, h, so in t.preds)]
                rdy.sort(key=lambda t: t.hi)
                pick = next((t for t in rdy if t.hi <= g or s.fits(g, t.x)), None)
                if pick is None: break
                s.put(g, pick.x); pick.gap = g; left.remove(pick)
        assert not left, left[0].x
        s.t = []
    def pour(s, *streams):
        st = [[list(xs), lo] for xs, lo in streams]
        for g in range(s.n):
            again = True
            while again:
                again = False
                for q in st:
                    if q[0] and q[1] <= g and s.fits(g, q[0][0]): s.put(g, q[0].pop(0)); again = True; break
        return [x for q in st for x in q[0]]
    def emit(s):
        for m, g in zip(s.mf, s.g):
            key = lambda x: 3 if x.m.get("last") else (2 if x.kind in VAL else (0 if x.kind in MEM else 1))
            E(m, sorted(g, key=key))

def kread(d, a, s, dst, hi): return ds_read("ds_read_b128", dst, kaddr[s], hi*16384 + a*8192, rK(d))
def vread(d, t, a, dst, hi): return ds_read("ds_read_b64_tr_b16", dst[2*a:2*a+2], vaddr[t], (hi*16384 if hi < 3 else 32768 - 1024) + a*8192, rV(d))
def kv_dmas(d, withV=True, withK=True, checked=False):
    la = (lambda c: d) if d is not None else (lambda c: O_.la1 if c["J"] >= 16 else 2)
    o = []
    for im in (0, 2048):
        if withV: o.append(gdma(vkv, sVb, im + 1024, lambda c: aV(c["J"] + la(c)), O_.fv))
        key = lambda c: aK(c["J"] + la(c) + 2) if c["J"] + la(c) < 30 else aV(31)
        if withK: o.append(gdma(vkv, sKx if checked else sKb, im, key, O_.fk))
    return o
def m0_next():
    return [salu("s_mov_b32", "m0", sM0), salu("s_add_u32", sM0, sM0, 16384), salu("s_and_b32", sM0, sM0, "0xffff")]
def kv_step(): return valu("v_add_u32", vkv, 8192, vkv)
def q_dma_block(h, b):
    o = [salu("s_add_u32", "m0", sStg, b*4096), salu("s_mov_b32", sSide, h*98304 + b*4096)]
    for i in range(4): o.append(dma(vsd1 if i & 1 else vsd0, sQ, sSide, i*1024, aQ(h, 4*b + i), O_.fq))
    return o
def piecemeal(groups):
    st = []; pre = []
    for grp in groups:
        for x in grp:
            if x.kind in MEM: st.append(pre + [x]); pre = []
            else: pre.append(x)
    if pre: st[-1] += pre
    def more(n):
        o = st[:n]; del st[:n]; return o
    more.left = lambda: len(st)
    return more

def sm_ops(par, b, a):
    s = Sreg(b, a); p = Preg(par, b)
    return [valu("v_exp_f32", s[0], s[0]), valu("v_exp_f32", s[1], s[1]), valu("v_cvt_pk_bf16_f32", p[2*a], s[0], s[1]),
            valu("v_exp_f32", s[2], s[2]), valu("v_exp_f32", s[3], s[3]), valu("v_cvt_pk_bf16_f32", p[2*a+1], s[2], s[3])]
NE_A = 40
def sm_split(par):
    st = []
    for a in range(2):
        for b in range(NB): st += [(b, x) for x in sm_ops(par, b, a)]
    k = NE_A // 2 * 3
    return st[:k], st[k:]
def delay_cvts(xs):
    o = []; pend = []
    for x in xs:
        if x.kind == "trans":
            o.append(x)
            if pend: o.append(pend.pop(0))
        else: pend.append(x)
    return o + pend
def xlane_max(m, t):
    o = []
    for op in ("v_permlane32_swap_b32", "v_permlane16_swap_b32"):
        o += [valu("v_mov_b32", t, m), swap(op, m, t), valu("v_max_f32", m, m, t)]
    return o
def rowmax_ops(b):
    m, t = negM(b)[0], negM(b)[1]; sv = lambda r: V(8*b + r)
    o = [valu("v_max3_f32", m, sv(0), sv(1), sv(2)), valu("v_max3_f32", t, sv(3), sv(4), sv(5)),
         valu("v_max3_f32", m, m, sv(6), sv(7)), valu("v_max_f32", m, m, t)] + xlane_max(m, t)
    o += [valu("v_sub_f32", negM(b)[r], 0, m) for r in (1, 2, 3, 0)]
    return o, [valu("v_pk_add_f32", V(8*b + 2*r, 2), V(8*b + 2*r, 2), negM(b)[0:2]) for r in range(4)]
def scale_frag(x, dst, w, y, pk=True):
    o = []
    if pk:
        for r in range(4): o += [valu("v_lshlrev_b32", w[2*r], 16, x[r]), valu("v_and_b32", w[2*r+1], "0xffff0000", x[r])]
        for r in range(4): o.append(valu("v_pk_mul_f32", w[2*r:2*r+2], w[2*r:2*r+2], sC))
    else:
        for r in range(4):
            o += [valu("v_lshlrev_b32", w[2*r], 16, x[r]), valu("v_and_b32", w[2*r+1], "0xffff0000", x[r]),
                  valu("v_mul_f32", w[2*r], sC[0], w[2*r]), valu("v_mul_f32", w[2*r+1], sC[0], w[2*r+1])]
    if dst.k == "v": return o + [valu("v_cvt_pk_bf16_f32", dst[r], w[2*r], w[2*r+1]) for r in range(4)]
    for r in range(4): o.append(valu("v_cvt_pk_bf16_f32", y[r], w[2*r], w[2*r+1]))
    for r in range(4): o.append(valu("v_accvgpr_write_b32", dst[r], y[r]))
    return o
def chain(b, a, fr, c0, rev):
    return [(s, mfma(Sreg(b, a), fr[s], Qreg(b, s), c0 if n == 0 else Sreg(b, a))) for n, s in enumerate(range(3, -1, -1) if rev and O_.qks else range(4))]
def qk_first(b): return [m for a in range(2) for _, m in chain(b, a, [F(4*a + s) for s in range(4)], 0, a)]
def pv_pair(par, bs, t0, fr, init, sums):
    o = []
    if O_.pvo in ("t", "ts"):
        bs = sorted(bs)
        if 5 in sums and init: sums = []; o += [(None, rowsum(par, 5, init)), (None, rowsum(par, 4, init))]
        for k in range(2):
            for b in (bs if k == 0 or O_.pvo == "t" else bs[::-1]):
                o.append((t0 + k, mfma(Oreg(b, t0 + k), Preg(par, b), fr[k], 0 if init else Oreg(b, t0 + k))))
                if k == 0 and b in sums: o.append((None, rowsum(par, b, init)))
        return o
    for n, b in enumerate(bs):
        for k in ((0, 1) if n % 2 == 0 or O_.pvo == "pp2" else (1, 0)): o.append((t0 + k, mfma(Oreg(b, t0 + k), Preg(par, b), fr[k], 0 if init else Oreg(b, t0 + k))))
        if b in sums: o.insert(len(o) - 1, (None, rowsum(par, b, init)))
    return o
def rowsum(par, b, init=False): return mfma(lacc(b), Preg(par, b), sel(b), 0 if init and b in (0, 5) else lacc(b))

def startup():
    v0, vl, vi, vu, t0, t1, t2 = V(0), V(1), V(2), V(3), V(4), V(5), V(6)
    E(comment("---- setup"),
      raw("s_load_dwordx4 s[4:7], s[0:1], 0", "smem", (), rs(S(4, 4))),
      raw("s_load_dwordx4 s[8:11], s[0:1], 16", "smem", (), rs(S(8, 4))),
      scmp("s_cmp_ge_u32", S(2), 256), raw("s_cbranch_scc1 L_end", "salu", {"scc"}))
    if O_.wgmap == 1:
        E(salu("s_and_b32", sT0, S(2), 7), salu("s_lshr_b32", S(2), S(2), 3), salu("s_lshl_b32", sT0, sT0, 5), salu("s_or_b32", S(2), S(2), sT0))
    if O_.wgmap == 2: E(salu("s_and_b32", S(2), S(2), 7))
    if O_.stamps:
        E(raw("s_load_dwordx2 s[44:45], s[0:1], 40", "smem", (), rs(S(44, 2))),
          raw("s_memrealtime s[46:47]", "smem", (), rs(S(46, 2))))
    E(comment("pull the kernel's own code into L2 (one dword per 128-byte line)"),
      raw("s_getpc_b64 s[40:41]", "salu", (), rs(S(40, 2))), label("L_pc"),
      valu("v_lshlrev_b32", t0, 7, v0), valu("v_min_u32", t1, "L_fast_end-L_pc", t0),
      Inst(f"global_load_dword v7, {t1}, s[40:41]", "vld", rs(t1, S(40, 2)), rs(V(7))),
      valu("v_add_u32", t0, 32768, t0), valu("v_min_u32", t1, "L_fast_end-L_pc", t0),
      Inst(f"global_load_dword v8, {t1}, s[40:41]", "vld", rs(t1, S(40, 2)), rs(V(8))))
    E(valu("v_lshrrev_b32", t1, 6, v0), valu("v_and_b32", vl, 63, v0),
      valu("v_readfirstlane_b32", sW, t1),
      valu("v_and_b32", vi, 15, vl), valu("v_lshrrev_b32", vu, 4, vl),
      valu("v_lshlrev_b32", t0, 1, vu), valu("v_xor_b32", t0, t0, vi), valu("v_lshlrev_b32", t0, 4, t0),
      valu("v_lshl_add_u32", vsd0, vu, 8, t0), valu("v_xor_b32", vsd1, 128, vsd0),
      salu("s_and_b32", sT0, sW, 1), salu("s_lshr_b32", sT1, sW, 1),
      salu("s_lshl_b32", sT2, sT0, 7), salu("s_lshl_b32", sT0, sT0, 10), salu("s_lshl_b32", sT1, sT1, 12),
      salu("s_add_u32", sT0, sT0, sT1),
      valu("v_xor_b32", vkv, sT2, vsd0), valu("v_add_u32", vkv, sT0, vkv),
      salu("s_lshl_b32", sM0, sW, 12), salu("s_add_u32", sM0, sM0, 32768), salu("s_mul_i32", sStg, sW, 24576),
      salu("s_mul_i32", sT0, S(2), 196608), salu("s_add_u32", sT0, sT0, sStg), salu("s_add_u32", sStg, sStg, 65536),
      salu("s_lshl_b32", sT1, S(2), 18),
      salu("s_mov_b32", sQ[2], 98304 + 24576), salu("s_mov_b32", sQ[3], "0x20000"),
      wait(lgkm=0),
      salu("s_add_u32", sKb[0], S(6), sT1), salu("s_addc_u32", sKb[1], S(7), 0),
      salu("s_add_u32", sQ[0], S(4), sT0), salu("s_addc_u32", sQ[1], S(5), 0), salu("s_and_b32", sQ[1], sQ[1], "0xffff"))
    def grp(J, withV=True):
        ops = kv_dmas(J, withV)
        if J == 0: ops = ops[0::2] + ops[1::2]
        return m0_next() + ops + [kv_step()]
    more = piecemeal([grp(-2, False)] + [q_dma_block(0, b) for b in range(NB)] + [grp(-1, False), grp(0), grp(1)])
    E(more(10))
    if O_.pads: E(raw("s_branch L_main"), raw(".p2align 12", "label"), label("L_main"))
    E(salu("s_add_u32", sVb[0], S(8), sT1), salu("s_addc_u32", sVb[1], S(9), 0),
      (Inst(f"global_load_dword v9, {vsd0}, {sVb} nt", "vld", rs(vsd0, sVb), rs(V(9))) if O_.vtouch else None),
      salu("s_sub_u32", sVb[0], sVb[0], 1024 + 16384), salu("s_subb_u32", sVb[1], sVb[1], 0),
      salu("s_add_u32", sO[0], S(10), sT0), salu("s_addc_u32", sO[1], S(11), 0), salu("s_and_b32", sO[1], sO[1], "0xffff"),
      salu("s_mov_b32", sO[2], 98304 + 24576), salu("s_mov_b32", sO[3], "0x20000"),
      salu("s_add_u32", sVx[0], sVb[0], 1024 + 8192), salu("s_addc_u32", sVx[1], sVb[1], 0), salu("s_mov_b64", sKx, sKb),
      salu("s_mov_b32", sC[0], hex(CSCALE)), salu("s_mov_b32", sC[1], hex(CSCALE)),
      salu("s_mov_b32", sThr, hex(THRESH)), salu("s_mov_b32", sFlag, O_.force), salu("s_sub_u32", sQd, sStg, 98304))
    E(valu("v_and_b32", t0, 7, vi), valu("v_lshlrev_b32", t0, 1, t0), valu("v_xor_b32", t0, t0, vu), valu("v_lshlrev_b32", t0, 4, t0),
      valu("v_lshl_add_u32", t2, vi, 8, t0), valu("v_add_u32", qa[0], sStg, t2),
      valu("v_and_b32", t1, 3, vi), valu("v_lshl_add_u32", t0, t1, 8, t0),
      valu("v_lshrrev_b32", t1, 3, vi), valu("v_lshl_add_u32", t0, t1, 11, t0),
      valu("v_bfe_u32", t1, vi, 2, 1), valu("v_lshl_add_u32", t0, t1, 12, t0), valu("v_add_u32", kaddr[0], 32768, t0))
    for s in range(1, 4): E(valu("v_xor_b32", kaddr[s], s << 6, kaddr[0]), valu("v_xor_b32", qa[s], s << 6, qa[0]))
    E(valu("v_lshrrev_b32", t1, 2, vi), valu("v_and_b32", t2, 1, vu), valu("v_lshl_add_u32", t0, t2, 2, t1),
      valu("v_lshlrev_b32", t0, 5, t0), valu("v_lshl_add_u32", t0, t1, 8, t0), valu("v_lshl_add_u32", t0, t2, 12, t0),
      valu("v_lshrrev_b32", t2, 1, vu), valu("v_lshl_add_u32", t0, t2, 11, t0),
      valu("v_and_b32", t1, 3, vi), valu("v_lshl_add_u32", t0, t1, 3, t0), valu("v_add_u32", vaddr[0], 32768 + 1024, t0))
    for t in range(1, 8): E(valu("v_xor_b32", vaddr[t], t << 5, vaddr[0]))
    E(valu("v_mov_b32", t2, "0x3f803f80"))
    for k in range(3):
        E(Inst(f"v_cmp_eq_u32 vcc, {k}, {vi}", "valu", rs(vi), {"vcc"}), nop(1), Inst(f"v_cndmask_b32 {t0}, 0, {t2}, vcc", "valu", rs(t2, "vcc"), rs(t0)),
          [valu("v_accvgpr_write_b32", sel(k)[r], t0) for r in range(4)])
    E(valu("v_lshlrev_b32", t0, 3, vl), valu("v_add_u32", ow, sStg, t0),
      valu("v_bfe_u32", t1, vi, 1, 1), valu("v_lshl_add_u32", t0, t1, 2, vu), valu("v_lshlrev_b32", t0, 9, t0),
      valu("v_and_b32", t1, 1, vi), valu("v_lshl_add_u32", t0, t1, 6, t0), valu("v_lshrrev_b32", t1, 2, vi),
      valu("v_lshl_add_u32", t0, t1, 3, t0), valu("v_add_u32", ovr, sStg, t0),
      valu("v_and_b32", t2, 3, vi), valu("v_lshlrev_b32", t0, 5, t2), valu("v_lshl_add_u32", t0, vu, 8, t0),
      valu("v_and_b32", t2, 1, t1), valu("v_lshl_add_u32", t0, t2, 4, t0), valu("v_lshrrev_b32", t2, 1, t1), valu("v_lshl_add_u32", vlin, t2, 7, t0))
    E(more(O_.n0 - 10), stamp_now())
    E(comment("---- first K tile"), wait(vm=[aK(0)]), barrier())
    for a in range(2):
        for s in range(4): E(kread(0, a, s, F(4*a + s), 0))
    if O_.pads:
        E(comment("visit the start of each code page once (wave w: pages w+1, w+5, ..); every stop jumps straight on while vcc = 0"),
          raw("s_mov_b64 vcc, 0"))
        for w in range(3): E(scmp("s_cmp_eq_u32", sW, w), raw(f"s_cbranch_scc1 L_pad{w + 1}", "salu", {"scc"}))
        E(raw("s_branch L_pad4"), label("L_padret"), raw("s_mov_b64 vcc, -1"))
    first, _ = sm_split(0)
    rawr = lambda s: V(72 + 4*s, 4)
    for b in range(NB):
        E(comment(f"---- start-up block {b}"), wait(vm=blk(aQ, 0, b) + ([V(9)] if b == 1 else [])), stamp_now() if O_.probe == 2 else None)
        for s in range(4): E(ds_read("ds_read_b128", rawr(s), qa[s], b*4096, blk(aQ, 0, b)))
        for s in range(4):
            E(wait(lgkm=[rawr(s)] + ([F(k) for k in range(8)] if b == 0 else [])))
            E(more(1) if more.left() > 4*O_.g1late else None, scale_frag(rawr(s), Qreg(b, s), V(88, 8), Sreg(b, s & 1)))
        E(qk_first(b))
        if b == NB - 1:
            E(stamp_now() if O_.probe == 2 else None, wait(vm=[aK(1)]), barrier(), stamp_now() if O_.probe == 2 else None)
            for s in range(4): E(kread(1, 0, s, F(s), 1))
        E(rowmax_ops(b), delay_cvts([x for bb, x in first if bb == b]))
    E(more(99), salu("s_mov_b32", sSide, 98304), salu("s_mov_b32", sCnt, O_.qa0 - 1), salu("s_mov_b32", sHead, 0), wait(lgkm=[F(s) for s in range(4)]))
    if O_.itst: E(salu("s_mov_b32", S(5), 0))
    E(stamp_now())

def o_read(key, p, dst):
    return [ds_read("ds_read_b64_tr_b16", dst[2*hi:2*hi + 2], ovr, (p >> 2)*4096 + (p & 3)*128 + hi*32, key) for hi in range(2)]
def pv_mfmas(par, frags, sums_first=False, init=False):
    mf = [rowsum(par, b) for b in range(NB)] if sums_first else []; st = []
    for h in range(4):
        st.append(len(mf))
        sums = [] if sums_first else [(0, 1), (5, 4), (2,), (3,)][h]
        mf += [m for _, m in pv_pair(par, range(NB) if h % 2 == 0 else range(NB - 1, -1, -1), 2*h, frags[2*h:2*h + 2], init, sums)]
    return mf, st
def late_pieces(k):
    cnt = [int(c, 16) for c in O_.olate]
    order = [p for p in list(range(12, 24)) + list(range(12)) if not (p >> 2 >= O_.oc0 and (p & 3) < O_.r1)]; assert sum(cnt) == len(order), len(order)
    return order[sum(cnt[:k]):sum(cnt[:k + 1])]

def iteration(par, side, ctl):
    mf = [m for a in range(2) for b in range(NB) for _, m in chain(b, a, [F(4*a + s) for s in range(4)], negM(b), b & 1)]
    pv, pst = pv_mfmas(par, [F(t) for t in range(8)], init=(side == "first"))
    mf += pv; pst = [48 + x for x in pst]
    sc = Sched(mf)
    for x in ctl: sc.fix(x, 101)
    sc.cap[101] = 0 if ctl else sc.cap[101]
    last = side == "last"
    d0 = O_.dg
    for s in range(4): tk = sc.fix(kread(1, 1, s, F(4 + s), 1 - par), [1, 6, 11, 13][s])
    if not last:
        chk = side == "O" and par == 1
        mm = m0_next(); tm = sc.fix(mm[0], d0 - 2); tm = sc.seq(mm[1:], 0, 99, tm)
        for k, x in enumerate(kv_dmas(None, checked=chk)): td = sc.fix(x, d0 + 5*k)
        sc.add(kv_step(), 0, 100, [(td, 1, 1)])
        if chk:
            sc.fix(scmp("s_cmp_eq_u32", sCnt, 0), 21); sc.fix(raw(f"s_cselect_b64 {sKx}, {sVx}, {sKb}", "salu", rs(sVx, sKb, "scc"), rs(sKx)), 21)
    sg = [56, 68, 80, 92] if d0 < 40 else [30, 40, 52, 62]
    tb2 = None
    if side == "first":
        sc.fix(wait(vm=[rV(0)], lgkm=0), 23); tb = sc.fix(barrier(), 23)
        sc.fix(wait(vm=[rK(2)]), 72); tb2 = sc.fix(barrier(), 72)
    else:
        sc.fix(wait(vm=[rV(0), rK(2)], lgkm=0), 23); tb = sc.fix(barrier(), 23)
    if O_.itst:
        for y in [raw("s_memrealtime s[42:43]", "smem", (), rs(S(42, 2))), wait(lgkm=0), raw("s_lshl_b64 exec, 1, s5"),
                  Inst("v_accvgpr_write_b32 a175, s42", "valu", rs(S(42)), rs(A(175))), raw("s_mov_b64 exec, -1"), salu("s_add_u32", S(5), S(5), 1)]:
            y.m["last"] = True; sc.put(23, y)
    if side == "Q" and par == 0 and O_.qpp:
        n = O_.qpp
        sc.fix(salu("s_add_u32", "m0", sSide, sQd), sg[0] - 2)
        for k in range(n): t = sc.fix(dma(vsd1 if k & 1 else vsd0, sQ, sSide, k*1024, (lambda k: lambda c: aQ(1, n*(c["J"]//2 - O_.qa0) + k))(k), O_.fq), sg[k])
        sc.add(salu("s_add_u32", sSide, sSide, 1024*n), 0, 99, [(t, 1, 1)])
        if n & 1:
            for r in (vsd0, vsd1): sc.add(valu("v_xor_b32", r, 128, r), 0, 99, [(t, 1, 1)])
    if side == "O" and par == 0:
        rds = [x for k in range(O_.r1) for x in o_read((lambda k: lambda c: aO(0, 2*(c["J"] - 16) + k))(k), 4*O_.oc0 + k, X[k])]
        sc.seq(rds, 0, 20)
        for k in range(O_.r1): t = sc.fix(vstore(X[k], vlin, sO, sSide, k*1024, O_.st_flags), sg[k])
        sc.add(salu("s_add_u32", sSide, sSide, 4096), 0, 99, [(t, 1, 1)])
        sc.add(valu("v_add_u32", ovr, 4096, ovr), 24, 99)
    if last:
        nl = 4*(6 - O_.oc0); ps = late_pieces(0)
        t = sc.add(valu("v_subrev_u32", ovr, 1024*nl, ovr), 0, 3) if nl else None
        base = None
        for i, p in enumerate(ps):
            g = O_.g12 + (96 - O_.g12)*i//max(1, len(ps) - 1)
            while g in (22, 23, 24): g += 1
            t = sc.seq(o_read(aO(0, p), p, X[i]), 0, g - 8, t); sc.add(wait(lgkm=[X[i]]), 0, g - 1, [(t, 1, 6)])
            if base is None or not 0 <= p - base < 4: base = p; sc.fix(salu("s_mov_b32", sSide, p*1024), g - 1)
            sc.fix(vstore(X[i], vlin, sO, sSide, (p - base)*1024, O_.late_flags), g)
    tstart = [pst[t//2] for t in range(8)]
    p = tb
    for t in range(8):
        for a in range(2): p = sc.add(vread(0, t, a, F(t), par), 24 if t < 4 else 48, None, [(p, 1, 1)])
        if t in (1, 3): sc.add(wait(lgkm=[F(t - 1), F(t)]), 0, tstart[t - 1] - 1, [(p, 1, 8)])
    tv = p
    sc.add(wait(lgkm=[F(4), F(5), F(6), F(7)]), 0, tstart[4] - 1, [(p, 1, 8)])
    for s in range(4): p = sc.add(kread(2, 0, s, F(s), par), tstart[4], None, [(p, 1, 1), (tb2, 1, 1)])
    sc.add(wait(lgkm=[F(s) for s in range(4)]), 0, 100, [(p, 1, 8)])
    if par == 0: sc.seq([valu("v_xor_b32", r, 32768, r) for r in kaddr], 24, tstart[4] - 1, hard=0)
    if par == 0:
        for t, r in enumerate(vaddr): sc.add(valu("v_xor_b32", r, 32768, r), 0, 22 if t < 4 else 46)
    sc.sm([([x for _, x in sm_split(par)[1]], 0, 30)], 2.4)
    sc.sm([([x for _, x in sm_split(1 - par)[0]], 24, 100)])
    sc.run()
    if O_.xtra and side in (None, "Q", "first"):
        xk, xn = O_.xtra[0], int(O_.xtra[1:])
        mk = {"c": lambda i: Inst(f"v_cvt_pk_bf16_f32 v142, v{144 + 2*i}, v{145 + 2*i}", "valu"),
              "e": lambda i: Inst(f"v_exp_f32 v142, v{144 + 5*i}", "trans"),
              "x": lambda i: Inst(f"v_xor_b32 v142, 32768, v{120 + i % 12}", "valu"),
              "r": lambda i: Inst(f"ds_read_b128 {X[6]}, {kaddr[i % 4]} offset:{8192*(i % 4)}", "dsr"),
              "t": lambda i: Inst(f"ds_read_b64_tr_b16 {X[6][0:2]}, {vaddr[i % 8]} offset:{8192*(i % 4)}", "dsr")}[xk]
        left = sc.pour(([mk(i) for i in range(xn)], 0)); assert not left, len(left)
    sc.emit()

def br(text): return raw(text, "salu", {"scc"}, (), last=True)
def dec():
    x = salu("s_sub_u32", sCnt, sCnt, 1); x.m["last"] = True; return x
def loop(name, side, J0, n_iter):
    e = seg(name + "_even"); E(raw(".p2align 3", "label"), label(f"L_{name}"))
    if n_iter & 1:
        iteration(0, side, [dec(), br(f"s_cbranch_scc1 L_{name}_exit")])
        o = seg(name + "_odd"); iteration(1, side, [br(f"s_branch L_{name}")]); E(label(f"L_{name}_exit"))
    else:
        iteration(0, side, [])
        o = seg(name + "_odd"); iteration(1, side, [dec(), br(f"s_cbranch_scc0 L_{name}")])
    for k in range(n_iter): path.append((o if k & 1 else e, {"J": J0 + k}))

def l_ops(h, b0, r, t1):
    o = [valu("v_accvgpr_read_b32", r[k], lacc(b0)[k]) for k in range(4)]
    o += [valu("v_add_f32", t1, r[0], r[1]), valu("v_add_f32", t1, t1, r[2]), valu("v_add_f32", t1, t1, r[3])]
    o += [valu("v_rcp_f32", r[k], r[k]) for k in range(4)]
    return o
def l_flag(h, t1):
    return [Inst(f"v_cmp_nlt_f32 {sCmp}, {t1}, {sThr}", "valu", rs(t1, sThr), rs(sCmp)), nop(0),
            scmp("s_cmp_lg_u64", sCmp, 0), salu("s_cselect_b32", sT0, 1 << h, 0), salu("s_or_b32", sFlag, sFlag, sT0)]
def l_bcast(b, r, dst):
    o = [valu("v_mov_b64_dpp", dst[2*k:2*k + 2], r[2*k:2*k + 2], mods=f"row_newbcast:{b % 3} row_mask:0xf bank_mask:0xf") for k in range(2)]
    for x in o: x.m["dpp"] = True
    return o
def epi_half(h, b, th, rl, tmp, y):
    r0 = Oreg(b, 4*th); w = V(r0.i, 16) if r0.k == "v" else tmp; o = []
    if r0.k == "a": o += [valu("v_accvgpr_read_b32", w[i], A(r0.i + i)) for i in range(16)]
    o += [valu("v_pk_mul_f32", w[2*i:2*i + 2], w[2*i:2*i + 2], rl[2*(i & 1):2*(i & 1) + 2]) for i in range(8)]
    o += [valu("v_cvt_pk_bf16_f32", y[2*r + k], w[8*k + r], w[8*k + 4 + r]) for r in range(4) for k in range(2)]
    o += [ds_write2st64(ow, y[4*k:4*k + 2], y[4*k + 2:4*k + 4], 8*b + 4*th + 2*k, 8*b + 4*th + 2*k + 1, blk(aO, h, b)) for k in range(2)]
    return o

def transition():
    s = seg("trans"); path.append((s, {"J": 15}))
    E(stamp_now(), comment("---- head 0: last PV; switch to head 1"))
    vf = X[:4] + [F(4), F(5), X[4], X[5]]
    def rawr(b, s_): return V(16 + 16*b + 4*s_, 4) if b < 2 else V(144 + 16*(b & 1) + 4*s_, 4)
    def qrd(b): return [ds_read("ds_read_b128", rawr(b, s_), qa[s_], b*4096, blk(aQ, 1, b)) for s_ in range(4)]
    rc = [negM(4), negM(5)]; wt = V(84, 8)
    rl = V(72, 4); y = V(76, 8)
    npre = O_.qpp*(8 - O_.qa0); assert npre >= 8
    if npre & 1: E(valu("v_xor_b32", vsd0, 128, vsd0), valu("v_xor_b32", vsd1, 128, vsd1))
    more = piecemeal([[x for k, x in enumerate(q_dma_block(1, b)) if k < 2 or 4*b + k - 2 >= npre] for b in range(npre//4, NB)]
                     + [m0_next() + kv_dmas(2) + [kv_step()], m0_next() + kv_dmas(3) + [kv_step()]])
    E(wait(vm=[rV(0), rK(2)] + blk(aQ, 1, 0)), barrier())
    vr = [vread(0, t, a, vf[t], 1) for t in range(8) for a in range(2)]
    E(vr[:4], delay_cvts([x for _, x in sm_split(1)[1]]))
    pv, pst = pv_mfmas(1, vf, True)
    sc = Sched(pv)
    g = 8
    for grp in more(O_.tq):
        for x in grp:
            if x.kind == "salu": sc.fix(x, g - 2)
            else: sc.fix(x, g); g += O_.tstep
    sc.add(wait(lgkm=vf[:2]), 4, pst[0] - 1)
    p = sc.seq(qrd(0), 0); wq = sc.add(wait(lgkm=[rawr(0, 3)]), 0, 12, [(p, 1, 6)])
    p = sc.seq(vr[4:8], 0, None, p); sc.add(wait(lgkm=vf[2:4]), 0, pst[1] - 1, [(p, 1, 6)])
    p = sc.seq(vr[8:], 0, None, p); sc.add(wait(lgkm=vf[4:]), 0, pst[2] - 1, [(p, 1, 6)])
    p = sc.seq([kread(1, 1, 2, F(6), 0), kread(1, 1, 3, F(7), 0), wait(vm=blk(aQ, 1, 1))] + qrd(1), 28, None, p)
    for k in range(2): p = sc.add(kread(1, 1, k, F(4 + k), 0), pst[3] - 1, None, [(p, 1, 1)])
    sc.run()
    lv = l_ops(0, 0, rc[0], V(60)) + l_ops(0, 3, rc[1], V(61)) + [valu("v_add_f32", V(60), V(60), V(61))]; ls = l_flag(0, V(60))
    st = []
    for n in range(O_.nsh): st += scale_frag(rawr(0, n), Qreg(0, n), V(0, 8), V(8 + 4*(n & 1), 4), pk=False)
    rest = sc.pour((lv, 10), (st, wq.gap + 1)); sc.emit(); E(rest, ls)
    first = sm_split(0)[0]
    def finish(b): return rowmax_ops(b)[1] + delay_cvts([x for bb, x in first if bb == b])
    for b in range(NB):
        E(comment(f"---- switch block {b}"), stamp_now() if O_.probe == 1 else None)
        if b >= 2: E(wait(lgkm=[rawr(b, n) for n in range(4)]))
        for n in range([O_.nsh, 1, 0, 0, 0, 0][b], 4):
            E(more(1), scale_frag(rawr(b, n), Qreg(b, n), V(0, 8) if b == 0 else wt, V(8, 4) if b == 0 else Sreg(b, n & 1)))
        if b == 0: E(wait(lgkm=[F(k) for k in range(8)] + [rawr(1, n) for n in range(4)]), barrier())
        sc = Sched(qk_first(b))
        if b == NB - 1:
            for s_ in range(4): sc.fix(kread(2, 0, s_, F(s_), 1), 4 + s_)
        elif b >= 1:
            sc.fix(wait(vm=blk(aQ, 1, b + 1)), 0)
            for s_, x in enumerate(qrd(b + 1)): sc.fix(x, 1 + 2*s_)
        rest = sc.pour((rowmax_ops(b - 1)[0] if b else scale_frag(rawr(1, 0), Qreg(1, 0), wt, Sreg(1, 0), pk=False), 0)); sc.emit(); E(rest)
        E(l_bcast(b, rc[b//3], rl), epi_half(0, b, 0, rl, V(176, 16), y), finish(b - 1) if b else None, epi_half(0, b, 1, rl, V(192, 16), y))
    assert more.left() == 0
    E(rowmax_ops(NB - 1)[0], finish(NB - 1))
    E(salu("s_mov_b32", sSide, 4096*O_.oc0), salu("s_mov_b32", sCnt, O_.oc0 - 1), salu("s_mov_b32", sHead, 1), wait(lgkm=[F(s_) for s_ in range(4)]))
    E(stamp_now(), raw("s_branch L_first"))

def endgame():
    s = seg("end"); path.append((s, {"J": 29}))
    E(stamp_now())
    carry = []
    for ps, H in enumerate(([3, 4, 5], [0, 1, 2])):
        E(comment(f"---- pass {ps}"))
        subs = [("Q", 1, 0), ("Q", 1, 1), ("P", 0, 0), ("P", 0, 1), ("Q", 2, 0), ("Q", 2, 1), ("P", 1, 0), ("P", 1, 1), ("P", 2, 0), ("P", 2, 1)]
        FA, FB = [F(k) for k in range(4)], [F(4 + k) for k in range(4)]
        G = [[Qreg(3 + n, k) for k in range(4)] for n in range(3)]; Hh = [[A(176 + 16*n + 4*k, 4) for k in range(4)] for n in range(5)]
        fr = [FA, FB, FA, FB, FA, FB, FA] + G if ps == 0 else [FA, FB] + Hh + G
        mf = []; use = []; cend = {}; cstart = {}; pstart = {}; bstart = {}
        for i, (kind, d, x) in enumerate(subs):
            u = {}
            if kind == "Q":
                for n, b in enumerate(H):
                    cstart[(d, b, x)] = len(mf)
                    for s_, m in chain(b, x, fr[i], negM(b), n & 1): u.setdefault(s_, []).append(len(mf)); mf.append(m)
                    cend[(d, b, x)] = len(mf) - 1
            elif d == 2:
                if x == 0:
                    u2 = {}
                    for n, b in enumerate(H):
                        bstart[b] = len(mf); mf.append(rowsum(1, b))
                        for t in range(8):
                            (u if t < 4 else u2).setdefault(t & 3, []).append(len(mf))
                            mf.append(mfma(Oreg(b, t), Preg(1, b), fr[i + (t >> 2)][t & 3], Oreg(b, t)))
                else: u = u2
            else:
                par = (d + 1) & 1
                if x == 0: pstart[d] = len(mf)
                for hh in range(2):
                    for t, m in pv_pair(par, H if hh == 0 else H[::-1], 4*x + 2*hh, fr[i][2*hh:2*hh + 2], False, H[2*x + hh:2*x + hh + 1]):
                        if t is not None: u.setdefault(t & 3, []).append(len(mf))
                        mf.append(m)
            use.append(u)
        sc = Sched(mf); bar = {}
        if ps == 0:
            for d, g, keys in ((0, 9, [rV(0), rK(2)]), (1, use[4][1][-1], [rV(1), rV(2)])):
                sc.fix(wait(vm=keys), g); bar[d] = bar[2] = sc.fix(barrier(), g)
        pcs = [(0, q) for q in late_pieces(1) + late_pieces(2)] if ps == 0 else [(0, q) for q in late_pieces(3)] + carry
        taken = {t.gap + k for t in bar.values() for k in (-1, 0, 1)}
        prev_st = [None]*4; pst = None; base = None
        for i, (h, q) in enumerate(pcs):
            g = 12 + (len(mf) - 16)*i//max(1, len(pcs) - 1) if ps == 0 else 10 + (len(mf) - 14)*i//len(pcs)
            while g in taken or g - 1 in taken: g += 1
            off = h*98304 + q*1024
            if base is None or not 0 <= off - base < 4096:
                base = off; sc.add(salu("s_mov_b32", sSide, base), 0, g - 1, [(pst, 1, 1)])
            r = sc.seq(o_read(aO(h, q), q, X[i & 3]), g - 30, g - 8, prev_st[i & 3])
            sc.add(wait(lgkm=[X[i & 3]]), 0, g - 1, [(r, 1, 7)])
            pst = prev_st[i & 3] = sc.fix(vstore(X[i & 3], vlin, sO, sSide, off - base, O_.h0_flags if h else O_.late_flags), g)
        prev = None
        for i, (kind, d, x) in enumerate(subs):
            if i == 0 or (ps == 1 and (i == 1 or i >= 7)): continue
            tight = ps == 0 and i < 7
            for k in range(4):
                lo = (use[i - 2][k][-1] if i >= 2 else 0) if tight else (cend[(2, 3 + i - 7, 1)] if ps == 0 else 0)
                rds = [kread(d, x, k, fr[i][k], d - 1)] if kind == "Q" else [vread(d, 4*x + k, a, fr[i][k], d + 1) for a in range(2)]
                bp = bar.get(d if kind == "P" else (0 if d == 2 else None))
                for r in rds: prev = sc.add(r, lo, None, [(prev, 1, 1), (bp, 1, 1)])
                if tight and kind == "P" and k & 1: sc.add(wait(lgkm=fr[i][k - 1:k + 1]), 0, min(use[i][k - 1][0], use[i][k][0]) - 1, [(prev, 1, 6)])
            if not (tight and kind == "P"): sc.add(wait(lgkm=fr[i]), 0, use[i][0][0] - 1, [(prev, 1, 6)])
        if ps == 0:
            for a in range(2):
                for k in range(4): prev = sc.add(kread(1, a, k, F(4*a + k), 0), use[6][k][-1], None, [(prev, 1, 1)])
        grp = [([x for bb, x in sm_split(1)[1] if bb == b], 0, cstart[(1, b, 1)] - 1) for b in H]
        for a in range(2):
            for k, b in enumerate(H): grp.append((sm_ops(0, b, a), cend[(1, b, a)] + 4, min(pstart[1] - 2 + 2*k, cstart[(2, b, a)] - 1)))
        sc.sm(grp)
        order = [(H[0], 0), (H[1], 0), (H[0], 1), (H[2], 0), (H[1], 1), (H[2], 1)]
        sc.sm([(sm_ops(1, b, a), cend[(2, b, a)] + 4, bstart[b] - 2) for b, a in order], 2.4)
        sc.run()
        rc, rl, t1 = negM(H[0]), negM(H[1]), negM(H[2])[0]
        rest = sc.pour((l_ops(1, H[0], rc, t1), bstart[H[2]] + 4)); sc.emit()
        E(rest, l_flag(1, t1), stamp_now(), comment("---- epilogue"))
        dsts = [X[:4], [F(4 + i) for i in range(4)]]
        pend = []
        for k, b in enumerate(H):
            E(l_bcast(b, rc, rl))
            for th in range(2):
                ep = epi_half(1, b, th, rl, V(24, 16), V(40, 8))
                E(ep)
                E(pend[:2]); del pend[:2]
            if ps == 0 and k > 0: carry += [(1, 4*b + i) for i in range(4)]; continue
            d_ = dsts[k & 1]
            E([o_read(aO(1, 4*b + i), 4*b + i, d_[i]) for i in range(4)])
            sts = [vstore(d_[i], vlin, sO, sSide, i*1024, O_.fin_flags if ps else O_.h0_flags) for i in range(4)]
            pre = [salu("s_mov_b32", sSide, 98304 + b*4096), wait(lgkm=d_)]
            pend = [pre + [sts[0]], None, sts[1], None, sts[2], None, sts[3]] if ps == 0 else [pre + [sts[0]], sts[1], sts[2], sts[3]]
        E(pend, wait(lgkm=0), stamp_now())

def slow_path():
    sH, sB, sI, sKo, sQo = S(4), S(5), S(6), S(7), S(8)
    Qf = [V(4*s, 4) for s in range(4)]; Kf = [V(16 + 4*i, 4) for i in range(8)]; St = [V(48, 4), V(52, 4)]; Pf = V(56, 4)
    nm = V(60, 4); Vf = V(64, 4); Of = [V(68 + 4*t, 4) for t in range(8)]; L = V(100, 4); w = V(104, 8)
    ones = V(120, 4)
    vrow, vk, vv, vtr, vst_, t0, t1 = V(112), V(113), V(114), V(115), V(116), V(117), V(118)
    def S_(name, J=0):
        s = seg(name); return s
    s0 = S_("slow0")
    E(comment("---- fallback: a row sum left the safe range, redo this wave's rows with the true row max"),
      label("L_slow"), wait(vm=0, lgkm=0),
      valu("v_mbcnt_lo_u32_b32", t0, -1, 0), valu("v_mbcnt_hi_u32_b32", t0, -1, t0), valu("v_lshlrev_b32", vlin, 4, t0),
      [valu("v_mov_b32", ones[r], "0x3f803f80") for r in range(4)],
      valu("v_bfe_u32", t0, vlin, 4, 4), valu("v_lshrrev_b32", t1, 8, vlin),
      valu("v_lshlrev_b32", vrow, 8, t0), valu("v_lshl_add_u32", vst_, t1, 3, vrow), valu("v_lshl_add_u32", vrow, t1, 4, vrow),
      valu("v_lshrrev_b32", vtr, 2, t0), valu("v_lshl_add_u32", vtr, t1, 2, vtr), valu("v_lshlrev_b32", vtr, 8, vtr),
      valu("v_and_b32", t0, 3, t0), valu("v_lshl_add_u32", vtr, t0, 3, vtr), valu("v_add_u32", vtr, sStg, vtr),
      salu("s_mov_b32", sH, 0))
    s1 = S_("slow_head")
    E(label("L_sl_head"), salu("s_lshr_b32", sT0, sFlag, sH), salu("s_and_b32", sT0, sT0, 1), raw("s_cbranch_scc0 L_sl_next", "salu", {"scc"}),
      salu("s_lshl_b32", sKo, sH, 17), salu("s_mul_i32", sQo, sH, 98304), salu("s_mov_b32", sB, 0))
    s2 = S_("slow_blk")
    E(label("L_sl_blk"))
    for s in range(4): E(vload(Kf[s], vrow, sQ, sQo, 64*s))
    E(wait(vm=0))
    for s in range(4): E(scale_frag(Kf[s], Qf[s], w, None))
    E(valu("v_mov_b32", nm[0], "0xff800000"), valu("v_add_u32", vk, sKo, vrow), salu("s_mov_b32", sI, 32))
    s3 = S_("slow_p1")
    E(label("L_sl_p1"))
    for s in range(4): E(gload(Kf[s], vk, sKb, 64*s))
    E(valu("v_add_u32", vk, 4096, vk), wait(vm=0))
    for s in range(4): E(mfma(St[0], Kf[s], Qf[s], 0 if s == 0 else St[0]))
    E(salu("s_sub_u32", sI, sI, 1), scmp("s_cmp_lg_u32", sI, 0), nop(7),
      valu("v_max3_f32", nm[0], nm[0], St[0][0], St[0][1]), valu("v_max3_f32", nm[0], nm[0], St[0][2], St[0][3]),
      raw("s_cbranch_scc1 L_sl_p1", "salu", {"scc"}))
    s4 = S_("slow_mid")
    E(xlane_max(nm[0], nm[1]), [valu("v_sub_f32", nm[r], 0, nm[0]) for r in (1, 2, 3, 0)])
    for r in range(36): E(valu("v_mov_b32", V(68 + r), 0))
    E(valu("v_add_u32", vk, sKo, vrow), valu("v_add_u32", vv, sKo, vlin), valu("v_add_u32", vv, 1024 + 16384, vv), salu("s_mov_b32", sI, 16))
    s5 = S_("slow_p2")
    E(label("L_sl_p2"))
    key = (("stg", "slow"), ("Vs",), False)
    for half in range(2):
        E(salu("s_add_u32", "m0", sStg, 4096*half))
        for s in range(4): E(gload(Kf[4*half + s], vk, sKb, 64*s))
        for k in range(4): E(gdma(vv, sVb, 1024*k, key, ""))
        E(valu("v_add_u32", vk, 4096, vk), valu("v_add_u32", vv, 4096, vv))
    E(wait(vm=0))
    for a in range(2):
        for s in range(4): E(mfma(St[a], Kf[4*a + s], Qf[s], nm if s == 0 else St[a]))
    E(nop(7))
    for r in range(8): E(valu("v_exp_f32", V(48 + r), V(48 + r)))
    for r in range(4): E(valu("v_cvt_pk_bf16_f32", Pf[r], V(48 + 2*r), V(49 + 2*r)))
    E(mfma(L, ones, Pf, L))
    for t in range(8):
        for a in range(2): E(ds_read("ds_read_b64_tr_b16", Vf[2*a:2*a + 2], vtr, a*4096 + 32*t, key))
        E(wait(lgkm=0), mfma(Of[t], Vf, Pf, Of[t]), nop(1))
    E(salu("s_sub_u32", sI, sI, 1), scmp("s_cmp_lg_u32", sI, 0), raw("s_cbranch_scc1 L_sl_p2", "salu", {"scc"}))
    s6 = S_("slow_epi")
    E(nop(7), valu("v_rcp_f32", t0, L[0]), nop(0))
    for t in range(8):
        for r in range(4): E(valu("v_mul_f32", Of[t][r], t0, Of[t][r]))
        E(valu("v_cvt_pk_bf16_f32", Of[t][0], Of[t][0], Of[t][1]), valu("v_cvt_pk_bf16_f32", Of[t][1], Of[t][2], Of[t][3]),
          vstore(Of[t][0:2], vst_, sO, sQo, 32*t, "", "buffer_store_dwordx2"))
    E(salu("s_add_u32", sQo, sQo, 4096), salu("s_add_u32", sB, sB, 1), scmp("s_cmp_lt_u32", sB, NB), raw("s_cbranch_scc1 L_sl_blk", "salu", {"scc"}))
    s7 = S_("slow_next")
    E(label("L_sl_next"), salu("s_add_u32", sH, sH, 1), scmp("s_cmp_lt_u32", sH, 2), raw("s_cbranch_scc1 L_sl_head", "salu", {"scc"}))
    blkp = [s2, s3, s3, s4, s5, s5, s6]
    path2.extend((x, {"J": 0}) for x in [s0, s1] + blkp + blkp + [s7, s1] + blkp + [s7])

def finish():
    if O_.diag:
        a, b = [int(x) for x in O_.diag.split(":")]
        E(wait(vm=0), raw("s_memrealtime s[42:43]", "smem", (), rs(S(42, 2))), wait(lgkm=0), salu("s_mov_b32", S(47), S(42)),
          salu("s_sub_u32", sT0, S(STAMP0 + b), S(STAMP0 + a)), salu("s_lshr_b32", sT0, sT0, 3 if O_.stamps == 1 else 0),
          salu("s_add_u32", sT0, sT0, 7000),
          label("L_spin"), raw("s_memrealtime s[42:43]", "smem", (), rs(S(42, 2))), wait(lgkm=0),
          salu("s_sub_u32", S(42), S(42), S(46)), scmp("s_cmp_lt_u32", S(42), sT0), raw("s_cbranch_scc1 L_spin", "salu", {"scc"}))
    elif O_.stamps:
        E(wait(vm=0), raw("s_memrealtime s[42:43]", "smem", (), rs(S(42, 2))), wait(lgkm=0), salu("s_mov_b32", S(47), S(42)))
        E(salu("s_lshl_b32", sT0, S(2), 2), salu("s_add_u32", sT0, sT0, sW), salu("s_lshl_b32", sT0, sT0, 8))
        E(valu("v_mov_b32", V(1), sT0))
        for k in range(nstamp[0] + 2):
            E(valu("v_mov_b32", V(2), S(46 + k)),
              Inst(f"global_store_dword v1, v2, s[44:45] offset:{4*k}", "vst", rs(V(1), V(2), S(44, 2)), (), data=set()), nop(1))
    if O_.itst:
        E(valu("v_mbcnt_lo_u32_b32", V(2), -1, 0), valu("v_mbcnt_hi_u32_b32", V(2), -1, V(2)), valu("v_lshlrev_b32", V(2), 2, V(2)), valu("v_add_u32", V(1), V(1), V(2)), valu("v_add_u32", V(1), 1 << 20, V(1)),
          Inst("global_store_dword v1, a175, s[44:45]", "vst", rs(V(1), A(175), S(44, 2)), (), data=set()))
    if O_.stamps and not O_.diag:
        E(raw("s_getreg_b32 s42, hwreg(HW_REG_XCC_ID)", "salu", (), rs(S(42))), valu("v_mov_b32", V(1), sT0), valu("v_mov_b32", V(2), S(42)),
          Inst("global_store_dword v1, v2, s[44:45] offset:252", "vst", rs(V(1), V(2), S(44, 2)), (), data=set()))
    E(scmp("s_cmp_eq_u32", sFlag, 0), raw("s_cbranch_scc1 L_end", "salu", {"scc"}), label("L_fast_end"))

def build():
    assert O_.la1 == 3 and O_.oc0 < 6 and O_.dg >= 40
    s = seg("start"); path.append((s, {"J": 0})); startup()
    f = seg("first"); E(raw(".p2align 3", "label"), label("L_first")); iteration(0, "first", [])
    once = O_.qa0 == 1 and O_.oc0 == 1
    no = seg("N_odd"); E(label("L_N")); iteration(1, None, [] if once else [dec(), br("s_cbranch_scc1 L_N_exit")])
    if not once: ne = seg("N_even"); iteration(0, None, [br("s_branch L_N")])
    nx = seg("N_exit"); E(label("L_N_exit"), scmp("s_cmp_lg_u32", sHead, 0), raw("s_cbranch_scc1 L_N_head1", "salu", {"scc"}))
    def lead(J0, pairs):
        path.append((f, {"J": J0}))
        for k in range(1, 2*pairs): path.append((no if k & 1 else ne, {"J": J0 + k}))
        path.append((nx, {"J": 0}))
    lead(0, O_.qa0)
    s = seg("A_pre"); path.append((s, {"J": 0})); E(salu("s_mov_b32", sCnt, 7 - O_.qa0))
    loop("A", "Q", 2*O_.qa0, 15 - 2*O_.qa0)
    transition()
    lead(16, O_.oc0)
    s = seg("C_pre"); path.append((s, {"J": 0})); E(label("L_N_head1"))
    if O_.oc0 < 6:
        E(salu("s_mov_b32", sCnt, 5 - O_.oc0))
        loop("C", "O", 16 + 2*O_.oc0, 12 - 2*O_.oc0)
    s = seg("j12"); path.append((s, {"J": 28})); E(stamp_now()); iteration(0, "last", [])
    endgame()
    finish()
    if O_.slow: slow_path()
    seg("exit"); E(label("L_end"))
    def trace(): return [(i, mkctx(c)) for sidx, c in path + path2 for i in segs[sidx][1]]
    for rnd in range(5):
        fix = {}
        resolve_and_check(trace(), fix=fix)
        for sg in segs:
            new = []
            for i in sg[1]:
                if i.kind == "wait" and i.m["nvm"] in (None, 63) and i.m["nlg"] in (None, 15): fix[0] = 1; continue
                if id(i) in fix: new.append(nop(fix[id(i)] - 1))
                new.append(i)
            sg[1][:] = new
        if not fix: break
    resolve_and_check(trace(), verbose=True)
    if O_.stamps:
        tr = [i for sidx, c in path for i in segs[sidx][1]]; cuts = [k for k, i in enumerate(tr) if i.kind == "smem" and "s[42:43]" in i.text]
        print("  est between stamps:", [cost_estimate(tr[a:b]) for a, b in zip(cuts, cuts[1:])])
    for name, ins in segs:
        if not name.startswith("slow"): print(f"  seg {name:8s} insts {len(ins):5d} est cycles {cost_estimate(ins):6d} nops {sum(1 for i in ins if i.kind == 'nop')}")

HEAD = """; MHA forward, B=16 H=32 Sq=384 Sk=512 D=128, bf16 in/out.  Generated by the author's own script (gen/gen6.py).
; Softmax: Q is pre-scaled by log2(e)/sqrt(D); the row max of the first 32 keys is subtracted through the MFMA
; C operand; the final row sums are checked (NaN or >= 2^64) and a failing wave redoes its rows with the true
; row max (L_slow).
; @launch grid=(256,1,1) block=(256,1,1) lds=163840
.amdgcn_target "amdgcn-amd-amdhsa--gfx950"
.text
.globl standalone__mha_softmax__near_ridge_kernel
.p2align 8
.type standalone__mha_softmax__near_ridge_kernel,@function
standalone__mha_softmax__near_ridge_kernel:
"""
TAIL = """    s_endpgm
.section .rodata,"a"
.p2align 6
.amdhsa_kernel standalone__mha_softmax__near_ridge_kernel
  .amdhsa_next_free_vgpr 512
  .amdhsa_next_free_sgpr 102
  .amdhsa_accum_offset 256
  .amdhsa_group_segment_fixed_size 0
  .amdhsa_kernarg_size 48
  .amdhsa_user_sgpr_count 2
  .amdhsa_user_sgpr_kernarg_segment_ptr 1
  .amdhsa_system_sgpr_workgroup_id_x 1
.end_amdhsa_kernel
"""
def insert_pads(text):
    import subprocess, re, tempfile, os
    def offsets(npads):
        d = tempfile.mkdtemp(); t = text()
        t = t.replace("L_padret:", "L_padret:\n" + "".join(f"L_pad{k}:\n" for k in range(npads + 1, 40)))
        open(d + "/a.s", "w").write(t)
        subprocess.run(["clang", "-x", "assembler", "-target", "amdgcn-amd-amdhsa", "-mcpu=gfx950", "-c", d + "/a.s", "-o", d + "/a.o"], check=True)
        dis = subprocess.run(["llvm-objdump", "-d", "--mcpu=gfx950", d + "/a.o"], capture_output=True, text=True).stdout
        dis = dis[dis.index("<L_main>:"):]
        ad = [(int(m.group(2), 16), m.group(1)) for m in re.finditer(r"^\s+(\S+).*// ([0-9A-F]{12}):", dis, re.M)]
        flat = [(sg, k) for sg in segs for k in range(len(sg[1]))]
        flat = flat[[i for i, (sg, k) in enumerate(flat) if sg[1][k].text == "L_main:"][0]:]
        o = []; j = 0
        for sg, k in flat:
            x = sg[1][k]
            if x.kind == "label":
                if x.text == "L_fast_end:": break
                if x.text.startswith(".p2align") and ad[j][0] % 8: j += 1
                continue
            assert ad[j][1].startswith(x.text.split()[0][:12]), (ad[j], x.text)
            o.append((ad[j][0] - ad[0][0], sg, k)); j += 1
        return o
    page = 1; pads = []
    while True:
        off = offsets(page - 1)
        cand = [n for n, (a, sg, k) in enumerate(off) if 4096*page <= a <= 4096*page + 56]
        if not cand: break
        def score(n):
            a, sg, k = off[n]; lo = max(0, k - 8); w = sg[1][lo:k + 8]
            return cost_estimate(w[:k - lo] + [raw("pad")] + w[k - lo:]) - cost_estimate(w)
        n = min(cand, key=score); _, sg, k = off[n]
        p = raw(f"s_cbranch_vccz L_pad{page + 4}"); pads.append(p)
        sg[1][k:k] = [label(f"L_pad{page}"), p]
        page += 1
    for i, p in enumerate(pads):
        if i + 1 + 4 >= page: p.text = "s_cbranch_vccz L_padret"
    assert page > 4
    print(f"  {page - 1} page pads")

if __name__ == "__main__":
    out = sys.argv[1]
    for a in sys.argv[2:]:
        k, v = a.split("=")
        setattr(O_, k, type(getattr(O_, k))(v))
    build()
    def text(): return HEAD + "\n".join((i.text if i.kind == "label" else "    " + i.text) for _, ins in segs for i in ins) + "\n" + TAIL
    if O_.pads: insert_pads(text)
    open(out, "w").write(text())
    import subprocess
    r = subprocess.run([sys.executable, "cdna_unwritten_srd_check.py", out], capture_output=True, text=True)
    print("  check:", r.stdout.strip()[-300:], r.stderr.strip()[-300:])
```

```python
import sys, math, struct
from ir import *

class Opt:
    stamps = 0; diag = ""; dq = -1; itst = 0
    late_flags = "sc1"; h0_flags = "sc1"; fin_flags = "sc1"; fq = "nt"; fk = "nt"; fv = "nt"
    n0 = 14
    qa0 = 2
    qpp = 3
    dg = 27
    olate = "36663"
    nsh = 1
    slow = 1
    dga = 2
    tsched = ""
    waitall = 0
    stag = "22222"
    stagw = "0123"
    stagbit = 3
    g11 = 56
    npw = 0
    fdepth = 63
    xtra = ""
    pads = 1
    g1late = 1
    vtouch = 0
    g12 = 16
    pvo = "bs2"
    qks = 1
    la0 = 1
    la1 = 3
    wgmap = 0
    probe = 0
    tq = 4
    tstep = 12
    tper = 2
    force = 0
O_ = Opt()

NB = 6
def f32bits(x): return struct.unpack("<I", struct.pack("<f", x))[0]
CSCALE = f32bits(math.log2(math.e) / math.sqrt(128.0))
THRESH = f32bits(2.0 ** 64)
def bf16(x):
    u = f32bits(x); return (u + 0x7fff + ((u >> 16) & 1)) >> 16
C_HI = bf16(math.log2(math.e) / math.sqrt(128.0))
C_LO = bf16(math.log2(math.e) / math.sqrt(128.0) - struct.unpack("<f", struct.pack("<I", C_HI << 16))[0])

def Sreg(b, a): return V(8*b + 4*a, 4)
def Preg(par, b): return V(48 + 24*par + 4*b, 4)
def negM(b): return V(96 + 4*b, 4)
kaddr = [V(120 + s) for s in range(4)]
vaddr = [V(124 + t) for t in range(8)]
vkv = V(132); vsd0 = V(133); vsd1 = V(134); vlin = V(135)
qa = [V(136 + s) for s in range(4)]
ow = V(140)
ovr = V(141)
def Oreg(b, t):
    n = 8*b + t
    return V(144 + 4*n, 4) if n < 28 else A(176 + 4*(n - 28), 4)
def Qreg(b, s): return A(16*b + 4*s, 4)
def F(i): return A(96 + 4*i, 4)
def lacc(b): return A(128 + 4*(b//3), 4)
def sel(b): return A(136 + 4*(b % 3), 4)
X = [A(148 + 4*k, 4) for k in range(7)]
CS = A(164, 10)
sQ, sO = S(12, 4), S(24, 4); sKb, sVb, sVx = S(16, 2), S(22, 2), S(18, 2)
sW = S(28); sM0 = S(30); sStg = S(31); sSide = S(32); sT0 = S(33); sT1 = S(34); sT2 = S(35)
sFlag = S(36); sThr = S(37); sC = S(38, 2); sCmp = S(40, 2); sStamp = S(42, 2); sCnt = S(3); sQd = S(29); sHead = S(20)
STAMP0 = 48

def aK(J): return (("ring", (J - 2) % 4, "K"), ("K", J), True)
def aV(J): return (("ring", J % 4, "V"), ("V", J), True) if J < 31 else (("ring", 2, "K"), ("V", J), True)
def rK(d): return lambda c: aK(c["J"] + d)
def rV(d): return lambda c: aV(c["J"] + d)
def aQ(h, p): return (("stg", p), ("Q", h), False)
def aO(h, p): return (("stg", p), ("O", h), False)
def blk(f, h, b): return [f(h, 4*b + i) for i in range(4)]
def mkctx(c): return lambda r: r(c) if callable(r) else r

segs = []; path = []; path2 = []; cur = None
def seg(name):
    global cur
    cur = []; segs.append([name, cur]); return len(segs) - 1
def E(*xs):
    for x in xs:
        if x is None: continue
        if isinstance(x, (list, tuple)): E(*x)
        else: cur.append(x)
nstamp = [0]
def stamp_now():
    if O_.stamps not in (1, 2): return []
    k = nstamp[0]; nstamp[0] += 1
    op = "s_memtime" if O_.stamps == 1 else "s_memrealtime"
    return [raw(f"{op} {sStamp}", "smem", (), rs(sStamp)), wait(lgkm=0), salu("s_mov_b32", S(STAMP0 + k), sStamp[0])]

MEM = ("dsr", "dsw", "dma", "vld", "vst"); VAL = ("valu", "trans")
class Task:
    def __init__(s, x, lo, hi, preds): s.x, s.lo, s.hi, s.preds, s.gap = x, lo, hi, preds, None
class Sched:
    def __init__(s, mf):
        s.mf = mf; s.n = len(mf); s.g = [[] for _ in mf]; s.t = []
        s.cap = [24 if m.m["big"] else 8 for m in mf]; s.novalu = set()
    def cost(s, x): return 8 if x.kind == "trans" or x.m.get("perm") else 4
    def fits(s, g, x):
        if s.cap[g] < s.cost(x): return False
        if x.kind in MEM and any(y.kind in MEM for y in s.g[g]): return False
        if x.kind in VAL and g in s.novalu: return False
        return True
    def put(s, g, x): s.g[g].append(x); s.cap[g] -= s.cost(x)
    def fix(s, x, g):
        t = Task(x, g, g, []); t.gap = g; s.put(g, x)
        if x.kind in ("dma", "vst", "vld"): s.cap[g] = 0; s.novalu.add(g - 1)
        if x.kind == "barrier": s.cap[g] = 0
        return t
    def add(s, x, lo=0, hi=None, preds=()):
        t = Task(x, max(lo, 0), s.n - 1 if hi is None else min(hi, s.n - 1), [p for p in preds if p[0] is not None]); s.t.append(t); return t
    def seq(s, xs, lo=0, hi=None, after=None, hard=1):
        p = after
        for x in xs: p = s.add(x, lo, hi, [(p, hard, hard)])
        return p
    def sm(s, groups, smax=2.0):
        ex = [(x, lo, hi) for ops, lo, hi in groups for x in ops if x.kind == "trans"]
        sig = smax
        while True:
            pos = []; t = -9.0; ok = True
            for x, lo, hi in ex:
                t = max(lo, t + sig); g = int(t)
                while g < s.n and (not s.fits(g, x) or (pos and g <= pos[-1])): g += 1
                if g > hi - 1: ok = False; break
                pos.append(g); t = max(t, g - 0.5)
            if ok: break
            sig -= 0.05
            assert sig > 0.3, "softmax does not fit"
        k = 0
        for ops, lo, hi in groups:
            e = []
            for x in ops:
                if x.kind == "trans": e.append(s.fix(x, pos[k])); k += 1
                else: s.add(x, lo, min(hi, e[-1].gap + 5), [(e[-1], 1, 1)])
    def run(s):
        for t in reversed(s.t):
            for p, h, so in t.preds:
                if p.gap is None: p.hi = min(p.hi, t.hi - so)
        for t in s.t:
            for p, h, so in t.preds: t.lo = max(t.lo, p.lo + h)
            t.hi = max(t.hi, t.lo)
        left = list(s.t)
        for g in range(s.n):
            while True:
                rdy = [t for t in left if t.lo <= g and all(p.gap is not None and g >= p.gap + h for p, h, so in t.preds)]
                rdy = [t for t in rdy if t.hi <= g or all(g >= p.gap + so for p, h, so in t.preds)]
                rdy.sort(key=lambda t: t.hi)
                pick = next((t for t in rdy if t.hi <= g or s.fits(g, t.x)), None)
                if pick is None: break
                s.put(g, pick.x); pick.gap = g; left.remove(pick)
        assert not left, left[0].x
        s.t = []
    def pour(s, *streams):
        st = [[list(xs), lo] for xs, lo in streams]
        for g in range(s.n):
            again = True
            while again:
                again = False
                for q in st:
                    if q[0] and q[1] <= g and s.fits(g, q[0][0]): s.put(g, q[0].pop(0)); again = True; break
        return [x for q in st for x in q[0]]
    def emit(s):
        for m, g in zip(s.mf, s.g):
            key = lambda x: 3 if x.m.get("last") else (2 if x.kind in VAL else (0 if x.kind in MEM else 1))
            E(m, sorted(g, key=key))

def kread(d, a, s, dst, hi): return ds_read("ds_read_b128", dst, kaddr[s], hi*16384 + a*8192, rK(d))
def vread(d, t, a, dst, hi): return ds_read("ds_read_b64_tr_b16", dst[2*a:2*a+2], vaddr[t], (hi*16384 if hi < 3 else 32768 - 1024) + a*8192, rV(d))
def kv_dmas(d, withV=True, withK=True, kbase=None):
    la = (lambda c: d) if d is not None else (lambda c: O_.la1 if c["J"] >= 16 else O_.la0)
    o = []
    for im in (0, 2048):
        if withV: o.append(gdma(vkv, sVb, im + 1024, lambda c: aV(c["J"] + la(c)), O_.fv))
        key = lambda c: aK(c["J"] + la(c) + 2) if c["J"] + la(c) < 30 else aV(31)
        if withK: o.append(gdma(vkv, kbase or sKb, im, key, O_.fk))
    return o
def m0_next():
    return [salu("s_mov_b32", "m0", sM0), salu("s_add_u32", sM0, sM0, 16384), salu("s_and_b32", sM0, sM0, "0xffff")]
def kv_step(): return valu("v_add_u32", vkv, 8192, vkv)
def q_dma_block(h, b):
    o = [salu("s_add_u32", "m0", sStg, b*4096), salu("s_mov_b32", sSide, h*98304 + b*4096)]
    for i in range(4): o.append(dma(vsd1 if i & 1 else vsd0, sQ, sSide, i*1024, aQ(h, 4*b + i), O_.fq))
    return o
def piecemeal(groups):
    st = []; pre = []
    for grp in groups:
        for x in grp:
            if x.kind in MEM: st.append(pre + [x]); pre = []
            else: pre.append(x)
    if pre: st[-1] += pre
    def more(n):
        o = st[:n]; del st[:n]; return o
    more.left = lambda: len(st)
    return more

def sm_ops(par, b, a):
    s = Sreg(b, a); p = Preg(par, b)
    return [valu("v_exp_f32", s[0], s[0]), valu("v_exp_f32", s[1], s[1]), valu("v_cvt_pk_bf16_f32", p[2*a], s[0], s[1]),
            valu("v_exp_f32", s[2], s[2]), valu("v_exp_f32", s[3], s[3]), valu("v_cvt_pk_bf16_f32", p[2*a+1], s[2], s[3])]
NE_A = 40
def sm_split(par):
    st = []
    for a in range(2):
        for b in range(NB): st += [(b, x) for x in sm_ops(par, b, a)]
    k = NE_A // 2 * 3
    return st[:k], st[k:]
def delay_cvts(xs):
    o = []; pend = []
    for x in xs:
        if x.kind == "trans":
            o.append(x)
            if pend: o.append(pend.pop(0))
        else: pend.append(x)
    return o + pend
def xlane_max(m, t):
    o = []
    for op in ("v_permlane32_swap_b32", "v_permlane16_swap_b32"):
        o += [valu("v_mov_b32", t, m), swap(op, m, t), valu("v_max_f32", m, m, t)]
    return o
def rowmax_ops(b):
    m, t = negM(b)[0], negM(b)[1]; sv = lambda r: V(8*b + r)
    o = [valu("v_max3_f32", m, sv(0), sv(1), sv(2)), valu("v_max3_f32", t, sv(3), sv(4), sv(5)),
         valu("v_max3_f32", m, m, sv(6), sv(7)), valu("v_max_f32", m, m, t)] + xlane_max(m, t)
    o += [valu("v_sub_f32", negM(b)[r], 0, m) for r in (1, 2, 3, 0)]
    return o, [valu("v_pk_add_f32", V(8*b + 2*r, 2), V(8*b + 2*r, 2), negM(b)[0:2]) for r in range(4)]
def scale_frag(x, dst, w, y, pk=True):
    o = []
    if pk:
        for r in range(4): o += [valu("v_lshlrev_b32", w[2*r], 16, x[r]), valu("v_and_b32", w[2*r+1], "0xffff0000", x[r])]
        for r in range(4): o.append(valu("v_pk_mul_f32", w[2*r:2*r+2], w[2*r:2*r+2], sC))
    else:
        for r in range(4):
            o += [valu("v_lshlrev_b32", w[2*r], 16, x[r]), valu("v_and_b32", w[2*r+1], "0xffff0000", x[r]),
                  valu("v_mul_f32", w[2*r], sC[0], w[2*r]), valu("v_mul_f32", w[2*r+1], sC[0], w[2*r+1])]
    if dst.k == "v": return o + [valu("v_cvt_pk_bf16_f32", dst[r], w[2*r], w[2*r+1]) for r in range(4)]
    for r in range(4): o.append(valu("v_cvt_pk_bf16_f32", y[r], w[2*r], w[2*r+1]))
    for r in range(4): o.append(valu("v_accvgpr_write_b32", dst[r], y[r]))
    return o
def chain(b, a, fr, c0, rev):
    return [(s, mfma(Sreg(b, a), fr[s], Qreg(b, s), c0 if n == 0 else Sreg(b, a))) for n, s in enumerate(range(3, -1, -1) if rev and O_.qks else range(4))]
def qk_first(b): return [m for a in range(2) for _, m in chain(b, a, [F(4*a + s) for s in range(4)], 0, a)]
def pv_pair(par, bs, t0, fr, init, sums):
    o = []
    if O_.pvo in ("t", "ts"):
        bs = sorted(bs)
        if 5 in sums and init: sums = []; o += [(None, rowsum(par, 5, init)), (None, rowsum(par, 4, init))]
        for k in range(2):
            for b in (bs if k == 0 or O_.pvo == "t" else bs[::-1]):
                o.append((t0 + k, mfma(Oreg(b, t0 + k), Preg(par, b), fr[k], 0 if init else Oreg(b, t0 + k))))
                if k == 0 and b in sums: o.append((None, rowsum(par, b, init)))
        return o
    for n, b in enumerate(bs):
        for k in ((0, 1) if n % 2 == 0 or O_.pvo == "pp2" else (1, 0)): o.append((t0 + k, mfma(Oreg(b, t0 + k), Preg(par, b), fr[k], 0 if init else Oreg(b, t0 + k))))
        if b in sums: o.insert(len(o) - 1, (None, rowsum(par, b, init)))
    return o
def rowsum(par, b, init=False): return mfma(lacc(b), Preg(par, b), sel(b), 0 if init and b in (0, 5) else lacc(b))

def startup():
    v0, vl, vi, vu, t0, t1, t2 = V(0), V(1), V(2), V(3), V(4), V(5), V(6)
    E(comment("---- setup"),
      raw("s_load_dwordx4 s[4:7], s[0:1], 0", "smem", (), rs(S(4, 4))),
      raw("s_load_dwordx4 s[8:11], s[0:1], 16", "smem", (), rs(S(8, 4))),
      scmp("s_cmp_ge_u32", S(2), 256), raw("s_cbranch_scc1 L_end", "salu", {"scc"}))
    if O_.wgmap == 1:
        E(salu("s_and_b32", sT0, S(2), 7), salu("s_lshr_b32", S(2), S(2), 3), salu("s_lshl_b32", sT0, sT0, 5), salu("s_or_b32", S(2), S(2), sT0))
    if O_.wgmap == 2: E(salu("s_and_b32", S(2), S(2), 7))
    if O_.stamps:
        E(raw("s_load_dwordx2 s[44:45], s[0:1], 40", "smem", (), rs(S(44, 2))),
          raw("s_memrealtime s[46:47]", "smem", (), rs(S(46, 2))))
    E(comment("pull the kernel's own code into L2 (one dword per 128-byte line)"),
      raw("s_getpc_b64 s[40:41]", "salu", (), rs(S(40, 2))), label("L_pc"),
      valu("v_lshlrev_b32", t0, 7, v0), valu("v_min_u32", t1, "L_fast_end-L_pc", t0),
      Inst(f"global_load_dword v7, {t1}, s[40:41]", "vld", rs(t1, S(40, 2)), rs(V(7))),
      valu("v_add_u32", t0, 32768, t0), valu("v_min_u32", t1, "L_fast_end-L_pc", t0),
      Inst(f"global_load_dword v8, {t1}, s[40:41]", "vld", rs(t1, S(40, 2)), rs(V(8))))
    E(valu("v_lshrrev_b32", t1, 6, v0), valu("v_and_b32", vl, 63, v0),
      valu("v_readfirstlane_b32", sW, t1),
      valu("v_and_b32", vi, 15, vl), valu("v_lshrrev_b32", vu, 4, vl),
      valu("v_lshlrev_b32", t0, 1, vu), valu("v_xor_b32", t0, t0, vi), valu("v_lshlrev_b32", t0, 4, t0),
      valu("v_lshl_add_u32", vsd0, vu, 8, t0), valu("v_xor_b32", vsd1, 128, vsd0),
      salu("s_and_b32", sT0, sW, 1), salu("s_lshr_b32", sT1, sW, 1),
      salu("s_lshl_b32", sT2, sT0, 7), salu("s_lshl_b32", sT0, sT0, 10), salu("s_lshl_b32", sT1, sT1, 12),
      salu("s_add_u32", sT0, sT0, sT1),
      valu("v_xor_b32", vkv, sT2, vsd0), valu("v_add_u32", vkv, sT0, vkv),
      salu("s_lshl_b32", sM0, sW, 12), salu("s_add_u32", sM0, sM0, 32768), salu("s_mul_i32", sStg, sW, 24576),
      salu("s_mul_i32", sT0, S(2), 196608), salu("s_add_u32", sT0, sT0, sStg), salu("s_add_u32", sStg, sStg, 65536),
      salu("s_lshl_b32", sT1, S(2), 18),
      salu("s_mov_b32", sQ[2], 98304 + 24576), salu("s_mov_b32", sQ[3], "0x20000"),
      wait(lgkm=0),
      salu("s_add_u32", sKb[0], S(6), sT1), salu("s_addc_u32", sKb[1], S(7), 0),
      salu("s_add_u32", sQ[0], S(4), sT0), salu("s_addc_u32", sQ[1], S(5), 0), salu("s_and_b32", sQ[1], sQ[1], "0xffff"))
    def grp(J, withV=True):
        ops = kv_dmas(J, withV)
        if J == 0: ops = ops[0::2] + ops[1::2]
        return m0_next() + ops + [kv_step()]
    more = piecemeal([grp(-2, False)] + [q_dma_block(0, b) for b in range(NB)] + [grp(-1, False)] + [grp(J) for J in range(O_.la0)])
    n_iss = 0; w = [int(c) for c in O_.stagw]
    if max(w): E(raw(f"s_bfe_u32 {sT2}, s2, {hex(((len(w).bit_length() - 1) << 16) + O_.stagbit)}", "salu", (), rs(sT2) | {"scc"}))
    for k in range(max(w)):
        n = int(O_.stag[k])
        E(more(n), scmp("s_cmp_ge_u32", sT2, min(g for g in range(len(w)) if w[g] > k)), raw(f"s_cbranch_scc0 L_st{k}", "salu", {"scc"}),
          raw("s_waitcnt vmcnt(0)"), label(f"L_st{k}")); n_iss += n
    E(more(min(10, O_.n0) - n_iss))
    if O_.pads: E(raw("s_branch L_main"), raw(".p2align 12", "label"), label("L_main"))
    E(salu("s_add_u32", sVb[0], S(8), sT1), salu("s_addc_u32", sVb[1], S(9), 0),
      (Inst(f"global_load_dword v9, {vsd0}, {sVb} nt", "vld", rs(vsd0, sVb), rs(V(9))) if O_.vtouch else None),
      salu("s_sub_u32", sVb[0], sVb[0], 1024 + 16384), salu("s_subb_u32", sVb[1], sVb[1], 0),
      salu("s_add_u32", sO[0], S(10), sT0), salu("s_addc_u32", sO[1], S(11), 0), salu("s_and_b32", sO[1], sO[1], "0xffff"),
      salu("s_mov_b32", sO[2], 98304 + 24576), salu("s_mov_b32", sO[3], "0x20000"),
      salu("s_add_u32", sVx[0], sVb[0], 1024 + 8192), salu("s_addc_u32", sVx[1], sVb[1], 0),
      salu("s_mov_b32", sC[0], hex(CSCALE)), salu("s_mov_b32", sC[1], hex(CSCALE)),
      salu("s_mov_b32", sThr, hex(THRESH)), salu("s_mov_b32", sFlag, O_.force), salu("s_sub_u32", sQd, sStg, 98304))
    E(valu("v_and_b32", t0, 7, vi), valu("v_lshlrev_b32", t0, 1, t0), valu("v_xor_b32", t0, t0, vu), valu("v_lshlrev_b32", t0, 4, t0),
      valu("v_lshl_add_u32", t2, vi, 8, t0), valu("v_add_u32", qa[0], sStg, t2),
      valu("v_and_b32", t1, 3, vi), valu("v_lshl_add_u32", t0, t1, 8, t0),
      valu("v_lshrrev_b32", t1, 3, vi), valu("v_lshl_add_u32", t0, t1, 11, t0),
      valu("v_bfe_u32", t1, vi, 2, 1), valu("v_lshl_add_u32", t0, t1, 12, t0), valu("v_add_u32", kaddr[0], 32768, t0))
    for s in range(1, 4): E(valu("v_xor_b32", kaddr[s], s << 6, kaddr[0]), valu("v_xor_b32", qa[s], s << 6, qa[0]))
    E(valu("v_lshrrev_b32", t1, 2, vi), valu("v_and_b32", t2, 1, vu), valu("v_lshl_add_u32", t0, t2, 2, t1),
      valu("v_lshlrev_b32", t0, 5, t0), valu("v_lshl_add_u32", t0, t1, 8, t0), valu("v_lshl_add_u32", t0, t2, 12, t0),
      valu("v_lshrrev_b32", t2, 1, vu), valu("v_lshl_add_u32", t0, t2, 11, t0),
      valu("v_and_b32", t1, 3, vi), valu("v_lshl_add_u32", t0, t1, 3, t0), valu("v_add_u32", vaddr[0], 32768 + 1024, t0))
    for t in range(1, 8): E(valu("v_xor_b32", vaddr[t], t << 5, vaddr[0]))
    E(valu("v_mov_b32", t2, "0x3f803f80"))
    for k in range(3):
        E(Inst(f"v_cmp_eq_u32 vcc, {k}, {vi}", "valu", rs(vi), {"vcc"}), nop(1), Inst(f"v_cndmask_b32 {t0}, 0, {t2}, vcc", "valu", rs(t2, "vcc"), rs(t0)),
          [valu("v_accvgpr_write_b32", sel(k)[r], t0) for r in range(4)])
    E(valu("v_lshrrev_b32", t0, 1, vi), valu("v_lshlrev_b32", t1, 1, vu), valu("v_sub_u32", t0, t0, t1),
      valu("v_and_b32", t1, 1, vi), valu("v_lshlrev_b32", t1, 4, t1))
    for k in range(2):
        E(Inst(f"v_cmp_eq_u32 vcc, {k}, {t0}", "valu", rs(t0), {"vcc"}))
        for j, c in enumerate((C_HI, C_LO)):
            E(valu("v_mov_b32", t2, hex(c)), valu("v_lshlrev_b32", t2, t1, t2), Inst(f"v_cndmask_b32 {t2}, 0, {t2}, vcc", "valu", rs(t2, "vcc"), rs(t2)),
              valu("v_accvgpr_write_b32", CS[2 + 4*j + k], t2))
    E([valu("v_accvgpr_write_b32", CS[k], 0) for k in (0, 1, 4, 5, 8, 9)])
    E(valu("v_lshlrev_b32", t0, 3, vl), valu("v_add_u32", ow, sStg, t0),
      valu("v_bfe_u32", t1, vi, 1, 1), valu("v_lshl_add_u32", t0, t1, 2, vu), valu("v_lshlrev_b32", t0, 9, t0),
      valu("v_and_b32", t1, 1, vi), valu("v_lshl_add_u32", t0, t1, 6, t0), valu("v_lshrrev_b32", t1, 2, vi),
      valu("v_lshl_add_u32", t0, t1, 3, t0), valu("v_add_u32", ovr, sStg, t0),
      valu("v_and_b32", t2, 3, vi), valu("v_lshlrev_b32", t0, 5, t2), valu("v_lshl_add_u32", t0, vu, 8, t0),
      valu("v_and_b32", t2, 1, t1), valu("v_lshl_add_u32", t0, t2, 4, t0), valu("v_lshrrev_b32", t2, 1, t1), valu("v_lshl_add_u32", vlin, t2, 7, t0))
    E(more(max(0, O_.n0 - 10)), stamp_now())
    E(comment("---- first K tile"), wait(vm=[aK(0)]), more(2) if O_.npw else None, barrier())
    for a in range(2):
        for s in range(4): E(kread(0, a, s, F(4*a + s), 0))
    if O_.pads:
        E(comment("visit the start of each code page once (wave w: pages w+1, w+5, ..); every stop jumps straight on while vcc = 0"),
          raw("s_mov_b64 vcc, 0"))
        for w in range(3): E(scmp("s_cmp_eq_u32", sW, w), raw(f"s_cbranch_scc1 L_pad{w + 1}", "salu", {"scc"}))
        E(raw("s_branch L_pad4"), label("L_padret"), raw("s_mov_b64 vcc, -1"))
    first, _ = sm_split(0)
    rawr = lambda s: V(72 + 4*s, 4)
    for b in range(NB):
        E(comment(f"---- start-up block {b}"))
        one = lambda: more(1) if more.left() > 4*O_.g1late*(O_.la0 - 1) else None
        for i in range(4 - (4 if b == 0 and O_.npw else O_.npw), 4): E(wait(vm=[aQ(0, 4*b + i)]), one())
        E(wait(vm=blk(aQ, 0, b) + ([V(9)] if b == 1 else [])), stamp_now() if O_.probe == 2 else None)
        for s in range(4): E(ds_read("ds_read_b128", rawr(s), qa[s], b*4096, blk(aQ, 0, b)))
        for s in range(4):
            E(wait(lgkm=[rawr(s)] + ([F(k) for k in range(8)] if b == 0 else [])))
            E(one() if s in [(0, 1, 2, 3), (1, 2, 3), (1, 3), (2,), ()][O_.npw] else None, scale_frag(rawr(s), Qreg(b, s), V(88, 8), Sreg(b, s & 1)))
        E(qk_first(b))
        if b == NB - 1:
            E(stamp_now() if O_.probe == 2 else None, wait(vm=[aK(1)]), barrier(), stamp_now() if O_.probe == 2 else None)
            for s in range(4): E(kread(1, 0, s, F(s), 1))
        E(rowmax_ops(b), delay_cvts([x for bb, x in first if bb == b]))
    E(wait(vm=0) if O_.waitall == 1 else None, more(99), wait(vm=0) if O_.waitall == 2 else None, salu("s_mov_b32", sSide, 98304), salu("s_mov_b32", sCnt, O_.qa0 - 1), salu("s_mov_b32", sHead, 0), wait(lgkm=[F(s) for s in range(4)]))
    if O_.itst: E(salu("s_mov_b32", S(5), 0))
    E(stamp_now())

def o_read(key, p, dst):
    return [ds_read("ds_read_b64_tr_b16", dst[2*hi:2*hi + 2], ovr, (p >> 2)*4096 + (p & 3)*128 + hi*32, key) for hi in range(2)]
def pv_mfmas(par, frags, sums_first=False, init=False):
    mf = [rowsum(par, b) for b in range(NB)] if sums_first else []; st = []
    for h in range(4):
        st.append(len(mf))
        sums = [] if sums_first else [(0, 1), (5, 4), (2,), (3,)][h]
        mf += [m for _, m in pv_pair(par, range(NB) if h % 2 == 0 else range(NB - 1, -1, -1), 2*h, frags[2*h:2*h + 2], init, sums)]
    return mf, st
def late_pieces(k):
    cnt = [int(c, 16) for c in O_.olate]; assert sum(cnt) == 24 and sum(cnt[:4]) >= 12
    return (list(range(12, 24)) + list(range(12)))[sum(cnt[:k]):sum(cnt[:k + 1])]

def iteration(par, side, ctl):
    mf = [m for a in range(2) for b in range(NB) for _, m in chain(b, a, [F(4*a + s) for s in range(4)], negM(b), b & 1)]
    pv, pst = pv_mfmas(par, [F(t) for t in range(8)], init=(side == "first"))
    mf += pv; pst = [48 + x for x in pst]
    sc = Sched(mf)
    for x in ctl: sc.fix(x, 101)
    sc.cap[101] = 0 if ctl else sc.cap[101]
    d0 = O_.dga if side == "Q" else O_.dg
    for s in range(4): tk = sc.fix(kread(1, 1, s, F(4 + s), 1 - par), [1, 6, 11, 13][s])
    if side != "j12":
        mm = m0_next(); tm = sc.fix(mm[0], d0 - 2); tm = sc.seq(mm[1:], 0, 99, tm)
        for k, x in enumerate(kv_dmas(None, kbase=sVx if side == "j11" else None)): td = sc.fix(x, d0 + 5*k)
        sc.add(kv_step(), 0, 100, [(td, 1, 1)])
    sg = [56, 68, 80, 92] if d0 < 36 else ([66, 76, 86, 95] if d0 < 48 else [30, 40, 52, 62])
    tb2 = None
    if side == "first":
        sc.fix(wait(vm=[rV(0)], lgkm=0), 23); tb = sc.fix(barrier(), 23)
        sc.fix(wait(vm=[rK(2)]), 72); tb2 = sc.fix(barrier(), 72)
    else:
        sc.fix(wait(vm=[rV(0), rK(2)], lgkm=0), 23); tb = sc.fix(barrier(), 23)
    if O_.itst:
        for y in [raw("s_memrealtime s[42:43]", "smem", (), rs(S(42, 2))), wait(lgkm=0), raw("s_lshl_b64 exec, 1, s5"),
                  Inst("v_accvgpr_write_b32 a175, s42", "valu", rs(S(42)), rs(A(175))), raw("s_mov_b64 exec, -1"), salu("s_add_u32", S(5), S(5), 1)]:
            y.m["last"] = True; sc.put(23, y)
    if side == "Q" and par == 0 and O_.qpp:
        n = O_.qpp
        sc.fix(salu("s_add_u32", "m0", sSide, sQd), sg[0] - 2)
        for k in range(n): t = sc.fix(dma(vsd1 if k & 1 else vsd0, sQ, sSide, k*1024, (lambda k: lambda c: aQ(1, n*(c["J"]//2 - O_.qa0) + k))(k), O_.fq), sg[k])
        sc.add(salu("s_add_u32", sSide, sSide, 1024*n), 0, 99, [(t, 1, 1)])
        if n & 1:
            for r in (vsd0, vsd1): sc.add(valu("v_xor_b32", r, 128, r), 0, 99, [(t, 1, 1)])
    if side in ("j11", "j12"):
        ps = late_pieces(int(side == "j12")); g0 = O_.g12 if side == "j12" else O_.g11
        base = t = None
        for i, p in enumerate(ps):
            g = g0 + (96 - g0)*i//max(1, len(ps) - 1)
            while g in (22, 23, 24) or sc.cap[g] < 8 or sc.cap[g - 1] == 0: g += 1
            t = sc.seq(o_read(aO(0, p), p, X[i]), 0, g - 8, t); sc.add(wait(lgkm=[X[i]]), 0, g - 1, [(t, 1, 6)])
            if base is None or not 0 <= p - base < 4: base = p; sc.fix(salu("s_mov_b32", sSide, p*1024), g - 1)
            sc.fix(vstore(X[i], vlin, sO, sSide, (p - base)*1024, O_.late_flags), g)
    tstart = [pst[t//2] for t in range(8)]
    p = tb
    for t in range(8):
        for a in range(2): p = sc.add(vread(0, t, a, F(t), par), 24 if t < 4 else 48, None, [(p, 1, 1)])
        if t in (1, 3): sc.add(wait(lgkm=[F(t - 1), F(t)]), 0, tstart[t - 1] - 1, [(p, 1, 8)])
    tv = p
    sc.add(wait(lgkm=[F(4), F(5), F(6), F(7)]), 0, tstart[4] - 1, [(p, 1, 8)])
    for s in range(4): p = sc.add(kread(2, 0, s, F(s), par), tstart[4], None, [(p, 1, 1), (tb2, 1, 1)])
    sc.add(wait(lgkm=[F(s) for s in range(4)]), 0, 100, [(p, 1, 8)])
    if par == 0: sc.seq([valu("v_xor_b32", r, 32768, r) for r in kaddr], 24, tstart[4] - 1, hard=0)
    if par == 0:
        for t, r in enumerate(vaddr): sc.add(valu("v_xor_b32", r, 32768, r), 0, 22 if t < 4 else 46)
    sc.sm([([x for _, x in sm_split(par)[1]], 0, 30)], 2.4)
    sc.sm([([x for _, x in sm_split(1 - par)[0]], 24, 100)])
    sc.run()
    if O_.xtra and side in (None, "Q", "first"):
        xk, xn = O_.xtra[0], int(O_.xtra[1:])
        mk = {"c": lambda i: Inst(f"v_cvt_pk_bf16_f32 v142, v{144 + 2*i}, v{145 + 2*i}", "valu"),
              "e": lambda i: Inst(f"v_exp_f32 v142, v{144 + 5*i}", "trans"),
              "x": lambda i: Inst(f"v_xor_b32 v142, 32768, v{120 + i % 12}", "valu"),
              "r": lambda i: Inst(f"ds_read_b128 {X[6]}, {kaddr[i % 4]} offset:{8192*(i % 4)}", "dsr"),
              "t": lambda i: Inst(f"ds_read_b64_tr_b16 {X[6][0:2]}, {vaddr[i % 8]} offset:{8192*(i % 4)}", "dsr")}[xk]
        left = sc.pour(([mk(i) for i in range(xn)], 0)); assert not left, len(left)
    sc.emit()

def br(text): return raw(text, "salu", {"scc"}, (), last=True)
def dec():
    x = salu("s_sub_u32", sCnt, sCnt, 1); x.m["last"] = True; return x
def loop(name, side, J0, n_iter):
    e = seg(name + "_even"); E(raw(".p2align 3", "label"), label(f"L_{name}"))
    if n_iter & 1:
        iteration(0, side, [dec(), br(f"s_cbranch_scc1 L_{name}_exit")])
        o = seg(name + "_odd"); iteration(1, side, [br(f"s_branch L_{name}")]); E(label(f"L_{name}_exit"))
    else:
        iteration(0, side, [])
        o = seg(name + "_odd"); iteration(1, side, [dec(), br(f"s_cbranch_scc0 L_{name}")])
    for k in range(n_iter): path.append((o if k & 1 else e, {"J": J0 + k}))

def l_ops(h, b0, r, t1):
    o = [valu("v_accvgpr_read_b32", r[k], lacc(b0)[k]) for k in range(4)]
    o += [valu("v_add_f32", t1, r[0], r[1]), valu("v_add_f32", t1, t1, r[2]), valu("v_add_f32", t1, t1, r[3])]
    o += [valu("v_rcp_f32", r[k], r[k]) for k in range(4)]
    return o
def l_flag(h, t1):
    return [Inst(f"v_cmp_nlt_f32 {sCmp}, {t1}, {sThr}", "valu", rs(t1, sThr), rs(sCmp)), nop(0),
            scmp("s_cmp_lg_u64", sCmp, 0), salu("s_cselect_b32", sT0, 1 << h, 0), salu("s_or_b32", sFlag, sFlag, sT0)]
def l_bcast(b, r, dst):
    o = [valu("v_mov_b64_dpp", dst[2*k:2*k + 2], r[2*k:2*k + 2], mods=f"row_newbcast:{b % 3} row_mask:0xf bank_mask:0xf") for k in range(2)]
    for x in o: x.m["dpp"] = True
    return o
def epi_half(h, b, th, rl, tmp, y):
    r0 = Oreg(b, 4*th); w = V(r0.i, 16) if r0.k == "v" else tmp; o = []
    if r0.k == "a": o += [valu("v_accvgpr_read_b32", w[i], A(r0.i + i)) for i in range(16)]
    o += [valu("v_pk_mul_f32", w[2*i:2*i + 2], w[2*i:2*i + 2], rl[2*(i & 1):2*(i & 1) + 2]) for i in range(8)]
    o += [valu("v_cvt_pk_bf16_f32", y[2*r + k], w[8*k + r], w[8*k + 4 + r]) for r in range(4) for k in range(2)]
    o += [ds_write2st64(ow, y[4*k:4*k + 2], y[4*k + 2:4*k + 4], 8*b + 4*th + 2*k, 8*b + 4*th + 2*k + 1, blk(aO, h, b)) for k in range(2)]
    return o

def transition():
    s = seg("trans"); path.append((s, {"J": 15}))
    E(stamp_now(), comment("---- head 0: last PV; switch to head 1"))
    vf = [Qreg(4 + t//4, t % 4) for t in range(8)]
    NSH = O_.nsh
    def rawr(b, n): return V(16 + 4*n, 4) if 4*b + n < NSH else Qreg(b, n)
    def qrd(b): return [ds_read("ds_read_b128", rawr(b, n), qa[n], b*4096, blk(aQ, 1, b)) for n in range(4)]
    rc = [negM(4), negM(5)]
    rl = V(72, 4); y = V(76, 8)
    def pm(f):
        q = Qreg(f//4, f % 4); d = V(76 + 8*(f & 1), 8); t = V(92, 4)
        mf = [mfma(d[0:4], CS[2:6], q, 0), mfma(d[0:4], CS[6:10], q, d[0:4]), mfma(d[4:8], CS[0:4], q, 0), mfma(d[4:8], CS[4:8], q, d[4:8])]
        fl = []
        for hh in range(2):
            fl += [valu("v_cvt_pk_bf16_f32", t[2*hh + k], d[4*hh + 2*k], d[4*hh + 2*k + 1]) for k in range(2)]
            fl += [valu("v_accvgpr_write_b32", q[2*hh + k], t[2*hh + k]) for k in range(2)]
        return mf, fl
    npre = O_.qpp*(8 - O_.qa0); assert npre >= 8
    if npre & 1: E(valu("v_xor_b32", vsd0, 128, vsd0), valu("v_xor_b32", vsd1, 128, vsd1))
    more = piecemeal([[x for k, x in enumerate(q_dma_block(1, b)) if k < 2 or 4*b + k - 2 >= npre] for b in range(npre//4, NB)]
                     + [m0_next() + kv_dmas(d) + [kv_step()] for d in range(O_.la0, O_.la1 + 1)])
    E(wait(vm=[rV(0), rK(2)] + blk(aQ, 1, 0)), barrier())
    vr = [vread(0, t, a, vf[t], 1) for t in range(8) for a in range(2)]
    E(vr[:4], delay_cvts([x for _, x in sm_split(1)[1]]))
    pv, pst = pv_mfmas(1, vf, True)
    sc = Sched(pv)
    g = 8
    for grp in more(O_.tq):
        for x in grp:
            if x.kind == "salu": sc.fix(x, g - 2)
            else: sc.fix(x, g); g += O_.tstep
    sc.add(wait(lgkm=vf[:2]), 4, pst[0] - 1)
    q0 = qrd(0)
    p = sc.seq(q0[:NSH], 0); wq = sc.add(wait(lgkm=[rawr(0, NSH - 1)]), 0, 10, [(p, 1, 6)])
    p = sc.seq(vr[4:8], 0, None, p); sc.add(wait(lgkm=vf[2:4]), 0, pst[1] - 1, [(p, 1, 6)])
    p = sc.seq(vr[8:], 0, None, p); sc.add(wait(lgkm=vf[4:]), 0, pst[2] - 1, [(p, 1, 6)])
    p = sc.seq([kread(1, 1, k, F(4 + k), 0) for k in range(4)] + q0[NSH:] + [wait(vm=blk(aQ, 1, 1))] + qrd(1), 24, 46, p)
    sc.fix(wait(lgkm=0), 53); sc.fix(barrier(), 53)
    sc.run()
    lv = l_ops(0, 0, rc[0], V(60)) + l_ops(0, 3, rc[1], V(61)) + [valu("v_add_f32", V(60), V(60), V(61))]; ls = l_flag(0, V(60))
    st = []
    for n in range(NSH): st += scale_frag(rawr(0, n), Qreg(0, n), V(0, 8), V(8 + 4*(n & 1), 4), pk=False)
    rest = sc.pour((lv, 10), (st, wq.gap + 1)); sc.emit(); assert not rest
    tn = lambda k: int(O_.tsched[k]) if O_.tsched else O_.tper
    first = sm_split(0)[0]
    def finish(b): return rowmax_ops(b)[1] + delay_cvts([x for bb, x in first if bb == b])
    for b in range(NB):
        E(comment(f"---- switch block {b}"), stamp_now() if O_.probe == 1 else None)
        fs = range(max(NSH, 4*b + 1), min(4*b + 5, 4*NB))
        mf = []; fl = []
        for f in fs:
            m, x = pm(f); mf += m; fl.append(x)
        qk = qk_first(b)
        if b == NB - 1: qk = [qk[k] for k in (0, 1, 2)] + [m for _, m in chain(b, 1, [F(4 + s_) for s_ in range(4)], 0, False)][:3] + [qk[3]]; \
                        qk.append(mfma(Sreg(b, 1), F(7), Qreg(b, 3), Sreg(b, 1)))
        sc = Sched(mf + qk)
        for k, x in enumerate(fl):
            for j, v in enumerate(x): sc.put(4*(k + 1) + j//2, v)
        if 1 <= b < NB - 1:
            sc.put(0, wait(vm=blk(aQ, 1, b + 1)))
            for n, x in enumerate(qrd(b + 1)): sc.put(1 + n, x)
            sc.put(11, wait(lgkm=[Qreg(b + 1, n) for n in range(4)]))
        rest = sc.pour((rowmax_ops(b - 1)[0] if b else rest, 0)); sc.emit(); E(rest, ls if b == 0 else None)
        if b == NB - 1: E([kread(2, 0, s_, F(s_), 1) for s_ in range(4)])
        E(l_bcast(b, rc[b//3], rl), epi_half(0, b, 0, rl, V(176, 16), y), more(tn(2*b)), finish(b - 1) if b else None,
          epi_half(0, b, 1, rl, V(192, 16), y), more(tn(2*b + 1)))
    assert more.left() == 0
    E(rowmax_ops(NB - 1)[0], finish(NB - 1))
    E(salu("s_mov_b32", sCnt, 4), salu("s_mov_b32", sHead, 1), wait(lgkm=[F(s_) for s_ in range(4)]))
    E(stamp_now(), raw("s_branch L_first"))

def endgame():
    s = seg("end"); path.append((s, {"J": 29}))
    E(stamp_now())
    carry = []
    for ps, H in enumerate(([3, 4, 5], [0, 1, 2])):
        E(comment(f"---- pass {ps}"))
        subs = [("Q", 1, 0), ("Q", 1, 1), ("P", 0, 0), ("P", 0, 1), ("Q", 2, 0), ("Q", 2, 1), ("P", 1, 0), ("P", 1, 1), ("P", 2, 0), ("P", 2, 1)]
        FA, FB = [F(k) for k in range(4)], [F(4 + k) for k in range(4)]
        G = [[Qreg(3 + n, k) for k in range(4)] for n in range(3)]; Hh = [[A(176 + 16*n + 4*k, 4) for k in range(4)] for n in range(5)]
        fr = [FA, FB, FA, FB, FA, FB, FA] + G if ps == 0 else [FA, FB] + Hh + G
        mf = []; use = []; cend = {}; cstart = {}; pstart = {}; bstart = {}
        for i, (kind, d, x) in enumerate(subs):
            u = {}
            if kind == "Q":
                for n, b in enumerate(H):
                    cstart[(d, b, x)] = len(mf)
                    for s_, m in chain(b, x, fr[i], negM(b), n & 1): u.setdefault(s_, []).append(len(mf)); mf.append(m)
                    cend[(d, b, x)] = len(mf) - 1
            elif d == 2:
                if x == 0:
                    u2 = {}
                    for n, b in enumerate(H):
                        bstart[b] = len(mf); mf.append(rowsum(1, b))
                        for t in range(8):
                            (u if t < 4 else u2).setdefault(t & 3, []).append(len(mf))
                            mf.append(mfma(Oreg(b, t), Preg(1, b), fr[i + (t >> 2)][t & 3], Oreg(b, t)))
                else: u = u2
            else:
                par = (d + 1) & 1
                if x == 0: pstart[d] = len(mf)
                for hh in range(2):
                    for t, m in pv_pair(par, H if hh == 0 else H[::-1], 4*x + 2*hh, fr[i][2*hh:2*hh + 2], False, H[2*x + hh:2*x + hh + 1]):
                        if t is not None: u.setdefault(t & 3, []).append(len(mf))
                        mf.append(m)
            use.append(u)
        sc = Sched(mf); bar = {}
        if ps == 0:
            for d, g, keys in ((0, 9, [rV(0), rK(2)]), (1, use[4][1][-1], [rV(1), rV(2)])):
                if O_.probe == 3:
                    for y in stamp_now(): sc.put(g, y)
                sc.fix(wait(vm=keys), g)
                if O_.probe == 3:
                    for y in stamp_now(): sc.put(g, y)
                bar[d] = bar[2] = sc.fix(barrier(), g)
                if O_.probe == 3:
                    for y in stamp_now(): sc.put(g, y)
        pcs = [(0, q) for q in late_pieces(2) + late_pieces(3)] if ps == 0 else [(0, q) for q in late_pieces(4)] + carry
        taken = {t.gap + k for t in bar.values() for k in (-1, 0, 1)}
        prev_st = [None]*4; pst = None; base = None
        for i, (h, q) in enumerate(pcs):
            g = 12 + (len(mf) - 16)*i//max(1, len(pcs) - 1) if ps == 0 else 10 + (len(mf) - 14)*i//len(pcs)
            while g in taken or g - 1 in taken: g += 1
            off = h*98304 + q*1024
            if base is None or not 0 <= off - base < 4096:
                base = off; sc.add(salu("s_mov_b32", sSide, base), 0, g - 1, [(pst, 1, 1)])
            r = sc.seq(o_read(aO(h, q), q, X[i & 3]), g - 30, g - 8, prev_st[i & 3])
            sc.add(wait(lgkm=[X[i & 3]]), 0, g - 1, [(r, 1, 7)])
            pst = prev_st[i & 3] = sc.fix(vstore(X[i & 3], vlin, sO, sSide, off - base, O_.h0_flags if h else O_.late_flags), g)
        prev = None
        for i, (kind, d, x) in enumerate(subs):
            if i == 0 or (ps == 1 and (i == 1 or i >= 7)): continue
            tight = ps == 0 and i < 7
            for k in range(4):
                lo = (use[i - 2][k][-1] if i >= 2 else 0) if tight else (cend[(2, 3 + i - 7, 1)] if ps == 0 else 0)
                rds = [kread(d, x, k, fr[i][k], d - 1)] if kind == "Q" else [vread(d, 4*x + k, a, fr[i][k], d + 1) for a in range(2)]
                bp = bar.get(d if kind == "P" else (0 if d == 2 else None))
                for r in rds: prev = sc.add(r, lo, None, [(prev, 1, 1), (bp, 1, 1)])
                if tight and kind == "P" and k & 1: sc.add(wait(lgkm=fr[i][k - 1:k + 1]), 0, min(use[i][k - 1][0], use[i][k][0]) - 1, [(prev, 1, 6)])
            if not (tight and kind == "P"): sc.add(wait(lgkm=fr[i]), 0, use[i][0][0] - 1, [(prev, 1, 6)])
        if ps == 0:
            for a in range(2):
                for k in range(4): prev = sc.add(kread(1, a, k, F(4*a + k), 0), use[6][k][-1], None, [(prev, 1, 1)])
        grp = [([x for bb, x in sm_split(1)[1] if bb == b], 0, cstart[(1, b, 1)] - 1) for b in H]
        for a in range(2):
            for k, b in enumerate(H): grp.append((sm_ops(0, b, a), cend[(1, b, a)] + 4, min(pstart[1] - 2 + 2*k, cstart[(2, b, a)] - 1)))
        sc.sm(grp)
        order = [(H[0], 0), (H[1], 0), (H[0], 1), (H[2], 0), (H[1], 1), (H[2], 1)]
        sc.sm([(sm_ops(1, b, a), cend[(2, b, a)] + 4, bstart[b] - 2) for b, a in order], 2.4)
        sc.run()
        rc, rl, t1 = negM(H[0]), negM(H[1]), negM(H[2])[0]
        rest = sc.pour((l_ops(1, H[0], rc, t1), bstart[H[2]] + 4)); sc.emit()
        E(rest, l_flag(1, t1), stamp_now(), comment("---- epilogue"))
        dsts = [X[:4], [F(4 + i) for i in range(4)]]
        pend = []
        for k, b in enumerate(H):
            E(l_bcast(b, rc, rl))
            for th in range(2):
                ep = epi_half(1, b, th, rl, V(24, 16), V(40, 8))
                E(ep)
                E(pend[:2]); del pend[:2]
            if ps == 0 and k > 0: carry += [(1, 4*b + i) for i in range(4)]; continue
            d_ = dsts[k & 1]
            E([o_read(aO(1, 4*b + i), 4*b + i, d_[i]) for i in range(4)])
            sts = [vstore(d_[i], vlin, sO, sSide, i*1024, O_.fin_flags if ps else O_.h0_flags) for i in range(4)]
            if ps and O_.fdepth < 63: sts = [[wait(vm=O_.fdepth - 1), x] for x in sts]
            pre = [salu("s_mov_b32", sSide, 98304 + b*4096), wait(lgkm=d_)]
            pend = [pre + [sts[0]], None, sts[1], None, sts[2], None, sts[3]] if ps == 0 else [pre + [sts[0]], sts[1], sts[2], sts[3]]
        E(pend, wait(lgkm=0), stamp_now())

def slow_path():
    sH, sB, sI, sKo, sQo = S(4), S(5), S(6), S(7), S(8)
    Qf = [V(4*s, 4) for s in range(4)]; Kf = [V(16 + 4*i, 4) for i in range(8)]; St = [V(48, 4), V(52, 4)]; Pf = V(56, 4)
    nm = V(60, 4); Vf = V(64, 4); Of = [V(68 + 4*t, 4) for t in range(8)]; L = V(100, 4); w = V(104, 8)
    ones = V(120, 4)
    vrow, vk, vv, vtr, vst_, t0, t1 = V(112), V(113), V(114), V(115), V(116), V(117), V(118)
    def S_(name, J=0):
        s = seg(name); return s
    s0 = S_("slow0")
    E(comment("---- fallback: a row sum left the safe range, redo this wave's rows with the true row max"),
      label("L_slow"), wait(vm=0, lgkm=0),
      valu("v_mbcnt_lo_u32_b32", t0, -1, 0), valu("v_mbcnt_hi_u32_b32", t0, -1, t0), valu("v_lshlrev_b32", vlin, 4, t0),
      [valu("v_mov_b32", ones[r], "0x3f803f80") for r in range(4)],
      valu("v_bfe_u32", t0, vlin, 4, 4), valu("v_lshrrev_b32", t1, 8, vlin),
      valu("v_lshlrev_b32", vrow, 8, t0), valu("v_lshl_add_u32", vst_, t1, 3, vrow), valu("v_lshl_add_u32", vrow, t1, 4, vrow),
      valu("v_lshrrev_b32", vtr, 2, t0), valu("v_lshl_add_u32", vtr, t1, 2, vtr), valu("v_lshlrev_b32", vtr, 8, vtr),
      valu("v_and_b32", t0, 3, t0), valu("v_lshl_add_u32", vtr, t0, 3, vtr), valu("v_add_u32", vtr, sStg, vtr),
      salu("s_mov_b32", sH, 0))
    s1 = S_("slow_head")
    E(label("L_sl_head"), salu("s_lshr_b32", sT0, sFlag, sH), salu("s_and_b32", sT0, sT0, 1), raw("s_cbranch_scc0 L_sl_next", "salu", {"scc"}),
      salu("s_lshl_b32", sKo, sH, 17), salu("s_mul_i32", sQo, sH, 98304), salu("s_mov_b32", sB, 0))
    s2 = S_("slow_blk")
    E(label("L_sl_blk"))
    for s in range(4): E(vload(Kf[s], vrow, sQ, sQo, 64*s))
    E(wait(vm=0))
    for s in range(4): E(scale_frag(Kf[s], Qf[s], w, None))
    E(valu("v_mov_b32", nm[0], "0xff800000"), valu("v_add_u32", vk, sKo, vrow), salu("s_mov_b32", sI, 32))
    s3 = S_("slow_p1")
    E(label("L_sl_p1"))
    for s in range(4): E(gload(Kf[s], vk, sKb, 64*s))
    E(valu("v_add_u32", vk, 4096, vk), wait(vm=0))
    for s in range(4): E(mfma(St[0], Kf[s], Qf[s], 0 if s == 0 else St[0]))
    E(salu("s_sub_u32", sI, sI, 1), scmp("s_cmp_lg_u32", sI, 0), nop(7),
      valu("v_max3_f32", nm[0], nm[0], St[0][0], St[0][1]), valu("v_max3_f32", nm[0], nm[0], St[0][2], St[0][3]),
      raw("s_cbranch_scc1 L_sl_p1", "salu", {"scc"}))
    s4 = S_("slow_mid")
    E(xlane_max(nm[0], nm[1]), [valu("v_sub_f32", nm[r], 0, nm[0]) for r in (1, 2, 3, 0)])
    for r in range(36): E(valu("v_mov_b32", V(68 + r), 0))
    E(valu("v_add_u32", vk, sKo, vrow), valu("v_add_u32", vv, sKo, vlin), valu("v_add_u32", vv, 1024 + 16384, vv), salu("s_mov_b32", sI, 16))
    s5 = S_("slow_p2")
    E(label("L_sl_p2"))
    key = (("stg", "slow"), ("Vs",), False)
    for half in range(2):
        E(salu("s_add_u32", "m0", sStg, 4096*half))
        for s in range(4): E(gload(Kf[4*half + s], vk, sKb, 64*s))
        for k in range(4): E(gdma(vv, sVb, 1024*k, key, ""))
        E(valu("v_add_u32", vk, 4096, vk), valu("v_add_u32", vv, 4096, vv))
    E(wait(vm=0))
    for a in range(2):
        for s in range(4): E(mfma(St[a], Kf[4*a + s], Qf[s], nm if s == 0 else St[a]))
    E(nop(7))
    for r in range(8): E(valu("v_exp_f32", V(48 + r), V(48 + r)))
    for r in range(4): E(valu("v_cvt_pk_bf16_f32", Pf[r], V(48 + 2*r), V(49 + 2*r)))
    E(mfma(L, ones, Pf, L))
    for t in range(8):
        for a in range(2): E(ds_read("ds_read_b64_tr_b16", Vf[2*a:2*a + 2], vtr, a*4096 + 32*t, key))
        E(wait(lgkm=0), mfma(Of[t], Vf, Pf, Of[t]), nop(1))
    E(salu("s_sub_u32", sI, sI, 1), scmp("s_cmp_lg_u32", sI, 0), raw("s_cbranch_scc1 L_sl_p2", "salu", {"scc"}))
    s6 = S_("slow_epi")
    E(nop(7), valu("v_rcp_f32", t0, L[0]), nop(0))
    for t in range(8):
        for r in range(4): E(valu("v_mul_f32", Of[t][r], t0, Of[t][r]))
        E(valu("v_cvt_pk_bf16_f32", Of[t][0], Of[t][0], Of[t][1]), valu("v_cvt_pk_bf16_f32", Of[t][1], Of[t][2], Of[t][3]),
          vstore(Of[t][0:2], vst_, sO, sQo, 32*t, "", "buffer_store_dwordx2"))
    E(salu("s_add_u32", sQo, sQo, 4096), salu("s_add_u32", sB, sB, 1), scmp("s_cmp_lt_u32", sB, NB), raw("s_cbranch_scc1 L_sl_blk", "salu", {"scc"}))
    s7 = S_("slow_next")
    E(label("L_sl_next"), salu("s_add_u32", sH, sH, 1), scmp("s_cmp_lt_u32", sH, 2), raw("s_cbranch_scc1 L_sl_head", "salu", {"scc"}))
    blkp = [s2, s3, s3, s4, s5, s5, s6]
    path2.extend((x, {"J": 0}) for x in [s0, s1] + blkp + blkp + [s7, s1] + blkp + [s7])

def finish():
    if O_.diag:
        a, b = [int(x) for x in O_.diag.split(":")]
        E(wait(vm=0), raw("s_memrealtime s[42:43]", "smem", (), rs(S(42, 2))), wait(lgkm=0), salu("s_mov_b32", S(47), S(42)),
          salu("s_sub_u32", sT0, S(STAMP0 + b), S(STAMP0 + a)), salu("s_lshr_b32", sT0, sT0, 3 if O_.stamps == 1 else 0),
          salu("s_add_u32", sT0, sT0, 7000),
          label("L_spin"), raw("s_memrealtime s[42:43]", "smem", (), rs(S(42, 2))), wait(lgkm=0),
          salu("s_sub_u32", S(42), S(42), S(46)), scmp("s_cmp_lt_u32", S(42), sT0), raw("s_cbranch_scc1 L_spin", "salu", {"scc"}))
    elif O_.stamps:
        E(wait(vm=0), raw("s_memrealtime s[42:43]", "smem", (), rs(S(42, 2))), wait(lgkm=0), salu("s_mov_b32", S(47), S(42)))
        E(salu("s_lshl_b32", sT0, S(2), 2), salu("s_add_u32", sT0, sT0, sW), salu("s_lshl_b32", sT0, sT0, 8))
        E(valu("v_mov_b32", V(1), sT0))
        for k in range(nstamp[0] + 2):
            E(valu("v_mov_b32", V(2), S(46 + k)),
              Inst(f"global_store_dword v1, v2, s[44:45] offset:{4*k}", "vst", rs(V(1), V(2), S(44, 2)), (), data=set()), nop(1))
    if O_.itst:
        E(valu("v_mbcnt_lo_u32_b32", V(2), -1, 0), valu("v_mbcnt_hi_u32_b32", V(2), -1, V(2)), valu("v_lshlrev_b32", V(2), 2, V(2)), valu("v_add_u32", V(1), V(1), V(2)), valu("v_add_u32", V(1), 1 << 20, V(1)),
          Inst("global_store_dword v1, a175, s[44:45]", "vst", rs(V(1), A(175), S(44, 2)), (), data=set()))
    if O_.stamps and not O_.diag:
        E(raw("s_getreg_b32 s42, hwreg(HW_REG_XCC_ID)", "salu", (), rs(S(42))), valu("v_mov_b32", V(1), sT0), valu("v_mov_b32", V(2), S(42)),
          Inst("global_store_dword v1, v2, s[44:45] offset:252", "vst", rs(V(1), V(2), S(44, 2)), (), data=set()))
    E(scmp("s_cmp_eq_u32", sFlag, 0), raw("s_cbranch_scc1 L_end", "salu", {"scc"}), label("L_fast_end"))

def build():
    assert O_.la1 == 3 and O_.dg >= 26
    s = seg("start"); path.append((s, {"J": 0})); startup()
    f = seg("first"); E(raw(".p2align 3", "label"), label("L_first")); iteration(0, "first", [])
    no = seg("N_odd"); E(label("L_N")); iteration(1, None, [dec(), br("s_cbranch_scc1 L_N_exit")])
    ne = seg("N_even"); iteration(0, None, [br("s_branch L_N")])
    nx = seg("N_exit"); E(label("L_N_exit"), scmp("s_cmp_lg_u32", sHead, 0), raw("s_cbranch_scc1 L_N_head1", "salu", {"scc"}))
    def lead(J0, pairs):
        path.append((f, {"J": J0}))
        for k in range(1, 2*pairs): path.append((no if k & 1 else ne, {"J": J0 + k}))
        path.append((nx, {"J": 0}))
    lead(0, O_.qa0)
    s = seg("A_pre"); path.append((s, {"J": 0})); E(stamp_now() if O_.probe == 4 else None, salu("s_mov_b32", sCnt, 7 - O_.qa0))
    loop("A", "Q", 2*O_.qa0, 15 - 2*O_.qa0)
    transition()
    lead(16, 5)
    s = seg("j10"); path.append((s, {"J": 26})); E(label("L_N_head1"), stamp_now() if O_.probe == 4 else None); iteration(0, None, [])
    s = seg("j11"); path.append((s, {"J": 27})); iteration(1, "j11", [])
    s = seg("j12"); path.append((s, {"J": 28})); E(stamp_now()); iteration(0, "j12", [])
    endgame()
    finish()
    if O_.slow: slow_path()
    seg("exit"); E(label("L_end"))
    def trace(): return [(i, mkctx(c)) for sidx, c in path + path2 for i in segs[sidx][1]]
    for rnd in range(5):
        fix = {}
        resolve_and_check(trace(), fix=fix)
        for sg in segs:
            new = []
            for i in sg[1]:
                if i.kind == "wait" and i.m["nvm"] in (None, 63) and i.m["nlg"] in (None, 15): fix[0] = 1; continue
                if id(i) in fix: new.append(nop(fix[id(i)] - 1))
                new.append(i)
            sg[1][:] = new
        if not fix: break
    resolve_and_check(trace(), verbose=True)
    if O_.stamps:
        tr = [i for sidx, c in path for i in segs[sidx][1]]; cuts = [k for k, i in enumerate(tr) if i.kind == "smem" and "s[42:43]" in i.text]
        print("  est between stamps:", [cost_estimate(tr[a:b]) for a, b in zip(cuts, cuts[1:])])
    for name, ins in segs:
        if not name.startswith("slow"): print(f"  seg {name:8s} insts {len(ins):5d} est cycles {cost_estimate(ins):6d} nops {sum(1 for i in ins if i.kind == 'nop')}")

HEAD = """; MHA forward, B=16 H=32 Sq=384 Sk=512 D=128, bf16 in/out.  Generated by the author's own script (gen/gen8.py).
; Softmax: Q is pre-scaled by log2(e)/sqrt(D); the row max of the first 32 keys is subtracted through the MFMA
; C operand; the final row sums are checked (NaN or >= 2^64) and a failing wave redoes its rows with the true
; row max (L_slow).
; @launch grid=(256,1,1) block=(256,1,1) lds=163840
.amdgcn_target "amdgcn-amd-amdhsa--gfx950"
.text
.globl standalone__mha_softmax__near_ridge_kernel
.p2align 8
.type standalone__mha_softmax__near_ridge_kernel,@function
standalone__mha_softmax__near_ridge_kernel:
"""
TAIL = """    s_endpgm
.section .rodata,"a"
.p2align 6
.amdhsa_kernel standalone__mha_softmax__near_ridge_kernel
  .amdhsa_next_free_vgpr 512
  .amdhsa_next_free_sgpr 102
  .amdhsa_accum_offset 256
  .amdhsa_group_segment_fixed_size 0
  .amdhsa_kernarg_size 48
  .amdhsa_user_sgpr_count 2
  .amdhsa_user_sgpr_kernarg_segment_ptr 1
  .amdhsa_system_sgpr_workgroup_id_x 1
.end_amdhsa_kernel
"""
def insert_pads(text):
    import subprocess, re, tempfile, os
    def offsets(npads):
        d = tempfile.mkdtemp(); t = text()
        t = t.replace("L_padret:", "L_padret:\n" + "".join(f"L_pad{k}:\n" for k in range(npads + 1, 40)))
        open(d + "/a.s", "w").write(t)
        subprocess.run(["clang", "-x", "assembler", "-target", "amdgcn-amd-amdhsa", "-mcpu=gfx950", "-c", d + "/a.s", "-o", d + "/a.o"], check=True)
        dis = subprocess.run(["llvm-objdump", "-d", "--mcpu=gfx950", d + "/a.o"], capture_output=True, text=True).stdout
        dis = dis[dis.index("<L_main>:"):]
        ad = [(int(m.group(2), 16), m.group(1)) for m in re.finditer(r"^\s+(\S+).*// ([0-9A-F]{12}):", dis, re.M)]
        flat = [(sg, k) for sg in segs for k in range(len(sg[1]))]
        flat = flat[[i for i, (sg, k) in enumerate(flat) if sg[1][k].text == "L_main:"][0]:]
        o = []; j = 0
        for sg, k in flat:
            x = sg[1][k]
            if x.kind == "label":
                if x.text == "L_fast_end:": break
                if x.text.startswith(".p2align") and ad[j][0] % 8: j += 1
                continue
            assert ad[j][1].startswith(x.text.split()[0][:12]), (ad[j], x.text)
            o.append((ad[j][0] - ad[0][0], sg, k)); j += 1
        return o
    page = 1; pads = []
    while True:
        off = offsets(page - 1)
        cand = [n for n, (a, sg, k) in enumerate(off) if 4096*page <= a <= 4096*page + 56]
        if not cand: break
        def score(n):
            a, sg, k = off[n]; lo = max(0, k - 8); w = sg[1][lo:k + 8]
            return cost_estimate(w[:k - lo] + [raw("pad")] + w[k - lo:]) - cost_estimate(w)
        n = min(cand, key=score); _, sg, k = off[n]
        p = raw(f"s_cbranch_vccz L_pad{page + 4}"); pads.append(p)
        sg[1][k:k] = [label(f"L_pad{page}"), p]
        page += 1
    for i, p in enumerate(pads):
        if i + 1 + 4 >= page: p.text = "s_cbranch_vccz L_padret"
    assert page > 4
    print(f"  {page - 1} page pads")

if __name__ == "__main__":
    out = sys.argv[1]
    for a in sys.argv[2:]:
        k, v = a.split("=")
        setattr(O_, k, type(getattr(O_, k))(v))
    build()
    def text(): return HEAD + "\n".join((i.text if i.kind == "label" else "    " + i.text) for _, ins in segs for i in ins) + "\n" + TAIL
    if O_.pads: insert_pads(text)
    open(out, "w").write(text())
    import subprocess
    r = subprocess.run([sys.executable, "cdna_unwritten_srd_check.py", out], capture_output=True, text=True)
    print("  check:", r.stdout.strip()[-300:], r.stderr.strip()[-300:])
```

```python
import sys, math, struct
from ir import *

class Opt:
    stamps = 0; diag = ""; dq = -1; itst = 0
    late_flags = "sc1"; h0_flags = "sc1"; fin_flags = "sc1"; fq = "nt"; fk = "nt"; fv = "nt"
    n0 = 14
    qa0 = 2
    qpp = 3
    dg = 27
    olate = "036663"
    nsh = 1
    slow = 1
    pause = 0
    gx = 60
    osched = "000000000000"
    ne0 = 36
    dg1 = 27
    dga = 2
    tsched = ""
    waitall = 0
    stag = "22222"
    stagw = "0"
    stagbit = 3
    g10 = 56
    g11 = 56
    npw = 0
    fdepth = 63
    xtra = ""
    pads = 1
    g1late = 1
    vtouch = 0
    g12 = 16
    pvo = "bs2"
    qks = 1
    la0 = 1
    la1 = 3
    wgmap = 0
    probe = 0
    tq = 4
    tstep = 12
    tper = 2
    force = 0
O_ = Opt()

NB = 6
def f32bits(x): return struct.unpack("<I", struct.pack("<f", x))[0]
CSCALE = f32bits(math.log2(math.e) / math.sqrt(128.0))
THRESH = f32bits(2.0 ** 64)
def bf16(x):
    u = f32bits(x); return (u + 0x7fff + ((u >> 16) & 1)) >> 16
C_HI = bf16(math.log2(math.e) / math.sqrt(128.0))
C_LO = bf16(math.log2(math.e) / math.sqrt(128.0) - struct.unpack("<f", struct.pack("<I", C_HI << 16))[0])

def Sreg(b, a): return V(8*b + 4*a, 4)
def Preg(par, b): return V(48 + 24*par + 4*b, 4)
def negM(b): return V(96 + 4*b, 4)
kaddr = [V(120 + s) for s in range(4)]
vaddr = [V(124 + t) for t in range(8)]
vkv = V(132); vsd0 = V(133); vsd1 = V(134); vlin = V(135)
qa = [V(136 + s) for s in range(4)]
ow = V(140)
ovr = V(141)
def Oreg(b, t):
    n = 8*b + t
    return V(144 + 4*n, 4) if n < 28 else A(176 + 4*(n - 28), 4)
def Qreg(b, s): return A(16*b + 4*s, 4)
def F(i): return A(96 + 4*i, 4)
def lacc(b): return A(128 + 4*(b//3), 4)
def sel(b): return A(136 + 4*(b % 3), 4)
X = [A(148 + 4*k, 4) for k in range(7)]
CS = A(164, 10)
sQ, sO = S(12, 4), S(24, 4); sKb, sVb, sVx = S(16, 2), S(22, 2), S(18, 2)
sW = S(28); sM0 = S(30); sStg = S(31); sSide = S(32); sT0 = S(33); sT1 = S(34); sT2 = S(35)
sFlag = S(36); sThr = S(37); sC = S(38, 2); sCmp = S(40, 2); sStamp = S(42, 2); sCnt = S(3); sQd = S(29); sHead = S(20)
STAMP0 = 48

def aK(J): return (("ring", (J - 2) % 4, "K"), ("K", J), True)
def aV(J): return (("ring", J % 4, "V"), ("V", J), True) if J < 31 else (("ring", 2, "K"), ("V", J), True)
def rK(d): return lambda c: aK(c["J"] + d)
def rV(d): return lambda c: aV(c["J"] + d)
def aQ(h, p): return (("stg", p), ("Q", h), False)
def aO(h, p): return (("stg", p), ("O", h), False)
def blk(f, h, b): return [f(h, 4*b + i) for i in range(4)]
def mkctx(c): return lambda r: r(c) if callable(r) else r

segs = []; path = []; path2 = []; cur = None
def seg(name):
    global cur
    cur = []; segs.append([name, cur]); return len(segs) - 1
def E(*xs):
    for x in xs:
        if x is None: continue
        if isinstance(x, (list, tuple)): E(*x)
        else: cur.append(x)
nstamp = [0]
def stamp_now():
    if O_.stamps not in (1, 2): return []
    k = nstamp[0]; nstamp[0] += 1
    op = "s_memtime" if O_.stamps == 1 else "s_memrealtime"
    return [raw(f"{op} {sStamp}", "smem", (), rs(sStamp)), wait(lgkm=0), salu("s_mov_b32", S(STAMP0 + k), sStamp[0])]

MEM = ("dsr", "dsw", "dma", "vld", "vst"); VAL = ("valu", "trans")
class Task:
    def __init__(s, x, lo, hi, preds): s.x, s.lo, s.hi, s.preds, s.gap = x, lo, hi, preds, None
class Sched:
    def __init__(s, mf):
        s.mf = mf; s.n = len(mf); s.g = [[] for _ in mf]; s.t = []
        s.cap = [24 if m.m["big"] else 8 for m in mf]; s.novalu = set()
    def cost(s, x): return 8 if x.kind == "trans" or x.m.get("perm") else 4
    def fits(s, g, x):
        if s.cap[g] < s.cost(x): return False
        if x.kind in MEM and any(y.kind in MEM for y in s.g[g]): return False
        if x.kind in VAL and g in s.novalu: return False
        return True
    def put(s, g, x): s.g[g].append(x); s.cap[g] -= s.cost(x)
    def fix(s, x, g):
        t = Task(x, g, g, []); t.gap = g; s.put(g, x)
        if x.kind in ("dma", "vst", "vld"): s.cap[g] = 0; s.novalu.add(g - 1)
        if x.kind == "barrier": s.cap[g] = 0
        return t
    def add(s, x, lo=0, hi=None, preds=()):
        t = Task(x, max(lo, 0), s.n - 1 if hi is None else min(hi, s.n - 1), [p for p in preds if p[0] is not None]); s.t.append(t); return t
    def seq(s, xs, lo=0, hi=None, after=None, hard=1):
        p = after
        for x in xs: p = s.add(x, lo, hi, [(p, hard, hard)])
        return p
    def sm(s, groups, smax=2.0):
        ex = [(x, lo, hi) for ops, lo, hi in groups for x in ops if x.kind == "trans"]
        sig = smax
        while True:
            pos = []; t = -9.0; ok = True
            for x, lo, hi in ex:
                t = max(lo, t + sig); g = int(t)
                while g < s.n and (not s.fits(g, x) or (pos and g <= pos[-1])): g += 1
                if g > hi - 1: ok = False; break
                pos.append(g); t = max(t, g - 0.5)
            if ok: break
            sig -= 0.05
            assert sig > 0.3, "softmax does not fit"
        k = 0
        for ops, lo, hi in groups:
            e = []
            for x in ops:
                if x.kind == "trans": e.append(s.fix(x, pos[k])); k += 1
                else: s.add(x, lo, min(hi, e[-1].gap + 5), [(e[-1], 1, 1)])
    def run(s):
        for t in reversed(s.t):
            for p, h, so in t.preds:
                if p.gap is None: p.hi = min(p.hi, t.hi - so)
        for t in s.t:
            for p, h, so in t.preds: t.lo = max(t.lo, p.lo + h)
            t.hi = max(t.hi, t.lo)
        left = list(s.t)
        for g in range(s.n):
            while True:
                rdy = [t for t in left if t.lo <= g and all(p.gap is not None and g >= p.gap + h for p, h, so in t.preds)]
                rdy = [t for t in rdy if t.hi <= g or all(g >= p.gap + so for p, h, so in t.preds)]
                rdy.sort(key=lambda t: t.hi)
                pick = next((t for t in rdy if t.hi <= g or s.fits(g, t.x)), None)
                if pick is None: break
                s.put(g, pick.x); pick.gap = g; left.remove(pick)
        assert not left, left[0].x
        s.t = []
    def pour(s, *streams):
        st = [[list(xs), lo] for xs, lo in streams]
        for g in range(s.n):
            again = True
            while again:
                again = False
                for q in st:
                    if q[0] and q[1] <= g and s.fits(g, q[0][0]): s.put(g, q[0].pop(0)); again = True; break
        return [x for q in st for x in q[0]]
    def emit(s):
        for m, g in zip(s.mf, s.g):
            key = lambda x: 3 if x.m.get("last") else (2 if x.kind in VAL else (0 if x.kind in MEM else 1))
            E(m, sorted(g, key=key))

def kread(d, a, s, dst, hi): return ds_read("ds_read_b128", dst, kaddr[s], hi*16384 + a*8192, rK(d))
def vread(d, t, a, dst, hi): return ds_read("ds_read_b64_tr_b16", dst[2*a:2*a+2], vaddr[t], (hi*16384 if hi < 3 else 32768 - 1024) + a*8192, rV(d))
def kv_dmas(d, withV=True, withK=True, kbase=None):
    la = (lambda c: d) if d is not None else (lambda c: O_.la1 if c["J"] >= 16 else O_.la0)
    o = []
    for im in (0, 2048):
        if withV: o.append(gdma(vkv, sVb, im + 1024, lambda c: aV(c["J"] + la(c)), O_.fv))
        key = lambda c: aK(c["J"] + la(c) + 2) if c["J"] + la(c) < 30 else aV(31)
        if withK: o.append(gdma(vkv, kbase or sKb, im, key, O_.fk))
    return o
def m0_next():
    return [salu("s_mov_b32", "m0", sM0), salu("s_add_u32", sM0, sM0, 16384), salu("s_and_b32", sM0, sM0, "0xffff")]
def kv_step(): return valu("v_add_u32", vkv, 8192, vkv)
def q_dma_block(h, b):
    o = [salu("s_add_u32", "m0", sStg, b*4096), salu("s_mov_b32", sSide, h*98304 + b*4096)]
    for i in range(4): o.append(dma(vsd1 if i & 1 else vsd0, sQ, sSide, i*1024, aQ(h, 4*b + i), O_.fq))
    return o
def piecemeal(groups):
    st = []; pre = []
    for grp in groups:
        for x in grp:
            if x.kind in MEM: st.append(pre + [x]); pre = []
            else: pre.append(x)
    if pre: st[-1] += pre
    def more(n):
        o = st[:n]; del st[:n]; return o
    more.left = lambda: len(st)
    return more

def sm_ops(par, b, a):
    s = Sreg(b, a); p = Preg(par, b)
    return [valu("v_exp_f32", s[0], s[0]), valu("v_exp_f32", s[1], s[1]), valu("v_cvt_pk_bf16_f32", p[2*a], s[0], s[1]),
            valu("v_exp_f32", s[2], s[2]), valu("v_exp_f32", s[3], s[3]), valu("v_cvt_pk_bf16_f32", p[2*a+1], s[2], s[3])]
NE_A = 40
def sm_split(par, ne=NE_A):
    st = []
    for a in range(2):
        for b in range(NB): st += [(b, x) for x in sm_ops(par, b, a)]
    k = ne // 2 * 3
    return st[:k], st[k:]
def delay_cvts(xs):
    o = []; pend = []
    for x in xs:
        if x.kind == "trans":
            o.append(x)
            if pend: o.append(pend.pop(0))
        else: pend.append(x)
    return o + pend
def xlane_max(m, t):
    o = []
    for op in ("v_permlane32_swap_b32", "v_permlane16_swap_b32"):
        o += [valu("v_mov_b32", t, m), swap(op, m, t), valu("v_max_f32", m, m, t)]
    return o
def rowmax_ops(b):
    m, t = negM(b)[0], negM(b)[1]; sv = lambda r: V(8*b + r)
    o = [valu("v_max3_f32", m, sv(0), sv(1), sv(2)), valu("v_max3_f32", t, sv(3), sv(4), sv(5)),
         valu("v_max3_f32", m, m, sv(6), sv(7)), valu("v_max_f32", m, m, t)] + xlane_max(m, t)
    o += [valu("v_sub_f32", negM(b)[r], 0, m) for r in (1, 2, 3, 0)]
    return o, [valu("v_pk_add_f32", V(8*b + 2*r, 2), V(8*b + 2*r, 2), negM(b)[0:2]) for r in range(4)]
def scale_frag(x, dst, w, y, pk=True):
    o = []
    if pk:
        for r in range(4): o += [valu("v_lshlrev_b32", w[2*r], 16, x[r]), valu("v_and_b32", w[2*r+1], "0xffff0000", x[r])]
        for r in range(4): o.append(valu("v_pk_mul_f32", w[2*r:2*r+2], w[2*r:2*r+2], sC))
    else:
        for r in range(4):
            o += [valu("v_lshlrev_b32", w[2*r], 16, x[r]), valu("v_and_b32", w[2*r+1], "0xffff0000", x[r]),
                  valu("v_mul_f32", w[2*r], sC[0], w[2*r]), valu("v_mul_f32", w[2*r+1], sC[0], w[2*r+1])]
    if dst.k == "v": return o + [valu("v_cvt_pk_bf16_f32", dst[r], w[2*r], w[2*r+1]) for r in range(4)]
    for r in range(4): o.append(valu("v_cvt_pk_bf16_f32", y[r], w[2*r], w[2*r+1]))
    for r in range(4): o.append(valu("v_accvgpr_write_b32", dst[r], y[r]))
    return o
def chain(b, a, fr, c0, rev):
    return [(s, mfma(Sreg(b, a), fr[s], Qreg(b, s), c0 if n == 0 else Sreg(b, a))) for n, s in enumerate(range(3, -1, -1) if rev and O_.qks else range(4))]
def qk_first(b): return [m for a in range(2) for _, m in chain(b, a, [F(4*a + s) for s in range(4)], 0, a)]
def pv_pair(par, bs, t0, fr, init, sums):
    o = []
    if O_.pvo in ("t", "ts"):
        bs = sorted(bs)
        if 5 in sums and init: sums = []; o += [(None, rowsum(par, 5, init)), (None, rowsum(par, 4, init))]
        for k in range(2):
            for b in (bs if k == 0 or O_.pvo == "t" else bs[::-1]):
                o.append((t0 + k, mfma(Oreg(b, t0 + k), Preg(par, b), fr[k], 0 if init else Oreg(b, t0 + k))))
                if k == 0 and b in sums: o.append((None, rowsum(par, b, init)))
        return o
    for n, b in enumerate(bs):
        for k in ((0, 1) if n % 2 == 0 or O_.pvo == "pp2" else (1, 0)): o.append((t0 + k, mfma(Oreg(b, t0 + k), Preg(par, b), fr[k], 0 if init else Oreg(b, t0 + k))))
        if b in sums: o.insert(len(o) - 1, (None, rowsum(par, b, init)))
    return o
def rowsum(par, b, init=False): return mfma(lacc(b), Preg(par, b), sel(b), 0 if init and b in (0, 5) else lacc(b))

def startup():
    v0, vl, vi, vu, t0, t1, t2 = V(0), V(1), V(2), V(3), V(4), V(5), V(6)
    E(comment("---- setup"),
      raw("s_load_dwordx4 s[4:7], s[0:1], 0", "smem", (), rs(S(4, 4))),
      raw("s_load_dwordx4 s[8:11], s[0:1], 16", "smem", (), rs(S(8, 4))),
      scmp("s_cmp_ge_u32", S(2), 256), raw("s_cbranch_scc1 L_end", "salu", {"scc"}))
    if O_.wgmap == 1:
        E(salu("s_and_b32", sT0, S(2), 7), salu("s_lshr_b32", S(2), S(2), 3), salu("s_lshl_b32", sT0, sT0, 5), salu("s_or_b32", S(2), S(2), sT0))
    if O_.wgmap == 2: E(salu("s_and_b32", S(2), S(2), 7))
    if O_.stamps:
        E(raw("s_load_dwordx2 s[44:45], s[0:1], 40", "smem", (), rs(S(44, 2))),
          raw("s_memrealtime s[46:47]", "smem", (), rs(S(46, 2))))
    E(comment("pull the kernel's own code into L2 (one dword per 128-byte line)"),
      raw("s_getpc_b64 s[40:41]", "salu", (), rs(S(40, 2))), label("L_pc"),
      valu("v_lshlrev_b32", t0, 7, v0), valu("v_min_u32", t1, "L_fast_end-L_pc", t0),
      Inst(f"global_load_dword v7, {t1}, s[40:41]", "vld", rs(t1, S(40, 2)), rs(V(7))),
      valu("v_add_u32", t0, 32768, t0), valu("v_min_u32", t1, "L_fast_end-L_pc", t0),
      Inst(f"global_load_dword v8, {t1}, s[40:41]", "vld", rs(t1, S(40, 2)), rs(V(8))))
    E(valu("v_lshrrev_b32", t1, 6, v0), valu("v_and_b32", vl, 63, v0),
      valu("v_readfirstlane_b32", sW, t1),
      valu("v_and_b32", vi, 15, vl), valu("v_lshrrev_b32", vu, 4, vl),
      valu("v_lshlrev_b32", t0, 1, vu), valu("v_xor_b32", t0, t0, vi), valu("v_lshlrev_b32", t0, 4, t0),
      valu("v_lshl_add_u32", vsd0, vu, 8, t0), valu("v_xor_b32", vsd1, 128, vsd0),
      salu("s_and_b32", sT0, sW, 1), salu("s_lshr_b32", sT1, sW, 1),
      salu("s_lshl_b32", sT2, sT0, 7), salu("s_lshl_b32", sT0, sT0, 10), salu("s_lshl_b32", sT1, sT1, 12),
      salu("s_add_u32", sT0, sT0, sT1),
      valu("v_xor_b32", vkv, sT2, vsd0), valu("v_add_u32", vkv, sT0, vkv),
      salu("s_lshl_b32", sM0, sW, 12), salu("s_add_u32", sM0, sM0, 32768), salu("s_mul_i32", sStg, sW, 24576),
      salu("s_mul_i32", sT0, S(2), 196608), salu("s_add_u32", sT0, sT0, sStg), salu("s_add_u32", sStg, sStg, 65536),
      salu("s_lshl_b32", sT1, S(2), 18),
      salu("s_mov_b32", sQ[2], 98304 + 24576), salu("s_mov_b32", sQ[3], "0x20000"),
      wait(lgkm=0),
      salu("s_add_u32", sKb[0], S(6), sT1), salu("s_addc_u32", sKb[1], S(7), 0),
      salu("s_add_u32", sQ[0], S(4), sT0), salu("s_addc_u32", sQ[1], S(5), 0), salu("s_and_b32", sQ[1], sQ[1], "0xffff"))
    def grp(J, withV=True):
        ops = kv_dmas(J, withV)
        if J == 0: ops = ops[0::2] + ops[1::2]
        return m0_next() + ops + [kv_step()]
    more = piecemeal([grp(-2, False)] + [q_dma_block(0, b) for b in range(NB)] + [grp(-1, False)] + [grp(J) for J in range(O_.la0)])
    n_iss = 0; w = [int(c) for c in O_.stagw]
    if max(w): E(raw(f"s_bfe_u32 {sT2}, s2, {hex(((len(w).bit_length() - 1) << 16) + O_.stagbit)}", "salu", (), rs(sT2) | {"scc"}))
    for k in range(max(w)):
        n = int(O_.stag[k])
        E(more(n), scmp("s_cmp_ge_u32", sT2, min(g for g in range(len(w)) if w[g] > k)), raw(f"s_cbranch_scc0 L_st{k}", "salu", {"scc"}),
          raw("s_waitcnt vmcnt(0)"), label(f"L_st{k}")); n_iss += n
    E(more(min(10, O_.n0) - n_iss))
    if O_.pads: E(raw("s_branch L_main"), raw(".p2align 12", "label"), label("L_main"))
    E(salu("s_add_u32", sVb[0], S(8), sT1), salu("s_addc_u32", sVb[1], S(9), 0),
      (Inst(f"global_load_dword v9, {vsd0}, {sVb} nt", "vld", rs(vsd0, sVb), rs(V(9))) if O_.vtouch else None),
      salu("s_sub_u32", sVb[0], sVb[0], 1024 + 16384), salu("s_subb_u32", sVb[1], sVb[1], 0),
      salu("s_add_u32", sO[0], S(10), sT0), salu("s_addc_u32", sO[1], S(11), 0), salu("s_and_b32", sO[1], sO[1], "0xffff"),
      salu("s_mov_b32", sO[2], 98304 + 24576), salu("s_mov_b32", sO[3], "0x20000"),
      salu("s_add_u32", sVx[0], sVb[0], 1024 + 8192), salu("s_addc_u32", sVx[1], sVb[1], 0),
      salu("s_mov_b32", sC[0], hex(CSCALE)), salu("s_mov_b32", sC[1], hex(CSCALE)),
      salu("s_mov_b32", sThr, hex(THRESH)), salu("s_mov_b32", sFlag, O_.force), salu("s_sub_u32", sQd, sStg, 98304))
    E(valu("v_and_b32", t0, 7, vi), valu("v_lshlrev_b32", t0, 1, t0), valu("v_xor_b32", t0, t0, vu), valu("v_lshlrev_b32", t0, 4, t0),
      valu("v_lshl_add_u32", t2, vi, 8, t0), valu("v_add_u32", qa[0], sStg, t2),
      valu("v_and_b32", t1, 3, vi), valu("v_lshl_add_u32", t0, t1, 8, t0),
      valu("v_lshrrev_b32", t1, 3, vi), valu("v_lshl_add_u32", t0, t1, 11, t0),
      valu("v_bfe_u32", t1, vi, 2, 1), valu("v_lshl_add_u32", t0, t1, 12, t0), valu("v_add_u32", kaddr[0], 32768, t0))
    for s in range(1, 4): E(valu("v_xor_b32", kaddr[s], s << 6, kaddr[0]), valu("v_xor_b32", qa[s], s << 6, qa[0]))
    E(valu("v_lshrrev_b32", t1, 2, vi), valu("v_and_b32", t2, 1, vu), valu("v_lshl_add_u32", t0, t2, 2, t1),
      valu("v_lshlrev_b32", t0, 5, t0), valu("v_lshl_add_u32", t0, t1, 8, t0), valu("v_lshl_add_u32", t0, t2, 12, t0),
      valu("v_lshrrev_b32", t2, 1, vu), valu("v_lshl_add_u32", t0, t2, 11, t0),
      valu("v_and_b32", t1, 3, vi), valu("v_lshl_add_u32", t0, t1, 3, t0), valu("v_add_u32", vaddr[0], 32768 + 1024, t0))
    for t in range(1, 8): E(valu("v_xor_b32", vaddr[t], t << 5, vaddr[0]))
    E(valu("v_mov_b32", t2, "0x3f803f80"))
    for k in range(3):
        E(Inst(f"v_cmp_eq_u32 vcc, {k}, {vi}", "valu", rs(vi), {"vcc"}), nop(1), Inst(f"v_cndmask_b32 {t0}, 0, {t2}, vcc", "valu", rs(t2, "vcc"), rs(t0)),
          [valu("v_accvgpr_write_b32", sel(k)[r], t0) for r in range(4)])
    E(valu("v_lshrrev_b32", t0, 1, vi), valu("v_lshlrev_b32", t1, 1, vu), valu("v_sub_u32", t0, t0, t1),
      valu("v_and_b32", t1, 1, vi), valu("v_lshlrev_b32", t1, 4, t1))
    for k in range(2):
        E(Inst(f"v_cmp_eq_u32 vcc, {k}, {t0}", "valu", rs(t0), {"vcc"}))
        for j, c in enumerate((C_HI, C_LO)):
            E(valu("v_mov_b32", t2, hex(c)), valu("v_lshlrev_b32", t2, t1, t2), Inst(f"v_cndmask_b32 {t2}, 0, {t2}, vcc", "valu", rs(t2, "vcc"), rs(t2)),
              valu("v_accvgpr_write_b32", CS[2 + 4*j + k], t2))
    E([valu("v_accvgpr_write_b32", CS[k], 0) for k in (0, 1, 4, 5, 8, 9)])
    E(valu("v_lshlrev_b32", t0, 3, vl), valu("v_add_u32", ow, sStg, t0),
      valu("v_bfe_u32", t1, vi, 1, 1), valu("v_lshl_add_u32", t0, t1, 2, vu), valu("v_lshlrev_b32", t0, 9, t0),
      valu("v_and_b32", t1, 1, vi), valu("v_lshl_add_u32", t0, t1, 6, t0), valu("v_lshrrev_b32", t1, 2, vi),
      valu("v_lshl_add_u32", t0, t1, 3, t0), valu("v_add_u32", ovr, sStg, t0),
      valu("v_and_b32", t2, 3, vi), valu("v_lshlrev_b32", t0, 5, t2), valu("v_lshl_add_u32", t0, vu, 8, t0),
      valu("v_and_b32", t2, 1, t1), valu("v_lshl_add_u32", t0, t2, 4, t0), valu("v_lshrrev_b32", t2, 1, t1), valu("v_lshl_add_u32", vlin, t2, 7, t0))
    E(more(max(0, O_.n0 - 10)), stamp_now())
    E(comment("---- first K tile"), wait(vm=[aK(0)]), more(2) if O_.npw else None, barrier())
    for a in range(2):
        for s in range(4): E(kread(0, a, s, F(4*a + s), 0))
    if O_.pads:
        E(comment("visit the start of each code page once (wave w: pages w+1, w+5, ..); every stop jumps straight on while vcc = 0"),
          raw("s_mov_b64 vcc, 0"))
        for w in range(3): E(scmp("s_cmp_eq_u32", sW, w), raw(f"s_cbranch_scc1 L_pad{w + 1}", "salu", {"scc"}))
        E(raw("s_branch L_pad4"), label("L_padret"), raw("s_mov_b64 vcc, -1"))
    first, _ = sm_split(0, O_.ne0)
    rawr = lambda s: V(72 + 4*s, 4)
    for b in range(NB):
        E(comment(f"---- start-up block {b}"))
        one = lambda: more(1) if more.left() > 4*O_.g1late*(O_.la0 - 1) else None
        for i in range(4 - (4 if b == 0 and O_.npw else O_.npw), 4): E(wait(vm=[aQ(0, 4*b + i)]), one())
        E(wait(vm=blk(aQ, 0, b) + ([V(9)] if b == 1 else [])), stamp_now() if O_.probe == 2 else None)
        for s in range(4): E(ds_read("ds_read_b128", rawr(s), qa[s], b*4096, blk(aQ, 0, b)))
        for s in range(4):
            E(wait(lgkm=[rawr(s)] + ([F(k) for k in range(8)] if b == 0 else [])))
            E(one() if s in [(0, 1, 2, 3), (1, 2, 3), (1, 3), (2,), ()][O_.npw] else None, scale_frag(rawr(s), Qreg(b, s), V(88, 8), Sreg(b, s & 1)))
        E(qk_first(b))
        if b == NB - 1:
            E(stamp_now() if O_.probe == 2 else None, wait(vm=[aK(1)]), barrier(), stamp_now() if O_.probe == 2 else None)
            for s in range(4): E(kread(1, 0, s, F(s), 1))
        E(rowmax_ops(b), delay_cvts([x for bb, x in first if bb == b]))
    E(wait(vm=0) if O_.waitall == 1 else None, more(99), wait(vm=0) if O_.waitall == 2 else None, salu("s_mov_b32", sSide, 98304), salu("s_mov_b32", sCnt, O_.qa0 - 1), wait(lgkm=[F(s) for s in range(4)]))
    if O_.itst: E(salu("s_mov_b32", S(5), 0))
    E(stamp_now())

def o_read(key, p, dst):
    return [ds_read("ds_read_b64_tr_b16", dst[2*hi:2*hi + 2], ovr, (p >> 2)*4096 + (p & 3)*128 + hi*32, key) for hi in range(2)]
def pv_mfmas(par, frags, sums_first=False, init=False):
    mf = [rowsum(par, b) for b in range(NB)] if sums_first else []; st = []
    for h in range(4):
        st.append(len(mf))
        sums = [] if sums_first else [(0, 1), (5, 4), (2,), (3,)][h]
        mf += [m for _, m in pv_pair(par, range(NB) if h % 2 == 0 else range(NB - 1, -1, -1), 2*h, frags[2*h:2*h + 2], init, sums)]
    return mf, st
def late_pieces(k):
    cnt = [int(c, 16) for c in O_.olate]; ne = sum(map(int, O_.osched)); assert sum(cnt) == 24 - ne and sum(cnt[:5]) >= min(12, 24 - ne)
    return (list(range(max(12, ne), 24)) + list(range(ne, 12)))[sum(cnt[:k]):sum(cnt[:k + 1])]

def iteration(par, side, ctl):
    mf = [m for a in range(2) for b in range(NB) for _, m in chain(b, a, [F(4*a + s) for s in range(4)], negM(b), b & 1)]
    pv, pst = pv_mfmas(par, [F(t) for t in range(8)], init=side in ("first", "first1"))
    mf += pv; pst = [48 + x for x in pst]
    sc = Sched(mf)
    for x in ctl: sc.fix(x, 101)
    sc.cap[101] = 0 if ctl else sc.cap[101]
    d0 = O_.dga if side == "Q" else (O_.dg if side in (None, "first") else O_.dg1)
    for s in range(4): tk = sc.fix(kread(1, 1, s, F(4 + s), 1 - par), [1, 6, 11, 13][s])
    groups = [(O_.la0 if side in (None, "first", "Q") else 3, d0)]
    if O_.pause: groups = {"first1": [], "M": [(2, 2)], "j10": [(2, 2), (3, O_.gx)]}.get(side, groups)
    if side == "j12": groups = []
    for n_, (la, g0) in enumerate(groups):
        hi = 99 if n_ + 1 == len(groups) else groups[n_ + 1][1] - 3
        mm = m0_next(); tm = sc.fix(mm[0], g0 - 2); tm = sc.seq(mm[1:], 0, hi, tm)
        for k, x in enumerate(kv_dmas(la, kbase=sVx if side == "j11" else None)): td = sc.fix(x, g0 + 5*k)
        sc.add(kv_step(), 0, hi, [(td, 1, 1)])
    sg = [56, 68, 80, 92] if d0 < 36 else ([66, 76, 86, 95] if d0 < 48 else [30, 40, 52, 62])
    tb2 = None
    if side == "first":
        sc.fix(wait(vm=[rV(0)], lgkm=0), 23); tb = sc.fix(barrier(), 23)
        sc.fix(wait(vm=[rK(2)]), 72); tb2 = sc.fix(barrier(), 72)
    else:
        sc.fix(wait(vm=[rV(0), rK(2)], lgkm=0), 23); tb = sc.fix(barrier(), 23)
    if O_.itst:
        for y in [raw("s_memrealtime s[42:43]", "smem", (), rs(S(42, 2))), wait(lgkm=0), raw("s_lshl_b64 exec, 1, s5"),
                  Inst("v_accvgpr_write_b32 a175, s42", "valu", rs(S(42)), rs(A(175))), raw("s_mov_b64 exec, -1"), salu("s_add_u32", S(5), S(5), 1)]:
            y.m["last"] = True; sc.put(23, y)
    if side == "Q" and par == 0 and O_.qpp:
        n = O_.qpp
        sc.fix(salu("s_add_u32", "m0", sSide, sQd), sg[0] - 2)
        for k in range(n): t = sc.fix(dma(vsd1 if k & 1 else vsd0, sQ, sSide, k*1024, (lambda k: lambda c: aQ(1, n*(c["J"]//2 - O_.qa0) + k))(k), O_.fq), sg[k])
        sc.add(salu("s_add_u32", sSide, sSide, 1024*n), 0, 99, [(t, 1, 1)])
        if n & 1:
            for r in (vsd0, vsd1): sc.add(valu("v_xor_b32", r, 128, r), 0, 99, [(t, 1, 1)])
    if side in ("j10", "j11", "j12"):
        ps = late_pieces(int(side[2])); g0 = [O_.g10, O_.g11, O_.g12][int(side[2])]
        base = t = None
        for i, p in enumerate(ps):
            g = g0 + (96 - g0)*i//max(1, len(ps) - 1)
            while g in (22, 23, 24) or sc.cap[g] < 8 or sc.cap[g - 1] == 0 or sc.cap[g + 1] == 0: g += 1
            t = sc.seq(o_read(aO(0, p), p, X[i]), 0, g - 8, t); sc.add(wait(lgkm=[X[i]]), 0, g - 1, [(t, 1, 6)])
            if base is None or not 0 <= p - base < 4: base = p; sc.fix(salu("s_mov_b32", sSide, p*1024), g - 1)
            sc.fix(vstore(X[i], vlin, sO, sSide, (p - base)*1024, O_.late_flags), g)
    tstart = [pst[t//2] for t in range(8)]
    p = tb
    for t in range(8):
        for a in range(2): p = sc.add(vread(0, t, a, F(t), par), 24 if t < 4 else 48, None, [(p, 1, 1)])
        if t in (1, 3): sc.add(wait(lgkm=[F(t - 1), F(t)]), 0, tstart[t - 1] - 1, [(p, 1, 8)])
    tv = p
    sc.add(wait(lgkm=[F(4), F(5), F(6), F(7)]), 0, tstart[4] - 1, [(p, 1, 8)])
    for s in range(4): p = sc.add(kread(2, 0, s, F(s), par), tstart[4], None, [(p, 1, 1), (tb2, 1, 1)])
    sc.add(wait(lgkm=[F(s) for s in range(4)]), 0, 100, [(p, 1, 8)])
    if par == 0: sc.seq([valu("v_xor_b32", r, 32768, r) for r in kaddr], 24, tstart[4] - 1, hard=0)
    if par == 0:
        for t, r in enumerate(vaddr): sc.add(valu("v_xor_b32", r, 32768, r), 0, 22 if t < 4 else 46)
    if side in ("first", "first1"):
        tail = sm_split(0, O_.ne0)[1]
        sc.sm([([x for bb, x in tail if bb == b], 0, 23 + 4*b) for b in range(NB) if any(bb == b for bb, _ in tail)]
              + [([x for _, x in sm_split(1)[0]], 24, 100)])
    else:
        sc.sm([([x for _, x in sm_split(par)[1]], 0, 30)], 2.4)
        sc.sm([([x for _, x in sm_split(1 - par)[0]], 24, 100)])
    sc.run()
    if O_.xtra and side in (None, "Q", "first"):
        xk, xn = O_.xtra[0], int(O_.xtra[1:])
        mk = {"c": lambda i: Inst(f"v_cvt_pk_bf16_f32 v142, v{144 + 2*i}, v{145 + 2*i}", "valu"),
              "e": lambda i: Inst(f"v_exp_f32 v142, v{144 + 5*i}", "trans"),
              "x": lambda i: Inst(f"v_xor_b32 v142, 32768, v{120 + i % 12}", "valu"),
              "r": lambda i: Inst(f"ds_read_b128 {X[6]}, {kaddr[i % 4]} offset:{8192*(i % 4)}", "dsr"),
              "t": lambda i: Inst(f"ds_read_b64_tr_b16 {X[6][0:2]}, {vaddr[i % 8]} offset:{8192*(i % 4)}", "dsr")}[xk]
        left = sc.pour(([mk(i) for i in range(xn)], 0)); assert not left, len(left)
    sc.emit()

def br(text): return raw(text, "salu", {"scc"}, (), last=True)
def dec():
    x = salu("s_sub_u32", sCnt, sCnt, 1); x.m["last"] = True; return x
def loop(name, side, J0, n_iter):
    e = seg(name + "_even"); E(raw(".p2align 3", "label"), label(f"L_{name}"))
    if n_iter & 1:
        iteration(0, side, [dec(), br(f"s_cbranch_scc1 L_{name}_exit")])
        o = seg(name + "_odd"); iteration(1, side, [br(f"s_branch L_{name}")]); E(label(f"L_{name}_exit"))
    else:
        iteration(0, side, [])
        o = seg(name + "_odd"); iteration(1, side, [dec(), br(f"s_cbranch_scc0 L_{name}")])
    for k in range(n_iter): path.append((o if k & 1 else e, {"J": J0 + k}))

def l_ops(h, b0, r, t1):
    o = [valu("v_accvgpr_read_b32", r[k], lacc(b0)[k]) for k in range(4)]
    o += [valu("v_add_f32", t1, r[0], r[1]), valu("v_add_f32", t1, t1, r[2]), valu("v_add_f32", t1, t1, r[3])]
    o += [valu("v_rcp_f32", r[k], r[k]) for k in range(4)]
    return o
def l_flag(h, t1):
    return [Inst(f"v_cmp_nlt_f32 {sCmp}, {t1}, {sThr}", "valu", rs(t1, sThr), rs(sCmp)), nop(0),
            scmp("s_cmp_lg_u64", sCmp, 0), salu("s_cselect_b32", sT0, 1 << h, 0), salu("s_or_b32", sFlag, sFlag, sT0)]
def l_bcast(b, r, dst):
    o = [valu("v_mov_b64_dpp", dst[2*k:2*k + 2], r[2*k:2*k + 2], mods=f"row_newbcast:{b % 3} row_mask:0xf bank_mask:0xf") for k in range(2)]
    for x in o: x.m["dpp"] = True
    return o
def epi_half(h, b, th, rl, tmp, y):
    r0 = Oreg(b, 4*th); w = V(r0.i, 16) if r0.k == "v" else tmp; o = []
    if r0.k == "a": o += [valu("v_accvgpr_read_b32", w[i], A(r0.i + i)) for i in range(16)]
    o += [valu("v_pk_mul_f32", w[2*i:2*i + 2], w[2*i:2*i + 2], rl[2*(i & 1):2*(i & 1) + 2]) for i in range(8)]
    o += [valu("v_cvt_pk_bf16_f32", y[2*r + k], w[8*k + r], w[8*k + 4 + r]) for r in range(4) for k in range(2)]
    o += [ds_write2st64(ow, y[4*k:4*k + 2], y[4*k + 2:4*k + 4], 8*b + 4*th + 2*k, 8*b + 4*th + 2*k + 1, blk(aO, h, b)) for k in range(2)]
    return o

def transition():
    s = seg("trans"); path.append((s, {"J": 15}))
    E(stamp_now(), comment("---- head 0: last PV; switch to head 1"))
    vf = [Qreg(4 + t//4, t % 4) for t in range(8)]
    NSH = O_.nsh
    def rawr(b, n): return V(16 + 4*n, 4) if 4*b + n < NSH else Qreg(b, n)
    def qrd(b): return [ds_read("ds_read_b128", rawr(b, n), qa[n], b*4096, blk(aQ, 1, b)) for n in range(4)]
    rc = [negM(4), negM(5)]
    rl = V(72, 4); y = V(76, 8)
    def pm(f):
        q = Qreg(f//4, f % 4); d = V(76 + 8*(f & 1), 8); t = V(92, 4)
        mf = [mfma(d[0:4], CS[2:6], q, 0), mfma(d[0:4], CS[6:10], q, d[0:4]), mfma(d[4:8], CS[0:4], q, 0), mfma(d[4:8], CS[4:8], q, d[4:8])]
        fl = []
        for hh in range(2):
            fl += [valu("v_cvt_pk_bf16_f32", t[2*hh + k], d[4*hh + 2*k], d[4*hh + 2*k + 1]) for k in range(2)]
            fl += [valu("v_accvgpr_write_b32", q[2*hh + k], t[2*hh + k]) for k in range(2)]
        return mf, fl
    npre = O_.qpp*(8 - O_.qa0); assert npre >= 8
    if npre & 1: E(valu("v_xor_b32", vsd0, 128, vsd0), valu("v_xor_b32", vsd1, 128, vsd1))
    more = piecemeal([[x for k, x in enumerate(q_dma_block(1, b)) if k < 2 or 4*b + k - 2 >= npre] for b in range(npre//4, NB)]
                     + [m0_next() + kv_dmas(d) + [kv_step()] for d in range(O_.la0, O_.la1 + 1)])
    E(wait(vm=[rV(0), rK(2)] + blk(aQ, 1, 0)), barrier())
    vr = [vread(0, t, a, vf[t], 1) for t in range(8) for a in range(2)]
    E(vr[:4], delay_cvts([x for _, x in sm_split(1)[1]]))
    pv, pst = pv_mfmas(1, vf, True)
    sc = Sched(pv)
    g = 8
    for grp in more(O_.tq):
        for i, x in enumerate(grp):
            if x.kind not in MEM: sc.fix(x, g - 3 if len(grp) - i > 3 else g - 2)
            else: sc.fix(x, g); g += O_.tstep
    sc.add(wait(lgkm=vf[:2]), 4, pst[0] - 1)
    q0 = qrd(0)
    p = sc.seq(q0[:NSH], 0); wq = sc.add(wait(lgkm=[rawr(0, NSH - 1)]), 0, 10, [(p, 1, 6)])
    p = sc.seq(vr[4:8], 0, None, p); sc.add(wait(lgkm=vf[2:4]), 0, pst[1] - 1, [(p, 1, 6)])
    p = sc.seq(vr[8:], 0, None, p); sc.add(wait(lgkm=vf[4:]), 0, pst[2] - 1, [(p, 1, 6)])
    p = sc.seq([kread(1, 1, k, F(4 + k), 0) for k in range(4)] + q0[NSH:] + [wait(vm=blk(aQ, 1, 1))] + qrd(1), 24, 46, p)
    sc.fix(wait(lgkm=0), 53); sc.fix(barrier(), 53)
    sc.run()
    lv = l_ops(0, 0, rc[0], V(60)) + l_ops(0, 3, rc[1], V(61)) + [valu("v_add_f32", V(60), V(60), V(61))]; ls = l_flag(0, V(60))
    st = []
    for n in range(NSH): st += scale_frag(rawr(0, n), Qreg(0, n), V(0, 8), V(8 + 4*(n & 1), 4), pk=False)
    rest = sc.pour((lv, 10), (st, wq.gap + 1)); sc.emit(); E(rest); rest = []
    def osite(k):
        c = [int(x) for x in O_.osched] + [0]; p0 = sum(c[:k]); o = []
        if c[k]:
            o += [salu("s_mov_b32", sT1, p0*1024), wait(lgkm=[X[(p0 + i) % 4] for i in range(c[k])])]
            o += [vstore(X[(p0 + i) % 4], vlin, sO, sT1, i*1024, O_.late_flags) for i in range(c[k])]
        p1 = p0 + c[k]; assert (p1 + c[k + 1] + 3)//4 <= (k + 1)//2 or not c[k + 1]
        return o + [o_read(aO(0, p), p, X[p % 4]) for p in range(p1, p1 + c[k + 1])]
    tn = lambda k: int(O_.tsched[k]) if O_.tsched else O_.tper
    first = sm_split(0, O_.ne0)[0]
    def finish(b): return rowmax_ops(b)[1] + delay_cvts([x for bb, x in first if bb == b])
    for b in range(NB):
        E(comment(f"---- switch block {b}"), stamp_now() if O_.probe == 1 else None)
        fs = range(max(NSH, 4*b + 1), min(4*b + 5, 4*NB))
        mf = []; fl = []
        for f in fs:
            m, x = pm(f); mf += m; fl.append(x)
        qk = qk_first(b)
        if b == NB - 1: qk = [qk[k] for k in (0, 1, 2)] + [m for _, m in chain(b, 1, [F(4 + s_) for s_ in range(4)], 0, False)][:3] + [qk[3]]; \
                        qk.append(mfma(Sreg(b, 1), F(7), Qreg(b, 3), Sreg(b, 1)))
        sc = Sched(mf + qk)
        for k, x in enumerate(fl):
            for j, v in enumerate(x): sc.put(4*(k + 1) + j//2, v)
        if 1 <= b < NB - 1:
            sc.put(0, wait(vm=blk(aQ, 1, b + 1)))
            for n, x in enumerate(qrd(b + 1)): sc.put(1 + n, x)
            sc.put(11, wait(lgkm=[Qreg(b + 1, n) for n in range(4)]))
        rest = sc.pour((rowmax_ops(b - 1)[0] if b else rest, 0)); sc.emit(); E(rest, ls if b == 0 else None)
        if b == NB - 1: E([kread(2, 0, s_, F(s_), 1) for s_ in range(4)])
        E(l_bcast(b, rc[b//3], rl), epi_half(0, b, 0, rl, V(176, 16), y), more(tn(2*b)), osite(2*b), finish(b - 1) if b else None,
          epi_half(0, b, 1, rl, V(192, 16), y), more(tn(2*b + 1)), osite(2*b + 1))
    assert more.left() == 0
    E(rowmax_ops(NB - 1)[0], finish(NB - 1))
    E(salu("s_mov_b32", sCnt, 4), wait(lgkm=[F(s_) for s_ in range(4)]))
    E(stamp_now())

def endgame():
    s = seg("end"); path.append((s, {"J": 29}))
    E(stamp_now())
    carry = []
    for ps, H in enumerate(([3, 4, 5], [0, 1, 2])):
        E(comment(f"---- pass {ps}"))
        subs = [("Q", 1, 0), ("Q", 1, 1), ("P", 0, 0), ("P", 0, 1), ("Q", 2, 0), ("Q", 2, 1), ("P", 1, 0), ("P", 1, 1), ("P", 2, 0), ("P", 2, 1)]
        FA, FB = [F(k) for k in range(4)], [F(4 + k) for k in range(4)]
        G = [[Qreg(3 + n, k) for k in range(4)] for n in range(3)]; Hh = [[A(176 + 16*n + 4*k, 4) for k in range(4)] for n in range(5)]
        fr = [FA, FB, FA, FB, FA, FB, FA] + G if ps == 0 else [FA, FB] + Hh + G
        mf = []; use = []; cend = {}; cstart = {}; pstart = {}; bstart = {}
        for i, (kind, d, x) in enumerate(subs):
            u = {}
            if kind == "Q":
                for n, b in enumerate(H):
                    cstart[(d, b, x)] = len(mf)
                    for s_, m in chain(b, x, fr[i], negM(b), n & 1): u.setdefault(s_, []).append(len(mf)); mf.append(m)
                    cend[(d, b, x)] = len(mf) - 1
            elif d == 2:
                if x == 0:
                    u2 = {}
                    for n, b in enumerate(H):
                        bstart[b] = len(mf); mf.append(rowsum(1, b))
                        for t in range(8):
                            (u if t < 4 else u2).setdefault(t & 3, []).append(len(mf))
                            mf.append(mfma(Oreg(b, t), Preg(1, b), fr[i + (t >> 2)][t & 3], Oreg(b, t)))
                else: u = u2
            else:
                par = (d + 1) & 1
                if x == 0: pstart[d] = len(mf)
                for hh in range(2):
                    for t, m in pv_pair(par, H if hh == 0 else H[::-1], 4*x + 2*hh, fr[i][2*hh:2*hh + 2], False, H[2*x + hh:2*x + hh + 1]):
                        if t is not None: u.setdefault(t & 3, []).append(len(mf))
                        mf.append(m)
            use.append(u)
        sc = Sched(mf); bar = {}
        if ps == 0:
            for d, g, keys in ((0, 9, [rV(0), rK(2)]), (1, use[4][1][-1], [rV(1), rV(2)])):
                if O_.probe == 3:
                    for y in stamp_now(): sc.put(g, y)
                sc.fix(wait(vm=keys), g)
                if O_.probe == 3:
                    for y in stamp_now(): sc.put(g, y)
                bar[d] = bar[2] = sc.fix(barrier(), g)
                if O_.probe == 3:
                    for y in stamp_now(): sc.put(g, y)
        pcs = [(0, q) for q in late_pieces(3) + late_pieces(4)] if ps == 0 else [(0, q) for q in late_pieces(5)] + carry
        taken = {t.gap + k for t in bar.values() for k in (-1, 0, 1)}
        prev_st = [None]*4; pst = None; base = None
        for i, (h, q) in enumerate(pcs):
            g = 12 + (len(mf) - 16)*i//max(1, len(pcs) - 1) if ps == 0 else 10 + (len(mf) - 14)*i//len(pcs)
            while g in taken or g - 1 in taken: g += 1
            off = h*98304 + q*1024
            if base is None or not 0 <= off - base < 4096:
                base = off; sc.add(salu("s_mov_b32", sSide, base), 0, g - 1, [(pst, 1, 1)])
            r = sc.seq(o_read(aO(h, q), q, X[i & 3]), g - 30, g - 8, prev_st[i & 3])
            sc.add(wait(lgkm=[X[i & 3]]), 0, g - 1, [(r, 1, 7)])
            pst = prev_st[i & 3] = sc.fix(vstore(X[i & 3], vlin, sO, sSide, off - base, O_.h0_flags if h else O_.late_flags), g)
        prev = None
        for i, (kind, d, x) in enumerate(subs):
            if i == 0 or (ps == 1 and (i == 1 or i >= 7)): continue
            tight = ps == 0 and i < 7
            for k in range(4):
                lo = (use[i - 2][k][-1] if i >= 2 else 0) if tight else (cend[(2, 3 + i - 7, 1)] if ps == 0 else 0)
                rds = [kread(d, x, k, fr[i][k], d - 1)] if kind == "Q" else [vread(d, 4*x + k, a, fr[i][k], d + 1) for a in range(2)]
                bp = bar.get(d if kind == "P" else (0 if d == 2 else None))
                for r in rds: prev = sc.add(r, lo, None, [(prev, 1, 1), (bp, 1, 1)])
                if tight and kind == "P" and k & 1: sc.add(wait(lgkm=fr[i][k - 1:k + 1]), 0, min(use[i][k - 1][0], use[i][k][0]) - 1, [(prev, 1, 6)])
            if not (tight and kind == "P"): sc.add(wait(lgkm=fr[i]), 0, use[i][0][0] - 1, [(prev, 1, 6)])
        if ps == 0:
            for a in range(2):
                for k in range(4): prev = sc.add(kread(1, a, k, F(4*a + k), 0), use[6][k][-1], None, [(prev, 1, 1)])
        grp = [([x for bb, x in sm_split(1)[1] if bb == b], 0, cstart[(1, b, 1)] - 1) for b in H]
        for a in range(2):
            for k, b in enumerate(H): grp.append((sm_ops(0, b, a), cend[(1, b, a)] + 4, min(pstart[1] - 2 + 2*k, cstart[(2, b, a)] - 1)))
        sc.sm(grp)
        order = [(H[0], 0), (H[1], 0), (H[0], 1), (H[2], 0), (H[1], 1), (H[2], 1)]
        sc.sm([(sm_ops(1, b, a), cend[(2, b, a)] + 4, bstart[b] - 2) for b, a in order], 2.4)
        sc.run()
        rc, rl, t1 = negM(H[0]), negM(H[1]), negM(H[2])[0]
        rest = sc.pour((l_ops(1, H[0], rc, t1), bstart[H[2]] + 4)); sc.emit()
        E(rest, l_flag(1, t1), stamp_now(), comment("---- epilogue"))
        dsts = [X[:4], [F(4 + i) for i in range(4)]]
        pend = []
        for k, b in enumerate(H):
            E(l_bcast(b, rc, rl))
            for th in range(2):
                ep = epi_half(1, b, th, rl, V(24, 16), V(40, 8))
                E(ep)
                E(pend[:2]); del pend[:2]
            if ps == 0 and k > 0: carry += [(1, 4*b + i) for i in range(4)]; continue
            d_ = dsts[k & 1]
            E([o_read(aO(1, 4*b + i), 4*b + i, d_[i]) for i in range(4)])
            sts = [vstore(d_[i], vlin, sO, sSide, i*1024, O_.fin_flags if ps else O_.h0_flags) for i in range(4)]
            if ps and O_.fdepth < 63: sts = [[wait(vm=O_.fdepth - 1), x] for x in sts]
            pre = [salu("s_mov_b32", sSide, 98304 + b*4096), wait(lgkm=d_)]
            pend = [pre + [sts[0]], None, sts[1], None, sts[2], None, sts[3]] if ps == 0 else [pre + [sts[0]], sts[1], sts[2], sts[3]]
        E(pend, wait(lgkm=0), stamp_now())

def slow_path():
    sH, sB, sI, sKo, sQo = S(4), S(5), S(6), S(7), S(8)
    Qf = [V(4*s, 4) for s in range(4)]; Kf = [V(16 + 4*i, 4) for i in range(8)]; St = [V(48, 4), V(52, 4)]; Pf = V(56, 4)
    nm = V(60, 4); Vf = V(64, 4); Of = [V(68 + 4*t, 4) for t in range(8)]; L = V(100, 4); w = V(104, 8)
    ones = V(120, 4)
    vrow, vk, vv, vtr, vst_, t0, t1 = V(112), V(113), V(114), V(115), V(116), V(117), V(118)
    def S_(name, J=0):
        s = seg(name); return s
    s0 = S_("slow0")
    E(comment("---- fallback: a row sum left the safe range, redo this wave's rows with the true row max"),
      label("L_slow"), wait(vm=0, lgkm=0),
      valu("v_mbcnt_lo_u32_b32", t0, -1, 0), valu("v_mbcnt_hi_u32_b32", t0, -1, t0), valu("v_lshlrev_b32", vlin, 4, t0),
      [valu("v_mov_b32", ones[r], "0x3f803f80") for r in range(4)],
      valu("v_bfe_u32", t0, vlin, 4, 4), valu("v_lshrrev_b32", t1, 8, vlin),
      valu("v_lshlrev_b32", vrow, 8, t0), valu("v_lshl_add_u32", vst_, t1, 3, vrow), valu("v_lshl_add_u32", vrow, t1, 4, vrow),
      valu("v_lshrrev_b32", vtr, 2, t0), valu("v_lshl_add_u32", vtr, t1, 2, vtr), valu("v_lshlrev_b32", vtr, 8, vtr),
      valu("v_and_b32", t0, 3, t0), valu("v_lshl_add_u32", vtr, t0, 3, vtr), valu("v_add_u32", vtr, sStg, vtr),
      salu("s_mov_b32", sH, 0))
    s1 = S_("slow_head")
    E(label("L_sl_head"), salu("s_lshr_b32", sT0, sFlag, sH), salu("s_and_b32", sT0, sT0, 1), raw("s_cbranch_scc0 L_sl_next", "salu", {"scc"}),
      salu("s_lshl_b32", sKo, sH, 17), salu("s_mul_i32", sQo, sH, 98304), salu("s_mov_b32", sB, 0))
    s2 = S_("slow_blk")
    E(label("L_sl_blk"))
    for s in range(4): E(vload(Kf[s], vrow, sQ, sQo, 64*s))
    E(wait(vm=0))
    for s in range(4): E(scale_frag(Kf[s], Qf[s], w, None))
    E(valu("v_mov_b32", nm[0], "0xff800000"), valu("v_add_u32", vk, sKo, vrow), salu("s_mov_b32", sI, 32))
    s3 = S_("slow_p1")
    E(label("L_sl_p1"))
    for s in range(4): E(gload(Kf[s], vk, sKb, 64*s))
    E(valu("v_add_u32", vk, 4096, vk), wait(vm=0))
    for s in range(4): E(mfma(St[0], Kf[s], Qf[s], 0 if s == 0 else St[0]))
    E(salu("s_sub_u32", sI, sI, 1), scmp("s_cmp_lg_u32", sI, 0), nop(7),
      valu("v_max3_f32", nm[0], nm[0], St[0][0], St[0][1]), valu("v_max3_f32", nm[0], nm[0], St[0][2], St[0][3]),
      raw("s_cbranch_scc1 L_sl_p1", "salu", {"scc"}))
    s4 = S_("slow_mid")
    E(xlane_max(nm[0], nm[1]), [valu("v_sub_f32", nm[r], 0, nm[0]) for r in (1, 2, 3, 0)])
    for r in range(36): E(valu("v_mov_b32", V(68 + r), 0))
    E(valu("v_add_u32", vk, sKo, vrow), valu("v_add_u32", vv, sKo, vlin), valu("v_add_u32", vv, 1024 + 16384, vv), salu("s_mov_b32", sI, 16))
    s5 = S_("slow_p2")
    E(label("L_sl_p2"))
    key = (("stg", "slow"), ("Vs",), False)
    for half in range(2):
        E(salu("s_add_u32", "m0", sStg, 4096*half))
        for s in range(4): E(gload(Kf[4*half + s], vk, sKb, 64*s))
        for k in range(4): E(gdma(vv, sVb, 1024*k, key, ""))
        E(valu("v_add_u32", vk, 4096, vk), valu("v_add_u32", vv, 4096, vv))
    E(wait(vm=0))
    for a in range(2):
        for s in range(4): E(mfma(St[a], Kf[4*a + s], Qf[s], nm if s == 0 else St[a]))
    E(nop(7))
    for r in range(8): E(valu("v_exp_f32", V(48 + r), V(48 + r)))
    for r in range(4): E(valu("v_cvt_pk_bf16_f32", Pf[r], V(48 + 2*r), V(49 + 2*r)))
    E(mfma(L, ones, Pf, L))
    for t in range(8):
        for a in range(2): E(ds_read("ds_read_b64_tr_b16", Vf[2*a:2*a + 2], vtr, a*4096 + 32*t, key))
        E(wait(lgkm=0), mfma(Of[t], Vf, Pf, Of[t]), nop(1))
    E(salu("s_sub_u32", sI, sI, 1), scmp("s_cmp_lg_u32", sI, 0), raw("s_cbranch_scc1 L_sl_p2", "salu", {"scc"}))
    s6 = S_("slow_epi")
    E(nop(7), valu("v_rcp_f32", t0, L[0]), nop(0))
    for t in range(8):
        for r in range(4): E(valu("v_mul_f32", Of[t][r], t0, Of[t][r]))
        E(valu("v_cvt_pk_bf16_f32", Of[t][0], Of[t][0], Of[t][1]), valu("v_cvt_pk_bf16_f32", Of[t][1], Of[t][2], Of[t][3]),
          vstore(Of[t][0:2], vst_, sO, sQo, 32*t, "", "buffer_store_dwordx2"))
    E(salu("s_add_u32", sQo, sQo, 4096), salu("s_add_u32", sB, sB, 1), scmp("s_cmp_lt_u32", sB, NB), raw("s_cbranch_scc1 L_sl_blk", "salu", {"scc"}))
    s7 = S_("slow_next")
    E(label("L_sl_next"), salu("s_add_u32", sH, sH, 1), scmp("s_cmp_lt_u32", sH, 2), raw("s_cbranch_scc1 L_sl_head", "salu", {"scc"}))
    blkp = [s2, s3, s3, s4, s5, s5, s6]
    path2.extend((x, {"J": 0}) for x in [s0, s1] + blkp + blkp + [s7, s1] + blkp + [s7])

def finish():
    if O_.diag:
        a, b = [int(x) for x in O_.diag.split(":")]
        E(wait(vm=0), raw("s_memrealtime s[42:43]", "smem", (), rs(S(42, 2))), wait(lgkm=0), salu("s_mov_b32", S(47), S(42)),
          salu("s_sub_u32", sT0, S(STAMP0 + b), S(STAMP0 + a)), salu("s_lshr_b32", sT0, sT0, 3 if O_.stamps == 1 else 0),
          salu("s_add_u32", sT0, sT0, 7000),
          label("L_spin"), raw("s_memrealtime s[42:43]", "smem", (), rs(S(42, 2))), wait(lgkm=0),
          salu("s_sub_u32", S(42), S(42), S(46)), scmp("s_cmp_lt_u32", S(42), sT0), raw("s_cbranch_scc1 L_spin", "salu", {"scc"}))
    elif O_.stamps:
        E(wait(vm=0), raw("s_memrealtime s[42:43]", "smem", (), rs(S(42, 2))), wait(lgkm=0), salu("s_mov_b32", S(47), S(42)))
        E(salu("s_lshl_b32", sT0, S(2), 2), salu("s_add_u32", sT0, sT0, sW), salu("s_lshl_b32", sT0, sT0, 8))
        E(valu("v_mov_b32", V(1), sT0))
        for k in range(nstamp[0] + 2):
            E(valu("v_mov_b32", V(2), S(46 + k)),
              Inst(f"global_store_dword v1, v2, s[44:45] offset:{4*k}", "vst", rs(V(1), V(2), S(44, 2)), (), data=set()), nop(1))
    if O_.itst:
        E(valu("v_mbcnt_lo_u32_b32", V(2), -1, 0), valu("v_mbcnt_hi_u32_b32", V(2), -1, V(2)), valu("v_lshlrev_b32", V(2), 2, V(2)), valu("v_add_u32", V(1), V(1), V(2)), valu("v_add_u32", V(1), 1 << 20, V(1)),
          Inst("global_store_dword v1, a175, s[44:45]", "vst", rs(V(1), A(175), S(44, 2)), (), data=set()))
    if O_.stamps and not O_.diag:
        E(raw("s_getreg_b32 s42, hwreg(HW_REG_XCC_ID)", "salu", (), rs(S(42))), valu("v_mov_b32", V(1), sT0), valu("v_mov_b32", V(2), S(42)),
          Inst("global_store_dword v1, v2, s[44:45] offset:252", "vst", rs(V(1), V(2), S(44, 2)), (), data=set()))
    E(scmp("s_cmp_eq_u32", sFlag, 0), raw("s_cbranch_scc1 L_end", "salu", {"scc"}), label("L_fast_end"))

def build():
    assert O_.la1 == 3 and O_.dg >= 26
    s = seg("start"); path.append((s, {"J": 0})); startup()
    f = seg("first"); E(label("L_first")); iteration(0, "first", [])
    no = seg("N_odd"); E(raw(".p2align 3", "label"), label("L_N")); iteration(1, None, [dec(), br("s_cbranch_scc1 L_N_exit")] if O_.qa0 > 1 else [])
    if O_.qa0 > 1: ne = seg("N_even"); iteration(0, None, [br("s_branch L_N")])
    path.append((f, {"J": 0}))
    for k in range(1, 2*O_.qa0): path.append((no if k & 1 else ne, {"J": k}))
    s = seg("A_pre"); path.append((s, {"J": 0})); E(label("L_N_exit"), stamp_now() if O_.probe == 4 else None, salu("s_mov_b32", sCnt, 7 - O_.qa0))
    loop("A", "Q", 2*O_.qa0, 15 - 2*O_.qa0)
    transition()
    s = seg("first1"); path.append((s, {"J": 16})); iteration(0, "first1", [])
    j10 = O_.olate[0] != "0" or O_.probe == 4 or O_.pause
    mo = seg("M_odd"); E(raw(".p2align 3", "label"), label("L_M")); iteration(1, "M", [dec(), br("s_cbranch_scc1 L_M_exit")] if j10 else [])
    me = seg("M_even"); iteration(0, "M", [br("s_branch L_M")] if j10 else [dec(), br("s_cbranch_scc0 L_M")])
    for J in range(17, 26 if j10 else 27): path.append((mo if J & 1 else me, {"J": J}))
    if j10: s = seg("j10"); path.append((s, {"J": 26})); E(label("L_M_exit"), stamp_now() if O_.probe == 4 else None); iteration(0, "j10", [])
    s = seg("j11"); path.append((s, {"J": 27})); iteration(1, "j11", [])
    s = seg("j12"); path.append((s, {"J": 28})); E(stamp_now()); iteration(0, "j12", [])
    endgame()
    finish()
    if O_.slow: slow_path()
    seg("exit"); E(label("L_end"))
    def trace(): return [(i, mkctx(c)) for sidx, c in path + path2 for i in segs[sidx][1]]
    for rnd in range(5):
        fix = {}
        resolve_and_check(trace(), fix=fix)
        for sg in segs:
            new = []
            for i in sg[1]:
                if i.kind == "wait" and i.m["nvm"] in (None, 63) and i.m["nlg"] in (None, 15): fix[0] = 1; continue
                if id(i) in fix: new.append(nop(fix[id(i)] - 1))
                new.append(i)
            sg[1][:] = new
        if not fix: break
    resolve_and_check(trace(), verbose=True)
    if O_.stamps:
        tr = [i for sidx, c in path for i in segs[sidx][1]]; cuts = [k for k, i in enumerate(tr) if i.kind == "smem" and "s[42:43]" in i.text]
        print("  est between stamps:", [cost_estimate(tr[a:b]) for a, b in zip(cuts, cuts[1:])])
    for name, ins in segs:
        if not name.startswith("slow"): print(f"  seg {name:8s} insts {len(ins):5d} est cycles {cost_estimate(ins):6d} nops {sum(1 for i in ins if i.kind == 'nop')}")

HEAD = """; MHA forward, B=16 H=32 Sq=384 Sk=512 D=128, bf16 in/out.  Generated by the author's own script (gen/gen8.py).
; Softmax: Q is pre-scaled by log2(e)/sqrt(D); the row max of the first 32 keys is subtracted through the MFMA
; C operand; the final row sums are checked (NaN or >= 2^64) and a failing wave redoes its rows with the true
; row max (L_slow).
; @launch grid=(256,1,1) block=(256,1,1) lds=163840
.amdgcn_target "amdgcn-amd-amdhsa--gfx950"
.text
.globl standalone__mha_softmax__near_ridge_kernel
.p2align 8
.type standalone__mha_softmax__near_ridge_kernel,@function
standalone__mha_softmax__near_ridge_kernel:
"""
TAIL = """    s_endpgm
.section .rodata,"a"
.p2align 6
.amdhsa_kernel standalone__mha_softmax__near_ridge_kernel
  .amdhsa_next_free_vgpr 512
  .amdhsa_next_free_sgpr 102
  .amdhsa_accum_offset 256
  .amdhsa_group_segment_fixed_size 0
  .amdhsa_kernarg_size 48
  .amdhsa_user_sgpr_count 2
  .amdhsa_user_sgpr_kernarg_segment_ptr 1
  .amdhsa_system_sgpr_workgroup_id_x 1
.end_amdhsa_kernel
"""
def insert_pads(text):
    import subprocess, re, tempfile, os
    def offsets(npads):
        d = tempfile.mkdtemp(); t = text()
        t = t.replace("L_padret:", "L_padret:\n" + "".join(f"L_pad{k}:\n" for k in range(npads + 1, 40)))
        open(d + "/a.s", "w").write(t)
        subprocess.run(["clang", "-x", "assembler", "-target", "amdgcn-amd-amdhsa", "-mcpu=gfx950", "-c", d + "/a.s", "-o", d + "/a.o"], check=True)
        dis = subprocess.run(["llvm-objdump", "-d", "--mcpu=gfx950", d + "/a.o"], capture_output=True, text=True).stdout
        dis = dis[dis.index("<L_main>:"):]
        ad = [(int(m.group(2), 16), m.group(1)) for m in re.finditer(r"^\s+(\S+).*// ([0-9A-F]{12}):", dis, re.M)]
        flat = [(sg, k) for sg in segs for k in range(len(sg[1]))]
        flat = flat[[i for i, (sg, k) in enumerate(flat) if sg[1][k].text == "L_main:"][0]:]
        o = []; j = 0
        for sg, k in flat:
            x = sg[1][k]
            if x.kind == "label":
                if x.text == "L_fast_end:": break
                if x.text.startswith(".p2align") and ad[j][0] % 8: j += 1
                continue
            assert ad[j][1].startswith(x.text.split()[0][:12]), (ad[j], x.text)
            o.append((ad[j][0] - ad[0][0], sg, k)); j += 1
        return o
    page = 1; pads = []
    while True:
        off = offsets(page - 1)
        cand = [n for n, (a, sg, k) in enumerate(off) if 4096*page <= a <= 4096*page + 56]
        if not cand: break
        def score(n):
            a, sg, k = off[n]; lo = max(0, k - 8); w = sg[1][lo:k + 8]
            return cost_estimate(w[:k - lo] + [raw("pad")] + w[k - lo:]) - cost_estimate(w)
        n = min(cand, key=score); _, sg, k = off[n]
        p = raw(f"s_cbranch_vccz L_pad{page + 4}"); pads.append(p)
        sg[1][k:k] = [label(f"L_pad{page}"), p]
        page += 1
    for i, p in enumerate(pads):
        if i + 1 + 4 >= page: p.text = "s_cbranch_vccz L_padret"
    assert page > 4
    print(f"  {page - 1} page pads")

if __name__ == "__main__":
    out = sys.argv[1]
    for a in sys.argv[2:]:
        k, v = a.split("=")
        setattr(O_, k, type(getattr(O_, k))(v))
    build()
    def text(): return HEAD + "\n".join((i.text if i.kind == "label" else "    " + i.text) for _, ins in segs for i in ins) + "\n" + TAIL
    if O_.pads: insert_pads(text)
    open(out, "w").write(text())
    import subprocess
    r = subprocess.run([sys.executable, "cdna_unwritten_srd_check.py", out], capture_output=True, text=True)
    print("  check:", r.stdout.strip()[-300:], r.stderr.strip()[-300:])
```

```python
import sys, math, struct
from ir import *

class Opt:
    stamps = 0; diag = ""; probe = 0; force = 0
    late_flags = "sc1"; h0_flags = "sc1"; fin_flags = "sc1"; fq = "nt"; fk = "nt"; fv = "nt"
    n0 = 14
    lead0 = "80,85,90,100,123,123,123,123,123,123,123,123,123,123,145"
    qs = "000021212121220"
    tq = 4; tstep = 12; tper = 2
    olate = "36663"
    g11 = 56; g12 = 16; dsp = 5
    ne1 = 36
    pads = 1
    pvo = "bs2"; qks = 1; slow = 1
O_ = Opt()

NB = 6
def f32bits(x): return struct.unpack("<I", struct.pack("<f", x))[0]
CSCALE = f32bits(math.log2(math.e) / math.sqrt(128.0))
THRESH = f32bits(2.0 ** 64)
def bf16(x):
    u = f32bits(x); return (u + 0x7fff + ((u >> 16) & 1)) >> 16
C_HI = bf16(math.log2(math.e) / math.sqrt(128.0))
C_LO = bf16(math.log2(math.e) / math.sqrt(128.0) - struct.unpack("<f", struct.pack("<I", C_HI << 16))[0])

def Sreg(b, a): return V(8*b + 4*a, 4)
def Preg(par, b): return V(48 + 24*par + 4*b, 4)
def negM(b): return V(96 + 4*b, 4)
kaddr = [V(120 + s) for s in range(4)]
vaddr = [V(124 + t) for t in range(8)]
vkv = V(132); vsd0 = V(133); vsd1 = V(134); vlin = V(135)
qa = [V(136 + s) for s in range(4)]
ow = V(140)
ovr = V(141)
def Oreg(b, t):
    n = 8*b + t
    return V(144 + 4*n, 4) if n < 28 else A(176 + 4*(n - 28), 4)
def Qreg(b, s): return A(16*b + 4*s, 4)
def F(i): return A(96 + 4*i, 4)
def lacc(b): return A(128 + 4*(b//3), 4)
def sel(b): return A(136 + 4*(b % 3), 4)
X = [A(148 + 4*k, 4) for k in range(7)]
CS = A(164, 10)
sQ, sO = S(12, 4), S(24, 4); sKb, sVb, sVx = S(16, 2), S(22, 2), S(18, 2)
sW = S(28); sM0 = S(30); sStg = S(31); sSide = S(32); sT0 = S(33); sT1 = S(34); sT2 = S(35)
sFlag = S(36); sThr = S(37); sC = S(38, 2); sCmp = S(40, 2); sStamp = S(42, 2); sCnt = S(3); sQd = S(29)
STAMP0 = 48

def aK(J): return (("ring", (J - 2) % 4, "K"), ("K", J), True)
def aV(J): return (("ring", J % 4, "V"), ("V", J), True) if J < 31 else (("ring", 2, "K"), ("V", J), True)
def rK(d): return lambda c: aK(c["J"] + d)
def rV(d): return lambda c: aV(c["J"] + d)
def aQ(h, p): return (("stg", p), ("Q", h), False)
def aO(h, p): return (("stg", p), ("O", h), False)
def blk(f, h, b): return [f(h, 4*b + i) for i in range(4)]
def mkctx(c): return lambda r: r(c) if callable(r) else r

segs = []; path = []; path2 = []; cur = None
def seg(name):
    global cur
    cur = []; segs.append([name, cur]); return len(segs) - 1
def E(*xs):
    for x in xs:
        if x is None: continue
        if isinstance(x, (list, tuple)): E(*x)
        else: cur.append(x)
nstamp = [0]
def stamp_now():
    if O_.stamps not in (1, 2): return []
    k = nstamp[0]; nstamp[0] += 1
    op = "s_memtime" if O_.stamps == 1 else "s_memrealtime"
    return [raw(f"{op} {sStamp}", "smem", (), rs(sStamp)), wait(lgkm=0), salu("s_mov_b32", S(STAMP0 + k), sStamp[0])]

MEM = ("dsr", "dsw", "dma", "vld", "vst"); VAL = ("valu", "trans")
class Task:
    def __init__(s, x, lo, hi, preds): s.x, s.lo, s.hi, s.preds, s.gap = x, lo, hi, preds, None
class Sched:
    def __init__(s, mf):
        s.mf = mf; s.n = len(mf); s.g = [[] for _ in mf]; s.t = []
        s.cap = [24 if m.m["big"] else 8 for m in mf]; s.novalu = set()
    def cost(s, x): return 8 if x.kind == "trans" or x.m.get("perm") else 4
    def fits(s, g, x):
        if s.cap[g] < s.cost(x): return False
        if x.kind in MEM and any(y.kind in MEM for y in s.g[g]): return False
        if x.kind in VAL and g in s.novalu: return False
        return True
    def put(s, g, x): s.g[g].append(x); s.cap[g] -= s.cost(x)
    def fix(s, x, g):
        t = Task(x, g, g, []); t.gap = g; s.put(g, x)
        if x.kind in ("dma", "vst", "vld"): s.cap[g] = 0; s.novalu.add(g - 1)
        if x.kind == "barrier": s.cap[g] = 0
        return t
    def add(s, x, lo=0, hi=None, preds=()):
        t = Task(x, max(lo, 0), s.n - 1 if hi is None else min(hi, s.n - 1), [p for p in preds if p[0] is not None]); s.t.append(t); return t
    def seq(s, xs, lo=0, hi=None, after=None, hard=1):
        p = after
        for x in xs: p = s.add(x, lo, hi, [(p, hard, hard)])
        return p
    def sm(s, groups, smax=2.0):
        ex = [(x, lo, hi) for ops, lo, hi in groups for x in ops if x.kind == "trans"]
        sig = smax
        while True:
            pos = []; t = -9.0; ok = True
            for x, lo, hi in ex:
                t = max(lo, t + sig); g = int(t)
                while g < s.n and (not s.fits(g, x) or (pos and g <= pos[-1])): g += 1
                if g > hi - 1: ok = False; break
                pos.append(g); t = max(t, g - 0.5)
            if ok: break
            sig -= 0.05
            assert sig > 0.3, "softmax does not fit"
        k = 0
        for ops, lo, hi in groups:
            e = []
            for x in ops:
                if x.kind == "trans": e.append(s.fix(x, pos[k])); k += 1
                else: s.add(x, lo, min(hi, e[-1].gap + 5), [(e[-1], 1, 1)])
    def run(s):
        for t in reversed(s.t):
            for p, h, so in t.preds:
                if p.gap is None: p.hi = min(p.hi, t.hi - so)
        for t in s.t:
            for p, h, so in t.preds: t.lo = max(t.lo, p.lo + h)
            t.hi = max(t.hi, t.lo)
        left = list(s.t)
        for g in range(s.n):
            while True:
                rdy = [t for t in left if t.lo <= g and all(p.gap is not None and g >= p.gap + h for p, h, so in t.preds)]
                rdy = [t for t in rdy if t.hi <= g or all(g >= p.gap + so for p, h, so in t.preds)]
                rdy.sort(key=lambda t: t.hi)
                pick = next((t for t in rdy if t.hi <= g or s.fits(g, t.x)), None)
                if pick is None: break
                s.put(g, pick.x); pick.gap = g; left.remove(pick)
        assert not left, left[0].x
        s.t = []
    def pour(s, *streams):
        st = [[list(xs), lo] for xs, lo in streams]
        for g in range(s.n):
            again = True
            while again:
                again = False
                for q in st:
                    if q[0] and q[1] <= g and s.fits(g, q[0][0]): s.put(g, q[0].pop(0)); again = True; break
        return [x for q in st for x in q[0]]
    def emit(s):
        for m, g in zip(s.mf, s.g):
            key = lambda x: 3 if x.m.get("last") else (2 if x.kind in VAL else (0 if x.kind in MEM else 1))
            E(m, sorted(g, key=key))

def kread(J, d, a, s, dst): return ds_read("ds_read_b128", dst, kaddr[s], ((J + d - 2) % 4)*16384 + a*8192, rK(d))
def vread(J, d, t, a, dst):
    return ds_read("ds_read_b64_tr_b16", dst[2*a:2*a+2], vaddr[t], (((J + d) % 4)*16384 if J + d < 31 else 32768 - 1024) + a*8192, rV(d))
def kv_group(J, d, withV=True):
    o = [salu("s_add_u32", "m0", sM0, ((J + d) % 4)*16384)]
    for im in (0, 2048):
        if withV: o.append(gdma(vkv, sVb, im + 1024, rV(d), O_.fv))
        o.append(gdma(vkv, sKb, im, rK(d + 2), O_.fk) if J + d < 30 else gdma(vkv, sVx, im, rV(d + 1), O_.fv))
    return o + [kv_step()]
def kv_step(): return valu("v_add_u32", vkv, 8192, vkv)
def q_dma_block(h, b):
    o = [salu("s_add_u32", "m0", sStg, b*4096), salu("s_mov_b32", sSide, h*98304 + b*4096)]
    for i in range(4): o.append(dma(vsd1 if i & 1 else vsd0, sQ, sSide, i*1024, aQ(h, 4*b + i), O_.fq))
    return o
def piecemeal(groups):
    st = []; pre = []
    for grp in groups:
        for x in grp:
            if x.kind in MEM: st.append(pre + [x]); pre = []
            else: pre.append(x)
    if pre: st[-1] += pre
    def more(n):
        o = st[:n]; del st[:n]; return o
    more.left = lambda: len(st)
    return more

def sm_ops(par, b, a):
    s = Sreg(b, a); p = Preg(par, b)
    return [valu("v_exp_f32", s[0], s[0]), valu("v_exp_f32", s[1], s[1]), valu("v_cvt_pk_bf16_f32", p[2*a], s[0], s[1]),
            valu("v_exp_f32", s[2], s[2]), valu("v_exp_f32", s[3], s[3]), valu("v_cvt_pk_bf16_f32", p[2*a+1], s[2], s[3])]
NE_A = 40
def sm_split(par, ne=NE_A):
    st = []
    for a in range(2):
        for b in range(NB): st += [(b, x) for x in sm_ops(par, b, a)]
    k = ne // 2 * 3
    return st[:k], st[k:]
def delay_cvts(xs):
    o = []; pend = []
    for x in xs:
        if x.kind == "trans":
            o.append(x)
            if pend: o.append(pend.pop(0))
        else: pend.append(x)
    return o + pend
def xlane_max(m, t):
    o = []
    for op in ("v_permlane32_swap_b32", "v_permlane16_swap_b32"):
        o += [valu("v_mov_b32", t, m), swap(op, m, t), valu("v_max_f32", m, m, t)]
    return o
def rowmax_ops(b):
    m, t = negM(b)[0], negM(b)[1]; sv = lambda r: V(8*b + r)
    o = [valu("v_max3_f32", m, sv(0), sv(1), sv(2)), valu("v_max3_f32", t, sv(3), sv(4), sv(5)),
         valu("v_max3_f32", m, m, sv(6), sv(7)), valu("v_max_f32", m, m, t)] + xlane_max(m, t)
    o += [valu("v_sub_f32", negM(b)[r], 0, m) for r in (1, 2, 3, 0)]
    return o, [valu("v_pk_add_f32", V(8*b + 2*r, 2), V(8*b + 2*r, 2), negM(b)[0:2]) for r in range(4)]
def scale_frag(x, dst, w, y, pk=True):
    o = []
    if pk:
        for r in range(4): o += [valu("v_lshlrev_b32", w[2*r], 16, x[r]), valu("v_and_b32", w[2*r+1], "0xffff0000", x[r])]
        for r in range(4): o.append(valu("v_pk_mul_f32", w[2*r:2*r+2], w[2*r:2*r+2], sC))
    else:
        for r in range(4):
            o += [valu("v_lshlrev_b32", w[2*r], 16, x[r]), valu("v_and_b32", w[2*r+1], "0xffff0000", x[r]),
                  valu("v_mul_f32", w[2*r], sC[0], w[2*r]), valu("v_mul_f32", w[2*r+1], sC[0], w[2*r+1])]
    if dst.k == "v": return o + [valu("v_cvt_pk_bf16_f32", dst[r], w[2*r], w[2*r+1]) for r in range(4)]
    for r in range(4): o.append(valu("v_cvt_pk_bf16_f32", y[r], w[2*r], w[2*r+1]))
    for r in range(4): o.append(valu("v_accvgpr_write_b32", dst[r], y[r]))
    return o
def chain(b, a, fr, c0, rev):
    return [(s, mfma(Sreg(b, a), fr[s], Qreg(b, s), c0 if n == 0 else Sreg(b, a))) for n, s in enumerate(range(3, -1, -1) if rev and O_.qks else range(4))]
def qk_first(b): return [m for a in range(2) for _, m in chain(b, a, [F(4*a + s) for s in range(4)], 0, a)]
def pv_pair(par, bs, t0, fr, init, sums):
    o = []
    if O_.pvo in ("t", "ts"):
        bs = sorted(bs)
        if 5 in sums and init: sums = []; o += [(None, rowsum(par, 5, init)), (None, rowsum(par, 4, init))]
        for k in range(2):
            for b in (bs if k == 0 or O_.pvo == "t" else bs[::-1]):
                o.append((t0 + k, mfma(Oreg(b, t0 + k), Preg(par, b), fr[k], 0 if init else Oreg(b, t0 + k))))
                if k == 0 and b in sums: o.append((None, rowsum(par, b, init)))
        return o
    for n, b in enumerate(bs):
        for k in ((0, 1) if n % 2 == 0 or O_.pvo == "pp2" else (1, 0)): o.append((t0 + k, mfma(Oreg(b, t0 + k), Preg(par, b), fr[k], 0 if init else Oreg(b, t0 + k))))
        if b in sums: o.insert(len(o) - 1, (None, rowsum(par, b, init)))
    return o
def rowsum(par, b, init=False): return mfma(lacc(b), Preg(par, b), sel(b), 0 if init and b in (0, 5) else lacc(b))

def startup():
    v0, vl, vi, vu, t0, t1, t2 = V(0), V(1), V(2), V(3), V(4), V(5), V(6)
    E(comment("---- setup"),
      raw("s_load_dwordx4 s[4:7], s[0:1], 0", "smem", (), rs(S(4, 4))),
      raw("s_load_dwordx4 s[8:11], s[0:1], 16", "smem", (), rs(S(8, 4))),
      scmp("s_cmp_ge_u32", S(2), 256), raw("s_cbranch_scc1 L_end", "salu", {"scc"}))
    if O_.stamps:
        E(raw("s_load_dwordx2 s[44:45], s[0:1], 40", "smem", (), rs(S(44, 2))),
          raw("s_memrealtime s[46:47]", "smem", (), rs(S(46, 2))))
    E(comment("pull the kernel's own code into L2 (one dword per 128-byte line)"),
      raw("s_getpc_b64 s[40:41]", "salu", (), rs(S(40, 2))), label("L_pc"),
      valu("v_lshlrev_b32", t0, 7, v0), valu("v_min_u32", t1, "L_fast_end-L_pc", t0),
      Inst(f"global_load_dword v7, {t1}, s[40:41]", "vld", rs(t1, S(40, 2)), rs(V(7))),
      valu("v_add_u32", t0, 32768, t0), valu("v_min_u32", t1, "L_fast_end-L_pc", t0),
      Inst(f"global_load_dword v8, {t1}, s[40:41]", "vld", rs(t1, S(40, 2)), rs(V(8))))
    E(valu("v_lshrrev_b32", t1, 6, v0), valu("v_and_b32", vl, 63, v0),
      valu("v_readfirstlane_b32", sW, t1),
      valu("v_and_b32", vi, 15, vl), valu("v_lshrrev_b32", vu, 4, vl),
      valu("v_lshlrev_b32", t0, 1, vu), valu("v_xor_b32", t0, t0, vi), valu("v_lshlrev_b32", t0, 4, t0),
      valu("v_lshl_add_u32", vsd0, vu, 8, t0), valu("v_xor_b32", vsd1, 128, vsd0),
      salu("s_and_b32", sT0, sW, 1), salu("s_lshr_b32", sT1, sW, 1),
      salu("s_lshl_b32", sT2, sT0, 7), salu("s_lshl_b32", sT0, sT0, 10), salu("s_lshl_b32", sT1, sT1, 12),
      salu("s_add_u32", sT0, sT0, sT1),
      valu("v_xor_b32", vkv, sT2, vsd0), valu("v_add_u32", vkv, sT0, vkv),
      salu("s_lshl_b32", sM0, sW, 12), salu("s_mul_i32", sStg, sW, 24576),
      salu("s_mul_i32", sT0, S(2), 196608), salu("s_add_u32", sT0, sT0, sStg), salu("s_add_u32", sStg, sStg, 65536),
      salu("s_lshl_b32", sT1, S(2), 18),
      salu("s_mov_b32", sQ[2], 98304 + 24576), salu("s_mov_b32", sQ[3], "0x20000"),
      wait(lgkm=0),
      salu("s_add_u32", sKb[0], S(6), sT1), salu("s_addc_u32", sKb[1], S(7), 0),
      salu("s_add_u32", sQ[0], S(4), sT0), salu("s_addc_u32", sQ[1], S(5), 0), salu("s_and_b32", sQ[1], sQ[1], "0xffff"))
    g0 = kv_group(0, 0); g0 = [g0[k] for k in (0, 1, 3, 2, 4, 5)]
    more = piecemeal([kv_group(0, -2, False)] + [q_dma_block(0, b) for b in range(NB)] + [kv_group(0, -1, False), g0])
    E(more(10))
    if O_.pads: E(raw("s_branch L_main"), raw(".p2align 12", "label"), label("L_main"))
    E(salu("s_add_u32", sVb[0], S(8), sT1), salu("s_addc_u32", sVb[1], S(9), 0),
      salu("s_sub_u32", sVb[0], sVb[0], 1024 + 16384), salu("s_subb_u32", sVb[1], sVb[1], 0),
      salu("s_add_u32", sO[0], S(10), sT0), salu("s_addc_u32", sO[1], S(11), 0), salu("s_and_b32", sO[1], sO[1], "0xffff"),
      salu("s_mov_b32", sO[2], 98304 + 24576), salu("s_mov_b32", sO[3], "0x20000"),
      salu("s_add_u32", sVx[0], sVb[0], 1024 + 8192), salu("s_addc_u32", sVx[1], sVb[1], 0),
      salu("s_mov_b32", sC[0], hex(CSCALE)), salu("s_mov_b32", sC[1], hex(CSCALE)),
      salu("s_mov_b32", sThr, hex(THRESH)), salu("s_mov_b32", sFlag, O_.force), salu("s_sub_u32", sQd, sStg, 98304))
    E(valu("v_and_b32", t0, 7, vi), valu("v_lshlrev_b32", t0, 1, t0), valu("v_xor_b32", t0, t0, vu), valu("v_lshlrev_b32", t0, 4, t0),
      valu("v_lshl_add_u32", t2, vi, 8, t0), valu("v_add_u32", qa[0], sStg, t2),
      valu("v_and_b32", t1, 3, vi), valu("v_lshl_add_u32", t0, t1, 8, t0),
      valu("v_lshrrev_b32", t1, 3, vi), valu("v_lshl_add_u32", t0, t1, 11, t0),
      valu("v_bfe_u32", t1, vi, 2, 1), valu("v_lshl_add_u32", kaddr[0], t1, 12, t0))
    for s in range(1, 4): E(valu("v_xor_b32", kaddr[s], s << 6, kaddr[0]), valu("v_xor_b32", qa[s], s << 6, qa[0]))
    E(valu("v_lshrrev_b32", t1, 2, vi), valu("v_and_b32", t2, 1, vu), valu("v_lshl_add_u32", t0, t2, 2, t1),
      valu("v_lshlrev_b32", t0, 5, t0), valu("v_lshl_add_u32", t0, t1, 8, t0), valu("v_lshl_add_u32", t0, t2, 12, t0),
      valu("v_lshrrev_b32", t2, 1, vu), valu("v_lshl_add_u32", t0, t2, 11, t0),
      valu("v_and_b32", t1, 3, vi), valu("v_lshl_add_u32", t0, t1, 3, t0), valu("v_add_u32", vaddr[0], 1024, t0))
    for t in range(1, 8): E(valu("v_xor_b32", vaddr[t], t << 5, vaddr[0]))
    E(valu("v_mov_b32", t2, "0x3f803f80"))
    for k in range(3):
        E(Inst(f"v_cmp_eq_u32 vcc, {k}, {vi}", "valu", rs(vi), {"vcc"}), nop(1), Inst(f"v_cndmask_b32 {t0}, 0, {t2}, vcc", "valu", rs(t2, "vcc"), rs(t0)),
          [valu("v_accvgpr_write_b32", sel(k)[r], t0) for r in range(4)])
    E(valu("v_lshrrev_b32", t0, 1, vi), valu("v_lshlrev_b32", t1, 1, vu), valu("v_sub_u32", t0, t0, t1),
      valu("v_and_b32", t1, 1, vi), valu("v_lshlrev_b32", t1, 4, t1))
    for k in range(2):
        E(Inst(f"v_cmp_eq_u32 vcc, {k}, {t0}", "valu", rs(t0), {"vcc"}))
        for j, c in enumerate((C_HI, C_LO)):
            E(valu("v_mov_b32", t2, hex(c)), valu("v_lshlrev_b32", t2, t1, t2), Inst(f"v_cndmask_b32 {t2}, 0, {t2}, vcc", "valu", rs(t2, "vcc"), rs(t2)),
              valu("v_accvgpr_write_b32", CS[2 + 4*j + k], t2))
    E([valu("v_accvgpr_write_b32", CS[k], 0) for k in (0, 1, 4, 5, 8, 9)])
    E(valu("v_lshlrev_b32", t0, 3, vl), valu("v_add_u32", ow, sStg, t0),
      valu("v_bfe_u32", t1, vi, 1, 1), valu("v_lshl_add_u32", t0, t1, 2, vu), valu("v_lshlrev_b32", t0, 9, t0),
      valu("v_and_b32", t1, 1, vi), valu("v_lshl_add_u32", t0, t1, 6, t0), valu("v_lshrrev_b32", t1, 2, vi),
      valu("v_lshl_add_u32", t0, t1, 3, t0), valu("v_add_u32", ovr, sStg, t0),
      valu("v_and_b32", t2, 3, vi), valu("v_lshlrev_b32", t0, 5, t2), valu("v_lshl_add_u32", t0, vu, 8, t0),
      valu("v_and_b32", t2, 1, t1), valu("v_lshl_add_u32", t0, t2, 4, t0), valu("v_lshrrev_b32", t2, 1, t1), valu("v_lshl_add_u32", vlin, t2, 7, t0))
    E(more(O_.n0 - 10), stamp_now())
    E(comment("---- first K tile"), wait(vm=[aK(0)]), barrier())
    for a in range(2):
        for s in range(4): E(kread(0, 0, a, s, F(4*a + s)))
    if O_.pads:
        E(comment("visit the start of each code page once (wave w: pages w+1, w+5, ..); every stop jumps straight on while vcc = 0"),
          raw("s_mov_b64 vcc, 0"))
        for w in range(3): E(scmp("s_cmp_eq_u32", sW, w), raw(f"s_cbranch_scc1 L_pad{w + 1}", "salu", {"scc"}))
        E(raw("s_branch L_pad4"), label("L_padret"), raw("s_mov_b64 vcc, -1"))
    rawr = lambda s: V(72 + 4*s, 4)
    for b in range(NB):
        E(comment(f"---- start-up block {b}"), wait(vm=blk(aQ, 0, b)), stamp_now() if O_.probe == 2 else None)
        for s in range(4): E(ds_read("ds_read_b128", rawr(s), qa[s], b*4096, blk(aQ, 0, b)))
        for s in range(4):
            E(wait(lgkm=[rawr(s)] + ([F(k) for k in range(8)] if b == 0 else [])))
            E(more(1), scale_frag(rawr(s), Qreg(b, s), V(88, 8), Sreg(b, s & 1)))
        qk = qk_first(b)
        if b < NB - 1: E(qk, rowmax_ops(b), delay_cvts(sm_ops(0, b, 0) + sm_ops(0, b, 1)))
    assert more.left() == 0
    E(qk[:4], wait(vm=[aK(1)]), barrier())
    for s in range(4): E(qk[4 + s], kread(0, 1, 0, s, F(s)))
    E(salu("s_mov_b32", sSide, 98304), salu("s_mov_b32", sCnt, 1), rowmax_ops(NB - 1)[0][:4], wait(lgkm=[F(s) for s in range(4)]), stamp_now())

def o_read(key, p, dst):
    return [ds_read("ds_read_b64_tr_b16", dst[2*hi:2*hi + 2], ovr, (p >> 2)*4096 + (p & 3)*128 + hi*32, key) for hi in range(2)]
def pv_mfmas(par, frags, sums_first=False, init=False):
    mf = [rowsum(par, b) for b in range(NB)] if sums_first else []; st = []
    for h in range(4):
        st.append(len(mf))
        sums = [] if sums_first else [(0, 1), (5, 4), (2,), (3,)][h]
        mf += [m for _, m in pv_pair(par, range(NB) if h % 2 == 0 else range(NB - 1, -1, -1), 2*h, frags[2*h:2*h + 2], init, sums)]
    return mf, st
def late_pieces(k):
    cnt = [int(c, 16) for c in O_.olate]; assert sum(cnt) == 24 and sum(cnt[:4]) >= 12
    return (list(range(12, 24)) + list(range(12)))[sum(cnt[:k]):sum(cnt[:k + 1])]
def kv_plan(J):
    if J >= 16: return [(3, 27)] if J < 28 else []
    o = []
    for k, lead in enumerate(int(x) for x in O_.lead0.split(",")):
        Jk, g = divmod(102*(k + 1) + 23 - lead, 102)
        assert 2 <= g <= 82
        if Jk == J: o.append((k + 1 - J, g))
    return o
VF15 = [Qreg(4 + t//4, t % 4) for t in range(8)]

def iteration(J, ctl=()):
    par = J & 1; j = J % 16
    mf = [m for a in range(2) for b in range(NB) for _, m in chain(b, a, [F(4*a + s) for s in range(4)], negM(b), b & 1)]
    pv, pst = pv_mfmas(par, [F(t) for t in range(8)], init=(j == 0))
    mf += pv; pst = [48 + x for x in pst]
    sc = Sched(mf)
    for x in ctl: sc.fix(x, 101)
    if ctl: sc.cap[101] = 0
    for s in range(4): sc.fix(kread(J, 1, 1, s, F(4 + s)), [1, 6, 11, 13][s])
    tb2 = None
    if J == 0:
        sc.fix(wait(vm=[rV(0)], lgkm=0), 23); tb = sc.fix(barrier(), 23)
        sc.fix(wait(vm=[rK(2)]), 72); tb2 = sc.fix(barrier(), 72)
    else:
        sc.fix(wait(vm=[rV(0), rK(2)], lgkm=0), 23); tb = sc.fix(barrier(), 23)
    if J == 0:
        b = NB - 1; t = sc.seq(rowmax_ops(b)[0][4:], 0, 8, hard=0)
        sub = [sc.add(valu("v_add_f32", V(8*b + r), V(8*b + r), negM(b)[1]), 0, 10 if r < 4 else 22, [(t, 0, 0)]) for r in range(8)]
        sc.run()
    plan = kv_plan(J); busy = []
    for n_, (d, g0) in enumerate(plan):
        ops = kv_group(J, d); g = g0
        while sc.cap[g - 2] < 4: g += 1
        sc.fix(ops[0], g - 2)
        for x in ops[1:5]:
            while sc.cap[g] < 8 or sc.cap[g - 1] == 0 or sc.cap[g + 1] == 0 or any(y.kind in VAL for y in sc.g[g - 1]): g += 1
            td = sc.fix(x, g); g += O_.dsp
        busy.append((g0 - 3, td.gap + 1))
        sc.add(ops[5], 0, 100 if n_ + 1 == len(plan) else plan[n_ + 1][1] - 1, [(td, 1, 1)])
    nq = int(O_.qs[J]) if J < 15 else 0
    if nq:
        p0 = sum(map(int, O_.qs[:J])); g0 = max([50] + [hi + 6 for lo, hi in busy if lo < 50])
        assert all(hi < g0 - 2 or lo > g0 + 12*(nq - 1) for lo, hi in busy)
        sc.fix(salu("s_add_u32", "m0", sSide, sQd), g0 - 2)
        for k in range(nq):
            t = sc.fix(dma(vsd1 if (p0 + k) & 1 else vsd0, sQ, sSide, k*1024, (lambda k: lambda c: aQ(1, sum(map(int, O_.qs[:c["J"]])) + k))(k), O_.fq), g0 + 12*k)
        sc.add(salu("s_add_u32", sSide, sSide, 1024*nq), 0, 99, [(t, 1, 1)])
    if J in (27, 28):
        ps = late_pieces(J - 27); g0 = [O_.g11, O_.g12][J - 27]
        base = t = None
        for i, p in enumerate(ps):
            g = g0 + (96 - g0)*i//max(1, len(ps) - 1)
            while g in (22, 23, 24) or sc.cap[g] < 8 or sc.cap[g - 1] == 0 or sc.cap[g + 1] == 0: g += 1
            t = sc.seq(o_read(aO(0, p), p, X[i]), 0, g - 8, t); sc.add(wait(lgkm=[X[i]]), 0, g - 1, [(t, 1, 6)])
            if base is None or not 0 <= p - base < 4: base = p; sc.fix(salu("s_mov_b32", sSide, p*1024), g - 1)
            sc.fix(vstore(X[i], vlin, sO, sSide, (p - base)*1024, O_.late_flags), g)
    p = tb
    for t in range(8):
        for a in range(2): p = sc.add(vread(J, 0, t, a, F(t)), 24 if t < 4 else 48, None, [(p, 1, 1)])
        if t in (1, 3): sc.add(wait(lgkm=[F(t - 1), F(t)]), 0, pst[t//2] - 1, [(p, 1, 8)])
    sc.add(wait(lgkm=[F(4), F(5), F(6), F(7)]), 0, pst[2] - 1, [(p, 1, 8)])
    for s in range(4): p = sc.add(kread(J, 2, 0, s, F(s)), pst[2], None if J != 14 else 90, [(p, 1, 1), (tb2, 1, 1)])
    if J != 14: sc.add(wait(lgkm=[F(s) for s in range(4)]), 0, 100, [(p, 1, 8)])
    else:
        sc.fix(wait(vm=[rV(1), rK(3)] + blk(aQ, 1, 0)), 92); t = sc.fix(barrier(), 92)
        for k in range(4): sc.fix(vread(J, 1, k//2, k & 1, VF15[k//2]), 93 + 2*k)
    nxt = lambda ne: [x for _, x in sm_split(1 - par, ne)[0]]
    if J == 0:
        b = NB - 1
        sc.sm([(sm_ops(0, b, 0), sub[3].gap + 1, 19), (sm_ops(0, b, 1), sub[7].gap + 1, 43), (nxt(NE_A), 24, 100)])
    elif J == 16:
        tail = sm_split(0, O_.ne1)[1]
        sc.sm([([x for bb, x in tail if bb == b], 0, 23 + 4*b) for b in range(NB) if any(bb == b for bb, _ in tail)] + [(nxt(NE_A), 24, 100)])
    elif J == 14:
        sc.sm([([x for _, x in sm_split(par)[1]], 0, 30)] + [(sm_ops(1, b, a), 24*a + 4*b + 8, 101) for a in range(2) for b in range(NB)])
    else:
        sc.sm([([x for _, x in sm_split(par)[1]], 0, 30)], 2.4)
        sc.sm([(nxt(NE_A), 24, 100)])
    sc.run(); sc.emit()

def straight(J, *pre):
    s = seg(f"J{J}"); path.append((s, {"J": J})); E(comment(f"---- head {J//16}, key tile {J % 16}"), pre); iteration(J)
def loop4(name, J0, passes):
    ss = []
    for k in range(4):
        ss.append(seg(f"{name}{k}"))
        if k == 0: E(raw(".p2align 3", "label"), label(f"L_{name}"))
        d = salu("s_sub_u32", sCnt, sCnt, 1); d.m["last"] = True
        iteration(J0 + k, [d, raw(f"s_cbranch_scc0 L_{name}", "salu", {"scc"}, (), last=True)] if k == 3 else [])
        for n in range(1, passes): assert kv_plan(J0 + k) == kv_plan(J0 + k + 4*n) and (J0 > 15 or O_.qs[J0 + k] == O_.qs[J0 + k + 4*n])
    assert J0 > 15 or sum(map(int, O_.qs[J0:J0 + 4])) % 2 == 0
    for n in range(4*passes): path.append((ss[n % 4], {"J": J0 + n}))

def l_ops(h, b0, r, t1):
    o = [valu("v_accvgpr_read_b32", r[k], lacc(b0)[k]) for k in range(4)]
    o += [valu("v_add_f32", t1, r[0], r[1]), valu("v_add_f32", t1, t1, r[2]), valu("v_add_f32", t1, t1, r[3])]
    o += [valu("v_rcp_f32", r[k], r[k]) for k in range(4)]
    return o
def l_flag(h, t1):
    return [Inst(f"v_cmp_nlt_f32 {sCmp}, {t1}, {sThr}", "valu", rs(t1, sThr), rs(sCmp)), nop(0),
            scmp("s_cmp_lg_u64", sCmp, 0), salu("s_cselect_b32", sT0, 1 << h, 0), salu("s_or_b32", sFlag, sFlag, sT0)]
def l_bcast(b, r, dst):
    o = [valu("v_mov_b64_dpp", dst[2*k:2*k + 2], r[2*k:2*k + 2], mods=f"row_newbcast:{b % 3} row_mask:0xf bank_mask:0xf") for k in range(2)]
    for x in o: x.m["dpp"] = True
    return o
def epi_half(h, b, th, rl, tmp, y):
    r0 = Oreg(b, 4*th); w = V(r0.i, 16) if r0.k == "v" else tmp; o = []
    if r0.k == "a": o += [valu("v_accvgpr_read_b32", w[i], A(r0.i + i)) for i in range(16)]
    o += [valu("v_pk_mul_f32", w[2*i:2*i + 2], w[2*i:2*i + 2], rl[2*(i & 1):2*(i & 1) + 2]) for i in range(8)]
    o += [valu("v_cvt_pk_bf16_f32", y[2*r + k], w[8*k + r], w[8*k + 4 + r]) for r in range(4) for k in range(2)]
    o += [ds_write2st64(ow, y[4*k:4*k + 2], y[4*k + 2:4*k + 4], 8*b + 4*th + 2*k, 8*b + 4*th + 2*k + 1, blk(aO, h, b)) for k in range(2)]
    return o

def transition():
    s = seg("trans"); path.append((s, {"J": 15}))
    E(stamp_now(), comment("---- head 0: last PV; switch to head 1"))
    vf = VF15
    NSH = 1
    def rawr(b, n): return V(16 + 4*n, 4) if 4*b + n < NSH else Qreg(b, n)
    def qrd(b): return [ds_read("ds_read_b128", rawr(b, n), qa[n], b*4096, blk(aQ, 1, b)) for n in range(4)]
    rc = [negM(4), negM(5)]
    rl = V(72, 4); y = V(76, 8)
    def pm(f):
        q = Qreg(f//4, f % 4); d = V(76 + 8*(f & 1), 8); t = V(92, 4)
        mf = [mfma(d[0:4], CS[2:6], q, 0), mfma(d[0:4], CS[6:10], q, d[0:4]), mfma(d[4:8], CS[0:4], q, 0), mfma(d[4:8], CS[4:8], q, d[4:8])]
        fl = []
        for hh in range(2):
            fl += [valu("v_cvt_pk_bf16_f32", t[2*hh + k], d[4*hh + 2*k], d[4*hh + 2*k + 1]) for k in range(2)]
            fl += [valu("v_accvgpr_write_b32", q[2*hh + k], t[2*hh + k]) for k in range(2)]
        return mf, fl
    npre = sum(map(int, O_.qs)); assert npre >= 8
    more = piecemeal([[x for k, x in enumerate(q_dma_block(1, b)) if k < 2 or 4*b + k - 2 >= npre] for b in range(npre//4, NB)]
                     + [kv_group(15, d) for d in (1, 2, 3)])
    vr = [vread(15, 0, t, a, vf[t]) for t in range(8) for a in range(2)]
    pv, pst = pv_mfmas(1, vf, True)
    sc = Sched(pv)
    g = 8
    for grp in more(O_.tq):
        for i, x in enumerate(grp):
            if x.kind not in MEM: sc.fix(x, g - 3 if len(grp) - i > 3 else g - 2)
            else: sc.fix(x, g); g += O_.tstep
    sc.add(wait(lgkm=vf[:2]), 4, pst[0] - 1)
    q0 = qrd(0)
    p = sc.seq(q0[:NSH], 0); wq = sc.add(wait(lgkm=[rawr(0, NSH - 1)]), 0, 10, [(p, 1, 6)])
    p = sc.seq(vr[4:8], 0, None, p); sc.add(wait(lgkm=vf[2:4]), 0, pst[1] - 1, [(p, 1, 6)])
    p = sc.seq(vr[8:], 0, None, p); sc.add(wait(lgkm=vf[4:]), 0, pst[2] - 1, [(p, 1, 6)])
    p = sc.seq([kread(15, 1, 1, k, F(4 + k)) for k in range(4)] + q0[NSH:] + [wait(vm=blk(aQ, 1, 1))] + qrd(1), 24, 46, p)
    sc.fix(wait(lgkm=0), 53); sc.fix(barrier(), 53)
    sc.run()
    lv = l_ops(0, 0, rc[0], V(60)) + l_ops(0, 3, rc[1], V(61)) + [valu("v_add_f32", V(60), V(60), V(61))]; ls = l_flag(0, V(60))
    st = []
    for n in range(NSH): st += scale_frag(rawr(0, n), Qreg(0, n), V(0, 8), V(8 + 4*(n & 1), 4), pk=False)
    rest = sc.pour((lv, 10), (st, wq.gap + 1)); sc.emit(); E(rest); rest = []
    first = sm_split(0, O_.ne1)[0]
    def finish(b): return rowmax_ops(b)[1] + delay_cvts([x for bb, x in first if bb == b])
    for b in range(NB):
        E(comment(f"---- switch block {b}"), stamp_now() if O_.probe == 1 else None)
        fs = range(max(NSH, 4*b + 1), min(4*b + 5, 4*NB))
        mf = []; fl = []
        for f in fs:
            m, x = pm(f); mf += m; fl.append(x)
        qk = qk_first(b)
        if b == NB - 1: qk = [qk[k] for k in (0, 1, 2)] + [m for _, m in chain(b, 1, [F(4 + s_) for s_ in range(4)], 0, False)][:3] + [qk[3]]; \
                        qk.append(mfma(Sreg(b, 1), F(7), Qreg(b, 3), Sreg(b, 1)))
        sc = Sched(mf + qk)
        for k, x in enumerate(fl):
            for j, v in enumerate(x): sc.put(4*(k + 1) + j//2, v)
        if 1 <= b < NB - 1:
            sc.put(0, wait(vm=blk(aQ, 1, b + 1)))
            for n, x in enumerate(qrd(b + 1)): sc.put(1 + n, x)
            sc.put(11, wait(lgkm=[Qreg(b + 1, n) for n in range(4)]))
        rest = sc.pour((rowmax_ops(b - 1)[0] if b else rest, 0)); sc.emit(); E(rest, ls if b == 0 else None)
        if b == NB - 1: E([kread(15, 2, 0, s_, F(s_)) for s_ in range(4)])
        E(l_bcast(b, rc[b//3], rl), epi_half(0, b, 0, rl, V(176, 16), y), more(O_.tper), finish(b - 1) if b else None,
          epi_half(0, b, 1, rl, V(192, 16), y), more(O_.tper))
    assert more.left() == 0
    E(rowmax_ops(NB - 1)[0], finish(NB - 1))
    E(salu("s_mov_b32", sCnt, 1), wait(lgkm=[F(s_) for s_ in range(4)]), stamp_now())

def endgame():
    s = seg("end"); path.append((s, {"J": 29}))
    E(stamp_now())
    carry = []
    for ps, H in enumerate(([3, 4, 5], [0, 1, 2])):
        E(comment(f"---- pass {ps}"))
        subs = [("Q", 1, 0), ("Q", 1, 1), ("P", 0, 0), ("P", 0, 1), ("Q", 2, 0), ("Q", 2, 1), ("P", 1, 0), ("P", 1, 1), ("P", 2, 0), ("P", 2, 1)]
        FA, FB = [F(k) for k in range(4)], [F(4 + k) for k in range(4)]
        G = [[Qreg(3 + n, k) for k in range(4)] for n in range(3)]; Hh = [[A(176 + 16*n + 4*k, 4) for k in range(4)] for n in range(5)]
        fr = [FA, FB, FA, FB, FA, FB, FA] + G if ps == 0 else [FA, FB] + Hh + G
        mf = []; use = []; cend = {}; cstart = {}; pstart = {}; bstart = {}
        for i, (kind, d, x) in enumerate(subs):
            u = {}
            if kind == "Q":
                for n, b in enumerate(H):
                    cstart[(d, b, x)] = len(mf)
                    for s_, m in chain(b, x, fr[i], negM(b), n & 1): u.setdefault(s_, []).append(len(mf)); mf.append(m)
                    cend[(d, b, x)] = len(mf) - 1
            elif d == 2:
                if x == 0:
                    u2 = {}
                    for n, b in enumerate(H):
                        bstart[b] = len(mf); mf.append(rowsum(1, b))
                        for t in range(8):
                            (u if t < 4 else u2).setdefault(t & 3, []).append(len(mf))
                            mf.append(mfma(Oreg(b, t), Preg(1, b), fr[i + (t >> 2)][t & 3], Oreg(b, t)))
                else: u = u2
            else:
                par = (d + 1) & 1
                if x == 0: pstart[d] = len(mf)
                for hh in range(2):
                    for t, m in pv_pair(par, H if hh == 0 else H[::-1], 4*x + 2*hh, fr[i][2*hh:2*hh + 2], False, H[2*x + hh:2*x + hh + 1]):
                        if t is not None: u.setdefault(t & 3, []).append(len(mf))
                        mf.append(m)
            use.append(u)
        sc = Sched(mf); bar = {}
        if ps == 0:
            for d, g, keys in ((0, 9, [rV(0), rK(2)]), (1, use[4][1][-1], [rV(1), rV(2)])):
                sc.fix(wait(vm=keys), g)
                bar[d] = bar[2] = sc.fix(barrier(), g)
        pcs = [(0, q) for q in late_pieces(2) + late_pieces(3)] if ps == 0 else [(0, q) for q in late_pieces(4)] + carry
        taken = {t.gap + k for t in bar.values() for k in (-1, 0, 1)}
        prev_st = [None]*4; pst = None; base = None
        for i, (h, q) in enumerate(pcs):
            g = 12 + (len(mf) - 16)*i//max(1, len(pcs) - 1) if ps == 0 else 10 + (len(mf) - 14)*i//len(pcs)
            while g in taken or g - 1 in taken: g += 1
            off = h*98304 + q*1024
            if base is None or not 0 <= off - base < 4096:
                base = off; sc.add(salu("s_mov_b32", sSide, base), 0, g - 1, [(pst, 1, 1)])
            r = sc.seq(o_read(aO(h, q), q, X[i & 3]), g - 30, g - 8, prev_st[i & 3])
            sc.add(wait(lgkm=[X[i & 3]]), 0, g - 1, [(r, 1, 7)])
            pst = prev_st[i & 3] = sc.fix(vstore(X[i & 3], vlin, sO, sSide, off - base, O_.h0_flags if h else O_.late_flags), g)
        prev = None
        for i, (kind, d, x) in enumerate(subs):
            if i == 0 or (ps == 1 and (i == 1 or i >= 7)): continue
            tight = ps == 0 and i < 7
            for k in range(4):
                lo = (use[i - 2][k][-1] if i >= 2 else 0) if tight else (cend[(2, 3 + i - 7, 1)] if ps == 0 else 0)
                rds = [kread(29, d, x, k, fr[i][k])] if kind == "Q" else [vread(29, d, 4*x + k, a, fr[i][k]) for a in range(2)]
                bp = bar.get(d if kind == "P" else (0 if d == 2 else None))
                for r in rds: prev = sc.add(r, lo, None, [(prev, 1, 1), (bp, 1, 1)])
                if tight and kind == "P" and k & 1: sc.add(wait(lgkm=fr[i][k - 1:k + 1]), 0, min(use[i][k - 1][0], use[i][k][0]) - 1, [(prev, 1, 6)])
            if not (tight and kind == "P"): sc.add(wait(lgkm=fr[i]), 0, use[i][0][0] - 1, [(prev, 1, 6)])
        if ps == 0:
            for a in range(2):
                for k in range(4): prev = sc.add(kread(29, 1, a, k, F(4*a + k)), use[6][k][-1], None, [(prev, 1, 1)])
        grp = [([x for bb, x in sm_split(1)[1] if bb == b], 0, cstart[(1, b, 1)] - 1) for b in H]
        for a in range(2):
            for k, b in enumerate(H): grp.append((sm_ops(0, b, a), cend[(1, b, a)] + 4, min(pstart[1] - 2 + 2*k, cstart[(2, b, a)] - 1)))
        sc.sm(grp)
        order = [(H[0], 0), (H[1], 0), (H[0], 1), (H[2], 0), (H[1], 1), (H[2], 1)]
        sc.sm([(sm_ops(1, b, a), cend[(2, b, a)] + 4, bstart[b] - 2) for b, a in order], 2.4)
        sc.run()
        rc, rl, t1 = negM(H[0]), negM(H[1]), negM(H[2])[0]
        rest = sc.pour((l_ops(1, H[0], rc, t1), bstart[H[2]] + 4)); sc.emit()
        E(rest, l_flag(1, t1), stamp_now(), comment("---- epilogue"))
        dsts = [X[:4], [F(4 + i) for i in range(4)]]
        pend = []
        for k, b in enumerate(H):
            E(l_bcast(b, rc, rl))
            for th in range(2):
                ep = epi_half(1, b, th, rl, V(24, 16), V(40, 8))
                E(ep)
                E(pend[:2]); del pend[:2]
            if ps == 0 and k > 0: carry += [(1, 4*b + i) for i in range(4)]; continue
            d_ = dsts[k & 1]
            E([o_read(aO(1, 4*b + i), 4*b + i, d_[i]) for i in range(4)])
            sts = [vstore(d_[i], vlin, sO, sSide, i*1024, O_.fin_flags if ps else O_.h0_flags) for i in range(4)]
            pre = [salu("s_mov_b32", sSide, 98304 + b*4096), wait(lgkm=d_)]
            pend = [pre + [sts[0]], None, sts[1], None, sts[2], None, sts[3]] if ps == 0 else [pre + [sts[0]], sts[1], sts[2], sts[3]]
        E(pend, wait(lgkm=0), stamp_now())

def slow_path():
    sH, sB, sI, sKo, sQo = S(4), S(5), S(6), S(7), S(8)
    Qf = [V(4*s, 4) for s in range(4)]; Kf = [V(16 + 4*i, 4) for i in range(8)]; St = [V(48, 4), V(52, 4)]; Pf = V(56, 4)
    nm = V(60, 4); Vf = V(64, 4); Of = [V(68 + 4*t, 4) for t in range(8)]; L = V(100, 4); w = V(104, 8)
    ones = V(120, 4)
    vrow, vk, vv, vtr, vst_, t0, t1 = V(112), V(113), V(114), V(115), V(116), V(117), V(118)
    def S_(name, J=0):
        s = seg(name); return s
    s0 = S_("slow0")
    E(comment("---- fallback: a row sum left the safe range, redo this wave's rows with the true row max"),
      label("L_slow"), wait(vm=0, lgkm=0),
      valu("v_mbcnt_lo_u32_b32", t0, -1, 0), valu("v_mbcnt_hi_u32_b32", t0, -1, t0), valu("v_lshlrev_b32", vlin, 4, t0),
      [valu("v_mov_b32", ones[r], "0x3f803f80") for r in range(4)],
      valu("v_bfe_u32", t0, vlin, 4, 4), valu("v_lshrrev_b32", t1, 8, vlin),
      valu("v_lshlrev_b32", vrow, 8, t0), valu("v_lshl_add_u32", vst_, t1, 3, vrow), valu("v_lshl_add_u32", vrow, t1, 4, vrow),
      valu("v_lshrrev_b32", vtr, 2, t0), valu("v_lshl_add_u32", vtr, t1, 2, vtr), valu("v_lshlrev_b32", vtr, 8, vtr),
      valu("v_and_b32", t0, 3, t0), valu("v_lshl_add_u32", vtr, t0, 3, vtr), valu("v_add_u32", vtr, sStg, vtr),
      salu("s_mov_b32", sH, 0))
    s1 = S_("slow_head")
    E(label("L_sl_head"), salu("s_lshr_b32", sT0, sFlag, sH), salu("s_and_b32", sT0, sT0, 1), raw("s_cbranch_scc0 L_sl_next", "salu", {"scc"}),
      salu("s_lshl_b32", sKo, sH, 17), salu("s_mul_i32", sQo, sH, 98304), salu("s_mov_b32", sB, 0))
    s2 = S_("slow_blk")
    E(label("L_sl_blk"))
    for s in range(4): E(vload(Kf[s], vrow, sQ, sQo, 64*s))
    E(wait(vm=0))
    for s in range(4): E(scale_frag(Kf[s], Qf[s], w, None))
    E(valu("v_mov_b32", nm[0], "0xff800000"), valu("v_add_u32", vk, sKo, vrow), salu("s_mov_b32", sI, 32))
    s3 = S_("slow_p1")
    E(label("L_sl_p1"))
    for s in range(4): E(gload(Kf[s], vk, sKb, 64*s))
    E(valu("v_add_u32", vk, 4096, vk), wait(vm=0))
    for s in range(4): E(mfma(St[0], Kf[s], Qf[s], 0 if s == 0 else St[0]))
    E(salu("s_sub_u32", sI, sI, 1), scmp("s_cmp_lg_u32", sI, 0), nop(7),
      valu("v_max3_f32", nm[0], nm[0], St[0][0], St[0][1]), valu("v_max3_f32", nm[0], nm[0], St[0][2], St[0][3]),
      raw("s_cbranch_scc1 L_sl_p1", "salu", {"scc"}))
    s4 = S_("slow_mid")
    E(xlane_max(nm[0], nm[1]), [valu("v_sub_f32", nm[r], 0, nm[0]) for r in (1, 2, 3, 0)])
    for r in range(36): E(valu("v_mov_b32", V(68 + r), 0))
    E(valu("v_add_u32", vk, sKo, vrow), valu("v_add_u32", vv, sKo, vlin), valu("v_add_u32", vv, 1024 + 16384, vv), salu("s_mov_b32", sI, 16))
    s5 = S_("slow_p2")
    E(label("L_sl_p2"))
    key = (("stg", "slow"), ("Vs",), False)
    for half in range(2):
        E(salu("s_add_u32", "m0", sStg, 4096*half))
        for s in range(4): E(gload(Kf[4*half + s], vk, sKb, 64*s))
        for k in range(4): E(gdma(vv, sVb, 1024*k, key, ""))
        E(valu("v_add_u32", vk, 4096, vk), valu("v_add_u32", vv, 4096, vv))
    E(wait(vm=0))
    for a in range(2):
        for s in range(4): E(mfma(St[a], Kf[4*a + s], Qf[s], nm if s == 0 else St[a]))
    E(nop(7))
    for r in range(8): E(valu("v_exp_f32", V(48 + r), V(48 + r)))
    for r in range(4): E(valu("v_cvt_pk_bf16_f32", Pf[r], V(48 + 2*r), V(49 + 2*r)))
    E(mfma(L, ones, Pf, L))
    for t in range(8):
        for a in range(2): E(ds_read("ds_read_b64_tr_b16", Vf[2*a:2*a + 2], vtr, a*4096 + 32*t, key))
        E(wait(lgkm=0), mfma(Of[t], Vf, Pf, Of[t]), nop(1))
    E(salu("s_sub_u32", sI, sI, 1), scmp("s_cmp_lg_u32", sI, 0), raw("s_cbranch_scc1 L_sl_p2", "salu", {"scc"}))
    s6 = S_("slow_epi")
    E(nop(7), valu("v_rcp_f32", t0, L[0]), nop(0))
    for t in range(8):
        for r in range(4): E(valu("v_mul_f32", Of[t][r], t0, Of[t][r]))
        E(valu("v_cvt_pk_bf16_f32", Of[t][0], Of[t][0], Of[t][1]), valu("v_cvt_pk_bf16_f32", Of[t][1], Of[t][2], Of[t][3]),
          vstore(Of[t][0:2], vst_, sO, sQo, 32*t, "", "buffer_store_dwordx2"))
    E(salu("s_add_u32", sQo, sQo, 4096), salu("s_add_u32", sB, sB, 1), scmp("s_cmp_lt_u32", sB, NB), raw("s_cbranch_scc1 L_sl_blk", "salu", {"scc"}))
    s7 = S_("slow_next")
    E(label("L_sl_next"), salu("s_add_u32", sH, sH, 1), scmp("s_cmp_lt_u32", sH, 2), raw("s_cbranch_scc1 L_sl_head", "salu", {"scc"}))
    blkp = [s2, s3, s3, s4, s5, s5, s6]
    path2.extend((x, {"J": 0}) for x in [s0, s1] + blkp + blkp + [s7, s1] + blkp + [s7])

def finish():
    if O_.diag:
        a, b = [int(x) for x in O_.diag.split(":")]
        E(wait(vm=0), raw("s_memrealtime s[42:43]", "smem", (), rs(S(42, 2))), wait(lgkm=0), salu("s_mov_b32", S(47), S(42)),
          salu("s_sub_u32", sT0, S(STAMP0 + b), S(STAMP0 + a)), salu("s_lshr_b32", sT0, sT0, 3 if O_.stamps == 1 else 0),
          salu("s_add_u32", sT0, sT0, 7000),
          label("L_spin"), raw("s_memrealtime s[42:43]", "smem", (), rs(S(42, 2))), wait(lgkm=0),
          salu("s_sub_u32", S(42), S(42), S(46)), scmp("s_cmp_lt_u32", S(42), sT0), raw("s_cbranch_scc1 L_spin", "salu", {"scc"}))
    elif O_.stamps:
        E(wait(vm=0), raw("s_memrealtime s[42:43]", "smem", (), rs(S(42, 2))), wait(lgkm=0), salu("s_mov_b32", S(47), S(42)))
        E(salu("s_lshl_b32", sT0, S(2), 2), salu("s_add_u32", sT0, sT0, sW), salu("s_lshl_b32", sT0, sT0, 8))
        E(valu("v_mov_b32", V(1), sT0))
        for k in range(nstamp[0] + 2):
            E(valu("v_mov_b32", V(2), S(46 + k)),
              Inst(f"global_store_dword v1, v2, s[44:45] offset:{4*k}", "vst", rs(V(1), V(2), S(44, 2)), (), data=set()), nop(1))
    if O_.stamps and not O_.diag:
        E(raw("s_getreg_b32 s42, hwreg(HW_REG_XCC_ID)", "salu", (), rs(S(42))), valu("v_mov_b32", V(1), sT0), valu("v_mov_b32", V(2), S(42)),
          Inst("global_store_dword v1, v2, s[44:45] offset:252", "vst", rs(V(1), V(2), S(44, 2)), (), data=set()))
    E(scmp("s_cmp_eq_u32", sFlag, 0), raw("s_cbranch_scc1 L_end", "salu", {"scc"}), label("L_fast_end"))

def build():
    s = seg("start"); path.append((s, {"J": 0})); startup()
    for J in range(4): straight(J)
    if O_.probe == 4: E(stamp_now())
    loop4("A", 4, 2)
    for J in range(12, 15): straight(J)
    transition()
    straight(16)
    loop4("M", 17, 2)
    for J in range(25, 29): straight(J, stamp_now() if J == 28 or (J == 26 and O_.probe == 4) else None)
    endgame()
    finish()
    if O_.slow: slow_path()
    seg("exit"); E(label("L_end"))
    def trace(): return [(i, mkctx(c)) for sidx, c in path + path2 for i in segs[sidx][1]]
    for rnd in range(5):
        fix = {}
        resolve_and_check(trace(), fix=fix)
        for sg in segs:
            new = []
            for i in sg[1]:
                if i.kind == "wait" and i.m["nvm"] in (None, 63) and i.m["nlg"] in (None, 15): fix[0] = 1; continue
                if id(i) in fix: new.append(nop(fix[id(i)] - 1))
                new.append(i)
            sg[1][:] = new
        if not fix: break
    resolve_and_check(trace(), verbose=True)
    if O_.stamps:
        tr = [i for sidx, c in path for i in segs[sidx][1]]; cuts = [k for k, i in enumerate(tr) if i.kind == "smem" and "s[42:43]" in i.text]
        print("  est between stamps:", [cost_estimate(tr[a:b]) for a, b in zip(cuts, cuts[1:])])
    for name, ins in segs:
        if not name.startswith("slow"): print(f"  seg {name:8s} insts {len(ins):5d} est cycles {cost_estimate(ins):6d} nops {sum(1 for i in ins if i.kind == 'nop')}")

HEAD = """; MHA forward, B=16 H=32 Sq=384 Sk=512 D=128, bf16 in/out.  Generated by the author's own script (gen/gen10.py).
; C operand; the final row sums are checked (NaN or >= 2^64) and a failing wave redoes its rows with the true
; row max (L_slow).
; @launch grid=(256,1,1) block=(256,1,1) lds=163840
.amdgcn_target "amdgcn-amd-amdhsa--gfx950"
.text
.globl standalone__mha_softmax__near_ridge_kernel
.p2align 8
.type standalone__mha_softmax__near_ridge_kernel,@function
standalone__mha_softmax__near_ridge_kernel:
"""
TAIL = """    s_endpgm
.section .rodata,"a"
.p2align 6
.amdhsa_kernel standalone__mha_softmax__near_ridge_kernel
  .amdhsa_next_free_vgpr 512
  .amdhsa_next_free_sgpr 102
  .amdhsa_accum_offset 256
  .amdhsa_group_segment_fixed_size 0
  .amdhsa_kernarg_size 48
  .amdhsa_user_sgpr_count 2
  .amdhsa_user_sgpr_kernarg_segment_ptr 1
  .amdhsa_system_sgpr_workgroup_id_x 1
.end_amdhsa_kernel
"""
def insert_pads(text):
    import subprocess, re, tempfile, os
    def offsets(npads):
        d = tempfile.mkdtemp(); t = text()
        t = t.replace("L_padret:", "L_padret:\n" + "".join(f"L_pad{k}:\n" for k in range(npads + 1, 40)))
        open(d + "/a.s", "w").write(t)
        subprocess.run(["clang", "-x", "assembler", "-target", "amdgcn-amd-amdhsa", "-mcpu=gfx950", "-c", d + "/a.s", "-o", d + "/a.o"], check=True)
        dis = subprocess.run(["llvm-objdump", "-d", "--mcpu=gfx950", d + "/a.o"], capture_output=True, text=True).stdout
        dis = dis[dis.index("<L_main>:"):]
        ad = [(int(m.group(2), 16), m.group(1)) for m in re.finditer(r"^\s+(\S+).*// ([0-9A-F]{12}):", dis, re.M)]
        flat = [(sg, k) for sg in segs for k in range(len(sg[1]))]
        flat = flat[[i for i, (sg, k) in enumerate(flat) if sg[1][k].text == "L_main:"][0]:]
        o = []; j = 0
        for sg, k in flat:
            x = sg[1][k]
            if x.kind == "label":
                if x.text == "L_fast_end:": break
                if x.text.startswith(".p2align") and ad[j][0] % 8: j += 1
                continue
            assert ad[j][1].startswith(x.text.split()[0][:12]), (ad[j], x.text)
            o.append((ad[j][0] - ad[0][0], sg, k)); j += 1
        return o
    page = 1; pads = []
    while True:
        off = offsets(page - 1)
        cand = [n for n, (a, sg, k) in enumerate(off) if 4096*page <= a <= 4096*page + 56]
        if not cand: break
        def score(n):
            a, sg, k = off[n]; lo = max(0, k - 8); w = sg[1][lo:k + 8]
            return cost_estimate(w[:k - lo] + [raw("pad")] + w[k - lo:]) - cost_estimate(w)
        n = min(cand, key=score); _, sg, k = off[n]
        p = raw(f"s_cbranch_vccz L_pad{page + 4}"); pads.append(p)
        sg[1][k:k] = [label(f"L_pad{page}"), p]
        page += 1
    for i, p in enumerate(pads):
        if i + 1 + 4 >= page: p.text = "s_cbranch_vccz L_padret"
    assert page > 4
    print(f"  {page - 1} page pads")

if __name__ == "__main__":
    out = sys.argv[1]
    for a in sys.argv[2:]:
        k, v = a.split("=")
        setattr(O_, k, type(getattr(O_, k))(v))
    build()
    def text(): return HEAD + "\n".join((i.text if i.kind == "label" else "    " + i.text) for _, ins in segs for i in ins) + "\n" + TAIL
    if O_.pads: insert_pads(text)
    open(out, "w").write(text())
    import subprocess
    r = subprocess.run([sys.executable, "cdna_unwritten_srd_check.py", out], capture_output=True, text=True)
    print("  check:", r.stdout.strip()[-300:], r.stderr.strip()[-300:])
```

```python
import sys, math, struct
from ir import *

class Opt:
    stamps = 0; diag = ""; probe = 0; force = 0
    late_flags = "sc1"; h0_flags = "sc1"; fin_flags = "sc1"; fq = "nt"; fk = "nt"; fv = "nt"
    n0 = 14
    lead0 = "80,85,90,100,123,123,123,123,123,123,123,123,123,123,145"
    qs = "000222222222222"
    tq = 4; tstep = 12; tper = 2
    olate = "26552"
    g11 = 56; g12 = 16; dsp = 5; p0g = 6; p1g = 10; p1e = 1.0; tl0 = 1
    osched = "000022000000"; tsched = ""
    ne1 = 36
    pads = 1
    pvo = "bs2"; qks = 1; slow = 1
O_ = Opt()

NB = 6
def f32bits(x): return struct.unpack("<I", struct.pack("<f", x))[0]
CSCALE = f32bits(math.log2(math.e) / math.sqrt(128.0))
THRESH = f32bits(2.0 ** 64)
def bf16(x):
    u = f32bits(x); return (u + 0x7fff + ((u >> 16) & 1)) >> 16
C_HI = bf16(math.log2(math.e) / math.sqrt(128.0))
C_LO = bf16(math.log2(math.e) / math.sqrt(128.0) - struct.unpack("<f", struct.pack("<I", C_HI << 16))[0])

def Sreg(b, a): return V(8*b + 4*a, 4)
def Preg(par, b): return V(48 + 24*par + 4*b, 4)
def negM(b): return V(96 + 4*b, 4)
kaddr = [V(120 + s) for s in range(4)]
vaddr = [V(124 + t) for t in range(8)]
vkv = V(132); vsd0 = V(133); vsd1 = V(134); vlin = V(135)
qa = [V(136 + s) for s in range(4)]
ow = V(140)
ovr = V(141)
def Oreg(b, t):
    n = 8*b + t
    return V(144 + 4*n, 4) if n < 28 else A(176 + 4*(n - 28), 4)
def Qreg(b, s): return A(16*b + 4*s, 4)
def F(i): return A(96 + 4*i, 4)
def lacc(b): return A(128 + 4*(b//3), 4)
def sel(b): return A(136 + 4*(b % 3), 4)
X = [A(148 + 4*k, 4) for k in range(7)]
CS = A(164, 10)
sQ, sO = S(12, 4), S(24, 4); sKb, sVb, sVx = S(16, 2), S(22, 2), S(18, 2)
sW = S(28); sM0 = S(30); sStg = S(31); sSide = S(32); sT0 = S(33); sT1 = S(34); sT2 = S(35)
sFlag = S(36); sThr = S(37); sC = S(38, 2); sCmp = S(40, 2); sStamp = S(42, 2); sCnt = S(3); sQd = S(29)
STAMP0 = 48

def aK(J): return (("ring", (J - 2) % 4, "K"), ("K", J), True)
def aV(J): return (("ring", J % 4, "V"), ("V", J), True) if J < 31 else (("ring", 2, "K"), ("V", J), True)
def rK(d): return lambda c: aK(c["J"] + d)
def rV(d): return lambda c: aV(c["J"] + d)
def aQ(h, p): return (("stg", p), ("Q", h), False)
def aO(h, p): return (("stg", p), ("O", h), False)
def blk(f, h, b): return [f(h, 4*b + i) for i in range(4)]
def mkctx(c): return lambda r: r(c) if callable(r) else r

segs = []; path = []; path2 = []; cur = None
def seg(name):
    global cur
    cur = []; segs.append([name, cur]); return len(segs) - 1
def E(*xs):
    for x in xs:
        if x is None: continue
        if isinstance(x, (list, tuple)): E(*x)
        else: cur.append(x)
nstamp = [0]
def stamp_now():
    if O_.stamps not in (1, 2): return []
    k = nstamp[0]; nstamp[0] += 1
    op = "s_memtime" if O_.stamps == 1 else "s_memrealtime"
    return [raw(f"{op} {sStamp}", "smem", (), rs(sStamp)), wait(lgkm=0), salu("s_mov_b32", S(STAMP0 + k), sStamp[0])]

MEM = ("dsr", "dsw", "dma", "vld", "vst"); VAL = ("valu", "trans")
class Task:
    def __init__(s, x, lo, hi, preds): s.x, s.lo, s.hi, s.preds, s.gap = x, lo, hi, preds, None
class Sched:
    def __init__(s, mf):
        s.mf = mf; s.n = len(mf); s.g = [[] for _ in mf]; s.t = []
        s.cap = [24 if m.m["big"] else 8 for m in mf]; s.novalu = set()
    def cost(s, x): return 8 if x.kind == "trans" or x.m.get("perm") else 4
    def fits(s, g, x):
        if s.cap[g] < s.cost(x): return False
        if x.kind in MEM and any(y.kind in MEM for y in s.g[g]): return False
        if x.kind in VAL and g in s.novalu: return False
        return True
    def put(s, g, x): s.g[g].append(x); s.cap[g] -= s.cost(x)
    def fix(s, x, g):
        t = Task(x, g, g, []); t.gap = g; s.put(g, x)
        if x.kind in ("dma", "vst", "vld"): s.cap[g] = 0; s.novalu.add(g - 1)
        if x.kind == "barrier": s.cap[g] = 0
        return t
    def add(s, x, lo=0, hi=None, preds=()):
        t = Task(x, max(lo, 0), s.n - 1 if hi is None else min(hi, s.n - 1), [p for p in preds if p[0] is not None]); s.t.append(t); return t
    def seq(s, xs, lo=0, hi=None, after=None, hard=1):
        p = after
        for x in xs: p = s.add(x, lo, hi, [(p, hard, hard)])
        return p
    def sm(s, groups, smax=2.0):
        ex = [(x, lo, hi) for ops, lo, hi in groups for x in ops if x.kind == "trans"]
        sig = smax
        while True:
            pos = []; t = -9.0; ok = True
            for x, lo, hi in ex:
                t = max(lo, t + sig); g = int(t)
                while g < s.n and (not s.fits(g, x) or (pos and g <= pos[-1])): g += 1
                if g > hi - 1: ok = False; break
                pos.append(g); t = max(t, g - 0.5)
            if ok: break
            sig -= 0.05
            assert sig > 0.3, "softmax does not fit"
        k = 0
        for ops, lo, hi in groups:
            e = []
            for x in ops:
                if x.kind == "trans": e.append(s.fix(x, pos[k])); k += 1
                else: s.add(x, lo, min(hi, e[-1].gap + 5), [(e[-1], 1, 1)])
    def run(s):
        for t in reversed(s.t):
            for p, h, so in t.preds:
                if p.gap is None: p.hi = min(p.hi, t.hi - so)
        for t in s.t:
            for p, h, so in t.preds: t.lo = max(t.lo, p.lo + h)
            t.hi = max(t.hi, t.lo)
        left = list(s.t)
        for g in range(s.n):
            while True:
                rdy = [t for t in left if t.lo <= g and all(p.gap is not None and g >= p.gap + h for p, h, so in t.preds)]
                rdy = [t for t in rdy if t.hi <= g or all(g >= p.gap + so for p, h, so in t.preds)]
                rdy.sort(key=lambda t: t.hi)
                pick = next((t for t in rdy if t.hi <= g or s.fits(g, t.x)), None)
                if pick is None: break
                s.put(g, pick.x); pick.gap = g; left.remove(pick)
        assert not left, left[0].x
        s.t = []
    def pour(s, *streams):
        st = [[list(xs), lo] for xs, lo in streams]
        for g in range(s.n):
            again = True
            while again:
                again = False
                for q in st:
                    if q[0] and q[1] <= g and s.fits(g, q[0][0]): s.put(g, q[0].pop(0)); again = True; break
        return [x for q in st for x in q[0]]
    def emit(s):
        for m, g in zip(s.mf, s.g):
            key = lambda x: 3 if x.m.get("last") else (2 if x.kind in VAL else (0 if x.kind in MEM else 1))
            E(m, sorted(g, key=key))

def kread(J, d, a, s, dst): return ds_read("ds_read_b128", dst, kaddr[s], ((J + d - 2) % 4)*16384 + a*8192, rK(d))
def vread(J, d, t, a, dst):
    return ds_read("ds_read_b64_tr_b16", dst[2*a:2*a+2], vaddr[t], (((J + d) % 4)*16384 if J + d < 31 else 32768 - 1024) + a*8192, rV(d))
def kv_group(J, d, withV=True):
    o = [salu("s_add_u32", "m0", sM0, ((J + d) % 4)*16384)]
    for im in (0, 2048):
        if withV: o.append(gdma(vkv, sVb, im + 1024, rV(d), O_.fv))
        o.append(gdma(vkv, sKb, im, rK(d + 2), O_.fk) if J + d < 30 else gdma(vkv, sVx, im, rV(d + 1), O_.fv))
    return o + [kv_step()]
def kv_step(): return valu("v_add_u32", vkv, 8192, vkv)
def q_dma_block(h, b):
    o = [salu("s_add_u32", "m0", sStg, b*4096), salu("s_mov_b32", sSide, h*98304 + b*4096)]
    for i in range(4): o.append(dma(vsd1 if i & 1 else vsd0, sQ, sSide, i*1024, aQ(h, 4*b + i), O_.fq))
    return o
def piecemeal(groups):
    st = []; pre = []
    for grp in groups:
        for x in grp:
            if x.kind in MEM: st.append(pre + [x]); pre = []
            else: pre.append(x)
    if pre: st[-1] += pre
    def more(n):
        o = st[:n]; del st[:n]; return o
    more.left = lambda: len(st)
    return more

def sm_ops(par, b, a):
    s = Sreg(b, a); p = Preg(par, b)
    return [valu("v_exp_f32", s[0], s[0]), valu("v_exp_f32", s[1], s[1]), valu("v_cvt_pk_bf16_f32", p[2*a], s[0], s[1]),
            valu("v_exp_f32", s[2], s[2]), valu("v_exp_f32", s[3], s[3]), valu("v_cvt_pk_bf16_f32", p[2*a+1], s[2], s[3])]
NE_A = 40
def sm_split(par, ne=NE_A, order=range(NB)):
    st = []
    for a in range(2):
        for b in (order if a else range(NB)): st += [(b, x) for x in sm_ops(par, b, a)]
    k = ne // 2 * 3
    return st[:k], st[k:]
def delay_cvts(xs):
    o = []; pend = []
    for x in xs:
        if x.kind == "trans":
            o.append(x)
            if pend: o.append(pend.pop(0))
        else: pend.append(x)
    return o + pend
def xlane_max(m, t):
    o = []
    for op in ("v_permlane32_swap_b32", "v_permlane16_swap_b32"):
        o += [valu("v_mov_b32", t, m), swap(op, m, t), valu("v_max_f32", m, m, t)]
    return o
def rowmax_ops(b):
    m, t = negM(b)[0], negM(b)[1]; sv = lambda r: V(8*b + r)
    o = [valu("v_max3_f32", m, sv(0), sv(1), sv(2)), valu("v_max3_f32", t, sv(3), sv(4), sv(5)),
         valu("v_max3_f32", m, m, sv(6), sv(7)), valu("v_max_f32", m, m, t)] + xlane_max(m, t)
    o += [valu("v_sub_f32", negM(b)[r], 0, m) for r in (1, 2, 3, 0)]
    return o, [valu("v_pk_add_f32", V(8*b + 2*r, 2), V(8*b + 2*r, 2), negM(b)[0:2]) for r in range(4)]
def scale_frag(x, dst, w, y, pk=True):
    o = []
    if pk:
        for r in range(4): o += [valu("v_lshlrev_b32", w[2*r], 16, x[r]), valu("v_and_b32", w[2*r+1], "0xffff0000", x[r])]
        for r in range(4): o.append(valu("v_pk_mul_f32", w[2*r:2*r+2], w[2*r:2*r+2], sC))
    else:
        for r in range(4):
            o += [valu("v_lshlrev_b32", w[2*r], 16, x[r]), valu("v_and_b32", w[2*r+1], "0xffff0000", x[r]),
                  valu("v_mul_f32", w[2*r], sC[0], w[2*r]), valu("v_mul_f32", w[2*r+1], sC[0], w[2*r+1])]
    if dst.k == "v": return o + [valu("v_cvt_pk_bf16_f32", dst[r], w[2*r], w[2*r+1]) for r in range(4)]
    for r in range(4): o.append(valu("v_cvt_pk_bf16_f32", y[r], w[2*r], w[2*r+1]))
    for r in range(4): o.append(valu("v_accvgpr_write_b32", dst[r], y[r]))
    return o
def chain(b, a, fr, c0, rev):
    return [(s, mfma(Sreg(b, a), fr[s], Qreg(b, s), c0 if n == 0 else Sreg(b, a))) for n, s in enumerate(range(3, -1, -1) if rev and O_.qks else range(4))]
def qk_first(b): return [m for a in range(2) for _, m in chain(b, a, [F(4*a + s) for s in range(4)], 0, a)]
def pv_pair(par, bs, t0, fr, init, sums):
    o = []
    if O_.pvo in ("t", "ts"):
        bs = sorted(bs)
        if 5 in sums and init: sums = []; o += [(None, rowsum(par, 5, init)), (None, rowsum(par, 4, init))]
        for k in range(2):
            for b in (bs if k == 0 or O_.pvo == "t" else bs[::-1]):
                o.append((t0 + k, mfma(Oreg(b, t0 + k), Preg(par, b), fr[k], 0 if init else Oreg(b, t0 + k))))
                if k == 0 and b in sums: o.append((None, rowsum(par, b, init)))
        return o
    for n, b in enumerate(bs):
        for k in ((0, 1) if n % 2 == 0 or O_.pvo == "pp2" else (1, 0)): o.append((t0 + k, mfma(Oreg(b, t0 + k), Preg(par, b), fr[k], 0 if init else Oreg(b, t0 + k))))
        if b in sums: o.insert(len(o) - 1, (None, rowsum(par, b, init)))
    return o
def rowsum(par, b, init=False): return mfma(lacc(b), Preg(par, b), sel(b), 0 if init and b in (0, 5) else lacc(b))

def startup():
    v0, vl, vi, vu, t0, t1, t2 = V(0), V(1), V(2), V(3), V(4), V(5), V(6)
    E(comment("---- setup"),
      raw("s_load_dwordx4 s[4:7], s[0:1], 0", "smem", (), rs(S(4, 4))),
      raw("s_load_dwordx4 s[8:11], s[0:1], 16", "smem", (), rs(S(8, 4))),
      scmp("s_cmp_ge_u32", S(2), 256), raw("s_cbranch_scc1 L_end", "salu", {"scc"}))
    if O_.stamps:
        E(raw("s_load_dwordx2 s[44:45], s[0:1], 40", "smem", (), rs(S(44, 2))),
          raw("s_memrealtime s[46:47]", "smem", (), rs(S(46, 2))))
    E(comment("pull the kernel's own code into L2 (one dword per 128-byte line)"),
      raw("s_getpc_b64 s[40:41]", "salu", (), rs(S(40, 2))), label("L_pc"),
      valu("v_lshlrev_b32", t0, 7, v0), valu("v_min_u32", t1, "L_fast_end-L_pc", t0),
      Inst(f"global_load_dword v7, {t1}, s[40:41]", "vld", rs(t1, S(40, 2)), rs(V(7))),
      valu("v_add_u32", t0, 32768, t0), valu("v_min_u32", t1, "L_fast_end-L_pc", t0),
      Inst(f"global_load_dword v8, {t1}, s[40:41]", "vld", rs(t1, S(40, 2)), rs(V(8))))
    E(valu("v_lshrrev_b32", t1, 6, v0), valu("v_and_b32", vl, 63, v0),
      valu("v_readfirstlane_b32", sW, t1),
      valu("v_and_b32", vi, 15, vl), valu("v_lshrrev_b32", vu, 4, vl),
      valu("v_lshlrev_b32", t0, 1, vu), valu("v_xor_b32", t0, t0, vi), valu("v_lshlrev_b32", t0, 4, t0),
      valu("v_lshl_add_u32", vsd0, vu, 8, t0), valu("v_xor_b32", vsd1, 128, vsd0),
      salu("s_and_b32", sT0, sW, 1), salu("s_lshr_b32", sT1, sW, 1),
      salu("s_lshl_b32", sT2, sT0, 7), salu("s_lshl_b32", sT0, sT0, 10), salu("s_lshl_b32", sT1, sT1, 12),
      salu("s_add_u32", sT0, sT0, sT1),
      valu("v_xor_b32", vkv, sT2, vsd0), valu("v_add_u32", vkv, sT0, vkv),
      salu("s_lshl_b32", sM0, sW, 12), salu("s_mul_i32", sStg, sW, 24576),
      salu("s_mul_i32", sT0, S(2), 196608), salu("s_add_u32", sT0, sT0, sStg), salu("s_add_u32", sStg, sStg, 65536),
      salu("s_lshl_b32", sT1, S(2), 18),
      salu("s_mov_b32", sQ[2], 98304 + 24576), salu("s_mov_b32", sQ[3], "0x20000"),
      wait(lgkm=0),
      salu("s_add_u32", sKb[0], S(6), sT1), salu("s_addc_u32", sKb[1], S(7), 0),
      salu("s_add_u32", sQ[0], S(4), sT0), salu("s_addc_u32", sQ[1], S(5), 0), salu("s_and_b32", sQ[1], sQ[1], "0xffff"))
    g0 = kv_group(0, 0); g0 = [g0[k] for k in (0, 1, 3, 2, 4, 5)]
    more = piecemeal([kv_group(0, -2, False)] + [q_dma_block(0, b) for b in range(NB)] + [kv_group(0, -1, False), g0])
    E(more(10))
    if O_.pads: E(raw("s_branch L_main"), raw(".p2align 12", "label"), label("L_main"))
    E(salu("s_add_u32", sVb[0], S(8), sT1), salu("s_addc_u32", sVb[1], S(9), 0),
      salu("s_sub_u32", sVb[0], sVb[0], 1024 + 16384), salu("s_subb_u32", sVb[1], sVb[1], 0),
      salu("s_add_u32", sO[0], S(10), sT0), salu("s_addc_u32", sO[1], S(11), 0), salu("s_and_b32", sO[1], sO[1], "0xffff"),
      salu("s_mov_b32", sO[2], 98304 + 24576), salu("s_mov_b32", sO[3], "0x20000"),
      salu("s_add_u32", sVx[0], sVb[0], 1024 + 8192), salu("s_addc_u32", sVx[1], sVb[1], 0),
      salu("s_mov_b32", sC[0], hex(CSCALE)), salu("s_mov_b32", sC[1], hex(CSCALE)),
      salu("s_mov_b32", sThr, hex(THRESH)), salu("s_mov_b32", sFlag, O_.force), salu("s_sub_u32", sQd, sStg, 98304))
    E(valu("v_and_b32", t0, 7, vi), valu("v_lshlrev_b32", t0, 1, t0), valu("v_xor_b32", t0, t0, vu), valu("v_lshlrev_b32", t0, 4, t0),
      valu("v_lshl_add_u32", t2, vi, 8, t0), valu("v_add_u32", qa[0], sStg, t2),
      valu("v_and_b32", t1, 3, vi), valu("v_lshl_add_u32", t0, t1, 8, t0),
      valu("v_lshrrev_b32", t1, 3, vi), valu("v_lshl_add_u32", t0, t1, 11, t0),
      valu("v_bfe_u32", t1, vi, 2, 1), valu("v_lshl_add_u32", kaddr[0], t1, 12, t0))
    for s in range(1, 4): E(valu("v_xor_b32", kaddr[s], s << 6, kaddr[0]), valu("v_xor_b32", qa[s], s << 6, qa[0]))
    E(valu("v_lshrrev_b32", t1, 2, vi), valu("v_and_b32", t2, 1, vu), valu("v_lshl_add_u32", t0, t2, 2, t1),
      valu("v_lshlrev_b32", t0, 5, t0), valu("v_lshl_add_u32", t0, t1, 8, t0), valu("v_lshl_add_u32", t0, t2, 12, t0),
      valu("v_lshrrev_b32", t2, 1, vu), valu("v_lshl_add_u32", t0, t2, 11, t0),
      valu("v_and_b32", t1, 3, vi), valu("v_lshl_add_u32", t0, t1, 3, t0), valu("v_add_u32", vaddr[0], 1024, t0))
    for t in range(1, 8): E(valu("v_xor_b32", vaddr[t], t << 5, vaddr[0]))
    E(valu("v_mov_b32", t2, "0x3f803f80"))
    for k in range(3):
        E(Inst(f"v_cmp_eq_u32 vcc, {k}, {vi}", "valu", rs(vi), {"vcc"}), nop(1), Inst(f"v_cndmask_b32 {t0}, 0, {t2}, vcc", "valu", rs(t2, "vcc"), rs(t0)),
          [valu("v_accvgpr_write_b32", sel(k)[r], t0) for r in range(4)])
    E(valu("v_lshrrev_b32", t0, 1, vi), valu("v_lshlrev_b32", t1, 1, vu), valu("v_sub_u32", t0, t0, t1),
      valu("v_and_b32", t1, 1, vi), valu("v_lshlrev_b32", t1, 4, t1))
    for k in range(2):
        E(Inst(f"v_cmp_eq_u32 vcc, {k}, {t0}", "valu", rs(t0), {"vcc"}))
        for j, c in enumerate((C_HI, C_LO)):
            E(valu("v_mov_b32", t2, hex(c)), valu("v_lshlrev_b32", t2, t1, t2), Inst(f"v_cndmask_b32 {t2}, 0, {t2}, vcc", "valu", rs(t2, "vcc"), rs(t2)),
              valu("v_accvgpr_write_b32", CS[2 + 4*j + k], t2))
    E([valu("v_accvgpr_write_b32", CS[k], 0) for k in (0, 1, 4, 5, 8, 9)])
    E(valu("v_lshlrev_b32", t0, 3, vl), valu("v_add_u32", ow, sStg, t0),
      valu("v_bfe_u32", t1, vi, 1, 1), valu("v_lshl_add_u32", t0, t1, 2, vu), valu("v_lshlrev_b32", t0, 9, t0),
      valu("v_and_b32", t1, 1, vi), valu("v_lshl_add_u32", t0, t1, 6, t0), valu("v_lshrrev_b32", t1, 2, vi),
      valu("v_lshl_add_u32", t0, t1, 3, t0), valu("v_add_u32", ovr, sStg, t0),
      valu("v_and_b32", t2, 3, vi), valu("v_lshlrev_b32", t0, 5, t2), valu("v_lshl_add_u32", t0, vu, 8, t0),
      valu("v_and_b32", t2, 1, t1), valu("v_lshl_add_u32", t0, t2, 4, t0), valu("v_lshrrev_b32", t2, 1, t1), valu("v_lshl_add_u32", vlin, t2, 7, t0))
    E(more(O_.n0 - 10), stamp_now())
    E(comment("---- first K tile"), wait(vm=[aK(0)]), barrier())
    for a in range(2):
        for s in range(4): E(kread(0, 0, a, s, F(4*a + s)))
    if O_.pads:
        E(comment("visit the start of each code page once (wave w: pages w+1, w+5, ..); every stop jumps straight on while vcc = 0"),
          raw("s_mov_b64 vcc, 0"))
        for w in range(3): E(scmp("s_cmp_eq_u32", sW, w), raw(f"s_cbranch_scc1 L_pad{w + 1}", "salu", {"scc"}))
        E(raw("s_branch L_pad4"), label("L_padret"), raw("s_mov_b64 vcc, -1"))
    rawr = lambda s: V(72 + 4*s, 4)
    for b in range(NB):
        E(comment(f"---- start-up block {b}"), wait(vm=blk(aQ, 0, b)), stamp_now() if O_.probe == 2 else None)
        for s in range(4): E(ds_read("ds_read_b128", rawr(s), qa[s], b*4096, blk(aQ, 0, b)))
        for s in range(4):
            E(wait(lgkm=[rawr(s)] + ([F(k) for k in range(8)] if b == 0 else [])))
            E(more(1), scale_frag(rawr(s), Qreg(b, s), V(88, 8), Sreg(b, s & 1)))
        qk = qk_first(b)
        if b < NB - 1: E(qk, rowmax_ops(b), delay_cvts(sm_ops(0, b, 0) + sm_ops(0, b, 1)))
    assert more.left() == 0
    E(qk[:4], wait(vm=[aK(1)]), barrier())
    for s in range(4): E(qk[4 + s], kread(0, 1, 0, s, F(s)))
    E(salu("s_mov_b32", sSide, 98304), salu("s_mov_b32", sCnt, 1), rowmax_ops(NB - 1)[0][:4], wait(lgkm=[F(s) for s in range(4)]), stamp_now())

def o_read(key, p, dst):
    return [ds_read("ds_read_b64_tr_b16", dst[2*hi:2*hi + 2], ovr, (p >> 2)*4096 + (p & 3)*128 + hi*32, key) for hi in range(2)]
def pv_mfmas(par, frags, sums_first=False, init=False):
    mf = [rowsum(par, b) for b in range(NB)] if sums_first else []; st = []
    for h in range(4):
        st.append(len(mf))
        sums = [] if sums_first else [(0, 1), (5, 4), (2,), (3,)][h]
        mf += [m for _, m in pv_pair(par, range(NB) if h % 2 == 0 else range(NB - 1, -1, -1), 2*h, frags[2*h:2*h + 2], init, sums)]
    return mf, st
def late_pieces(k):
    cnt = [int(c, 16) for c in O_.olate]; ne = sum(map(int, O_.osched)); assert sum(cnt) == 24 - ne and sum(cnt[:4]) >= 12
    return (list(range(12, 24)) + list(range(ne, 12)))[sum(cnt[:k]):sum(cnt[:k + 1])]
def kv_plan(J):
    if J >= 16: return [(3, 27)] if J < 28 else []
    o = []
    for k, lead in enumerate(int(x) for x in O_.lead0.split(",")):
        Jk, g = divmod(102*(k + 1) + 23 - lead, 102)
        assert 2 <= g <= 82
        if Jk == J: o.append((k + 1 - J, g))
    return o
END_ORDER = (2, 3, 4, 5, 0, 1)
NPRE = 2
VF15 = [Qreg(4 + t//4, t % 4) for t in range(8)]

def iteration(J, ctl=()):
    par = J & 1; j = J % 16
    mf = [m for a in range(2) for b in range(NB) for _, m in chain(b, a, [F(4*a + s) for s in range(4)], negM(b), b & 1)]
    pv, pst = pv_mfmas(par, [F(t) for t in range(8)], init=(j == 0))
    mf += pv; pst = [48 + x for x in pst]
    sc = Sched(mf)
    for x in ctl: sc.fix(x, 101)
    if ctl: sc.cap[101] = 0
    for s in range(4): sc.fix(kread(J, 1, 1, s, F(4 + s)), [1, 6, 11, 13][s])
    tb2 = None
    if J == 0:
        sc.fix(wait(vm=[rV(0)], lgkm=0), 23); tb = sc.fix(barrier(), 23)
        sc.fix(wait(vm=[rK(2)]), 72); tb2 = sc.fix(barrier(), 72)
    else:
        sc.fix(wait(vm=[rV(0), rK(2)], lgkm=0), 23); tb = sc.fix(barrier(), 23)
    if J == 0:
        b = NB - 1; t = sc.seq(rowmax_ops(b)[0][4:], 0, 8, hard=0)
        sub = [sc.add(valu("v_add_f32", V(8*b + r), V(8*b + r), negM(b)[1]), 0, 10 if r < 4 else 22, [(t, 0, 0)]) for r in range(8)]
        sc.run()
    plan = kv_plan(J); busy = []
    for n_, (d, g0) in enumerate(plan):
        ops = kv_group(J, d); g = g0
        while sc.cap[g - 2] < 4: g += 1
        sc.fix(ops[0], g - 2)
        for x in ops[1:5]:
            while sc.cap[g] < 8 or sc.cap[g - 1] == 0 or sc.cap[g + 1] == 0 or any(y.kind in VAL for y in sc.g[g - 1]): g += 1
            td = sc.fix(x, g); g += O_.dsp
        busy.append((g0 - 3, td.gap + 1))
        sc.add(ops[5], 0, 100 if n_ + 1 == len(plan) else plan[n_ + 1][1] - 1, [(td, 1, 1)])
    nq = int(O_.qs[J]) if J < 15 else 0
    if nq:
        p0 = sum(map(int, O_.qs[:J])); g0 = max([50] + [hi + 6 for lo, hi in busy if lo < 50])
        assert all(hi < g0 - 2 or lo > g0 + 12*(nq - 1) for lo, hi in busy)
        sc.fix(salu("s_add_u32", "m0", sSide, sQd), g0 - 2)
        for k in range(nq):
            t = sc.fix(dma(vsd1 if (p0 + k) & 1 else vsd0, sQ, sSide, k*1024, (lambda k: lambda c: aQ(1, sum(map(int, O_.qs[:c["J"]])) + k))(k), O_.fq), g0 + 12*k)
        sc.add(salu("s_add_u32", sSide, sSide, 1024*nq), 0, 99, [(t, 1, 1)])
    if J in (27, 28):
        ps = late_pieces(J - 27); g0 = [O_.g11, O_.g12][J - 27]
        base = t = None
        for i, p in enumerate(ps):
            g = g0 + (96 - g0)*i//max(1, len(ps) - 1)
            while g in (22, 23, 24) or sc.cap[g] < 8 or sc.cap[g - 1] == 0 or sc.cap[g + 1] == 0: g += 1
            t = sc.seq(o_read(aO(0, p), p, X[i]), 0, g - 8, t); sc.add(wait(lgkm=[X[i]]), 0, g - 1, [(t, 1, 6)])
            if base is None or not 0 <= p - base < 4: base = p; sc.fix(salu("s_mov_b32", sSide, p*1024), g - 1)
            sc.fix(vstore(X[i], vlin, sO, sSide, (p - base)*1024, O_.late_flags), g)
    p = tb
    for t in range(8):
        for a in range(2): p = sc.add(vread(J, 0, t, a, F(t)), 24 if t < 4 else 48, None, [(p, 1, 1)])
        if t in (1, 3): sc.add(wait(lgkm=[F(t - 1), F(t)]), 0, pst[t//2] - 1, [(p, 1, 8)])
    sc.add(wait(lgkm=[F(4), F(5), F(6), F(7)]), 0, pst[2] - 1, [(p, 1, 8)])
    for s in range(4): p = sc.add(kread(J, 2, 0, s, F(s)), pst[2], None if J != 14 else 90, [(p, 1, 1), (tb2, 1, 1)])
    if J == 28:
        pre = late_pieces(2)[:NPRE]
        p = sc.seq([x for i, q in enumerate(pre) for x in o_read(aO(0, q), q, X[i])], 60, None, p)
    if J != 14: sc.add(wait(lgkm=[F(s) for s in range(4)] + (X[:NPRE] if J == 28 else [])), 0, 101 if J == 28 else 100, [(p, 1, 8 if J != 28 else 5)])
    else:
        sc.fix(wait(vm=[rV(1), rK(3)] + blk(aQ, 1, 0)), 92); t = sc.fix(barrier(), 92)
        for k in range(4): sc.fix(vread(J, 1, k//2, k & 1, VF15[k//2]), 93 + 2*k)
    nxt = lambda ne: [x for _, x in sm_split(1 - par, ne, END_ORDER if J == 28 else range(NB))[0]]
    if J == 0:
        b = NB - 1
        sc.sm([(sm_ops(0, b, 0), sub[3].gap + 1, 19), (sm_ops(0, b, 1), sub[7].gap + 1, 43), (nxt(NE_A), 24, 100)])
    elif J == 16:
        tail = sm_split(0, O_.ne1)[1]
        sc.sm([([x for bb, x in tail if bb == b], 0, 23 + 4*b) for b in range(NB) if any(bb == b for bb, _ in tail)] + [(nxt(NE_A), 24, 100)])
    elif J == 14:
        sc.sm([([x for _, x in sm_split(par)[1]], 0, 30)] + [(sm_ops(1, b, a), 24*a + 4*b + 8, 101) for a in range(2) for b in range(NB)])
    else:
        sc.sm([([x for _, x in sm_split(par)[1]], 0, 30)], 2.4)
        sc.sm([(nxt(NE_A), 24, 100)])
    sc.run(); sc.emit()

def straight(J, *pre):
    s = seg(f"J{J}"); path.append((s, {"J": J})); E(comment(f"---- head {J//16}, key tile {J % 16}"), pre); iteration(J)
def loop4(name, J0, passes):
    ss = []
    for k in range(4):
        ss.append(seg(f"{name}{k}"))
        if k == 0: E(raw(".p2align 3", "label"), label(f"L_{name}"))
        d = salu("s_sub_u32", sCnt, sCnt, 1); d.m["last"] = True
        iteration(J0 + k, [d, raw(f"s_cbranch_scc0 L_{name}", "salu", {"scc"}, (), last=True)] if k == 3 else [])
        for n in range(1, passes): assert kv_plan(J0 + k) == kv_plan(J0 + k + 4*n) and (J0 > 15 or O_.qs[J0 + k] == O_.qs[J0 + k + 4*n])
    assert J0 > 15 or sum(map(int, O_.qs[J0:J0 + 4])) % 2 == 0
    for n in range(4*passes): path.append((ss[n % 4], {"J": J0 + n}))

def l_ops(h, b0, r, t1):
    o = [valu("v_accvgpr_read_b32", r[k], lacc(b0)[k]) for k in range(4)]
    o += [valu("v_add_f32", t1, r[0], r[1]), valu("v_add_f32", t1, t1, r[2]), valu("v_add_f32", t1, t1, r[3])]
    o += [valu("v_rcp_f32", r[k], r[k]) for k in range(4)]
    return o
def l_flag(h, t1):
    return [Inst(f"v_cmp_nlt_f32 {sCmp}, {t1}, {sThr}", "valu", rs(t1, sThr), rs(sCmp)), nop(0),
            scmp("s_cmp_lg_u64", sCmp, 0), salu("s_cselect_b32", sT0, 1 << h, 0), salu("s_or_b32", sFlag, sFlag, sT0)]
def l_bcast(b, r, dst):
    o = [valu("v_mov_b64_dpp", dst[2*k:2*k + 2], r[2*k:2*k + 2], mods=f"row_newbcast:{b % 3} row_mask:0xf bank_mask:0xf") for k in range(2)]
    for x in o: x.m["dpp"] = True
    return o
def epi_half(h, b, th, rl, tmp, y):
    r0 = Oreg(b, 4*th); w = V(r0.i, 16) if r0.k == "v" else tmp; o = []
    if r0.k == "a": o += [valu("v_accvgpr_read_b32", w[i], A(r0.i + i)) for i in range(16)]
    o += [valu("v_pk_mul_f32", w[2*i:2*i + 2], w[2*i:2*i + 2], rl[2*(i & 1):2*(i & 1) + 2]) for i in range(8)]
    o += [valu("v_cvt_pk_bf16_f32", y[2*r + k], w[8*k + r], w[8*k + 4 + r]) for r in range(4) for k in range(2)]
    o += [ds_write2st64(ow, y[4*k:4*k + 2], y[4*k + 2:4*k + 4], 8*b + 4*th + 2*k, 8*b + 4*th + 2*k + 1, blk(aO, h, b)) for k in range(2)]
    return o

def transition():
    s = seg("trans"); path.append((s, {"J": 15}))
    E(stamp_now(), comment("---- head 0: last PV; switch to head 1"))
    vf = VF15
    NSH = 1
    def rawr(b, n): return V(16 + 4*n, 4) if 4*b + n < NSH else Qreg(b, n)
    def qrd(b): return [ds_read("ds_read_b128", rawr(b, n), qa[n], b*4096, blk(aQ, 1, b)) for n in range(4)]
    rc = [negM(4), negM(5)]
    rl = V(72, 4); y = V(76, 8)
    def pm(f):
        q = Qreg(f//4, f % 4); d = V(76 + 8*(f & 1), 8); t = V(92, 4)
        mf = [mfma(d[0:4], CS[2:6], q, 0), mfma(d[0:4], CS[6:10], q, d[0:4]), mfma(d[4:8], CS[0:4], q, 0), mfma(d[4:8], CS[4:8], q, d[4:8])]
        fl = []
        for hh in range(2):
            fl += [valu("v_cvt_pk_bf16_f32", t[2*hh + k], d[4*hh + 2*k], d[4*hh + 2*k + 1]) for k in range(2)]
            fl += [valu("v_accvgpr_write_b32", q[2*hh + k], t[2*hh + k]) for k in range(2)]
        return mf, fl
    npre = sum(map(int, O_.qs)); assert npre >= 8
    more = piecemeal([[x for k, x in enumerate(q_dma_block(1, b)) if k < 2 or 4*b + k - 2 >= npre] for b in range(npre//4, NB)]
                     + [kv_group(15, d) for d in (1, 2, 3)])
    vr = [vread(15, 0, t, a, vf[t]) for t in range(8) for a in range(2)]
    pv, pst = pv_mfmas(1, vf, True)
    sc = Sched(pv)
    g = 8
    for grp in more(O_.tq):
        for i, x in enumerate(grp):
            if x.kind not in MEM: sc.fix(x, g - 3 if len(grp) - i > 3 else g - 2)
            else: sc.fix(x, g); g += O_.tstep
    sc.add(wait(lgkm=vf[:2]), 4, pst[0] - 1)
    q0 = qrd(0)
    p = sc.seq(q0[:NSH], 0); wq = sc.add(wait(lgkm=[rawr(0, NSH - 1)]), 0, 10, [(p, 1, 6)])
    p = sc.seq(vr[4:8], 0, None, p); sc.add(wait(lgkm=vf[2:4]), 0, pst[1] - 1, [(p, 1, 6)])
    p = sc.seq(vr[8:], 0, None, p); sc.add(wait(lgkm=vf[4:]), 0, pst[2] - 1, [(p, 1, 6)])
    p = sc.seq([kread(15, 1, 1, k, F(4 + k)) for k in range(4)] + q0[NSH:] + [wait(vm=blk(aQ, 1, 1))] + qrd(1), 24, 46, p)
    sc.fix(wait(lgkm=0), 53); sc.fix(barrier(), 53)
    sc.run()
    lv = l_ops(0, 0, rc[0], V(60)) + l_ops(0, 3, rc[1], V(61)) + [valu("v_add_f32", V(60), V(60), V(61))]; ls = l_flag(0, V(60))
    st = []
    for n in range(NSH): st += scale_frag(rawr(0, n), Qreg(0, n), V(0, 8), V(8 + 4*(n & 1), 4), pk=False)
    rest = sc.pour((lv, 10), (st, wq.gap + 1)); sc.emit(); E(rest); rest = []
    def site(k):
        c = [int(x) for x in O_.osched] + [0]; p0 = sum(c[:k]); o = more(int(O_.tsched[k]) if O_.tsched else O_.tper)
        if c[k]:
            o += [salu("s_mov_b32", sT1, p0*1024), wait(lgkm=[X[(p0 + i) % 4] for i in range(c[k])])]
            o += [vstore(X[(p0 + i) % 4], vlin, sO, sT1, i*1024, O_.late_flags) for i in range(c[k])]
        p1 = p0 + c[k]; assert (p1 + c[k + 1] + 3)//4 <= (k + 1)//2 or not c[k + 1]
        return o + [o_read(aO(0, p), p, X[p % 4]) for p in range(p1, p1 + c[k + 1])]
    first = sm_split(0, O_.ne1)[0]
    def finish(b): return rowmax_ops(b)[1] + delay_cvts([x for bb, x in first if bb == b])
    for b in range(NB):
        E(comment(f"---- switch block {b}"), stamp_now() if O_.probe == 1 else None)
        fs = range(max(NSH, 4*b + 1), min(4*b + 5, 4*NB))
        mf = []; fl = []
        for f in fs:
            m, x = pm(f); mf += m; fl.append(x)
        qk = qk_first(b)
        if b == NB - 1: qk = [qk[k] for k in (0, 1, 2)] + [m for _, m in chain(b, 1, [F(4 + s_) for s_ in range(4)], 0, False)][:3] + [qk[3]]; \
                        qk.append(mfma(Sreg(b, 1), F(7), Qreg(b, 3), Sreg(b, 1)))
        sc = Sched(mf + qk)
        for k, x in enumerate(fl):
            for j, v in enumerate(x): sc.put(4*(k + 1) + j//2, v)
        if 1 <= b < NB - 1:
            sc.put(0, wait(vm=blk(aQ, 1, b + 1)))
            for n, x in enumerate(qrd(b + 1)): sc.put(1 + n, x)
            sc.put(11, wait(lgkm=[Qreg(b + 1, n) for n in range(4)]))
        rest = sc.pour((rowmax_ops(b - 1)[0] if b else rest, 0)); sc.emit(); E(rest, ls if b == 0 else None)
        if b == NB - 1: E([kread(15, 2, 0, s_, F(s_)) for s_ in range(4)])
        E(l_bcast(b, rc[b//3], rl), epi_half(0, b, 0, rl, V(176, 16), y), site(2*b), finish(b - 1) if b else None,
          epi_half(0, b, 1, rl, V(192, 16), y), site(2*b + 1))
    assert more.left() == 0
    E(rowmax_ops(NB - 1)[0], finish(NB - 1))
    E(salu("s_mov_b32", sCnt, 1), wait(lgkm=[F(s_) for s_ in range(4)]), stamp_now())

def endgame():
    s = seg("end"); path.append((s, {"J": 29}))
    E(stamp_now())
    carry = []
    for ps, H in enumerate(([3, 4, 5], [0, 1, 2])):
        E(comment(f"---- pass {ps}"))
        subs = [("Q", 1, 0), ("Q", 1, 1), ("P", 0, 0), ("P", 0, 1), ("Q", 2, 0), ("Q", 2, 1), ("P", 1, 0), ("P", 1, 1), ("P", 2, 0), ("P", 2, 1)]
        FA, FB = [F(k) for k in range(4)], [F(4 + k) for k in range(4)]
        G = [[Qreg(3 + n, k) for k in range(4)] for n in range(3)]; Hh = [[A(176 + 16*n + 4*k, 4) for k in range(4)] for n in range(5)]
        fr = [FA, FB, FA, FB, FA, FB, FA] + G if ps == 0 else [FA, FB] + Hh + G
        mf = []; use = []; cend = {}; cstart = {}; pstart = {}; bstart = {}
        for i, (kind, d, x) in enumerate(subs):
            u = {}
            if kind == "Q":
                for n, b in enumerate(H):
                    cstart[(d, b, x)] = len(mf)
                    for s_, m in chain(b, x, fr[i], negM(b), n & 1): u.setdefault(s_, []).append(len(mf)); mf.append(m)
                    cend[(d, b, x)] = len(mf) - 1
            elif d == 2:
                if x == 0:
                    u2 = {}
                    for n, b in enumerate(H):
                        bstart[b] = len(mf); mf.append(rowsum(1, b))
                        for t in range(8):
                            (u if t < 4 else u2).setdefault(t & 3, []).append(len(mf))
                            mf.append(mfma(Oreg(b, t), Preg(1, b), fr[i + (t >> 2)][t & 3], Oreg(b, t)))
                else: u = u2
            else:
                par = (d + 1) & 1
                if x == 0: pstart[d] = len(mf)
                for hh in range(2):
                    for t, m in pv_pair(par, H if hh == 0 else H[::-1], 4*x + 2*hh, fr[i][2*hh:2*hh + 2], False, H[2*x + hh:2*x + hh + 1]):
                        if t is not None: u.setdefault(t & 3, []).append(len(mf))
                        mf.append(m)
            use.append(u)
        sc = Sched(mf); bar = {}
        if ps == 0:
            for d, g, keys in ((0, 9, [rV(0), rK(2)]), (1, use[4][1][-1], [rV(1), rV(2)])):
                sc.fix(wait(vm=keys), g)
                bar[d] = bar[2] = sc.fix(barrier(), g)
        pcs = [(0, q) for q in late_pieces(2) + late_pieces(3)] if ps == 0 else [(0, q) for q in late_pieces(4)] + carry
        taken = {t.gap + k for t in bar.values() for k in (-1, 0, 1)}
        NX = 7; prev_st = [None]*NX; pst = None; base = None
        for i, (h, q) in enumerate(pcs):
            g = O_.p0g + (len(mf) - 4 - O_.p0g)*i//max(1, len(pcs) - 1) if ps == 0 else int(O_.p1g + (len(mf) - 3 - O_.p1g)*(i/(len(pcs) - 1))**O_.p1e)
            while g in taken or g - 1 in taken: g += 1
            off = h*98304 + q*1024; xr = X[i % NX]
            if base is None or not 0 <= off - base < 4096:
                base = off; sc.add(salu("s_mov_b32", sSide, base), 0, g - 1, [(pst, 1, 1)])
            if ps or i >= NPRE:
                r = sc.seq(o_read(aO(h, q), q, xr), g - 60, g - 8, prev_st[i % NX])
                sc.add(wait(lgkm=[xr]), 0, g - 1, [(r, 1, 7)])
            pst = prev_st[i % NX] = sc.fix(vstore(xr, vlin, sO, sSide, off - base, O_.h0_flags if h else O_.late_flags), g)
        prev = None
        for i, (kind, d, x) in enumerate(subs):
            if i == 0 or (ps == 1 and (i == 1 or i >= 7)): continue
            tight = ps == 0 and i < 7
            for k in range(4):
                lo = (use[i - 2][k][-1] if i >= 2 else 0) if tight else (cend[(2, 3 + i - 7, 1)] if ps == 0 else 0)
                rds = [kread(29, d, x, k, fr[i][k])] if kind == "Q" else [vread(29, d, 4*x + k, a, fr[i][k]) for a in range(2)]
                bp = bar.get(d if kind == "P" else (0 if d == 2 else None))
                for r in rds: prev = sc.add(r, lo, None, [(prev, 1, 1), (bp, 1, 1)])
                if tight and kind == "P" and k & 1: sc.add(wait(lgkm=fr[i][k - 1:k + 1]), 0, min(use[i][k - 1][0], use[i][k][0]) - 1, [(prev, 1, 6)])
            if not (tight and kind == "P"): sc.add(wait(lgkm=fr[i]), 0, use[i][0][0] - 1, [(prev, 1, 6)])
        if ps == 0:
            for a in range(2):
                for k in range(4): prev = sc.add(kread(29, 1, a, k, F(4*a + k)), use[6][k][-1], None, [(prev, 1, 1)])
        grp = [([x for bb, x in sm_split(1, NE_A, END_ORDER)[1] if bb == b], 0, cstart[(1, b, 1)] - 1) for b in H if b >= O_.tl0]
        for a in range(2):
            for k, b in enumerate(H): grp.append((sm_ops(0, b, a), cend[(1, b, a)] + 4, min(pstart[1] - 2 + 2*k, cstart[(2, b, a)] - 1)))
        sc.sm(grp)
        order = [(H[0], 0), (H[1], 0), (H[0], 1), (H[2], 0), (H[1], 1), (H[2], 1)]
        sc.sm([(sm_ops(1, b, a), cend[(2, b, a)] + 4, bstart[b] - 2) for b, a in order]
              + ([(sm_ops(1, b, 1), 100, len(mf) - 1) for b in range(O_.tl0)] if ps == 0 else []), 2.4)
        sc.run()
        rc, rl, t1 = negM(H[0]), negM(H[1]), negM(H[2])[0]
        rest = sc.pour((l_ops(1, H[0], rc, t1), bstart[H[2]] + 4)); sc.emit()
        E(rest, l_flag(1, t1), stamp_now(), comment("---- epilogue"))
        dsts = [X[:4], [F(4 + i) for i in range(4)]]
        pend = []
        for k, b in enumerate(H):
            E(l_bcast(b, rc, rl))
            for th in range(2):
                ep = epi_half(1, b, th, rl, V(24, 16), V(40, 8))
                E(ep)
                E(pend[:2]); del pend[:2]
            if ps == 0 and k > 0: carry += [(1, 4*b + i) for i in range(4)]; continue
            d_ = dsts[k & 1]
            E([o_read(aO(1, 4*b + i), 4*b + i, d_[i]) for i in range(4)])
            sts = [vstore(d_[i], vlin, sO, sSide, i*1024, O_.fin_flags if ps else O_.h0_flags) for i in range(4)]
            pre = [salu("s_mov_b32", sSide, 98304 + b*4096), wait(lgkm=d_)]
            pend = [pre + [sts[0]], None, sts[1], None, sts[2], None, sts[3]] if ps == 0 else [pre + [sts[0]], sts[1], sts[2], sts[3]]
        E(pend, wait(lgkm=0), stamp_now())

def slow_path():
    sH, sB, sI, sKo, sQo = S(4), S(5), S(6), S(7), S(8)
    Qf = [V(4*s, 4) for s in range(4)]; Kf = [V(16 + 4*i, 4) for i in range(8)]; St = [V(48, 4), V(52, 4)]; Pf = V(56, 4)
    nm = V(60, 4); Vf = V(64, 4); Of = [V(68 + 4*t, 4) for t in range(8)]; L = V(100, 4); w = V(104, 8)
    ones = V(120, 4)
    vrow, vk, vv, vtr, vst_, t0, t1 = V(112), V(113), V(114), V(115), V(116), V(117), V(118)
    def S_(name, J=0):
        s = seg(name); return s
    s0 = S_("slow0")
    E(comment("---- fallback: a row sum left the safe range, redo this wave's rows with the true row max"),
      label("L_slow"), wait(vm=0, lgkm=0),
      valu("v_mbcnt_lo_u32_b32", t0, -1, 0), valu("v_mbcnt_hi_u32_b32", t0, -1, t0), valu("v_lshlrev_b32", vlin, 4, t0),
      [valu("v_mov_b32", ones[r], "0x3f803f80") for r in range(4)],
      valu("v_bfe_u32", t0, vlin, 4, 4), valu("v_lshrrev_b32", t1, 8, vlin),
      valu("v_lshlrev_b32", vrow, 8, t0), valu("v_lshl_add_u32", vst_, t1, 3, vrow), valu("v_lshl_add_u32", vrow, t1, 4, vrow),
      valu("v_lshrrev_b32", vtr, 2, t0), valu("v_lshl_add_u32", vtr, t1, 2, vtr), valu("v_lshlrev_b32", vtr, 8, vtr),
      valu("v_and_b32", t0, 3, t0), valu("v_lshl_add_u32", vtr, t0, 3, vtr), valu("v_add_u32", vtr, sStg, vtr),
      salu("s_mov_b32", sH, 0))
    s1 = S_("slow_head")
    E(label("L_sl_head"), salu("s_lshr_b32", sT0, sFlag, sH), salu("s_and_b32", sT0, sT0, 1), raw("s_cbranch_scc0 L_sl_next", "salu", {"scc"}),
      salu("s_lshl_b32", sKo, sH, 17), salu("s_mul_i32", sQo, sH, 98304), salu("s_mov_b32", sB, 0))
    s2 = S_("slow_blk")
    E(label("L_sl_blk"))
    for s in range(4): E(vload(Kf[s], vrow, sQ, sQo, 64*s))
    E(wait(vm=0))
    for s in range(4): E(scale_frag(Kf[s], Qf[s], w, None))
    E(valu("v_mov_b32", nm[0], "0xff800000"), valu("v_add_u32", vk, sKo, vrow), salu("s_mov_b32", sI, 32))
    s3 = S_("slow_p1")
    E(label("L_sl_p1"))
    for s in range(4): E(gload(Kf[s], vk, sKb, 64*s))
    E(valu("v_add_u32", vk, 4096, vk), wait(vm=0))
    for s in range(4): E(mfma(St[0], Kf[s], Qf[s], 0 if s == 0 else St[0]))
    E(salu("s_sub_u32", sI, sI, 1), scmp("s_cmp_lg_u32", sI, 0), nop(7),
      valu("v_max3_f32", nm[0], nm[0], St[0][0], St[0][1]), valu("v_max3_f32", nm[0], nm[0], St[0][2], St[0][3]),
      raw("s_cbranch_scc1 L_sl_p1", "salu", {"scc"}))
    s4 = S_("slow_mid")
    E(xlane_max(nm[0], nm[1]), [valu("v_sub_f32", nm[r], 0, nm[0]) for r in (1, 2, 3, 0)])
    for r in range(36): E(valu("v_mov_b32", V(68 + r), 0))
    E(valu("v_add_u32", vk, sKo, vrow), valu("v_add_u32", vv, sKo, vlin), valu("v_add_u32", vv, 1024 + 16384, vv), salu("s_mov_b32", sI, 16))
    s5 = S_("slow_p2")
    E(label("L_sl_p2"))
    key = (("stg", "slow"), ("Vs",), False)
    for half in range(2):
        E(salu("s_add_u32", "m0", sStg, 4096*half))
        for s in range(4): E(gload(Kf[4*half + s], vk, sKb, 64*s))
        for k in range(4): E(gdma(vv, sVb, 1024*k, key, ""))
        E(valu("v_add_u32", vk, 4096, vk), valu("v_add_u32", vv, 4096, vv))
    E(wait(vm=0))
    for a in range(2):
        for s in range(4): E(mfma(St[a], Kf[4*a + s], Qf[s], nm if s == 0 else St[a]))
    E(nop(7))
    for r in range(8): E(valu("v_exp_f32", V(48 + r), V(48 + r)))
    for r in range(4): E(valu("v_cvt_pk_bf16_f32", Pf[r], V(48 + 2*r), V(49 + 2*r)))
    E(mfma(L, ones, Pf, L))
    for t in range(8):
        for a in range(2): E(ds_read("ds_read_b64_tr_b16", Vf[2*a:2*a + 2], vtr, a*4096 + 32*t, key))
        E(wait(lgkm=0), mfma(Of[t], Vf, Pf, Of[t]), nop(1))
    E(salu("s_sub_u32", sI, sI, 1), scmp("s_cmp_lg_u32", sI, 0), raw("s_cbranch_scc1 L_sl_p2", "salu", {"scc"}))
    s6 = S_("slow_epi")
    E(nop(7), valu("v_rcp_f32", t0, L[0]), nop(0))
    for t in range(8):
        for r in range(4): E(valu("v_mul_f32", Of[t][r], t0, Of[t][r]))
        E(valu("v_cvt_pk_bf16_f32", Of[t][0], Of[t][0], Of[t][1]), valu("v_cvt_pk_bf16_f32", Of[t][1], Of[t][2], Of[t][3]),
          vstore(Of[t][0:2], vst_, sO, sQo, 32*t, "", "buffer_store_dwordx2"))
    E(salu("s_add_u32", sQo, sQo, 4096), salu("s_add_u32", sB, sB, 1), scmp("s_cmp_lt_u32", sB, NB), raw("s_cbranch_scc1 L_sl_blk", "salu", {"scc"}))
    s7 = S_("slow_next")
    E(label("L_sl_next"), salu("s_add_u32", sH, sH, 1), scmp("s_cmp_lt_u32", sH, 2), raw("s_cbranch_scc1 L_sl_head", "salu", {"scc"}))
    blkp = [s2, s3, s3, s4, s5, s5, s6]
    path2.extend((x, {"J": 0}) for x in [s0, s1] + blkp + blkp + [s7, s1] + blkp + [s7])

def finish():
    if O_.diag:
        a, b = [int(x) for x in O_.diag.split(":")]
        E(wait(vm=0), raw("s_memrealtime s[42:43]", "smem", (), rs(S(42, 2))), wait(lgkm=0), salu("s_mov_b32", S(47), S(42)),
          salu("s_sub_u32", sT0, S(STAMP0 + b), S(STAMP0 + a)), salu("s_lshr_b32", sT0, sT0, 3 if O_.stamps == 1 else 0),
          salu("s_add_u32", sT0, sT0, 7000),
          label("L_spin"), raw("s_memrealtime s[42:43]", "smem", (), rs(S(42, 2))), wait(lgkm=0),
          salu("s_sub_u32", S(42), S(42), S(46)), scmp("s_cmp_lt_u32", S(42), sT0), raw("s_cbranch_scc1 L_spin", "salu", {"scc"}))
    elif O_.stamps:
        E(wait(vm=0), raw("s_memrealtime s[42:43]", "smem", (), rs(S(42, 2))), wait(lgkm=0), salu("s_mov_b32", S(47), S(42)))
        E(salu("s_lshl_b32", sT0, S(2), 2), salu("s_add_u32", sT0, sT0, sW), salu("s_lshl_b32", sT0, sT0, 8))
        E(valu("v_mov_b32", V(1), sT0))
        for k in range(nstamp[0] + 2):
            E(valu("v_mov_b32", V(2), S(46 + k)),
              Inst(f"global_store_dword v1, v2, s[44:45] offset:{4*k}", "vst", rs(V(1), V(2), S(44, 2)), (), data=set()), nop(1))
    if O_.stamps and not O_.diag:
        E(raw("s_getreg_b32 s42, hwreg(HW_REG_XCC_ID)", "salu", (), rs(S(42))), valu("v_mov_b32", V(1), sT0), valu("v_mov_b32", V(2), S(42)),
          Inst("global_store_dword v1, v2, s[44:45] offset:252", "vst", rs(V(1), V(2), S(44, 2)), (), data=set()))
    E(scmp("s_cmp_eq_u32", sFlag, 0), raw("s_cbranch_scc1 L_end", "salu", {"scc"}), label("L_fast_end"))

def build():
    s = seg("start"); path.append((s, {"J": 0})); startup()
    for J in range(4): straight(J)
    if O_.probe == 4: E(stamp_now())
    loop4("A", 4, 2)
    for J in range(12, 15): straight(J)
    transition()
    straight(16)
    loop4("M", 17, 2)
    for J in range(25, 29): straight(J, stamp_now() if J == 28 or (J == 26 and O_.probe == 4) else None)
    endgame()
    finish()
    if O_.slow: slow_path()
    seg("exit"); E(label("L_end"))
    def trace(): return [(i, mkctx(c)) for sidx, c in path + path2 for i in segs[sidx][1]]
    for rnd in range(5):
        fix = {}
        resolve_and_check(trace(), fix=fix)
        for sg in segs:
            new = []
            for i in sg[1]:
                if i.kind == "wait" and i.m["nvm"] in (None, 63) and i.m["nlg"] in (None, 15): fix[0] = 1; continue
                if id(i) in fix: new.append(nop(fix[id(i)] - 1))
                new.append(i)
            sg[1][:] = new
        if not fix: break
    resolve_and_check(trace(), verbose=True)
    if O_.stamps:
        tr = [i for sidx, c in path for i in segs[sidx][1]]; cuts = [k for k, i in enumerate(tr) if i.kind == "smem" and "s[42:43]" in i.text]
        print("  est between stamps:", [cost_estimate(tr[a:b]) for a, b in zip(cuts, cuts[1:])])
    for name, ins in segs:
        if not name.startswith("slow"): print(f"  seg {name:8s} insts {len(ins):5d} est cycles {cost_estimate(ins):6d} nops {sum(1 for i in ins if i.kind == 'nop')}")

HEAD = """; MHA forward, B=16 H=32 Sq=384 Sk=512 D=128, bf16 in/out.  Generated by the author's own script (gen/gen10.py).
; C operand; the final row sums are checked (NaN or >= 2^64) and a failing wave redoes its rows with the true
; row max (L_slow).
; @launch grid=(256,1,1) block=(256,1,1) lds=163840
.amdgcn_target "amdgcn-amd-amdhsa--gfx950"
.text
.globl standalone__mha_softmax__near_ridge_kernel
.p2align 8
.type standalone__mha_softmax__near_ridge_kernel,@function
standalone__mha_softmax__near_ridge_kernel:
"""
TAIL = """    s_endpgm
.section .rodata,"a"
.p2align 6
.amdhsa_kernel standalone__mha_softmax__near_ridge_kernel
  .amdhsa_next_free_vgpr 512
  .amdhsa_next_free_sgpr 102
  .amdhsa_accum_offset 256
  .amdhsa_group_segment_fixed_size 0
  .amdhsa_kernarg_size 48
  .amdhsa_user_sgpr_count 2
  .amdhsa_user_sgpr_kernarg_segment_ptr 1
  .amdhsa_system_sgpr_workgroup_id_x 1
.end_amdhsa_kernel
"""
def insert_pads(text):
    import subprocess, re, tempfile, os
    def offsets(npads):
        d = tempfile.mkdtemp(); t = text()
        t = t.replace("L_padret:", "L_padret:\n" + "".join(f"L_pad{k}:\n" for k in range(npads + 1, 40)))
        open(d + "/a.s", "w").write(t)
        subprocess.run(["clang", "-x", "assembler", "-target", "amdgcn-amd-amdhsa", "-mcpu=gfx950", "-c", d + "/a.s", "-o", d + "/a.o"], check=True)
        dis = subprocess.run(["llvm-objdump", "-d", "--mcpu=gfx950", d + "/a.o"], capture_output=True, text=True).stdout
        dis = dis[dis.index("<L_main>:"):]
        ad = [(int(m.group(2), 16), m.group(1)) for m in re.finditer(r"^\s+(\S+).*// ([0-9A-F]{12}):", dis, re.M)]
        flat = [(sg, k) for sg in segs for k in range(len(sg[1]))]
        flat = flat[[i for i, (sg, k) in enumerate(flat) if sg[1][k].text == "L_main:"][0]:]
        o = []; j = 0
        for sg, k in flat:
            x = sg[1][k]
            if x.kind == "label":
                if x.text == "L_fast_end:": break
                if x.text.startswith(".p2align") and ad[j][0] % 8: j += 1
                continue
            assert ad[j][1].startswith(x.text.split()[0][:12]), (ad[j], x.text)
            o.append((ad[j][0] - ad[0][0], sg, k)); j += 1
        return o
    page = 1; pads = []
    while True:
        off = offsets(page - 1)
        cand = [n for n, (a, sg, k) in enumerate(off) if 4096*page <= a <= 4096*page + 56]
        if not cand: break
        def score(n):
            a, sg, k = off[n]; lo = max(0, k - 8); w = sg[1][lo:k + 8]
            return cost_estimate(w[:k - lo] + [raw("pad")] + w[k - lo:]) - cost_estimate(w)
        n = min(cand, key=score); _, sg, k = off[n]
        p = raw(f"s_cbranch_vccz L_pad{page + 4}"); pads.append(p)
        sg[1][k:k] = [label(f"L_pad{page}"), p]
        page += 1
    for i, p in enumerate(pads):
        if i + 1 + 4 >= page: p.text = "s_cbranch_vccz L_padret"
    assert page > 4
    print(f"  {page - 1} page pads")

if __name__ == "__main__":
    out = sys.argv[1]
    for a in sys.argv[2:]:
        k, v = a.split("=")
        setattr(O_, k, type(getattr(O_, k))(v))
    build()
    def text(): return HEAD + "\n".join((i.text if i.kind == "label" else "    " + i.text) for _, ins in segs for i in ins) + "\n" + TAIL
    if O_.pads: insert_pads(text)
    open(out, "w").write(text())
    import subprocess
    r = subprocess.run([sys.executable, "cdna_unwritten_srd_check.py", out], capture_output=True, text=True)
    print("  check:", r.stdout.strip()[-300:], r.stderr.strip()[-300:])
```

```python
import sys, math, struct
from ir import *

class Opt:
    stamps = 0; diag = ""; probe = 0; force = 0
    late_flags = "sc1"; h0_flags = "sc1"; fin_flags = "sc1"; fq = "nt"; fk = "nt"; fv = "nt"
    n0 = 14
    lead0 = "80,85,90,100,123,123,123,123,123,123,123,123,123,123,145"
    qs = "000222222222222"
    tq = 4; tstep = 12; tper = 2
    olate = "26552"
    g11 = 56; g12 = 16; dsp = 5; p0g = 6; p1g = 10; p1e = 1.0; tl0 = 1
    osched = "000022000000"; tsched = ""
    ne1 = 36
    pads = 1
    pvo = "bs2"; qks = 1; slow = 1
O_ = Opt()

NB = 6
def f32bits(x): return struct.unpack("<I", struct.pack("<f", x))[0]
CSCALE = f32bits(math.log2(math.e) / math.sqrt(128.0))
THRESH = f32bits(2.0 ** 64)
def bf16(x):
    u = f32bits(x); return (u + 0x7fff + ((u >> 16) & 1)) >> 16
C_HI = bf16(math.log2(math.e) / math.sqrt(128.0))
C_LO = bf16(math.log2(math.e) / math.sqrt(128.0) - struct.unpack("<f", struct.pack("<I", C_HI << 16))[0])

def Sreg(b, a): return V(8*b + 4*a, 4)
def Preg(par, b): return V(48 + 24*par + 4*b, 4)
def negM(b): return V(96 + 4*b, 4)
kaddr = [V(120 + s) for s in range(4)]
vaddr = [V(124 + t) for t in range(8)]
vkv = V(132); vsd0 = V(133); vsd1 = V(134); vlin = V(135)
qa = [V(136 + s) for s in range(4)]
ow = V(140)
ovr = V(141)
def Oreg(b, t):
    n = 8*b + t
    return V(144 + 4*n, 4) if n < 28 else A(176 + 4*(n - 28), 4)
def Qreg(b, s): return A(16*b + 4*s, 4)
def F(i): return A(96 + 4*i, 4)
def lacc(b): return A(128 + 4*(b//3), 4)
def sel(b): return A(136 + 4*(b % 3), 4)
X = [A(148 + 4*k, 4) for k in range(7)]
CS = A(164, 10)
sQ, sO = S(12, 4), S(24, 4); sKb, sVb, sVx = S(16, 2), S(22, 2), S(18, 2)
sW = S(28); sM0 = S(30); sStg = S(31); sSide = S(32); sT0 = S(33); sT1 = S(34); sT2 = S(35)
sFlag = S(36); sThr = S(37); sC = S(38, 2); sCmp = S(40, 2); sStamp = S(42, 2); sCnt = S(3); sQd = S(29)
STAMP0 = 48

def aK(J): return (("ring", (J - 2) % 4, "K"), ("K", J), True)
def aV(J): return (("ring", J % 4, "V"), ("V", J), True) if J < 31 else (("ring", 2, "K"), ("V", J), True)
def rK(d): return lambda c: aK(c["J"] + d)
def rV(d): return lambda c: aV(c["J"] + d)
def aQ(h, p): return (("stg", p), ("Q", h), False)
def aO(h, p): return (("stg", p), ("O", h), False)
def blk(f, h, b): return [f(h, 4*b + i) for i in range(4)]
def mkctx(c): return lambda r: r(c) if callable(r) else r

segs = []; path = []; path2 = []; cur = None
def seg(name):
    global cur
    cur = []; segs.append([name, cur]); return len(segs) - 1
def E(*xs):
    for x in xs:
        if x is None: continue
        if isinstance(x, (list, tuple)): E(*x)
        else: cur.append(x)
nstamp = [0]
def stamp_now():
    if O_.stamps not in (1, 2): return []
    k = nstamp[0]; nstamp[0] += 1
    op = "s_memtime" if O_.stamps == 1 else "s_memrealtime"
    return [raw(f"{op} {sStamp}", "smem", (), rs(sStamp)), wait(lgkm=0), salu("s_mov_b32", S(STAMP0 + k), sStamp[0])]

MEM = ("dsr", "dsw", "dma", "vld", "vst"); VAL = ("valu", "trans")
class Task:
    def __init__(s, x, lo, hi, preds): s.x, s.lo, s.hi, s.preds, s.gap = x, lo, hi, preds, None
class Sched:
    def __init__(s, mf):
        s.mf = mf; s.n = len(mf); s.g = [[] for _ in mf]; s.t = []
        s.cap = [24 if m.m["big"] else 8 for m in mf]; s.novalu = set()
    def cost(s, x): return 8 if x.kind == "trans" or x.m.get("perm") else 4
    def fits(s, g, x):
        if s.cap[g] < s.cost(x): return False
        if x.kind in MEM and any(y.kind in MEM for y in s.g[g]): return False
        if x.kind in VAL and g in s.novalu: return False
        return True
    def put(s, g, x): s.g[g].append(x); s.cap[g] -= s.cost(x)
    def fix(s, x, g):
        t = Task(x, g, g, []); t.gap = g; s.put(g, x)
        if x.kind in ("dma", "vst", "vld"): s.cap[g] = 0; s.novalu.add(g - 1)
        if x.kind == "barrier": s.cap[g] = 0
        return t
    def add(s, x, lo=0, hi=None, preds=()):
        t = Task(x, max(lo, 0), s.n - 1 if hi is None else min(hi, s.n - 1), [p for p in preds if p[0] is not None]); s.t.append(t); return t
    def seq(s, xs, lo=0, hi=None, after=None, hard=1):
        p = after
        for x in xs: p = s.add(x, lo, hi, [(p, hard, hard)])
        return p
    def sm(s, groups, smax=2.0):
        ex = [(x, lo, hi) for ops, lo, hi in groups for x in ops if x.kind == "trans"]
        sig = smax
        while True:
            pos = []; t = -9.0; ok = True
            for x, lo, hi in ex:
                t = max(lo, t + sig); g = int(t)
                while g < s.n and (not s.fits(g, x) or (pos and g <= pos[-1])): g += 1
                if g > hi - 1: ok = False; break
                pos.append(g); t = max(t, g - 0.5)
            if ok: break
            sig -= 0.05
            assert sig > 0.3, "softmax does not fit"
        k = 0
        for ops, lo, hi in groups:
            e = []
            for x in ops:
                if x.kind == "trans": e.append(s.fix(x, pos[k])); k += 1
                else: s.add(x, lo, min(hi, e[-1].gap + 5), [(e[-1], 1, 1)])
    def run(s):
        for t in reversed(s.t):
            for p, h, so in t.preds:
                if p.gap is None: p.hi = min(p.hi, t.hi - so)
        for t in s.t:
            for p, h, so in t.preds: t.lo = max(t.lo, p.lo + h)
            t.hi = max(t.hi, t.lo)
        left = list(s.t)
        for g in range(s.n):
            while True:
                rdy = [t for t in left if t.lo <= g and all(p.gap is not None and g >= p.gap + h for p, h, so in t.preds)]
                rdy = [t for t in rdy if t.hi <= g or all(g >= p.gap + so for p, h, so in t.preds)]
                rdy.sort(key=lambda t: t.hi)
                pick = next((t for t in rdy if t.hi <= g or s.fits(g, t.x)), None)
                if pick is None: break
                s.put(g, pick.x); pick.gap = g; left.remove(pick)
        assert not left, left[0].x
        s.t = []
    def pour(s, *streams):
        st = [[list(xs), lo] for xs, lo in streams]
        for g in range(s.n):
            again = True
            while again:
                again = False
                for q in st:
                    if q[0] and q[1] <= g and s.fits(g, q[0][0]): s.put(g, q[0].pop(0)); again = True; break
        return [x for q in st for x in q[0]]
    def emit(s):
        for m, g in zip(s.mf, s.g):
            key = lambda x: 3 if x.m.get("last") else (2 if x.kind in VAL else (0 if x.kind in MEM else 1))
            E(m, sorted(g, key=key))

def kread(J, d, a, s, dst): return ds_read("ds_read_b128", dst, kaddr[s], ((J + d - 2) % 4)*16384 + a*8192, rK(d))
def vread(J, d, t, a, dst):
    return ds_read("ds_read_b64_tr_b16", dst[2*a:2*a+2], vaddr[t], (((J + d) % 4)*16384 if J + d < 31 else 32768 - 1024) + a*8192, rV(d))
def kv_group(J, d, withV=True):
    o = [salu("s_add_u32", "m0", sM0, ((J + d) % 4)*16384)]
    for im in (0, 2048):
        if withV: o.append(gdma(vkv, sVb, im + 1024, rV(d), O_.fv))
        o.append(gdma(vkv, sKb, im, rK(d + 2), O_.fk) if J + d < 30 else gdma(vkv, sVx, im, rV(d + 1), O_.fv))
    return o + [kv_step()]
def kv_step(): return valu("v_add_u32", vkv, 8192, vkv)
def q_dma_block(h, b):
    o = [salu("s_add_u32", "m0", sStg, b*4096), salu("s_mov_b32", sSide, h*98304 + b*4096)]
    for i in range(4): o.append(dma(vsd1 if i & 1 else vsd0, sQ, sSide, i*1024, aQ(h, 4*b + i), O_.fq))
    return o
def piecemeal(groups):
    st = []; pre = []
    for grp in groups:
        for x in grp:
            if x.kind in MEM: st.append(pre + [x]); pre = []
            else: pre.append(x)
    if pre: st[-1] += pre
    def more(n):
        o = st[:n]; del st[:n]; return o
    more.left = lambda: len(st)
    return more

def sm_ops(par, b, a):
    s = Sreg(b, a); p = Preg(par, b)
    return [valu("v_exp_f32", s[0], s[0]), valu("v_exp_f32", s[1], s[1]), valu("v_cvt_pk_bf16_f32", p[2*a], s[0], s[1]),
            valu("v_exp_f32", s[2], s[2]), valu("v_exp_f32", s[3], s[3]), valu("v_cvt_pk_bf16_f32", p[2*a+1], s[2], s[3])]
NE_A = 40
def sm_split(par, ne=NE_A, order=range(NB)):
    st = []
    for a in range(2):
        for b in (order if a else range(NB)): st += [(b, x) for x in sm_ops(par, b, a)]
    k = ne // 2 * 3
    return st[:k], st[k:]
def delay_cvts(xs):
    o = []; pend = []
    for x in xs:
        if x.kind == "trans":
            o.append(x)
            if pend: o.append(pend.pop(0))
        else: pend.append(x)
    return o + pend
def xlane_max(m, t):
    o = []
    for op in ("v_permlane32_swap_b32", "v_permlane16_swap_b32"):
        o += [valu("v_mov_b32", t, m), swap(op, m, t), valu("v_max_f32", m, m, t)]
    return o
def rowmax_ops(b):
    m, t = negM(b)[0], negM(b)[1]; sv = lambda r: V(8*b + r)
    o = [valu("v_max3_f32", m, sv(0), sv(1), sv(2)), valu("v_max3_f32", t, sv(3), sv(4), sv(5)),
         valu("v_max3_f32", m, m, sv(6), sv(7)), valu("v_max_f32", m, m, t)] + xlane_max(m, t)
    o += [valu("v_sub_f32", negM(b)[r], 0, m) for r in (1, 2, 3, 0)]
    return o, [valu("v_pk_add_f32", V(8*b + 2*r, 2), V(8*b + 2*r, 2), negM(b)[0:2]) for r in range(4)]
def scale_frag(x, dst, w, y, pk=True):
    o = []
    if pk:
        for r in range(4): o += [valu("v_lshlrev_b32", w[2*r], 16, x[r]), valu("v_and_b32", w[2*r+1], "0xffff0000", x[r])]
        for r in range(4): o.append(valu("v_pk_mul_f32", w[2*r:2*r+2], w[2*r:2*r+2], sC))
    else:
        for r in range(4):
            o += [valu("v_lshlrev_b32", w[2*r], 16, x[r]), valu("v_and_b32", w[2*r+1], "0xffff0000", x[r]),
                  valu("v_mul_f32", w[2*r], sC[0], w[2*r]), valu("v_mul_f32", w[2*r+1], sC[0], w[2*r+1])]
    if dst.k == "v": return o + [valu("v_cvt_pk_bf16_f32", dst[r], w[2*r], w[2*r+1]) for r in range(4)]
    for r in range(4): o.append(valu("v_cvt_pk_bf16_f32", y[r], w[2*r], w[2*r+1]))
    for r in range(4): o.append(valu("v_accvgpr_write_b32", dst[r], y[r]))
    return o
def chain(b, a, fr, c0, rev):
    return [(s, mfma(Sreg(b, a), fr[s], Qreg(b, s), c0 if n == 0 else Sreg(b, a))) for n, s in enumerate(range(3, -1, -1) if rev and O_.qks else range(4))]
def qk_first(b): return [m for a in range(2) for _, m in chain(b, a, [F(4*a + s) for s in range(4)], 0, a)]
def pv_pair(par, bs, t0, fr, init, sums):
    o = []
    if O_.pvo in ("t", "ts"):
        bs = sorted(bs)
        if 5 in sums and init: sums = []; o += [(None, rowsum(par, 5, init)), (None, rowsum(par, 4, init))]
        for k in range(2):
            for b in (bs if k == 0 or O_.pvo == "t" else bs[::-1]):
                o.append((t0 + k, mfma(Oreg(b, t0 + k), Preg(par, b), fr[k], 0 if init else Oreg(b, t0 + k))))
                if k == 0 and b in sums: o.append((None, rowsum(par, b, init)))
        return o
    for n, b in enumerate(bs):
        for k in ((0, 1) if n % 2 == 0 or O_.pvo == "pp2" else (1, 0)): o.append((t0 + k, mfma(Oreg(b, t0 + k), Preg(par, b), fr[k], 0 if init else Oreg(b, t0 + k))))
        if b in sums: o.insert(len(o) - 1, (None, rowsum(par, b, init)))
    return o
def rowsum(par, b, init=False): return mfma(lacc(b), Preg(par, b), sel(b), 0 if init and b in (0, 5) else lacc(b))

def startup():
    v0, vl, vi, vu, t0, t1, t2 = V(0), V(1), V(2), V(3), V(4), V(5), V(6)
    E(comment("---- setup"),
      raw("s_load_dwordx4 s[4:7], s[0:1], 0", "smem", (), rs(S(4, 4))),
      raw("s_load_dwordx4 s[8:11], s[0:1], 16", "smem", (), rs(S(8, 4))),
      scmp("s_cmp_ge_u32", S(2), 256), raw("s_cbranch_scc1 L_end", "salu", {"scc"}))
    if O_.stamps:
        E(raw("s_load_dwordx2 s[44:45], s[0:1], 40", "smem", (), rs(S(44, 2))),
          raw("s_memrealtime s[46:47]", "smem", (), rs(S(46, 2))))
    E(comment("pull the kernel's own code into L2 (one dword per 128-byte line)"),
      raw("s_getpc_b64 s[40:41]", "salu", (), rs(S(40, 2))), label("L_pc"),
      valu("v_lshlrev_b32", t0, 7, v0), valu("v_min_u32", t1, "L_fast_end-L_pc", t0),
      Inst(f"global_load_dword v7, {t1}, s[40:41]", "vld", rs(t1, S(40, 2)), rs(V(7))),
      valu("v_add_u32", t0, 32768, t0), valu("v_min_u32", t1, "L_fast_end-L_pc", t0),
      Inst(f"global_load_dword v8, {t1}, s[40:41]", "vld", rs(t1, S(40, 2)), rs(V(8))))
    E(valu("v_lshrrev_b32", t1, 6, v0), valu("v_and_b32", vl, 63, v0),
      valu("v_readfirstlane_b32", sW, t1),
      valu("v_and_b32", vi, 15, vl), valu("v_lshrrev_b32", vu, 4, vl),
      valu("v_lshlrev_b32", t0, 1, vu), valu("v_xor_b32", t0, t0, vi), valu("v_lshlrev_b32", t0, 4, t0),
      valu("v_lshl_add_u32", vsd0, vu, 8, t0), valu("v_xor_b32", vsd1, 128, vsd0),
      salu("s_and_b32", sT0, sW, 1), salu("s_lshr_b32", sT1, sW, 1),
      salu("s_lshl_b32", sT2, sT0, 7), salu("s_lshl_b32", sT0, sT0, 10), salu("s_lshl_b32", sT1, sT1, 12),
      salu("s_add_u32", sT0, sT0, sT1),
      valu("v_xor_b32", vkv, sT2, vsd0), valu("v_add_u32", vkv, sT0, vkv),
      salu("s_lshl_b32", sM0, sW, 12), salu("s_mul_i32", sStg, sW, 24576),
      salu("s_mul_i32", sT0, S(2), 196608), salu("s_add_u32", sT0, sT0, sStg), salu("s_add_u32", sStg, sStg, 65536),
      salu("s_lshl_b32", sT1, S(2), 18),
      salu("s_mov_b32", sQ[2], 98304 + 24576), salu("s_mov_b32", sQ[3], "0x20000"),
      wait(lgkm=0),
      salu("s_add_u32", sKb[0], S(6), sT1), salu("s_addc_u32", sKb[1], S(7), 0),
      salu("s_add_u32", sQ[0], S(4), sT0), salu("s_addc_u32", sQ[1], S(5), 0), salu("s_and_b32", sQ[1], sQ[1], "0xffff"))
    g0 = kv_group(0, 0); g0 = [g0[k] for k in (0, 1, 3, 2, 4, 5)]
    more = piecemeal([kv_group(0, -2, False)] + [q_dma_block(0, b) for b in range(NB)] + [kv_group(0, -1, False), g0])
    E(more(10))
    if O_.pads == 2: E(raw("s_branch L_main"), raw(".p2align 12", "label"), label("L_main"))
    E(salu("s_add_u32", sVb[0], S(8), sT1), salu("s_addc_u32", sVb[1], S(9), 0),
      salu("s_sub_u32", sVb[0], sVb[0], 1024 + 16384), salu("s_subb_u32", sVb[1], sVb[1], 0),
      salu("s_add_u32", sO[0], S(10), sT0), salu("s_addc_u32", sO[1], S(11), 0), salu("s_and_b32", sO[1], sO[1], "0xffff"),
      salu("s_mov_b32", sO[2], 98304 + 24576), salu("s_mov_b32", sO[3], "0x20000"),
      salu("s_add_u32", sVx[0], sVb[0], 1024 + 8192), salu("s_addc_u32", sVx[1], sVb[1], 0),
      salu("s_mov_b32", sC[0], hex(CSCALE)), salu("s_mov_b32", sC[1], hex(CSCALE)),
      salu("s_mov_b32", sThr, hex(THRESH)), salu("s_mov_b32", sFlag, O_.force), salu("s_sub_u32", sQd, sStg, 98304))
    E(valu("v_and_b32", t0, 7, vi), valu("v_lshlrev_b32", t0, 1, t0), valu("v_xor_b32", t0, t0, vu), valu("v_lshlrev_b32", t0, 4, t0),
      valu("v_lshl_add_u32", t2, vi, 8, t0), valu("v_add_u32", qa[0], sStg, t2),
      valu("v_and_b32", t1, 3, vi), valu("v_lshl_add_u32", t0, t1, 8, t0),
      valu("v_lshrrev_b32", t1, 3, vi), valu("v_lshl_add_u32", t0, t1, 11, t0),
      valu("v_bfe_u32", t1, vi, 2, 1), valu("v_lshl_add_u32", kaddr[0], t1, 12, t0))
    for s in range(1, 4): E(valu("v_xor_b32", kaddr[s], s << 6, kaddr[0]), valu("v_xor_b32", qa[s], s << 6, qa[0]))
    E(valu("v_lshrrev_b32", t1, 2, vi), valu("v_and_b32", t2, 1, vu), valu("v_lshl_add_u32", t0, t2, 2, t1),
      valu("v_lshlrev_b32", t0, 5, t0), valu("v_lshl_add_u32", t0, t1, 8, t0), valu("v_lshl_add_u32", t0, t2, 12, t0),
      valu("v_lshrrev_b32", t2, 1, vu), valu("v_lshl_add_u32", t0, t2, 11, t0),
      valu("v_and_b32", t1, 3, vi), valu("v_lshl_add_u32", t0, t1, 3, t0), valu("v_add_u32", vaddr[0], 1024, t0))
    for t in range(1, 8): E(valu("v_xor_b32", vaddr[t], t << 5, vaddr[0]))
    E(valu("v_mov_b32", t2, "0x3f803f80"))
    for k in range(3):
        E(Inst(f"v_cmp_eq_u32 vcc, {k}, {vi}", "valu", rs(vi), {"vcc"}), nop(1), Inst(f"v_cndmask_b32 {t0}, 0, {t2}, vcc", "valu", rs(t2, "vcc"), rs(t0)),
          [valu("v_accvgpr_write_b32", sel(k)[r], t0) for r in range(4)])
    E(valu("v_lshrrev_b32", t0, 1, vi), valu("v_lshlrev_b32", t1, 1, vu), valu("v_sub_u32", t0, t0, t1),
      valu("v_and_b32", t1, 1, vi), valu("v_lshlrev_b32", t1, 4, t1))
    for k in range(2):
        E(Inst(f"v_cmp_eq_u32 vcc, {k}, {t0}", "valu", rs(t0), {"vcc"}))
        for j, c in enumerate((C_HI, C_LO)):
            E(valu("v_mov_b32", t2, hex(c)), valu("v_lshlrev_b32", t2, t1, t2), Inst(f"v_cndmask_b32 {t2}, 0, {t2}, vcc", "valu", rs(t2, "vcc"), rs(t2)),
              valu("v_accvgpr_write_b32", CS[2 + 4*j + k], t2))
    E([valu("v_accvgpr_write_b32", CS[k], 0) for k in (0, 1, 4, 5, 8, 9)])
    E(valu("v_lshlrev_b32", t0, 3, vl), valu("v_add_u32", ow, sStg, t0),
      valu("v_bfe_u32", t1, vi, 1, 1), valu("v_lshl_add_u32", t0, t1, 2, vu), valu("v_lshlrev_b32", t0, 9, t0),
      valu("v_and_b32", t1, 1, vi), valu("v_lshl_add_u32", t0, t1, 6, t0), valu("v_lshrrev_b32", t1, 2, vi),
      valu("v_lshl_add_u32", t0, t1, 3, t0), valu("v_add_u32", ovr, sStg, t0),
      valu("v_and_b32", t2, 3, vi), valu("v_lshlrev_b32", t0, 5, t2), valu("v_lshl_add_u32", t0, vu, 8, t0),
      valu("v_and_b32", t2, 1, t1), valu("v_lshl_add_u32", t0, t2, 4, t0), valu("v_lshrrev_b32", t2, 1, t1), valu("v_lshl_add_u32", vlin, t2, 7, t0))
    E(more(O_.n0 - 10), stamp_now())
    E(comment("---- first K tile"), wait(vm=[aK(0)]), barrier())
    for a in range(2):
        for s in range(4): E(kread(0, 0, a, s, F(4*a + s)))
    if O_.pads:
        E(comment("visit the start of each code page once (wave w: pages w+1, w+5, ..); every stop jumps straight on while vcc = 0"),
          raw("s_mov_b64 vcc, 0"))
        for w in range(3): E(scmp("s_cmp_eq_u32", sW, w), raw(f"s_cbranch_scc1 L_pad{w + 1}", "salu", {"scc"}))
        E(raw("s_branch L_pad4"), [raw(".p2align 12", "label"), label("L_main")] if O_.pads == 1 else None, label("L_padret"), raw("s_mov_b64 vcc, -1"))
    rawr = lambda s: V(72 + 4*s, 4)
    for b in range(NB):
        E(comment(f"---- start-up block {b}"), wait(vm=blk(aQ, 0, b)), stamp_now() if O_.probe == 2 else None)
        for s in range(4): E(ds_read("ds_read_b128", rawr(s), qa[s], b*4096, blk(aQ, 0, b)))
        for s in range(4):
            E(wait(lgkm=[rawr(s)] + ([F(k) for k in range(8)] if b == 0 else [])))
            E(more(1), scale_frag(rawr(s), Qreg(b, s), V(88, 8), Sreg(b, s & 1)))
        qk = qk_first(b)
        if b < NB - 1: E(qk, rowmax_ops(b), delay_cvts(sm_ops(0, b, 0) + sm_ops(0, b, 1)))
    assert more.left() == 0
    E(qk[:4], wait(vm=[aK(1)]), barrier())
    for s in range(4): E(qk[4 + s], kread(0, 1, 0, s, F(s)))
    E(salu("s_mov_b32", sSide, 98304), salu("s_mov_b32", sCnt, 1), rowmax_ops(NB - 1)[0][:4], wait(lgkm=[F(s) for s in range(4)]), stamp_now())

def o_read(key, p, dst):
    return [ds_read("ds_read_b64_tr_b16", dst[2*hi:2*hi + 2], ovr, (p >> 2)*4096 + (p & 3)*128 + hi*32, key) for hi in range(2)]
def pv_mfmas(par, frags, sums_first=False, init=False):
    mf = [rowsum(par, b) for b in range(NB)] if sums_first else []; st = []
    for h in range(4):
        st.append(len(mf))
        sums = [] if sums_first else [(0, 1), (5, 4), (2,), (3,)][h]
        mf += [m for _, m in pv_pair(par, range(NB) if h % 2 == 0 else range(NB - 1, -1, -1), 2*h, frags[2*h:2*h + 2], init, sums)]
    return mf, st
def late_pieces(k):
    cnt = [int(c, 16) for c in O_.olate]; ne = sum(map(int, O_.osched)); assert sum(cnt) == 24 - ne and sum(cnt[:4]) >= 12
    return (list(range(12, 24)) + list(range(ne, 12)))[sum(cnt[:k]):sum(cnt[:k + 1])]
def kv_plan(J):
    if J >= 16: return [(3, 27)] if J < 28 else []
    o = []
    for k, lead in enumerate(int(x) for x in O_.lead0.split(",")):
        Jk, g = divmod(102*(k + 1) + 23 - lead, 102)
        assert 2 <= g <= 82
        if Jk == J: o.append((k + 1 - J, g))
    return o
END_ORDER = (2, 3, 4, 5, 0, 1)
NPRE = 2
VF15 = [Qreg(4 + t//4, t % 4) for t in range(8)]

def iteration(J, ctl=()):
    par = J & 1; j = J % 16
    mf = [m for a in range(2) for b in range(NB) for _, m in chain(b, a, [F(4*a + s) for s in range(4)], negM(b), b & 1)]
    pv, pst = pv_mfmas(par, [F(t) for t in range(8)], init=(j == 0))
    mf += pv; pst = [48 + x for x in pst]
    sc = Sched(mf)
    for x in ctl: sc.fix(x, 101)
    if ctl: sc.cap[101] = 0
    for s in range(4): sc.fix(kread(J, 1, 1, s, F(4 + s)), [1, 6, 11, 13][s])
    tb2 = None
    if J == 0:
        sc.fix(wait(vm=[rV(0)], lgkm=0), 23); tb = sc.fix(barrier(), 23)
        sc.fix(wait(vm=[rK(2)]), 72); tb2 = sc.fix(barrier(), 72)
    else:
        sc.fix(wait(vm=[rV(0), rK(2)], lgkm=0), 23); tb = sc.fix(barrier(), 23)
    if J == 0:
        b = NB - 1; t = sc.seq(rowmax_ops(b)[0][4:], 0, 8, hard=0)
        sub = [sc.add(valu("v_add_f32", V(8*b + r), V(8*b + r), negM(b)[1]), 0, 10 if r < 4 else 22, [(t, 0, 0)]) for r in range(8)]
        sc.run()
    plan = kv_plan(J); busy = []
    for n_, (d, g0) in enumerate(plan):
        ops = kv_group(J, d); g = g0
        while sc.cap[g - 2] < 4: g += 1
        sc.fix(ops[0], g - 2)
        for x in ops[1:5]:
            while sc.cap[g] < 8 or sc.cap[g - 1] == 0 or sc.cap[g + 1] == 0 or any(y.kind in VAL for y in sc.g[g - 1]): g += 1
            td = sc.fix(x, g); g += O_.dsp
        busy.append((g0 - 3, td.gap + 1))
        sc.add(ops[5], 0, 100 if n_ + 1 == len(plan) else plan[n_ + 1][1] - 1, [(td, 1, 1)])
    nq = int(O_.qs[J]) if J < 15 else 0
    if nq:
        p0 = sum(map(int, O_.qs[:J])); g0 = max([50] + [hi + 6 for lo, hi in busy if lo < 50])
        assert all(hi < g0 - 2 or lo > g0 + 12*(nq - 1) for lo, hi in busy)
        sc.fix(salu("s_add_u32", "m0", sSide, sQd), g0 - 2)
        for k in range(nq):
            t = sc.fix(dma(vsd1 if (p0 + k) & 1 else vsd0, sQ, sSide, k*1024, (lambda k: lambda c: aQ(1, sum(map(int, O_.qs[:c["J"]])) + k))(k), O_.fq), g0 + 12*k)
        sc.add(salu("s_add_u32", sSide, sSide, 1024*nq), 0, 99, [(t, 1, 1)])
    if J in (27, 28):
        ps = late_pieces(J - 27); g0 = [O_.g11, O_.g12][J - 27]
        base = t = None
        for i, p in enumerate(ps):
            g = g0 + (96 - g0)*i//max(1, len(ps) - 1)
            while g in (22, 23, 24) or sc.cap[g] < 8 or sc.cap[g - 1] == 0 or sc.cap[g + 1] == 0: g += 1
            t = sc.seq(o_read(aO(0, p), p, X[i]), 0, g - 8, t); sc.add(wait(lgkm=[X[i]]), 0, g - 1, [(t, 1, 6)])
            if base is None or not 0 <= p - base < 4: base = p; sc.fix(salu("s_mov_b32", sSide, p*1024), g - 1)
            sc.fix(vstore(X[i], vlin, sO, sSide, (p - base)*1024, O_.late_flags), g)
    p = tb
    for t in range(8):
        for a in range(2): p = sc.add(vread(J, 0, t, a, F(t)), 24 if t < 4 else 48, None, [(p, 1, 1)])
        if t in (1, 3): sc.add(wait(lgkm=[F(t - 1), F(t)]), 0, pst[t//2] - 1, [(p, 1, 8)])
    sc.add(wait(lgkm=[F(4), F(5), F(6), F(7)]), 0, pst[2] - 1, [(p, 1, 8)])
    for s in range(4): p = sc.add(kread(J, 2, 0, s, F(s)), pst[2], None if J != 14 else 90, [(p, 1, 1), (tb2, 1, 1)])
    if J == 28:
        pre = late_pieces(2)[:NPRE]
        p = sc.seq([x for i, q in enumerate(pre) for x in o_read(aO(0, q), q, X[i])], 60, None, p)
    if J != 14: sc.add(wait(lgkm=[F(s) for s in range(4)] + (X[:NPRE] if J == 28 else [])), 0, 101 if J == 28 else 100, [(p, 1, 8 if J != 28 else 5)])
    else:
        sc.fix(wait(vm=[rV(1), rK(3)] + blk(aQ, 1, 0)), 92); t = sc.fix(barrier(), 92)
        for k in range(4): sc.fix(vread(J, 1, k//2, k & 1, VF15[k//2]), 93 + 2*k)
    nxt = lambda ne: [x for _, x in sm_split(1 - par, ne, END_ORDER if J == 28 else range(NB))[0]]
    if J == 0:
        b = NB - 1
        sc.sm([(sm_ops(0, b, 0), sub[3].gap + 1, 19), (sm_ops(0, b, 1), sub[7].gap + 1, 43), (nxt(NE_A), 24, 100)])
    elif J == 16:
        tail = sm_split(0, O_.ne1)[1]
        sc.sm([([x for bb, x in tail if bb == b], 0, 23 + 4*b) for b in range(NB) if any(bb == b for bb, _ in tail)] + [(nxt(NE_A), 24, 100)])
    elif J == 14:
        sc.sm([([x for _, x in sm_split(par)[1]], 0, 30)] + [(sm_ops(1, b, a), 24*a + 4*b + 8, 101) for a in range(2) for b in range(NB)])
    else:
        sc.sm([([x for _, x in sm_split(par)[1]], 0, 30)], 2.4)
        sc.sm([(nxt(NE_A), 24, 100)])
    sc.run(); sc.emit()

def straight(J, *pre):
    s = seg(f"J{J}"); path.append((s, {"J": J})); E(comment(f"---- head {J//16}, key tile {J % 16}"), pre); iteration(J)
def loop4(name, J0, passes):
    ss = []
    for k in range(4):
        ss.append(seg(f"{name}{k}"))
        if k == 0: E(raw(".p2align 3", "label"), label(f"L_{name}"))
        d = salu("s_sub_u32", sCnt, sCnt, 1); d.m["last"] = True
        iteration(J0 + k, [d, raw(f"s_cbranch_scc0 L_{name}", "salu", {"scc"}, (), last=True)] if k == 3 else [])
        for n in range(1, passes): assert kv_plan(J0 + k) == kv_plan(J0 + k + 4*n) and (J0 > 15 or O_.qs[J0 + k] == O_.qs[J0 + k + 4*n])
    assert J0 > 15 or sum(map(int, O_.qs[J0:J0 + 4])) % 2 == 0
    for n in range(4*passes): path.append((ss[n % 4], {"J": J0 + n}))

def l_ops(h, b0, r, t1):
    o = [valu("v_accvgpr_read_b32", r[k], lacc(b0)[k]) for k in range(4)]
    o += [valu("v_add_f32", t1, r[0], r[1]), valu("v_add_f32", t1, t1, r[2]), valu("v_add_f32", t1, t1, r[3])]
    o += [valu("v_rcp_f32", r[k], r[k]) for k in range(4)]
    return o
def l_flag(h, t1):
    return [Inst(f"v_cmp_nlt_f32 {sCmp}, {t1}, {sThr}", "valu", rs(t1, sThr), rs(sCmp)), nop(0),
            scmp("s_cmp_lg_u64", sCmp, 0), salu("s_cselect_b32", sT0, 1 << h, 0), salu("s_or_b32", sFlag, sFlag, sT0)]
def l_bcast(b, r, dst):
    o = [valu("v_mov_b64_dpp", dst[2*k:2*k + 2], r[2*k:2*k + 2], mods=f"row_newbcast:{b % 3} row_mask:0xf bank_mask:0xf") for k in range(2)]
    for x in o: x.m["dpp"] = True
    return o
def epi_half(h, b, th, rl, tmp, y):
    r0 = Oreg(b, 4*th); w = V(r0.i, 16) if r0.k == "v" else tmp; o = []
    if r0.k == "a": o += [valu("v_accvgpr_read_b32", w[i], A(r0.i + i)) for i in range(16)]
    o += [valu("v_pk_mul_f32", w[2*i:2*i + 2], w[2*i:2*i + 2], rl[2*(i & 1):2*(i & 1) + 2]) for i in range(8)]
    o += [valu("v_cvt_pk_bf16_f32", y[2*r + k], w[8*k + r], w[8*k + 4 + r]) for r in range(4) for k in range(2)]
    o += [ds_write2st64(ow, y[4*k:4*k + 2], y[4*k + 2:4*k + 4], 8*b + 4*th + 2*k, 8*b + 4*th + 2*k + 1, blk(aO, h, b)) for k in range(2)]
    return o

def transition():
    s = seg("trans"); path.append((s, {"J": 15}))
    E(stamp_now(), comment("---- head 0: last PV; switch to head 1"))
    vf = VF15
    NSH = 1
    def rawr(b, n): return V(16 + 4*n, 4) if 4*b + n < NSH else Qreg(b, n)
    def qrd(b): return [ds_read("ds_read_b128", rawr(b, n), qa[n], b*4096, blk(aQ, 1, b)) for n in range(4)]
    rc = [negM(4), negM(5)]
    rl = V(72, 4); y = V(76, 8)
    def pm(f):
        q = Qreg(f//4, f % 4); d = V(76 + 8*(f & 1), 8); t = V(92, 4)
        mf = [mfma(d[0:4], CS[2:6], q, 0), mfma(d[0:4], CS[6:10], q, d[0:4]), mfma(d[4:8], CS[0:4], q, 0), mfma(d[4:8], CS[4:8], q, d[4:8])]
        fl = []
        for hh in range(2):
            fl += [valu("v_cvt_pk_bf16_f32", t[2*hh + k], d[4*hh + 2*k], d[4*hh + 2*k + 1]) for k in range(2)]
            fl += [valu("v_accvgpr_write_b32", q[2*hh + k], t[2*hh + k]) for k in range(2)]
        return mf, fl
    npre = sum(map(int, O_.qs)); assert npre >= 8
    more = piecemeal([[x for k, x in enumerate(q_dma_block(1, b)) if k < 2 or 4*b + k - 2 >= npre] for b in range(npre//4, NB)]
                     + [kv_group(15, d) for d in (1, 2, 3)])
    vr = [vread(15, 0, t, a, vf[t]) for t in range(8) for a in range(2)]
    pv, pst = pv_mfmas(1, vf, True)
    sc = Sched(pv)
    g = 8
    for grp in more(O_.tq):
        for i, x in enumerate(grp):
            if x.kind not in MEM: sc.fix(x, g - 3 if len(grp) - i > 3 else g - 2)
            else: sc.fix(x, g); g += O_.tstep
    sc.add(wait(lgkm=vf[:2]), 4, pst[0] - 1)
    q0 = qrd(0)
    p = sc.seq(q0[:NSH], 0); wq = sc.add(wait(lgkm=[rawr(0, NSH - 1)]), 0, 10, [(p, 1, 6)])
    p = sc.seq(vr[4:8], 0, None, p); sc.add(wait(lgkm=vf[2:4]), 0, pst[1] - 1, [(p, 1, 6)])
    p = sc.seq(vr[8:], 0, None, p); sc.add(wait(lgkm=vf[4:]), 0, pst[2] - 1, [(p, 1, 6)])
    p = sc.seq([kread(15, 1, 1, k, F(4 + k)) for k in range(4)] + q0[NSH:] + [wait(vm=blk(aQ, 1, 1))] + qrd(1), 24, 46, p)
    sc.fix(wait(lgkm=0), 53); sc.fix(barrier(), 53)
    sc.run()
    lv = l_ops(0, 0, rc[0], V(60)) + l_ops(0, 3, rc[1], V(61)) + [valu("v_add_f32", V(60), V(60), V(61))]; ls = l_flag(0, V(60))
    st = []
    for n in range(NSH): st += scale_frag(rawr(0, n), Qreg(0, n), V(0, 8), V(8 + 4*(n & 1), 4), pk=False)
    rest = sc.pour((lv, 10), (st, wq.gap + 1)); sc.emit(); E(rest); rest = []
    def site(k):
        c = [int(x) for x in O_.osched] + [0]; p0 = sum(c[:k]); o = more(int(O_.tsched[k]) if O_.tsched else O_.tper)
        if c[k]:
            o += [salu("s_mov_b32", sT1, p0*1024), wait(lgkm=[X[(p0 + i) % 4] for i in range(c[k])])]
            o += [vstore(X[(p0 + i) % 4], vlin, sO, sT1, i*1024, O_.late_flags) for i in range(c[k])]
        p1 = p0 + c[k]; assert (p1 + c[k + 1] + 3)//4 <= (k + 1)//2 or not c[k + 1]
        return o + [o_read(aO(0, p), p, X[p % 4]) for p in range(p1, p1 + c[k + 1])]
    first = sm_split(0, O_.ne1)[0]
    def finish(b): return rowmax_ops(b)[1] + delay_cvts([x for bb, x in first if bb == b])
    for b in range(NB):
        E(comment(f"---- switch block {b}"), stamp_now() if O_.probe == 1 else None)
        fs = range(max(NSH, 4*b + 1), min(4*b + 5, 4*NB))
        mf = []; fl = []
        for f in fs:
            m, x = pm(f); mf += m; fl.append(x)
        qk = qk_first(b)
        if b == NB - 1: qk = [qk[k] for k in (0, 1, 2)] + [m for _, m in chain(b, 1, [F(4 + s_) for s_ in range(4)], 0, False)][:3] + [qk[3]]; \
                        qk.append(mfma(Sreg(b, 1), F(7), Qreg(b, 3), Sreg(b, 1)))
        sc = Sched(mf + qk)
        for k, x in enumerate(fl):
            for j, v in enumerate(x): sc.put(4*(k + 1) + j//2, v)
        if 1 <= b < NB - 1:
            sc.put(0, wait(vm=blk(aQ, 1, b + 1)))
            for n, x in enumerate(qrd(b + 1)): sc.put(1 + n, x)
            sc.put(11, wait(lgkm=[Qreg(b + 1, n) for n in range(4)]))
        rest = sc.pour((rowmax_ops(b - 1)[0] if b else rest, 0)); sc.emit(); E(rest, ls if b == 0 else None)
        if b == NB - 1: E([kread(15, 2, 0, s_, F(s_)) for s_ in range(4)])
        E(l_bcast(b, rc[b//3], rl), epi_half(0, b, 0, rl, V(176, 16), y), site(2*b), finish(b - 1) if b else None,
          epi_half(0, b, 1, rl, V(192, 16), y), site(2*b + 1))
    assert more.left() == 0
    E(rowmax_ops(NB - 1)[0], finish(NB - 1))
    E(salu("s_mov_b32", sCnt, 1), wait(lgkm=[F(s_) for s_ in range(4)]), stamp_now())

def endgame():
    s = seg("end"); path.append((s, {"J": 29}))
    E(stamp_now())
    carry = []
    for ps, H in enumerate(([3, 4, 5], [0, 1, 2])):
        E(comment(f"---- pass {ps}"))
        subs = [("Q", 1, 0), ("Q", 1, 1), ("P", 0, 0), ("P", 0, 1), ("Q", 2, 0), ("Q", 2, 1), ("P", 1, 0), ("P", 1, 1), ("P", 2, 0), ("P", 2, 1)]
        FA, FB = [F(k) for k in range(4)], [F(4 + k) for k in range(4)]
        G = [[Qreg(3 + n, k) for k in range(4)] for n in range(3)]; Hh = [[A(176 + 16*n + 4*k, 4) for k in range(4)] for n in range(5)]
        fr = [FA, FB, FA, FB, FA, FB, FA] + G if ps == 0 else [FA, FB] + Hh + G
        mf = []; use = []; cend = {}; cstart = {}; pstart = {}; bstart = {}
        for i, (kind, d, x) in enumerate(subs):
            u = {}
            if kind == "Q":
                for n, b in enumerate(H):
                    cstart[(d, b, x)] = len(mf)
                    for s_, m in chain(b, x, fr[i], negM(b), n & 1): u.setdefault(s_, []).append(len(mf)); mf.append(m)
                    cend[(d, b, x)] = len(mf) - 1
            elif d == 2:
                if x == 0:
                    u2 = {}
                    for n, b in enumerate(H):
                        bstart[b] = len(mf); mf.append(rowsum(1, b))
                        for t in range(8):
                            (u if t < 4 else u2).setdefault(t & 3, []).append(len(mf))
                            mf.append(mfma(Oreg(b, t), Preg(1, b), fr[i + (t >> 2)][t & 3], Oreg(b, t)))
                else: u = u2
            else:
                par = (d + 1) & 1
                if x == 0: pstart[d] = len(mf)
                for hh in range(2):
                    for t, m in pv_pair(par, H if hh == 0 else H[::-1], 4*x + 2*hh, fr[i][2*hh:2*hh + 2], False, H[2*x + hh:2*x + hh + 1]):
                        if t is not None: u.setdefault(t & 3, []).append(len(mf))
                        mf.append(m)
            use.append(u)
        sc = Sched(mf); bar = {}
        if ps == 0:
            for d, g, keys in ((0, 9, [rV(0), rK(2)]), (1, use[4][1][-1], [rV(1), rV(2)])):
                sc.fix(wait(vm=keys), g)
                bar[d] = bar[2] = sc.fix(barrier(), g)
        pcs = [(0, q) for q in late_pieces(2) + late_pieces(3)] if ps == 0 else [(0, q) for q in late_pieces(4)] + carry
        taken = {t.gap + k for t in bar.values() for k in (-1, 0, 1)}
        NX = 7; prev_st = [None]*NX; pst = None; base = None
        for i, (h, q) in enumerate(pcs):
            g = O_.p0g + (len(mf) - 4 - O_.p0g)*i//max(1, len(pcs) - 1) if ps == 0 else int(O_.p1g + (len(mf) - 3 - O_.p1g)*(i/(len(pcs) - 1))**O_.p1e)
            while g in taken or g - 1 in taken: g += 1
            off = h*98304 + q*1024; xr = X[i % NX]
            if base is None or not 0 <= off - base < 4096:
                base = off; sc.add(salu("s_mov_b32", sSide, base), 0, g - 1, [(pst, 1, 1)])
            if ps or i >= NPRE:
                r = sc.seq(o_read(aO(h, q), q, xr), g - 60, g - 8, prev_st[i % NX])
                sc.add(wait(lgkm=[xr]), 0, g - 1, [(r, 1, 7)])
            pst = prev_st[i % NX] = sc.fix(vstore(xr, vlin, sO, sSide, off - base, O_.h0_flags if h else O_.late_flags), g)
        prev = None
        for i, (kind, d, x) in enumerate(subs):
            if i == 0 or (ps == 1 and (i == 1 or i >= 7)): continue
            tight = ps == 0 and i < 7
            for k in range(4):
                lo = (use[i - 2][k][-1] if i >= 2 else 0) if tight else (cend[(2, 3 + i - 7, 1)] if ps == 0 else 0)
                rds = [kread(29, d, x, k, fr[i][k])] if kind == "Q" else [vread(29, d, 4*x + k, a, fr[i][k]) for a in range(2)]
                bp = bar.get(d if kind == "P" else (0 if d == 2 else None))
                for r in rds: prev = sc.add(r, lo, None, [(prev, 1, 1), (bp, 1, 1)])
                if tight and kind == "P" and k & 1: sc.add(wait(lgkm=fr[i][k - 1:k + 1]), 0, min(use[i][k - 1][0], use[i][k][0]) - 1, [(prev, 1, 6)])
            if not (tight and kind == "P"): sc.add(wait(lgkm=fr[i]), 0, use[i][0][0] - 1, [(prev, 1, 6)])
        if ps == 0:
            for a in range(2):
                for k in range(4): prev = sc.add(kread(29, 1, a, k, F(4*a + k)), use[6][k][-1], None, [(prev, 1, 1)])
        grp = [([x for bb, x in sm_split(1, NE_A, END_ORDER)[1] if bb == b], 0, cstart[(1, b, 1)] - 1) for b in H if b >= O_.tl0]
        for a in range(2):
            for k, b in enumerate(H): grp.append((sm_ops(0, b, a), cend[(1, b, a)] + 4, min(pstart[1] - 2 + 2*k, cstart[(2, b, a)] - 1)))
        sc.sm(grp)
        order = [(H[0], 0), (H[1], 0), (H[0], 1), (H[2], 0), (H[1], 1), (H[2], 1)]
        sc.sm([(sm_ops(1, b, a), cend[(2, b, a)] + 4, bstart[b] - 2) for b, a in order]
              + ([(sm_ops(1, b, 1), 100, len(mf) - 1) for b in range(O_.tl0)] if ps == 0 else []), 2.4)
        sc.run()
        rc, rl, t1 = negM(H[0]), negM(H[1]), negM(H[2])[0]
        rest = sc.pour((l_ops(1, H[0], rc, t1), bstart[H[2]] + 4)); sc.emit()
        E(rest, l_flag(1, t1), stamp_now(), comment("---- epilogue"))
        dsts = [X[:4], [F(4 + i) for i in range(4)]]
        pend = []
        for k, b in enumerate(H):
            E(l_bcast(b, rc, rl))
            for th in range(2):
                ep = epi_half(1, b, th, rl, V(24, 16), V(40, 8))
                E(ep)
                E(pend[:2]); del pend[:2]
            if ps == 0 and k > 0: carry += [(1, 4*b + i) for i in range(4)]; continue
            d_ = dsts[k & 1]
            E([o_read(aO(1, 4*b + i), 4*b + i, d_[i]) for i in range(4)])
            sts = [vstore(d_[i], vlin, sO, sSide, i*1024, O_.fin_flags if ps else O_.h0_flags) for i in range(4)]
            pre = [salu("s_mov_b32", sSide, 98304 + b*4096), wait(lgkm=d_)]
            pend = [pre + [sts[0]], None, sts[1], None, sts[2], None, sts[3]] if ps == 0 else [pre + [sts[0]], sts[1], sts[2], sts[3]]
        E(pend, wait(lgkm=0), stamp_now())

def slow_path():
    sH, sB, sI, sKo, sQo = S(4), S(5), S(6), S(7), S(8)
    Qf = [V(4*s, 4) for s in range(4)]; Kf = [V(16 + 4*i, 4) for i in range(8)]; St = [V(48, 4), V(52, 4)]; Pf = V(56, 4)
    nm = V(60, 4); Vf = V(64, 4); Of = [V(68 + 4*t, 4) for t in range(8)]; L = V(100, 4); w = V(104, 8)
    ones = V(120, 4)
    vrow, vk, vv, vtr, vst_, t0, t1 = V(112), V(113), V(114), V(115), V(116), V(117), V(118)
    def S_(name, J=0):
        s = seg(name); return s
    s0 = S_("slow0")
    E(comment("---- fallback: a row sum left the safe range, redo this wave's rows with the true row max"),
      label("L_slow"), wait(vm=0, lgkm=0),
      valu("v_mbcnt_lo_u32_b32", t0, -1, 0), valu("v_mbcnt_hi_u32_b32", t0, -1, t0), valu("v_lshlrev_b32", vlin, 4, t0),
      [valu("v_mov_b32", ones[r], "0x3f803f80") for r in range(4)],
      valu("v_bfe_u32", t0, vlin, 4, 4), valu("v_lshrrev_b32", t1, 8, vlin),
      valu("v_lshlrev_b32", vrow, 8, t0), valu("v_lshl_add_u32", vst_, t1, 3, vrow), valu("v_lshl_add_u32", vrow, t1, 4, vrow),
      valu("v_lshrrev_b32", vtr, 2, t0), valu("v_lshl_add_u32", vtr, t1, 2, vtr), valu("v_lshlrev_b32", vtr, 8, vtr),
      valu("v_and_b32", t0, 3, t0), valu("v_lshl_add_u32", vtr, t0, 3, vtr), valu("v_add_u32", vtr, sStg, vtr),
      salu("s_mov_b32", sH, 0))
    s1 = S_("slow_head")
    E(label("L_sl_head"), salu("s_lshr_b32", sT0, sFlag, sH), salu("s_and_b32", sT0, sT0, 1), raw("s_cbranch_scc0 L_sl_next", "salu", {"scc"}),
      salu("s_lshl_b32", sKo, sH, 17), salu("s_mul_i32", sQo, sH, 98304), salu("s_mov_b32", sB, 0))
    s2 = S_("slow_blk")
    E(label("L_sl_blk"))
    for s in range(4): E(vload(Kf[s], vrow, sQ, sQo, 64*s))
    E(wait(vm=0))
    for s in range(4): E(scale_frag(Kf[s], Qf[s], w, None))
    E(valu("v_mov_b32", nm[0], "0xff800000"), valu("v_add_u32", vk, sKo, vrow), salu("s_mov_b32", sI, 32))
    s3 = S_("slow_p1")
    E(label("L_sl_p1"))
    for s in range(4): E(gload(Kf[s], vk, sKb, 64*s))
    E(valu("v_add_u32", vk, 4096, vk), wait(vm=0))
    for s in range(4): E(mfma(St[0], Kf[s], Qf[s], 0 if s == 0 else St[0]))
    E(salu("s_sub_u32", sI, sI, 1), scmp("s_cmp_lg_u32", sI, 0), nop(7),
      valu("v_max3_f32", nm[0], nm[0], St[0][0], St[0][1]), valu("v_max3_f32", nm[0], nm[0], St[0][2], St[0][3]),
      raw("s_cbranch_scc1 L_sl_p1", "salu", {"scc"}))
    s4 = S_("slow_mid")
    E(xlane_max(nm[0], nm[1]), [valu("v_sub_f32", nm[r], 0, nm[0]) for r in (1, 2, 3, 0)])
    for r in range(36): E(valu("v_mov_b32", V(68 + r), 0))
    E(valu("v_add_u32", vk, sKo, vrow), valu("v_add_u32", vv, sKo, vlin), valu("v_add_u32", vv, 1024 + 16384, vv), salu("s_mov_b32", sI, 16))
    s5 = S_("slow_p2")
    E(label("L_sl_p2"))
    key = (("stg", "slow"), ("Vs",), False)
    for half in range(2):
        E(salu("s_add_u32", "m0", sStg, 4096*half))
        for s in range(4): E(gload(Kf[4*half + s], vk, sKb, 64*s))
        for k in range(4): E(gdma(vv, sVb, 1024*k, key, ""))
        E(valu("v_add_u32", vk, 4096, vk), valu("v_add_u32", vv, 4096, vv))
    E(wait(vm=0))
    for a in range(2):
        for s in range(4): E(mfma(St[a], Kf[4*a + s], Qf[s], nm if s == 0 else St[a]))
    E(nop(7))
    for r in range(8): E(valu("v_exp_f32", V(48 + r), V(48 + r)))
    for r in range(4): E(valu("v_cvt_pk_bf16_f32", Pf[r], V(48 + 2*r), V(49 + 2*r)))
    E(mfma(L, ones, Pf, L))
    for t in range(8):
        for a in range(2): E(ds_read("ds_read_b64_tr_b16", Vf[2*a:2*a + 2], vtr, a*4096 + 32*t, key))
        E(wait(lgkm=0), mfma(Of[t], Vf, Pf, Of[t]), nop(1))
    E(salu("s_sub_u32", sI, sI, 1), scmp("s_cmp_lg_u32", sI, 0), raw("s_cbranch_scc1 L_sl_p2", "salu", {"scc"}))
    s6 = S_("slow_epi")
    E(nop(7), valu("v_rcp_f32", t0, L[0]), nop(0))
    for t in range(8):
        for r in range(4): E(valu("v_mul_f32", Of[t][r], t0, Of[t][r]))
        E(valu("v_cvt_pk_bf16_f32", Of[t][0], Of[t][0], Of[t][1]), valu("v_cvt_pk_bf16_f32", Of[t][1], Of[t][2], Of[t][3]),
          vstore(Of[t][0:2], vst_, sO, sQo, 32*t, "", "buffer_store_dwordx2"))
    E(salu("s_add_u32", sQo, sQo, 4096), salu("s_add_u32", sB, sB, 1), scmp("s_cmp_lt_u32", sB, NB), raw("s_cbranch_scc1 L_sl_blk", "salu", {"scc"}))
    s7 = S_("slow_next")
    E(label("L_sl_next"), salu("s_add_u32", sH, sH, 1), scmp("s_cmp_lt_u32", sH, 2), raw("s_cbranch_scc1 L_sl_head", "salu", {"scc"}))
    blkp = [s2, s3, s3, s4, s5, s5, s6]
    path2.extend((x, {"J": 0}) for x in [s0, s1] + blkp + blkp + [s7, s1] + blkp + [s7])

def finish():
    if O_.diag:
        a, b = [int(x) for x in O_.diag.split(":")]
        E(wait(vm=0), raw("s_memrealtime s[42:43]", "smem", (), rs(S(42, 2))), wait(lgkm=0), salu("s_mov_b32", S(47), S(42)),
          salu("s_sub_u32", sT0, S(STAMP0 + b), S(STAMP0 + a)), salu("s_lshr_b32", sT0, sT0, 3 if O_.stamps == 1 else 0),
          salu("s_add_u32", sT0, sT0, 7000),
          label("L_spin"), raw("s_memrealtime s[42:43]", "smem", (), rs(S(42, 2))), wait(lgkm=0),
          salu("s_sub_u32", S(42), S(42), S(46)), scmp("s_cmp_lt_u32", S(42), sT0), raw("s_cbranch_scc1 L_spin", "salu", {"scc"}))
    elif O_.stamps:
        E(wait(vm=0), raw("s_memrealtime s[42:43]", "smem", (), rs(S(42, 2))), wait(lgkm=0), salu("s_mov_b32", S(47), S(42)))
        E(salu("s_lshl_b32", sT0, S(2), 2), salu("s_add_u32", sT0, sT0, sW), salu("s_lshl_b32", sT0, sT0, 8))
        E(valu("v_mov_b32", V(1), sT0))
        for k in range(nstamp[0] + 2):
            E(valu("v_mov_b32", V(2), S(46 + k)),
              Inst(f"global_store_dword v1, v2, s[44:45] offset:{4*k}", "vst", rs(V(1), V(2), S(44, 2)), (), data=set()), nop(1))
    if O_.stamps and not O_.diag:
        E(raw("s_getreg_b32 s42, hwreg(HW_REG_XCC_ID)", "salu", (), rs(S(42))), valu("v_mov_b32", V(1), sT0), valu("v_mov_b32", V(2), S(42)),
          Inst("global_store_dword v1, v2, s[44:45] offset:252", "vst", rs(V(1), V(2), S(44, 2)), (), data=set()))
    E(scmp("s_cmp_eq_u32", sFlag, 0), raw("s_cbranch_scc1 L_end", "salu", {"scc"}), label("L_fast_end"))

def build():
    s = seg("start"); path.append((s, {"J": 0})); startup()
    for J in range(4): straight(J)
    if O_.probe == 4: E(stamp_now())
    loop4("A", 4, 2)
    for J in range(12, 15): straight(J)
    transition()
    straight(16)
    loop4("M", 17, 2)
    for J in range(25, 29): straight(J, stamp_now() if J == 28 or (J == 26 and O_.probe == 4) else None)
    endgame()
    finish()
    if O_.slow: slow_path()
    seg("exit"); E(label("L_end"))
    def trace(): return [(i, mkctx(c)) for sidx, c in path + path2 for i in segs[sidx][1]]
    for rnd in range(5):
        fix = {}
        resolve_and_check(trace(), fix=fix)
        for sg in segs:
            new = []
            for i in sg[1]:
                if i.kind == "wait" and i.m["nvm"] in (None, 63) and i.m["nlg"] in (None, 15): fix[0] = 1; continue
                if id(i) in fix: new.append(nop(fix[id(i)] - 1))
                new.append(i)
            sg[1][:] = new
        if not fix: break
    resolve_and_check(trace(), verbose=True)
    if O_.stamps:
        tr = [i for sidx, c in path for i in segs[sidx][1]]; cuts = [k for k, i in enumerate(tr) if i.kind == "smem" and "s[42:43]" in i.text]
        print("  est between stamps:", [cost_estimate(tr[a:b]) for a, b in zip(cuts, cuts[1:])])
    for name, ins in segs:
        if not name.startswith("slow"): print(f"  seg {name:8s} insts {len(ins):5d} est cycles {cost_estimate(ins):6d} nops {sum(1 for i in ins if i.kind == 'nop')}")

HEAD = """; MHA forward, B=16 H=32 Sq=384 Sk=512 D=128, bf16 in/out.  Generated by the author's own script (gen/gen10.py).
; C operand; the final row sums are checked (NaN or >= 2^64) and a failing wave redoes its rows with the true
; row max (L_slow).
; @launch grid=(256,1,1) block=(256,1,1) lds=163840
.amdgcn_target "amdgcn-amd-amdhsa--gfx950"
.text
.globl standalone__mha_softmax__near_ridge_kernel
.p2align 8
.type standalone__mha_softmax__near_ridge_kernel,@function
standalone__mha_softmax__near_ridge_kernel:
"""
TAIL = """    s_endpgm
.section .rodata,"a"
.p2align 6
.amdhsa_kernel standalone__mha_softmax__near_ridge_kernel
  .amdhsa_next_free_vgpr 512
  .amdhsa_next_free_sgpr 102
  .amdhsa_accum_offset 256
  .amdhsa_group_segment_fixed_size 0
  .amdhsa_kernarg_size 48
  .amdhsa_user_sgpr_count 2
  .amdhsa_user_sgpr_kernarg_segment_ptr 1
  .amdhsa_system_sgpr_workgroup_id_x 1
.end_amdhsa_kernel
"""
def insert_pads(text):
    import subprocess, re, tempfile, os
    def offsets(npads):
        d = tempfile.mkdtemp(); t = text()
        t = t.replace("L_padret:", "L_padret:\n" + "".join(f"L_pad{k}:\n" for k in range(npads + 1, 40)))
        open(d + "/a.s", "w").write(t)
        subprocess.run(["clang", "-x", "assembler", "-target", "amdgcn-amd-amdhsa", "-mcpu=gfx950", "-c", d + "/a.s", "-o", d + "/a.o"], check=True)
        dis = subprocess.run(["llvm-objdump", "-d", "--mcpu=gfx950", d + "/a.o"], capture_output=True, text=True).stdout
        sym = subprocess.run(["llvm-readelf", "-s", d + "/a.o"], capture_output=True, text=True).stdout
        main = int(re.search(r"([0-9a-f]{16}) .* L_main$", sym, re.M).group(1), 16)
        ad = [(int(m.group(2), 16), m.group(1)) for m in re.finditer(r"^\s+(\S+).*// ([0-9A-F]{12}):", dis, re.M)]
        ad = [x for x in ad if x[0] >= main]
        flat = [(sg, k) for sg in segs for k in range(len(sg[1]))]
        flat = flat[[i for i, (sg, k) in enumerate(flat) if sg[1][k].text == "L_main:"][0]:]
        o = []; j = 0
        for sg, k in flat:
            x = sg[1][k]
            if x.kind == "label":
                if x.text == "L_fast_end:": break
                if x.text.startswith(".p2align") and ad[j][0] % 8: j += 1
                continue
            assert ad[j][1].startswith(x.text.split()[0][:12]), (ad[j], x.text)
            o.append((ad[j][0] - ad[0][0], sg, k)); j += 1
        return o
    page = 1; pads = []
    while True:
        off = offsets(page - 1)
        cand = [n for n, (a, sg, k) in enumerate(off) if 4096*page <= a <= 4096*page + 56]
        if not cand: break
        def score(n):
            a, sg, k = off[n]; lo = max(0, k - 8); w = sg[1][lo:k + 8]
            return cost_estimate(w[:k - lo] + [raw("pad")] + w[k - lo:]) - cost_estimate(w)
        n = min(cand, key=score); _, sg, k = off[n]
        p = raw(f"s_cbranch_vccz L_pad{page + 4}"); pads.append(p)
        sg[1][k:k] = [label(f"L_pad{page}"), p]
        page += 1
    for i, p in enumerate(pads):
        if i + 1 + 4 >= page: p.text = "s_cbranch_vccz L_padret"
    assert page > 4
    print(f"  {page - 1} page pads")

if __name__ == "__main__":
    out = sys.argv[1]
    for a in sys.argv[2:]:
        k, v = a.split("=")
        setattr(O_, k, type(getattr(O_, k))(v))
    build()
    def text(): return HEAD + "\n".join((i.text if i.kind == "label" else "    " + i.text) for _, ins in segs for i in ins) + "\n" + TAIL
    if O_.pads: insert_pads(text)
    open(out, "w").write(text())
    import subprocess
    r = subprocess.run([sys.executable, "cdna_unwritten_srd_check.py", out], capture_output=True, text=True)
    print("  check:", r.stdout.strip()[-300:], r.stderr.strip()[-300:])
```

```python
import sys, math, struct
from ir import *

class Opt:
    stamps = 0; diag = ""; probe = 0; force = 0
    late_flags = "sc1"; h0_flags = "sc1"; fin_flags = "sc1"; fq = "nt"; fk = "nt"; fv = "nt"
    n0 = 14
    lead0 = "80,85,90,100,123,123,123,123,123,123,123,123,123,123,145"
    qs = "000222222222222"
    tq = 4; tstep = 12; tper = 2
    olate = "26552"
    g11 = 56; g12 = 16; dsp = 5; p0g = 6; p1g = 10; p1e = 1.0; tl0 = 1
    osched = "000022000000"; tsched = ""
    ne1 = 36
    pads = 2
    mq0 = 0
    tight = 1
    pvo = "bs2"; qks = 1; slow = 1
O_ = Opt()

NB = 6
def f32bits(x): return struct.unpack("<I", struct.pack("<f", x))[0]
CSCALE = f32bits(math.log2(math.e) / math.sqrt(128.0))
THRESH = f32bits(2.0 ** 64)
def bf16(x):
    u = f32bits(x); return (u + 0x7fff + ((u >> 16) & 1)) >> 16
C_HI = bf16(math.log2(math.e) / math.sqrt(128.0))
C_LO = bf16(math.log2(math.e) / math.sqrt(128.0) - struct.unpack("<f", struct.pack("<I", C_HI << 16))[0])

def Sreg(b, a): return V(8*b + 4*a, 4)
def Preg(par, b): return V(48 + 24*par + 4*b, 4)
def negM(b): return V(96 + 4*b, 4)
kaddr = [V(120 + s) for s in range(4)]
vaddr = [V(124 + t) for t in range(8)]
vkv = V(132); vsd0 = V(133); vsd1 = V(134); vlin = V(135)
qa = [V(136 + s) for s in range(4)]
ow = V(140)
ovr = V(141)
def Oreg(b, t):
    n = 8*b + t
    return V(144 + 4*n, 4) if n < 28 else A(176 + 4*(n - 28), 4)
def Qreg(b, s): return A(16*b + 4*s, 4)
def F(i): return A(96 + 4*i, 4)
def lacc(b): return A(128 + 4*(b//3), 4)
def sel(b): return A(136 + 4*(b % 3), 4)
X = [A(148 + 4*k, 4) for k in range(7)]
CS = A(164, 10)
sQ, sO = S(12, 4), S(24, 4); sKb, sVb, sVx = S(16, 2), S(22, 2), S(18, 2)
sW = S(28); sM0 = S(30); sStg = S(31); sSide = S(32); sT0 = S(33); sT1 = S(34); sT2 = S(35)
sFlag = S(36); sThr = S(37); sC = S(38, 2); sCmp = S(40, 2); sStamp = S(42, 2); sCnt = S(3); sQd = S(29)
STAMP0 = 48

def aK(J): return (("ring", (J - 2) % 4, "K"), ("K", J), True)
def aV(J): return (("ring", J % 4, "V"), ("V", J), True) if J < 31 else (("ring", 2, "K"), ("V", J), True)
def rK(d): return lambda c: aK(c["J"] + d)
def rV(d): return lambda c: aV(c["J"] + d)
def aQ(h, p): return (("stg", p), ("Q", h), False)
def aO(h, p): return (("stg", p), ("O", h), False)
def blk(f, h, b): return [f(h, 4*b + i) for i in range(4)]
def mkctx(c): return lambda r: r(c) if callable(r) else r

segs = []; path = []; path2 = []; cur = None
def seg(name):
    global cur
    cur = []; segs.append([name, cur]); return len(segs) - 1
def E(*xs):
    for x in xs:
        if x is None: continue
        if isinstance(x, (list, tuple)): E(*x)
        else: cur.append(x)
nstamp = [0]
def stamp_now():
    if O_.stamps not in (1, 2): return []
    k = nstamp[0]; nstamp[0] += 1
    op = "s_memtime" if O_.stamps == 1 else "s_memrealtime"
    return [raw(f"{op} {sStamp}", "smem", (), rs(sStamp)), wait(lgkm=0), salu("s_mov_b32", S(STAMP0 + k), sStamp[0])]

MEM = ("dsr", "dsw", "dma", "vld", "vst"); VAL = ("valu", "trans")
class Task:
    def __init__(s, x, lo, hi, preds): s.x, s.lo, s.hi, s.preds, s.gap = x, lo, hi, preds, None
class Sched:
    def __init__(s, mf):
        s.mf = mf; s.n = len(mf); s.g = [[] for _ in mf]; s.t = []
        s.cap = [24 if m.m["big"] else 8 for m in mf]; s.novalu = set()
    def cost(s, x): return 8 if x.kind == "trans" or x.m.get("perm") else 4
    def fits(s, g, x):
        if s.cap[g] < s.cost(x): return False
        if x.kind in MEM and any(y.kind in MEM for y in s.g[g]): return False
        if x.kind in VAL and g in s.novalu: return False
        return True
    def put(s, g, x): s.g[g].append(x); s.cap[g] -= s.cost(x)
    def fix(s, x, g):
        t = Task(x, g, g, []); t.gap = g; s.put(g, x)
        if x.kind in ("dma", "vst", "vld"): s.cap[g] = 0; s.novalu.add(g - 1)
        if x.kind == "barrier": s.cap[g] = 0
        return t
    def add(s, x, lo=0, hi=None, preds=()):
        t = Task(x, max(lo, 0), s.n - 1 if hi is None else min(hi, s.n - 1), [p for p in preds if p[0] is not None]); s.t.append(t); return t
    def seq(s, xs, lo=0, hi=None, after=None, hard=1):
        p = after
        for x in xs: p = s.add(x, lo, hi, [(p, hard, hard)])
        return p
    def sm(s, groups, smax=2.0):
        ex = [(x, lo, hi) for ops, lo, hi in groups for x in ops if x.kind == "trans"]
        sig = smax
        while True:
            pos = []; t = -9.0; ok = True
            for x, lo, hi in ex:
                t = max(lo, t + sig); g = int(t)
                while g < s.n and (not s.fits(g, x) or (pos and g <= pos[-1])): g += 1
                if g > hi - 1: ok = False; break
                pos.append(g); t = max(t, g - 0.5)
            if ok: break
            sig -= 0.05
            assert sig > 0.3, "softmax does not fit"
        k = 0
        for ops, lo, hi in groups:
            e = []
            for x in ops:
                if x.kind == "trans": e.append(s.fix(x, pos[k])); k += 1
                else: s.add(x, lo, min(hi, e[-1].gap + 5), [(e[-1], 1, 1)])
    def run(s):
        for t in reversed(s.t):
            for p, h, so in t.preds:
                if p.gap is None: p.hi = min(p.hi, t.hi - so)
        for t in s.t:
            for p, h, so in t.preds: t.lo = max(t.lo, p.lo + h)
            t.hi = max(t.hi, t.lo)
        left = list(s.t)
        for g in range(s.n):
            while True:
                rdy = [t for t in left if t.lo <= g and all(p.gap is not None and g >= p.gap + h for p, h, so in t.preds)]
                rdy = [t for t in rdy if t.hi <= g or all(g >= p.gap + so for p, h, so in t.preds)]
                rdy.sort(key=lambda t: t.hi)
                pick = next((t for t in rdy if t.hi <= g or s.fits(g, t.x)), None)
                if pick is None: break
                s.put(g, pick.x); pick.gap = g; left.remove(pick)
        assert not left, left[0].x
        s.t = []
    def pour(s, *streams):
        st = [[list(xs), lo] for xs, lo in streams]
        for g in range(s.n):
            again = True
            while again:
                again = False
                for q in st:
                    if q[0] and q[1] <= g and s.fits(g, q[0][0]): s.put(g, q[0].pop(0)); again = True; break
        return [x for q in st for x in q[0]]
    def emit(s):
        for m, g in zip(s.mf, s.g):
            key = lambda x: 3 if x.m.get("last") else (2 if x.kind in VAL else (0 if x.kind in MEM else 1))
            E(m, sorted(g, key=key))

def kread(J, d, a, s, dst): return ds_read("ds_read_b128", dst, kaddr[s], ((J + d - 2) % 4)*16384 + a*8192, rK(d))
def vread(J, d, t, a, dst):
    return ds_read("ds_read_b64_tr_b16", dst[2*a:2*a+2], vaddr[t], (((J + d) % 4)*16384 if J + d < 31 else 32768 - 1024) + a*8192, rV(d))
def kv_group(J, d, withV=True):
    o = [salu("s_add_u32", "m0", sM0, ((J + d) % 4)*16384)]
    for im in (0, 2048):
        if withV: o.append(gdma(vkv, sVb, im + 1024, rV(d), O_.fv))
        o.append(gdma(vkv, sKb, im, rK(d + 2), O_.fk) if J + d < 30 else gdma(vkv, sVx, im, rV(d + 1), O_.fv))
    return o + [kv_step()]
def kv_step(): return valu("v_add_u32", vkv, 8192, vkv)
def q_dma_block(h, b):
    o = [salu("s_add_u32", "m0", sStg, b*4096), salu("s_mov_b32", sSide, h*98304 + b*4096)]
    for i in range(4): o.append(dma(vsd1 if i & 1 else vsd0, sQ, sSide, i*1024, aQ(h, 4*b + i), O_.fq))
    return o
def piecemeal(groups):
    st = []; pre = []
    for grp in groups:
        for x in grp:
            if x.kind in MEM: st.append(pre + [x]); pre = []
            else: pre.append(x)
    if pre: st[-1] += pre
    def more(n):
        o = st[:n]; del st[:n]; return o
    more.left = lambda: len(st)
    return more

def sm_ops(par, b, a):
    s = Sreg(b, a); p = Preg(par, b)
    return [valu("v_exp_f32", s[0], s[0]), valu("v_exp_f32", s[1], s[1]), valu("v_cvt_pk_bf16_f32", p[2*a], s[0], s[1]),
            valu("v_exp_f32", s[2], s[2]), valu("v_exp_f32", s[3], s[3]), valu("v_cvt_pk_bf16_f32", p[2*a+1], s[2], s[3])]
NE_A = 40
def sm_split(par, ne=NE_A, order=range(NB)):
    st = []
    for a in range(2):
        for b in (order if a else range(NB)): st += [(b, x) for x in sm_ops(par, b, a)]
    k = ne // 2 * 3
    return st[:k], st[k:]
def delay_cvts(xs):
    o = []; pend = []
    for x in xs:
        if x.kind == "trans":
            o.append(x)
            if pend: o.append(pend.pop(0))
        else: pend.append(x)
    return o + pend
def xlane_max(m, t):
    o = []
    for op in ("v_permlane32_swap_b32", "v_permlane16_swap_b32"):
        o += [valu("v_mov_b32", t, m), swap(op, m, t), valu("v_max_f32", m, m, t)]
    return o
def rowmax_ops(b):
    m, t = negM(b)[0], negM(b)[1]; sv = lambda r: V(8*b + r)
    o = [valu("v_max3_f32", m, sv(0), sv(1), sv(2)), valu("v_max3_f32", t, sv(3), sv(4), sv(5)),
         valu("v_max3_f32", m, m, sv(6), sv(7)), valu("v_max_f32", m, m, t)] + xlane_max(m, t)
    o += [valu("v_sub_f32", negM(b)[r], 0, m) for r in (1, 2, 3, 0)]
    return o, [valu("v_pk_add_f32", V(8*b + 2*r, 2), V(8*b + 2*r, 2), negM(b)[0:2]) for r in range(4)]
def scale_frag(x, dst, w, y, pk=True):
    o = []
    if pk:
        for r in range(4): o += [valu("v_lshlrev_b32", w[2*r], 16, x[r]), valu("v_and_b32", w[2*r+1], "0xffff0000", x[r])]
        for r in range(4): o.append(valu("v_pk_mul_f32", w[2*r:2*r+2], w[2*r:2*r+2], sC))
    else:
        for r in range(4):
            o += [valu("v_lshlrev_b32", w[2*r], 16, x[r]), valu("v_and_b32", w[2*r+1], "0xffff0000", x[r]),
                  valu("v_mul_f32", w[2*r], sC[0], w[2*r]), valu("v_mul_f32", w[2*r+1], sC[0], w[2*r+1])]
    if dst.k == "v": return o + [valu("v_cvt_pk_bf16_f32", dst[r], w[2*r], w[2*r+1]) for r in range(4)]
    for r in range(4): o.append(valu("v_cvt_pk_bf16_f32", y[r], w[2*r], w[2*r+1]))
    for r in range(4): o.append(valu("v_accvgpr_write_b32", dst[r], y[r]))
    return o
def chain(b, a, fr, c0, rev):
    return [(s, mfma(Sreg(b, a), fr[s], Qreg(b, s), c0 if n == 0 else Sreg(b, a))) for n, s in enumerate(range(3, -1, -1) if rev and O_.qks else range(4))]
def qk_first(b): return [m for a in range(2) for _, m in chain(b, a, [F(4*a + s) for s in range(4)], 0, a)]
def pv_pair(par, bs, t0, fr, init, sums):
    o = []
    if O_.pvo in ("t", "ts"):
        bs = sorted(bs)
        if 5 in sums and init: sums = []; o += [(None, rowsum(par, 5, init)), (None, rowsum(par, 4, init))]
        for k in range(2):
            for b in (bs if k == 0 or O_.pvo == "t" else bs[::-1]):
                o.append((t0 + k, mfma(Oreg(b, t0 + k), Preg(par, b), fr[k], 0 if init else Oreg(b, t0 + k))))
                if k == 0 and b in sums: o.append((None, rowsum(par, b, init)))
        return o
    for n, b in enumerate(bs):
        for k in ((0, 1) if n % 2 == 0 or O_.pvo == "pp2" else (1, 0)): o.append((t0 + k, mfma(Oreg(b, t0 + k), Preg(par, b), fr[k], 0 if init else Oreg(b, t0 + k))))
        if b in sums: o.insert(len(o) - 1, (None, rowsum(par, b, init)))
    return o
def rowsum(par, b, init=False): return mfma(lacc(b), Preg(par, b), sel(b), 0 if init and b in (0, 5) else lacc(b))

def pm(f):
    q = Qreg(f//4, f % 4); d = V(76 + 8*(f & 1), 8); t = V(92, 4)
    mf = [mfma(d[0:4], CS[2:6], q, 0), mfma(d[0:4], CS[6:10], q, d[0:4]), mfma(d[4:8], CS[0:4], q, 0), mfma(d[4:8], CS[4:8], q, d[4:8])]
    fl = []
    for hh in range(2):
        fl += [valu("v_cvt_pk_bf16_f32", t[2*hh + k], d[4*hh + 2*k], d[4*hh + 2*k + 1]) for k in range(2)]
        fl += [valu("v_accvgpr_write_b32", q[2*hh + k], t[2*hh + k]) for k in range(2)]
    return mf, fl

def startup():
    v0, vl, vi, vu, t0, t1, t2 = V(0), V(1), V(2), V(3), V(4), V(5), V(6)
    E(comment("---- setup"),
      raw("s_load_dwordx4 s[4:7], s[0:1], 0", "smem", (), rs(S(4, 4))),
      raw("s_load_dwordx4 s[8:11], s[0:1], 16", "smem", (), rs(S(8, 4))),
      scmp("s_cmp_ge_u32", S(2), 256), raw("s_cbranch_scc1 L_end", "salu", {"scc"}))
    if O_.stamps:
        E(raw("s_load_dwordx2 s[44:45], s[0:1], 40", "smem", (), rs(S(44, 2))),
          raw("s_memrealtime s[46:47]", "smem", (), rs(S(46, 2))))
    E(comment("pull the kernel's own code into L2 (one dword per 128-byte line)"),
      raw("s_getpc_b64 s[40:41]", "salu", (), rs(S(40, 2))), label("L_pc"),
      valu("v_lshlrev_b32", t0, 7, v0), valu("v_min_u32", t1, "L_fast_end-L_pc", t0),
      Inst(f"global_load_dword v7, {t1}, s[40:41]", "vld", rs(t1, S(40, 2)), rs(V(7))),
      valu("v_add_u32", t0, 32768, t0), valu("v_min_u32", t1, "L_fast_end-L_pc", t0),
      Inst(f"global_load_dword v8, {t1}, s[40:41]", "vld", rs(t1, S(40, 2)), rs(V(8))))
    E(valu("v_lshrrev_b32", t1, 6, v0), valu("v_and_b32", vl, 63, v0),
      valu("v_readfirstlane_b32", sW, t1),
      valu("v_and_b32", vi, 15, vl), valu("v_lshrrev_b32", vu, 4, vl),
      valu("v_lshlrev_b32", t0, 1, vu), valu("v_xor_b32", t0, t0, vi), valu("v_lshlrev_b32", t0, 4, t0),
      valu("v_lshl_add_u32", vsd0, vu, 8, t0), valu("v_xor_b32", vsd1, 128, vsd0),
      salu("s_and_b32", sT0, sW, 1), salu("s_lshr_b32", sT1, sW, 1),
      salu("s_lshl_b32", sT2, sT0, 7), salu("s_lshl_b32", sT0, sT0, 10), salu("s_lshl_b32", sT1, sT1, 12),
      salu("s_add_u32", sT0, sT0, sT1),
      valu("v_xor_b32", vkv, sT2, vsd0), valu("v_add_u32", vkv, sT0, vkv),
      salu("s_lshl_b32", sM0, sW, 12), salu("s_mul_i32", sStg, sW, 24576),
      salu("s_mul_i32", sT0, S(2), 196608), salu("s_add_u32", sT0, sT0, sStg), salu("s_add_u32", sStg, sStg, 65536),
      salu("s_lshl_b32", sT1, S(2), 18),
      salu("s_mov_b32", sQ[2], 98304 + 24576), salu("s_mov_b32", sQ[3], "0x20000"),
      wait(lgkm=0),
      salu("s_add_u32", sKb[0], S(6), sT1), salu("s_addc_u32", sKb[1], S(7), 0),
      salu("s_add_u32", sQ[0], S(4), sT0), salu("s_addc_u32", sQ[1], S(5), 0), salu("s_and_b32", sQ[1], sQ[1], "0xffff"))
    g0 = kv_group(0, 0); g0 = [g0[k] for k in (0, 1, 3, 2, 4, 5)]
    more = piecemeal([kv_group(0, -2, False)] + [q_dma_block(0, b) for b in range(NB)] + [kv_group(0, -1, False), g0])
    E(more(10))
    if O_.pads == 2: E(raw("s_branch L_main"), raw(".p2align 12", "label"), label("L_main"))
    E(salu("s_add_u32", sVb[0], S(8), sT1), salu("s_addc_u32", sVb[1], S(9), 0),
      salu("s_sub_u32", sVb[0], sVb[0], 1024 + 16384), salu("s_subb_u32", sVb[1], sVb[1], 0),
      salu("s_add_u32", sO[0], S(10), sT0), salu("s_addc_u32", sO[1], S(11), 0), salu("s_and_b32", sO[1], sO[1], "0xffff"),
      salu("s_mov_b32", sO[2], 98304 + 24576), salu("s_mov_b32", sO[3], "0x20000"),
      salu("s_add_u32", sVx[0], sVb[0], 1024 + 8192), salu("s_addc_u32", sVx[1], sVb[1], 0),
      salu("s_mov_b32", sC[0], hex(CSCALE)), salu("s_mov_b32", sC[1], hex(CSCALE)),
      salu("s_mov_b32", sThr, hex(THRESH)), salu("s_mov_b32", sFlag, O_.force), salu("s_sub_u32", sQd, sStg, 98304))
    E(valu("v_and_b32", t0, 7, vi), valu("v_lshlrev_b32", t0, 1, t0), valu("v_xor_b32", t0, t0, vu), valu("v_lshlrev_b32", t0, 4, t0),
      valu("v_lshl_add_u32", t2, vi, 8, t0), valu("v_add_u32", qa[0], sStg, t2),
      valu("v_and_b32", t1, 3, vi), valu("v_lshl_add_u32", t0, t1, 8, t0),
      valu("v_lshrrev_b32", t1, 3, vi), valu("v_lshl_add_u32", t0, t1, 11, t0),
      valu("v_bfe_u32", t1, vi, 2, 1), valu("v_lshl_add_u32", kaddr[0], t1, 12, t0))
    for s in range(1, 4): E(valu("v_xor_b32", kaddr[s], s << 6, kaddr[0]), valu("v_xor_b32", qa[s], s << 6, qa[0]))
    E(valu("v_lshrrev_b32", t1, 2, vi), valu("v_and_b32", t2, 1, vu), valu("v_lshl_add_u32", t0, t2, 2, t1),
      valu("v_lshlrev_b32", t0, 5, t0), valu("v_lshl_add_u32", t0, t1, 8, t0), valu("v_lshl_add_u32", t0, t2, 12, t0),
      valu("v_lshrrev_b32", t2, 1, vu), valu("v_lshl_add_u32", t0, t2, 11, t0),
      valu("v_and_b32", t1, 3, vi), valu("v_lshl_add_u32", t0, t1, 3, t0), valu("v_add_u32", vaddr[0], 1024, t0))
    for t in range(1, 8): E(valu("v_xor_b32", vaddr[t], t << 5, vaddr[0]))
    E(valu("v_mov_b32", t2, "0x3f803f80"))
    for k in range(3):
        E(Inst(f"v_cmp_eq_u32 vcc, {k}, {vi}", "valu", rs(vi), {"vcc"}), nop(1), Inst(f"v_cndmask_b32 {t0}, 0, {t2}, vcc", "valu", rs(t2, "vcc"), rs(t0)),
          [valu("v_accvgpr_write_b32", sel(k)[r], t0) for r in range(4)])
    E(valu("v_lshrrev_b32", t0, 1, vi), valu("v_lshlrev_b32", t1, 1, vu), valu("v_sub_u32", t0, t0, t1),
      valu("v_and_b32", t1, 1, vi), valu("v_lshlrev_b32", t1, 4, t1))
    for k in range(2):
        E(Inst(f"v_cmp_eq_u32 vcc, {k}, {t0}", "valu", rs(t0), {"vcc"}))
        for j, c in enumerate((C_HI, C_LO)):
            E(valu("v_mov_b32", t2, hex(c)), valu("v_lshlrev_b32", t2, t1, t2), Inst(f"v_cndmask_b32 {t2}, 0, {t2}, vcc", "valu", rs(t2, "vcc"), rs(t2)),
              valu("v_accvgpr_write_b32", CS[2 + 4*j + k], t2))
    E([valu("v_accvgpr_write_b32", CS[k], 0) for k in (0, 1, 4, 5, 8, 9)])
    E(valu("v_lshlrev_b32", t0, 3, vl), valu("v_add_u32", ow, sStg, t0),
      valu("v_bfe_u32", t1, vi, 1, 1), valu("v_lshl_add_u32", t0, t1, 2, vu), valu("v_lshlrev_b32", t0, 9, t0),
      valu("v_and_b32", t1, 1, vi), valu("v_lshl_add_u32", t0, t1, 6, t0), valu("v_lshrrev_b32", t1, 2, vi),
      valu("v_lshl_add_u32", t0, t1, 3, t0), valu("v_add_u32", ovr, sStg, t0),
      valu("v_and_b32", t2, 3, vi), valu("v_lshlrev_b32", t0, 5, t2), valu("v_lshl_add_u32", t0, vu, 8, t0),
      valu("v_and_b32", t2, 1, t1), valu("v_lshl_add_u32", t0, t2, 4, t0), valu("v_lshrrev_b32", t2, 1, t1), valu("v_lshl_add_u32", vlin, t2, 7, t0))
    E(more(O_.n0 - 10), stamp_now())
    E(comment("---- first K tile"), wait(vm=[aK(0)]), barrier())
    for a in range(2):
        for s in range(4): E(kread(0, 0, a, s, F(4*a + s)))
    if O_.pads:
        E(comment("visit the start of each code page once (wave w: pages w+1, w+5, ..); every stop jumps straight on while vcc = 0"),
          raw("s_mov_b64 vcc, 0"))
        for w in range(3): E(scmp("s_cmp_eq_u32", sW, w), raw(f"s_cbranch_scc1 L_pad{w + 1}", "salu", {"scc"}))
        E(raw("s_branch L_pad4"), [raw(".p2align 12", "label"), label("L_main")] if O_.pads == 1 else None, label("L_padret"), raw("s_mov_b64 vcc, -1"))
    rawr = lambda s: V(72 + 4*s, 4)
    for b in range(NB):
        E(comment(f"---- start-up block {b}"), wait(vm=blk(aQ, 0, b)), stamp_now() if O_.probe == 2 else None)
        if O_.mq0:
            for s in range(4): E(ds_read("ds_read_b128", Qreg(b, s), qa[s], b*4096, blk(aQ, 0, b)))
            E(more(2), wait(lgkm=[Qreg(b, 0)] + ([F(k) for k in range(8)] if b == 0 else [])))
            pms = [pm(4*b + n) for n in range(4)]
            sc = Sched([m for mf, _ in pms for m in mf])
            sc.put(2, wait(lgkm=0))
            for n in range(3):
                for j, v in enumerate(pms[n][1]): sc.put(4*(n + 1) + j//2, v)
            sc.emit(); E(more(2), pms[3][1])
        else:
            for s in range(4): E(ds_read("ds_read_b128", rawr(s), qa[s], b*4096, blk(aQ, 0, b)))
            for s in range(4):
                E(wait(lgkm=[rawr(s)] + ([F(k) for k in range(8)] if b == 0 else [])))
                E(more(1), scale_frag(rawr(s), Qreg(b, s), V(88, 8), Sreg(b, s & 1)))
        qk = qk_first(b)
        if b < NB - 1: E(qk, rowmax_ops(b), delay_cvts(sm_ops(0, b, 0) + sm_ops(0, b, 1)))
    assert more.left() == 0
    E(qk[:4], wait(vm=[aK(1)]), barrier())
    for s in range(4): E(qk[4 + s], kread(0, 1, 0, s, F(s)))
    E(salu("s_mov_b32", sSide, 98304), salu("s_mov_b32", sCnt, 1), rowmax_ops(NB - 1)[0][:4], wait(lgkm=[F(s) for s in range(4)]), stamp_now())

def o_read(key, p, dst):
    return [ds_read("ds_read_b64_tr_b16", dst[2*hi:2*hi + 2], ovr, (p >> 2)*4096 + (p & 3)*128 + hi*32, key) for hi in range(2)]
def pv_mfmas(par, frags, sums_first=False, init=False):
    mf = [rowsum(par, b) for b in range(NB)] if sums_first else []; st = []
    for h in range(4):
        st.append(len(mf))
        sums = [] if sums_first else [(0, 1), (5, 4), (2,), (3,)][h]
        mf += [m for _, m in pv_pair(par, range(NB) if h % 2 == 0 else range(NB - 1, -1, -1), 2*h, frags[2*h:2*h + 2], init, sums)]
    return mf, st
def late_pieces(k):
    cnt = [int(c, 16) for c in O_.olate]; ne = sum(map(int, O_.osched)); assert sum(cnt) == 24 - ne and sum(cnt[:4]) >= 12
    return (list(range(12, 24)) + list(range(ne, 12)))[sum(cnt[:k]):sum(cnt[:k + 1])]
def kv_plan(J):
    if J >= 16: return [(3, 27)] if J < 28 else []
    o = []
    for k, lead in enumerate(int(x) for x in O_.lead0.split(",")):
        Jk, g = divmod(102*(k + 1) + 23 - lead, 102)
        assert 2 <= g <= 82
        if Jk == J: o.append((k + 1 - J, g))
    return o
END_ORDER = (2, 3, 4, 5, 0, 1)
NPRE = 2
VF15 = [Qreg(4 + t//4, t % 4) for t in range(8)]

def iteration(J, ctl=()):
    par = J & 1; j = J % 16
    mf = [m for a in range(2) for b in range(NB) for _, m in chain(b, a, [F(4*a + s) for s in range(4)], negM(b), b & 1)]
    pv, pst = pv_mfmas(par, [F(t) for t in range(8)], init=(j == 0))
    mf += pv; pst = [48 + x for x in pst]
    sc = Sched(mf)
    for x in ctl: sc.fix(x, 101)
    if ctl: sc.cap[101] = 0
    for s in range(4): sc.fix(kread(J, 1, 1, s, F(4 + s)), [1, 6, 11, 13][s])
    tb2 = None
    if J == 0:
        sc.fix(wait(vm=[rV(0)], lgkm=0), 23); tb = sc.fix(barrier(), 23)
        sc.fix(wait(vm=[rK(2)]), 72); tb2 = sc.fix(barrier(), 72)
    else:
        sc.fix(wait(vm=[rV(0), rK(2)], lgkm=0), 23); tb = sc.fix(barrier(), 23)
    if J == 0 or (J == 16 and O_.tight):
        b = NB - 1; t = sc.seq(rowmax_ops(b)[0][4:], 0, 8, hard=0)
        sub = [sc.add(valu("v_add_f32", V(8*b + r), V(8*b + r), negM(b)[1]), 0, 10 if r < 4 else 22, [(t, 0, 0)]) for r in range(8)]
        sc.run()
    plan = kv_plan(J); busy = []
    for n_, (d, g0) in enumerate(plan):
        ops = kv_group(J, d); g = g0
        while sc.cap[g - 2] < 4: g += 1
        sc.fix(ops[0], g - 2)
        for x in ops[1:5]:
            while sc.cap[g] < 8 or sc.cap[g - 1] == 0 or sc.cap[g + 1] == 0 or any(y.kind in VAL for y in sc.g[g - 1]): g += 1
            td = sc.fix(x, g); g += O_.dsp
        busy.append((g0 - 3, td.gap + 1))
        sc.add(ops[5], 0, 100 if n_ + 1 == len(plan) else plan[n_ + 1][1] - 1, [(td, 1, 1)])
    nq = int(O_.qs[J]) if J < 15 else 0
    if nq:
        p0 = sum(map(int, O_.qs[:J])); g0 = max([50] + [hi + 6 for lo, hi in busy if lo < 50])
        assert all(hi < g0 - 2 or lo > g0 + 12*(nq - 1) for lo, hi in busy)
        sc.fix(salu("s_add_u32", "m0", sSide, sQd), g0 - 2)
        for k in range(nq):
            t = sc.fix(dma(vsd1 if (p0 + k) & 1 else vsd0, sQ, sSide, k*1024, (lambda k: lambda c: aQ(1, sum(map(int, O_.qs[:c["J"]])) + k))(k), O_.fq), g0 + 12*k)
        sc.add(salu("s_add_u32", sSide, sSide, 1024*nq), 0, 99, [(t, 1, 1)])
    if J in (27, 28):
        ps = late_pieces(J - 27); g0 = [O_.g11, O_.g12][J - 27]
        base = t = None
        for i, p in enumerate(ps):
            g = g0 + (96 - g0)*i//max(1, len(ps) - 1)
            while g in (22, 23, 24) or sc.cap[g] < 8 or sc.cap[g - 1] == 0 or sc.cap[g + 1] == 0: g += 1
            t = sc.seq(o_read(aO(0, p), p, X[i]), 0, g - 8, t); sc.add(wait(lgkm=[X[i]]), 0, g - 1, [(t, 1, 6)])
            if base is None or not 0 <= p - base < 4: base = p; sc.fix(salu("s_mov_b32", sSide, p*1024), g - 1)
            sc.fix(vstore(X[i], vlin, sO, sSide, (p - base)*1024, O_.late_flags), g)
    p = tb
    for t in range(8):
        for a in range(2): p = sc.add(vread(J, 0, t, a, F(t)), 24 if t < 4 else 48, None, [(p, 1, 1)])
        if t in (1, 3): sc.add(wait(lgkm=[F(t - 1), F(t)]), 0, pst[t//2] - 1, [(p, 1, 8)])
    sc.add(wait(lgkm=[F(4), F(5), F(6), F(7)]), 0, pst[2] - 1, [(p, 1, 8)])
    for s in range(4): p = sc.add(kread(J, 2, 0, s, F(s)), pst[2], None if J != 14 else 90, [(p, 1, 1), (tb2, 1, 1)])
    if J == 28:
        pre = late_pieces(2)[:NPRE]
        p = sc.seq([x for i, q in enumerate(pre) for x in o_read(aO(0, q), q, X[i])], 60, None, p)
    if J != 14: sc.add(wait(lgkm=[F(s) for s in range(4)] + (X[:NPRE] if J == 28 else [])), 0, 101 if J == 28 else 100, [(p, 1, 8 if J != 28 else 5)])
    else:
        sc.fix(wait(vm=[rV(1), rK(3)] + blk(aQ, 1, 0)), 92); t = sc.fix(barrier(), 92)
        for k in range(4): sc.fix(vread(J, 1, k//2, k & 1, VF15[k//2]), 93 + 2*k)
    nxt = lambda ne: [x for _, x in sm_split(1 - par, ne, END_ORDER if J == 28 else range(NB))[0]]
    if J == 0:
        b = NB - 1
        sc.sm([(sm_ops(0, b, 0), sub[3].gap + 1, 19), (sm_ops(0, b, 1), sub[7].gap + 1, 43), (nxt(NE_A), 24, 100)])
    elif J == 16 and O_.tight:
        tail = sm_split(0, O_.ne1)[1]; b = NB - 1
        sc.sm([(sm_ops(0, b, 0), sub[3].gap + 1, 19)] + [([x for bb, x in tail if bb == k], sub[7].gap + 1, 23 + 4*k) for k in range(NB) if any(bb == k for bb, _ in tail)]
              + [(nxt(NE_A), 24, 100)])
    elif J == 16:
        tail = sm_split(0, O_.ne1)[1]
        sc.sm([([x for bb, x in tail if bb == b], 0, 23 + 4*b) for b in range(NB) if any(bb == b for bb, _ in tail)] + [(nxt(NE_A), 24, 100)])
    elif J == 14:
        sc.sm([([x for _, x in sm_split(par)[1]], 0, 30)] + [(sm_ops(1, b, a), 24*a + 4*b + 8, 101) for a in range(2) for b in range(NB)])
    else:
        sc.sm([([x for _, x in sm_split(par)[1]], 0, 30)], 2.4)
        sc.sm([(nxt(NE_A), 24, 100)])
    sc.run(); sc.emit()

def straight(J, *pre):
    s = seg(f"J{J}"); path.append((s, {"J": J})); E(comment(f"---- head {J//16}, key tile {J % 16}"), pre); iteration(J)
def loop4(name, J0, passes):
    ss = []
    for k in range(4):
        ss.append(seg(f"{name}{k}"))
        if k == 0: E(raw(".p2align 3", "label"), label(f"L_{name}"))
        d = salu("s_sub_u32", sCnt, sCnt, 1); d.m["last"] = True
        iteration(J0 + k, [d, raw(f"s_cbranch_scc0 L_{name}", "salu", {"scc"}, (), last=True)] if k == 3 else [])
        for n in range(1, passes): assert kv_plan(J0 + k) == kv_plan(J0 + k + 4*n) and (J0 > 15 or O_.qs[J0 + k] == O_.qs[J0 + k + 4*n])
    assert J0 > 15 or sum(map(int, O_.qs[J0:J0 + 4])) % 2 == 0
    for n in range(4*passes): path.append((ss[n % 4], {"J": J0 + n}))

def l_ops(h, b0, r, t1):
    o = [valu("v_accvgpr_read_b32", r[k], lacc(b0)[k]) for k in range(4)]
    o += [valu("v_add_f32", t1, r[0], r[1]), valu("v_add_f32", t1, t1, r[2]), valu("v_add_f32", t1, t1, r[3])]
    o += [valu("v_rcp_f32", r[k], r[k]) for k in range(4)]
    return o
def l_flag(h, t1):
    return [Inst(f"v_cmp_nlt_f32 {sCmp}, {t1}, {sThr}", "valu", rs(t1, sThr), rs(sCmp)), nop(0),
            scmp("s_cmp_lg_u64", sCmp, 0), salu("s_cselect_b32", sT0, 1 << h, 0), salu("s_or_b32", sFlag, sFlag, sT0)]
def l_bcast(b, r, dst):
    o = [valu("v_mov_b64_dpp", dst[2*k:2*k + 2], r[2*k:2*k + 2], mods=f"row_newbcast:{b % 3} row_mask:0xf bank_mask:0xf") for k in range(2)]
    for x in o: x.m["dpp"] = True
    return o
def epi_half(h, b, th, rl, tmp, y):
    r0 = Oreg(b, 4*th); w = V(r0.i, 16) if r0.k == "v" else tmp; o = []
    if r0.k == "a": o += [valu("v_accvgpr_read_b32", w[i], A(r0.i + i)) for i in range(16)]
    o += [valu("v_pk_mul_f32", w[2*i:2*i + 2], w[2*i:2*i + 2], rl[2*(i & 1):2*(i & 1) + 2]) for i in range(8)]
    o += [valu("v_cvt_pk_bf16_f32", y[2*r + k], w[8*k + r], w[8*k + 4 + r]) for r in range(4) for k in range(2)]
    o += [ds_write2st64(ow, y[4*k:4*k + 2], y[4*k + 2:4*k + 4], 8*b + 4*th + 2*k, 8*b + 4*th + 2*k + 1, blk(aO, h, b)) for k in range(2)]
    return o

def transition():
    s = seg("trans"); path.append((s, {"J": 15}))
    E(stamp_now(), comment("---- head 0: last PV; switch to head 1"))
    vf = VF15
    NSH = 1
    def rawr(b, n): return V(16 + 4*n, 4) if 4*b + n < NSH else Qreg(b, n)
    def qrd(b): return [ds_read("ds_read_b128", rawr(b, n), qa[n], b*4096, blk(aQ, 1, b)) for n in range(4)]
    rc = [negM(4), negM(5)]
    rl = V(72, 4); y = V(76, 8)
    npre = sum(map(int, O_.qs)); assert npre >= 8
    more = piecemeal([[x for k, x in enumerate(q_dma_block(1, b)) if k < 2 or 4*b + k - 2 >= npre] for b in range(npre//4, NB)]
                     + [kv_group(15, d) for d in (1, 2, 3)])
    vr = [vread(15, 0, t, a, vf[t]) for t in range(8) for a in range(2)]
    pv, pst = pv_mfmas(1, vf, True)
    sc = Sched(pv)
    g = 8
    for grp in more(O_.tq):
        for i, x in enumerate(grp):
            if x.kind not in MEM: sc.fix(x, g - 3 if len(grp) - i > 3 else g - 2)
            else: sc.fix(x, g); g += O_.tstep
    sc.add(wait(lgkm=vf[:2]), 4, pst[0] - 1)
    q0 = qrd(0)
    p = sc.seq(q0[:NSH], 0); wq = sc.add(wait(lgkm=[rawr(0, NSH - 1)]), 0, 10, [(p, 1, 6)])
    p = sc.seq(vr[4:8], 0, None, p); sc.add(wait(lgkm=vf[2:4]), 0, pst[1] - 1, [(p, 1, 6)])
    p = sc.seq(vr[8:], 0, None, p); sc.add(wait(lgkm=vf[4:]), 0, pst[2] - 1, [(p, 1, 6)])
    p = sc.seq([kread(15, 1, 1, k, F(4 + k)) for k in range(4)] + q0[NSH:] + [wait(vm=blk(aQ, 1, 1))] + qrd(1), 24, 46, p)
    sc.fix(wait(lgkm=0), 53); sc.fix(barrier(), 53)
    sc.run()
    lv = l_ops(0, 0, rc[0], V(60)) + l_ops(0, 3, rc[1], V(61)) + [valu("v_add_f32", V(60), V(60), V(61))]; ls = l_flag(0, V(60))
    st = []
    for n in range(NSH): st += scale_frag(rawr(0, n), Qreg(0, n), V(0, 8), V(8 + 4*(n & 1), 4), pk=False)
    rest = sc.pour((lv, 10), (st, wq.gap + 1)); sc.emit(); E(rest); rest = []
    def site(k):
        c = [int(x) for x in O_.osched] + [0]; p0 = sum(c[:k]); o = more(int(O_.tsched[k]) if O_.tsched else O_.tper)
        if c[k]:
            o += [salu("s_mov_b32", sT1, p0*1024), wait(lgkm=[X[(p0 + i) % 4] for i in range(c[k])])]
            o += [vstore(X[(p0 + i) % 4], vlin, sO, sT1, i*1024, O_.late_flags) for i in range(c[k])]
        p1 = p0 + c[k]; assert (p1 + c[k + 1] + 3)//4 <= (k + 1)//2 or not c[k + 1]
        return o + [o_read(aO(0, p), p, X[p % 4]) for p in range(p1, p1 + c[k + 1])]
    first = sm_split(0, O_.ne1)[0]
    def finish(b): return rowmax_ops(b)[1] + delay_cvts([x for bb, x in first if bb == b])
    for b in range(NB):
        E(comment(f"---- switch block {b}"), stamp_now() if O_.probe == 1 else None)
        fs = range(max(NSH, 4*b + 1), min(4*b + 5, 4*NB))
        mf = []; fl = []
        for f in fs:
            m, x = pm(f); mf += m; fl.append(x)
        qk = qk_first(b)
        if b == NB - 1: qk = [qk[k] for k in (0, 1, 2)] + [m for _, m in chain(b, 1, [F(4 + s_) for s_ in range(4)], 0, False)][:3] + [qk[3]]; \
                        qk.append(mfma(Sreg(b, 1), F(7), Qreg(b, 3), Sreg(b, 1)))
        sc = Sched(mf + qk)
        for k, x in enumerate(fl):
            for j, v in enumerate(x): sc.put(4*(k + 1) + j//2, v)
        h0, h1 = epi_half(0, b, 0, rl, V(176, 16), y), epi_half(0, b, 1, rl, V(192, 16), y)
        if O_.tight:
            assert npre == 24
            for bb, g0 in {0: [(2, 0), (3, len(mf) + 4)], 1: [(4, 0)], 2: [(5, 0)]}.get(b, []):
                if bb != 3: E(wait(vm=blk(aQ, 1, max(bb, 3))))
                for n, x in enumerate(qrd(bb)): sc.put(g0 + n, x)
            if 1 <= b < NB - 1: E(wait(lgkm=[Qreg(b + 1, n) for n in range(4)]))
            acc = [x for x in h0 + h1 if x.m.get("op") == "v_accvgpr_read_b32"]
            mx = rowmax_ops(b - 1)[0] if b else ls[:1]
            left = sc.pour((mx, 0), (acc, 0)); sc.emit()
            E([x for x in left if x not in acc], ls[2:] if b == 0 else None)
            h0, h1 = [[x for x in h if x not in acc or x in left] for h in (h0, h1)]
        else:
            if 1 <= b < NB - 1:
                sc.put(0, wait(vm=blk(aQ, 1, b + 1)))
                for n, x in enumerate(qrd(b + 1)): sc.put(1 + n, x)
                sc.put(11, wait(lgkm=[Qreg(b + 1, n) for n in range(4)]))
            rest = sc.pour((rowmax_ops(b - 1)[0] if b else rest, 0)); sc.emit(); E(rest, ls if b == 0 else None)
        if b == NB - 1: E([kread(15, 2, 0, s_, F(s_)) for s_ in range(4)])
        E(l_bcast(b, rc[b//3], rl), h0, site(2*b), finish(b - 1) if b else None, h1, site(2*b + 1))
    assert more.left() == 0
    E(rowmax_ops(NB - 1)[0][:4] if O_.tight else [rowmax_ops(NB - 1)[0], finish(NB - 1)])
    E(salu("s_mov_b32", sCnt, 1), wait(lgkm=[F(s_) for s_ in range(4)]), stamp_now())

def endgame():
    s = seg("end"); path.append((s, {"J": 29}))
    E(stamp_now())
    carry = []
    for ps, H in enumerate(([3, 4, 5], [0, 1, 2])):
        E(comment(f"---- pass {ps}"))
        subs = [("Q", 1, 0), ("Q", 1, 1), ("P", 0, 0), ("P", 0, 1), ("Q", 2, 0), ("Q", 2, 1), ("P", 1, 0), ("P", 1, 1), ("P", 2, 0), ("P", 2, 1)]
        FA, FB = [F(k) for k in range(4)], [F(4 + k) for k in range(4)]
        G = [[Qreg(3 + n, k) for k in range(4)] for n in range(3)]; Hh = [[A(176 + 16*n + 4*k, 4) for k in range(4)] for n in range(5)]
        fr = [FA, FB, FA, FB, FA, FB, FA] + G if ps == 0 else [FA, FB] + Hh + G
        mf = []; use = []; cend = {}; cstart = {}; pstart = {}; bstart = {}
        for i, (kind, d, x) in enumerate(subs):
            u = {}
            if kind == "Q":
                for n, b in enumerate(H):
                    cstart[(d, b, x)] = len(mf)
                    for s_, m in chain(b, x, fr[i], negM(b), n & 1): u.setdefault(s_, []).append(len(mf)); mf.append(m)
                    cend[(d, b, x)] = len(mf) - 1
            elif d == 2:
                if x == 0:
                    u2 = {}
                    for n, b in enumerate(H):
                        bstart[b] = len(mf); mf.append(rowsum(1, b))
                        for t in range(8):
                            (u if t < 4 else u2).setdefault(t & 3, []).append(len(mf))
                            mf.append(mfma(Oreg(b, t), Preg(1, b), fr[i + (t >> 2)][t & 3], Oreg(b, t)))
                else: u = u2
            else:
                par = (d + 1) & 1
                if x == 0: pstart[d] = len(mf)
                for hh in range(2):
                    for t, m in pv_pair(par, H if hh == 0 else H[::-1], 4*x + 2*hh, fr[i][2*hh:2*hh + 2], False, H[2*x + hh:2*x + hh + 1]):
                        if t is not None: u.setdefault(t & 3, []).append(len(mf))
                        mf.append(m)
            use.append(u)
        sc = Sched(mf); bar = {}
        if ps == 0:
            for d, g, keys in ((0, 9, [rV(0), rK(2)]), (1, use[4][1][-1], [rV(1), rV(2)])):
                sc.fix(wait(vm=keys), g)
                bar[d] = bar[2] = sc.fix(barrier(), g)
        pcs = [(0, q) for q in late_pieces(2) + late_pieces(3)] if ps == 0 else [(0, q) for q in late_pieces(4)] + carry
        taken = {t.gap + k for t in bar.values() for k in (-1, 0, 1)}
        NX = 7; prev_st = [None]*NX; pst = None; base = None
        for i, (h, q) in enumerate(pcs):
            g = O_.p0g + (len(mf) - 4 - O_.p0g)*i//max(1, len(pcs) - 1) if ps == 0 else int(O_.p1g + (len(mf) - 3 - O_.p1g)*(i/(len(pcs) - 1))**O_.p1e)
            while g in taken or g - 1 in taken: g += 1
            off = h*98304 + q*1024; xr = X[i % NX]
            if base is None or not 0 <= off - base < 4096:
                base = off; sc.add(salu("s_mov_b32", sSide, base), 0, g - 1, [(pst, 1, 1)])
            if ps or i >= NPRE:
                r = sc.seq(o_read(aO(h, q), q, xr), g - 60, g - 8, prev_st[i % NX])
                sc.add(wait(lgkm=[xr]), 0, g - 1, [(r, 1, 7)])
            pst = prev_st[i % NX] = sc.fix(vstore(xr, vlin, sO, sSide, off - base, O_.h0_flags if h else O_.late_flags), g)
        prev = None
        for i, (kind, d, x) in enumerate(subs):
            if i == 0 or (ps == 1 and (i == 1 or i >= 7)): continue
            tight = ps == 0 and i < 7
            for k in range(4):
                lo = (use[i - 2][k][-1] if i >= 2 else 0) if tight else (cend[(2, 3 + i - 7, 1)] if ps == 0 else 0)
                rds = [kread(29, d, x, k, fr[i][k])] if kind == "Q" else [vread(29, d, 4*x + k, a, fr[i][k]) for a in range(2)]
                bp = bar.get(d if kind == "P" else (0 if d == 2 else None))
                for r in rds: prev = sc.add(r, lo, None, [(prev, 1, 1), (bp, 1, 1)])
                if tight and kind == "P" and k & 1: sc.add(wait(lgkm=fr[i][k - 1:k + 1]), 0, min(use[i][k - 1][0], use[i][k][0]) - 1, [(prev, 1, 6)])
            if not (tight and kind == "P"): sc.add(wait(lgkm=fr[i]), 0, use[i][0][0] - 1, [(prev, 1, 6)])
        if ps == 0:
            for a in range(2):
                for k in range(4): prev = sc.add(kread(29, 1, a, k, F(4*a + k)), use[6][k][-1], None, [(prev, 1, 1)])
        grp = [([x for bb, x in sm_split(1, NE_A, END_ORDER)[1] if bb == b], 0, cstart[(1, b, 1)] - 1) for b in H if b >= O_.tl0]
        for a in range(2):
            for k, b in enumerate(H): grp.append((sm_ops(0, b, a), cend[(1, b, a)] + 4, min(pstart[1] - 2 + 2*k, cstart[(2, b, a)] - 1)))
        sc.sm(grp)
        order = [(H[0], 0), (H[1], 0), (H[0], 1), (H[2], 0), (H[1], 1), (H[2], 1)]
        sc.sm([(sm_ops(1, b, a), cend[(2, b, a)] + 4, bstart[b] - 2) for b, a in order]
              + ([(sm_ops(1, b, 1), 100, len(mf) - 1) for b in range(O_.tl0)] if ps == 0 else []), 2.4)
        sc.run()
        rc, rl, t1 = negM(H[0]), negM(H[1]), negM(H[2])[0]
        rest = sc.pour((l_ops(1, H[0], rc, t1), bstart[H[2]] + 4)); sc.emit()
        E(rest, l_flag(1, t1), stamp_now(), comment("---- epilogue"))
        dsts = [X[:4], [F(4 + i) for i in range(4)]]
        pend = []
        for k, b in enumerate(H):
            E(l_bcast(b, rc, rl))
            for th in range(2):
                ep = epi_half(1, b, th, rl, V(24, 16), V(40, 8))
                E(ep)
                E(pend[:2]); del pend[:2]
            if ps == 0 and k > 0: carry += [(1, 4*b + i) for i in range(4)]; continue
            d_ = dsts[k & 1]
            E([o_read(aO(1, 4*b + i), 4*b + i, d_[i]) for i in range(4)])
            sts = [vstore(d_[i], vlin, sO, sSide, i*1024, O_.fin_flags if ps else O_.h0_flags) for i in range(4)]
            pre = [salu("s_mov_b32", sSide, 98304 + b*4096), wait(lgkm=d_)]
            pend = [pre + [sts[0]], None, sts[1], None, sts[2], None, sts[3]] if ps == 0 else [pre + [sts[0]], sts[1], sts[2], sts[3]]
        E(pend, wait(lgkm=0), stamp_now())

def slow_path():
    sH, sB, sI, sKo, sQo = S(4), S(5), S(6), S(7), S(8)
    Qf = [V(4*s, 4) for s in range(4)]; Kf = [V(16 + 4*i, 4) for i in range(8)]; St = [V(48, 4), V(52, 4)]; Pf = V(56, 4)
    nm = V(60, 4); Vf = V(64, 4); Of = [V(68 + 4*t, 4) for t in range(8)]; L = V(100, 4); w = V(104, 8)
    ones = V(120, 4)
    vrow, vk, vv, vtr, vst_, t0, t1 = V(112), V(113), V(114), V(115), V(116), V(117), V(118)
    def S_(name, J=0):
        s = seg(name); return s
    s0 = S_("slow0")
    E(comment("---- fallback: a row sum left the safe range, redo this wave's rows with the true row max"),
      label("L_slow"), wait(vm=0, lgkm=0),
      valu("v_mbcnt_lo_u32_b32", t0, -1, 0), valu("v_mbcnt_hi_u32_b32", t0, -1, t0), valu("v_lshlrev_b32", vlin, 4, t0),
      [valu("v_mov_b32", ones[r], "0x3f803f80") for r in range(4)],
      valu("v_bfe_u32", t0, vlin, 4, 4), valu("v_lshrrev_b32", t1, 8, vlin),
      valu("v_lshlrev_b32", vrow, 8, t0), valu("v_lshl_add_u32", vst_, t1, 3, vrow), valu("v_lshl_add_u32", vrow, t1, 4, vrow),
      valu("v_lshrrev_b32", vtr, 2, t0), valu("v_lshl_add_u32", vtr, t1, 2, vtr), valu("v_lshlrev_b32", vtr, 8, vtr),
      valu("v_and_b32", t0, 3, t0), valu("v_lshl_add_u32", vtr, t0, 3, vtr), valu("v_add_u32", vtr, sStg, vtr),
      salu("s_mov_b32", sH, 0))
    s1 = S_("slow_head")
    E(label("L_sl_head"), salu("s_lshr_b32", sT0, sFlag, sH), salu("s_and_b32", sT0, sT0, 1), raw("s_cbranch_scc0 L_sl_next", "salu", {"scc"}),
      salu("s_lshl_b32", sKo, sH, 17), salu("s_mul_i32", sQo, sH, 98304), salu("s_mov_b32", sB, 0))
    s2 = S_("slow_blk")
    E(label("L_sl_blk"))
    for s in range(4): E(vload(Kf[s], vrow, sQ, sQo, 64*s))
    E(wait(vm=0))
    for s in range(4): E(scale_frag(Kf[s], Qf[s], w, None))
    E(valu("v_mov_b32", nm[0], "0xff800000"), valu("v_add_u32", vk, sKo, vrow), salu("s_mov_b32", sI, 32))
    s3 = S_("slow_p1")
    E(label("L_sl_p1"))
    for s in range(4): E(gload(Kf[s], vk, sKb, 64*s))
    E(valu("v_add_u32", vk, 4096, vk), wait(vm=0))
    for s in range(4): E(mfma(St[0], Kf[s], Qf[s], 0 if s == 0 else St[0]))
    E(salu("s_sub_u32", sI, sI, 1), scmp("s_cmp_lg_u32", sI, 0), nop(7),
      valu("v_max3_f32", nm[0], nm[0], St[0][0], St[0][1]), valu("v_max3_f32", nm[0], nm[0], St[0][2], St[0][3]),
      raw("s_cbranch_scc1 L_sl_p1", "salu", {"scc"}))
    s4 = S_("slow_mid")
    E(xlane_max(nm[0], nm[1]), [valu("v_sub_f32", nm[r], 0, nm[0]) for r in (1, 2, 3, 0)])
    for r in range(36): E(valu("v_mov_b32", V(68 + r), 0))
    E(valu("v_add_u32", vk, sKo, vrow), valu("v_add_u32", vv, sKo, vlin), valu("v_add_u32", vv, 1024 + 16384, vv), salu("s_mov_b32", sI, 16))
    s5 = S_("slow_p2")
    E(label("L_sl_p2"))
    key = (("stg", "slow"), ("Vs",), False)
    for half in range(2):
        E(salu("s_add_u32", "m0", sStg, 4096*half))
        for s in range(4): E(gload(Kf[4*half + s], vk, sKb, 64*s))
        for k in range(4): E(gdma(vv, sVb, 1024*k, key, ""))
        E(valu("v_add_u32", vk, 4096, vk), valu("v_add_u32", vv, 4096, vv))
    E(wait(vm=0))
    for a in range(2):
        for s in range(4): E(mfma(St[a], Kf[4*a + s], Qf[s], nm if s == 0 else St[a]))
    E(nop(7))
    for r in range(8): E(valu("v_exp_f32", V(48 + r), V(48 + r)))
    for r in range(4): E(valu("v_cvt_pk_bf16_f32", Pf[r], V(48 + 2*r), V(49 + 2*r)))
    E(mfma(L, ones, Pf, L))
    for t in range(8):
        for a in range(2): E(ds_read("ds_read_b64_tr_b16", Vf[2*a:2*a + 2], vtr, a*4096 + 32*t, key))
        E(wait(lgkm=0), mfma(Of[t], Vf, Pf, Of[t]), nop(1))
    E(salu("s_sub_u32", sI, sI, 1), scmp("s_cmp_lg_u32", sI, 0), raw("s_cbranch_scc1 L_sl_p2", "salu", {"scc"}))
    s6 = S_("slow_epi")
    E(nop(7), valu("v_rcp_f32", t0, L[0]), nop(0))
    for t in range(8):
        for r in range(4): E(valu("v_mul_f32", Of[t][r], t0, Of[t][r]))
        E(valu("v_cvt_pk_bf16_f32", Of[t][0], Of[t][0], Of[t][1]), valu("v_cvt_pk_bf16_f32", Of[t][1], Of[t][2], Of[t][3]),
          vstore(Of[t][0:2], vst_, sO, sQo, 32*t, "", "buffer_store_dwordx2"))
    E(salu("s_add_u32", sQo, sQo, 4096), salu("s_add_u32", sB, sB, 1), scmp("s_cmp_lt_u32", sB, NB), raw("s_cbranch_scc1 L_sl_blk", "salu", {"scc"}))
    s7 = S_("slow_next")
    E(label("L_sl_next"), salu("s_add_u32", sH, sH, 1), scmp("s_cmp_lt_u32", sH, 2), raw("s_cbranch_scc1 L_sl_head", "salu", {"scc"}))
    blkp = [s2, s3, s3, s4, s5, s5, s6]
    path2.extend((x, {"J": 0}) for x in [s0, s1] + blkp + blkp + [s7, s1] + blkp + [s7])

def finish():
    if O_.diag:
        a, b = [int(x) for x in O_.diag.split(":")]
        E(wait(vm=0), raw("s_memrealtime s[42:43]", "smem", (), rs(S(42, 2))), wait(lgkm=0), salu("s_mov_b32", S(47), S(42)),
          salu("s_sub_u32", sT0, S(STAMP0 + b), S(STAMP0 + a)), salu("s_lshr_b32", sT0, sT0, 3 if O_.stamps == 1 else 0),
          salu("s_add_u32", sT0, sT0, 7000),
          label("L_spin"), raw("s_memrealtime s[42:43]", "smem", (), rs(S(42, 2))), wait(lgkm=0),
          salu("s_sub_u32", S(42), S(42), S(46)), scmp("s_cmp_lt_u32", S(42), sT0), raw("s_cbranch_scc1 L_spin", "salu", {"scc"}))
    elif O_.stamps:
        E(wait(vm=0), raw("s_memrealtime s[42:43]", "smem", (), rs(S(42, 2))), wait(lgkm=0), salu("s_mov_b32", S(47), S(42)))
        E(salu("s_lshl_b32", sT0, S(2), 2), salu("s_add_u32", sT0, sT0, sW), salu("s_lshl_b32", sT0, sT0, 8))
        E(valu("v_mov_b32", V(1), sT0))
        for k in range(nstamp[0] + 2):
            E(valu("v_mov_b32", V(2), S(46 + k)),
              Inst(f"global_store_dword v1, v2, s[44:45] offset:{4*k}", "vst", rs(V(1), V(2), S(44, 2)), (), data=set()), nop(1))
    if O_.stamps and not O_.diag:
        E(raw("s_getreg_b32 s42, hwreg(HW_REG_XCC_ID)", "salu", (), rs(S(42))), valu("v_mov_b32", V(1), sT0), valu("v_mov_b32", V(2), S(42)),
          Inst("global_store_dword v1, v2, s[44:45] offset:252", "vst", rs(V(1), V(2), S(44, 2)), (), data=set()))
    E(scmp("s_cmp_eq_u32", sFlag, 0), raw("s_cbranch_scc1 L_end", "salu", {"scc"}), label("L_fast_end"))

def build():
    s = seg("start"); path.append((s, {"J": 0})); startup()
    for J in range(4): straight(J)
    if O_.probe == 4: E(stamp_now())
    loop4("A", 4, 2)
    for J in range(12, 15): straight(J)
    transition()
    straight(16)
    loop4("M", 17, 2)
    for J in range(25, 29): straight(J, stamp_now() if J == 28 or (J == 26 and O_.probe == 4) else None)
    endgame()
    finish()
    if O_.slow: slow_path()
    seg("exit"); E(label("L_end"))
    def trace(): return [(i, mkctx(c)) for sidx, c in path + path2 for i in segs[sidx][1]]
    for rnd in range(5):
        fix = {}
        resolve_and_check(trace(), fix=fix)
        for sg in segs:
            new = []
            for i in sg[1]:
                if i.kind == "wait" and i.m["nvm"] in (None, 63) and i.m["nlg"] in (None, 15): fix[0] = 1; continue
                if id(i) in fix: new.append(nop(fix[id(i)] - 1))
                new.append(i)
            sg[1][:] = new
        if not fix: break
    resolve_and_check(trace(), verbose=True)
    if O_.stamps:
        tr = [i for sidx, c in path for i in segs[sidx][1]]; cuts = [k for k, i in enumerate(tr) if i.kind == "smem" and "s[42:43]" in i.text]
        print("  est between stamps:", [cost_estimate(tr[a:b]) for a, b in zip(cuts, cuts[1:])])
    for name, ins in segs:
        if not name.startswith("slow"): print(f"  seg {name:8s} insts {len(ins):5d} est cycles {cost_estimate(ins):6d} nops {sum(1 for i in ins if i.kind == 'nop')}")

HEAD = """; MHA forward, B=16 H=32 Sq=384 Sk=512 D=128, bf16 in/out.  Written with the author's own generator script.
; K/V stream exactly once through a 4-slot LDS ring (LDS-DMA, one barrier per tile); Q and O pass through a per-wave
; staging area (O is transposed there so that whole 128-byte lines are stored).
; Softmax: Q is pre-scaled by log2(e)/sqrt(D).  Each row's max over its first 32 keys is subtracted through the MFMA
; C operand (so every row sum is >= 1, nothing can underflow); the row sums come from an MFMA against a ones column.
; Guard: a row sum that is NaN or >= 2^64 flags the wave, which then redoes its rows with the true row max (L_slow).
; @launch grid=(256,1,1) block=(256,1,1) lds=163840
.amdgcn_target "amdgcn-amd-amdhsa--gfx950"
.text
.globl standalone__mha_softmax__near_ridge_kernel
.p2align 8
.type standalone__mha_softmax__near_ridge_kernel,@function
standalone__mha_softmax__near_ridge_kernel:
"""
TAIL = """    s_endpgm
.section .rodata,"a"
.p2align 6
.amdhsa_kernel standalone__mha_softmax__near_ridge_kernel
  .amdhsa_next_free_vgpr 512
  .amdhsa_next_free_sgpr 102
  .amdhsa_accum_offset 256
  .amdhsa_group_segment_fixed_size 0
  .amdhsa_kernarg_size 48
  .amdhsa_user_sgpr_count 2
  .amdhsa_user_sgpr_kernarg_segment_ptr 1
  .amdhsa_system_sgpr_workgroup_id_x 1
.end_amdhsa_kernel
"""
def insert_pads(text):
    import subprocess, re, tempfile, os
    def offsets(npads):
        d = tempfile.mkdtemp(); t = text()
        t = t.replace("L_padret:", "L_padret:\n" + "".join(f"L_pad{k}:\n" for k in range(npads + 1, 40)))
        open(d + "/a.s", "w").write(t)
        subprocess.run(["clang", "-x", "assembler", "-target", "amdgcn-amd-amdhsa", "-mcpu=gfx950", "-c", d + "/a.s", "-o", d + "/a.o"], check=True)
        dis = subprocess.run(["llvm-objdump", "-d", "--mcpu=gfx950", d + "/a.o"], capture_output=True, text=True).stdout
        sym = subprocess.run(["llvm-readelf", "-s", d + "/a.o"], capture_output=True, text=True).stdout
        main = int(re.search(r"([0-9a-f]{16}) .* L_main$", sym, re.M).group(1), 16)
        ad = [(int(m.group(2), 16), m.group(1)) for m in re.finditer(r"^\s+(\S+).*// ([0-9A-F]{12}):", dis, re.M)]
        ad = [x for x in ad if x[0] >= main]
        flat = [(sg, k) for sg in segs for k in range(len(sg[1]))]
        flat = flat[[i for i, (sg, k) in enumerate(flat) if sg[1][k].text == "L_main:"][0]:]
        o = []; j = 0
        for sg, k in flat:
            x = sg[1][k]
            if x.kind == "label":
                if x.text == "L_fast_end:": break
                if x.text.startswith(".p2align") and ad[j][0] % 8: j += 1
                continue
            assert ad[j][1].startswith(x.text.split()[0][:12]), (ad[j], x.text)
            o.append((ad[j][0] - ad[0][0], sg, k)); j += 1
        return o
    page = 1; pads = []
    while True:
        off = offsets(page - 1)
        cand = [n for n, (a, sg, k) in enumerate(off) if 4096*page <= a <= 4096*page + 56]
        if not cand: break
        def score(n):
            a, sg, k = off[n]; lo = max(0, k - 8); w = sg[1][lo:k + 8]
            return cost_estimate(w[:k - lo] + [raw("pad")] + w[k - lo:]) - cost_estimate(w)
        n = min(cand, key=score); _, sg, k = off[n]
        p = raw(f"s_cbranch_vccz L_pad{page + 4}"); pads.append(p)
        sg[1][k:k] = [label(f"L_pad{page}"), p]
        page += 1
    for i, p in enumerate(pads):
        if i + 1 + 4 >= page: p.text = "s_cbranch_vccz L_padret"
    assert page > 4
    print(f"  {page - 1} page pads")

if __name__ == "__main__":
    out = sys.argv[1]
    for a in sys.argv[2:]:
        k, v = a.split("=")
        setattr(O_, k, type(getattr(O_, k))(v))
    build()
    def text(): return HEAD + "\n".join((i.text if i.kind == "label" else "    " + i.text) for _, ins in segs for i in ins) + "\n" + TAIL
    if O_.pads: insert_pads(text)
    open(out, "w").write(text())
    import subprocess
    r = subprocess.run([sys.executable, "cdna_unwritten_srd_check.py", out], capture_output=True, text=True)
    print("  check:", r.stdout.strip()[-300:], r.stderr.strip()[-300:])
```

```python
import sys, math, struct
from ir import *

class Opt:
    stamps = 0; diag = ""; probe = 0; force = 0
    late_flags = "sc1"; h0_flags = "sc1"; fin_flags = "sc1"; fq = "nt"; fk = "nt"; fv = "nt"
    n0 = 14
    lead0 = "80,85,90,100,123,123,123,123,123,123,123,123,123,123,145"
    qs = "001222222222221"
    tq = 4; tstep = 12; tper = 2
    olate = "26552"
    psp = 2
    g11 = 56; g12 = 16; dsp = 5; p0g = 6; p1g = 10; p1e = 1.0; tl0 = 1
    osched = "000000220000"; tsched = "111122000000"
    ne1 = 36
    pads = 2
    mq0 = 0
    tight = 1
    ps = "000011111111000"
    pvo = "bs2"; qks = 1; slow = 1
O_ = Opt()

NB = 6
def f32bits(x): return struct.unpack("<I", struct.pack("<f", x))[0]
CSCALE = f32bits(math.log2(math.e) / math.sqrt(128.0))
THRESH = f32bits(2.0 ** 64)
def bf16(x):
    u = f32bits(x); return (u + 0x7fff + ((u >> 16) & 1)) >> 16
C_HI = bf16(math.log2(math.e) / math.sqrt(128.0))
C_LO = bf16(math.log2(math.e) / math.sqrt(128.0) - struct.unpack("<f", struct.pack("<I", C_HI << 16))[0])

def Sreg(b, a): return V(8*b + 4*a, 4)
def Preg(par, b): return V(48 + 24*par + 4*b, 4)
def negM(b): return V(96 + 4*b, 4)
kaddr = [V(120 + s) for s in range(4)]
vaddr = [V(124 + t) for t in range(8)]
vkv = V(132); vsd0 = V(133); vsd1 = V(134); vlin = V(135)
qa = [V(136 + s) for s in range(4)]
ow = V(140)
ovr = V(141)
def Oreg(b, t):
    n = 8*b + t
    return V(144 + 4*n, 4) if n < 28 else A(176 + 4*(n - 28), 4)
def Qreg(b, s): return A(16*b + 4*s, 4)
def F(i): return A(96 + 4*i, 4)
def lacc(b): return A(128 + 4*(b//3), 4)
def sel(b): return A(136 + 4*(b % 3), 4)
X = [A(148 + 4*k, 4) for k in range(7)]
CS = A(164, 10)
sQ, sO = S(12, 4), S(24, 4); sKb, sVb, sVx = S(16, 2), S(22, 2), S(18, 2)
sW = S(28); sM0 = S(30); sStg = S(31); sSide = S(32); sT0 = S(33); sT1 = S(34); sT2 = S(35)
sFlag = S(36); sThr = S(37); sC = S(38, 2); sCmp = S(40, 2); sStamp = S(42, 2); sCnt = S(3); sQd = S(29)
STAMP0 = 48

def aK(J): return (("ring", (J - 2) % 4, "K"), ("K", J), True)
def aV(J): return (("ring", J % 4, "V"), ("V", J), True) if J < 31 else (("ring", 2, "K"), ("V", J), True)
def rK(d): return lambda c: aK(c["J"] + d)
def rV(d): return lambda c: aV(c["J"] + d)
def aQ(h, p): return (("stg", p), ("Q", h), False)
def aO(h, p): return (("stg", p), ("O", h), False)
def blk(f, h, b): return [f(h, 4*b + i) for i in range(4)]
def mkctx(c): return lambda r: r(c) if callable(r) else r

segs = []; path = []; path2 = []; cur = None
def seg(name):
    global cur
    cur = []; segs.append([name, cur]); return len(segs) - 1
def E(*xs):
    for x in xs:
        if x is None: continue
        if isinstance(x, (list, tuple)): E(*x)
        else: cur.append(x)
nstamp = [0]
def stamp_now():
    if O_.stamps not in (1, 2): return []
    k = nstamp[0]; nstamp[0] += 1
    op = "s_memtime" if O_.stamps == 1 else "s_memrealtime"
    return [raw(f"{op} {sStamp}", "smem", (), rs(sStamp)), wait(lgkm=0), salu("s_mov_b32", S(STAMP0 + k), sStamp[0])]

MEM = ("dsr", "dsw", "dma", "vld", "vst"); VAL = ("valu", "trans")
class Task:
    def __init__(s, x, lo, hi, preds): s.x, s.lo, s.hi, s.preds, s.gap = x, lo, hi, preds, None
class Sched:
    def __init__(s, mf):
        s.mf = mf; s.n = len(mf); s.g = [[] for _ in mf]; s.t = []
        s.cap = [24 if m.m["big"] else 8 for m in mf]; s.novalu = set()
    def cost(s, x): return 8 if x.kind == "trans" or x.m.get("perm") else 4
    def fits(s, g, x):
        if s.cap[g] < s.cost(x): return False
        if x.kind in MEM and any(y.kind in MEM for y in s.g[g]): return False
        if x.kind in VAL and g in s.novalu: return False
        return True
    def put(s, g, x): s.g[g].append(x); s.cap[g] -= s.cost(x)
    def fix(s, x, g):
        t = Task(x, g, g, []); t.gap = g; s.put(g, x)
        if x.kind in ("dma", "vst", "vld"): s.cap[g] = 0; s.novalu.add(g - 1)
        if x.kind == "barrier": s.cap[g] = 0
        return t
    def add(s, x, lo=0, hi=None, preds=()):
        t = Task(x, max(lo, 0), s.n - 1 if hi is None else min(hi, s.n - 1), [p for p in preds if p[0] is not None]); s.t.append(t); return t
    def seq(s, xs, lo=0, hi=None, after=None, hard=1):
        p = after
        for x in xs: p = s.add(x, lo, hi, [(p, hard, hard)])
        return p
    def sm(s, groups, smax=2.0):
        ex = [(x, lo, hi) for ops, lo, hi in groups for x in ops if x.kind == "trans"]
        sig = smax
        while True:
            pos = []; t = -9.0; ok = True
            for x, lo, hi in ex:
                t = max(lo, t + sig); g = int(t)
                while g < s.n and (not s.fits(g, x) or (pos and g <= pos[-1])): g += 1
                if g > hi - 1: ok = False; break
                pos.append(g); t = max(t, g - 0.5)
            if ok: break
            sig -= 0.05
            assert sig > 0.3, "softmax does not fit"
        k = 0
        for ops, lo, hi in groups:
            e = []
            for x in ops:
                if x.kind == "trans": e.append(s.fix(x, pos[k])); k += 1
                else: s.add(x, lo, min(hi, e[-1].gap + 5), [(e[-1], 1, 1)])
    def run(s):
        for t in reversed(s.t):
            for p, h, so in t.preds:
                if p.gap is None: p.hi = min(p.hi, t.hi - so)
        for t in s.t:
            for p, h, so in t.preds: t.lo = max(t.lo, p.lo + h)
            t.hi = max(t.hi, t.lo)
        left = list(s.t)
        for g in range(s.n):
            while True:
                rdy = [t for t in left if t.lo <= g and all(p.gap is not None and g >= p.gap + h for p, h, so in t.preds)]
                rdy = [t for t in rdy if t.hi <= g or all(g >= p.gap + so for p, h, so in t.preds)]
                rdy.sort(key=lambda t: t.hi)
                pick = next((t for t in rdy if t.hi <= g or s.fits(g, t.x)), None)
                if pick is None: break
                s.put(g, pick.x); pick.gap = g; left.remove(pick)
        assert not left, left[0].x
        s.t = []
    def pour(s, *streams):
        st = [[list(xs), lo] for xs, lo in streams]
        for g in range(s.n):
            again = True
            while again:
                again = False
                for q in st:
                    if q[0] and q[1] <= g and s.fits(g, q[0][0]): s.put(g, q[0].pop(0)); again = True; break
        return [x for q in st for x in q[0]]
    def emit(s):
        for m, g in zip(s.mf, s.g):
            key = lambda x: 3 if x.m.get("last") else (2 if x.kind in VAL else (0 if x.kind in MEM else 1))
            E(m, sorted(g, key=key))

def kread(J, d, a, s, dst): return ds_read("ds_read_b128", dst, kaddr[s], ((J + d - 2) % 4)*16384 + a*8192, rK(d))
def vread(J, d, t, a, dst):
    return ds_read("ds_read_b64_tr_b16", dst[2*a:2*a+2], vaddr[t], (((J + d) % 4)*16384 if J + d < 31 else 32768 - 1024) + a*8192, rV(d))
def kv_group(J, d, withV=True):
    o = [salu("s_add_u32", "m0", sM0, ((J + d) % 4)*16384)]
    for im in (0, 2048):
        if withV: o.append(gdma(vkv, sVb, im + 1024, rV(d), O_.fv))
        o.append(gdma(vkv, sKb, im, rK(d + 2), O_.fk) if J + d < 30 else gdma(vkv, sVx, im, rV(d + 1), O_.fv))
    return o + [kv_step()]
def kv_step(): return valu("v_add_u32", vkv, 8192, vkv)
def q_dma_block(h, b):
    o = [salu("s_add_u32", "m0", sStg, b*4096), salu("s_mov_b32", sSide, h*98304 + b*4096)]
    for i in range(4): o.append(dma(vsd1 if i & 1 else vsd0, sQ, sSide, i*1024, aQ(h, 4*b + i), O_.fq))
    return o
def piecemeal(groups):
    st = []; pre = []
    for grp in groups:
        for x in grp:
            if x.kind in MEM: st.append(pre + [x]); pre = []
            else: pre.append(x)
    if pre: st[-1] += pre
    def more(n):
        o = st[:n]; del st[:n]; return o
    more.left = lambda: len(st)
    return more

def sm_ops(par, b, a):
    s = Sreg(b, a); p = Preg(par, b)
    return [valu("v_exp_f32", s[0], s[0]), valu("v_exp_f32", s[1], s[1]), valu("v_cvt_pk_bf16_f32", p[2*a], s[0], s[1]),
            valu("v_exp_f32", s[2], s[2]), valu("v_exp_f32", s[3], s[3]), valu("v_cvt_pk_bf16_f32", p[2*a+1], s[2], s[3])]
NE_A = 40
def sm_split(par, ne=NE_A, order=range(NB)):
    st = []
    for a in range(2):
        for b in (order if a else range(NB)): st += [(b, x) for x in sm_ops(par, b, a)]
    k = ne // 2 * 3
    return st[:k], st[k:]
def delay_cvts(xs):
    o = []; pend = []
    for x in xs:
        if x.kind == "trans":
            o.append(x)
            if pend: o.append(pend.pop(0))
        else: pend.append(x)
    return o + pend
def xlane_max(m, t):
    o = []
    for op in ("v_permlane32_swap_b32", "v_permlane16_swap_b32"):
        o += [valu("v_mov_b32", t, m), swap(op, m, t), valu("v_max_f32", m, m, t)]
    return o
def rowmax_ops(b):
    m, t = negM(b)[0], negM(b)[1]; sv = lambda r: V(8*b + r)
    o = [valu("v_max3_f32", m, sv(0), sv(1), sv(2)), valu("v_max3_f32", t, sv(3), sv(4), sv(5)),
         valu("v_max3_f32", m, m, sv(6), sv(7)), valu("v_max_f32", m, m, t)] + xlane_max(m, t)
    o += [valu("v_sub_f32", negM(b)[r], 0, m) for r in (1, 2, 3, 0)]
    return o, [valu("v_pk_add_f32", V(8*b + 2*r, 2), V(8*b + 2*r, 2), negM(b)[0:2]) for r in range(4)]
def scale_frag(x, dst, w, y, pk=True):
    o = []
    if pk:
        for r in range(4): o += [valu("v_lshlrev_b32", w[2*r], 16, x[r]), valu("v_and_b32", w[2*r+1], "0xffff0000", x[r])]
        for r in range(4): o.append(valu("v_pk_mul_f32", w[2*r:2*r+2], w[2*r:2*r+2], sC))
    else:
        for r in range(4):
            o += [valu("v_lshlrev_b32", w[2*r], 16, x[r]), valu("v_and_b32", w[2*r+1], "0xffff0000", x[r]),
                  valu("v_mul_f32", w[2*r], sC[0], w[2*r]), valu("v_mul_f32", w[2*r+1], sC[0], w[2*r+1])]
    if dst.k == "v": return o + [valu("v_cvt_pk_bf16_f32", dst[r], w[2*r], w[2*r+1]) for r in range(4)]
    for r in range(4): o.append(valu("v_cvt_pk_bf16_f32", y[r], w[2*r], w[2*r+1]))
    for r in range(4): o.append(valu("v_accvgpr_write_b32", dst[r], y[r]))
    return o
def chain(b, a, fr, c0, rev):
    return [(s, mfma(Sreg(b, a), fr[s], Qreg(b, s), c0 if n == 0 else Sreg(b, a))) for n, s in enumerate(range(3, -1, -1) if rev and O_.qks else range(4))]
def qk_first(b): return [m for a in range(2) for _, m in chain(b, a, [F(4*a + s) for s in range(4)], 0, a)]
def pv_pair(par, bs, t0, fr, init, sums):
    o = []
    if O_.pvo in ("t", "ts"):
        bs = sorted(bs)
        if 5 in sums and init: sums = []; o += [(None, rowsum(par, 5, init)), (None, rowsum(par, 4, init))]
        for k in range(2):
            for b in (bs if k == 0 or O_.pvo == "t" else bs[::-1]):
                o.append((t0 + k, mfma(Oreg(b, t0 + k), Preg(par, b), fr[k], 0 if init else Oreg(b, t0 + k))))
                if k == 0 and b in sums: o.append((None, rowsum(par, b, init)))
        return o
    for n, b in enumerate(bs):
        for k in ((0, 1) if n % 2 == 0 or O_.pvo == "pp2" else (1, 0)): o.append((t0 + k, mfma(Oreg(b, t0 + k), Preg(par, b), fr[k], 0 if init else Oreg(b, t0 + k))))
        if b in sums: o.insert(len(o) - 1, (None, rowsum(par, b, init)))
    return o
def rowsum(par, b, init=False): return mfma(lacc(b), Preg(par, b), sel(b), 0 if init and b in (0, 5) else lacc(b))

def pm(f):
    q = Qreg(f//4, f % 4); d = V(76 + 8*(f & 1), 8); t = V(92, 4)
    mf = [mfma(d[0:4], CS[2:6], q, 0), mfma(d[0:4], CS[6:10], q, d[0:4]), mfma(d[4:8], CS[0:4], q, 0), mfma(d[4:8], CS[4:8], q, d[4:8])]
    fl = []
    for hh in range(2):
        fl += [valu("v_cvt_pk_bf16_f32", t[2*hh + k], d[4*hh + 2*k], d[4*hh + 2*k + 1]) for k in range(2)]
        fl += [valu("v_accvgpr_write_b32", q[2*hh + k], t[2*hh + k]) for k in range(2)]
    return mf, fl

def startup():
    v0, vl, vi, vu, t0, t1, t2 = V(0), V(1), V(2), V(3), V(4), V(5), V(6)
    E(comment("---- setup"),
      raw("s_load_dwordx4 s[4:7], s[0:1], 0", "smem", (), rs(S(4, 4))),
      raw("s_load_dwordx4 s[8:11], s[0:1], 16", "smem", (), rs(S(8, 4))),
      scmp("s_cmp_ge_u32", S(2), 256), raw("s_cbranch_scc1 L_end", "salu", {"scc"}))
    if O_.stamps:
        E(raw("s_load_dwordx2 s[44:45], s[0:1], 40", "smem", (), rs(S(44, 2))),
          raw("s_memrealtime s[46:47]", "smem", (), rs(S(46, 2))))
    E(comment("pull the kernel's own code into L2 (one dword per 128-byte line)"),
      raw("s_getpc_b64 s[40:41]", "salu", (), rs(S(40, 2))), label("L_pc"),
      valu("v_lshlrev_b32", t0, 7, v0), valu("v_min_u32", t1, "L_fast_end-L_pc", t0),
      Inst(f"global_load_dword v7, {t1}, s[40:41]", "vld", rs(t1, S(40, 2)), rs(V(7))),
      valu("v_add_u32", t0, 32768, t0), valu("v_min_u32", t1, "L_fast_end-L_pc", t0),
      Inst(f"global_load_dword v8, {t1}, s[40:41]", "vld", rs(t1, S(40, 2)), rs(V(8))))
    E(valu("v_lshrrev_b32", t1, 6, v0), valu("v_and_b32", vl, 63, v0),
      valu("v_readfirstlane_b32", sW, t1),
      valu("v_and_b32", vi, 15, vl), valu("v_lshrrev_b32", vu, 4, vl),
      valu("v_lshlrev_b32", t0, 1, vu), valu("v_xor_b32", t0, t0, vi), valu("v_lshlrev_b32", t0, 4, t0),
      valu("v_lshl_add_u32", vsd0, vu, 8, t0), valu("v_xor_b32", vsd1, 128, vsd0),
      salu("s_and_b32", sT0, sW, 1), salu("s_lshr_b32", sT1, sW, 1),
      salu("s_lshl_b32", sT2, sT0, 7), salu("s_lshl_b32", sT0, sT0, 10), salu("s_lshl_b32", sT1, sT1, 12),
      salu("s_add_u32", sT0, sT0, sT1),
      valu("v_xor_b32", vkv, sT2, vsd0), valu("v_add_u32", vkv, sT0, vkv),
      salu("s_lshl_b32", sM0, sW, 12), salu("s_mul_i32", sStg, sW, 24576),
      salu("s_mul_i32", sT0, S(2), 196608), salu("s_add_u32", sT0, sT0, sStg), salu("s_add_u32", sStg, sStg, 65536),
      salu("s_lshl_b32", sT1, S(2), 18),
      salu("s_mov_b32", sQ[2], 98304 + 24576), salu("s_mov_b32", sQ[3], "0x20000"),
      wait(lgkm=0),
      salu("s_add_u32", sKb[0], S(6), sT1), salu("s_addc_u32", sKb[1], S(7), 0),
      salu("s_add_u32", sQ[0], S(4), sT0), salu("s_addc_u32", sQ[1], S(5), 0), salu("s_and_b32", sQ[1], sQ[1], "0xffff"))
    g0 = kv_group(0, 0); g0 = [g0[k] for k in (0, 1, 3, 2, 4, 5)]
    more = piecemeal([kv_group(0, -2, False)] + [q_dma_block(0, b) for b in range(NB)] + [kv_group(0, -1, False), g0])
    E(more(10))
    if O_.pads == 2: E(raw("s_branch L_main"), raw(".p2align 12", "label"), label("L_main"))
    E(salu("s_add_u32", sVb[0], S(8), sT1), salu("s_addc_u32", sVb[1], S(9), 0),
      salu("s_sub_u32", sVb[0], sVb[0], 1024 + 16384), salu("s_subb_u32", sVb[1], sVb[1], 0),
      salu("s_add_u32", sO[0], S(10), sT0), salu("s_addc_u32", sO[1], S(11), 0), salu("s_and_b32", sO[1], sO[1], "0xffff"),
      salu("s_mov_b32", sO[2], 98304 + 24576), salu("s_mov_b32", sO[3], "0x20000"),
      salu("s_add_u32", sVx[0], sVb[0], 1024 + 8192), salu("s_addc_u32", sVx[1], sVb[1], 0),
      salu("s_mov_b32", sC[0], hex(CSCALE)), salu("s_mov_b32", sC[1], hex(CSCALE)),
      salu("s_mov_b32", sThr, hex(THRESH)), salu("s_mov_b32", sFlag, O_.force), salu("s_sub_u32", sQd, sStg, 98304))
    E(valu("v_and_b32", t0, 7, vi), valu("v_lshlrev_b32", t0, 1, t0), valu("v_xor_b32", t0, t0, vu), valu("v_lshlrev_b32", t0, 4, t0),
      valu("v_lshl_add_u32", t2, vi, 8, t0), valu("v_add_u32", qa[0], sStg, t2),
      valu("v_and_b32", t1, 3, vi), valu("v_lshl_add_u32", t0, t1, 8, t0),
      valu("v_lshrrev_b32", t1, 3, vi), valu("v_lshl_add_u32", t0, t1, 11, t0),
      valu("v_bfe_u32", t1, vi, 2, 1), valu("v_lshl_add_u32", kaddr[0], t1, 12, t0))
    for s in range(1, 4): E(valu("v_xor_b32", kaddr[s], s << 6, kaddr[0]), valu("v_xor_b32", qa[s], s << 6, qa[0]))
    E(valu("v_lshrrev_b32", t1, 2, vi), valu("v_and_b32", t2, 1, vu), valu("v_lshl_add_u32", t0, t2, 2, t1),
      valu("v_lshlrev_b32", t0, 5, t0), valu("v_lshl_add_u32", t0, t1, 8, t0), valu("v_lshl_add_u32", t0, t2, 12, t0),
      valu("v_lshrrev_b32", t2, 1, vu), valu("v_lshl_add_u32", t0, t2, 11, t0),
      valu("v_and_b32", t1, 3, vi), valu("v_lshl_add_u32", t0, t1, 3, t0), valu("v_add_u32", vaddr[0], 1024, t0))
    for t in range(1, 8): E(valu("v_xor_b32", vaddr[t], t << 5, vaddr[0]))
    E(valu("v_mov_b32", t2, "0x3f803f80"))
    for k in range(3):
        E(Inst(f"v_cmp_eq_u32 vcc, {k}, {vi}", "valu", rs(vi), {"vcc"}), nop(1), Inst(f"v_cndmask_b32 {t0}, 0, {t2}, vcc", "valu", rs(t2, "vcc"), rs(t0)),
          [valu("v_accvgpr_write_b32", sel(k)[r], t0) for r in range(4)])
    E(valu("v_lshrrev_b32", t0, 1, vi), valu("v_lshlrev_b32", t1, 1, vu), valu("v_sub_u32", t0, t0, t1),
      valu("v_and_b32", t1, 1, vi), valu("v_lshlrev_b32", t1, 4, t1))
    for k in range(2):
        E(Inst(f"v_cmp_eq_u32 vcc, {k}, {t0}", "valu", rs(t0), {"vcc"}))
        for j, c in enumerate((C_HI, C_LO)):
            E(valu("v_mov_b32", t2, hex(c)), valu("v_lshlrev_b32", t2, t1, t2), Inst(f"v_cndmask_b32 {t2}, 0, {t2}, vcc", "valu", rs(t2, "vcc"), rs(t2)),
              valu("v_accvgpr_write_b32", CS[2 + 4*j + k], t2))
    E([valu("v_accvgpr_write_b32", CS[k], 0) for k in (0, 1, 4, 5, 8, 9)])
    E(valu("v_lshlrev_b32", t0, 3, vl), valu("v_add_u32", ow, sStg, t0),
      valu("v_bfe_u32", t1, vi, 1, 1), valu("v_lshl_add_u32", t0, t1, 2, vu), valu("v_lshlrev_b32", t0, 9, t0),
      valu("v_and_b32", t1, 1, vi), valu("v_lshl_add_u32", t0, t1, 6, t0), valu("v_lshrrev_b32", t1, 2, vi),
      valu("v_lshl_add_u32", t0, t1, 3, t0), valu("v_add_u32", ovr, sStg, t0),
      valu("v_and_b32", t2, 3, vi), valu("v_lshlrev_b32", t0, 5, t2), valu("v_lshl_add_u32", t0, vu, 8, t0),
      valu("v_and_b32", t2, 1, t1), valu("v_lshl_add_u32", t0, t2, 4, t0), valu("v_lshrrev_b32", t2, 1, t1), valu("v_lshl_add_u32", vlin, t2, 7, t0))
    E(more(O_.n0 - 10), stamp_now())
    E(comment("---- first K tile"), wait(vm=[aK(0)]), barrier())
    for a in range(2):
        for s in range(4): E(kread(0, 0, a, s, F(4*a + s)))
    if O_.pads:
        E(comment("visit the start of each code page once (wave w: pages w+1, w+5, ..); every stop jumps straight on while vcc = 0"),
          raw("s_mov_b64 vcc, 0"))
        for w in range(3): E(scmp("s_cmp_eq_u32", sW, w), raw(f"s_cbranch_scc1 L_pad{w + 1}", "salu", {"scc"}))
        E(raw("s_branch L_pad4"), [raw(".p2align 12", "label"), label("L_main")] if O_.pads == 1 else None, label("L_padret"), raw("s_mov_b64 vcc, -1"))
    rawr = lambda s: V(72 + 4*s, 4)
    for b in range(NB):
        E(comment(f"---- start-up block {b}"), wait(vm=blk(aQ, 0, b)), stamp_now() if O_.probe == 2 else None)
        if O_.mq0:
            for s in range(4): E(ds_read("ds_read_b128", Qreg(b, s), qa[s], b*4096, blk(aQ, 0, b)))
            E(more(2), wait(lgkm=[Qreg(b, 0)] + ([F(k) for k in range(8)] if b == 0 else [])))
            pms = [pm(4*b + n) for n in range(4)]
            sc = Sched([m for mf, _ in pms for m in mf])
            sc.put(2, wait(lgkm=0))
            for n in range(3):
                for j, v in enumerate(pms[n][1]): sc.put(4*(n + 1) + j//2, v)
            sc.emit(); E(more(2), pms[3][1])
        else:
            for s in range(4): E(ds_read("ds_read_b128", rawr(s), qa[s], b*4096, blk(aQ, 0, b)))
            for s in range(4):
                E(wait(lgkm=[rawr(s)] + ([F(k) for k in range(8)] if b == 0 else [])))
                E(more(1), scale_frag(rawr(s), Qreg(b, s), V(88, 8), Sreg(b, s & 1)))
        qk = qk_first(b)
        if b < NB - 1: E(qk, rowmax_ops(b), delay_cvts(sm_ops(0, b, 0) + sm_ops(0, b, 1)))
    assert more.left() == 0
    E(qk[:4], wait(vm=[aK(1)]), barrier())
    for s in range(4): E(qk[4 + s], kread(0, 1, 0, s, F(s)))
    E(salu("s_mov_b32", sSide, 98304), salu("s_mov_b32", sCnt, 1), rowmax_ops(NB - 1)[0][:4], wait(lgkm=[F(s) for s in range(4)]), stamp_now())

def o_read(key, p, dst):
    return [ds_read("ds_read_b64_tr_b16", dst[2*hi:2*hi + 2], ovr, (p >> 2)*4096 + (p & 3)*128 + hi*32, key) for hi in range(2)]
def pv_mfmas(par, frags, sums_first=False, init=False):
    mf = [rowsum(par, b) for b in range(NB)] if sums_first else []; st = []
    for h in range(4):
        st.append(len(mf))
        sums = [] if sums_first else [(0, 1), (5, 4), (2,), (3,)][h]
        mf += [m for _, m in pv_pair(par, range(NB) if h % 2 == 0 else range(NB - 1, -1, -1), 2*h, frags[2*h:2*h + 2], init, sums)]
    return mf, st
def late_pieces(k):
    cnt = [int(c, 16) for c in O_.olate]; ne = sum(map(int, O_.osched)); assert sum(cnt) == 24 - ne and sum(cnt[:4]) >= 12
    return (list(range(12, 24)) + list(range(ne, 12)))[sum(cnt[:k]):sum(cnt[:k + 1])]
def kv_plan(J):
    if J >= 16: return [(3, 27)] if J < 28 else []
    o = []
    for k, lead in enumerate(int(x) for x in O_.lead0.split(",")):
        Jk, g = divmod(102*(k + 1) + 23 - lead, 102)
        assert 2 <= g <= 82
        if Jk == J: o.append((k + 1 - J, g))
    return o
END_ORDER = (2, 3, 4, 5, 0, 1)
NPRE = 2
VF15 = [Qreg(4 + t//4, t % 4) for t in range(8)]

def iteration(J, ctl=()):
    par = J & 1; j = J % 16
    mf = [m for a in range(2) for b in range(NB) for _, m in chain(b, a, [F(4*a + s) for s in range(4)], negM(b), b & 1)]
    pv, pst = pv_mfmas(par, [F(t) for t in range(8)], init=(j == 0))
    mf += pv; pst = [48 + x for x in pst]
    sc = Sched(mf)
    for x in ctl: sc.fix(x, 101)
    if ctl: sc.cap[101] = 0
    for s in range(4): sc.fix(kread(J, 1, 1, s, F(4 + s)), [1, 6, 11, 13][s])
    tb2 = None
    if J == 0:
        sc.fix(wait(vm=[rV(0)], lgkm=0), 23); tb = sc.fix(barrier(), 23)
        sc.fix(wait(vm=[rK(2)]), 72); tb2 = sc.fix(barrier(), 72)
    else:
        sc.fix(wait(vm=[rV(0), rK(2)], lgkm=0), 23); tb = sc.fix(barrier(), 23)
    if J == 0 or (J == 16 and O_.tight):
        b = NB - 1; t = sc.seq(rowmax_ops(b)[0][4:], 0, 8, hard=0)
        sub = [sc.add(valu("v_add_f32", V(8*b + r), V(8*b + r), negM(b)[1]), 0, 10 if r < 4 else 22, [(t, 0, 0)]) for r in range(8)]
        sc.run()
    plan = kv_plan(J); busy = []
    for n_, (d, g0) in enumerate(plan):
        ops = kv_group(J, d); g = g0
        while sc.cap[g - 2] < 4: g += 1
        sc.fix(ops[0], g - 2)
        for x in ops[1:5]:
            while sc.cap[g] < 8 or sc.cap[g - 1] == 0 or sc.cap[g + 1] == 0 or any(y.kind in VAL for y in sc.g[g - 1]): g += 1
            td = sc.fix(x, g); g += O_.dsp
        busy.append((g0 - 3, td.gap + 1))
        sc.add(ops[5], 0, 100 if n_ + 1 == len(plan) else plan[n_ + 1][1] - 1, [(td, 1, 1)])
    nq = int(O_.qs[J]) if J < 15 else 0
    if nq:
        p0 = sum(map(int, O_.qs[:J])); g0 = max([50] + [hi + 6 for lo, hi in busy if lo < 50])
        assert all(hi < g0 - 2 or lo > g0 + 12*(nq - 1) for lo, hi in busy)
        sc.fix(salu("s_add_u32", "m0", sSide, sQd), g0 - 2)
        for k in range(nq):
            t = sc.fix(dma(vsd1 if (p0 + k) & 1 else vsd0, sQ, sSide, k*1024, (lambda k: lambda c: aQ(1, sum(map(int, O_.qs[:c["J"]])) + k))(k), O_.fq), g0 + 12*k)
        sc.add(salu("s_add_u32", sSide, sSide, 1024*nq), 0, 99, [(t, 1, 1)])
    npz = int(O_.ps[J]) if J < 15 else 0
    if npz:
        tot = lambda a, b_: sum(map(int, O_.ps[a:b_]))
        rel = tot(4, J) if J < 12 else tot(12, J)
        raw_, tt = V(142, 2), V(138, 2); p = None; span = 96//(2*npz)
        for k in range(2*npz):
            key = (lambda k: lambda c: aQ(1, tot(0, c["J"]) + k//2))(k)
            off = (rel + k//2)*1024 + (k & 1)*512; lo = 2 + span*k; gw = lo + span - 1
            while sc.cap[gw] < 8 or sc.cap[gw + 1] == 0 or gw in sc.novalu: gw -= 1
            if k % 2 == 0: p = sc.add(wait(vm=[key]), lo, None, [(p, 1, 1)])
            p = sc.add(ds_read("ds_read_b64", raw_, ow, off, key), lo, None, [(p, 1, 1)])
            p = sc.add(wait(lgkm=[raw_]), lo, None, [(p, 1, 7)])
            for r in range(2):
                ops = [valu("v_lshlrev_b32", tt[0], 16, raw_[r]), valu("v_and_b32", tt[1], "0xffff0000", raw_[r]), valu("v_mul_f32", tt[0], sC[0], tt[0]),
                       valu("v_mul_f32", tt[1], sC[0], tt[1]), valu("v_cvt_pk_bf16_f32", raw_[r], tt[0], tt[1])]
                for i, x in enumerate(ops): p = sc.add(x, lo, gw - 1 - (9 - 5*r - i)*O_.psp, [(p, 1 if i + r == 0 else 0, 1 if i + r == 0 else 0)])
            p = sc.fix(ds_write("ds_write_b64", ow, raw_, off, key), gw); sc.cap[gw] = 0
        if J == 7: sc.add(valu("v_add_u32", ow, 1024*tot(4, 8), ow), 0, 100, [(p, 1, 1)])
    if J == 14 and int(O_.ps):
        sc.add(valu("v_subrev_u32", ow, 1024*sum(map(int, O_.ps[:12])), ow), 0, 40)
        for s in (2, 3): sc.add(valu("v_xor_b32", qa[s], s << 6, qa[0]), 0, 40)
    if J in (27, 28):
        ps = late_pieces(J - 27); g0 = [O_.g11, O_.g12][J - 27]
        base = t = None
        for i, p in enumerate(ps):
            g = g0 + (96 - g0)*i//max(1, len(ps) - 1)
            while g in (22, 23, 24) or sc.cap[g] < 8 or sc.cap[g - 1] == 0 or sc.cap[g + 1] == 0: g += 1
            t = sc.seq(o_read(aO(0, p), p, X[i]), 0, g - 8, t); sc.add(wait(lgkm=[X[i]]), 0, g - 1, [(t, 1, 6)])
            if base is None or not 0 <= p - base < 4: base = p; sc.fix(salu("s_mov_b32", sSide, p*1024), g - 1)
            sc.fix(vstore(X[i], vlin, sO, sSide, (p - base)*1024, O_.late_flags), g)
    p = tb
    for t in range(8):
        for a in range(2): p = sc.add(vread(J, 0, t, a, F(t)), 24 if t < 4 else 48, None, [(p, 1, 1)])
        if t in (1, 3): sc.add(wait(lgkm=[F(t - 1), F(t)]), 0, pst[t//2] - 1, [(p, 1, 8)])
    sc.add(wait(lgkm=[F(4), F(5), F(6), F(7)]), 0, pst[2] - 1, [(p, 1, 8)])
    for s in range(4): p = sc.add(kread(J, 2, 0, s, F(s)), pst[2], None if J != 14 else 90, [(p, 1, 1), (tb2, 1, 1)])
    if J == 28:
        pre = late_pieces(2)[:NPRE]
        p = sc.seq([x for i, q in enumerate(pre) for x in o_read(aO(0, q), q, X[i])], 60, None, p)
    if J != 14: sc.add(wait(lgkm=[F(s) for s in range(4)] + (X[:NPRE] if J == 28 else [])), 0, 101 if J == 28 else 100, [(p, 1, 8 if J != 28 else 5)])
    else:
        sc.fix(wait(vm=[rV(1), rK(3)] + blk(aQ, 1, 0)), 92); t = sc.fix(barrier(), 92)
        for k in range(4): sc.fix(vread(J, 1, k//2, k & 1, VF15[k//2]), 93 + 2*k)
    nxt = lambda ne: [x for _, x in sm_split(1 - par, ne, END_ORDER if J == 28 else range(NB))[0]]
    if J == 0:
        b = NB - 1
        sc.sm([(sm_ops(0, b, 0), sub[3].gap + 1, 19), (sm_ops(0, b, 1), sub[7].gap + 1, 43), (nxt(NE_A), 24, 100)])
    elif J == 16 and O_.tight:
        tail = sm_split(0, O_.ne1)[1]; b = NB - 1
        sc.sm([(sm_ops(0, b, 0), sub[3].gap + 1, 19)] + [([x for bb, x in tail if bb == k], sub[7].gap + 1, 23 + 4*k) for k in range(NB) if any(bb == k for bb, _ in tail)]
              + [(nxt(NE_A), 24, 100)])
    elif J == 16:
        tail = sm_split(0, O_.ne1)[1]
        sc.sm([([x for bb, x in tail if bb == b], 0, 23 + 4*b) for b in range(NB) if any(bb == b for bb, _ in tail)] + [(nxt(NE_A), 24, 100)])
    elif J == 14:
        sc.sm([([x for _, x in sm_split(par)[1]], 0, 30)] + [(sm_ops(1, b, a), 24*a + 4*b + 8, 101) for a in range(2) for b in range(NB)])
    else:
        sc.sm([([x for _, x in sm_split(par)[1]], 0, 30)], 2.4)
        sc.sm([(nxt(NE_A), 24, 100)])
    sc.run(); sc.emit()

def straight(J, *pre):
    s = seg(f"J{J}"); path.append((s, {"J": J})); E(comment(f"---- head {J//16}, key tile {J % 16}"), pre); iteration(J)
def loop4(name, J0, passes):
    ss = []
    for k in range(4):
        ss.append(seg(f"{name}{k}"))
        if k == 0: E(raw(".p2align 3", "label"), label(f"L_{name}"))
        d = salu("s_sub_u32", sCnt, sCnt, 1); d.m["last"] = True
        iteration(J0 + k, [d, raw(f"s_cbranch_scc0 L_{name}", "salu", {"scc"}, (), last=True)] if k == 3 else [])
        for n in range(1, passes): assert kv_plan(J0 + k) == kv_plan(J0 + k + 4*n) and (J0 > 15 or (O_.qs[J0 + k], O_.ps[J0 + k]) == (O_.qs[J0 + k + 4*n], O_.ps[J0 + k + 4*n]))
    assert J0 > 15 or sum(map(int, O_.qs[J0:J0 + 4])) % 2 == 0
    for n in range(4*passes): path.append((ss[n % 4], {"J": J0 + n}))

def l_ops(h, b0, r, t1):
    o = [valu("v_accvgpr_read_b32", r[k], lacc(b0)[k]) for k in range(4)]
    o += [valu("v_add_f32", t1, r[0], r[1]), valu("v_add_f32", t1, t1, r[2]), valu("v_add_f32", t1, t1, r[3])]
    o += [valu("v_rcp_f32", r[k], r[k]) for k in range(4)]
    return o
def l_flag(h, t1):
    return [Inst(f"v_cmp_nlt_f32 {sCmp}, {t1}, {sThr}", "valu", rs(t1, sThr), rs(sCmp)), nop(0),
            scmp("s_cmp_lg_u64", sCmp, 0), salu("s_cselect_b32", sT0, 1 << h, 0), salu("s_or_b32", sFlag, sFlag, sT0)]
def l_bcast(b, r, dst):
    o = [valu("v_mov_b64_dpp", dst[2*k:2*k + 2], r[2*k:2*k + 2], mods=f"row_newbcast:{b % 3} row_mask:0xf bank_mask:0xf") for k in range(2)]
    for x in o: x.m["dpp"] = True
    return o
def epi_half(h, b, th, rl, tmp, y):
    r0 = Oreg(b, 4*th); w = V(r0.i, 16) if r0.k == "v" else tmp; o = []
    if r0.k == "a": o += [valu("v_accvgpr_read_b32", w[i], A(r0.i + i)) for i in range(16)]
    o += [valu("v_pk_mul_f32", w[2*i:2*i + 2], w[2*i:2*i + 2], rl[2*(i & 1):2*(i & 1) + 2]) for i in range(8)]
    o += [valu("v_cvt_pk_bf16_f32", y[2*r + k], w[8*k + r], w[8*k + 4 + r]) for r in range(4) for k in range(2)]
    o += [ds_write2st64(ow, y[4*k:4*k + 2], y[4*k + 2:4*k + 4], 8*b + 4*th + 2*k, 8*b + 4*th + 2*k + 1, blk(aO, h, b)) for k in range(2)]
    return o

def transition():
    s = seg("trans"); path.append((s, {"J": 15}))
    E(stamp_now(), comment("---- head 0: last PV; switch to head 1"))
    vf = VF15
    F0 = sum(map(int, O_.ps)); assert F0 % 4 == 0 and F0 <= 12 and O_.ps[:4] == "0000" and O_.ps[14] == "0"
    raw0 = V(16, 4)
    def qrd(b): return [ds_read("ds_read_b128", Qreg(b, n), qa[n], b*4096, blk(aQ, 1, b)) for n in range(4) if 4*b + n != F0]
    rc = [negM(4), negM(5)]
    rl = V(72, 4); y = V(76, 8)
    npre = sum(map(int, O_.qs)); assert npre >= 8
    more = piecemeal([[x for k, x in enumerate(q_dma_block(1, b)) if k < 2 or 4*b + k - 2 >= npre] for b in range(npre//4, NB)]
                     + [kv_group(15, d) for d in (1, 2, 3)])
    vr = [vread(15, 0, t, a, vf[t]) for t in range(8) for a in range(2)]
    pv, pst = pv_mfmas(1, vf, True)
    sc = Sched(pv)
    g = 8
    for grp in more(O_.tq):
        for i, x in enumerate(grp):
            if x.kind not in MEM: sc.fix(x, g - 3 if len(grp) - i > 3 else g - 2)
            else: sc.fix(x, g); g += O_.tstep
    sc.add(wait(lgkm=vf[:2]), 4, pst[0] - 1)
    p = sc.seq([wait(vm=blk(aQ, 1, F0//4)), ds_read("ds_read_b128", raw0, qa[0], F0*1024, blk(aQ, 1, F0//4))], 0); wq = sc.add(wait(lgkm=[raw0]), 0, 10, [(p, 1, 6)])
    p = sc.seq(vr[4:8], 0, None, p); sc.add(wait(lgkm=vf[2:4]), 0, pst[1] - 1, [(p, 1, 6)])
    p = sc.seq(vr[8:], 0, None, p); sc.add(wait(lgkm=vf[4:]), 0, pst[2] - 1, [(p, 1, 6)])
    p = sc.seq([kread(15, 1, 1, k, F(4 + k)) for k in range(4)] + qrd(0) + [wait(vm=blk(aQ, 1, 1))] + qrd(1), 24, 46, p)
    sc.fix(wait(lgkm=0), 53); sc.fix(barrier(), 53)
    sc.run()
    lv = l_ops(0, 0, rc[0], V(60)) + l_ops(0, 3, rc[1], V(61)) + [valu("v_add_f32", V(60), V(60), V(61))]; ls = l_flag(0, V(60))
    st = scale_frag(raw0, Qreg(F0//4, 0), V(0, 8), V(8, 4), pk=False)
    rest = sc.pour((lv, 10), (st, wq.gap + 1)); sc.emit(); E(rest); rest = []
    def site(k):
        c = [int(x) for x in O_.osched] + [0]; p0 = sum(c[:k]); o = more(int(O_.tsched[k]) if O_.tsched else O_.tper)
        if c[k]:
            o += [salu("s_mov_b32", sT1, p0*1024), wait(lgkm=[X[(p0 + i) % 4] for i in range(c[k])])]
            o += [vstore(X[(p0 + i) % 4], vlin, sO, sT1, i*1024, O_.late_flags) for i in range(c[k])]
        p1 = p0 + c[k]; assert (p1 + c[k + 1] + 3)//4 <= (k + 1)//2 or not c[k + 1]
        return o + [o_read(aO(0, p), p, X[p % 4]) for p in range(p1, p1 + c[k + 1])]
    first = sm_split(0, O_.ne1)[0]
    def finish(b): return rowmax_ops(b)[1] + delay_cvts([x for bb, x in first if bb == b])
    for b in range(NB):
        E(comment(f"---- switch block {b}"), stamp_now() if O_.probe == 1 else None)
        fs = range(max(F0 + 1, 4*b + 1), min(4*b + 5, 4*NB))
        mf = []; fl = []
        for f in fs:
            m, x = pm(f); mf += m; fl.append(x)
        qk = qk_first(b)
        if b == NB - 1: qk = [qk[k] for k in (0, 1, 2)] + [m for _, m in chain(b, 1, [F(4 + s_) for s_ in range(4)], 0, False)][:3] + [qk[3]]; \
                        qk.append(mfma(Sreg(b, 1), F(7), Qreg(b, 3), Sreg(b, 1)))
        sc = Sched(mf + qk)
        for k, x in enumerate(fl):
            for j, v in enumerate(x): sc.put(4*(k + 1) + j//2, v)
        h0, h1 = epi_half(0, b, 0, rl, V(176, 16), y), epi_half(0, b, 1, rl, V(192, 16), y)
        if O_.tight:
            assert npre == 24
            for bb, g0 in {0: [(2, 0), (3, len(mf) + 4)], 1: [(4, 0)], 2: [(5, 0)]}.get(b, []):
                if bb != 3: E(wait(vm=blk(aQ, 1, max(bb, 3))))
                for n, x in enumerate(qrd(bb)): sc.put(g0 + n, x)
            if 1 <= b < NB - 1: E(wait(lgkm=[Qreg(b + 1, n) for n in range(4)]))
            acc = [x for x in h0 + h1 if x.m.get("op") == "v_accvgpr_read_b32"]
            mx = rowmax_ops(b - 1)[0] if b else ls[:1]
            left = sc.pour((mx, 0), (acc, 0)); sc.emit()
            E([x for x in left if x not in acc], ls[2:] if b == 0 else None)
            h0, h1 = [[x for x in h if x not in acc or x in left] for h in (h0, h1)]
        else:
            if 1 <= b < NB - 1:
                sc.put(0, wait(vm=blk(aQ, 1, b + 1)))
                for n, x in enumerate(qrd(b + 1)): sc.put(1 + n, x)
                sc.put(11, wait(lgkm=[Qreg(b + 1, n) for n in range(4)]))
            rest = sc.pour((rowmax_ops(b - 1)[0] if b else rest, 0)); sc.emit(); E(rest, ls if b == 0 else None)
        if b == NB - 1: E([kread(15, 2, 0, s_, F(s_)) for s_ in range(4)])
        E(l_bcast(b, rc[b//3], rl), h0, site(2*b), finish(b - 1) if b else None, h1, site(2*b + 1))
    assert more.left() == 0
    E(rowmax_ops(NB - 1)[0][:4] if O_.tight else [rowmax_ops(NB - 1)[0], finish(NB - 1)])
    E(salu("s_mov_b32", sCnt, 1), wait(lgkm=[F(s_) for s_ in range(4)]), stamp_now())

def endgame():
    s = seg("end"); path.append((s, {"J": 29}))
    E(stamp_now())
    carry = []
    for ps, H in enumerate(([3, 4, 5], [0, 1, 2])):
        E(comment(f"---- pass {ps}"))
        subs = [("Q", 1, 0), ("Q", 1, 1), ("P", 0, 0), ("P", 0, 1), ("Q", 2, 0), ("Q", 2, 1), ("P", 1, 0), ("P", 1, 1), ("P", 2, 0), ("P", 2, 1)]
        FA, FB = [F(k) for k in range(4)], [F(4 + k) for k in range(4)]
        G = [[Qreg(3 + n, k) for k in range(4)] for n in range(3)]; Hh = [[A(176 + 16*n + 4*k, 4) for k in range(4)] for n in range(5)]
        fr = [FA, FB, FA, FB, FA, FB, FA] + G if ps == 0 else [FA, FB] + Hh + G
        mf = []; use = []; cend = {}; cstart = {}; pstart = {}; bstart = {}
        for i, (kind, d, x) in enumerate(subs):
            u = {}
            if kind == "Q":
                for n, b in enumerate(H):
                    cstart[(d, b, x)] = len(mf)
                    for s_, m in chain(b, x, fr[i], negM(b), n & 1): u.setdefault(s_, []).append(len(mf)); mf.append(m)
                    cend[(d, b, x)] = len(mf) - 1
            elif d == 2:
                if x == 0:
                    u2 = {}
                    for n, b in enumerate(H):
                        bstart[b] = len(mf); mf.append(rowsum(1, b))
                        for t in range(8):
                            (u if t < 4 else u2).setdefault(t & 3, []).append(len(mf))
                            mf.append(mfma(Oreg(b, t), Preg(1, b), fr[i + (t >> 2)][t & 3], Oreg(b, t)))
                else: u = u2
            else:
                par = (d + 1) & 1
                if x == 0: pstart[d] = len(mf)
                for hh in range(2):
                    for t, m in pv_pair(par, H if hh == 0 else H[::-1], 4*x + 2*hh, fr[i][2*hh:2*hh + 2], False, H[2*x + hh:2*x + hh + 1]):
                        if t is not None: u.setdefault(t & 3, []).append(len(mf))
                        mf.append(m)
            use.append(u)
        sc = Sched(mf); bar = {}
        if ps == 0:
            for d, g, keys in ((0, 9, [rV(0), rK(2)]), (1, use[4][1][-1], [rV(1), rV(2)])):
                sc.fix(wait(vm=keys), g)
                bar[d] = bar[2] = sc.fix(barrier(), g)
        pcs = [(0, q) for q in late_pieces(2) + late_pieces(3)] if ps == 0 else [(0, q) for q in late_pieces(4)] + carry
        taken = {t.gap + k for t in bar.values() for k in (-1, 0, 1)}
        NX = 7; prev_st = [None]*NX; pst = None; base = None
        for i, (h, q) in enumerate(pcs):
            g = O_.p0g + (len(mf) - 4 - O_.p0g)*i//max(1, len(pcs) - 1) if ps == 0 else int(O_.p1g + (len(mf) - 3 - O_.p1g)*(i/(len(pcs) - 1))**O_.p1e)
            while g in taken or g - 1 in taken: g += 1
            off = h*98304 + q*1024; xr = X[i % NX]
            if base is None or not 0 <= off - base < 4096:
                base = off; sc.add(salu("s_mov_b32", sSide, base), 0, g - 1, [(pst, 1, 1)])
            if ps or i >= NPRE:
                r = sc.seq(o_read(aO(h, q), q, xr), g - 60, g - 8, prev_st[i % NX])
                sc.add(wait(lgkm=[xr]), 0, g - 1, [(r, 1, 7)])
            pst = prev_st[i % NX] = sc.fix(vstore(xr, vlin, sO, sSide, off - base, O_.h0_flags if h else O_.late_flags), g)
        prev = None
        for i, (kind, d, x) in enumerate(subs):
            if i == 0 or (ps == 1 and (i == 1 or i >= 7)): continue
            tight = ps == 0 and i < 7
            for k in range(4):
                lo = (use[i - 2][k][-1] if i >= 2 else 0) if tight else (cend[(2, 3 + i - 7, 1)] if ps == 0 else 0)
                rds = [kread(29, d, x, k, fr[i][k])] if kind == "Q" else [vread(29, d, 4*x + k, a, fr[i][k]) for a in range(2)]
                bp = bar.get(d if kind == "P" else (0 if d == 2 else None))
                for r in rds: prev = sc.add(r, lo, None, [(prev, 1, 1), (bp, 1, 1)])
                if tight and kind == "P" and k & 1: sc.add(wait(lgkm=fr[i][k - 1:k + 1]), 0, min(use[i][k - 1][0], use[i][k][0]) - 1, [(prev, 1, 6)])
            if not (tight and kind == "P"): sc.add(wait(lgkm=fr[i]), 0, use[i][0][0] - 1, [(prev, 1, 6)])
        if ps == 0:
            for a in range(2):
                for k in range(4): prev = sc.add(kread(29, 1, a, k, F(4*a + k)), use[6][k][-1], None, [(prev, 1, 1)])
        grp = [([x for bb, x in sm_split(1, NE_A, END_ORDER)[1] if bb == b], 0, cstart[(1, b, 1)] - 1) for b in H if b >= O_.tl0]
        for a in range(2):
            for k, b in enumerate(H): grp.append((sm_ops(0, b, a), cend[(1, b, a)] + 4, min(pstart[1] - 2 + 2*k, cstart[(2, b, a)] - 1)))
        sc.sm(grp)
        order = [(H[0], 0), (H[1], 0), (H[0], 1), (H[2], 0), (H[1], 1), (H[2], 1)]
        sc.sm([(sm_ops(1, b, a), cend[(2, b, a)] + 4, bstart[b] - 2) for b, a in order]
              + ([(sm_ops(1, b, 1), 100, len(mf) - 1) for b in range(O_.tl0)] if ps == 0 else []), 2.4)
        sc.run()
        rc, rl, t1 = negM(H[0]), negM(H[1]), negM(H[2])[0]
        rest = sc.pour((l_ops(1, H[0], rc, t1), bstart[H[2]] + 4)); sc.emit()
        E(rest, l_flag(1, t1), stamp_now(), comment("---- epilogue"))
        dsts = [X[:4], [F(4 + i) for i in range(4)]]
        pend = []
        for k, b in enumerate(H):
            E(l_bcast(b, rc, rl))
            for th in range(2):
                ep = epi_half(1, b, th, rl, V(24, 16), V(40, 8))
                E(ep)
                E(pend[:2]); del pend[:2]
            if ps == 0 and k > 0: carry += [(1, 4*b + i) for i in range(4)]; continue
            d_ = dsts[k & 1]
            E([o_read(aO(1, 4*b + i), 4*b + i, d_[i]) for i in range(4)])
            sts = [vstore(d_[i], vlin, sO, sSide, i*1024, O_.fin_flags if ps else O_.h0_flags) for i in range(4)]
            pre = [salu("s_mov_b32", sSide, 98304 + b*4096), wait(lgkm=d_)]
            pend = [pre + [sts[0]], None, sts[1], None, sts[2], None, sts[3]] if ps == 0 else [pre + [sts[0]], sts[1], sts[2], sts[3]]
        E(pend, wait(lgkm=0), stamp_now())

def slow_path():
    sH, sB, sI, sKo, sQo = S(4), S(5), S(6), S(7), S(8)
    Qf = [V(4*s, 4) for s in range(4)]; Kf = [V(16 + 4*i, 4) for i in range(8)]; St = [V(48, 4), V(52, 4)]; Pf = V(56, 4)
    nm = V(60, 4); Vf = V(64, 4); Of = [V(68 + 4*t, 4) for t in range(8)]; L = V(100, 4); w = V(104, 8)
    ones = V(120, 4)
    vrow, vk, vv, vtr, vst_, t0, t1 = V(112), V(113), V(114), V(115), V(116), V(117), V(118)
    def S_(name, J=0):
        s = seg(name); return s
    s0 = S_("slow0")
    E(comment("---- fallback: a row sum left the safe range, redo this wave's rows with the true row max"),
      label("L_slow"), wait(vm=0, lgkm=0),
      valu("v_mbcnt_lo_u32_b32", t0, -1, 0), valu("v_mbcnt_hi_u32_b32", t0, -1, t0), valu("v_lshlrev_b32", vlin, 4, t0),
      [valu("v_mov_b32", ones[r], "0x3f803f80") for r in range(4)],
      valu("v_bfe_u32", t0, vlin, 4, 4), valu("v_lshrrev_b32", t1, 8, vlin),
      valu("v_lshlrev_b32", vrow, 8, t0), valu("v_lshl_add_u32", vst_, t1, 3, vrow), valu("v_lshl_add_u32", vrow, t1, 4, vrow),
      valu("v_lshrrev_b32", vtr, 2, t0), valu("v_lshl_add_u32", vtr, t1, 2, vtr), valu("v_lshlrev_b32", vtr, 8, vtr),
      valu("v_and_b32", t0, 3, t0), valu("v_lshl_add_u32", vtr, t0, 3, vtr), valu("v_add_u32", vtr, sStg, vtr),
      salu("s_mov_b32", sH, 0))
    s1 = S_("slow_head")
    E(label("L_sl_head"), salu("s_lshr_b32", sT0, sFlag, sH), salu("s_and_b32", sT0, sT0, 1), raw("s_cbranch_scc0 L_sl_next", "salu", {"scc"}),
      salu("s_lshl_b32", sKo, sH, 17), salu("s_mul_i32", sQo, sH, 98304), salu("s_mov_b32", sB, 0))
    s2 = S_("slow_blk")
    E(label("L_sl_blk"))
    for s in range(4): E(vload(Kf[s], vrow, sQ, sQo, 64*s))
    E(wait(vm=0))
    for s in range(4): E(scale_frag(Kf[s], Qf[s], w, None))
    E(valu("v_mov_b32", nm[0], "0xff800000"), valu("v_add_u32", vk, sKo, vrow), salu("s_mov_b32", sI, 32))
    s3 = S_("slow_p1")
    E(label("L_sl_p1"))
    for s in range(4): E(gload(Kf[s], vk, sKb, 64*s))
    E(valu("v_add_u32", vk, 4096, vk), wait(vm=0))
    for s in range(4): E(mfma(St[0], Kf[s], Qf[s], 0 if s == 0 else St[0]))
    E(salu("s_sub_u32", sI, sI, 1), scmp("s_cmp_lg_u32", sI, 0), nop(7),
      valu("v_max3_f32", nm[0], nm[0], St[0][0], St[0][1]), valu("v_max3_f32", nm[0], nm[0], St[0][2], St[0][3]),
      raw("s_cbranch_scc1 L_sl_p1", "salu", {"scc"}))
    s4 = S_("slow_mid")
    E(xlane_max(nm[0], nm[1]), [valu("v_sub_f32", nm[r], 0, nm[0]) for r in (1, 2, 3, 0)])
    for r in range(36): E(valu("v_mov_b32", V(68 + r), 0))
    E(valu("v_add_u32", vk, sKo, vrow), valu("v_add_u32", vv, sKo, vlin), valu("v_add_u32", vv, 1024 + 16384, vv), salu("s_mov_b32", sI, 16))
    s5 = S_("slow_p2")
    E(label("L_sl_p2"))
    key = (("stg", "slow"), ("Vs",), False)
    for half in range(2):
        E(salu("s_add_u32", "m0", sStg, 4096*half))
        for s in range(4): E(gload(Kf[4*half + s], vk, sKb, 64*s))
        for k in range(4): E(gdma(vv, sVb, 1024*k, key, ""))
        E(valu("v_add_u32", vk, 4096, vk), valu("v_add_u32", vv, 4096, vv))
    E(wait(vm=0))
    for a in range(2):
        for s in range(4): E(mfma(St[a], Kf[4*a + s], Qf[s], nm if s == 0 else St[a]))
    E(nop(7))
    for r in range(8): E(valu("v_exp_f32", V(48 + r), V(48 + r)))
    for r in range(4): E(valu("v_cvt_pk_bf16_f32", Pf[r], V(48 + 2*r), V(49 + 2*r)))
    E(mfma(L, ones, Pf, L))
    for t in range(8):
        for a in range(2): E(ds_read("ds_read_b64_tr_b16", Vf[2*a:2*a + 2], vtr, a*4096 + 32*t, key))
        E(wait(lgkm=0), mfma(Of[t], Vf, Pf, Of[t]), nop(1))
    E(salu("s_sub_u32", sI, sI, 1), scmp("s_cmp_lg_u32", sI, 0), raw("s_cbranch_scc1 L_sl_p2", "salu", {"scc"}))
    s6 = S_("slow_epi")
    E(nop(7), valu("v_rcp_f32", t0, L[0]), nop(0))
    for t in range(8):
        for r in range(4): E(valu("v_mul_f32", Of[t][r], t0, Of[t][r]))
        E(valu("v_cvt_pk_bf16_f32", Of[t][0], Of[t][0], Of[t][1]), valu("v_cvt_pk_bf16_f32", Of[t][1], Of[t][2], Of[t][3]),
          vstore(Of[t][0:2], vst_, sO, sQo, 32*t, "", "buffer_store_dwordx2"))
    E(salu("s_add_u32", sQo, sQo, 4096), salu("s_add_u32", sB, sB, 1), scmp("s_cmp_lt_u32", sB, NB), raw("s_cbranch_scc1 L_sl_blk", "salu", {"scc"}))
    s7 = S_("slow_next")
    E(label("L_sl_next"), salu("s_add_u32", sH, sH, 1), scmp("s_cmp_lt_u32", sH, 2), raw("s_cbranch_scc1 L_sl_head", "salu", {"scc"}))
    blkp = [s2, s3, s3, s4, s5, s5, s6]
    path2.extend((x, {"J": 0}) for x in [s0, s1] + blkp + blkp + [s7, s1] + blkp + [s7])

def finish():
    if O_.diag:
        a, b = [int(x) for x in O_.diag.split(":")]
        E(wait(vm=0), raw("s_memrealtime s[42:43]", "smem", (), rs(S(42, 2))), wait(lgkm=0), salu("s_mov_b32", S(47), S(42)),
          salu("s_sub_u32", sT0, S(STAMP0 + b), S(STAMP0 + a)), salu("s_lshr_b32", sT0, sT0, 3 if O_.stamps == 1 else 0),
          salu("s_add_u32", sT0, sT0, 7000),
          label("L_spin"), raw("s_memrealtime s[42:43]", "smem", (), rs(S(42, 2))), wait(lgkm=0),
          salu("s_sub_u32", S(42), S(42), S(46)), scmp("s_cmp_lt_u32", S(42), sT0), raw("s_cbranch_scc1 L_spin", "salu", {"scc"}))
    elif O_.stamps:
        E(wait(vm=0), raw("s_memrealtime s[42:43]", "smem", (), rs(S(42, 2))), wait(lgkm=0), salu("s_mov_b32", S(47), S(42)))
        E(salu("s_lshl_b32", sT0, S(2), 2), salu("s_add_u32", sT0, sT0, sW), salu("s_lshl_b32", sT0, sT0, 8))
        E(valu("v_mov_b32", V(1), sT0))
        for k in range(nstamp[0] + 2):
            E(valu("v_mov_b32", V(2), S(46 + k)),
              Inst(f"global_store_dword v1, v2, s[44:45] offset:{4*k}", "vst", rs(V(1), V(2), S(44, 2)), (), data=set()), nop(1))
    if O_.stamps and not O_.diag:
        E(raw("s_getreg_b32 s42, hwreg(HW_REG_XCC_ID)", "salu", (), rs(S(42))), valu("v_mov_b32", V(1), sT0), valu("v_mov_b32", V(2), S(42)),
          Inst("global_store_dword v1, v2, s[44:45] offset:252", "vst", rs(V(1), V(2), S(44, 2)), (), data=set()))
    E(scmp("s_cmp_eq_u32", sFlag, 0), raw("s_cbranch_scc1 L_end", "salu", {"scc"}), label("L_fast_end"))

def build():
    s = seg("start"); path.append((s, {"J": 0})); startup()
    for J in range(4): straight(J)
    if O_.probe == 4: E(stamp_now())
    loop4("A", 4, 2)
    for J in range(12, 15): straight(J)
    transition()
    straight(16)
    loop4("M", 17, 2)
    for J in range(25, 29): straight(J, stamp_now() if J == 28 or (J == 26 and O_.probe == 4) else None)
    endgame()
    finish()
    if O_.slow: slow_path()
    seg("exit"); E(label("L_end"))
    def trace(): return [(i, mkctx(c)) for sidx, c in path + path2 for i in segs[sidx][1]]
    for rnd in range(5):
        fix = {}
        resolve_and_check(trace(), fix=fix)
        for sg in segs:
            new = []
            for i in sg[1]:
                if i.kind == "wait" and i.m["nvm"] in (None, 63) and i.m["nlg"] in (None, 15): fix[0] = 1; continue
                if id(i) in fix: new.append(nop(fix[id(i)] - 1))
                new.append(i)
            sg[1][:] = new
        if not fix: break
    resolve_and_check(trace(), verbose=True)
    if O_.stamps:
        tr = [i for sidx, c in path for i in segs[sidx][1]]; cuts = [k for k, i in enumerate(tr) if i.kind == "smem" and "s[42:43]" in i.text]
        print("  est between stamps:", [cost_estimate(tr[a:b]) for a, b in zip(cuts, cuts[1:])])
    for name, ins in segs:
        if not name.startswith("slow"): print(f"  seg {name:8s} insts {len(ins):5d} est cycles {cost_estimate(ins):6d} nops {sum(1 for i in ins if i.kind == 'nop')}")

HEAD = """; MHA forward, B=16 H=32 Sq=384 Sk=512 D=128, bf16 in/out.  Written with the author's own generator script.
; K/V stream exactly once through a 4-slot LDS ring (LDS-DMA, one barrier per tile); Q and O pass through a per-wave
; staging area (O is transposed there so that whole 128-byte lines are stored).
; Softmax: Q is pre-scaled by log2(e)/sqrt(D).  Each row's max over its first 32 keys is subtracted through the MFMA
; C operand (so every row sum is >= 1, nothing can underflow); the row sums come from an MFMA against a ones column.
; Guard: a row sum that is NaN or >= 2^64 flags the wave, which then redoes its rows with the true row max (L_slow).
; @launch grid=(256,1,1) block=(256,1,1) lds=163840
.amdgcn_target "amdgcn-amd-amdhsa--gfx950"
.text
.globl standalone__mha_softmax__near_ridge_kernel
.p2align 8
.type standalone__mha_softmax__near_ridge_kernel,@function
standalone__mha_softmax__near_ridge_kernel:
"""
TAIL = """    s_endpgm
.section .rodata,"a"
.p2align 6
.amdhsa_kernel standalone__mha_softmax__near_ridge_kernel
  .amdhsa_next_free_vgpr 512
  .amdhsa_next_free_sgpr 102
  .amdhsa_accum_offset 256
  .amdhsa_group_segment_fixed_size 0
  .amdhsa_kernarg_size 48
  .amdhsa_user_sgpr_count 2
  .amdhsa_user_sgpr_kernarg_segment_ptr 1
  .amdhsa_system_sgpr_workgroup_id_x 1
.end_amdhsa_kernel
"""
def insert_pads(text):
    import subprocess, re, tempfile, os
    def offsets(npads):
        d = tempfile.mkdtemp(); t = text()
        t = t.replace("L_padret:", "L_padret:\n" + "".join(f"L_pad{k}:\n" for k in range(npads + 1, 40)))
        open(d + "/a.s", "w").write(t)
        subprocess.run(["clang", "-x", "assembler", "-target", "amdgcn-amd-amdhsa", "-mcpu=gfx950", "-c", d + "/a.s", "-o", d + "/a.o"], check=True)
        dis = subprocess.run(["llvm-objdump", "-d", "--mcpu=gfx950", d + "/a.o"], capture_output=True, text=True).stdout
        sym = subprocess.run(["llvm-readelf", "-s", d + "/a.o"], capture_output=True, text=True).stdout
        main = int(re.search(r"([0-9a-f]{16}) .* L_main$", sym, re.M).group(1), 16)
        ad = [(int(m.group(2), 16), m.group(1)) for m in re.finditer(r"^\s+(\S+).*// ([0-9A-F]{12}):", dis, re.M)]
        ad = [x for x in ad if x[0] >= main]
        flat = [(sg, k) for sg in segs for k in range(len(sg[1]))]
        flat = flat[[i for i, (sg, k) in enumerate(flat) if sg[1][k].text == "L_main:"][0]:]
        o = []; j = 0
        for sg, k in flat:
            x = sg[1][k]
            if x.kind == "label":
                if x.text == "L_fast_end:": break
                if x.text.startswith(".p2align") and ad[j][0] % 8: j += 1
                continue
            assert ad[j][1].startswith(x.text.split()[0][:12]), (ad[j], x.text)
            o.append((ad[j][0] - ad[0][0], sg, k)); j += 1
        return o
    page = 1; pads = []
    while True:
        off = offsets(page - 1)
        cand = [n for n, (a, sg, k) in enumerate(off) if 4096*page <= a <= 4096*page + 56]
        if not cand: break
        def score(n):
            a, sg, k = off[n]; lo = max(0, k - 8); w = sg[1][lo:k + 8]
            return cost_estimate(w[:k - lo] + [raw("pad")] + w[k - lo:]) - cost_estimate(w)
        n = min(cand, key=score); _, sg, k = off[n]
        p = raw(f"s_cbranch_vccz L_pad{page + 4}"); pads.append(p)
        sg[1][k:k] = [label(f"L_pad{page}"), p]
        page += 1
    for i, p in enumerate(pads):
        if i + 1 + 4 >= page: p.text = "s_cbranch_vccz L_padret"
    assert page > 4
    print(f"  {page - 1} page pads")

if __name__ == "__main__":
    out = sys.argv[1]
    for a in sys.argv[2:]:
        k, v = a.split("=")
        setattr(O_, k, type(getattr(O_, k))(v))
    build()
    def text(): return HEAD + "\n".join((i.text if i.kind == "label" else "    " + i.text) for _, ins in segs for i in ins) + "\n" + TAIL
    if O_.pads: insert_pads(text)
    open(out, "w").write(text())
    import subprocess
    r = subprocess.run([sys.executable, "cdna_unwritten_srd_check.py", out], capture_output=True, text=True)
    print("  check:", r.stdout.strip()[-300:], r.stderr.strip()[-300:])
```

```python
import sys, math, struct, random
from ir import *

class Opt:
    stamps = 0; diag = ""; probe = 0; force = 0
    late_flags = "sc1"; h0_flags = "sc1"; fin_flags = "sc1"; fq = "nt"; fk = "nt"; fv = "nt"
    n0 = 14
    lead0 = "80,85,90,100,123,123,123,123,123,123,123,123,123,123,145"
    qs = "001222222222221"
    tq = 4; tstep = 12; tper = 2
    olate = "26552"
    psp = 2; opt = 1; nea = 40
    g11 = 56; g12 = 16; dsp = 5; p0g = 6; p1g = 10; p1e = 1.0; tl0 = 1
    osched = "000000220000"; tsched = "111122000000"
    ne1 = 36
    pads = 2
    mq0 = 0
    tight = 1
    ps = "000011111111000"
    pvo = "bs2"; qks = 1; slow = 1
O_ = Opt()

NB = 6
def f32bits(x): return struct.unpack("<I", struct.pack("<f", x))[0]
CSCALE = f32bits(math.log2(math.e) / math.sqrt(128.0))
THRESH = f32bits(2.0 ** 64)
def bf16(x):
    u = f32bits(x); return (u + 0x7fff + ((u >> 16) & 1)) >> 16
C_HI = bf16(math.log2(math.e) / math.sqrt(128.0))
C_LO = bf16(math.log2(math.e) / math.sqrt(128.0) - struct.unpack("<f", struct.pack("<I", C_HI << 16))[0])

def Sreg(b, a): return V(8*b + 4*a, 4)
def Preg(par, b): return V(48 + 24*par + 4*b, 4)
def negM(b): return V(96 + 4*b, 4)
kaddr = [V(120 + s) for s in range(4)]
vaddr = [V(124 + t) for t in range(8)]
vkv = V(132); vsd0 = V(133); vsd1 = V(134); vlin = V(135)
qa = [V(136 + s) for s in range(4)]
ow = V(140)
ovr = V(141)
def Oreg(b, t):
    n = 8*b + t
    return V(144 + 4*n, 4) if n < 28 else A(176 + 4*(n - 28), 4)
def Qreg(b, s): return A(16*b + 4*s, 4)
def F(i): return A(96 + 4*i, 4)
def lacc(b): return A(128 + 4*(b//3), 4)
def sel(b): return A(136 + 4*(b % 3), 4)
X = [A(148 + 4*k, 4) for k in range(7)]
CS = A(164, 10)
sQ, sO = S(12, 4), S(24, 4); sKb, sVb, sVx = S(16, 2), S(22, 2), S(18, 2)
sW = S(28); sM0 = S(30); sStg = S(31); sSide = S(32); sT0 = S(33); sT1 = S(34); sT2 = S(35)
sFlag = S(36); sThr = S(37); sC = S(38, 2); sCmp = S(40, 2); sStamp = S(42, 2); sCnt = S(3); sQb = S(20, 2)
STAMP0 = 48

def aK(J): return (("ring", (J - 2) % 4, "K"), ("K", J), True)
def aV(J): return (("ring", J % 4, "V"), ("V", J), True) if J < 31 else (("ring", 2, "K"), ("V", J), True)
def rK(d): return lambda c: aK(c["J"] + d)
def rV(d): return lambda c: aV(c["J"] + d)
def aQ(h, p): return (("stg", p), ("Q", h), False)
def aO(h, p): return (("stg", p), ("O", h), False)
def blk(f, h, b): return [f(h, 4*b + i) for i in range(4)]
def mkctx(c): return lambda r: r(c) if callable(r) else r

segs = []; path = []; path2 = []; cur = None
def seg(name):
    global cur
    cur = []; segs.append([name, cur]); return len(segs) - 1
def E(*xs):
    for x in xs:
        if x is None: continue
        if isinstance(x, (list, tuple)): E(*x)
        else: cur.append(x)
nstamp = [0]
def stamp_now():
    if O_.stamps not in (1, 2): return []
    k = nstamp[0]; nstamp[0] += 1
    op = "s_memtime" if O_.stamps == 1 else "s_memrealtime"
    return [raw(f"{op} {sStamp}", "smem", (), rs(sStamp)), wait(lgkm=0), salu("s_mov_b32", S(STAMP0 + k), sStamp[0])]

MEM = ("dsr", "dsw", "dma", "vld", "vst"); VAL = ("valu", "trans")
class Task:
    count = 0
    def __init__(s, x, lo, hi, preds):
        s.x, s.lo, s.hi, s.preds, s.gap = x, lo, hi, preds, None
        s.lo0, s.hi0 = lo, hi; Task.count += 1; x.m["seq"] = Task.count
class Sched:
    def __init__(s, mf):
        s.mf = mf; s.n = len(mf); s.g = [[] for _ in mf]; s.t = []; s.done = []; s.own = set()
        s.cap = [24 if m.m["big"] else 8 for m in mf]; s.novalu = set()
    def cost(s, x): return 8 if x.kind == "trans" or x.m.get("perm") else 4
    def fits(s, g, x):
        if s.cap[g] < s.cost(x): return False
        if x.kind in MEM and any(y.kind in MEM for y in s.g[g]): return False
        if x.kind in VAL and g in s.novalu: return False
        return True
    def put(s, g, x): s.g[g].append(x); s.cap[g] -= s.cost(x)
    def fix(s, x, g):
        t = Task(x, g, g, []); t.gap = g; s.put(g, x)
        if x.kind in ("dma", "vst", "vld"): s.cap[g] = 0; s.novalu.add(g - 1); s.own.add(g)
        if x.kind in ("barrier", "dsw") or x.m.get("last"): s.cap[g] = 0; s.own.add(g)
        return t
    def add(s, x, lo=0, hi=None, preds=()):
        t = Task(x, max(lo, 0), s.n - 1 if hi is None else min(hi, s.n - 1), [p for p in preds if p[0] is not None]); s.t.append(t); return t
    def seq(s, xs, lo=0, hi=None, after=None, hard=1):
        p = after
        for x in xs: p = s.add(x, lo, hi, [(p, hard, hard)])
        return p
    def sm(s, groups, smax=2.0):
        ex = [(x, lo, hi) for ops, lo, hi in groups for x in ops if x.kind == "trans"]
        sig = smax
        while True:
            pos = []; t = -9.0; ok = True
            for x, lo, hi in ex:
                t = max(lo, t + sig); g = int(t)
                while g < s.n and (not s.fits(g, x) or (pos and g <= pos[-1])): g += 1
                if g > hi - 1: ok = False; break
                pos.append(g); t = max(t, g - 0.5)
            if ok: break
            sig -= 0.05
            assert sig > 0.3, "softmax does not fit"
        k = 0
        for ops, lo, hi in groups:
            e = []
            for x in ops:
                if x.kind == "trans":
                    t = s.fix(x, pos[k]); t.lo0, t.hi0 = lo, hi - 1; s.done.append(t); e.append(t); k += 1
                else: s.add(x, lo, min(hi, e[-1].gap + 5), [(e[-1], 1, 1), (e[-2], 1, 1)]).hi0 = min(hi, s.n - 1)
    def run(s):
        for t in reversed(s.t):
            for p, h, so in t.preds:
                if p.gap is None: p.hi = min(p.hi, t.hi - so)
        for t in s.t:
            for p, h, so in t.preds: t.lo = max(t.lo, p.lo + h)
            t.hi = max(t.hi, t.lo)
        left = list(s.t)
        for g in range(s.n):
            while True:
                rdy = [t for t in left if t.lo <= g and all(p.gap is not None and g >= p.gap + h for p, h, so in t.preds)]
                rdy = [t for t in rdy if t.hi <= g or all(g >= p.gap + so for p, h, so in t.preds)]
                rdy.sort(key=lambda t: t.hi)
                pick = next((t for t in rdy if t.hi <= g or s.fits(g, t.x)), None)
                if pick is None: break
                s.put(g, pick.x); pick.gap = g; left.remove(pick)
        assert not left, left[0].x
        s.done += s.t; s.t = []
    def polish(s, iters=60000):
        if not O_.opt: return
        rnd = random.Random(1); T = s.done; succ = {id(t): [] for t in T}
        for t in T:
            t.dp = [(p, min(so, t.gap - p.gap)) for p, h, so in t.preds]
            for p, d in t.dp:
                if id(p) in succ: succ[id(p)].append((t, d))
            t.hi0 = max(t.hi0, t.gap); t.lo0 = min(t.lo0, t.gap)
        drain = [g for g in range(s.n) if any(x.kind == "wait" and x.m["lgkm"] == 0 for x in s.g[g])]
        full = [24 if m.m["big"] else 8 for m in s.mf]; base = {g: [x for x in s.g[g] if all(x is not t.x for t in T)] for g in s.own}
        def over(g, xs):
            if g in s.own: return sum(s.cost(x) for x in xs if all(x is not y for y in base[g]))
            c = sum(s.cost(x) for x in xs) + 4*max(0, sum(x.kind in MEM for x in xs) - 1)
            o = max(0, c - full[g])
            if g in s.novalu and c >= 8 and any(x.kind in VAL for x in xs): o += 4
            return o
        ov = [over(g, s.g[g]) for g in range(s.n)]
        for it in range(iters):
            if not any(ov): break
            t = rnd.choice(T); a = t.gap
            lo = max([t.lo0] + [p.gap + d for p, d in t.dp]); hi = min([t.hi0] + [q.gap - d for q, d in succ[id(t)]])
            b = rnd.randint(max(lo, a - 6), min(hi, a + 6)) if lo <= hi else a
            if b == a or (t.x.kind == "dsr" and any(0 <= g - b < 7 and not (b < a <= g) for g in drain)): continue
            xa = [x for x in s.g[a] if x is not t.x]; xb = s.g[b] + [t.x]
            oa, ob = over(a, xa), over(b, xb); dl = oa + ob - ov[a] - ov[b]
            if dl <= 0 or rnd.random() < math.exp(-dl/(1.2*(1 - it/iters) + 1e-9)):
                s.g[a], s.g[b], ov[a], ov[b], t.gap = xa, xb, oa, ob, b
                s.cap[a] += s.cost(t.x); s.cap[b] -= s.cost(t.x)
    def pour(s, *streams):
        st = [[list(xs), lo] for xs, lo in streams]
        for g in range(s.n):
            again = True
            while again:
                again = False
                for q in st:
                    if q[0] and q[1] <= g and s.fits(g, q[0][0]): s.put(g, q[0].pop(0)); again = True; break
        return [x for q in st for x in q[0]]
    def emit(s):
        for m, g in zip(s.mf, s.g):
            key = lambda x: (3 if x.m.get("last") else (2 if x.kind in VAL else (0 if x.kind in MEM else 1)), x.m.get("seq", 1 << 30))
            E(m, sorted(g, key=key))

def kread(J, d, a, s, dst): return ds_read("ds_read_b128", dst, kaddr[s], ((J + d - 2) % 4)*16384 + a*8192, rK(d))
def vread(J, d, t, a, dst):
    return ds_read("ds_read_b64_tr_b16", dst[2*a:2*a+2], vaddr[t], (((J + d) % 4)*16384 if J + d < 31 else 32768 - 1024) + a*8192, rV(d))
def kv_group(J, d, withV=True):
    o = [salu("s_add_u32", "m0", sM0, ((J + d) % 4)*16384)]
    for im in (0, 2048):
        if withV: o.append(gdma(vkv, sVb, im + 1024, rV(d), O_.fv))
        o.append(gdma(vkv, sKb, im, rK(d + 2), O_.fk) if J + d < 30 else gdma(vkv, sVx, im, rV(d + 1), O_.fv))
    return o + [kv_step()]
def kv_step(): return valu("v_add_u32", vkv, 8192, vkv)
def q_dma_block(h, b):
    o = [salu("s_add_u32", "m0", sStg, b*4096), salu("s_mov_b32", sSide, h*98304 + b*4096)]
    for i in range(4): o.append(dma(vsd1 if i & 1 else vsd0, sQ, sSide, i*1024, aQ(h, 4*b + i), O_.fq))
    return o
def piecemeal(groups):
    st = []; pre = []
    for grp in groups:
        for x in grp:
            if x.kind in MEM: st.append(pre + [x]); pre = []
            else: pre.append(x)
    if pre: st[-1] += pre
    def more(n):
        o = st[:n]; del st[:n]; return o
    more.left = lambda: len(st)
    return more

def sm_ops(par, b, a):
    s = Sreg(b, a); p = Preg(par, b)
    return [valu("v_exp_f32", s[0], s[0]), valu("v_exp_f32", s[1], s[1]), valu("v_cvt_pk_bf16_f32", p[2*a], s[0], s[1]),
            valu("v_exp_f32", s[2], s[2]), valu("v_exp_f32", s[3], s[3]), valu("v_cvt_pk_bf16_f32", p[2*a+1], s[2], s[3])]
NE_A = 40
def sm_split(par, ne=NE_A, order=range(NB)):
    st = []
    for a in range(2):
        for b in (order if a else range(NB)): st += [(b, x) for x in sm_ops(par, b, a)]
    k = ne // 2 * 3
    return st[:k], st[k:]
def delay_cvts(xs):
    o = []; pend = []
    for x in xs:
        if x.kind == "trans":
            o.append(x)
            if pend: o.append(pend.pop(0))
        else: pend.append(x)
    return o + pend
def xlane_max(m, t):
    o = []
    for op in ("v_permlane32_swap_b32", "v_permlane16_swap_b32"):
        o += [valu("v_mov_b32", t, m), swap(op, m, t), valu("v_max_f32", m, m, t)]
    return o
def rowmax_ops(b):
    m, t = negM(b)[0], negM(b)[1]; sv = lambda r: V(8*b + r)
    o = [valu("v_max3_f32", m, sv(0), sv(1), sv(2)), valu("v_max3_f32", t, sv(3), sv(4), sv(5)),
         valu("v_max3_f32", m, m, sv(6), sv(7)), valu("v_max_f32", m, m, t)] + xlane_max(m, t)
    o += [valu("v_sub_f32", negM(b)[r], 0, m) for r in (1, 2, 3, 0)]
    return o, [valu("v_pk_add_f32", V(8*b + 2*r, 2), V(8*b + 2*r, 2), negM(b)[0:2]) for r in range(4)]
def scale_frag(x, dst, w, y, pk=True):
    o = []
    if pk:
        for r in range(4): o += [valu("v_lshlrev_b32", w[2*r], 16, x[r]), valu("v_and_b32", w[2*r+1], "0xffff0000", x[r])]
        for r in range(4): o.append(valu("v_pk_mul_f32", w[2*r:2*r+2], w[2*r:2*r+2], sC))
    else:
        for r in range(4):
            o += [valu("v_lshlrev_b32", w[2*r], 16, x[r]), valu("v_and_b32", w[2*r+1], "0xffff0000", x[r]),
                  valu("v_mul_f32", w[2*r], sC[0], w[2*r]), valu("v_mul_f32", w[2*r+1], sC[0], w[2*r+1])]
    if dst.k == "v": return o + [valu("v_cvt_pk_bf16_f32", dst[r], w[2*r], w[2*r+1]) for r in range(4)]
    for r in range(4): o.append(valu("v_cvt_pk_bf16_f32", y[r], w[2*r], w[2*r+1]))
    for r in range(4): o.append(valu("v_accvgpr_write_b32", dst[r], y[r]))
    return o
def chain(b, a, fr, c0, rev):
    return [(s, mfma(Sreg(b, a), fr[s], Qreg(b, s), c0 if n == 0 else Sreg(b, a))) for n, s in enumerate(range(3, -1, -1) if rev and O_.qks else range(4))]
def qk_first(b): return [m for a in range(2) for _, m in chain(b, a, [F(4*a + s) for s in range(4)], 0, a)]
def pv_pair(par, bs, t0, fr, init, sums):
    o = []
    if O_.pvo in ("t", "ts"):
        bs = sorted(bs)
        if 5 in sums and init: sums = []; o += [(None, rowsum(par, 5, init)), (None, rowsum(par, 4, init))]
        for k in range(2):
            for b in (bs if k == 0 or O_.pvo == "t" else bs[::-1]):
                o.append((t0 + k, mfma(Oreg(b, t0 + k), Preg(par, b), fr[k], 0 if init else Oreg(b, t0 + k))))
                if k == 0 and b in sums: o.append((None, rowsum(par, b, init)))
        return o
    for n, b in enumerate(bs):
        for k in ((0, 1) if n % 2 == 0 or O_.pvo == "pp2" else (1, 0)): o.append((t0 + k, mfma(Oreg(b, t0 + k), Preg(par, b), fr[k], 0 if init else Oreg(b, t0 + k))))
        if b in sums: o.insert(len(o) - 1, (None, rowsum(par, b, init)))
    return o
def rowsum(par, b, init=False): return mfma(lacc(b), Preg(par, b), sel(b), 0 if init and b in (0, 5) else lacc(b))

def pm(f):
    q = Qreg(f//4, f % 4); d = V(76 + 8*(f & 1), 8); t = V(92, 4)
    mf = [mfma(d[0:4], CS[2:6], q, 0), mfma(d[0:4], CS[6:10], q, d[0:4]), mfma(d[4:8], CS[0:4], q, 0), mfma(d[4:8], CS[4:8], q, d[4:8])]
    fl = []
    for hh in range(2):
        fl += [valu("v_cvt_pk_bf16_f32", t[2*hh + k], d[4*hh + 2*k], d[4*hh + 2*k + 1]) for k in range(2)]
        fl += [valu("v_accvgpr_write_b32", q[2*hh + k], t[2*hh + k]) for k in range(2)]
    return mf, fl

def startup():
    v0, vl, vi, vu, t0, t1, t2 = V(0), V(1), V(2), V(3), V(4), V(5), V(6)
    E(comment("---- setup"),
      raw("s_load_dwordx4 s[4:7], s[0:1], 0", "smem", (), rs(S(4, 4))),
      raw("s_load_dwordx4 s[8:11], s[0:1], 16", "smem", (), rs(S(8, 4))),
      scmp("s_cmp_ge_u32", S(2), 256), raw("s_cbranch_scc1 L_end", "salu", {"scc"}))
    if O_.stamps:
        E(raw("s_load_dwordx2 s[44:45], s[0:1], 40", "smem", (), rs(S(44, 2))),
          raw("s_memrealtime s[46:47]", "smem", (), rs(S(46, 2))))
    E(comment("pull the kernel's own code into L2 (one dword per 128-byte line)"),
      raw("s_getpc_b64 s[40:41]", "salu", (), rs(S(40, 2))), label("L_pc"),
      valu("v_lshlrev_b32", t0, 7, v0), valu("v_min_u32", t1, "L_fast_end-L_pc", t0),
      Inst(f"global_load_dword v7, {t1}, s[40:41]", "vld", rs(t1, S(40, 2)), rs(V(7))),
      valu("v_add_u32", t0, 32768, t0), valu("v_min_u32", t1, "L_fast_end-L_pc", t0),
      Inst(f"global_load_dword v8, {t1}, s[40:41]", "vld", rs(t1, S(40, 2)), rs(V(8))))
    E(valu("v_lshrrev_b32", t1, 6, v0), valu("v_and_b32", vl, 63, v0),
      valu("v_readfirstlane_b32", sW, t1),
      valu("v_and_b32", vi, 15, vl), valu("v_lshrrev_b32", vu, 4, vl),
      valu("v_lshlrev_b32", t0, 1, vu), valu("v_xor_b32", t0, t0, vi), valu("v_lshlrev_b32", t0, 4, t0),
      valu("v_lshl_add_u32", vsd0, vu, 8, t0), valu("v_xor_b32", vsd1, 128, vsd0),
      salu("s_and_b32", sT0, sW, 1), salu("s_lshr_b32", sT1, sW, 1),
      salu("s_lshl_b32", sT2, sT0, 7), salu("s_lshl_b32", sT0, sT0, 10), salu("s_lshl_b32", sT1, sT1, 12),
      salu("s_add_u32", sT0, sT0, sT1),
      valu("v_xor_b32", vkv, sT2, vsd0), valu("v_add_u32", vkv, sT0, vkv),
      salu("s_lshl_b32", sM0, sW, 12), salu("s_mul_i32", sStg, sW, 24576),
      salu("s_mul_i32", sT0, S(2), 196608), salu("s_add_u32", sT0, sT0, sStg), salu("s_add_u32", sStg, sStg, 65536),
      salu("s_lshl_b32", sT1, S(2), 18),
      salu("s_mov_b32", sQ[2], 98304 + 24576), salu("s_mov_b32", sQ[3], "0x20000"),
      wait(lgkm=0),
      salu("s_add_u32", sKb[0], S(6), sT1), salu("s_addc_u32", sKb[1], S(7), 0),
      salu("s_add_u32", sQ[0], S(4), sT0), salu("s_addc_u32", sQ[1], S(5), 0), salu("s_and_b32", sQ[1], sQ[1], "0xffff"))
    g0 = kv_group(0, 0); g0 = [g0[k] for k in (0, 1, 3, 2, 4, 5)]
    more = piecemeal([kv_group(0, -2, False)] + [q_dma_block(0, b) for b in range(NB)] + [kv_group(0, -1, False), g0])
    E(more(10))
    if O_.pads == 2: E(raw("s_branch L_main"), raw(".p2align 12", "label"), label("L_main"))
    E(salu("s_add_u32", sVb[0], S(8), sT1), salu("s_addc_u32", sVb[1], S(9), 0),
      salu("s_sub_u32", sVb[0], sVb[0], 1024 + 16384), salu("s_subb_u32", sVb[1], sVb[1], 0),
      salu("s_add_u32", sO[0], S(10), sT0), salu("s_addc_u32", sO[1], S(11), 0), salu("s_and_b32", sO[1], sO[1], "0xffff"),
      salu("s_mov_b32", sO[2], 98304 + 24576), salu("s_mov_b32", sO[3], "0x20000"),
      salu("s_add_u32", sVx[0], sVb[0], 1024 + 8192), salu("s_addc_u32", sVx[1], sVb[1], 0),
      salu("s_mov_b32", sC[0], hex(CSCALE)), salu("s_mov_b32", sC[1], hex(CSCALE)),
      salu("s_mov_b32", sThr, hex(THRESH)), salu("s_mov_b32", sFlag, O_.force),
      salu("s_add_u32", sQb[0], sQ[0], 98304), salu("s_addc_u32", sQb[1], sQ[1], 0))
    E(valu("v_and_b32", t0, 7, vi), valu("v_lshlrev_b32", t0, 1, t0), valu("v_xor_b32", t0, t0, vu), valu("v_lshlrev_b32", t0, 4, t0),
      valu("v_lshl_add_u32", t2, vi, 8, t0), valu("v_add_u32", qa[0], sStg, t2),
      valu("v_and_b32", t1, 3, vi), valu("v_lshl_add_u32", t0, t1, 8, t0),
      valu("v_lshrrev_b32", t1, 3, vi), valu("v_lshl_add_u32", t0, t1, 11, t0),
      valu("v_bfe_u32", t1, vi, 2, 1), valu("v_lshl_add_u32", kaddr[0], t1, 12, t0))
    for s in range(1, 4): E(valu("v_xor_b32", kaddr[s], s << 6, kaddr[0]), valu("v_xor_b32", qa[s], s << 6, qa[0]))
    E(valu("v_lshrrev_b32", t1, 2, vi), valu("v_and_b32", t2, 1, vu), valu("v_lshl_add_u32", t0, t2, 2, t1),
      valu("v_lshlrev_b32", t0, 5, t0), valu("v_lshl_add_u32", t0, t1, 8, t0), valu("v_lshl_add_u32", t0, t2, 12, t0),
      valu("v_lshrrev_b32", t2, 1, vu), valu("v_lshl_add_u32", t0, t2, 11, t0),
      valu("v_and_b32", t1, 3, vi), valu("v_lshl_add_u32", t0, t1, 3, t0), valu("v_add_u32", vaddr[0], 1024, t0))
    for t in range(1, 8): E(valu("v_xor_b32", vaddr[t], t << 5, vaddr[0]))
    E(valu("v_mov_b32", t2, "0x3f803f80"))
    for k in range(3):
        E(Inst(f"v_cmp_eq_u32 vcc, {k}, {vi}", "valu", rs(vi), {"vcc"}), nop(1), Inst(f"v_cndmask_b32 {t0}, 0, {t2}, vcc", "valu", rs(t2, "vcc"), rs(t0)),
          [valu("v_accvgpr_write_b32", sel(k)[r], t0) for r in range(4)])
    E(valu("v_lshrrev_b32", t0, 1, vi), valu("v_lshlrev_b32", t1, 1, vu), valu("v_sub_u32", t0, t0, t1),
      valu("v_and_b32", t1, 1, vi), valu("v_lshlrev_b32", t1, 4, t1))
    for k in range(2):
        E(Inst(f"v_cmp_eq_u32 vcc, {k}, {t0}", "valu", rs(t0), {"vcc"}))
        for j, c in enumerate((C_HI, C_LO)):
            E(valu("v_mov_b32", t2, hex(c)), valu("v_lshlrev_b32", t2, t1, t2), Inst(f"v_cndmask_b32 {t2}, 0, {t2}, vcc", "valu", rs(t2, "vcc"), rs(t2)),
              valu("v_accvgpr_write_b32", CS[2 + 4*j + k], t2))
    E([valu("v_accvgpr_write_b32", CS[k], 0) for k in (0, 1, 4, 5, 8, 9)])
    E(valu("v_lshlrev_b32", t0, 3, vl), valu("v_add_u32", ow, sStg, t0),
      valu("v_bfe_u32", t1, vi, 1, 1), valu("v_lshl_add_u32", t0, t1, 2, vu), valu("v_lshlrev_b32", t0, 9, t0),
      valu("v_and_b32", t1, 1, vi), valu("v_lshl_add_u32", t0, t1, 6, t0), valu("v_lshrrev_b32", t1, 2, vi),
      valu("v_lshl_add_u32", t0, t1, 3, t0), valu("v_add_u32", ovr, sStg, t0),
      valu("v_and_b32", t2, 3, vi), valu("v_lshlrev_b32", t0, 5, t2), valu("v_lshl_add_u32", t0, vu, 8, t0),
      valu("v_and_b32", t2, 1, t1), valu("v_lshl_add_u32", t0, t2, 4, t0), valu("v_lshrrev_b32", t2, 1, t1), valu("v_lshl_add_u32", vlin, t2, 7, t0))
    E(more(O_.n0 - 10), stamp_now())
    E(comment("---- first K tile"), wait(vm=[aK(0)]), barrier())
    for a in range(2):
        for s in range(4): E(kread(0, 0, a, s, F(4*a + s)))
    if O_.pads:
        E(comment("visit the start of each code page once (wave w: pages w+1, w+5, ..); every stop jumps straight on while vcc = 0"),
          raw("s_mov_b64 vcc, 0"))
        for w in range(3): E(scmp("s_cmp_eq_u32", sW, w), raw(f"s_cbranch_scc1 L_pad{w + 1}", "salu", {"scc"}))
        E(raw("s_branch L_pad4"), [raw(".p2align 12", "label"), label("L_main")] if O_.pads == 1 else None, label("L_padret"), raw("s_mov_b64 vcc, -1"))
    rawr = lambda s: V(72 + 4*s, 4)
    for b in range(NB):
        E(comment(f"---- start-up block {b}"), wait(vm=blk(aQ, 0, b)), stamp_now() if O_.probe == 2 else None)
        if O_.mq0:
            for s in range(4): E(ds_read("ds_read_b128", Qreg(b, s), qa[s], b*4096, blk(aQ, 0, b)))
            E(more(2), wait(lgkm=[Qreg(b, 0)] + ([F(k) for k in range(8)] if b == 0 else [])))
            pms = [pm(4*b + n) for n in range(4)]
            sc = Sched([m for mf, _ in pms for m in mf])
            sc.put(2, wait(lgkm=0))
            for n in range(3):
                for j, v in enumerate(pms[n][1]): sc.put(4*(n + 1) + j//2, v)
            sc.emit(); E(more(2), pms[3][1])
        else:
            for s in range(4): E(ds_read("ds_read_b128", rawr(s), qa[s], b*4096, blk(aQ, 0, b)))
            for s in range(4):
                E(wait(lgkm=[rawr(s)] + ([F(k) for k in range(8)] if b == 0 else [])))
                E(more(1), scale_frag(rawr(s), Qreg(b, s), V(88, 8), Sreg(b, s & 1)))
        qk = qk_first(b)
        if b < NB - 1: E(qk, rowmax_ops(b), delay_cvts(sm_ops(0, b, 0) + sm_ops(0, b, 1)))
    assert more.left() == 0
    E(qk[:4], wait(vm=[aK(1)]), barrier())
    for s in range(4): E(qk[4 + s], kread(0, 1, 0, s, F(s)))
    E(salu("s_mov_b32", sSide, sStg), salu("s_mov_b32", sCnt, 1), rowmax_ops(NB - 1)[0][:4], wait(lgkm=[F(s) for s in range(4)]), stamp_now())

def o_read(key, p, dst):
    return [ds_read("ds_read_b64_tr_b16", dst[2*hi:2*hi + 2], ovr, (p >> 2)*4096 + (p & 3)*128 + hi*32, key) for hi in range(2)]
def pv_mfmas(par, frags, sums_first=False, init=False):
    mf = [rowsum(par, b) for b in range(NB)] if sums_first else []; st = []
    for h in range(4):
        st.append(len(mf))
        sums = [] if sums_first else [(0, 1), (5, 4), (2,), (3,)][h]
        mf += [m for _, m in pv_pair(par, range(NB) if h % 2 == 0 else range(NB - 1, -1, -1), 2*h, frags[2*h:2*h + 2], init, sums)]
    return mf, st
def late_pieces(k):
    cnt = [int(c, 16) for c in O_.olate]; ne = sum(map(int, O_.osched)); assert sum(cnt) == 24 - ne and sum(cnt[:4]) >= 12
    return (list(range(12, 24)) + list(range(ne, 12)))[sum(cnt[:k]):sum(cnt[:k + 1])]
def kv_plan(J):
    if J >= 16: return [(3, 27)] if J < 28 else []
    o = []
    for k, lead in enumerate(int(x) for x in O_.lead0.split(",")):
        Jk, g = divmod(102*(k + 1) + 23 - lead, 102)
        assert 2 <= g <= 82
        if Jk == J: o.append((k + 1 - J, g))
    return o
END_ORDER = (2, 3, 4, 5, 0, 1)
NPRE = 2
VF15 = [Qreg(4 + t//4, t % 4) for t in range(8)]

def iteration(J, ctl=()):
    par = J & 1; j = J % 16
    mf = [m for a in range(2) for b in range(NB) for _, m in chain(b, a, [F(4*a + s) for s in range(4)], negM(b), b & 1)]
    pv, pst = pv_mfmas(par, [F(t) for t in range(8)], init=(j == 0))
    mf += pv; pst = [48 + x for x in pst]
    sc = Sched(mf)
    for x in ctl: sc.fix(x, 101)
    if ctl: sc.cap[101] = 0
    for s in range(4): sc.fix(kread(J, 1, 1, s, F(4 + s)), [1, 6, 11, 13][s])
    tb2 = None
    if J == 0:
        sc.fix(wait(vm=[rV(0)], lgkm=0), 23); tb = sc.fix(barrier(), 23)
        sc.fix(wait(vm=[rK(2)]), 72); tb2 = sc.fix(barrier(), 72)
    else:
        sc.fix(wait(vm=[rV(0), rK(2)], lgkm=0), 23); tb = sc.fix(barrier(), 23)
    if J == 0 or (J == 16 and O_.tight):
        b = NB - 1; t = sc.seq(rowmax_ops(b)[0][4:], 0, 8, hard=0)
        sub = [sc.add(valu("v_add_f32", V(8*b + r), V(8*b + r), negM(b)[1]), 0, 10 if r < 4 else 22, [(t, 0, 0)]) for r in range(8)]
        sc.run(); sc.done = []
    plan = kv_plan(J); busy = []
    for n_, (d, g0) in enumerate(plan):
        ops = kv_group(J, d); g = g0
        while sc.cap[g - 2] < 4: g += 1
        sc.fix(ops[0], g - 2)
        for x in ops[1:5]:
            while sc.cap[g] < 8 or sc.cap[g - 1] == 0 or sc.cap[g + 1] == 0 or any(y.kind in VAL for y in sc.g[g - 1]): g += 1
            td = sc.fix(x, g); g += O_.dsp
        busy.append((g0 - 3, td.gap + 1))
        sc.add(ops[5], 0, 100 if n_ + 1 == len(plan) else plan[n_ + 1][1] - 1, [(td, 1, 1)])
    nq = int(O_.qs[J]) if J < 15 else 0
    if nq:
        p0 = sum(map(int, O_.qs[:J])); g0 = max([50] + [hi + 6 for lo, hi in busy if lo < 50])
        assert all(hi < g0 - 2 or lo > g0 + 12*(nq - 1) for lo, hi in busy)
        tm = sc.fix(salu("s_mov_b32", "m0", sSide), g0 - 2)
        for k in range(nq):
            t = sc.fix(gdma(vsd1 if (p0 + k) & 1 else vsd0, sQb, k*1024, (lambda k: lambda c: aQ(1, sum(map(int, O_.qs[:c["J"]])) + k))(k), O_.fq), g0 + 12*k)
        sc.add(salu("s_add_u32", sSide, sSide, 1024*nq), 0, 99, [(tm, 1, 1)])
        g = t.gap + 1
        while sc.cap[g] < 8: g += 1
        sc.fix(salu("s_add_u32", sQb[0], sQb[0], 1024*nq), g); sc.fix(salu("s_addc_u32", sQb[1], sQb[1], 0), g); sc.own.add(g)
    npz = int(O_.ps[J]) if J < 15 else 0
    if npz:
        tot = lambda a, b_: sum(map(int, O_.ps[a:b_]))
        rel = tot(4, J) if J < 12 else tot(12, J)
        raw_, tt = V(142, 2), V(138, 2); p = None; span = 96//(2*npz)
        for k in range(2*npz):
            key = (lambda k: lambda c: aQ(1, tot(0, c["J"]) + k//2))(k)
            off = (rel + k//2)*1024 + (k & 1)*512; lo = 2 + span*k; gw = lo + span - 1
            while sc.cap[gw] < 8 or sc.cap[gw + 1] == 0 or gw in sc.novalu: gw -= 1
            if k % 2 == 0: p = sc.add(wait(vm=[key]), lo, None, [(p, 1, 1)])
            p = sc.add(ds_read("ds_read_b64", raw_, ow, off, key), lo, None, [(p, 1, 1)])
            p = sc.add(wait(lgkm=[raw_]), lo, None, [(p, 1, 7)])
            for r in range(2):
                ops = [valu("v_lshlrev_b32", tt[0], 16, raw_[r]), valu("v_and_b32", tt[1], "0xffff0000", raw_[r]), valu("v_mul_f32", tt[0], sC[0], tt[0]),
                       valu("v_mul_f32", tt[1], sC[0], tt[1]), valu("v_cvt_pk_bf16_f32", raw_[r], tt[0], tt[1])]
                for i, x in enumerate(ops): p = sc.add(x, lo, gw - 1 - (9 - 5*r - i)*O_.psp, [(p, 1 if i + r == 0 else 0, 1 if i + r == 0 else 0)])
            p = sc.fix(ds_write("ds_write_b64", ow, raw_, off, key), gw); sc.cap[gw] = 0
        if J == 7: sc.add(valu("v_add_u32", ow, 1024*tot(4, 8), ow), 0, 100, [(p, 1, 1)])
    if J == 14 and int(O_.ps):
        sc.add(valu("v_subrev_u32", ow, 1024*sum(map(int, O_.ps[:12])), ow), 0, 40)
        for s in (2, 3): sc.add(valu("v_xor_b32", qa[s], s << 6, qa[0]), 0, 40)
    if J in (27, 28):
        ps = late_pieces(J - 27); g0 = [O_.g11, O_.g12][J - 27]
        base = t = None
        for i, p in enumerate(ps):
            g = g0 + (96 - g0)*i//max(1, len(ps) - 1)
            while g in (22, 23, 24) or sc.cap[g] < 8 or sc.cap[g - 1] == 0 or sc.cap[g + 1] == 0: g += 1
            t = sc.seq(o_read(aO(0, p), p, X[i]), 0, g - 8, t); sc.add(wait(lgkm=[X[i]]), 0, g - 1, [(t, 1, 6)])
            if base is None or not 0 <= p - base < 4: base = p; sc.fix(salu("s_mov_b32", sSide, p*1024), g - 1)
            sc.fix(vstore(X[i], vlin, sO, sSide, (p - base)*1024, O_.late_flags), g)
    p = tb
    for t in range(8):
        for a in range(2): p = sc.add(vread(J, 0, t, a, F(t)), 24 if t < 4 else 48, None, [(p, 1, 1)])
        if t in (1, 3): sc.add(wait(lgkm=[F(t - 1), F(t)]), 0, pst[t//2] - 1, [(p, 1, 8)])
    sc.add(wait(lgkm=[F(4), F(5), F(6), F(7)]), 0, pst[2] - 1, [(p, 1, 8)])
    for s in range(4): p = sc.add(kread(J, 2, 0, s, F(s)), pst[2], None if J != 14 else 90, [(p, 1, 1), (tb2, 1, 1)])
    if J == 28:
        pre = late_pieces(2)[:NPRE]
        p = sc.seq([x for i, q in enumerate(pre) for x in o_read(aO(0, q), q, X[i])], 60, None, p)
    if J != 14: sc.add(wait(lgkm=[F(s) for s in range(4)] + (X[:NPRE] if J == 28 else [])), 0, 101 if J == 28 else 100, [(p, 1, 8 if J != 28 else 5)])
    else:
        sc.fix(wait(vm=[rV(1), rK(3)] + blk(aQ, 1, 0)), 92); t = sc.fix(barrier(), 92)
        for k in range(4): sc.fix(vread(J, 1, k//2, k & 1, VF15[k//2]), 93 + 2*k)
    nxt = lambda ne: [x for _, x in sm_split(1 - par, ne, END_ORDER if J == 28 else range(NB))[0]]
    if J == 0:
        b = NB - 1
        sc.sm([(sm_ops(0, b, 0), sub[3].gap + 1, 19), (sm_ops(0, b, 1), sub[7].gap + 1, 43), (nxt(NE_A), 24, 100)])
    elif J == 16 and O_.tight:
        tail = sm_split(0, O_.ne1)[1]; b = NB - 1
        sc.sm([(sm_ops(0, b, 0), sub[3].gap + 1, 19)] + [([x for bb, x in tail if bb == k], sub[7].gap + 1, 23 + 4*k) for k in range(NB) if any(bb == k for bb, _ in tail)]
              + [(nxt(NE_A), 24, 100)])
    elif J == 16:
        tail = sm_split(0, O_.ne1)[1]
        sc.sm([([x for bb, x in tail if bb == b], 0, 23 + 4*b) for b in range(NB) if any(bb == b for bb, _ in tail)] + [(nxt(NE_A), 24, 100)])
    elif J == 14:
        sc.sm([([x for _, x in sm_split(par)[1]], 0, 30)] + [(sm_ops(1, b, a), 24*a + 4*b + 8, 101) for a in range(2) for b in range(NB)])
    else:
        sc.sm([([x for _, x in sm_split(par)[1]], 0, 30)], 2.4)
        sc.sm([(nxt(NE_A), 24, 100)])
    for t in sc.done + sc.t:
        if t.x.m.get("op") in ("v_exp_f32", "v_cvt_pk_bf16_f32") and t.lo0 == 24:
            r = min(int(x[1:]) for x in t.x.rd); t.lo0 = 24*((r >> 2) & 1) + 4*(r >> 3) + (9 if t.x.kind == "trans" else 10)
    sc.run(); sc.polish(); sc.emit()

def straight(J, *pre):
    s = seg(f"J{J}"); path.append((s, {"J": J})); E(comment(f"---- head {J//16}, key tile {J % 16}"), pre); iteration(J)
def loop4(name, J0, passes):
    ss = []
    for k in range(4):
        ss.append(seg(f"{name}{k}"))
        if k == 0: E(raw(".p2align 3", "label"), label(f"L_{name}"))
        d = salu("s_sub_u32", sCnt, sCnt, 1); d.m["last"] = True
        iteration(J0 + k, [d, raw(f"s_cbranch_scc0 L_{name}", "salu", {"scc"}, (), last=True)] if k == 3 else [])
        for n in range(1, passes): assert kv_plan(J0 + k) == kv_plan(J0 + k + 4*n) and (J0 > 15 or (O_.qs[J0 + k], O_.ps[J0 + k]) == (O_.qs[J0 + k + 4*n], O_.ps[J0 + k + 4*n]))
    assert J0 > 15 or sum(map(int, O_.qs[J0:J0 + 4])) % 2 == 0
    for n in range(4*passes): path.append((ss[n % 4], {"J": J0 + n}))

def l_ops(h, b0, r, t1):
    o = [valu("v_accvgpr_read_b32", r[k], lacc(b0)[k]) for k in range(4)]
    o += [valu("v_add_f32", t1, r[0], r[1]), valu("v_add_f32", t1, t1, r[2]), valu("v_add_f32", t1, t1, r[3])]
    o += [valu("v_rcp_f32", r[k], r[k]) for k in range(4)]
    return o
def l_flag(h, t1):
    return [Inst(f"v_cmp_nlt_f32 {sCmp}, {t1}, {sThr}", "valu", rs(t1, sThr), rs(sCmp)), nop(0),
            scmp("s_cmp_lg_u64", sCmp, 0), salu("s_cselect_b32", sT0, 1 << h, 0), salu("s_or_b32", sFlag, sFlag, sT0)]
def l_bcast(b, r, dst):
    o = [valu("v_mov_b64_dpp", dst[2*k:2*k + 2], r[2*k:2*k + 2], mods=f"row_newbcast:{b % 3} row_mask:0xf bank_mask:0xf") for k in range(2)]
    for x in o: x.m["dpp"] = True
    return o
def epi_half(h, b, th, rl, tmp, y):
    r0 = Oreg(b, 4*th); w = V(r0.i, 16) if r0.k == "v" else tmp; o = []
    if r0.k == "a": o += [valu("v_accvgpr_read_b32", w[i], A(r0.i + i)) for i in range(16)]
    o += [valu("v_pk_mul_f32", w[2*i:2*i + 2], w[2*i:2*i + 2], rl[2*(i & 1):2*(i & 1) + 2]) for i in range(8)]
    o += [valu("v_cvt_pk_bf16_f32", y[2*r + k], w[8*k + r], w[8*k + 4 + r]) for r in range(4) for k in range(2)]
    o += [ds_write2st64(ow, y[4*k:4*k + 2], y[4*k + 2:4*k + 4], 8*b + 4*th + 2*k, 8*b + 4*th + 2*k + 1, blk(aO, h, b)) for k in range(2)]
    return o

def transition():
    s = seg("trans"); path.append((s, {"J": 15}))
    E(stamp_now(), comment("---- head 0: last PV; switch to head 1"))
    vf = VF15
    F0 = sum(map(int, O_.ps)); assert F0 % 4 == 0 and F0 <= 12 and O_.ps[:4] == "0000" and O_.ps[14] == "0"
    raw0 = V(16, 4)
    def qrd(b): return [ds_read("ds_read_b128", Qreg(b, n), qa[n], b*4096, blk(aQ, 1, b)) for n in range(4) if 4*b + n != F0]
    rc = [negM(4), negM(5)]
    rl = V(72, 4); y = V(76, 8)
    npre = sum(map(int, O_.qs)); assert npre >= 8
    more = piecemeal([[x for k, x in enumerate(q_dma_block(1, b)) if k < 2 or 4*b + k - 2 >= npre] for b in range(npre//4, NB)]
                     + [kv_group(15, d) for d in (1, 2, 3)])
    vr = [vread(15, 0, t, a, vf[t]) for t in range(8) for a in range(2)]
    pv, pst = pv_mfmas(1, vf, True)
    sc = Sched(pv)
    g = 8
    for grp in more(O_.tq):
        for i, x in enumerate(grp):
            if x.kind not in MEM: sc.fix(x, g - 3 if len(grp) - i > 3 else g - 2)
            else: sc.fix(x, g); g += O_.tstep
    sc.add(wait(lgkm=vf[:2]), 4, pst[0] - 1)
    p = sc.seq([wait(vm=blk(aQ, 1, F0//4)), ds_read("ds_read_b128", raw0, qa[0], F0*1024, blk(aQ, 1, F0//4))], 0); wq = sc.add(wait(lgkm=[raw0]), 0, 10, [(p, 1, 6)])
    p = sc.seq(vr[4:8], 0, None, p); sc.add(wait(lgkm=vf[2:4]), 0, pst[1] - 1, [(p, 1, 6)])
    p = sc.seq(vr[8:], 0, None, p); sc.add(wait(lgkm=vf[4:]), 0, pst[2] - 1, [(p, 1, 6)])
    p = sc.seq([kread(15, 1, 1, k, F(4 + k)) for k in range(4)] + qrd(0) + [wait(vm=blk(aQ, 1, 1))] + qrd(1), 24, 46, p)
    sc.fix(wait(lgkm=0), 53); sc.fix(barrier(), 53)
    sc.run()
    lv = l_ops(0, 0, rc[0], V(60)) + l_ops(0, 3, rc[1], V(61)) + [valu("v_add_f32", V(60), V(60), V(61))]; ls = l_flag(0, V(60))
    st = scale_frag(raw0, Qreg(F0//4, 0), V(0, 8), V(8, 4), pk=False)
    rest = sc.pour((lv, 10), (st, wq.gap + 1)); sc.emit(); E(rest); rest = []
    def site(k):
        c = [int(x) for x in O_.osched] + [0]; p0 = sum(c[:k]); o = more(int(O_.tsched[k]) if O_.tsched else O_.tper)
        if c[k]:
            o += [salu("s_mov_b32", sT1, p0*1024), wait(lgkm=[X[(p0 + i) % 4] for i in range(c[k])])]
            o += [vstore(X[(p0 + i) % 4], vlin, sO, sT1, i*1024, O_.late_flags) for i in range(c[k])]
        p1 = p0 + c[k]; assert (p1 + c[k + 1] + 3)//4 <= (k + 1)//2 or not c[k + 1]
        return o + [o_read(aO(0, p), p, X[p % 4]) for p in range(p1, p1 + c[k + 1])]
    first = sm_split(0, O_.ne1)[0]
    def finish(b): return rowmax_ops(b)[1] + delay_cvts([x for bb, x in first if bb == b])
    for b in range(NB):
        E(comment(f"---- switch block {b}"), stamp_now() if O_.probe == 1 else None)
        fs = range(max(F0 + 1, 4*b + 1), min(4*b + 5, 4*NB))
        mf = []; fl = []
        for f in fs:
            m, x = pm(f); mf += m; fl.append(x)
        qk = qk_first(b)
        if b == NB - 1: qk = [qk[k] for k in (0, 1, 2)] + [m for _, m in chain(b, 1, [F(4 + s_) for s_ in range(4)], 0, False)][:3] + [qk[3]]; \
                        qk.append(mfma(Sreg(b, 1), F(7), Qreg(b, 3), Sreg(b, 1)))
        sc = Sched(mf + qk)
        for k, x in enumerate(fl):
            for j, v in enumerate(x): sc.put(4*(k + 1) + j//2, v)
        h0, h1 = epi_half(0, b, 0, rl, V(176, 16), y), epi_half(0, b, 1, rl, V(192, 16), y)
        if O_.tight:
            assert npre == 24
            for bb, g0 in {0: [(2, 0), (3, len(mf) + 4)], 1: [(4, 0)], 2: [(5, 0)]}.get(b, []):
                if bb != 3: E(wait(vm=blk(aQ, 1, max(bb, 3))))
                for n, x in enumerate(qrd(bb)): sc.put(g0 + n, x)
            if 1 <= b < NB - 1: E(wait(lgkm=[Qreg(b + 1, n) for n in range(4)]))
            acc = [x for x in h0 + h1 if x.m.get("op") == "v_accvgpr_read_b32"]
            mx = rowmax_ops(b - 1)[0] if b else ls[:1]
            left = sc.pour((mx, 0), (acc, 0)); sc.emit()
            E([x for x in left if x not in acc], ls[2:] if b == 0 else None)
            h0, h1 = [[x for x in h if x not in acc or x in left] for h in (h0, h1)]
        else:
            if 1 <= b < NB - 1:
                sc.put(0, wait(vm=blk(aQ, 1, b + 1)))
                for n, x in enumerate(qrd(b + 1)): sc.put(1 + n, x)
                sc.put(11, wait(lgkm=[Qreg(b + 1, n) for n in range(4)]))
            rest = sc.pour((rowmax_ops(b - 1)[0] if b else rest, 0)); sc.emit(); E(rest, ls if b == 0 else None)
        if b == NB - 1: E([kread(15, 2, 0, s_, F(s_)) for s_ in range(4)])
        E(l_bcast(b, rc[b//3], rl), h0, site(2*b), finish(b - 1) if b else None, h1, site(2*b + 1))
    assert more.left() == 0
    E(rowmax_ops(NB - 1)[0][:4] if O_.tight else [rowmax_ops(NB - 1)[0], finish(NB - 1)])
    E(salu("s_mov_b32", sCnt, 1), wait(lgkm=[F(s_) for s_ in range(4)]), stamp_now())

def endgame():
    s = seg("end"); path.append((s, {"J": 29}))
    E(stamp_now())
    carry = []
    for ps, H in enumerate(([3, 4, 5], [0, 1, 2])):
        E(comment(f"---- pass {ps}"))
        subs = [("Q", 1, 0), ("Q", 1, 1), ("P", 0, 0), ("P", 0, 1), ("Q", 2, 0), ("Q", 2, 1), ("P", 1, 0), ("P", 1, 1), ("P", 2, 0), ("P", 2, 1)]
        FA, FB = [F(k) for k in range(4)], [F(4 + k) for k in range(4)]
        G = [[Qreg(3 + n, k) for k in range(4)] for n in range(3)]; Hh = [[A(176 + 16*n + 4*k, 4) for k in range(4)] for n in range(5)]
        fr = [FA, FB, FA, FB, FA, FB, FA] + G if ps == 0 else [FA, FB] + Hh + G
        mf = []; use = []; cend = {}; cstart = {}; pstart = {}; bstart = {}
        for i, (kind, d, x) in enumerate(subs):
            u = {}
            if kind == "Q":
                for n, b in enumerate(H):
                    cstart[(d, b, x)] = len(mf)
                    for s_, m in chain(b, x, fr[i], negM(b), n & 1): u.setdefault(s_, []).append(len(mf)); mf.append(m)
                    cend[(d, b, x)] = len(mf) - 1
            elif d == 2:
                if x == 0:
                    u2 = {}
                    for n, b in enumerate(H):
                        bstart[b] = len(mf); mf.append(rowsum(1, b))
                        for t in range(8):
                            (u if t < 4 else u2).setdefault(t & 3, []).append(len(mf))
                            mf.append(mfma(Oreg(b, t), Preg(1, b), fr[i + (t >> 2)][t & 3], Oreg(b, t)))
                else: u = u2
            else:
                par = (d + 1) & 1
                if x == 0: pstart[d] = len(mf)
                for hh in range(2):
                    for t, m in pv_pair(par, H if hh == 0 else H[::-1], 4*x + 2*hh, fr[i][2*hh:2*hh + 2], False, H[2*x + hh:2*x + hh + 1]):
                        if t is not None: u.setdefault(t & 3, []).append(len(mf))
                        mf.append(m)
            use.append(u)
        sc = Sched(mf); bar = {}
        if ps == 0:
            for d, g, keys in ((0, 9, [rV(0), rK(2)]), (1, use[4][1][-1], [rV(1), rV(2)])):
                sc.fix(wait(vm=keys), g)
                bar[d] = bar[2] = sc.fix(barrier(), g)
        pcs = [(0, q) for q in late_pieces(2) + late_pieces(3)] if ps == 0 else [(0, q) for q in late_pieces(4)] + carry
        taken = {t.gap + k for t in bar.values() for k in (-1, 0, 1)}
        NX = 7; prev_st = [None]*NX; pst = None; base = None
        for i, (h, q) in enumerate(pcs):
            g = O_.p0g + (len(mf) - 4 - O_.p0g)*i//max(1, len(pcs) - 1) if ps == 0 else int(O_.p1g + (len(mf) - 3 - O_.p1g)*(i/(len(pcs) - 1))**O_.p1e)
            while g in taken or g - 1 in taken: g += 1
            off = h*98304 + q*1024; xr = X[i % NX]
            if base is None or not 0 <= off - base < 4096:
                base = off; sc.add(salu("s_mov_b32", sSide, base), 0, g - 1, [(pst, 1, 1)])
            if ps or i >= NPRE:
                r = sc.seq(o_read(aO(h, q), q, xr), g - 60, g - 8, prev_st[i % NX])
                sc.add(wait(lgkm=[xr]), 0, g - 1, [(r, 1, 7)])
            pst = prev_st[i % NX] = sc.fix(vstore(xr, vlin, sO, sSide, off - base, O_.h0_flags if h else O_.late_flags), g)
        prev = None
        for i, (kind, d, x) in enumerate(subs):
            if i == 0 or (ps == 1 and (i == 1 or i >= 7)): continue
            tight = ps == 0 and i < 7
            for k in range(4):
                lo = (use[i - 2][k][-1] if i >= 2 else 0) if tight else (cend[(2, 3 + i - 7, 1)] if ps == 0 else 0)
                rds = [kread(29, d, x, k, fr[i][k])] if kind == "Q" else [vread(29, d, 4*x + k, a, fr[i][k]) for a in range(2)]
                bp = bar.get(d if kind == "P" else (0 if d == 2 else None))
                for r in rds: prev = sc.add(r, lo, None, [(prev, 1, 1), (bp, 1, 1)])
                if tight and kind == "P" and k & 1: sc.add(wait(lgkm=fr[i][k - 1:k + 1]), 0, min(use[i][k - 1][0], use[i][k][0]) - 1, [(prev, 1, 6)])
            if not (tight and kind == "P"): sc.add(wait(lgkm=fr[i]), 0, use[i][0][0] - 1, [(prev, 1, 6)])
        if ps == 0:
            for a in range(2):
                for k in range(4): prev = sc.add(kread(29, 1, a, k, F(4*a + k)), use[6][k][-1], None, [(prev, 1, 1)])
        grp = [([x for bb, x in sm_split(1, NE_A, END_ORDER)[1] if bb == b], 0, cstart[(1, b, 1)] - 1) for b in H if b >= O_.tl0]
        for a in range(2):
            for k, b in enumerate(H): grp.append((sm_ops(0, b, a), cend[(1, b, a)] + 4, min(pstart[1] - 2 + 2*k, cstart[(2, b, a)] - 1)))
        sc.sm(grp)
        order = [(H[0], 0), (H[1], 0), (H[0], 1), (H[2], 0), (H[1], 1), (H[2], 1)]
        sc.sm([(sm_ops(1, b, a), cend[(2, b, a)] + 4, bstart[b] - 2) for b, a in order]
              + ([(sm_ops(1, b, 1), 100, len(mf) - 1) for b in range(O_.tl0)] if ps == 0 else []), 2.4)
        sc.run(); sc.polish(200000)
        rc, rl, t1 = negM(H[0]), negM(H[1]), negM(H[2])[0]
        rest = sc.pour((l_ops(1, H[0], rc, t1), bstart[H[2]] + 4)); sc.emit()
        E(rest, l_flag(1, t1), stamp_now(), comment("---- epilogue"))
        dsts = [X[:4], [F(4 + i) for i in range(4)]]
        pend = []
        for k, b in enumerate(H):
            E(l_bcast(b, rc, rl))
            for th in range(2):
                ep = epi_half(1, b, th, rl, V(24, 16), V(40, 8))
                E(ep)
                E(pend[:2]); del pend[:2]
            if ps == 0 and k > 0: carry += [(1, 4*b + i) for i in range(4)]; continue
            d_ = dsts[k & 1]
            E([o_read(aO(1, 4*b + i), 4*b + i, d_[i]) for i in range(4)])
            sts = [vstore(d_[i], vlin, sO, sSide, i*1024, O_.fin_flags if ps else O_.h0_flags) for i in range(4)]
            pre = [salu("s_mov_b32", sSide, 98304 + b*4096), wait(lgkm=d_)]
            pend = [pre + [sts[0]], None, sts[1], None, sts[2], None, sts[3]] if ps == 0 else [pre + [sts[0]], sts[1], sts[2], sts[3]]
        E(pend, wait(lgkm=0), stamp_now())

def slow_path():
    sH, sB, sI, sKo, sQo = S(4), S(5), S(6), S(7), S(8)
    Qf = [V(4*s, 4) for s in range(4)]; Kf = [V(16 + 4*i, 4) for i in range(8)]; St = [V(48, 4), V(52, 4)]; Pf = V(56, 4)
    nm = V(60, 4); Vf = V(64, 4); Of = [V(68 + 4*t, 4) for t in range(8)]; L = V(100, 4); w = V(104, 8)
    ones = V(120, 4)
    vrow, vk, vv, vtr, vst_, t0, t1 = V(112), V(113), V(114), V(115), V(116), V(117), V(118)
    def S_(name, J=0):
        s = seg(name); return s
    s0 = S_("slow0")
    E(comment("---- fallback: a row sum left the safe range, redo this wave's rows with the true row max"),
      label("L_slow"), wait(vm=0, lgkm=0),
      valu("v_mbcnt_lo_u32_b32", t0, -1, 0), valu("v_mbcnt_hi_u32_b32", t0, -1, t0), valu("v_lshlrev_b32", vlin, 4, t0),
      [valu("v_mov_b32", ones[r], "0x3f803f80") for r in range(4)],
      valu("v_bfe_u32", t0, vlin, 4, 4), valu("v_lshrrev_b32", t1, 8, vlin),
      valu("v_lshlrev_b32", vrow, 8, t0), valu("v_lshl_add_u32", vst_, t1, 3, vrow), valu("v_lshl_add_u32", vrow, t1, 4, vrow),
      valu("v_lshrrev_b32", vtr, 2, t0), valu("v_lshl_add_u32", vtr, t1, 2, vtr), valu("v_lshlrev_b32", vtr, 8, vtr),
      valu("v_and_b32", t0, 3, t0), valu("v_lshl_add_u32", vtr, t0, 3, vtr), valu("v_add_u32", vtr, sStg, vtr),
      salu("s_mov_b32", sH, 0))
    s1 = S_("slow_head")
    E(label("L_sl_head"), salu("s_lshr_b32", sT0, sFlag, sH), salu("s_and_b32", sT0, sT0, 1), raw("s_cbranch_scc0 L_sl_next", "salu", {"scc"}),
      salu("s_lshl_b32", sKo, sH, 17), salu("s_mul_i32", sQo, sH, 98304), salu("s_mov_b32", sB, 0))
    s2 = S_("slow_blk")
    E(label("L_sl_blk"))
    for s in range(4): E(vload(Kf[s], vrow, sQ, sQo, 64*s))
    E(wait(vm=0))
    for s in range(4): E(scale_frag(Kf[s], Qf[s], w, None))
    E(valu("v_mov_b32", nm[0], "0xff800000"), valu("v_add_u32", vk, sKo, vrow), salu("s_mov_b32", sI, 32))
    s3 = S_("slow_p1")
    E(label("L_sl_p1"))
    for s in range(4): E(gload(Kf[s], vk, sKb, 64*s))
    E(valu("v_add_u32", vk, 4096, vk), wait(vm=0))
    for s in range(4): E(mfma(St[0], Kf[s], Qf[s], 0 if s == 0 else St[0]))
    E(salu("s_sub_u32", sI, sI, 1), scmp("s_cmp_lg_u32", sI, 0), nop(7),
      valu("v_max3_f32", nm[0], nm[0], St[0][0], St[0][1]), valu("v_max3_f32", nm[0], nm[0], St[0][2], St[0][3]),
      raw("s_cbranch_scc1 L_sl_p1", "salu", {"scc"}))
    s4 = S_("slow_mid")
    E(xlane_max(nm[0], nm[1]), [valu("v_sub_f32", nm[r], 0, nm[0]) for r in (1, 2, 3, 0)])
    for r in range(36): E(valu("v_mov_b32", V(68 + r), 0))
    E(valu("v_add_u32", vk, sKo, vrow), valu("v_add_u32", vv, sKo, vlin), valu("v_add_u32", vv, 1024 + 16384, vv), salu("s_mov_b32", sI, 16))
    s5 = S_("slow_p2")
    E(label("L_sl_p2"))
    key = (("stg", "slow"), ("Vs",), False)
    for half in range(2):
        E(salu("s_add_u32", "m0", sStg, 4096*half))
        for s in range(4): E(gload(Kf[4*half + s], vk, sKb, 64*s))
        for k in range(4): E(gdma(vv, sVb, 1024*k, key, ""))
        E(valu("v_add_u32", vk, 4096, vk), valu("v_add_u32", vv, 4096, vv))
    E(wait(vm=0))
    for a in range(2):
        for s in range(4): E(mfma(St[a], Kf[4*a + s], Qf[s], nm if s == 0 else St[a]))
    E(nop(7))
    for r in range(8): E(valu("v_exp_f32", V(48 + r), V(48 + r)))
    for r in range(4): E(valu("v_cvt_pk_bf16_f32", Pf[r], V(48 + 2*r), V(49 + 2*r)))
    E(mfma(L, ones, Pf, L))
    for t in range(8):
        for a in range(2): E(ds_read("ds_read_b64_tr_b16", Vf[2*a:2*a + 2], vtr, a*4096 + 32*t, key))
        E(wait(lgkm=0), mfma(Of[t], Vf, Pf, Of[t]), nop(1))
    E(salu("s_sub_u32", sI, sI, 1), scmp("s_cmp_lg_u32", sI, 0), raw("s_cbranch_scc1 L_sl_p2", "salu", {"scc"}))
    s6 = S_("slow_epi")
    E(nop(7), valu("v_rcp_f32", t0, L[0]), nop(0))
    for t in range(8):
        for r in range(4): E(valu("v_mul_f32", Of[t][r], t0, Of[t][r]))
        E(valu("v_cvt_pk_bf16_f32", Of[t][0], Of[t][0], Of[t][1]), valu("v_cvt_pk_bf16_f32", Of[t][1], Of[t][2], Of[t][3]),
          vstore(Of[t][0:2], vst_, sO, sQo, 32*t, "", "buffer_store_dwordx2"))
    E(salu("s_add_u32", sQo, sQo, 4096), salu("s_add_u32", sB, sB, 1), scmp("s_cmp_lt_u32", sB, NB), raw("s_cbranch_scc1 L_sl_blk", "salu", {"scc"}))
    s7 = S_("slow_next")
    E(label("L_sl_next"), salu("s_add_u32", sH, sH, 1), scmp("s_cmp_lt_u32", sH, 2), raw("s_cbranch_scc1 L_sl_head", "salu", {"scc"}))
    blkp = [s2, s3, s3, s4, s5, s5, s6]
    path2.extend((x, {"J": 0}) for x in [s0, s1] + blkp + blkp + [s7, s1] + blkp + [s7])

def finish():
    if O_.diag:
        a, b = [int(x) for x in O_.diag.split(":")]
        E(wait(vm=0), raw("s_memrealtime s[42:43]", "smem", (), rs(S(42, 2))), wait(lgkm=0), salu("s_mov_b32", S(47), S(42)),
          salu("s_sub_u32", sT0, S(STAMP0 + b), S(STAMP0 + a)), salu("s_lshr_b32", sT0, sT0, 3 if O_.stamps == 1 else 0),
          salu("s_add_u32", sT0, sT0, 7000),
          label("L_spin"), raw("s_memrealtime s[42:43]", "smem", (), rs(S(42, 2))), wait(lgkm=0),
          salu("s_sub_u32", S(42), S(42), S(46)), scmp("s_cmp_lt_u32", S(42), sT0), raw("s_cbranch_scc1 L_spin", "salu", {"scc"}))
    elif O_.stamps:
        E(wait(vm=0), raw("s_memrealtime s[42:43]", "smem", (), rs(S(42, 2))), wait(lgkm=0), salu("s_mov_b32", S(47), S(42)))
        E(salu("s_lshl_b32", sT0, S(2), 2), salu("s_add_u32", sT0, sT0, sW), salu("s_lshl_b32", sT0, sT0, 8))
        E(valu("v_mov_b32", V(1), sT0))
        for k in range(nstamp[0] + 2):
            E(valu("v_mov_b32", V(2), S(46 + k)),
              Inst(f"global_store_dword v1, v2, s[44:45] offset:{4*k}", "vst", rs(V(1), V(2), S(44, 2)), (), data=set()), nop(1))
    if O_.stamps and not O_.diag:
        E(raw("s_getreg_b32 s42, hwreg(HW_REG_XCC_ID)", "salu", (), rs(S(42))), valu("v_mov_b32", V(1), sT0), valu("v_mov_b32", V(2), S(42)),
          Inst("global_store_dword v1, v2, s[44:45] offset:252", "vst", rs(V(1), V(2), S(44, 2)), (), data=set()))
    E(scmp("s_cmp_eq_u32", sFlag, 0), raw("s_cbranch_scc1 L_end", "salu", {"scc"}), label("L_fast_end"))

def build():
    s = seg("start"); path.append((s, {"J": 0})); startup()
    for J in range(4): straight(J)
    if O_.probe == 4: E(stamp_now())
    loop4("A", 4, 2)
    for J in range(12, 15): straight(J)
    transition()
    straight(16)
    loop4("M", 17, 2)
    for J in range(25, 29): straight(J, stamp_now() if J == 28 or (J == 26 and O_.probe == 4) else None)
    endgame()
    finish()
    if O_.slow: slow_path()
    seg("exit"); E(label("L_end"))
    def trace(): return [(i, mkctx(c)) for sidx, c in path + path2 for i in segs[sidx][1]]
    for rnd in range(5):
        fix = {}
        resolve_and_check(trace(), fix=fix)
        for sg in segs:
            new = []
            for i in sg[1]:
                if i.kind == "wait" and i.m["nvm"] in (None, 63) and i.m["nlg"] in (None, 15): fix[0] = 1; continue
                if id(i) in fix: new.append(nop(fix[id(i)] - 1))
                new.append(i)
            sg[1][:] = new
        if not fix: break
    resolve_and_check(trace(), verbose=True)
    if O_.stamps:
        tr = [i for sidx, c in path for i in segs[sidx][1]]; cuts = [k for k, i in enumerate(tr) if i.kind == "smem" and "s[42:43]" in i.text]
        print("  est between stamps:", [cost_estimate(tr[a:b]) for a, b in zip(cuts, cuts[1:])])
    for name, ins in segs:
        if not name.startswith("slow"): print(f"  seg {name:8s} insts {len(ins):5d} est cycles {cost_estimate(ins):6d} nops {sum(1 for i in ins if i.kind == 'nop')}")

HEAD = """; MHA forward, B=16 H=32 Sq=384 Sk=512 D=128, bf16 in/out.  Written with the author's own generator script.
; K/V stream exactly once through a 4-slot LDS ring (LDS-DMA, one barrier per tile); Q and O pass through a per-wave
; staging area (O is transposed there so that whole 128-byte lines are stored).
; Softmax: Q is pre-scaled by log2(e)/sqrt(D).  Each row's max over its first 32 keys is subtracted through the MFMA
; C operand (so every row sum is >= 1, nothing can underflow); the row sums come from an MFMA against a ones column.
; Guard: a row sum that is NaN or >= 2^64 flags the wave, which then redoes its rows with the true row max (L_slow).
; @launch grid=(256,1,1) block=(256,1,1) lds=163840
.amdgcn_target "amdgcn-amd-amdhsa--gfx950"
.text
.globl standalone__mha_softmax__near_ridge_kernel
.p2align 8
.type standalone__mha_softmax__near_ridge_kernel,@function
standalone__mha_softmax__near_ridge_kernel:
"""
TAIL = """    s_endpgm
.section .rodata,"a"
.p2align 6
.amdhsa_kernel standalone__mha_softmax__near_ridge_kernel
  .amdhsa_next_free_vgpr 512
  .amdhsa_next_free_sgpr 102
  .amdhsa_accum_offset 256
  .amdhsa_group_segment_fixed_size 0
  .amdhsa_kernarg_size 48
  .amdhsa_user_sgpr_count 2
  .amdhsa_user_sgpr_kernarg_segment_ptr 1
  .amdhsa_system_sgpr_workgroup_id_x 1
.end_amdhsa_kernel
"""
def insert_pads(text):
    import subprocess, re, tempfile, os
    def offsets(npads):
        d = tempfile.mkdtemp(); t = text()
        t = t.replace("L_padret:", "L_padret:\n" + "".join(f"L_pad{k}:\n" for k in range(npads + 1, 40)))
        open(d + "/a.s", "w").write(t)
        subprocess.run(["clang", "-x", "assembler", "-target", "amdgcn-amd-amdhsa", "-mcpu=gfx950", "-c", d + "/a.s", "-o", d + "/a.o"], check=True)
        dis = subprocess.run(["llvm-objdump", "-d", "--mcpu=gfx950", d + "/a.o"], capture_output=True, text=True).stdout
        sym = subprocess.run(["llvm-readelf", "-s", d + "/a.o"], capture_output=True, text=True).stdout
        main = int(re.search(r"([0-9a-f]{16}) .* L_main$", sym, re.M).group(1), 16)
        ad = [(int(m.group(2), 16), m.group(1)) for m in re.finditer(r"^\s+(\S+).*// ([0-9A-F]{12}):", dis, re.M)]
        ad = [x for x in ad if x[0] >= main]
        flat = [(sg, k) for sg in segs for k in range(len(sg[1]))]
        flat = flat[[i for i, (sg, k) in enumerate(flat) if sg[1][k].text == "L_main:"][0]:]
        o = []; j = 0
        for sg, k in flat:
            x = sg[1][k]
            if x.kind == "label":
                if x.text == "L_fast_end:": break
                if x.text.startswith(".p2align") and ad[j][0] % 8: j += 1
                continue
            assert ad[j][1].startswith(x.text.split()[0][:12]), (ad[j], x.text)
            o.append((ad[j][0] - ad[0][0], sg, k)); j += 1
        return o
    page = 1; pads = []
    while True:
        off = offsets(page - 1)
        cand = [n for n, (a, sg, k) in enumerate(off) if 4096*page <= a <= 4096*page + 56]
        if not cand: break
        def score(n):
            a, sg, k = off[n]; lo = max(0, k - 8); w = sg[1][lo:k + 8]
            return cost_estimate(w[:k - lo] + [raw("pad")] + w[k - lo:]) - cost_estimate(w)
        n = min(cand, key=score); _, sg, k = off[n]
        p = raw(f"s_cbranch_vccz L_pad{page + 4}"); pads.append(p)
        sg[1][k:k] = [label(f"L_pad{page}"), p]
        page += 1
    for i, p in enumerate(pads):
        if i + 1 + 4 >= page: p.text = "s_cbranch_vccz L_padret"
    assert page > 4
    print(f"  {page - 1} page pads")

if __name__ == "__main__":
    out = sys.argv[1]
    for a in sys.argv[2:]:
        k, v = a.split("=")
        setattr(O_, k, type(getattr(O_, k))(v))
    build()
    def text(): return HEAD + "\n".join((i.text if i.kind == "label" else "    " + i.text) for _, ins in segs for i in ins) + "\n" + TAIL
    if O_.pads: insert_pads(text)
    open(out, "w").write(text())
    import subprocess
    r = subprocess.run([sys.executable, "cdna_unwritten_srd_check.py", out], capture_output=True, text=True)
    print("  check:", r.stdout.strip()[-300:], r.stderr.strip()[-300:])
```

```python
import sys, math, struct, random
from ir import *

class Opt:
    stamps = 0; diag = ""; probe = 0; force = 0
    late_flags = "sc1"; h0_flags = "sc1"; fin_flags = "sc1"; fq = "nt"; fk = "nt"; fv = "nt"
    n0 = 14
    lead0 = "80,85,90,100,123,123,123,123,123,123,123,123,123,123,145"
    qs = "001122222222104"
    tq = 4; tstep = 12; tper = 2
    olate = "26552"
    unr = 0
    lt = 1; gq14 = 27
    psp = 2; opt = 1; nea = 40
    g11 = 56; g12 = 16; dsp = 5; p0g = 6; p1g = 10; p1e = 1.0; tl0 = 1
    osched = "000000220000"; tsched = "111222000000"
    ne1 = 36
    pads = 2
    mq0 = 0
    tight = 1
    ps = "000011111111000"
    pvo = "bs2"; qks = 1; slow = 1
O_ = Opt()

NB = 6
def f32bits(x): return struct.unpack("<I", struct.pack("<f", x))[0]
CSCALE = f32bits(math.log2(math.e) / math.sqrt(128.0))
THRESH = f32bits(2.0 ** 64)
def bf16(x):
    u = f32bits(x); return (u + 0x7fff + ((u >> 16) & 1)) >> 16
C_HI = bf16(math.log2(math.e) / math.sqrt(128.0))
C_LO = bf16(math.log2(math.e) / math.sqrt(128.0) - struct.unpack("<f", struct.pack("<I", C_HI << 16))[0])

def Sreg(b, a): return V(8*b + 4*a, 4)
def Preg(par, b): return V(48 + 24*par + 4*b, 4)
def negM(b): return V(96 + 4*b, 4)
kaddr = [V(120 + s) for s in range(4)]
vaddr = [V(124 + t) for t in range(8)]
vkv = V(132); vsd0 = V(133); vsd1 = V(134); vlin = V(135)
qa = [V(136 + s) for s in range(4)]
ow = V(140)
ovr = V(141)
def Oreg(b, t):
    n = 8*b + t
    return V(144 + 4*n, 4) if n < 28 else A(176 + 4*(n - 28), 4)
def Qreg(b, s): return A(16*b + 4*s, 4)
def F(i): return A(96 + 4*i, 4)
def lacc(b): return A(128 + 4*(b//3), 4)
def sel(b): return A(136 + 4*(b % 3), 4)
X = [A(148 + 4*k, 4) for k in range(7)]
CS = A(164, 10)
sQ, sO = S(12, 4), S(24, 4); sKb, sVb, sVx = S(16, 2), S(22, 2), S(18, 2)
sW = S(28); sM0 = S(30); sStg = S(31); sSide = S(32); sT0 = S(33); sT1 = S(34); sT2 = S(35)
sFlag = S(36); sThr = S(37); sC = S(38, 2); sCmp = S(40, 2); sStamp = S(42, 2); sCnt = S(3); sQb = S(20, 2)
STAMP0 = 48

def aK(J): return (("ring", (J - 2) % 4, "K"), ("K", J), True)
def aV(J): return (("ring", J % 4, "V"), ("V", J), True) if J < 31 else (("ring", 2, "K"), ("V", J), True)
def rK(d): return lambda c: aK(c["J"] + d)
def rV(d): return lambda c: aV(c["J"] + d)
def aQ(h, p): return (("stg", p), ("Q", h), False)
def aO(h, p): return (("stg", p), ("O", h), False)
def blk(f, h, b): return [f(h, 4*b + i) for i in range(4)]
def mkctx(c): return lambda r: r(c) if callable(r) else r

segs = []; path = []; path2 = []; cur = None
def seg(name):
    global cur
    cur = []; segs.append([name, cur]); return len(segs) - 1
def E(*xs):
    for x in xs:
        if x is None: continue
        if isinstance(x, (list, tuple)): E(*x)
        else: cur.append(x)
nstamp = [0]
def stamp_now():
    if O_.stamps not in (1, 2): return []
    k = nstamp[0]; nstamp[0] += 1
    op = "s_memtime" if O_.stamps == 1 else "s_memrealtime"
    return [raw(f"{op} {sStamp}", "smem", (), rs(sStamp)), wait(lgkm=0), salu("s_mov_b32", S(STAMP0 + k), sStamp[0])]

MEM = ("dsr", "dsw", "dma", "vld", "vst"); VAL = ("valu", "trans")
class Task:
    count = 0
    def __init__(s, x, lo, hi, preds):
        s.x, s.lo, s.hi, s.preds, s.gap = x, lo, hi, preds, None
        s.lo0, s.hi0 = lo, hi; Task.count += 1; x.m["seq"] = Task.count
class Sched:
    def __init__(s, mf):
        s.mf = mf; s.n = len(mf); s.g = [[] for _ in mf]; s.t = []; s.done = []; s.own = set()
        s.cap = [24 if m.m["big"] else 8 for m in mf]; s.novalu = set()
    def cost(s, x): return 8 if x.kind == "trans" or x.m.get("perm") else 4
    def fits(s, g, x):
        if s.cap[g] < s.cost(x): return False
        if x.kind in MEM and any(y.kind in MEM for y in s.g[g]): return False
        if x.kind in VAL and g in s.novalu: return False
        return True
    def put(s, g, x): s.g[g].append(x); s.cap[g] -= s.cost(x)
    def fix(s, x, g):
        t = Task(x, g, g, []); t.gap = g; s.put(g, x)
        if x.kind in ("dma", "vst", "vld"): s.cap[g] = 0; s.novalu.add(g - 1); s.own.add(g)
        if x.kind in ("barrier", "dsw") or x.m.get("last"): s.cap[g] = 0; s.own.add(g)
        return t
    def add(s, x, lo=0, hi=None, preds=()):
        t = Task(x, max(lo, 0), s.n - 1 if hi is None else min(hi, s.n - 1), [p for p in preds if p[0] is not None]); s.t.append(t); return t
    def seq(s, xs, lo=0, hi=None, after=None, hard=1):
        p = after
        for x in xs: p = s.add(x, lo, hi, [(p, hard, hard)])
        return p
    def sm(s, groups, smax=2.0):
        ex = [(x, lo, hi) for ops, lo, hi in groups for x in ops if x.kind == "trans"]
        sig = smax
        while True:
            pos = []; t = -9.0; ok = True
            for x, lo, hi in ex:
                t = max(lo, t + sig); g = int(t)
                while g < s.n and (not s.fits(g, x) or (pos and g <= pos[-1])): g += 1
                if g > hi - 1: ok = False; break
                pos.append(g); t = max(t, g - 0.5)
            if ok: break
            sig -= 0.05
            assert sig > 0.3, "softmax does not fit"
        k = 0
        for ops, lo, hi in groups:
            e = []
            for x in ops:
                if x.kind == "trans":
                    t = s.fix(x, pos[k]); t.lo0, t.hi0 = lo, hi - 1; s.done.append(t); e.append(t); k += 1
                else: s.add(x, lo, min(hi, e[-1].gap + 5), [(e[-1], 1, 1), (e[-2], 1, 1)]).hi0 = min(hi, s.n - 1)
    def run(s):
        for t in reversed(s.t):
            for p, h, so in t.preds:
                if p.gap is None: p.hi = min(p.hi, t.hi - so)
        for t in s.t:
            for p, h, so in t.preds: t.lo = max(t.lo, p.lo + h)
            t.hi = max(t.hi, t.lo)
        left = list(s.t)
        for g in range(s.n):
            while True:
                rdy = [t for t in left if t.lo <= g and all(p.gap is not None and g >= p.gap + h for p, h, so in t.preds)]
                rdy = [t for t in rdy if t.hi <= g or all(g >= p.gap + so for p, h, so in t.preds)]
                rdy.sort(key=lambda t: t.hi)
                pick = next((t for t in rdy if t.hi <= g or s.fits(g, t.x)), None)
                if pick is None: break
                s.put(g, pick.x); pick.gap = g; left.remove(pick)
        assert not left, left[0].x
        s.done += s.t; s.t = []
    def polish(s, iters=60000):
        if not O_.opt: return
        rnd = random.Random(1); T = s.done; succ = {id(t): [] for t in T}
        for t in T:
            t.dp = [(p, min(so, t.gap - p.gap)) for p, h, so in t.preds]
            for p, d in t.dp:
                if id(p) in succ: succ[id(p)].append((t, d))
            t.hi0 = max(t.hi0, t.gap); t.lo0 = min(t.lo0, t.gap)
        drain = [g for g in range(s.n) if any(x.kind == "wait" and x.m["lgkm"] == 0 for x in s.g[g])]
        full = [24 if m.m["big"] else 8 for m in s.mf]; base = {g: [x for x in s.g[g] if all(x is not t.x for t in T)] for g in s.own}
        def over(g, xs):
            if g in s.own: return sum(s.cost(x) for x in xs if all(x is not y for y in base[g]))
            c = sum(s.cost(x) for x in xs) + 4*max(0, sum(x.kind in MEM for x in xs) - 1)
            o = max(0, c - full[g])
            if g in s.novalu and c >= 8 and any(x.kind in VAL for x in xs): o += 4
            return o
        ov = [over(g, s.g[g]) for g in range(s.n)]
        for it in range(iters):
            if not any(ov): break
            t = rnd.choice(T); a = t.gap
            lo = max([t.lo0] + [p.gap + d for p, d in t.dp]); hi = min([t.hi0] + [q.gap - d for q, d in succ[id(t)]])
            b = rnd.randint(max(lo, a - 6), min(hi, a + 6)) if lo <= hi else a
            if b == a or (t.x.kind == "dsr" and any(0 <= g - b < 7 and not (b < a <= g) for g in drain)): continue
            xa = [x for x in s.g[a] if x is not t.x]; xb = s.g[b] + [t.x]
            oa, ob = over(a, xa), over(b, xb); dl = oa + ob - ov[a] - ov[b]
            if dl <= 0 or rnd.random() < math.exp(-dl/(1.2*(1 - it/iters) + 1e-9)):
                s.g[a], s.g[b], ov[a], ov[b], t.gap = xa, xb, oa, ob, b
                s.cap[a] += s.cost(t.x); s.cap[b] -= s.cost(t.x)
    def pour(s, *streams):
        st = [[list(xs), lo] for xs, lo in streams]
        for g in range(s.n):
            again = True
            while again:
                again = False
                for q in st:
                    if q[0] and q[1] <= g and s.fits(g, q[0][0]): s.put(g, q[0].pop(0)); again = True; break
        return [x for q in st for x in q[0]]
    def emit(s):
        for m, g in zip(s.mf, s.g):
            key = lambda x: (3 if x.m.get("last") else (2 if x.kind in VAL else (0 if x.kind in MEM else 1)), x.m.get("seq", 1 << 30))
            E(m, sorted(g, key=key))

def kread(J, d, a, s, dst): return ds_read("ds_read_b128", dst, kaddr[s], ((J + d - 2) % 4)*16384 + a*8192, rK(d))
def vread(J, d, t, a, dst):
    return ds_read("ds_read_b64_tr_b16", dst[2*a:2*a+2], vaddr[t], (((J + d) % 4)*16384 if J + d < 31 else 32768 - 1024) + a*8192, rV(d))
def kv_group(J, d, withV=True):
    o = [salu("s_add_u32", "m0", sM0, ((J + d) % 4)*16384)]
    for im in (0, 2048):
        if withV: o.append(gdma(vkv, sVb, im + 1024, rV(d), O_.fv))
        o.append(gdma(vkv, sKb, im, rK(d + 2), O_.fk) if J + d < 30 else gdma(vkv, sVx, im, rV(d + 1), O_.fv))
    return o + [kv_step()]
def kv_step(): return valu("v_add_u32", vkv, 8192, vkv)
def q_dma_block(h, b):
    o = [salu("s_add_u32", "m0", sStg, b*4096), salu("s_mov_b32", sSide, h*98304 + b*4096)]
    for i in range(4): o.append(dma(vsd1 if i & 1 else vsd0, sQ, sSide, i*1024, aQ(h, 4*b + i), O_.fq))
    return o
def piecemeal(groups):
    st = []; pre = []
    for grp in groups:
        for x in grp:
            if x.kind in MEM: st.append(pre + [x]); pre = []
            else: pre.append(x)
    if pre: st[-1] += pre
    def more(n):
        o = st[:n]; del st[:n]; return o
    more.left = lambda: len(st)
    return more

def sm_ops(par, b, a):
    s = Sreg(b, a); p = Preg(par, b)
    return [valu("v_exp_f32", s[0], s[0]), valu("v_exp_f32", s[1], s[1]), valu("v_cvt_pk_bf16_f32", p[2*a], s[0], s[1]),
            valu("v_exp_f32", s[2], s[2]), valu("v_exp_f32", s[3], s[3]), valu("v_cvt_pk_bf16_f32", p[2*a+1], s[2], s[3])]
NE_A = 40
def sm_split(par, ne=NE_A, order=range(NB)):
    st = []
    for a in range(2):
        for b in (order if a else range(NB)): st += [(b, x) for x in sm_ops(par, b, a)]
    k = ne // 2 * 3
    return st[:k], st[k:]
def delay_cvts(xs):
    o = []; pend = []
    for x in xs:
        if x.kind == "trans":
            o.append(x)
            if pend: o.append(pend.pop(0))
        else: pend.append(x)
    return o + pend
def xlane_max(m, t):
    o = []
    for op in ("v_permlane32_swap_b32", "v_permlane16_swap_b32"):
        o += [valu("v_mov_b32", t, m), swap(op, m, t), valu("v_max_f32", m, m, t)]
    return o
def rowmax_ops(b):
    m, t = negM(b)[0], negM(b)[1]; sv = lambda r: V(8*b + r)
    o = [valu("v_max3_f32", m, sv(0), sv(1), sv(2)), valu("v_max3_f32", t, sv(3), sv(4), sv(5)),
         valu("v_max3_f32", m, m, sv(6), sv(7)), valu("v_max_f32", m, m, t)] + xlane_max(m, t)
    o += [valu("v_sub_f32", negM(b)[r], 0, m) for r in (1, 2, 3, 0)]
    return o, [valu("v_pk_add_f32", V(8*b + 2*r, 2), V(8*b + 2*r, 2), negM(b)[0:2]) for r in range(4)]
def scale_frag(x, dst, w, y, pk=True):
    o = []
    if pk:
        for r in range(4): o += [valu("v_lshlrev_b32", w[2*r], 16, x[r]), valu("v_and_b32", w[2*r+1], "0xffff0000", x[r])]
        for r in range(4): o.append(valu("v_pk_mul_f32", w[2*r:2*r+2], w[2*r:2*r+2], sC))
    else:
        for r in range(4):
            o += [valu("v_lshlrev_b32", w[2*r], 16, x[r]), valu("v_and_b32", w[2*r+1], "0xffff0000", x[r]),
                  valu("v_mul_f32", w[2*r], sC[0], w[2*r]), valu("v_mul_f32", w[2*r+1], sC[0], w[2*r+1])]
    if dst.k == "v": return o + [valu("v_cvt_pk_bf16_f32", dst[r], w[2*r], w[2*r+1]) for r in range(4)]
    for r in range(4): o.append(valu("v_cvt_pk_bf16_f32", y[r], w[2*r], w[2*r+1]))
    for r in range(4): o.append(valu("v_accvgpr_write_b32", dst[r], y[r]))
    return o
def chain(b, a, fr, c0, rev):
    return [(s, mfma(Sreg(b, a), fr[s], Qreg(b, s), c0 if n == 0 else Sreg(b, a))) for n, s in enumerate(range(3, -1, -1) if rev and O_.qks else range(4))]
def qk_first(b): return [m for a in range(2) for _, m in chain(b, a, [F(4*a + s) for s in range(4)], 0, a)]
def pv_pair(par, bs, t0, fr, init, sums):
    o = []
    if O_.pvo in ("t", "ts"):
        bs = sorted(bs)
        if 5 in sums and init: sums = []; o += [(None, rowsum(par, 5, init)), (None, rowsum(par, 4, init))]
        for k in range(2):
            for b in (bs if k == 0 or O_.pvo == "t" else bs[::-1]):
                o.append((t0 + k, mfma(Oreg(b, t0 + k), Preg(par, b), fr[k], 0 if init else Oreg(b, t0 + k))))
                if k == 0 and b in sums: o.append((None, rowsum(par, b, init)))
        return o
    for n, b in enumerate(bs):
        for k in ((0, 1) if n % 2 == 0 or O_.pvo == "pp2" else (1, 0)): o.append((t0 + k, mfma(Oreg(b, t0 + k), Preg(par, b), fr[k], 0 if init else Oreg(b, t0 + k))))
        if b in sums: o.insert(len(o) - 1, (None, rowsum(par, b, init)))
    return o
def rowsum(par, b, init=False): return mfma(lacc(b), Preg(par, b), sel(b), 0 if init and b in (0, 5) else lacc(b))

def pm(f):
    q = Qreg(f//4, f % 4); d = V(76 + 8*(f & 1), 8); t = V(92, 4)
    mf = [mfma(d[0:4], CS[2:6], q, 0), mfma(d[0:4], CS[6:10], q, d[0:4]), mfma(d[4:8], CS[0:4], q, 0), mfma(d[4:8], CS[4:8], q, d[4:8])]
    fl = []
    for hh in range(2):
        fl += [valu("v_cvt_pk_bf16_f32", t[2*hh + k], d[4*hh + 2*k], d[4*hh + 2*k + 1]) for k in range(2)]
        fl += [valu("v_accvgpr_write_b32", q[2*hh + k], t[2*hh + k]) for k in range(2)]
    return mf, fl

def startup():
    v0, vl, vi, vu, t0, t1, t2 = V(0), V(1), V(2), V(3), V(4), V(5), V(6)
    E(comment("---- setup"),
      raw("s_load_dwordx4 s[4:7], s[0:1], 0", "smem", (), rs(S(4, 4))),
      raw("s_load_dwordx4 s[8:11], s[0:1], 16", "smem", (), rs(S(8, 4))),
      scmp("s_cmp_ge_u32", S(2), 256), raw("s_cbranch_scc1 L_end", "salu", {"scc"}))
    if O_.stamps:
        E(raw("s_load_dwordx2 s[44:45], s[0:1], 40", "smem", (), rs(S(44, 2))),
          raw("s_memrealtime s[46:47]", "smem", (), rs(S(46, 2))))
    E(comment("pull the kernel's own code into L2 (one dword per 128-byte line)"),
      raw("s_getpc_b64 s[40:41]", "salu", (), rs(S(40, 2))), label("L_pc"),
      valu("v_lshlrev_b32", t0, 7, v0), valu("v_min_u32", t1, "L_fast_end-L_pc", t0),
      Inst(f"global_load_dword v7, {t1}, s[40:41]", "vld", rs(t1, S(40, 2)), rs(V(7))),
      valu("v_add_u32", t0, 32768, t0), valu("v_min_u32", t1, "L_fast_end-L_pc", t0),
      Inst(f"global_load_dword v8, {t1}, s[40:41]", "vld", rs(t1, S(40, 2)), rs(V(8))))
    E(valu("v_lshrrev_b32", t1, 6, v0), valu("v_and_b32", vl, 63, v0),
      valu("v_readfirstlane_b32", sW, t1),
      valu("v_and_b32", vi, 15, vl), valu("v_lshrrev_b32", vu, 4, vl),
      valu("v_lshlrev_b32", t0, 1, vu), valu("v_xor_b32", t0, t0, vi), valu("v_lshlrev_b32", t0, 4, t0),
      valu("v_lshl_add_u32", vsd0, vu, 8, t0), valu("v_xor_b32", vsd1, 128, vsd0),
      salu("s_and_b32", sT0, sW, 1), salu("s_lshr_b32", sT1, sW, 1),
      salu("s_lshl_b32", sT2, sT0, 7), salu("s_lshl_b32", sT0, sT0, 10), salu("s_lshl_b32", sT1, sT1, 12),
      salu("s_add_u32", sT0, sT0, sT1),
      valu("v_xor_b32", vkv, sT2, vsd0), valu("v_add_u32", vkv, sT0, vkv),
      salu("s_lshl_b32", sM0, sW, 12), salu("s_mul_i32", sStg, sW, 24576),
      salu("s_mul_i32", sT0, S(2), 196608), salu("s_add_u32", sT0, sT0, sStg), salu("s_add_u32", sStg, sStg, 65536),
      salu("s_lshl_b32", sT1, S(2), 18),
      salu("s_mov_b32", sQ[2], 98304 + 24576), salu("s_mov_b32", sQ[3], "0x20000"),
      wait(lgkm=0),
      salu("s_add_u32", sKb[0], S(6), sT1), salu("s_addc_u32", sKb[1], S(7), 0),
      salu("s_add_u32", sQ[0], S(4), sT0), salu("s_addc_u32", sQ[1], S(5), 0), salu("s_and_b32", sQ[1], sQ[1], "0xffff"))
    g0 = kv_group(0, 0); g0 = [g0[k] for k in (0, 1, 3, 2, 4, 5)]
    more = piecemeal([kv_group(0, -2, False)] + [q_dma_block(0, b) for b in range(NB)] + [kv_group(0, -1, False), g0])
    E(more(10))
    if O_.pads == 2: E(raw("s_branch L_main"), raw(".p2align 12", "label"), label("L_main"))
    E(salu("s_add_u32", sVb[0], S(8), sT1), salu("s_addc_u32", sVb[1], S(9), 0),
      salu("s_sub_u32", sVb[0], sVb[0], 1024 + 16384), salu("s_subb_u32", sVb[1], sVb[1], 0),
      salu("s_add_u32", sO[0], S(10), sT0), salu("s_addc_u32", sO[1], S(11), 0), salu("s_and_b32", sO[1], sO[1], "0xffff"),
      salu("s_mov_b32", sO[2], 98304 + 24576), salu("s_mov_b32", sO[3], "0x20000"),
      salu("s_add_u32", sVx[0], sVb[0], 1024 + 8192), salu("s_addc_u32", sVx[1], sVb[1], 0),
      salu("s_mov_b32", sC[0], hex(CSCALE)), salu("s_mov_b32", sC[1], hex(CSCALE)),
      salu("s_mov_b32", sThr, hex(THRESH)), salu("s_mov_b32", sFlag, O_.force),
      salu("s_add_u32", sQb[0], sQ[0], 98304), salu("s_addc_u32", sQb[1], sQ[1], 0))
    E(valu("v_and_b32", t0, 7, vi), valu("v_lshlrev_b32", t0, 1, t0), valu("v_xor_b32", t0, t0, vu), valu("v_lshlrev_b32", t0, 4, t0),
      valu("v_lshl_add_u32", t2, vi, 8, t0), valu("v_add_u32", qa[0], sStg, t2),
      valu("v_and_b32", t1, 3, vi), valu("v_lshl_add_u32", t0, t1, 8, t0),
      valu("v_lshrrev_b32", t1, 3, vi), valu("v_lshl_add_u32", t0, t1, 11, t0),
      valu("v_bfe_u32", t1, vi, 2, 1), valu("v_lshl_add_u32", kaddr[0], t1, 12, t0))
    for s in range(1, 4): E(valu("v_xor_b32", kaddr[s], s << 6, kaddr[0]), valu("v_xor_b32", qa[s], s << 6, qa[0]))
    E(valu("v_lshrrev_b32", t1, 2, vi), valu("v_and_b32", t2, 1, vu), valu("v_lshl_add_u32", t0, t2, 2, t1),
      valu("v_lshlrev_b32", t0, 5, t0), valu("v_lshl_add_u32", t0, t1, 8, t0), valu("v_lshl_add_u32", t0, t2, 12, t0),
      valu("v_lshrrev_b32", t2, 1, vu), valu("v_lshl_add_u32", t0, t2, 11, t0),
      valu("v_and_b32", t1, 3, vi), valu("v_lshl_add_u32", t0, t1, 3, t0), valu("v_add_u32", vaddr[0], 1024, t0))
    for t in range(1, 8): E(valu("v_xor_b32", vaddr[t], t << 5, vaddr[0]))
    E(valu("v_mov_b32", t2, "0x3f803f80"))
    for k in range(3):
        E(Inst(f"v_cmp_eq_u32 vcc, {k}, {vi}", "valu", rs(vi), {"vcc"}), nop(1), Inst(f"v_cndmask_b32 {t0}, 0, {t2}, vcc", "valu", rs(t2, "vcc"), rs(t0)),
          [valu("v_accvgpr_write_b32", sel(k)[r], t0) for r in range(4)])
    E(valu("v_lshrrev_b32", t0, 1, vi), valu("v_lshlrev_b32", t1, 1, vu), valu("v_sub_u32", t0, t0, t1),
      valu("v_and_b32", t1, 1, vi), valu("v_lshlrev_b32", t1, 4, t1))
    for k in range(2):
        E(Inst(f"v_cmp_eq_u32 vcc, {k}, {t0}", "valu", rs(t0), {"vcc"}))
        for j, c in enumerate((C_HI, C_LO)):
            E(valu("v_mov_b32", t2, hex(c)), valu("v_lshlrev_b32", t2, t1, t2), Inst(f"v_cndmask_b32 {t2}, 0, {t2}, vcc", "valu", rs(t2, "vcc"), rs(t2)),
              valu("v_accvgpr_write_b32", CS[2 + 4*j + k], t2))
    E([valu("v_accvgpr_write_b32", CS[k], 0) for k in (0, 1, 4, 5, 8, 9)])
    E(valu("v_lshlrev_b32", t0, 3, vl), valu("v_add_u32", ow, sStg, t0),
      valu("v_bfe_u32", t1, vi, 1, 1), valu("v_lshl_add_u32", t0, t1, 2, vu), valu("v_lshlrev_b32", t0, 9, t0),
      valu("v_and_b32", t1, 1, vi), valu("v_lshl_add_u32", t0, t1, 6, t0), valu("v_lshrrev_b32", t1, 2, vi),
      valu("v_lshl_add_u32", t0, t1, 3, t0), valu("v_add_u32", ovr, sStg, t0),
      valu("v_and_b32", t2, 3, vi), valu("v_lshlrev_b32", t0, 5, t2), valu("v_lshl_add_u32", t0, vu, 8, t0),
      valu("v_and_b32", t2, 1, t1), valu("v_lshl_add_u32", t0, t2, 4, t0), valu("v_lshrrev_b32", t2, 1, t1), valu("v_lshl_add_u32", vlin, t2, 7, t0))
    E(more(O_.n0 - 10), stamp_now())
    E(comment("---- first K tile"), wait(vm=[aK(0)]), barrier())
    for a in range(2):
        for s in range(4): E(kread(0, 0, a, s, F(4*a + s)))
    if O_.pads:
        E(comment("visit the start of each code page once (wave w: pages w+1, w+5, ..); every stop jumps straight on while vcc = 0"),
          raw("s_mov_b64 vcc, 0"))
        for w in range(3): E(scmp("s_cmp_eq_u32", sW, w), raw(f"s_cbranch_scc1 L_pad{w + 1}", "salu", {"scc"}))
        E(raw("s_branch L_pad4"), [raw(".p2align 12", "label"), label("L_main")] if O_.pads == 1 else None, label("L_padret"), raw("s_mov_b64 vcc, -1"))
    rawr = lambda s: V(72 + 4*s, 4)
    for b in range(NB):
        E(comment(f"---- start-up block {b}"), wait(vm=blk(aQ, 0, b)), stamp_now() if O_.probe == 2 else None)
        if O_.mq0:
            for s in range(4): E(ds_read("ds_read_b128", Qreg(b, s), qa[s], b*4096, blk(aQ, 0, b)))
            E(more(2), wait(lgkm=[Qreg(b, 0)] + ([F(k) for k in range(8)] if b == 0 else [])))
            pms = [pm(4*b + n) for n in range(4)]
            sc = Sched([m for mf, _ in pms for m in mf])
            sc.put(2, wait(lgkm=0))
            for n in range(3):
                for j, v in enumerate(pms[n][1]): sc.put(4*(n + 1) + j//2, v)
            sc.emit(); E(more(2), pms[3][1])
        else:
            for s in range(4): E(ds_read("ds_read_b128", rawr(s), qa[s], b*4096, blk(aQ, 0, b)))
            for s in range(4):
                E(wait(lgkm=[rawr(s)] + ([F(k) for k in range(8)] if b == 0 else [])))
                E(more(1), scale_frag(rawr(s), Qreg(b, s), V(88, 8), Sreg(b, s & 1)))
        qk = qk_first(b)
        if b < NB - 1: E(qk, rowmax_ops(b), delay_cvts(sm_ops(0, b, 0) + sm_ops(0, b, 1)))
    assert more.left() == 0
    E(qk[:4], wait(vm=[aK(1)]), barrier())
    for s in range(4): E(qk[4 + s], kread(0, 1, 0, s, F(s)))
    E(salu("s_mov_b32", sSide, sStg), salu("s_mov_b32", sCnt, 1), rowmax_ops(NB - 1)[0][:4], wait(lgkm=[F(s) for s in range(4)]), stamp_now())

def o_read(key, p, dst):
    return [ds_read("ds_read_b64_tr_b16", dst[2*hi:2*hi + 2], ovr, (p >> 2)*4096 + (p & 3)*128 + hi*32, key) for hi in range(2)]
def pv_mfmas(par, frags, sums_first=False, init=False):
    mf = [rowsum(par, b) for b in range(NB)] if sums_first else []; st = []
    for h in range(4):
        st.append(len(mf))
        sums = [] if sums_first else [(0, 1), (5, 4), (2,), (3,)][h]
        mf += [m for _, m in pv_pair(par, range(NB) if h % 2 == 0 else range(NB - 1, -1, -1), 2*h, frags[2*h:2*h + 2], init, sums)]
    return mf, st
def late_pieces(k):
    cnt = [int(c, 16) for c in O_.olate]; ne = sum(map(int, O_.osched)); assert sum(cnt) == 24 - ne and sum(cnt[:4]) >= 12
    return (list(range(12, 24)) + list(range(ne, 12)))[sum(cnt[:k]):sum(cnt[:k + 1])]
def kv_plan(J):
    if J >= 16: return [(3, 27)] if J < 28 else []
    o = []
    for k, lead in enumerate(int(x) for x in O_.lead0.split(",")):
        Jk, g = divmod(102*(k + 1) + 23 - lead, 102)
        assert 2 <= g <= 82
        if Jk == J: o.append((k + 1 - J, g))
    return o
END_ORDER = (2, 3, 4, 5, 0, 1)
NPRE = 2
VF15 = [Qreg(4 + t//4, t % 4) for t in range(8)]

def iteration(J, ctl=()):
    par = J & 1; j = J % 16
    mf = [m for a in range(2) for b in range(NB) for _, m in chain(b, a, [F(4*a + s) for s in range(4)], negM(b), b & 1)]
    pv, pst = pv_mfmas(par, [F(t) for t in range(8)], init=(j == 0))
    mf += pv; pst = [48 + x for x in pst]
    sc = Sched(mf)
    for x in ctl: sc.fix(x, 101)
    if ctl: sc.cap[101] = 0
    for s in range(4): sc.fix(kread(J, 1, 1, s, F(4 + s)), [1, 6, 11, 13][s])
    tb2 = None
    if J == 0:
        sc.fix(wait(vm=[rV(0)], lgkm=0), 23); tb = sc.fix(barrier(), 23)
        sc.fix(wait(vm=[rK(2)]), 72); tb2 = sc.fix(barrier(), 72)
    else:
        sc.fix(wait(vm=[rV(0), rK(2)], lgkm=0), 23); tb = sc.fix(barrier(), 23)
    if J == 0 or (J == 16 and O_.tight):
        b = NB - 1; t = sc.seq(rowmax_ops(b)[0][4:], 0, 8, hard=0)
        sub = [sc.add(valu("v_add_f32", V(8*b + r), V(8*b + r), negM(b)[1]), 0, 10 if r < 4 else 22, [(t, 0, 0)]) for r in range(8)]
        sc.run(); sc.done = []
    plan = kv_plan(J); busy = []
    for n_, (d, g0) in enumerate(plan):
        ops = kv_group(J, d); g = g0
        while sc.cap[g - 2] < 4: g += 1
        sc.fix(ops[0], g - 2)
        for x in ops[1:5]:
            while sc.cap[g] < 8 or sc.cap[g - 1] == 0 or sc.cap[g + 1] == 0 or any(y.kind in VAL for y in sc.g[g - 1]): g += 1
            td = sc.fix(x, g); g += O_.dsp
        busy.append((g0 - 3, td.gap + 1))
        sc.add(ops[5], 0, 100 if n_ + 1 == len(plan) else plan[n_ + 1][1] - 1, [(td, 1, 1)])
    nq = int(O_.qs[J]) if J < 15 else 0
    if nq:
        p0 = sum(map(int, O_.qs[:J])); g0 = max([50] + [hi + 6 for lo, hi in busy if lo < 50]) if J != 14 else O_.gq14
        qsp = 12 if nq < 3 else 9
        assert all(hi < g0 - 2 or lo > g0 + qsp*(nq - 1) for lo, hi in busy)
        tm = sc.fix(salu("s_mov_b32", "m0", sSide), g0 - 2)
        for k in range(nq):
            t = sc.fix(gdma(vsd1 if (p0 + k) & 1 else vsd0, sQb, k*1024, (lambda k: lambda c: aQ(1, sum(map(int, O_.qs[:c["J"]])) + k))(k), O_.fq), g0 + qsp*k)
        sc.add(salu("s_add_u32", sSide, sSide, 1024*nq), 0, 99, [(tm, 1, 1)])
        g = t.gap + 1
        while sc.cap[g] < 8: g += 1
        sc.fix(salu("s_add_u32", sQb[0], sQb[0], 1024*nq), g); sc.fix(salu("s_addc_u32", sQb[1], sQb[1], 0), g); sc.own.add(g)
    npz = int(O_.ps[J]) if J < 15 else 0
    if npz:
        tot = lambda a, b_: sum(map(int, O_.ps[a:b_]))
        rel = tot(0, J) if O_.unr else (tot(4, J) if J < 12 else tot(12, J))
        raw_, tt = V(142, 2), V(138, 2); p = None; span = 96//(2*npz)
        for k in range(2*npz):
            key = (lambda k: lambda c: aQ(1, tot(0, c["J"]) + k//2))(k)
            off = (rel + k//2)*1024 + (k & 1)*512; lo = 2 + span*k; gw = lo + span - 1
            while sc.cap[gw] < 8 or sc.cap[gw + 1] == 0 or gw in sc.novalu: gw -= 1
            if k % 2 == 0: p = sc.add(wait(vm=[key]), lo, None, [(p, 1, 1)])
            p = sc.add(ds_read("ds_read_b64", raw_, ow, off, key), lo, None, [(p, 1, 1)])
            p = sc.add(wait(lgkm=[raw_]), lo, None, [(p, 1, 7)])
            for r in range(2):
                ops = [valu("v_lshlrev_b32", tt[0], 16, raw_[r]), valu("v_and_b32", tt[1], "0xffff0000", raw_[r]), valu("v_mul_f32", tt[0], sC[0], tt[0]),
                       valu("v_mul_f32", tt[1], sC[0], tt[1]), valu("v_cvt_pk_bf16_f32", raw_[r], tt[0], tt[1])]
                for i, x in enumerate(ops): p = sc.add(x, lo, gw - 1 - (9 - 5*r - i)*O_.psp, [(p, 1 if i + r == 0 else 0, 1 if i + r == 0 else 0)])
            p = sc.fix(ds_write("ds_write_b64", ow, raw_, off, key), gw); sc.cap[gw] = 0
        if J == 7 and not O_.unr: sc.add(valu("v_add_u32", ow, 1024*tot(4, 8), ow), 0, 100, [(p, 1, 1)])
    if J == 14 and int(O_.ps):
        if not O_.unr: sc.add(valu("v_subrev_u32", ow, 1024*sum(map(int, O_.ps[:12])), ow), 0, 40)
        for s in (2, 3): sc.add(valu("v_xor_b32", qa[s], s << 6, qa[0]), 0, 40)
    if J in (27, 28):
        ps = late_pieces(J - 27); g0 = [O_.g11, O_.g12][J - 27]
        base = t = None
        for i, p in enumerate(ps):
            g = g0 + (96 - g0)*i//max(1, len(ps) - 1)
            while g in (22, 23, 24) or sc.cap[g] < 8 or sc.cap[g - 1] == 0 or sc.cap[g + 1] == 0: g += 1
            t = sc.seq(o_read(aO(0, p), p, X[i]), 0, g - 8, t); sc.add(wait(lgkm=[X[i]]), 0, g - 1, [(t, 1, 6)])
            if base is None or not 0 <= p - base < 4: base = p; sc.fix(salu("s_mov_b32", sSide, p*1024), g - 1)
            sc.fix(vstore(X[i], vlin, sO, sSide, (p - base)*1024, O_.late_flags), g)
    p = tb
    for t in range(8):
        for a in range(2): p = sc.add(vread(J, 0, t, a, F(t)), 24 if t < 4 else 48, None, [(p, 1, 1)])
        if t in (1, 3): sc.add(wait(lgkm=[F(t - 1), F(t)]), 0, pst[t//2] - 1, [(p, 1, 8)])
    sc.add(wait(lgkm=[F(4), F(5), F(6), F(7)]), 0, pst[2] - 1, [(p, 1, 8)])
    for s in range(4): p = sc.add(kread(J, 2, 0, s, F(s)), pst[2], None if J != 14 else 90, [(p, 1, 1), (tb2, 1, 1)])
    if J == 28:
        pre = late_pieces(2)[:NPRE]
        p = sc.seq([x for i, q in enumerate(pre) for x in o_read(aO(0, q), q, X[i])], 60, None, p)
    if J != 14: sc.add(wait(lgkm=[F(s) for s in range(4)] + (X[:NPRE] if J == 28 else [])), 0, 101 if J == 28 else 100, [(p, 1, 8 if J != 28 else 5)])
    else:
        sc.fix(wait(vm=[rV(1), rK(3)] + blk(aQ, 1, 0)), 92); t = sc.fix(barrier(), 92)
        for k in range(4): sc.fix(vread(J, 1, k//2, k & 1, VF15[k//2]), 93 + 2*k)
    nxt = lambda ne: [x for _, x in sm_split(1 - par, ne, END_ORDER if J == 28 else range(NB))[0]]
    if J == 0:
        b = NB - 1
        sc.sm([(sm_ops(0, b, 0), sub[3].gap + 1, 19), (sm_ops(0, b, 1), sub[7].gap + 1, 43), (nxt(NE_A), 24, 100)])
    elif J == 16 and O_.tight:
        tail = sm_split(0, O_.ne1)[1]; b = NB - 1
        sc.sm([(sm_ops(0, b, 0), sub[3].gap + 1, 19)] + [([x for bb, x in tail if bb == k], sub[7].gap + 1, 23 + 4*k) for k in range(NB) if any(bb == k for bb, _ in tail)]
              + [(nxt(NE_A), 24, 100)])
    elif J == 16:
        tail = sm_split(0, O_.ne1)[1]
        sc.sm([([x for bb, x in tail if bb == b], 0, 23 + 4*b) for b in range(NB) if any(bb == b for bb, _ in tail)] + [(nxt(NE_A), 24, 100)])
    elif J == 14:
        sc.sm([([x for _, x in sm_split(par)[1]], 0, 30)] + [(sm_ops(1, b, a), 24*a + 4*b + 8, 101) for a in range(2) for b in range(NB)])
    else:
        sc.sm([([x for _, x in sm_split(par)[1]], 0, 30)], 2.4)
        sc.sm([(nxt(NE_A), 24, 100)])
    for t in sc.done + sc.t:
        if t.x.m.get("op") in ("v_exp_f32", "v_cvt_pk_bf16_f32") and t.lo0 == 24:
            r = min(int(x[1:]) for x in t.x.rd); t.lo0 = 24*((r >> 2) & 1) + 4*(r >> 3) + (9 if t.x.kind == "trans" else 10)
    sc.run(); sc.polish(); sc.emit()

def straight(J, *pre):
    s = seg(f"J{J}"); path.append((s, {"J": J})); E(comment(f"---- head {J//16}, key tile {J % 16}"), pre); iteration(J)
def loop4(name, J0, passes):
    ss = []
    for k in range(4):
        ss.append(seg(f"{name}{k}"))
        if k == 0: E(raw(".p2align 3", "label"), label(f"L_{name}"))
        d = salu("s_sub_u32", sCnt, sCnt, 1); d.m["last"] = True
        iteration(J0 + k, [d, raw(f"s_cbranch_scc0 L_{name}", "salu", {"scc"}, (), last=True)] if k == 3 else [])
        for n in range(1, passes): assert kv_plan(J0 + k) == kv_plan(J0 + k + 4*n) and (J0 > 15 or (O_.qs[J0 + k], O_.ps[J0 + k]) == (O_.qs[J0 + k + 4*n], O_.ps[J0 + k + 4*n]))
    assert J0 > 15 or sum(map(int, O_.qs[J0:J0 + 4])) % 2 == 0
    for n in range(4*passes): path.append((ss[n % 4], {"J": J0 + n}))

def l_ops(h, b0, r, t1):
    o = [valu("v_accvgpr_read_b32", r[k], lacc(b0)[k]) for k in range(4)]
    o += [valu("v_add_f32", t1, r[0], r[1]), valu("v_add_f32", t1, t1, r[2]), valu("v_add_f32", t1, t1, r[3])]
    o += [valu("v_rcp_f32", r[k], r[k]) for k in range(4)]
    return o
def l_flag(h, t1):
    return [Inst(f"v_cmp_nlt_f32 {sCmp}, {t1}, {sThr}", "valu", rs(t1, sThr), rs(sCmp)), nop(0),
            scmp("s_cmp_lg_u64", sCmp, 0), salu("s_cselect_b32", sT0, 1 << h, 0), salu("s_or_b32", sFlag, sFlag, sT0)]
def l_bcast(b, r, dst):
    o = [valu("v_mov_b64_dpp", dst[2*k:2*k + 2], r[2*k:2*k + 2], mods=f"row_newbcast:{b % 3} row_mask:0xf bank_mask:0xf") for k in range(2)]
    for x in o: x.m["dpp"] = True
    return o
def epi_half(h, b, th, rl, tmp, y):
    r0 = Oreg(b, 4*th); w = V(r0.i, 16) if r0.k == "v" else tmp; o = []
    if r0.k == "a": o += [valu("v_accvgpr_read_b32", w[i], A(r0.i + i)) for i in range(16)]
    o += [valu("v_pk_mul_f32", w[2*i:2*i + 2], w[2*i:2*i + 2], rl[2*(i & 1):2*(i & 1) + 2]) for i in range(8)]
    o += [valu("v_cvt_pk_bf16_f32", y[2*r + k], w[8*k + r], w[8*k + 4 + r]) for r in range(4) for k in range(2)]
    o += [ds_write2st64(ow, y[4*k:4*k + 2], y[4*k + 2:4*k + 4], 8*b + 4*th + 2*k, 8*b + 4*th + 2*k + 1, blk(aO, h, b)) for k in range(2)]
    return o

def transition():
    s = seg("trans"); path.append((s, {"J": 15}))
    E(stamp_now(), comment("---- head 0: last PV; switch to head 1"))
    vf = VF15
    F0 = sum(map(int, O_.ps)); assert F0 % 4 == 0 and F0 <= 12 and O_.ps[:4] == "0000" and O_.ps[14] == "0"
    raw0 = V(16, 4)
    def qrd(b): return [ds_read("ds_read_b128", Qreg(b, n), qa[n], b*4096, blk(aQ, 1, b)) for n in range(4) if 4*b + n != F0]
    rc = [negM(4), negM(5)]
    rl = V(72, 4); y = V(76, 8)
    npre = sum(map(int, O_.qs)); assert npre >= 8
    more = piecemeal([[x for k, x in enumerate(q_dma_block(1, b)) if k < 2 or 4*b + k - 2 >= npre] for b in range(npre//4, NB)]
                     + [kv_group(15, d) for d in (1, 2, 3)])
    vr = [vread(15, 0, t, a, vf[t]) for t in range(8) for a in range(2)]
    pv, pst = pv_mfmas(1, vf, True)
    sc = Sched(pv)
    g = 8
    for grp in more(O_.tq):
        for i, x in enumerate(grp):
            if x.kind not in MEM: sc.fix(x, g - 3 if len(grp) - i > 3 else g - 2)
            else: sc.fix(x, g); g += O_.tstep
    sc.add(wait(lgkm=vf[:2]), 4, pst[0] - 1)
    p = sc.seq([wait(vm=blk(aQ, 1, F0//4)), ds_read("ds_read_b128", raw0, qa[0], F0*1024, blk(aQ, 1, F0//4))], 0); wq = sc.add(wait(lgkm=[raw0]), 0, 10, [(p, 1, 6)])
    p = sc.seq(vr[4:8], 0, None, p); sc.add(wait(lgkm=vf[2:4]), 0, pst[1] - 1, [(p, 1, 6)])
    p = sc.seq(vr[8:], 0, None, p); sc.add(wait(lgkm=vf[4:]), 0, pst[2] - 1, [(p, 1, 6)])
    p = sc.seq([kread(15, 1, 1, k, F(4 + k)) for k in range(4)] + qrd(0) + [wait(vm=blk(aQ, 1, 1))] + qrd(1), 24, 46, p)
    sc.fix(wait(lgkm=0), 53); sc.fix(barrier(), 53)
    sc.run()
    lv = l_ops(0, 0, rc[0], V(60)) + l_ops(0, 3, rc[1], V(61)) + [valu("v_add_f32", V(60), V(60), V(61))]; ls = l_flag(0, V(60))
    st = scale_frag(raw0, Qreg(F0//4, 0), V(0, 8), V(8, 4), pk=False)
    rest = sc.pour((lv, 10), (st, wq.gap + 1)); sc.emit(); E(rest); rest = []
    def site(k):
        c = [int(x) for x in O_.osched] + [0]; p0 = sum(c[:k]); o = more(int(O_.tsched[k]) if O_.tsched else O_.tper)
        if c[k]:
            o += [salu("s_mov_b32", sT1, p0*1024), wait(lgkm=[X[(p0 + i) % 4] for i in range(c[k])])]
            o += [vstore(X[(p0 + i) % 4], vlin, sO, sT1, i*1024, O_.late_flags) for i in range(c[k])]
        p1 = p0 + c[k]; assert (p1 + c[k + 1] + 3)//4 <= (k + 1)//2 or not c[k + 1]
        return o + [o_read(aO(0, p), p, X[p % 4]) for p in range(p1, p1 + c[k + 1])]
    first = sm_split(0, O_.ne1)[0]
    def finish(b): return rowmax_ops(b)[1] + delay_cvts([x for bb, x in first if bb == b])
    for b in range(NB):
        E(comment(f"---- switch block {b}"), stamp_now() if O_.probe == 1 else None)
        fs = range(max(F0 + 1, 4*b + 1), min(4*b + 5, 4*NB))
        mf = []; fl = []
        for f in fs:
            m, x = pm(f); mf += m; fl.append(x)
        qk = qk_first(b)
        if b == NB - 1: qk = [qk[k] for k in (0, 1, 2)] + [m for _, m in chain(b, 1, [F(4 + s_) for s_ in range(4)], 0, False)][:3] + [qk[3]]; \
                        qk.append(mfma(Sreg(b, 1), F(7), Qreg(b, 3), Sreg(b, 1)))
        sc = Sched(mf + qk)
        for k, x in enumerate(fl):
            for j, v in enumerate(x): sc.put(4*(k + 1) + j//2, v)
        h0, h1 = epi_half(0, b, 0, rl, V(176, 16), y), epi_half(0, b, 1, rl, V(192, 16), y)
        if O_.tight:
            assert npre >= 16; lt = int(npre < 24 or O_.lt)
            for bb, g0 in {0: [(2, 0), (3, len(mf) + 4)], 1 + lt: [(4, 0)], 2 + lt: [(5, 0)]}.get(b, []):
                if bb != 3: E(wait(vm=blk(aQ, 1, max(bb, 3))))
                for n, x in enumerate(qrd(bb)): sc.put(g0 + n, x)
            if 1 <= b < NB - 1: E(wait(lgkm=[Qreg(b + 1, n) for n in range(4)]))
            acc = [x for x in h0 + h1 if x.m.get("op") == "v_accvgpr_read_b32"]
            mx = rowmax_ops(b - 1)[0] if b else ls[:1]
            left = sc.pour((mx, 0), (acc, 0)); sc.emit()
            E([x for x in left if x not in acc], ls[2:] if b == 0 else None)
            h0, h1 = [[x for x in h if x not in acc or x in left] for h in (h0, h1)]
        else:
            if 1 <= b < NB - 1:
                sc.put(0, wait(vm=blk(aQ, 1, b + 1)))
                for n, x in enumerate(qrd(b + 1)): sc.put(1 + n, x)
                sc.put(11, wait(lgkm=[Qreg(b + 1, n) for n in range(4)]))
            rest = sc.pour((rowmax_ops(b - 1)[0] if b else rest, 0)); sc.emit(); E(rest, ls if b == 0 else None)
        if b == NB - 1: E([kread(15, 2, 0, s_, F(s_)) for s_ in range(4)])
        E(l_bcast(b, rc[b//3], rl), h0, site(2*b), finish(b - 1) if b else None, h1, site(2*b + 1))
    assert more.left() == 0
    E(rowmax_ops(NB - 1)[0][:4] if O_.tight else [rowmax_ops(NB - 1)[0], finish(NB - 1)])
    E(salu("s_mov_b32", sCnt, 1), wait(lgkm=[F(s_) for s_ in range(4)]), stamp_now())

def endgame():
    s = seg("end"); path.append((s, {"J": 29}))
    E(stamp_now())
    carry = []
    for ps, H in enumerate(([3, 4, 5], [0, 1, 2])):
        E(comment(f"---- pass {ps}"))
        subs = [("Q", 1, 0), ("Q", 1, 1), ("P", 0, 0), ("P", 0, 1), ("Q", 2, 0), ("Q", 2, 1), ("P", 1, 0), ("P", 1, 1), ("P", 2, 0), ("P", 2, 1)]
        FA, FB = [F(k) for k in range(4)], [F(4 + k) for k in range(4)]
        G = [[Qreg(3 + n, k) for k in range(4)] for n in range(3)]; Hh = [[A(176 + 16*n + 4*k, 4) for k in range(4)] for n in range(5)]
        fr = [FA, FB, FA, FB, FA, FB, FA] + G if ps == 0 else [FA, FB] + Hh + G
        mf = []; use = []; cend = {}; cstart = {}; pstart = {}; bstart = {}
        for i, (kind, d, x) in enumerate(subs):
            u = {}
            if kind == "Q":
                for n, b in enumerate(H):
                    cstart[(d, b, x)] = len(mf)
                    for s_, m in chain(b, x, fr[i], negM(b), n & 1): u.setdefault(s_, []).append(len(mf)); mf.append(m)
                    cend[(d, b, x)] = len(mf) - 1
            elif d == 2:
                if x == 0:
                    u2 = {}
                    for n, b in enumerate(H):
                        bstart[b] = len(mf); mf.append(rowsum(1, b))
                        for t in range(8):
                            (u if t < 4 else u2).setdefault(t & 3, []).append(len(mf))
                            mf.append(mfma(Oreg(b, t), Preg(1, b), fr[i + (t >> 2)][t & 3], Oreg(b, t)))
                else: u = u2
            else:
                par = (d + 1) & 1
                if x == 0: pstart[d] = len(mf)
                for hh in range(2):
                    for t, m in pv_pair(par, H if hh == 0 else H[::-1], 4*x + 2*hh, fr[i][2*hh:2*hh + 2], False, H[2*x + hh:2*x + hh + 1]):
                        if t is not None: u.setdefault(t & 3, []).append(len(mf))
                        mf.append(m)
            use.append(u)
        sc = Sched(mf); bar = {}
        if ps == 0:
            for d, g, keys in ((0, 9, [rV(0), rK(2)]), (1, use[4][1][-1], [rV(1), rV(2)])):
                sc.fix(wait(vm=keys), g)
                bar[d] = bar[2] = sc.fix(barrier(), g)
        pcs = [(0, q) for q in late_pieces(2) + late_pieces(3)] if ps == 0 else [(0, q) for q in late_pieces(4)] + carry
        taken = {t.gap + k for t in bar.values() for k in (-1, 0, 1)}
        NX = 7; prev_st = [None]*NX; pst = None; base = None
        for i, (h, q) in enumerate(pcs):
            g = O_.p0g + (len(mf) - 4 - O_.p0g)*i//max(1, len(pcs) - 1) if ps == 0 else int(O_.p1g + (len(mf) - 3 - O_.p1g)*(i/(len(pcs) - 1))**O_.p1e)
            while g in taken or g - 1 in taken: g += 1
            off = h*98304 + q*1024; xr = X[i % NX]
            if base is None or not 0 <= off - base < 4096:
                base = off; sc.add(salu("s_mov_b32", sSide, base), 0, g - 1, [(pst, 1, 1)])
            if ps or i >= NPRE:
                r = sc.seq(o_read(aO(h, q), q, xr), g - 60, g - 8, prev_st[i % NX])
                sc.add(wait(lgkm=[xr]), 0, g - 1, [(r, 1, 7)])
            pst = prev_st[i % NX] = sc.fix(vstore(xr, vlin, sO, sSide, off - base, O_.h0_flags if h else O_.late_flags), g)
        prev = None
        for i, (kind, d, x) in enumerate(subs):
            if i == 0 or (ps == 1 and (i == 1 or i >= 7)): continue
            tight = ps == 0 and i < 7
            for k in range(4):
                lo = (use[i - 2][k][-1] if i >= 2 else 0) if tight else (cend[(2, 3 + i - 7, 1)] if ps == 0 else 0)
                rds = [kread(29, d, x, k, fr[i][k])] if kind == "Q" else [vread(29, d, 4*x + k, a, fr[i][k]) for a in range(2)]
                bp = bar.get(d if kind == "P" else (0 if d == 2 else None))
                for r in rds: prev = sc.add(r, lo, None, [(prev, 1, 1), (bp, 1, 1)])
                if tight and kind == "P" and k & 1: sc.add(wait(lgkm=fr[i][k - 1:k + 1]), 0, min(use[i][k - 1][0], use[i][k][0]) - 1, [(prev, 1, 6)])
            if not (tight and kind == "P"): sc.add(wait(lgkm=fr[i]), 0, use[i][0][0] - 1, [(prev, 1, 6)])
        if ps == 0:
            for a in range(2):
                for k in range(4): prev = sc.add(kread(29, 1, a, k, F(4*a + k)), use[6][k][-1], None, [(prev, 1, 1)])
        grp = [([x for bb, x in sm_split(1, NE_A, END_ORDER)[1] if bb == b], 0, cstart[(1, b, 1)] - 1) for b in H if b >= O_.tl0]
        for a in range(2):
            for k, b in enumerate(H): grp.append((sm_ops(0, b, a), cend[(1, b, a)] + 4, min(pstart[1] - 2 + 2*k, cstart[(2, b, a)] - 1)))
        sc.sm(grp)
        order = [(H[0], 0), (H[1], 0), (H[0], 1), (H[2], 0), (H[1], 1), (H[2], 1)]
        sc.sm([(sm_ops(1, b, a), cend[(2, b, a)] + 4, bstart[b] - 2) for b, a in order]
              + ([(sm_ops(1, b, 1), 100, len(mf) - 1) for b in range(O_.tl0)] if ps == 0 else []), 2.4)
        sc.run(); sc.polish(200000)
        rc, rl, t1 = negM(H[0]), negM(H[1]), negM(H[2])[0]
        rest = sc.pour((l_ops(1, H[0], rc, t1), bstart[H[2]] + 4)); sc.emit()
        E(rest, l_flag(1, t1), stamp_now(), comment("---- epilogue"))
        dsts = [X[:4], [F(4 + i) for i in range(4)]]
        pend = []
        for k, b in enumerate(H):
            E(l_bcast(b, rc, rl))
            for th in range(2):
                ep = epi_half(1, b, th, rl, V(24, 16), V(40, 8))
                E(ep)
                E(pend[:2]); del pend[:2]
            if ps == 0 and k > 0: carry += [(1, 4*b + i) for i in range(4)]; continue
            d_ = dsts[k & 1]
            E([o_read(aO(1, 4*b + i), 4*b + i, d_[i]) for i in range(4)])
            sts = [vstore(d_[i], vlin, sO, sSide, i*1024, O_.fin_flags if ps else O_.h0_flags) for i in range(4)]
            pre = [salu("s_mov_b32", sSide, 98304 + b*4096), wait(lgkm=d_)]
            pend = [pre + [sts[0]], None, sts[1], None, sts[2], None, sts[3]] if ps == 0 else [pre + [sts[0]], sts[1], sts[2], sts[3]]
        E(pend, wait(lgkm=0), stamp_now())

def slow_path():
    sH, sB, sI, sKo, sQo = S(4), S(5), S(6), S(7), S(8)
    Qf = [V(4*s, 4) for s in range(4)]; Kf = [V(16 + 4*i, 4) for i in range(8)]; St = [V(48, 4), V(52, 4)]; Pf = V(56, 4)
    nm = V(60, 4); Vf = V(64, 4); Of = [V(68 + 4*t, 4) for t in range(8)]; L = V(100, 4); w = V(104, 8)
    ones = V(120, 4)
    vrow, vk, vv, vtr, vst_, t0, t1 = V(112), V(113), V(114), V(115), V(116), V(117), V(118)
    def S_(name, J=0):
        s = seg(name); return s
    s0 = S_("slow0")
    E(comment("---- fallback: a row sum left the safe range, redo this wave's rows with the true row max"),
      label("L_slow"), wait(vm=0, lgkm=0),
      valu("v_mbcnt_lo_u32_b32", t0, -1, 0), valu("v_mbcnt_hi_u32_b32", t0, -1, t0), valu("v_lshlrev_b32", vlin, 4, t0),
      [valu("v_mov_b32", ones[r], "0x3f803f80") for r in range(4)],
      valu("v_bfe_u32", t0, vlin, 4, 4), valu("v_lshrrev_b32", t1, 8, vlin),
      valu("v_lshlrev_b32", vrow, 8, t0), valu("v_lshl_add_u32", vst_, t1, 3, vrow), valu("v_lshl_add_u32", vrow, t1, 4, vrow),
      valu("v_lshrrev_b32", vtr, 2, t0), valu("v_lshl_add_u32", vtr, t1, 2, vtr), valu("v_lshlrev_b32", vtr, 8, vtr),
      valu("v_and_b32", t0, 3, t0), valu("v_lshl_add_u32", vtr, t0, 3, vtr), valu("v_add_u32", vtr, sStg, vtr),
      salu("s_mov_b32", sH, 0))
    s1 = S_("slow_head")
    E(label("L_sl_head"), salu("s_lshr_b32", sT0, sFlag, sH), salu("s_and_b32", sT0, sT0, 1), raw("s_cbranch_scc0 L_sl_next", "salu", {"scc"}),
      salu("s_lshl_b32", sKo, sH, 17), salu("s_mul_i32", sQo, sH, 98304), salu("s_mov_b32", sB, 0))
    s2 = S_("slow_blk")
    E(label("L_sl_blk"))
    for s in range(4): E(vload(Kf[s], vrow, sQ, sQo, 64*s))
    E(wait(vm=0))
    for s in range(4): E(scale_frag(Kf[s], Qf[s], w, None))
    E(valu("v_mov_b32", nm[0], "0xff800000"), valu("v_add_u32", vk, sKo, vrow), salu("s_mov_b32", sI, 32))
    s3 = S_("slow_p1")
    E(label("L_sl_p1"))
    for s in range(4): E(gload(Kf[s], vk, sKb, 64*s))
    E(valu("v_add_u32", vk, 4096, vk), wait(vm=0))
    for s in range(4): E(mfma(St[0], Kf[s], Qf[s], 0 if s == 0 else St[0]))
    E(salu("s_sub_u32", sI, sI, 1), scmp("s_cmp_lg_u32", sI, 0), nop(7),
      valu("v_max3_f32", nm[0], nm[0], St[0][0], St[0][1]), valu("v_max3_f32", nm[0], nm[0], St[0][2], St[0][3]),
      raw("s_cbranch_scc1 L_sl_p1", "salu", {"scc"}))
    s4 = S_("slow_mid")
    E(xlane_max(nm[0], nm[1]), [valu("v_sub_f32", nm[r], 0, nm[0]) for r in (1, 2, 3, 0)])
    for r in range(36): E(valu("v_mov_b32", V(68 + r), 0))
    E(valu("v_add_u32", vk, sKo, vrow), valu("v_add_u32", vv, sKo, vlin), valu("v_add_u32", vv, 1024 + 16384, vv), salu("s_mov_b32", sI, 16))
    s5 = S_("slow_p2")
    E(label("L_sl_p2"))
    key = (("stg", "slow"), ("Vs",), False)
    for half in range(2):
        E(salu("s_add_u32", "m0", sStg, 4096*half))
        for s in range(4): E(gload(Kf[4*half + s], vk, sKb, 64*s))
        for k in range(4): E(gdma(vv, sVb, 1024*k, key, ""))
        E(valu("v_add_u32", vk, 4096, vk), valu("v_add_u32", vv, 4096, vv))
    E(wait(vm=0))
    for a in range(2):
        for s in range(4): E(mfma(St[a], Kf[4*a + s], Qf[s], nm if s == 0 else St[a]))
    E(nop(7))
    for r in range(8): E(valu("v_exp_f32", V(48 + r), V(48 + r)))
    for r in range(4): E(valu("v_cvt_pk_bf16_f32", Pf[r], V(48 + 2*r), V(49 + 2*r)))
    E(mfma(L, ones, Pf, L))
    for t in range(8):
        for a in range(2): E(ds_read("ds_read_b64_tr_b16", Vf[2*a:2*a + 2], vtr, a*4096 + 32*t, key))
        E(wait(lgkm=0), mfma(Of[t], Vf, Pf, Of[t]), nop(1))
    E(salu("s_sub_u32", sI, sI, 1), scmp("s_cmp_lg_u32", sI, 0), raw("s_cbranch_scc1 L_sl_p2", "salu", {"scc"}))
    s6 = S_("slow_epi")
    E(nop(7), valu("v_rcp_f32", t0, L[0]), nop(0))
    for t in range(8):
        for r in range(4): E(valu("v_mul_f32", Of[t][r], t0, Of[t][r]))
        E(valu("v_cvt_pk_bf16_f32", Of[t][0], Of[t][0], Of[t][1]), valu("v_cvt_pk_bf16_f32", Of[t][1], Of[t][2], Of[t][3]),
          vstore(Of[t][0:2], vst_, sO, sQo, 32*t, "", "buffer_store_dwordx2"))
    E(salu("s_add_u32", sQo, sQo, 4096), salu("s_add_u32", sB, sB, 1), scmp("s_cmp_lt_u32", sB, NB), raw("s_cbranch_scc1 L_sl_blk", "salu", {"scc"}))
    s7 = S_("slow_next")
    E(label("L_sl_next"), salu("s_add_u32", sH, sH, 1), scmp("s_cmp_lt_u32", sH, 2), raw("s_cbranch_scc1 L_sl_head", "salu", {"scc"}))
    blkp = [s2, s3, s3, s4, s5, s5, s6]
    path2.extend((x, {"J": 0}) for x in [s0, s1] + blkp + blkp + [s7, s1] + blkp + [s7])

def finish():
    if O_.diag:
        a, b = [int(x) for x in O_.diag.split(":")]
        E(wait(vm=0), raw("s_memrealtime s[42:43]", "smem", (), rs(S(42, 2))), wait(lgkm=0), salu("s_mov_b32", S(47), S(42)),
          salu("s_sub_u32", sT0, S(STAMP0 + b), S(STAMP0 + a)), salu("s_lshr_b32", sT0, sT0, 3 if O_.stamps == 1 else 0),
          salu("s_add_u32", sT0, sT0, 7000),
          label("L_spin"), raw("s_memrealtime s[42:43]", "smem", (), rs(S(42, 2))), wait(lgkm=0),
          salu("s_sub_u32", S(42), S(42), S(46)), scmp("s_cmp_lt_u32", S(42), sT0), raw("s_cbranch_scc1 L_spin", "salu", {"scc"}))
    elif O_.stamps:
        E(wait(vm=0), raw("s_memrealtime s[42:43]", "smem", (), rs(S(42, 2))), wait(lgkm=0), salu("s_mov_b32", S(47), S(42)))
        E(salu("s_lshl_b32", sT0, S(2), 2), salu("s_add_u32", sT0, sT0, sW), salu("s_lshl_b32", sT0, sT0, 8))
        E(valu("v_mov_b32", V(1), sT0))
        for k in range(nstamp[0] + 2):
            E(valu("v_mov_b32", V(2), S(46 + k)),
              Inst(f"global_store_dword v1, v2, s[44:45] offset:{4*k}", "vst", rs(V(1), V(2), S(44, 2)), (), data=set()), nop(1))
    if O_.stamps and not O_.diag:
        E(raw("s_getreg_b32 s42, hwreg(HW_REG_XCC_ID)", "salu", (), rs(S(42))), valu("v_mov_b32", V(1), sT0), valu("v_mov_b32", V(2), S(42)),
          Inst("global_store_dword v1, v2, s[44:45] offset:252", "vst", rs(V(1), V(2), S(44, 2)), (), data=set()))
    E(scmp("s_cmp_eq_u32", sFlag, 0), raw("s_cbranch_scc1 L_end", "salu", {"scc"}), label("L_fast_end"))

def build():
    s = seg("start"); path.append((s, {"J": 0})); startup()
    for J in range(4): straight(J)
    if O_.probe == 4: E(stamp_now())
    if not O_.unr: loop4("A", 4, 2)
    for J in range(4 if O_.unr else 12, 15): straight(J)
    transition()
    straight(16)
    loop4("M", 17, 2)
    for J in range(25, 29): straight(J, stamp_now() if J == 28 or (J == 26 and O_.probe == 4) else None)
    endgame()
    finish()
    if O_.slow: slow_path()
    seg("exit"); E(label("L_end"))
    def trace(): return [(i, mkctx(c)) for sidx, c in path + path2 for i in segs[sidx][1]]
    for rnd in range(5):
        fix = {}
        resolve_and_check(trace(), fix=fix)
        for sg in segs:
            new = []
            for i in sg[1]:
                if i.kind == "wait" and i.m["nvm"] in (None, 63) and i.m["nlg"] in (None, 15): fix[0] = 1; continue
                if id(i) in fix: new.append(nop(fix[id(i)] - 1))
                new.append(i)
            sg[1][:] = new
        if not fix: break
    resolve_and_check(trace(), verbose=True)
    if O_.stamps:
        tr = [i for sidx, c in path for i in segs[sidx][1]]; cuts = [k for k, i in enumerate(tr) if i.kind == "smem" and "s[42:43]" in i.text]
        print("  est between stamps:", [cost_estimate(tr[a:b]) for a, b in zip(cuts, cuts[1:])])
    for name, ins in segs:
        if not name.startswith("slow"): print(f"  seg {name:8s} insts {len(ins):5d} est cycles {cost_estimate(ins):6d} nops {sum(1 for i in ins if i.kind == 'nop')}")

HEAD = """; MHA forward, B=16 H=32 Sq=384 Sk=512 D=128, bf16 in/out.  Written with the author's own generator script.
; K/V stream exactly once through a 4-slot LDS ring (LDS-DMA, one barrier per tile); Q and O pass through a per-wave
; staging area (O is transposed there so that whole 128-byte lines are stored).
; Softmax: Q is pre-scaled by log2(e)/sqrt(D).  Each row's max over its first 32 keys is subtracted through the MFMA
; C operand (so every row sum is >= 1, nothing can underflow); the row sums come from an MFMA against a ones column.
; Guard: a row sum that is NaN or >= 2^64 flags the wave, which then redoes its rows with the true row max (L_slow).
; @launch grid=(256,1,1) block=(256,1,1) lds=163840
.amdgcn_target "amdgcn-amd-amdhsa--gfx950"
.text
.globl standalone__mha_softmax__near_ridge_kernel
.p2align 8
.type standalone__mha_softmax__near_ridge_kernel,@function
standalone__mha_softmax__near_ridge_kernel:
"""
TAIL = """    s_endpgm
.section .rodata,"a"
.p2align 6
.amdhsa_kernel standalone__mha_softmax__near_ridge_kernel
  .amdhsa_next_free_vgpr 512
  .amdhsa_next_free_sgpr 102
  .amdhsa_accum_offset 256
  .amdhsa_group_segment_fixed_size 0
  .amdhsa_kernarg_size 48
  .amdhsa_user_sgpr_count 2
  .amdhsa_user_sgpr_kernarg_segment_ptr 1
  .amdhsa_system_sgpr_workgroup_id_x 1
.end_amdhsa_kernel
"""
def insert_pads(text):
    import subprocess, re, tempfile, os
    def offsets(npads):
        d = tempfile.mkdtemp(); t = text()
        t = t.replace("L_padret:", "L_padret:\n" + "".join(f"L_pad{k}:\n" for k in range(npads + 1, 40)))
        open(d + "/a.s", "w").write(t)
        subprocess.run(["clang", "-x", "assembler", "-target", "amdgcn-amd-amdhsa", "-mcpu=gfx950", "-c", d + "/a.s", "-o", d + "/a.o"], check=True)
        dis = subprocess.run(["llvm-objdump", "-d", "--mcpu=gfx950", d + "/a.o"], capture_output=True, text=True).stdout
        sym = subprocess.run(["llvm-readelf", "-s", d + "/a.o"], capture_output=True, text=True).stdout
        main = int(re.search(r"([0-9a-f]{16}) .* L_main$", sym, re.M).group(1), 16)
        ad = [(int(m.group(2), 16), m.group(1)) for m in re.finditer(r"^\s+(\S+).*// ([0-9A-F]{12}):", dis, re.M)]
        ad = [x for x in ad if x[0] >= main]
        flat = [(sg, k) for sg in segs for k in range(len(sg[1]))]
        flat = flat[[i for i, (sg, k) in enumerate(flat) if sg[1][k].text == "L_main:"][0]:]
        o = []; j = 0
        for sg, k in flat:
            x = sg[1][k]
            if x.kind == "label":
                if x.text == "L_fast_end:": break
                if x.text.startswith(".p2align") and ad[j][0] % 8: j += 1
                continue
            assert ad[j][1].startswith(x.text.split()[0][:12]), (ad[j], x.text)
            o.append((ad[j][0] - ad[0][0], sg, k)); j += 1
        return o
    page = 1; pads = []
    while True:
        off = offsets(page - 1)
        cand = [n for n, (a, sg, k) in enumerate(off) if 4096*page <= a <= 4096*page + 56]
        if not cand: break
        def score(n):
            a, sg, k = off[n]; lo = max(0, k - 8); w = sg[1][lo:k + 8]
            return cost_estimate(w[:k - lo] + [raw("pad")] + w[k - lo:]) - cost_estimate(w)
        n = min(cand, key=score); _, sg, k = off[n]
        p = raw(f"s_cbranch_vccz L_pad{page + 4}"); pads.append(p)
        sg[1][k:k] = [label(f"L_pad{page}"), p]
        page += 1
    for i, p in enumerate(pads):
        if i + 1 + 4 >= page: p.text = "s_cbranch_vccz L_padret"
    assert page > 4
    print(f"  {page - 1} page pads")

if __name__ == "__main__":
    out = sys.argv[1]
    for a in sys.argv[2:]:
        k, v = a.split("=")
        setattr(O_, k, type(getattr(O_, k))(v))
    build()
    def text(): return HEAD + "\n".join((i.text if i.kind == "label" else "    " + i.text) for _, ins in segs for i in ins) + "\n" + TAIL
    if O_.pads: insert_pads(text)
    open(out, "w").write(text())
    import subprocess
    r = subprocess.run([sys.executable, "cdna_unwritten_srd_check.py", out], capture_output=True, text=True)
    print("  check:", r.stdout.strip()[-300:], r.stderr.strip()[-300:])
```

```python
import sys, math, struct, random
from ir import *

class Opt:
    stamps = 0; diag = ""; probe = 0; force = 0
    late_flags = "sc1"; h0_flags = "sc1"; fin_flags = "sc1"; fq = "nt"; fk = "nt"; fv = "nt"
    n0 = 14
    lead0 = "80,85,90,100,123,123,123,123,123,123,123,123,123,123,145"
    qs = "001122222222104"
    tq = 4; tstep = 12; tper = 2
    olate = "26552"
    unr = 0
    dsp1 = 5; jsp = 27
    xst = ""; xpar = 0
    lt = 1; gq14 = 27
    psp = 2; opt = 1; nea = 40
    g11 = 56; g12 = 16; dsp = 5; p0g = 6; p1g = 10; p1e = 1.0; tl0 = 1
    osched = "000000220000"; tsched = "111222000000"
    ne1 = 36
    pads = 2
    mq0 = 0
    tight = 1
    ps = "000011111111000"
    pvo = "bs2"; qks = 1; slow = 1
O_ = Opt()

NB = 6
def f32bits(x): return struct.unpack("<I", struct.pack("<f", x))[0]
CSCALE = f32bits(math.log2(math.e) / math.sqrt(128.0))
THRESH = f32bits(2.0 ** 64)
def bf16(x):
    u = f32bits(x); return (u + 0x7fff + ((u >> 16) & 1)) >> 16
C_HI = bf16(math.log2(math.e) / math.sqrt(128.0))
C_LO = bf16(math.log2(math.e) / math.sqrt(128.0) - struct.unpack("<f", struct.pack("<I", C_HI << 16))[0])

def Sreg(b, a): return V(8*b + 4*a, 4)
def Preg(par, b): return V(48 + 24*par + 4*b, 4)
def negM(b): return V(96 + 4*b, 4)
kaddr = [V(120 + s) for s in range(4)]
vaddr = [V(124 + t) for t in range(8)]
vkv = V(132); vsd0 = V(133); vsd1 = V(134); vlin = V(135)
qa = [V(136 + s) for s in range(4)]
ow = V(140)
ovr = V(141)
def Oreg(b, t):
    n = 8*b + t
    return V(144 + 4*n, 4) if n < 28 else A(176 + 4*(n - 28), 4)
def Qreg(b, s): return A(16*b + 4*s, 4)
def F(i): return A(96 + 4*i, 4)
def lacc(b): return A(128 + 4*(b//3), 4)
def sel(b): return A(136 + 4*(b % 3), 4)
X = [A(148 + 4*k, 4) for k in range(7)]
CS = A(164, 10)
sQ, sO = S(12, 4), S(24, 4); sKb, sVb, sVx = S(16, 2), S(22, 2), S(18, 2)
sW = S(28); sM0 = S(30); sStg = S(31); sSide = S(32); sT0 = S(33); sT1 = S(34); sT2 = S(35)
sFlag = S(36); sThr = S(37); sC = S(38, 2); sCmp = S(40, 2); sStamp = S(42, 2); sCnt = S(3); sQb = S(20, 2)
STAMP0 = 48

def aK(J): return (("ring", (J - 2) % 4, "K"), ("K", J), True)
def aV(J): return (("ring", J % 4, "V"), ("V", J), True) if J < 31 else (("ring", 2, "K"), ("V", J), True)
def rK(d): return lambda c: aK(c["J"] + d)
def rV(d): return lambda c: aV(c["J"] + d)
def aQ(h, p): return (("stg", p), ("Q", h), False)
def aO(h, p): return (("stg", p), ("O", h), False)
def blk(f, h, b): return [f(h, 4*b + i) for i in range(4)]
def mkctx(c): return lambda r: r(c) if callable(r) else r

segs = []; path = []; path2 = []; cur = None
def seg(name):
    global cur
    cur = []; segs.append([name, cur]); return len(segs) - 1
def E(*xs):
    for x in xs:
        if x is None: continue
        if isinstance(x, (list, tuple)): E(*x)
        else: cur.append(x)
nstamp = [0]
def stamp_now():
    if O_.stamps not in (1, 2): return []
    k = nstamp[0]; nstamp[0] += 1
    op = "s_memtime" if O_.stamps == 1 else "s_memrealtime"
    return [raw(f"{op} {sStamp}", "smem", (), rs(sStamp)), wait(lgkm=0), salu("s_mov_b32", S(STAMP0 + k), sStamp[0])]

MEM = ("dsr", "dsw", "dma", "vld", "vst"); VAL = ("valu", "trans")
class Task:
    count = 0
    def __init__(s, x, lo, hi, preds):
        s.x, s.lo, s.hi, s.preds, s.gap = x, lo, hi, preds, None
        s.lo0, s.hi0 = lo, hi; Task.count += 1; x.m["seq"] = Task.count
class Sched:
    def __init__(s, mf):
        s.mf = mf; s.n = len(mf); s.g = [[] for _ in mf]; s.t = []; s.done = []; s.own = set()
        s.cap = [24 if m.m["big"] else 8 for m in mf]; s.novalu = set()
    def cost(s, x): return 8 if x.kind == "trans" or x.m.get("perm") else 4
    def fits(s, g, x):
        if s.cap[g] < s.cost(x): return False
        if x.kind in MEM and any(y.kind in MEM for y in s.g[g]): return False
        if x.kind in VAL and g in s.novalu: return False
        return True
    def put(s, g, x): s.g[g].append(x); s.cap[g] -= s.cost(x)
    def fix(s, x, g):
        t = Task(x, g, g, []); t.gap = g; s.put(g, x)
        if x.kind in ("dma", "vst", "vld"): s.cap[g] = 0; s.novalu.add(g - 1); s.own.add(g)
        if x.kind in ("barrier", "dsw") or x.m.get("last"): s.cap[g] = 0; s.own.add(g)
        return t
    def add(s, x, lo=0, hi=None, preds=()):
        t = Task(x, max(lo, 0), s.n - 1 if hi is None else min(hi, s.n - 1), [p for p in preds if p[0] is not None]); s.t.append(t); return t
    def seq(s, xs, lo=0, hi=None, after=None, hard=1):
        p = after
        for x in xs: p = s.add(x, lo, hi, [(p, hard, hard)])
        return p
    def sm(s, groups, smax=2.0):
        ex = [(x, lo, hi) for ops, lo, hi in groups for x in ops if x.kind == "trans"]
        sig = smax
        while True:
            pos = []; t = -9.0; ok = True
            for x, lo, hi in ex:
                t = max(lo, t + sig); g = int(t)
                while g < s.n and (not s.fits(g, x) or (pos and g <= pos[-1])): g += 1
                if g > hi - 1: ok = False; break
                pos.append(g); t = max(t, g - 0.5)
            if ok: break
            sig -= 0.05
            assert sig > 0.3, "softmax does not fit"
        k = 0
        for ops, lo, hi in groups:
            e = []
            for x in ops:
                if x.kind == "trans":
                    t = s.fix(x, pos[k]); t.lo0, t.hi0 = lo, hi - 1; s.done.append(t); e.append(t); k += 1
                else: s.add(x, lo, min(hi, e[-1].gap + 5), [(e[-1], 1, 1), (e[-2], 1, 1)]).hi0 = min(hi, s.n - 1)
    def run(s):
        for t in reversed(s.t):
            for p, h, so in t.preds:
                if p.gap is None: p.hi = min(p.hi, t.hi - so)
        for t in s.t:
            for p, h, so in t.preds: t.lo = max(t.lo, p.lo + h)
            t.hi = max(t.hi, t.lo)
        left = list(s.t)
        for g in range(s.n):
            while True:
                rdy = [t for t in left if t.lo <= g and all(p.gap is not None and g >= p.gap + h for p, h, so in t.preds)]
                rdy = [t for t in rdy if t.hi <= g or all(g >= p.gap + so for p, h, so in t.preds)]
                rdy.sort(key=lambda t: t.hi)
                pick = next((t for t in rdy if t.hi <= g or s.fits(g, t.x)), None)
                if pick is None: break
                s.put(g, pick.x); pick.gap = g; left.remove(pick)
        assert not left, left[0].x
        s.done += s.t; s.t = []
    def polish(s, iters=60000):
        if not O_.opt: return
        rnd = random.Random(1); T = s.done; succ = {id(t): [] for t in T}
        for t in T:
            t.dp = [(p, min(so, t.gap - p.gap)) for p, h, so in t.preds]
            for p, d in t.dp:
                if id(p) in succ: succ[id(p)].append((t, d))
            t.hi0 = max(t.hi0, t.gap); t.lo0 = min(t.lo0, t.gap)
        drain = [g for g in range(s.n) if any(x.kind == "wait" and x.m["lgkm"] == 0 for x in s.g[g])]
        full = [24 if m.m["big"] else 8 for m in s.mf]; base = {g: [x for x in s.g[g] if all(x is not t.x for t in T)] for g in s.own}
        def over(g, xs):
            if g in s.own: return sum(s.cost(x) for x in xs if all(x is not y for y in base[g]))
            c = sum(s.cost(x) for x in xs) + 4*max(0, sum(x.kind in MEM for x in xs) - 1)
            o = max(0, c - full[g])
            if g in s.novalu and c >= 8 and any(x.kind in VAL for x in xs): o += 4
            return o
        ov = [over(g, s.g[g]) for g in range(s.n)]
        for it in range(iters):
            if not any(ov): break
            t = rnd.choice(T); a = t.gap
            lo = max([t.lo0] + [p.gap + d for p, d in t.dp]); hi = min([t.hi0] + [q.gap - d for q, d in succ[id(t)]])
            b = rnd.randint(max(lo, a - 6), min(hi, a + 6)) if lo <= hi else a
            if b == a or (t.x.kind == "dsr" and any(0 <= g - b < 7 and not (b < a <= g) for g in drain)): continue
            xa = [x for x in s.g[a] if x is not t.x]; xb = s.g[b] + [t.x]
            oa, ob = over(a, xa), over(b, xb); dl = oa + ob - ov[a] - ov[b]
            if dl <= 0 or rnd.random() < math.exp(-dl/(1.2*(1 - it/iters) + 1e-9)):
                s.g[a], s.g[b], ov[a], ov[b], t.gap = xa, xb, oa, ob, b
                s.cap[a] += s.cost(t.x); s.cap[b] -= s.cost(t.x)
    def pour(s, *streams):
        st = [[list(xs), lo] for xs, lo in streams]
        for g in range(s.n):
            again = True
            while again:
                again = False
                for q in st:
                    if q[0] and q[1] <= g and s.fits(g, q[0][0]): s.put(g, q[0].pop(0)); again = True; break
        return [x for q in st for x in q[0]]
    def emit(s):
        for m, g in zip(s.mf, s.g):
            key = lambda x: (3 if x.m.get("last") else (2 if x.kind in VAL else (0 if x.kind in MEM else 1)), x.m.get("seq", 1 << 30))
            E(m, sorted(g, key=key))

def kread(J, d, a, s, dst): return ds_read("ds_read_b128", dst, kaddr[s], ((J + d - 2) % 4)*16384 + a*8192, rK(d))
def vread(J, d, t, a, dst):
    return ds_read("ds_read_b64_tr_b16", dst[2*a:2*a+2], vaddr[t], (((J + d) % 4)*16384 if J + d < 31 else 32768 - 1024) + a*8192, rV(d))
def kv_group(J, d, withV=True):
    o = [salu("s_add_u32", "m0", sM0, ((J + d) % 4)*16384)]
    for im in (0, 2048):
        if withV: o.append(gdma(vkv, sVb, im + 1024, rV(d), O_.fv))
        o.append(gdma(vkv, sKb, im, rK(d + 2), O_.fk) if J + d < 30 else gdma(vkv, sVx, im, rV(d + 1), O_.fv))
    return o + [kv_step()]
def kv_step(): return valu("v_add_u32", vkv, 8192, vkv)
def q_dma_block(h, b):
    o = [salu("s_add_u32", "m0", sStg, b*4096), salu("s_mov_b32", sSide, h*98304 + b*4096)]
    for i in range(4): o.append(dma(vsd1 if i & 1 else vsd0, sQ, sSide, i*1024, aQ(h, 4*b + i), O_.fq))
    return o
def piecemeal(groups):
    st = []; pre = []
    for grp in groups:
        for x in grp:
            if x.kind in MEM: st.append(pre + [x]); pre = []
            else: pre.append(x)
    if pre: st[-1] += pre
    def more(n):
        o = st[:n]; del st[:n]; return o
    more.left = lambda: len(st)
    return more

def sm_ops(par, b, a):
    s = Sreg(b, a); p = Preg(par, b)
    return [valu("v_exp_f32", s[0], s[0]), valu("v_exp_f32", s[1], s[1]), valu("v_cvt_pk_bf16_f32", p[2*a], s[0], s[1]),
            valu("v_exp_f32", s[2], s[2]), valu("v_exp_f32", s[3], s[3]), valu("v_cvt_pk_bf16_f32", p[2*a+1], s[2], s[3])]
NE_A = 40
def sm_split(par, ne=NE_A, order=range(NB)):
    st = []
    for a in range(2):
        for b in (order if a else range(NB)): st += [(b, x) for x in sm_ops(par, b, a)]
    k = ne // 2 * 3
    return st[:k], st[k:]
def delay_cvts(xs):
    o = []; pend = []
    for x in xs:
        if x.kind == "trans":
            o.append(x)
            if pend: o.append(pend.pop(0))
        else: pend.append(x)
    return o + pend
def xlane_max(m, t):
    o = []
    for op in ("v_permlane32_swap_b32", "v_permlane16_swap_b32"):
        o += [valu("v_mov_b32", t, m), swap(op, m, t), valu("v_max_f32", m, m, t)]
    return o
def rowmax_ops(b):
    m, t = negM(b)[0], negM(b)[1]; sv = lambda r: V(8*b + r)
    o = [valu("v_max3_f32", m, sv(0), sv(1), sv(2)), valu("v_max3_f32", t, sv(3), sv(4), sv(5)),
         valu("v_max3_f32", m, m, sv(6), sv(7)), valu("v_max_f32", m, m, t)] + xlane_max(m, t)
    o += [valu("v_sub_f32", negM(b)[r], 0, m) for r in (1, 2, 3, 0)]
    return o, [valu("v_pk_add_f32", V(8*b + 2*r, 2), V(8*b + 2*r, 2), negM(b)[0:2]) for r in range(4)]
def scale_frag(x, dst, w, y, pk=True):
    o = []
    if pk:
        for r in range(4): o += [valu("v_lshlrev_b32", w[2*r], 16, x[r]), valu("v_and_b32", w[2*r+1], "0xffff0000", x[r])]
        for r in range(4): o.append(valu("v_pk_mul_f32", w[2*r:2*r+2], w[2*r:2*r+2], sC))
    else:
        for r in range(4):
            o += [valu("v_lshlrev_b32", w[2*r], 16, x[r]), valu("v_and_b32", w[2*r+1], "0xffff0000", x[r]),
                  valu("v_mul_f32", w[2*r], sC[0], w[2*r]), valu("v_mul_f32", w[2*r+1], sC[0], w[2*r+1])]
    if dst.k == "v": return o + [valu("v_cvt_pk_bf16_f32", dst[r], w[2*r], w[2*r+1]) for r in range(4)]
    for r in range(4): o.append(valu("v_cvt_pk_bf16_f32", y[r], w[2*r], w[2*r+1]))
    for r in range(4): o.append(valu("v_accvgpr_write_b32", dst[r], y[r]))
    return o
def chain(b, a, fr, c0, rev):
    return [(s, mfma(Sreg(b, a), fr[s], Qreg(b, s), c0 if n == 0 else Sreg(b, a))) for n, s in enumerate(range(3, -1, -1) if rev and O_.qks else range(4))]
def qk_first(b): return [m for a in range(2) for _, m in chain(b, a, [F(4*a + s) for s in range(4)], 0, a)]
def pv_pair(par, bs, t0, fr, init, sums):
    o = []
    if O_.pvo in ("t", "ts"):
        bs = sorted(bs)
        if 5 in sums and init: sums = []; o += [(None, rowsum(par, 5, init)), (None, rowsum(par, 4, init))]
        for k in range(2):
            for b in (bs if k == 0 or O_.pvo == "t" else bs[::-1]):
                o.append((t0 + k, mfma(Oreg(b, t0 + k), Preg(par, b), fr[k], 0 if init else Oreg(b, t0 + k))))
                if k == 0 and b in sums: o.append((None, rowsum(par, b, init)))
        return o
    for n, b in enumerate(bs):
        for k in ((0, 1) if n % 2 == 0 or O_.pvo == "pp2" else (1, 0)): o.append((t0 + k, mfma(Oreg(b, t0 + k), Preg(par, b), fr[k], 0 if init else Oreg(b, t0 + k))))
        if b in sums: o.insert(len(o) - 1, (None, rowsum(par, b, init)))
    return o
def rowsum(par, b, init=False): return mfma(lacc(b), Preg(par, b), sel(b), 0 if init and b in (0, 5) else lacc(b))

def pm(f):
    q = Qreg(f//4, f % 4); d = V(76 + 8*(f & 1), 8); t = V(92, 4)
    mf = [mfma(d[0:4], CS[2:6], q, 0), mfma(d[0:4], CS[6:10], q, d[0:4]), mfma(d[4:8], CS[0:4], q, 0), mfma(d[4:8], CS[4:8], q, d[4:8])]
    fl = []
    for hh in range(2):
        fl += [valu("v_cvt_pk_bf16_f32", t[2*hh + k], d[4*hh + 2*k], d[4*hh + 2*k + 1]) for k in range(2)]
        fl += [valu("v_accvgpr_write_b32", q[2*hh + k], t[2*hh + k]) for k in range(2)]
    return mf, fl

def startup():
    v0, vl, vi, vu, t0, t1, t2 = V(0), V(1), V(2), V(3), V(4), V(5), V(6)
    E(comment("---- setup"),
      raw("s_load_dwordx4 s[4:7], s[0:1], 0", "smem", (), rs(S(4, 4))),
      raw("s_load_dwordx4 s[8:11], s[0:1], 16", "smem", (), rs(S(8, 4))),
      scmp("s_cmp_ge_u32", S(2), 256), raw("s_cbranch_scc1 L_end", "salu", {"scc"}))
    if O_.stamps:
        E(raw("s_load_dwordx2 s[44:45], s[0:1], 40", "smem", (), rs(S(44, 2))),
          raw("s_memrealtime s[46:47]", "smem", (), rs(S(46, 2))))
    E(comment("pull the kernel's own code into L2 (one dword per 128-byte line)"),
      raw("s_getpc_b64 s[40:41]", "salu", (), rs(S(40, 2))), label("L_pc"),
      valu("v_lshlrev_b32", t0, 7, v0), valu("v_min_u32", t1, "L_fast_end-L_pc", t0),
      Inst(f"global_load_dword v7, {t1}, s[40:41]", "vld", rs(t1, S(40, 2)), rs(V(7))),
      valu("v_add_u32", t0, 32768, t0), valu("v_min_u32", t1, "L_fast_end-L_pc", t0),
      Inst(f"global_load_dword v8, {t1}, s[40:41]", "vld", rs(t1, S(40, 2)), rs(V(8))))
    E(valu("v_lshrrev_b32", t1, 6, v0), valu("v_and_b32", vl, 63, v0),
      valu("v_readfirstlane_b32", sW, t1),
      valu("v_and_b32", vi, 15, vl), valu("v_lshrrev_b32", vu, 4, vl),
      valu("v_lshlrev_b32", t0, 1, vu), valu("v_xor_b32", t0, t0, vi), valu("v_lshlrev_b32", t0, 4, t0),
      valu("v_lshl_add_u32", vsd0, vu, 8, t0), valu("v_xor_b32", vsd1, 128, vsd0),
      salu("s_and_b32", sT0, sW, 1), salu("s_lshr_b32", sT1, sW, 1),
      salu("s_lshl_b32", sT2, sT0, 7), salu("s_lshl_b32", sT0, sT0, 10), salu("s_lshl_b32", sT1, sT1, 12),
      salu("s_add_u32", sT0, sT0, sT1),
      valu("v_xor_b32", vkv, sT2, vsd0), valu("v_add_u32", vkv, sT0, vkv),
      salu("s_lshl_b32", sM0, sW, 12), salu("s_mul_i32", sStg, sW, 24576),
      salu("s_mul_i32", sT0, S(2), 196608), salu("s_add_u32", sT0, sT0, sStg), salu("s_add_u32", sStg, sStg, 65536),
      salu("s_lshl_b32", sT1, S(2), 18),
      salu("s_mov_b32", sQ[2], 98304 + 24576), salu("s_mov_b32", sQ[3], "0x20000"),
      wait(lgkm=0),
      salu("s_add_u32", sKb[0], S(6), sT1), salu("s_addc_u32", sKb[1], S(7), 0),
      salu("s_add_u32", sQ[0], S(4), sT0), salu("s_addc_u32", sQ[1], S(5), 0), salu("s_and_b32", sQ[1], sQ[1], "0xffff"))
    g0 = kv_group(0, 0); g0 = [g0[k] for k in (0, 1, 3, 2, 4, 5)]
    more = piecemeal([kv_group(0, -2, False)] + [q_dma_block(0, b) for b in range(NB)] + [kv_group(0, -1, False), g0])
    n_iss = 0
    if O_.xst: E(comment("start-up is bandwidth bound: the dies that clock lower under load (speed only) are served first"),
                 raw(f"s_getreg_b32 {sT2}, hwreg(HW_REG_XCC_ID, 0, 1)", "salu", (), rs(sT2)))
    for k, ch in enumerate(O_.xst):
        E(more(int(ch)), scmp("s_cmp_eq_u32", sT2, O_.xpar), raw(f"s_cbranch_scc0 L_st{k}", "salu", {"scc"}),
          raw("s_waitcnt vmcnt(0)"), label(f"L_st{k}")); n_iss += int(ch)
    E(more(10 - n_iss))
    if O_.pads == 2: E(raw("s_branch L_main"), raw(".p2align 12", "label"), label("L_main"))
    E(salu("s_add_u32", sVb[0], S(8), sT1), salu("s_addc_u32", sVb[1], S(9), 0),
      salu("s_sub_u32", sVb[0], sVb[0], 1024 + 16384), salu("s_subb_u32", sVb[1], sVb[1], 0),
      salu("s_add_u32", sO[0], S(10), sT0), salu("s_addc_u32", sO[1], S(11), 0), salu("s_and_b32", sO[1], sO[1], "0xffff"),
      salu("s_mov_b32", sO[2], 98304 + 24576), salu("s_mov_b32", sO[3], "0x20000"),
      salu("s_add_u32", sVx[0], sVb[0], 1024 + 8192), salu("s_addc_u32", sVx[1], sVb[1], 0),
      salu("s_mov_b32", sC[0], hex(CSCALE)), salu("s_mov_b32", sC[1], hex(CSCALE)),
      salu("s_mov_b32", sThr, hex(THRESH)), salu("s_mov_b32", sFlag, O_.force),
      salu("s_add_u32", sQb[0], sQ[0], 98304), salu("s_addc_u32", sQb[1], sQ[1], 0))
    E(valu("v_and_b32", t0, 7, vi), valu("v_lshlrev_b32", t0, 1, t0), valu("v_xor_b32", t0, t0, vu), valu("v_lshlrev_b32", t0, 4, t0),
      valu("v_lshl_add_u32", t2, vi, 8, t0), valu("v_add_u32", qa[0], sStg, t2),
      valu("v_and_b32", t1, 3, vi), valu("v_lshl_add_u32", t0, t1, 8, t0),
      valu("v_lshrrev_b32", t1, 3, vi), valu("v_lshl_add_u32", t0, t1, 11, t0),
      valu("v_bfe_u32", t1, vi, 2, 1), valu("v_lshl_add_u32", kaddr[0], t1, 12, t0))
    for s in range(1, 4): E(valu("v_xor_b32", kaddr[s], s << 6, kaddr[0]), valu("v_xor_b32", qa[s], s << 6, qa[0]))
    E(valu("v_lshrrev_b32", t1, 2, vi), valu("v_and_b32", t2, 1, vu), valu("v_lshl_add_u32", t0, t2, 2, t1),
      valu("v_lshlrev_b32", t0, 5, t0), valu("v_lshl_add_u32", t0, t1, 8, t0), valu("v_lshl_add_u32", t0, t2, 12, t0),
      valu("v_lshrrev_b32", t2, 1, vu), valu("v_lshl_add_u32", t0, t2, 11, t0),
      valu("v_and_b32", t1, 3, vi), valu("v_lshl_add_u32", t0, t1, 3, t0), valu("v_add_u32", vaddr[0], 1024, t0))
    for t in range(1, 8): E(valu("v_xor_b32", vaddr[t], t << 5, vaddr[0]))
    E(valu("v_mov_b32", t2, "0x3f803f80"))
    for k in range(3):
        E(Inst(f"v_cmp_eq_u32 vcc, {k}, {vi}", "valu", rs(vi), {"vcc"}), nop(1), Inst(f"v_cndmask_b32 {t0}, 0, {t2}, vcc", "valu", rs(t2, "vcc"), rs(t0)),
          [valu("v_accvgpr_write_b32", sel(k)[r], t0) for r in range(4)])
    E(valu("v_lshrrev_b32", t0, 1, vi), valu("v_lshlrev_b32", t1, 1, vu), valu("v_sub_u32", t0, t0, t1),
      valu("v_and_b32", t1, 1, vi), valu("v_lshlrev_b32", t1, 4, t1))
    for k in range(2):
        E(Inst(f"v_cmp_eq_u32 vcc, {k}, {t0}", "valu", rs(t0), {"vcc"}))
        for j, c in enumerate((C_HI, C_LO)):
            E(valu("v_mov_b32", t2, hex(c)), valu("v_lshlrev_b32", t2, t1, t2), Inst(f"v_cndmask_b32 {t2}, 0, {t2}, vcc", "valu", rs(t2, "vcc"), rs(t2)),
              valu("v_accvgpr_write_b32", CS[2 + 4*j + k], t2))
    E([valu("v_accvgpr_write_b32", CS[k], 0) for k in (0, 1, 4, 5, 8, 9)])
    E(valu("v_lshlrev_b32", t0, 3, vl), valu("v_add_u32", ow, sStg, t0),
      valu("v_bfe_u32", t1, vi, 1, 1), valu("v_lshl_add_u32", t0, t1, 2, vu), valu("v_lshlrev_b32", t0, 9, t0),
      valu("v_and_b32", t1, 1, vi), valu("v_lshl_add_u32", t0, t1, 6, t0), valu("v_lshrrev_b32", t1, 2, vi),
      valu("v_lshl_add_u32", t0, t1, 3, t0), valu("v_add_u32", ovr, sStg, t0),
      valu("v_and_b32", t2, 3, vi), valu("v_lshlrev_b32", t0, 5, t2), valu("v_lshl_add_u32", t0, vu, 8, t0),
      valu("v_and_b32", t2, 1, t1), valu("v_lshl_add_u32", t0, t2, 4, t0), valu("v_lshrrev_b32", t2, 1, t1), valu("v_lshl_add_u32", vlin, t2, 7, t0))
    E(more(O_.n0 - 10), stamp_now())
    E(comment("---- first K tile"), wait(vm=[aK(0)]), barrier())
    for a in range(2):
        for s in range(4): E(kread(0, 0, a, s, F(4*a + s)))
    if O_.pads:
        E(comment("visit the start of each code page once (wave w: pages w+1, w+5, ..); every stop jumps straight on while vcc = 0"),
          raw("s_mov_b64 vcc, 0"))
        for w in range(3): E(scmp("s_cmp_eq_u32", sW, w), raw(f"s_cbranch_scc1 L_pad{w + 1}", "salu", {"scc"}))
        E(raw("s_branch L_pad4"), [raw(".p2align 12", "label"), label("L_main")] if O_.pads == 1 else None, label("L_padret"), raw("s_mov_b64 vcc, -1"))
    rawr = lambda s: V(72 + 4*s, 4)
    for b in range(NB):
        E(comment(f"---- start-up block {b}"), wait(vm=blk(aQ, 0, b)), stamp_now() if O_.probe == 2 else None)
        if O_.mq0:
            for s in range(4): E(ds_read("ds_read_b128", Qreg(b, s), qa[s], b*4096, blk(aQ, 0, b)))
            E(more(2), wait(lgkm=[Qreg(b, 0)] + ([F(k) for k in range(8)] if b == 0 else [])))
            pms = [pm(4*b + n) for n in range(4)]
            sc = Sched([m for mf, _ in pms for m in mf])
            sc.put(2, wait(lgkm=0))
            for n in range(3):
                for j, v in enumerate(pms[n][1]): sc.put(4*(n + 1) + j//2, v)
            sc.emit(); E(more(2), pms[3][1])
        else:
            for s in range(4): E(ds_read("ds_read_b128", rawr(s), qa[s], b*4096, blk(aQ, 0, b)))
            for s in range(4):
                E(wait(lgkm=[rawr(s)] + ([F(k) for k in range(8)] if b == 0 else [])))
                E(more(1), scale_frag(rawr(s), Qreg(b, s), V(88, 8), Sreg(b, s & 1)))
        qk = qk_first(b)
        if b < NB - 1: E(qk, rowmax_ops(b), delay_cvts(sm_ops(0, b, 0) + sm_ops(0, b, 1)))
    assert more.left() == 0
    E(qk[:4], wait(vm=[aK(1)]), barrier())
    for s in range(4): E(qk[4 + s], kread(0, 1, 0, s, F(s)))
    E(salu("s_mov_b32", sSide, sStg), salu("s_mov_b32", sCnt, 1), rowmax_ops(NB - 1)[0][:4], wait(lgkm=[F(s) for s in range(4)]), stamp_now())

def o_read(key, p, dst):
    return [ds_read("ds_read_b64_tr_b16", dst[2*hi:2*hi + 2], ovr, (p >> 2)*4096 + (p & 3)*128 + hi*32, key) for hi in range(2)]
def pv_mfmas(par, frags, sums_first=False, init=False):
    mf = [rowsum(par, b) for b in range(NB)] if sums_first else []; st = []
    for h in range(4):
        st.append(len(mf))
        sums = [] if sums_first else [(0, 1), (5, 4), (2,), (3,)][h]
        mf += [m for _, m in pv_pair(par, range(NB) if h % 2 == 0 else range(NB - 1, -1, -1), 2*h, frags[2*h:2*h + 2], init, sums)]
    return mf, st
def late_pieces(k):
    cnt = [int(c, 16) for c in O_.olate]; ne = sum(map(int, O_.osched)); assert sum(cnt) == 24 - ne and sum(cnt[:4]) >= 12
    return (list(range(12, 24)) + list(range(ne, 12)))[sum(cnt[:k]):sum(cnt[:k + 1])]
def kv_plan(J):
    if J >= 16: return [(3, 27)] if J < 28 else []
    o = []
    for k, lead in enumerate(int(x) for x in O_.lead0.split(",")):
        Jk, g = divmod(102*(k + 1) + 23 - lead, 102)
        assert 2 <= g <= 82
        if Jk == J: o.append((k + 1 - J, g))
    return o
END_ORDER = (2, 3, 4, 5, 0, 1)
NPRE = 2
VF15 = [Qreg(4 + t//4, t % 4) for t in range(8)]

def iteration(J, ctl=()):
    par = J & 1; j = J % 16
    mf = [m for a in range(2) for b in range(NB) for _, m in chain(b, a, [F(4*a + s) for s in range(4)], negM(b), b & 1)]
    pv, pst = pv_mfmas(par, [F(t) for t in range(8)], init=(j == 0))
    mf += pv; pst = [48 + x for x in pst]
    sc = Sched(mf)
    for x in ctl: sc.fix(x, 101)
    if ctl: sc.cap[101] = 0
    for s in range(4): sc.fix(kread(J, 1, 1, s, F(4 + s)), [1, 6, 11, 13][s])
    tb2 = None
    if J == 0:
        sc.fix(wait(vm=[rV(0)], lgkm=0), 23); tb = sc.fix(barrier(), 23)
        sc.fix(wait(vm=[rK(2)]), 72); tb2 = sc.fix(barrier(), 72)
    else:
        sc.fix(wait(vm=[rV(0), rK(2)], lgkm=0), 23); tb = sc.fix(barrier(), 23)
    if J == 0 or (J == 16 and O_.tight):
        b = NB - 1; t = sc.seq(rowmax_ops(b)[0][4:], 0, 8, hard=0)
        sub = [sc.add(valu("v_add_f32", V(8*b + r), V(8*b + r), negM(b)[1]), 0, 10 if r < 4 else 22, [(t, 0, 0)]) for r in range(8)]
        sc.run(); sc.done = []
    plan = kv_plan(J); busy = []
    for n_, (d, g0) in enumerate(plan):
        ops = kv_group(J, d); g = g0
        while sc.cap[g - 2] < 4: g += 1
        sc.fix(ops[0], g - 2)
        for x in ops[1:5]:
            while sc.cap[g] < 8 or sc.cap[g - 1] == 0 or sc.cap[g + 1] == 0 or any(y.kind in VAL for y in sc.g[g - 1]): g += 1
            td = sc.fix(x, g); g += O_.dsp1 if 16 <= J < O_.jsp else O_.dsp
        busy.append((g0 - 3, td.gap + 1))
        sc.add(ops[5], 0, 100 if n_ + 1 == len(plan) else plan[n_ + 1][1] - 1, [(td, 1, 1)])
    nq = int(O_.qs[J]) if J < 15 else 0
    if nq:
        p0 = sum(map(int, O_.qs[:J])); g0 = max([50] + [hi + 6 for lo, hi in busy if lo < 50]) if J != 14 else O_.gq14
        qsp = 12 if nq < 3 else 9
        assert all(hi < g0 - 2 or lo > g0 + qsp*(nq - 1) for lo, hi in busy)
        tm = sc.fix(salu("s_mov_b32", "m0", sSide), g0 - 2)
        for k in range(nq):
            t = sc.fix(gdma(vsd1 if (p0 + k) & 1 else vsd0, sQb, k*1024, (lambda k: lambda c: aQ(1, sum(map(int, O_.qs[:c["J"]])) + k))(k), O_.fq), g0 + qsp*k)
        sc.add(salu("s_add_u32", sSide, sSide, 1024*nq), 0, 99, [(tm, 1, 1)])
        g = t.gap + 1
        while sc.cap[g] < 8: g += 1
        sc.fix(salu("s_add_u32", sQb[0], sQb[0], 1024*nq), g); sc.fix(salu("s_addc_u32", sQb[1], sQb[1], 0), g); sc.own.add(g)
    npz = int(O_.ps[J]) if J < 15 else 0
    if npz:
        tot = lambda a, b_: sum(map(int, O_.ps[a:b_]))
        rel = tot(0, J) if O_.unr else (tot(4, J) if J < 12 else tot(12, J))
        raw_, tt = V(142, 2), V(138, 2); p = None; span = 96//(2*npz)
        for k in range(2*npz):
            key = (lambda k: lambda c: aQ(1, tot(0, c["J"]) + k//2))(k)
            off = (rel + k//2)*1024 + (k & 1)*512; lo = 2 + span*k; gw = lo + span - 1
            while sc.cap[gw] < 8 or sc.cap[gw + 1] == 0 or gw in sc.novalu: gw -= 1
            if k % 2 == 0: p = sc.add(wait(vm=[key]), lo, None, [(p, 1, 1)])
            p = sc.add(ds_read("ds_read_b64", raw_, ow, off, key), lo, None, [(p, 1, 1)])
            p = sc.add(wait(lgkm=[raw_]), lo, None, [(p, 1, 7)])
            for r in range(2):
                ops = [valu("v_lshlrev_b32", tt[0], 16, raw_[r]), valu("v_and_b32", tt[1], "0xffff0000", raw_[r]), valu("v_mul_f32", tt[0], sC[0], tt[0]),
                       valu("v_mul_f32", tt[1], sC[0], tt[1]), valu("v_cvt_pk_bf16_f32", raw_[r], tt[0], tt[1])]
                for i, x in enumerate(ops): p = sc.add(x, lo, gw - 1 - (9 - 5*r - i)*O_.psp, [(p, 1 if i + r == 0 else 0, 1 if i + r == 0 else 0)])
            p = sc.fix(ds_write("ds_write_b64", ow, raw_, off, key), gw); sc.cap[gw] = 0
        if J == 7 and not O_.unr: sc.add(valu("v_add_u32", ow, 1024*tot(4, 8), ow), 0, 100, [(p, 1, 1)])
    if J == 14 and int(O_.ps):
        if not O_.unr: sc.add(valu("v_subrev_u32", ow, 1024*sum(map(int, O_.ps[:12])), ow), 0, 40)
        for s in (2, 3): sc.add(valu("v_xor_b32", qa[s], s << 6, qa[0]), 0, 40)
    if J in (27, 28):
        ps = late_pieces(J - 27); g0 = [O_.g11, O_.g12][J - 27]
        base = t = None
        for i, p in enumerate(ps):
            g = g0 + (96 - g0)*i//max(1, len(ps) - 1)
            while g in (22, 23, 24) or sc.cap[g] < 8 or sc.cap[g - 1] == 0 or sc.cap[g + 1] == 0: g += 1
            t = sc.seq(o_read(aO(0, p), p, X[i]), 0, g - 8, t); sc.add(wait(lgkm=[X[i]]), 0, g - 1, [(t, 1, 6)])
            if base is None or not 0 <= p - base < 4: base = p; sc.fix(salu("s_mov_b32", sSide, p*1024), g - 1)
            sc.fix(vstore(X[i], vlin, sO, sSide, (p - base)*1024, O_.late_flags), g)
    p = tb
    for t in range(8):
        for a in range(2): p = sc.add(vread(J, 0, t, a, F(t)), 24 if t < 4 else 48, None, [(p, 1, 1)])
        if t in (1, 3): sc.add(wait(lgkm=[F(t - 1), F(t)]), 0, pst[t//2] - 1, [(p, 1, 8)])
    sc.add(wait(lgkm=[F(4), F(5), F(6), F(7)]), 0, pst[2] - 1, [(p, 1, 8)])
    for s in range(4): p = sc.add(kread(J, 2, 0, s, F(s)), pst[2], None if J != 14 else 90, [(p, 1, 1), (tb2, 1, 1)])
    if J == 28:
        pre = late_pieces(2)[:NPRE]
        p = sc.seq([x for i, q in enumerate(pre) for x in o_read(aO(0, q), q, X[i])], 60, None, p)
    if J != 14: sc.add(wait(lgkm=[F(s) for s in range(4)] + (X[:NPRE] if J == 28 else [])), 0, 101 if J == 28 else 100, [(p, 1, 8 if J != 28 else 5)])
    else:
        sc.fix(wait(vm=[rV(1), rK(3)] + blk(aQ, 1, 0)), 92); t = sc.fix(barrier(), 92)
        for k in range(4): sc.fix(vread(J, 1, k//2, k & 1, VF15[k//2]), 93 + 2*k)
    nxt = lambda ne: [x for _, x in sm_split(1 - par, ne, END_ORDER if J == 28 else range(NB))[0]]
    if J == 0:
        b = NB - 1
        sc.sm([(sm_ops(0, b, 0), sub[3].gap + 1, 19), (sm_ops(0, b, 1), sub[7].gap + 1, 43), (nxt(NE_A), 24, 100)])
    elif J == 16 and O_.tight:
        tail = sm_split(0, O_.ne1)[1]; b = NB - 1
        sc.sm([(sm_ops(0, b, 0), sub[3].gap + 1, 19)] + [([x for bb, x in tail if bb == k], sub[7].gap + 1, 23 + 4*k) for k in range(NB) if any(bb == k for bb, _ in tail)]
              + [(nxt(NE_A), 24, 100)])
    elif J == 16:
        tail = sm_split(0, O_.ne1)[1]
        sc.sm([([x for bb, x in tail if bb == b], 0, 23 + 4*b) for b in range(NB) if any(bb == b for bb, _ in tail)] + [(nxt(NE_A), 24, 100)])
    elif J == 14:
        sc.sm([([x for _, x in sm_split(par)[1]], 0, 30)] + [(sm_ops(1, b, a), 24*a + 4*b + 8, 101) for a in range(2) for b in range(NB)])
    else:
        sc.sm([([x for _, x in sm_split(par)[1]], 0, 30)], 2.4)
        sc.sm([(nxt(NE_A), 24, 100)])
    for t in sc.done + sc.t:
        if t.x.m.get("op") in ("v_exp_f32", "v_cvt_pk_bf16_f32") and t.lo0 == 24:
            r = min(int(x[1:]) for x in t.x.rd); t.lo0 = 24*((r >> 2) & 1) + 4*(r >> 3) + (9 if t.x.kind == "trans" else 10)
    sc.run(); sc.polish(); sc.emit()

def straight(J, *pre):
    s = seg(f"J{J}"); path.append((s, {"J": J})); E(comment(f"---- head {J//16}, key tile {J % 16}"), pre); iteration(J)
def loop4(name, J0, passes):
    ss = []
    for k in range(4):
        ss.append(seg(f"{name}{k}"))
        if k == 0: E(raw(".p2align 3", "label"), label(f"L_{name}"))
        d = salu("s_sub_u32", sCnt, sCnt, 1); d.m["last"] = True
        iteration(J0 + k, [d, raw(f"s_cbranch_scc0 L_{name}", "salu", {"scc"}, (), last=True)] if k == 3 else [])
        for n in range(1, passes): assert kv_plan(J0 + k) == kv_plan(J0 + k + 4*n) and (J0 > 15 or (O_.qs[J0 + k], O_.ps[J0 + k]) == (O_.qs[J0 + k + 4*n], O_.ps[J0 + k + 4*n]))
    assert J0 > 15 or sum(map(int, O_.qs[J0:J0 + 4])) % 2 == 0
    for n in range(4*passes): path.append((ss[n % 4], {"J": J0 + n}))

def l_ops(h, b0, r, t1):
    o = [valu("v_accvgpr_read_b32", r[k], lacc(b0)[k]) for k in range(4)]
    o += [valu("v_add_f32", t1, r[0], r[1]), valu("v_add_f32", t1, t1, r[2]), valu("v_add_f32", t1, t1, r[3])]
    o += [valu("v_rcp_f32", r[k], r[k]) for k in range(4)]
    return o
def l_flag(h, t1):
    return [Inst(f"v_cmp_nlt_f32 {sCmp}, {t1}, {sThr}", "valu", rs(t1, sThr), rs(sCmp)), nop(0),
            scmp("s_cmp_lg_u64", sCmp, 0), salu("s_cselect_b32", sT0, 1 << h, 0), salu("s_or_b32", sFlag, sFlag, sT0)]
def l_bcast(b, r, dst):
    o = [valu("v_mov_b64_dpp", dst[2*k:2*k + 2], r[2*k:2*k + 2], mods=f"row_newbcast:{b % 3} row_mask:0xf bank_mask:0xf") for k in range(2)]
    for x in o: x.m["dpp"] = True
    return o
def epi_half(h, b, th, rl, tmp, y):
    r0 = Oreg(b, 4*th); w = V(r0.i, 16) if r0.k == "v" else tmp; o = []
    if r0.k == "a": o += [valu("v_accvgpr_read_b32", w[i], A(r0.i + i)) for i in range(16)]
    o += [valu("v_pk_mul_f32", w[2*i:2*i + 2], w[2*i:2*i + 2], rl[2*(i & 1):2*(i & 1) + 2]) for i in range(8)]
    o += [valu("v_cvt_pk_bf16_f32", y[2*r + k], w[8*k + r], w[8*k + 4 + r]) for r in range(4) for k in range(2)]
    o += [ds_write2st64(ow, y[4*k:4*k + 2], y[4*k + 2:4*k + 4], 8*b + 4*th + 2*k, 8*b + 4*th + 2*k + 1, blk(aO, h, b)) for k in range(2)]
    return o

def transition():
    s = seg("trans"); path.append((s, {"J": 15}))
    E(stamp_now(), comment("---- head 0: last PV; switch to head 1"))
    vf = VF15
    F0 = sum(map(int, O_.ps)); assert F0 % 4 == 0 and F0 <= 12 and O_.ps[:4] == "0000" and O_.ps[14] == "0"
    raw0 = V(16, 4)
    def qrd(b): return [ds_read("ds_read_b128", Qreg(b, n), qa[n], b*4096, blk(aQ, 1, b)) for n in range(4) if 4*b + n != F0]
    rc = [negM(4), negM(5)]
    rl = V(72, 4); y = V(76, 8)
    npre = sum(map(int, O_.qs)); assert npre >= 8
    more = piecemeal([[x for k, x in enumerate(q_dma_block(1, b)) if k < 2 or 4*b + k - 2 >= npre] for b in range(npre//4, NB)]
                     + [kv_group(15, d) for d in (1, 2, 3)])
    vr = [vread(15, 0, t, a, vf[t]) for t in range(8) for a in range(2)]
    pv, pst = pv_mfmas(1, vf, True)
    sc = Sched(pv)
    g = 8
    for grp in more(O_.tq):
        for i, x in enumerate(grp):
            if x.kind not in MEM: sc.fix(x, g - 3 if len(grp) - i > 3 else g - 2)
            else: sc.fix(x, g); g += O_.tstep
    sc.add(wait(lgkm=vf[:2]), 4, pst[0] - 1)
    p = sc.seq([wait(vm=blk(aQ, 1, F0//4)), ds_read("ds_read_b128", raw0, qa[0], F0*1024, blk(aQ, 1, F0//4))], 0); wq = sc.add(wait(lgkm=[raw0]), 0, 10, [(p, 1, 6)])
    p = sc.seq(vr[4:8], 0, None, p); sc.add(wait(lgkm=vf[2:4]), 0, pst[1] - 1, [(p, 1, 6)])
    p = sc.seq(vr[8:], 0, None, p); sc.add(wait(lgkm=vf[4:]), 0, pst[2] - 1, [(p, 1, 6)])
    p = sc.seq([kread(15, 1, 1, k, F(4 + k)) for k in range(4)] + qrd(0) + [wait(vm=blk(aQ, 1, 1))] + qrd(1), 24, 46, p)
    sc.fix(wait(lgkm=0), 53); sc.fix(barrier(), 53)
    sc.run()
    lv = l_ops(0, 0, rc[0], V(60)) + l_ops(0, 3, rc[1], V(61)) + [valu("v_add_f32", V(60), V(60), V(61))]; ls = l_flag(0, V(60))
    st = scale_frag(raw0, Qreg(F0//4, 0), V(0, 8), V(8, 4), pk=False)
    rest = sc.pour((lv, 10), (st, wq.gap + 1)); sc.emit(); E(rest); rest = []
    def site(k):
        c = [int(x) for x in O_.osched] + [0]; p0 = sum(c[:k]); o = more(int(O_.tsched[k]) if O_.tsched else O_.tper)
        if c[k]:
            o += [salu("s_mov_b32", sT1, p0*1024), wait(lgkm=[X[(p0 + i) % 4] for i in range(c[k])])]
            o += [vstore(X[(p0 + i) % 4], vlin, sO, sT1, i*1024, O_.late_flags) for i in range(c[k])]
        p1 = p0 + c[k]; assert (p1 + c[k + 1] + 3)//4 <= (k + 1)//2 or not c[k + 1]
        return o + [o_read(aO(0, p), p, X[p % 4]) for p in range(p1, p1 + c[k + 1])]
    first = sm_split(0, O_.ne1)[0]
    def finish(b): return rowmax_ops(b)[1] + delay_cvts([x for bb, x in first if bb == b])
    for b in range(NB):
        E(comment(f"---- switch block {b}"), stamp_now() if O_.probe == 1 else None)
        fs = range(max(F0 + 1, 4*b + 1), min(4*b + 5, 4*NB))
        mf = []; fl = []
        for f in fs:
            m, x = pm(f); mf += m; fl.append(x)
        qk = qk_first(b)
        if b == NB - 1: qk = [qk[k] for k in (0, 1, 2)] + [m for _, m in chain(b, 1, [F(4 + s_) for s_ in range(4)], 0, False)][:3] + [qk[3]]; \
                        qk.append(mfma(Sreg(b, 1), F(7), Qreg(b, 3), Sreg(b, 1)))
        sc = Sched(mf + qk)
        for k, x in enumerate(fl):
            for j, v in enumerate(x): sc.put(4*(k + 1) + j//2, v)
        h0, h1 = epi_half(0, b, 0, rl, V(176, 16), y), epi_half(0, b, 1, rl, V(192, 16), y)
        if O_.tight:
            assert npre >= 16; lt = int(npre < 24 or O_.lt)
            for bb, g0 in {0: [(2, 0), (3, len(mf) + 4)], 1 + lt: [(4, 0)], 2 + lt: [(5, 0)]}.get(b, []):
                if bb != 3: E(wait(vm=blk(aQ, 1, max(bb, 3))))
                for n, x in enumerate(qrd(bb)): sc.put(g0 + n, x)
            if 1 <= b < NB - 1: E(wait(lgkm=[Qreg(b + 1, n) for n in range(4)]))
            acc = [x for x in h0 + h1 if x.m.get("op") == "v_accvgpr_read_b32"]
            mx = rowmax_ops(b - 1)[0] if b else ls[:1]
            left = sc.pour((mx, 0), (acc, 0)); sc.emit()
            E([x for x in left if x not in acc], ls[2:] if b == 0 else None)
            h0, h1 = [[x for x in h if x not in acc or x in left] for h in (h0, h1)]
        else:
            if 1 <= b < NB - 1:
                sc.put(0, wait(vm=blk(aQ, 1, b + 1)))
                for n, x in enumerate(qrd(b + 1)): sc.put(1 + n, x)
                sc.put(11, wait(lgkm=[Qreg(b + 1, n) for n in range(4)]))
            rest = sc.pour((rowmax_ops(b - 1)[0] if b else rest, 0)); sc.emit(); E(rest, ls if b == 0 else None)
        if b == NB - 1: E([kread(15, 2, 0, s_, F(s_)) for s_ in range(4)])
        E(l_bcast(b, rc[b//3], rl), h0, site(2*b), finish(b - 1) if b else None, h1, site(2*b + 1))
    assert more.left() == 0
    E(rowmax_ops(NB - 1)[0][:4] if O_.tight else [rowmax_ops(NB - 1)[0], finish(NB - 1)])
    E(salu("s_mov_b32", sCnt, 1), wait(lgkm=[F(s_) for s_ in range(4)]), stamp_now())

def endgame():
    s = seg("end"); path.append((s, {"J": 29}))
    E(stamp_now())
    carry = []
    for ps, H in enumerate(([3, 4, 5], [0, 1, 2])):
        E(comment(f"---- pass {ps}"))
        subs = [("Q", 1, 0), ("Q", 1, 1), ("P", 0, 0), ("P", 0, 1), ("Q", 2, 0), ("Q", 2, 1), ("P", 1, 0), ("P", 1, 1), ("P", 2, 0), ("P", 2, 1)]
        FA, FB = [F(k) for k in range(4)], [F(4 + k) for k in range(4)]
        G = [[Qreg(3 + n, k) for k in range(4)] for n in range(3)]; Hh = [[A(176 + 16*n + 4*k, 4) for k in range(4)] for n in range(5)]
        fr = [FA, FB, FA, FB, FA, FB, FA] + G if ps == 0 else [FA, FB] + Hh + G
        mf = []; use = []; cend = {}; cstart = {}; pstart = {}; bstart = {}
        for i, (kind, d, x) in enumerate(subs):
            u = {}
            if kind == "Q":
                for n, b in enumerate(H):
                    cstart[(d, b, x)] = len(mf)
                    for s_, m in chain(b, x, fr[i], negM(b), n & 1): u.setdefault(s_, []).append(len(mf)); mf.append(m)
                    cend[(d, b, x)] = len(mf) - 1
            elif d == 2:
                if x == 0:
                    u2 = {}
                    for n, b in enumerate(H):
                        bstart[b] = len(mf); mf.append(rowsum(1, b))
                        for t in range(8):
                            (u if t < 4 else u2).setdefault(t & 3, []).append(len(mf))
                            mf.append(mfma(Oreg(b, t), Preg(1, b), fr[i + (t >> 2)][t & 3], Oreg(b, t)))
                else: u = u2
            else:
                par = (d + 1) & 1
                if x == 0: pstart[d] = len(mf)
                for hh in range(2):
                    for t, m in pv_pair(par, H if hh == 0 else H[::-1], 4*x + 2*hh, fr[i][2*hh:2*hh + 2], False, H[2*x + hh:2*x + hh + 1]):
                        if t is not None: u.setdefault(t & 3, []).append(len(mf))
                        mf.append(m)
            use.append(u)
        sc = Sched(mf); bar = {}
        if ps == 0:
            for d, g, keys in ((0, 9, [rV(0), rK(2)]), (1, use[4][1][-1], [rV(1), rV(2)])):
                sc.fix(wait(vm=keys), g)
                bar[d] = bar[2] = sc.fix(barrier(), g)
        pcs = [(0, q) for q in late_pieces(2) + late_pieces(3)] if ps == 0 else [(0, q) for q in late_pieces(4)] + carry
        taken = {t.gap + k for t in bar.values() for k in (-1, 0, 1)}
        NX = 7; prev_st = [None]*NX; pst = None; base = None
        for i, (h, q) in enumerate(pcs):
            g = O_.p0g + (len(mf) - 4 - O_.p0g)*i//max(1, len(pcs) - 1) if ps == 0 else int(O_.p1g + (len(mf) - 3 - O_.p1g)*(i/(len(pcs) - 1))**O_.p1e)
            while g in taken or g - 1 in taken: g += 1
            off = h*98304 + q*1024; xr = X[i % NX]
            if base is None or not 0 <= off - base < 4096:
                base = off; sc.add(salu("s_mov_b32", sSide, base), 0, g - 1, [(pst, 1, 1)])
            if ps or i >= NPRE:
                r = sc.seq(o_read(aO(h, q), q, xr), g - 60, g - 8, prev_st[i % NX])
                sc.add(wait(lgkm=[xr]), 0, g - 1, [(r, 1, 7)])
            pst = prev_st[i % NX] = sc.fix(vstore(xr, vlin, sO, sSide, off - base, O_.h0_flags if h else O_.late_flags), g)
        prev = None
        for i, (kind, d, x) in enumerate(subs):
            if i == 0 or (ps == 1 and (i == 1 or i >= 7)): continue
            tight = ps == 0 and i < 7
            for k in range(4):
                lo = (use[i - 2][k][-1] if i >= 2 else 0) if tight else (cend[(2, 3 + i - 7, 1)] if ps == 0 else 0)
                rds = [kread(29, d, x, k, fr[i][k])] if kind == "Q" else [vread(29, d, 4*x + k, a, fr[i][k]) for a in range(2)]
                bp = bar.get(d if kind == "P" else (0 if d == 2 else None))
                for r in rds: prev = sc.add(r, lo, None, [(prev, 1, 1), (bp, 1, 1)])
                if tight and kind == "P" and k & 1: sc.add(wait(lgkm=fr[i][k - 1:k + 1]), 0, min(use[i][k - 1][0], use[i][k][0]) - 1, [(prev, 1, 6)])
            if not (tight and kind == "P"): sc.add(wait(lgkm=fr[i]), 0, use[i][0][0] - 1, [(prev, 1, 6)])
        if ps == 0:
            for a in range(2):
                for k in range(4): prev = sc.add(kread(29, 1, a, k, F(4*a + k)), use[6][k][-1], None, [(prev, 1, 1)])
        grp = [([x for bb, x in sm_split(1, NE_A, END_ORDER)[1] if bb == b], 0, cstart[(1, b, 1)] - 1) for b in H if b >= O_.tl0]
        for a in range(2):
            for k, b in enumerate(H): grp.append((sm_ops(0, b, a), cend[(1, b, a)] + 4, min(pstart[1] - 2 + 2*k, cstart[(2, b, a)] - 1)))
        sc.sm(grp)
        order = [(H[0], 0), (H[1], 0), (H[0], 1), (H[2], 0), (H[1], 1), (H[2], 1)]
        sc.sm([(sm_ops(1, b, a), cend[(2, b, a)] + 4, bstart[b] - 2) for b, a in order]
              + ([(sm_ops(1, b, 1), 100, len(mf) - 1) for b in range(O_.tl0)] if ps == 0 else []), 2.4)
        sc.run(); sc.polish(200000)
        rc, rl, t1 = negM(H[0]), negM(H[1]), negM(H[2])[0]
        rest = sc.pour((l_ops(1, H[0], rc, t1), bstart[H[2]] + 4)); sc.emit()
        E(rest, l_flag(1, t1), stamp_now(), comment("---- epilogue"))
        dsts = [X[:4], [F(4 + i) for i in range(4)]]
        pend = []
        for k, b in enumerate(H):
            E(l_bcast(b, rc, rl))
            for th in range(2):
                ep = epi_half(1, b, th, rl, V(24, 16), V(40, 8))
                E(ep)
                E(pend[:2]); del pend[:2]
            if ps == 0 and k > 0: carry += [(1, 4*b + i) for i in range(4)]; continue
            d_ = dsts[k & 1]
            E([o_read(aO(1, 4*b + i), 4*b + i, d_[i]) for i in range(4)])
            sts = [vstore(d_[i], vlin, sO, sSide, i*1024, O_.fin_flags if ps else O_.h0_flags) for i in range(4)]
            pre = [salu("s_mov_b32", sSide, 98304 + b*4096), wait(lgkm=d_)]
            pend = [pre + [sts[0]], None, sts[1], None, sts[2], None, sts[3]] if ps == 0 else [pre + [sts[0]], sts[1], sts[2], sts[3]]
        E(pend, wait(lgkm=0), stamp_now())

def slow_path():
    sH, sB, sI, sKo, sQo = S(4), S(5), S(6), S(7), S(8)
    Qf = [V(4*s, 4) for s in range(4)]; Kf = [V(16 + 4*i, 4) for i in range(8)]; St = [V(48, 4), V(52, 4)]; Pf = V(56, 4)
    nm = V(60, 4); Vf = V(64, 4); Of = [V(68 + 4*t, 4) for t in range(8)]; L = V(100, 4); w = V(104, 8)
    ones = V(120, 4)
    vrow, vk, vv, vtr, vst_, t0, t1 = V(112), V(113), V(114), V(115), V(116), V(117), V(118)
    def S_(name, J=0):
        s = seg(name); return s
    s0 = S_("slow0")
    E(comment("---- fallback: a row sum left the safe range, redo this wave's rows with the true row max"),
      label("L_slow"), wait(vm=0, lgkm=0),
      valu("v_mbcnt_lo_u32_b32", t0, -1, 0), valu("v_mbcnt_hi_u32_b32", t0, -1, t0), valu("v_lshlrev_b32", vlin, 4, t0),
      [valu("v_mov_b32", ones[r], "0x3f803f80") for r in range(4)],
      valu("v_bfe_u32", t0, vlin, 4, 4), valu("v_lshrrev_b32", t1, 8, vlin),
      valu("v_lshlrev_b32", vrow, 8, t0), valu("v_lshl_add_u32", vst_, t1, 3, vrow), valu("v_lshl_add_u32", vrow, t1, 4, vrow),
      valu("v_lshrrev_b32", vtr, 2, t0), valu("v_lshl_add_u32", vtr, t1, 2, vtr), valu("v_lshlrev_b32", vtr, 8, vtr),
      valu("v_and_b32", t0, 3, t0), valu("v_lshl_add_u32", vtr, t0, 3, vtr), valu("v_add_u32", vtr, sStg, vtr),
      salu("s_mov_b32", sH, 0))
    s1 = S_("slow_head")
    E(label("L_sl_head"), salu("s_lshr_b32", sT0, sFlag, sH), salu("s_and_b32", sT0, sT0, 1), raw("s_cbranch_scc0 L_sl_next", "salu", {"scc"}),
      salu("s_lshl_b32", sKo, sH, 17), salu("s_mul_i32", sQo, sH, 98304), salu("s_mov_b32", sB, 0))
    s2 = S_("slow_blk")
    E(label("L_sl_blk"))
    for s in range(4): E(vload(Kf[s], vrow, sQ, sQo, 64*s))
    E(wait(vm=0))
    for s in range(4): E(scale_frag(Kf[s], Qf[s], w, None))
    E(valu("v_mov_b32", nm[0], "0xff800000"), valu("v_add_u32", vk, sKo, vrow), salu("s_mov_b32", sI, 32))
    s3 = S_("slow_p1")
    E(label("L_sl_p1"))
    for s in range(4): E(gload(Kf[s], vk, sKb, 64*s))
    E(valu("v_add_u32", vk, 4096, vk), wait(vm=0))
    for s in range(4): E(mfma(St[0], Kf[s], Qf[s], 0 if s == 0 else St[0]))
    E(salu("s_sub_u32", sI, sI, 1), scmp("s_cmp_lg_u32", sI, 0), nop(7),
      valu("v_max3_f32", nm[0], nm[0], St[0][0], St[0][1]), valu("v_max3_f32", nm[0], nm[0], St[0][2], St[0][3]),
      raw("s_cbranch_scc1 L_sl_p1", "salu", {"scc"}))
    s4 = S_("slow_mid")
    E(xlane_max(nm[0], nm[1]), [valu("v_sub_f32", nm[r], 0, nm[0]) for r in (1, 2, 3, 0)])
    for r in range(36): E(valu("v_mov_b32", V(68 + r), 0))
    E(valu("v_add_u32", vk, sKo, vrow), valu("v_add_u32", vv, sKo, vlin), valu("v_add_u32", vv, 1024 + 16384, vv), salu("s_mov_b32", sI, 16))
    s5 = S_("slow_p2")
    E(label("L_sl_p2"))
    key = (("stg", "slow"), ("Vs",), False)
    for half in range(2):
        E(salu("s_add_u32", "m0", sStg, 4096*half))
        for s in range(4): E(gload(Kf[4*half + s], vk, sKb, 64*s))
        for k in range(4): E(gdma(vv, sVb, 1024*k, key, ""))
        E(valu("v_add_u32", vk, 4096, vk), valu("v_add_u32", vv, 4096, vv))
    E(wait(vm=0))
    for a in range(2):
        for s in range(4): E(mfma(St[a], Kf[4*a + s], Qf[s], nm if s == 0 else St[a]))
    E(nop(7))
    for r in range(8): E(valu("v_exp_f32", V(48 + r), V(48 + r)))
    for r in range(4): E(valu("v_cvt_pk_bf16_f32", Pf[r], V(48 + 2*r), V(49 + 2*r)))
    E(mfma(L, ones, Pf, L))
    for t in range(8):
        for a in range(2): E(ds_read("ds_read_b64_tr_b16", Vf[2*a:2*a + 2], vtr, a*4096 + 32*t, key))
        E(wait(lgkm=0), mfma(Of[t], Vf, Pf, Of[t]), nop(1))
    E(salu("s_sub_u32", sI, sI, 1), scmp("s_cmp_lg_u32", sI, 0), raw("s_cbranch_scc1 L_sl_p2", "salu", {"scc"}))
    s6 = S_("slow_epi")
    E(nop(7), valu("v_rcp_f32", t0, L[0]), nop(0))
    for t in range(8):
        for r in range(4): E(valu("v_mul_f32", Of[t][r], t0, Of[t][r]))
        E(valu("v_cvt_pk_bf16_f32", Of[t][0], Of[t][0], Of[t][1]), valu("v_cvt_pk_bf16_f32", Of[t][1], Of[t][2], Of[t][3]),
          vstore(Of[t][0:2], vst_, sO, sQo, 32*t, "", "buffer_store_dwordx2"))
    E(salu("s_add_u32", sQo, sQo, 4096), salu("s_add_u32", sB, sB, 1), scmp("s_cmp_lt_u32", sB, NB), raw("s_cbranch_scc1 L_sl_blk", "salu", {"scc"}))
    s7 = S_("slow_next")
    E(label("L_sl_next"), salu("s_add_u32", sH, sH, 1), scmp("s_cmp_lt_u32", sH, 2), raw("s_cbranch_scc1 L_sl_head", "salu", {"scc"}))
    blkp = [s2, s3, s3, s4, s5, s5, s6]
    path2.extend((x, {"J": 0}) for x in [s0, s1] + blkp + blkp + [s7, s1] + blkp + [s7])

def finish():
    if O_.diag:
        a, b = [int(x) for x in O_.diag.split(":")]
        E(wait(vm=0), raw("s_memrealtime s[42:43]", "smem", (), rs(S(42, 2))), wait(lgkm=0), salu("s_mov_b32", S(47), S(42)),
          salu("s_sub_u32", sT0, S(STAMP0 + b), S(STAMP0 + a)), salu("s_lshr_b32", sT0, sT0, 3 if O_.stamps == 1 else 0),
          salu("s_add_u32", sT0, sT0, 7000),
          label("L_spin"), raw("s_memrealtime s[42:43]", "smem", (), rs(S(42, 2))), wait(lgkm=0),
          salu("s_sub_u32", S(42), S(42), S(46)), scmp("s_cmp_lt_u32", S(42), sT0), raw("s_cbranch_scc1 L_spin", "salu", {"scc"}))
    elif O_.stamps:
        E(wait(vm=0), raw("s_memrealtime s[42:43]", "smem", (), rs(S(42, 2))), wait(lgkm=0), salu("s_mov_b32", S(47), S(42)))
        E(salu("s_lshl_b32", sT0, S(2), 2), salu("s_add_u32", sT0, sT0, sW), salu("s_lshl_b32", sT0, sT0, 8))
        E(valu("v_mov_b32", V(1), sT0))
        for k in range(nstamp[0] + 2):
            E(valu("v_mov_b32", V(2), S(46 + k)),
              Inst(f"global_store_dword v1, v2, s[44:45] offset:{4*k}", "vst", rs(V(1), V(2), S(44, 2)), (), data=set()), nop(1))
    if O_.stamps and not O_.diag:
        E(raw("s_getreg_b32 s42, hwreg(HW_REG_XCC_ID)", "salu", (), rs(S(42))), valu("v_mov_b32", V(1), sT0), valu("v_mov_b32", V(2), S(42)),
          Inst("global_store_dword v1, v2, s[44:45] offset:252", "vst", rs(V(1), V(2), S(44, 2)), (), data=set()))
    E(scmp("s_cmp_eq_u32", sFlag, 0), raw("s_cbranch_scc1 L_end", "salu", {"scc"}), label("L_fast_end"))

def build():
    s = seg("start"); path.append((s, {"J": 0})); startup()
    for J in range(4): straight(J)
    if O_.probe == 4: E(stamp_now())
    if not O_.unr: loop4("A", 4, 2)
    for J in range(4 if O_.unr else 12, 15): straight(J)
    transition()
    straight(16)
    loop4("M", 17, 2)
    for J in range(25, 29): straight(J, stamp_now() if J == 28 or (J == 26 and O_.probe == 4) else None)
    endgame()
    finish()
    if O_.slow: slow_path()
    seg("exit"); E(label("L_end"))
    def trace(): return [(i, mkctx(c)) for sidx, c in path + path2 for i in segs[sidx][1]]
    for rnd in range(5):
        fix = {}
        resolve_and_check(trace(), fix=fix)
        for sg in segs:
            new = []
            for i in sg[1]:
                if i.kind == "wait" and i.m["nvm"] in (None, 63) and i.m["nlg"] in (None, 15): fix[0] = 1; continue
                if id(i) in fix: new.append(nop(fix[id(i)] - 1))
                new.append(i)
            sg[1][:] = new
        if not fix: break
    resolve_and_check(trace(), verbose=True)
    if O_.stamps:
        tr = [i for sidx, c in path for i in segs[sidx][1]]; cuts = [k for k, i in enumerate(tr) if i.kind == "smem" and "s[42:43]" in i.text]
        print("  est between stamps:", [cost_estimate(tr[a:b]) for a, b in zip(cuts, cuts[1:])])
    for name, ins in segs:
        if not name.startswith("slow"): print(f"  seg {name:8s} insts {len(ins):5d} est cycles {cost_estimate(ins):6d} nops {sum(1 for i in ins if i.kind == 'nop')}")

HEAD = """; MHA forward, B=16 H=32 Sq=384 Sk=512 D=128, bf16 in/out.  Written with the author's own generator script.
; K/V stream exactly once through a 4-slot LDS ring (LDS-DMA, one barrier per tile); Q and O pass through a per-wave
; staging area (O is transposed there so that whole 128-byte lines are stored).
; Softmax: Q is pre-scaled by log2(e)/sqrt(D).  Each row's max over its first 32 keys is subtracted through the MFMA
; C operand (so every row sum is >= 1, nothing can underflow); the row sums come from an MFMA against a ones column.
; Guard: a row sum that is NaN or >= 2^64 flags the wave, which then redoes its rows with the true row max (L_slow).
; @launch grid=(256,1,1) block=(256,1,1) lds=163840
.amdgcn_target "amdgcn-amd-amdhsa--gfx950"
.text
.globl standalone__mha_softmax__near_ridge_kernel
.p2align 8
.type standalone__mha_softmax__near_ridge_kernel,@function
standalone__mha_softmax__near_ridge_kernel:
"""
TAIL = """    s_endpgm
.section .rodata,"a"
.p2align 6
.amdhsa_kernel standalone__mha_softmax__near_ridge_kernel
  .amdhsa_next_free_vgpr 512
  .amdhsa_next_free_sgpr 102
  .amdhsa_accum_offset 256
  .amdhsa_group_segment_fixed_size 0
  .amdhsa_kernarg_size 48
  .amdhsa_user_sgpr_count 2
  .amdhsa_user_sgpr_kernarg_segment_ptr 1
  .amdhsa_system_sgpr_workgroup_id_x 1
.end_amdhsa_kernel
"""
def insert_pads(text):
    import subprocess, re, tempfile, os
    def offsets(npads):
        d = tempfile.mkdtemp(); t = text()
        t = t.replace("L_padret:", "L_padret:\n" + "".join(f"L_pad{k}:\n" for k in range(npads + 1, 40)))
        open(d + "/a.s", "w").write(t)
        subprocess.run(["clang", "-x", "assembler", "-target", "amdgcn-amd-amdhsa", "-mcpu=gfx950", "-c", d + "/a.s", "-o", d + "/a.o"], check=True)
        dis = subprocess.run(["llvm-objdump", "-d", "--mcpu=gfx950", d + "/a.o"], capture_output=True, text=True).stdout
        sym = subprocess.run(["llvm-readelf", "-s", d + "/a.o"], capture_output=True, text=True).stdout
        main = int(re.search(r"([0-9a-f]{16}) .* L_main$", sym, re.M).group(1), 16)
        ad = [(int(m.group(2), 16), m.group(1)) for m in re.finditer(r"^\s+(\S+).*// ([0-9A-F]{12}):", dis, re.M)]
        ad = [x for x in ad if x[0] >= main]
        flat = [(sg, k) for sg in segs for k in range(len(sg[1]))]
        flat = flat[[i for i, (sg, k) in enumerate(flat) if sg[1][k].text == "L_main:"][0]:]
        o = []; j = 0
        for sg, k in flat:
            x = sg[1][k]
            if x.kind == "label":
                if x.text == "L_fast_end:": break
                if x.text.startswith(".p2align") and ad[j][0] % 8: j += 1
                continue
            assert ad[j][1].startswith(x.text.split()[0][:12]), (ad[j], x.text)
            o.append((ad[j][0] - ad[0][0], sg, k)); j += 1
        return o
    page = 1; pads = []
    while True:
        off = offsets(page - 1)
        cand = [n for n, (a, sg, k) in enumerate(off) if 4096*page <= a <= 4096*page + 56]
        if not cand: break
        def score(n):
            a, sg, k = off[n]; lo = max(0, k - 8); w = sg[1][lo:k + 8]
            return cost_estimate(w[:k - lo] + [raw("pad")] + w[k - lo:]) - cost_estimate(w)
        n = min(cand, key=score); _, sg, k = off[n]
        p = raw(f"s_cbranch_vccz L_pad{page + 4}"); pads.append(p)
        sg[1][k:k] = [label(f"L_pad{page}"), p]
        page += 1
    for i, p in enumerate(pads):
        if i + 1 + 4 >= page: p.text = "s_cbranch_vccz L_padret"
    assert page > 4
    print(f"  {page - 1} page pads")

if __name__ == "__main__":
    out = sys.argv[1]
    for a in sys.argv[2:]:
        k, v = a.split("=")
        setattr(O_, k, type(getattr(O_, k))(v))
    build()
    def text(): return HEAD + "\n".join((i.text if i.kind == "label" else "    " + i.text) for _, ins in segs for i in ins) + "\n" + TAIL
    if O_.pads: insert_pads(text)
    open(out, "w").write(text())
    import subprocess
    r = subprocess.run([sys.executable, "cdna_unwritten_srd_check.py", out], capture_output=True, text=True)
    print("  check:", r.stdout.strip()[-300:], r.stderr.strip()[-300:])
```

```python
import sys, math, struct, random
from ir import *

class Opt:
    stamps = 0; diag = ""; probe = 0; force = 0
    late_flags = "sc1"; h0_flags = "sc1"; fin_flags = "sc1"; fq = "nt"; fk = "nt"; fv = "nt"
    n0 = 14
    lead0 = "80,85,90,100,123,123,123,123,123,123,123,123,123,123,145"
    qs = "001122222222104"
    tq = 4; tstep = 12; tper = 2
    olate = "26552"
    unr = 0
    dsp1 = 5; jsp = 27
    xst = ""; xpar = 0
    rdp = 8; rdn = 4; slip = 1
    last_flags = "sc1"; lastk = 2
    lt = 1; gq14 = 27
    psp = 2; opt = 1; nea = 40
    g11 = 56; g12 = 16; dsp = 5; p0g = 6; p1g = 10; p1e = 1.0; tl0 = 1
    osched = "000000220000"; tsched = "111222000000"
    ne1 = 36
    pads = 1
    mq0 = 0
    tight = 1
    ps = "000011111111000"
    pvo = "bs2"; qks = 1; slow = 1
O_ = Opt()

NB = 6
def f32bits(x): return struct.unpack("<I", struct.pack("<f", x))[0]
CSCALE = f32bits(math.log2(math.e) / math.sqrt(128.0))
THRESH = f32bits(2.0 ** 64)
def bf16(x):
    u = f32bits(x); return (u + 0x7fff + ((u >> 16) & 1)) >> 16
C_HI = bf16(math.log2(math.e) / math.sqrt(128.0))
C_LO = bf16(math.log2(math.e) / math.sqrt(128.0) - struct.unpack("<f", struct.pack("<I", C_HI << 16))[0])

def Sreg(b, a): return V(8*b + 4*a, 4)
def Preg(par, b): return V(48 + 24*par + 4*b, 4)
def negM(b): return V(96 + 4*b, 4)
kaddr = [V(120 + s) for s in range(4)]
vaddr = [V(124 + t) for t in range(8)]
vkv = V(132); vsd0 = V(133); vsd1 = V(134); vlin = V(135)
qa = [V(136 + s) for s in range(4)]
ow = V(140)
ovr = V(141)
def Oreg(b, t):
    n = 8*b + t
    return V(144 + 4*n, 4) if n < 28 else A(176 + 4*(n - 28), 4)
def Qreg(b, s): return A(16*b + 4*s, 4)
def F(i): return A(96 + 4*i, 4)
def lacc(b): return A(128 + 4*(b//3), 4)
def sel(b): return A(136 + 4*(b % 3), 4)
X = [A(148 + 4*k, 4) for k in range(7)]
CS = A(164, 10)
sQ, sO = S(12, 4), S(24, 4); sKb, sVb, sVx = S(16, 2), S(22, 2), S(18, 2)
sW = S(28); sM0 = S(30); sStg = S(31); sSide = S(32); sT0 = S(33); sT1 = S(34); sT2 = S(35)
sFlag = S(36); sThr = S(37); sC = S(38, 2); sCmp = S(40, 2); sStamp = S(42, 2); sCnt = S(3); sQb = S(20, 2)
STAMP0 = 48

def aK(J): return (("ring", (J - 2) % 4, "K"), ("K", J), True)
def aV(J): return (("ring", J % 4, "V"), ("V", J), True) if J < 31 else (("ring", 2, "K"), ("V", J), True)
def rK(d): return lambda c: aK(c["J"] + d)
def rV(d): return lambda c: aV(c["J"] + d)
def aQ(h, p): return (("stg", p), ("Q", h), False)
def aO(h, p): return (("stg", p), ("O", h), False)
def blk(f, h, b): return [f(h, 4*b + i) for i in range(4)]
def mkctx(c): return lambda r: r(c) if callable(r) else r

segs = []; path = []; path2 = []; cur = None
def seg(name):
    global cur
    cur = []; segs.append([name, cur]); return len(segs) - 1
def E(*xs):
    for x in xs:
        if x is None: continue
        if isinstance(x, (list, tuple)): E(*x)
        else: cur.append(x)
nstamp = [0]
def stamp_now():
    if O_.stamps not in (1, 2): return []
    k = nstamp[0]; nstamp[0] += 1
    op = "s_memtime" if O_.stamps == 1 else "s_memrealtime"
    return [raw(f"{op} {sStamp}", "smem", (), rs(sStamp)), wait(lgkm=0), salu("s_mov_b32", S(STAMP0 + k), sStamp[0])]

MEM = ("dsr", "dsw", "dma", "vld", "vst"); VAL = ("valu", "trans")
class Task:
    count = 0
    def __init__(s, x, lo, hi, preds):
        s.x, s.lo, s.hi, s.preds, s.gap = x, lo, hi, preds, None
        s.lo0, s.hi0 = lo, hi; Task.count += 1; x.m["seq"] = Task.count
class Sched:
    def __init__(s, mf):
        s.mf = mf; s.n = len(mf); s.g = [[] for _ in mf]; s.t = []; s.done = []; s.own = set()
        s.cap = [24 if m.m["big"] else 8 for m in mf]; s.novalu = set()
    def cost(s, x): return 8 if x.kind == "trans" or x.m.get("perm") else 4
    def fits(s, g, x):
        if s.cap[g] < s.cost(x): return False
        if x.kind in MEM and any(y.kind in MEM for y in s.g[g]): return False
        if x.kind in VAL and g in s.novalu: return False
        return True
    def put(s, g, x): s.g[g].append(x); s.cap[g] -= s.cost(x)
    def fix(s, x, g):
        t = Task(x, g, g, []); t.gap = g; s.put(g, x)
        if x.kind in ("dma", "vst", "vld"): s.cap[g] = 0; s.novalu.add(g - 1); s.own.add(g)
        if x.kind in ("barrier", "dsw") or x.m.get("last"): s.cap[g] = 0; s.own.add(g)
        return t
    def add(s, x, lo=0, hi=None, preds=()):
        t = Task(x, max(lo, 0), s.n - 1 if hi is None else min(hi, s.n - 1), [p for p in preds if p[0] is not None]); s.t.append(t); return t
    def seq(s, xs, lo=0, hi=None, after=None, hard=1):
        p = after
        for x in xs: p = s.add(x, lo, hi, [(p, hard, hard)])
        return p
    def sm(s, groups, smax=2.0):
        ex = [(x, lo, hi) for ops, lo, hi in groups for x in ops if x.kind == "trans"]
        sig = smax
        while True:
            pos = []; t = -9.0; ok = True
            for x, lo, hi in ex:
                t = max(lo, t + sig); g = int(t)
                while g < s.n and (not s.fits(g, x) or (pos and g <= pos[-1])): g += 1
                if g > hi - 1: ok = False; break
                pos.append(g); t = max(t, g - 0.5)
            if ok: break
            sig -= 0.05
            assert sig > 0.3, "softmax does not fit"
        k = 0
        for ops, lo, hi in groups:
            e = []
            for x in ops:
                if x.kind == "trans":
                    t = s.fix(x, pos[k]); t.lo0, t.hi0 = lo, hi - 1; s.done.append(t); e.append(t); k += 1
                else: s.add(x, lo, min(hi, e[-1].gap + 5), [(e[-1], 1, 1), (e[-2], 1, 1)]).hi0 = min(hi, s.n - 1)
    def run(s):
        for t in reversed(s.t):
            for p, h, so in t.preds:
                if p.gap is None: p.hi = min(p.hi, t.hi - so)
        for t in s.t:
            for p, h, so in t.preds: t.lo = max(t.lo, p.lo + h)
            t.hi = max(t.hi, t.lo)
        left = list(s.t)
        for g in range(s.n):
            while True:
                rdy = [t for t in left if t.lo <= g and all(p.gap is not None and g >= p.gap + h for p, h, so in t.preds)]
                rdy = [t for t in rdy if t.hi <= g or all(g >= p.gap + so for p, h, so in t.preds)]
                rdy.sort(key=lambda t: t.hi)
                pick = next((t for t in rdy if t.hi <= g or s.fits(g, t.x)), None)
                if pick is None: break
                s.put(g, pick.x); pick.gap = g; left.remove(pick)
        assert not left, left[0].x
        s.done += s.t; s.t = []
    def polish(s, iters=60000):
        if not O_.opt: return
        rnd = random.Random(1); T = s.done; succ = {id(t): [] for t in T}
        for t in T:
            t.dp = [(p, min(so, t.gap - p.gap)) for p, h, so in t.preds]
            for p, d in t.dp:
                if id(p) in succ: succ[id(p)].append((t, d))
            t.hi0 = max(t.hi0, t.gap); t.lo0 = min(t.lo0, t.gap)
        drain = [g for g in range(s.n) if any(x.kind == "wait" and x.m["lgkm"] == 0 for x in s.g[g])]
        full = [24 if m.m["big"] else 8 for m in s.mf]; base = {g: [x for x in s.g[g] if all(x is not t.x for t in T)] for g in s.own}
        def over(g, xs):
            if g in s.own: return sum(s.cost(x) for x in xs if all(x is not y for y in base[g]))
            c = sum(s.cost(x) for x in xs) + 4*max(0, sum(x.kind in MEM for x in xs) - 1)
            o = max(0, c - full[g])
            if g in s.novalu and c >= 8 and any(x.kind in VAL for x in xs): o += 4
            return o
        ov = [over(g, s.g[g]) for g in range(s.n)]
        for it in range(iters):
            if not any(ov): break
            t = rnd.choice(T); a = t.gap
            lo = max([t.lo0] + [p.gap + d for p, d in t.dp]); hi = min([t.hi0] + [q.gap - d for q, d in succ[id(t)]])
            b = rnd.randint(max(lo, a - 6), min(hi, a + 6)) if lo <= hi else a
            if b == a or (t.x.kind == "dsr" and any(0 <= g - b < 7 and not (b < a <= g) for g in drain)): continue
            xa = [x for x in s.g[a] if x is not t.x]; xb = s.g[b] + [t.x]
            oa, ob = over(a, xa), over(b, xb); dl = oa + ob - ov[a] - ov[b]
            if dl <= 0 or rnd.random() < math.exp(-dl/(1.2*(1 - it/iters) + 1e-9)):
                s.g[a], s.g[b], ov[a], ov[b], t.gap = xa, xb, oa, ob, b
                s.cap[a] += s.cost(t.x); s.cap[b] -= s.cost(t.x)
    def pour(s, *streams):
        st = [[list(xs), lo] for xs, lo in streams]
        for g in range(s.n):
            again = True
            while again:
                again = False
                for q in st:
                    if q[0] and q[1] <= g and s.fits(g, q[0][0]): s.put(g, q[0].pop(0)); again = True; break
        return [x for q in st for x in q[0]]
    def emit(s):
        for m, g in zip(s.mf, s.g):
            key = lambda x: (3 if x.m.get("last") else (2 if x.kind in VAL else (0 if x.kind in MEM else 1)), x.m.get("seq", 1 << 30))
            E(m, sorted(g, key=key))

def kread(J, d, a, s, dst): return ds_read("ds_read_b128", dst, kaddr[s], ((J + d - 2) % 4)*16384 + a*8192, rK(d))
def vread(J, d, t, a, dst):
    return ds_read("ds_read_b64_tr_b16", dst[2*a:2*a+2], vaddr[t], (((J + d) % 4)*16384 if J + d < 31 else 32768 - 1024) + a*8192, rV(d))
def kv_group(J, d, withV=True):
    o = [salu("s_add_u32", "m0", sM0, ((J + d) % 4)*16384)]
    for im in (0, 2048):
        if withV: o.append(gdma(vkv, sVb, im + 1024, rV(d), O_.fv))
        o.append(gdma(vkv, sKb, im, rK(d + 2), O_.fk) if J + d < 30 else gdma(vkv, sVx, im, rV(d + 1), O_.fv))
    return o + [kv_step()]
def kv_step(): return valu("v_add_u32", vkv, 8192, vkv)
def q_dma_block(h, b):
    o = [salu("s_add_u32", "m0", sStg, b*4096), salu("s_mov_b32", sSide, h*98304 + b*4096)]
    for i in range(4): o.append(dma(vsd1 if i & 1 else vsd0, sQ, sSide, i*1024, aQ(h, 4*b + i), O_.fq))
    return o
def piecemeal(groups):
    st = []; pre = []
    for grp in groups:
        for x in grp:
            if x.kind in MEM: st.append(pre + [x]); pre = []
            else: pre.append(x)
    if pre: st[-1] += pre
    def more(n):
        o = st[:n]; del st[:n]; return o
    more.left = lambda: len(st)
    return more

def sm_ops(par, b, a):
    s = Sreg(b, a); p = Preg(par, b)
    return [valu("v_exp_f32", s[0], s[0]), valu("v_exp_f32", s[1], s[1]), valu("v_cvt_pk_bf16_f32", p[2*a], s[0], s[1]),
            valu("v_exp_f32", s[2], s[2]), valu("v_exp_f32", s[3], s[3]), valu("v_cvt_pk_bf16_f32", p[2*a+1], s[2], s[3])]
NE_A = 40
def sm_split(par, ne=NE_A, order=range(NB)):
    st = []
    for a in range(2):
        for b in (order if a else range(NB)): st += [(b, x) for x in sm_ops(par, b, a)]
    k = ne // 2 * 3
    return st[:k], st[k:]
def delay_cvts(xs):
    o = []; pend = []
    for x in xs:
        if x.kind == "trans":
            o.append(x)
            if pend: o.append(pend.pop(0))
        else: pend.append(x)
    return o + pend
def xlane_max(m, t):
    o = []
    for op in ("v_permlane32_swap_b32", "v_permlane16_swap_b32"):
        o += [valu("v_mov_b32", t, m), swap(op, m, t), valu("v_max_f32", m, m, t)]
    return o
def rowmax_ops(b):
    m, t = negM(b)[0], negM(b)[1]; sv = lambda r: V(8*b + r)
    o = [valu("v_max3_f32", m, sv(0), sv(1), sv(2)), valu("v_max3_f32", t, sv(3), sv(4), sv(5)),
         valu("v_max3_f32", m, m, sv(6), sv(7)), valu("v_max_f32", m, m, t)] + xlane_max(m, t)
    o += [valu("v_sub_f32", negM(b)[r], 0, m) for r in (1, 2, 3, 0)]
    return o, [valu("v_pk_add_f32", V(8*b + 2*r, 2), V(8*b + 2*r, 2), negM(b)[0:2]) for r in range(4)]
def scale_frag(x, dst, w, y, pk=True):
    o = []
    if pk:
        for r in range(4): o += [valu("v_lshlrev_b32", w[2*r], 16, x[r]), valu("v_and_b32", w[2*r+1], "0xffff0000", x[r])]
        for r in range(4): o.append(valu("v_pk_mul_f32", w[2*r:2*r+2], w[2*r:2*r+2], sC))
    else:
        for r in range(4):
            o += [valu("v_lshlrev_b32", w[2*r], 16, x[r]), valu("v_and_b32", w[2*r+1], "0xffff0000", x[r]),
                  valu("v_mul_f32", w[2*r], sC[0], w[2*r]), valu("v_mul_f32", w[2*r+1], sC[0], w[2*r+1])]
    if dst.k == "v": return o + [valu("v_cvt_pk_bf16_f32", dst[r], w[2*r], w[2*r+1]) for r in range(4)]
    for r in range(4): o.append(valu("v_cvt_pk_bf16_f32", y[r], w[2*r], w[2*r+1]))
    for r in range(4): o.append(valu("v_accvgpr_write_b32", dst[r], y[r]))
    return o
def chain(b, a, fr, c0, rev):
    return [(s, mfma(Sreg(b, a), fr[s], Qreg(b, s), c0 if n == 0 else Sreg(b, a))) for n, s in enumerate(range(3, -1, -1) if rev and O_.qks else range(4))]
def qk_first(b): return [m for a in range(2) for _, m in chain(b, a, [F(4*a + s) for s in range(4)], 0, a)]
def pv_pair(par, bs, t0, fr, init, sums):
    o = []
    if O_.pvo in ("t", "ts"):
        bs = sorted(bs)
        if 5 in sums and init: sums = []; o += [(None, rowsum(par, 5, init)), (None, rowsum(par, 4, init))]
        for k in range(2):
            for b in (bs if k == 0 or O_.pvo == "t" else bs[::-1]):
                o.append((t0 + k, mfma(Oreg(b, t0 + k), Preg(par, b), fr[k], 0 if init else Oreg(b, t0 + k))))
                if k == 0 and b in sums: o.append((None, rowsum(par, b, init)))
        return o
    for n, b in enumerate(bs):
        for k in ((0, 1) if n % 2 == 0 or O_.pvo == "pp2" else (1, 0)): o.append((t0 + k, mfma(Oreg(b, t0 + k), Preg(par, b), fr[k], 0 if init else Oreg(b, t0 + k))))
        if b in sums: o.insert(len(o) - 1, (None, rowsum(par, b, init)))
    return o
def rowsum(par, b, init=False): return mfma(lacc(b), Preg(par, b), sel(b), 0 if init and b in (0, 5) else lacc(b))

def pm(f):
    q = Qreg(f//4, f % 4); d = V(76 + 8*(f & 1), 8); t = V(92, 4)
    mf = [mfma(d[0:4], CS[2:6], q, 0), mfma(d[0:4], CS[6:10], q, d[0:4]), mfma(d[4:8], CS[0:4], q, 0), mfma(d[4:8], CS[4:8], q, d[4:8])]
    fl = []
    for hh in range(2):
        fl += [valu("v_cvt_pk_bf16_f32", t[2*hh + k], d[4*hh + 2*k], d[4*hh + 2*k + 1]) for k in range(2)]
        fl += [valu("v_accvgpr_write_b32", q[2*hh + k], t[2*hh + k]) for k in range(2)]
    return mf, fl

def startup():
    v0, vl, vi, vu, t0, t1, t2 = V(0), V(1), V(2), V(3), V(4), V(5), V(6)
    E(comment("---- setup"),
      raw("s_load_dwordx4 s[4:7], s[0:1], 0", "smem", (), rs(S(4, 4))),
      raw("s_load_dwordx4 s[8:11], s[0:1], 16", "smem", (), rs(S(8, 4))),
      scmp("s_cmp_ge_u32", S(2), 256), raw("s_cbranch_scc1 L_end", "salu", {"scc"}))
    if O_.stamps:
        E(raw("s_load_dwordx2 s[44:45], s[0:1], 40", "smem", (), rs(S(44, 2))),
          raw("s_memrealtime s[46:47]", "smem", (), rs(S(46, 2))))
    E(comment("pull the kernel's own code into L2 (one dword per 128-byte line)"),
      raw("s_getpc_b64 s[40:41]", "salu", (), rs(S(40, 2))), label("L_pc"),
      valu("v_lshlrev_b32", t0, 7, v0), valu("v_min_u32", t1, "L_fast_end-L_pc", t0),
      Inst(f"global_load_dword v7, {t1}, s[40:41]", "vld", rs(t1, S(40, 2)), rs(V(7))),
      valu("v_add_u32", t0, 32768, t0), valu("v_min_u32", t1, "L_fast_end-L_pc", t0),
      Inst(f"global_load_dword v8, {t1}, s[40:41]", "vld", rs(t1, S(40, 2)), rs(V(8))))
    E(valu("v_lshrrev_b32", t1, 6, v0), valu("v_and_b32", vl, 63, v0),
      valu("v_readfirstlane_b32", sW, t1),
      valu("v_and_b32", vi, 15, vl), valu("v_lshrrev_b32", vu, 4, vl),
      valu("v_lshlrev_b32", t0, 1, vu), valu("v_xor_b32", t0, t0, vi), valu("v_lshlrev_b32", t0, 4, t0),
      valu("v_lshl_add_u32", vsd0, vu, 8, t0), valu("v_xor_b32", vsd1, 128, vsd0),
      salu("s_and_b32", sT0, sW, 1), salu("s_lshr_b32", sT1, sW, 1),
      salu("s_lshl_b32", sT2, sT0, 7), salu("s_lshl_b32", sT0, sT0, 10), salu("s_lshl_b32", sT1, sT1, 12),
      salu("s_add_u32", sT0, sT0, sT1),
      valu("v_xor_b32", vkv, sT2, vsd0), valu("v_add_u32", vkv, sT0, vkv),
      salu("s_lshl_b32", sM0, sW, 12), salu("s_mul_i32", sStg, sW, 24576),
      salu("s_mul_i32", sT0, S(2), 196608), salu("s_add_u32", sT0, sT0, sStg), salu("s_add_u32", sStg, sStg, 65536),
      salu("s_lshl_b32", sT1, S(2), 18),
      salu("s_mov_b32", sQ[2], 98304 + 24576), salu("s_mov_b32", sQ[3], "0x20000"),
      wait(lgkm=0),
      salu("s_add_u32", sKb[0], S(6), sT1), salu("s_addc_u32", sKb[1], S(7), 0),
      salu("s_add_u32", sQ[0], S(4), sT0), salu("s_addc_u32", sQ[1], S(5), 0), salu("s_and_b32", sQ[1], sQ[1], "0xffff"))
    g0 = kv_group(0, 0); g0 = [g0[k] for k in (0, 1, 3, 2, 4, 5)]
    more = piecemeal([kv_group(0, -2, False)] + [q_dma_block(0, b) for b in range(NB)] + [kv_group(0, -1, False), g0])
    n_iss = 0
    if O_.xst: E(comment("start-up is bandwidth bound: the dies that clock lower under load (speed only) are served first"),
                 raw(f"s_getreg_b32 {sT2}, hwreg(HW_REG_XCC_ID, 0, 1)", "salu", (), rs(sT2)))
    for k, ch in enumerate(O_.xst):
        E(more(int(ch)), scmp("s_cmp_eq_u32", sT2, O_.xpar), raw(f"s_cbranch_scc0 L_st{k}", "salu", {"scc"}),
          raw("s_waitcnt vmcnt(0)"), label(f"L_st{k}")); n_iss += int(ch)
    E(more(10 - n_iss))
    if O_.pads == 2: E(raw("s_branch L_main"), raw(".p2align 12", "label"), label("L_main"))
    E(salu("s_add_u32", sVb[0], S(8), sT1), salu("s_addc_u32", sVb[1], S(9), 0),
      salu("s_sub_u32", sVb[0], sVb[0], 1024 + 16384), salu("s_subb_u32", sVb[1], sVb[1], 0),
      salu("s_add_u32", sO[0], S(10), sT0), salu("s_addc_u32", sO[1], S(11), 0), salu("s_and_b32", sO[1], sO[1], "0xffff"),
      salu("s_mov_b32", sO[2], 98304 + 24576), salu("s_mov_b32", sO[3], "0x20000"),
      salu("s_add_u32", sVx[0], sVb[0], 1024 + 8192), salu("s_addc_u32", sVx[1], sVb[1], 0),
      salu("s_mov_b32", sC[0], hex(CSCALE)), salu("s_mov_b32", sC[1], hex(CSCALE)),
      salu("s_mov_b32", sThr, hex(THRESH)), salu("s_mov_b32", sFlag, O_.force),
      salu("s_add_u32", sQb[0], sQ[0], 98304), salu("s_addc_u32", sQb[1], sQ[1], 0))
    E(valu("v_and_b32", t0, 7, vi), valu("v_lshlrev_b32", t0, 1, t0), valu("v_xor_b32", t0, t0, vu), valu("v_lshlrev_b32", t0, 4, t0),
      valu("v_lshl_add_u32", t2, vi, 8, t0), valu("v_add_u32", qa[0], sStg, t2),
      valu("v_and_b32", t1, 3, vi), valu("v_lshl_add_u32", t0, t1, 8, t0),
      valu("v_lshrrev_b32", t1, 3, vi), valu("v_lshl_add_u32", t0, t1, 11, t0),
      valu("v_bfe_u32", t1, vi, 2, 1), valu("v_lshl_add_u32", kaddr[0], t1, 12, t0))
    for s in range(1, 4): E(valu("v_xor_b32", kaddr[s], s << 6, kaddr[0]), valu("v_xor_b32", qa[s], s << 6, qa[0]))
    E(valu("v_lshrrev_b32", t1, 2, vi), valu("v_and_b32", t2, 1, vu), valu("v_lshl_add_u32", t0, t2, 2, t1),
      valu("v_lshlrev_b32", t0, 5, t0), valu("v_lshl_add_u32", t0, t1, 8, t0), valu("v_lshl_add_u32", t0, t2, 12, t0),
      valu("v_lshrrev_b32", t2, 1, vu), valu("v_lshl_add_u32", t0, t2, 11, t0),
      valu("v_and_b32", t1, 3, vi), valu("v_lshl_add_u32", t0, t1, 3, t0), valu("v_add_u32", vaddr[0], 1024, t0))
    for t in range(1, 8): E(valu("v_xor_b32", vaddr[t], t << 5, vaddr[0]))
    E(valu("v_mov_b32", t2, "0x3f803f80"))
    for k in range(3):
        E(Inst(f"v_cmp_eq_u32 vcc, {k}, {vi}", "valu", rs(vi), {"vcc"}), nop(1), Inst(f"v_cndmask_b32 {t0}, 0, {t2}, vcc", "valu", rs(t2, "vcc"), rs(t0)),
          [valu("v_accvgpr_write_b32", sel(k)[r], t0) for r in range(4)])
    E(valu("v_lshrrev_b32", t0, 1, vi), valu("v_lshlrev_b32", t1, 1, vu), valu("v_sub_u32", t0, t0, t1),
      valu("v_and_b32", t1, 1, vi), valu("v_lshlrev_b32", t1, 4, t1))
    for k in range(2):
        E(Inst(f"v_cmp_eq_u32 vcc, {k}, {t0}", "valu", rs(t0), {"vcc"}))
        for j, c in enumerate((C_HI, C_LO)):
            E(valu("v_mov_b32", t2, hex(c)), valu("v_lshlrev_b32", t2, t1, t2), Inst(f"v_cndmask_b32 {t2}, 0, {t2}, vcc", "valu", rs(t2, "vcc"), rs(t2)),
              valu("v_accvgpr_write_b32", CS[2 + 4*j + k], t2))
    E([valu("v_accvgpr_write_b32", CS[k], 0) for k in (0, 1, 4, 5, 8, 9)])
    E(valu("v_lshlrev_b32", t0, 3, vl), valu("v_add_u32", ow, sStg, t0),
      valu("v_bfe_u32", t1, vi, 1, 1), valu("v_lshl_add_u32", t0, t1, 2, vu), valu("v_lshlrev_b32", t0, 9, t0),
      valu("v_and_b32", t1, 1, vi), valu("v_lshl_add_u32", t0, t1, 6, t0), valu("v_lshrrev_b32", t1, 2, vi),
      valu("v_lshl_add_u32", t0, t1, 3, t0), valu("v_add_u32", ovr, sStg, t0),
      valu("v_and_b32", t2, 3, vi), valu("v_lshlrev_b32", t0, 5, t2), valu("v_lshl_add_u32", t0, vu, 8, t0),
      valu("v_and_b32", t2, 1, t1), valu("v_lshl_add_u32", t0, t2, 4, t0), valu("v_lshrrev_b32", t2, 1, t1), valu("v_lshl_add_u32", vlin, t2, 7, t0))
    E(more(O_.n0 - 10), stamp_now())
    E(comment("---- first K tile"), wait(vm=[aK(0)]), barrier())
    for a in range(2):
        for s in range(4): E(kread(0, 0, a, s, F(4*a + s)))
    if O_.pads:
        E(comment("visit the start of each code page once (wave w: pages w+1, w+5, ..); every stop jumps straight on while vcc = 0"),
          raw("s_mov_b64 vcc, 0"))
        for w in range(3): E(scmp("s_cmp_eq_u32", sW, w), raw(f"s_cbranch_scc1 L_pad{w + 1}", "salu", {"scc"}))
        E(raw("s_branch L_pad4"), [raw(".p2align 12", "label"), label("L_main")] if O_.pads == 1 else None, label("L_padret"), raw("s_mov_b64 vcc, -1"))
    rawr = lambda s: V(72 + 4*s, 4)
    for b in range(NB):
        E(comment(f"---- start-up block {b}"), wait(vm=blk(aQ, 0, b)), stamp_now() if O_.probe == 2 else None)
        if O_.mq0:
            for s in range(4): E(ds_read("ds_read_b128", Qreg(b, s), qa[s], b*4096, blk(aQ, 0, b)))
            E(more(2), wait(lgkm=[Qreg(b, 0)] + ([F(k) for k in range(8)] if b == 0 else [])))
            pms = [pm(4*b + n) for n in range(4)]
            sc = Sched([m for mf, _ in pms for m in mf])
            sc.put(2, wait(lgkm=0))
            for n in range(3):
                for j, v in enumerate(pms[n][1]): sc.put(4*(n + 1) + j//2, v)
            sc.emit(); E(more(2), pms[3][1])
        else:
            for s in range(4): E(ds_read("ds_read_b128", rawr(s), qa[s], b*4096, blk(aQ, 0, b)))
            for s in range(4):
                E(wait(lgkm=[rawr(s)] + ([F(k) for k in range(8)] if b == 0 else [])))
                E(more(1), scale_frag(rawr(s), Qreg(b, s), V(88, 8), Sreg(b, s & 1)))
        qk = qk_first(b)
        if b < NB - 1: E(qk, rowmax_ops(b), delay_cvts(sm_ops(0, b, 0) + sm_ops(0, b, 1)))
    assert more.left() == 0
    E(qk[:4], wait(vm=[aK(1)]), barrier())
    for s in range(4): E(qk[4 + s], kread(0, 1, 0, s, F(s)))
    E(salu("s_mov_b32", sSide, sStg), salu("s_mov_b32", sCnt, 1), rowmax_ops(NB - 1)[0][:4], wait(lgkm=[F(s) for s in range(4)]), stamp_now())

def o_read(key, p, dst):
    return [ds_read("ds_read_b64_tr_b16", dst[2*hi:2*hi + 2], ovr, (p >> 2)*4096 + (p & 3)*128 + hi*32, key) for hi in range(2)]
def pv_mfmas(par, frags, sums_first=False, init=False):
    mf = [rowsum(par, b) for b in range(NB)] if sums_first else []; st = []
    for h in range(4):
        st.append(len(mf))
        sums = [] if sums_first else [(0, 1), (5, 4), (2,), (3,)][h]
        mf += [m for _, m in pv_pair(par, range(NB) if h % 2 == 0 else range(NB - 1, -1, -1), 2*h, frags[2*h:2*h + 2], init, sums)]
    return mf, st
def late_pieces(k):
    cnt = [int(c, 16) for c in O_.olate]; ne = sum(map(int, O_.osched)); assert sum(cnt) == 24 - ne and sum(cnt[:4]) >= 12
    return (list(range(12, 24)) + list(range(ne, 12)))[sum(cnt[:k]):sum(cnt[:k + 1])]
def kv_plan(J):
    if J >= 16: return [(3, 27)] if J < 28 else []
    o = []
    for k, lead in enumerate(int(x) for x in O_.lead0.split(",")):
        Jk, g = divmod(102*(k + 1) + 23 - lead, 102)
        assert 2 <= g <= 82
        if Jk == J: o.append((k + 1 - J, g))
    return o
END_ORDER = (2, 3, 4, 5, 0, 1)
NPRE = 2
VF15 = [Qreg(4 + t//4, t % 4) for t in range(8)]

def iteration(J, ctl=()):
    par = J & 1; j = J % 16
    mf = [m for a in range(2) for b in range(NB) for _, m in chain(b, a, [F(4*a + s) for s in range(4)], negM(b), b & 1)]
    pv, pst = pv_mfmas(par, [F(t) for t in range(8)], init=(j == 0))
    mf += pv; pst = [48 + x for x in pst]
    sc = Sched(mf)
    for x in ctl: sc.fix(x, 101)
    if ctl: sc.cap[101] = 0
    for s in range(4): sc.fix(kread(J, 1, 1, s, F(4 + s)), [1, 6, 11, 13][s])
    tb2 = None
    if J == 0:
        sc.fix(wait(vm=[rV(0)], lgkm=0), 23); tb = sc.fix(barrier(), 23)
        sc.fix(wait(vm=[rK(2)]), 72); tb2 = sc.fix(barrier(), 72)
    else:
        sc.fix(wait(vm=[rV(0), rK(2)], lgkm=0), 23); tb = sc.fix(barrier(), 23)
    if J == 0 or (J == 16 and O_.tight):
        b = NB - 1; t = sc.seq(rowmax_ops(b)[0][4:], 0, 8, hard=0)
        sub = [sc.add(valu("v_add_f32", V(8*b + r), V(8*b + r), negM(b)[1]), 0, 10 if r < 4 else 22, [(t, 0, 0)]) for r in range(8)]
        sc.run(); sc.done = []
    plan = kv_plan(J); busy = []
    for n_, (d, g0) in enumerate(plan):
        ops = kv_group(J, d); g = g0
        while sc.cap[g - 2] < 4: g += 1
        sc.fix(ops[0], g - 2)
        for x in ops[1:5]:
            while sc.cap[g] < 8 or sc.cap[g - 1] == 0 or sc.cap[g + 1] == 0 or any(y.kind in VAL for y in sc.g[g - 1]): g += 1
            td = sc.fix(x, g); g += O_.dsp1 if 16 <= J < O_.jsp else O_.dsp
        busy.append((g0 - 3, td.gap + 1))
        sc.add(ops[5], 0, 100 if n_ + 1 == len(plan) else plan[n_ + 1][1] - 1, [(td, 1, 1)])
    nq = int(O_.qs[J]) if J < 15 else 0
    if nq:
        p0 = sum(map(int, O_.qs[:J])); g0 = max([50] + [hi + 6 for lo, hi in busy if lo < 50]) if J != 14 else O_.gq14
        qsp = 12 if nq < 3 else 9
        assert all(hi < g0 - 2 or lo > g0 + qsp*(nq - 1) for lo, hi in busy)
        tm = sc.fix(salu("s_mov_b32", "m0", sSide), g0 - 2)
        for k in range(nq):
            t = sc.fix(gdma(vsd1 if (p0 + k) & 1 else vsd0, sQb, k*1024, (lambda k: lambda c: aQ(1, sum(map(int, O_.qs[:c["J"]])) + k))(k), O_.fq), g0 + qsp*k)
        sc.add(salu("s_add_u32", sSide, sSide, 1024*nq), 0, 99, [(tm, 1, 1)])
        g = t.gap + 1
        while sc.cap[g] < 8: g += 1
        sc.fix(salu("s_add_u32", sQb[0], sQb[0], 1024*nq), g); sc.fix(salu("s_addc_u32", sQb[1], sQb[1], 0), g); sc.own.add(g)
    npz = int(O_.ps[J]) if J < 15 else 0
    if npz:
        tot = lambda a, b_: sum(map(int, O_.ps[a:b_]))
        rel = tot(0, J) if O_.unr else (tot(4, J) if J < 12 else tot(12, J))
        raw_, tt = V(142, 2), V(138, 2); p = None; span = 96//(2*npz)
        for k in range(2*npz):
            key = (lambda k: lambda c: aQ(1, tot(0, c["J"]) + k//2))(k)
            off = (rel + k//2)*1024 + (k & 1)*512; lo = 2 + span*k; gw = lo + span - 1
            while sc.cap[gw] < 8 or sc.cap[gw + 1] == 0 or gw in sc.novalu: gw -= 1
            if k % 2 == 0: p = sc.add(wait(vm=[key]), lo, None, [(p, 1, 1)])
            p = sc.add(ds_read("ds_read_b64", raw_, ow, off, key), lo, None, [(p, 1, 1)])
            p = sc.add(wait(lgkm=[raw_]), lo, None, [(p, 1, 7)])
            for r in range(2):
                ops = [valu("v_lshlrev_b32", tt[0], 16, raw_[r]), valu("v_and_b32", tt[1], "0xffff0000", raw_[r]), valu("v_mul_f32", tt[0], sC[0], tt[0]),
                       valu("v_mul_f32", tt[1], sC[0], tt[1]), valu("v_cvt_pk_bf16_f32", raw_[r], tt[0], tt[1])]
                for i, x in enumerate(ops): p = sc.add(x, lo, gw - 1 - (9 - 5*r - i)*O_.psp, [(p, 1 if i + r == 0 else 0, 1 if i + r == 0 else 0)])
            p = sc.fix(ds_write("ds_write_b64", ow, raw_, off, key), gw); sc.cap[gw] = 0
        if J == 7 and not O_.unr: sc.add(valu("v_add_u32", ow, 1024*tot(4, 8), ow), 0, 100, [(p, 1, 1)])
    if J == 14 and int(O_.ps):
        if not O_.unr: sc.add(valu("v_subrev_u32", ow, 1024*sum(map(int, O_.ps[:12])), ow), 0, 40)
        for s in (2, 3): sc.add(valu("v_xor_b32", qa[s], s << 6, qa[0]), 0, 40)
    if J in (27, 28):
        ps = late_pieces(J - 27); g0 = [O_.g11, O_.g12][J - 27]
        base = t = None
        for i, p in enumerate(ps):
            g = g0 + (96 - g0)*i//max(1, len(ps) - 1)
            while g in (22, 23, 24) or sc.cap[g] < 8 or sc.cap[g - 1] == 0 or sc.cap[g + 1] == 0: g += 1
            t = sc.seq(o_read(aO(0, p), p, X[i]), 0, g - 8, t); sc.add(wait(lgkm=[X[i]]), 0, g - 1, [(t, 1, 6)])
            if base is None or not 0 <= p - base < 4: base = p; sc.fix(salu("s_mov_b32", sSide, p*1024), g - 1)
            sc.fix(vstore(X[i], vlin, sO, sSide, (p - base)*1024, O_.late_flags), g)
    p = tb
    for t in range(8):
        for a in range(2): p = sc.add(vread(J, 0, t, a, F(t)), 24 if t < 4 else 48, None, [(p, 1, 1)])
        if t in (1, 3): sc.add(wait(lgkm=[F(t - 1), F(t)]), 0, pst[t//2] - 1, [(p, 1, 8)])
    sc.add(wait(lgkm=[F(4), F(5), F(6), F(7)]), 0, pst[2] - 1, [(p, 1, 8)])
    for s in range(4): p = sc.add(kread(J, 2, 0, s, F(s)), pst[2], None if J != 14 else 90, [(p, 1, 1), (tb2, 1, 1)])
    if J == 28:
        pre = late_pieces(2)[:NPRE]
        p = sc.seq([x for i, q in enumerate(pre) for x in o_read(aO(0, q), q, X[i])], 60, None, p)
    if J != 14: sc.add(wait(lgkm=[F(s) for s in range(4)] + (X[:NPRE] if J == 28 else [])), 0, 101 if J == 28 else 100, [(p, 1, 8 if J != 28 else 5)])
    else:
        sc.fix(wait(vm=[rV(1), rK(3)] + blk(aQ, 1, 0)), 92); t = sc.fix(barrier(), 92)
        for k in range(4): sc.fix(vread(J, 1, k//2, k & 1, VF15[k//2]), 93 + 2*k)
    nxt = lambda ne: [x for _, x in sm_split(1 - par, ne, END_ORDER if J == 28 else range(NB))[0]]
    if J == 0:
        b = NB - 1
        sc.sm([(sm_ops(0, b, 0), sub[3].gap + 1, 19), (sm_ops(0, b, 1), sub[7].gap + 1, 43), (nxt(NE_A), 24, 100)])
    elif J == 16 and O_.tight:
        tail = sm_split(0, O_.ne1)[1]; b = NB - 1
        sc.sm([(sm_ops(0, b, 0), sub[3].gap + 1, 19)] + [([x for bb, x in tail if bb == k], sub[7].gap + 1, 23 + 4*k) for k in range(NB) if any(bb == k for bb, _ in tail)]
              + [(nxt(NE_A), 24, 100)])
    elif J == 16:
        tail = sm_split(0, O_.ne1)[1]
        sc.sm([([x for bb, x in tail if bb == b], 0, 23 + 4*b) for b in range(NB) if any(bb == b for bb, _ in tail)] + [(nxt(NE_A), 24, 100)])
    elif J == 14:
        sc.sm([([x for _, x in sm_split(par)[1]], 0, 30)] + [(sm_ops(1, b, a), 24*a + 4*b + 8, 101) for a in range(2) for b in range(NB)])
    else:
        sc.sm([([x for _, x in sm_split(par)[1]], 0, 30)], 2.4)
        sc.sm([(nxt(NE_A), 24, 100)])
    for t in sc.done + sc.t:
        if t.x.m.get("op") in ("v_exp_f32", "v_cvt_pk_bf16_f32") and t.lo0 == 24:
            r = min(int(x[1:]) for x in t.x.rd); t.lo0 = 24*((r >> 2) & 1) + 4*(r >> 3) + (9 if t.x.kind == "trans" else 10)
    sc.run(); sc.polish(); sc.emit()

def straight(J, *pre):
    s = seg(f"J{J}"); path.append((s, {"J": J})); E(comment(f"---- head {J//16}, key tile {J % 16}"), pre); iteration(J)
def loop4(name, J0, passes):
    ss = []
    for k in range(4):
        ss.append(seg(f"{name}{k}"))
        if k == 0: E(raw(".p2align 3", "label"), label(f"L_{name}"))
        d = salu("s_sub_u32", sCnt, sCnt, 1); d.m["last"] = True
        iteration(J0 + k, [d, raw(f"s_cbranch_scc0 L_{name}", "salu", {"scc"}, (), last=True)] if k == 3 else [])
        for n in range(1, passes): assert kv_plan(J0 + k) == kv_plan(J0 + k + 4*n) and (J0 > 15 or (O_.qs[J0 + k], O_.ps[J0 + k]) == (O_.qs[J0 + k + 4*n], O_.ps[J0 + k + 4*n]))
    assert J0 > 15 or sum(map(int, O_.qs[J0:J0 + 4])) % 2 == 0
    for n in range(4*passes): path.append((ss[n % 4], {"J": J0 + n}))

def l_ops(h, b0, r, t1):
    o = [valu("v_accvgpr_read_b32", r[k], lacc(b0)[k]) for k in range(4)]
    o += [valu("v_add_f32", t1, r[0], r[1]), valu("v_add_f32", t1, t1, r[2]), valu("v_add_f32", t1, t1, r[3])]
    o += [valu("v_rcp_f32", r[k], r[k]) for k in range(4)]
    return o
def l_flag(h, t1):
    return [Inst(f"v_cmp_nlt_f32 {sCmp}, {t1}, {sThr}", "valu", rs(t1, sThr), rs(sCmp)), nop(0),
            scmp("s_cmp_lg_u64", sCmp, 0), salu("s_cselect_b32", sT0, 1 << h, 0), salu("s_or_b32", sFlag, sFlag, sT0)]
def l_bcast(b, r, dst):
    o = [valu("v_mov_b64_dpp", dst[2*k:2*k + 2], r[2*k:2*k + 2], mods=f"row_newbcast:{b % 3} row_mask:0xf bank_mask:0xf") for k in range(2)]
    for x in o: x.m["dpp"] = True
    return o
def epi_half(h, b, th, rl, tmp, y):
    r0 = Oreg(b, 4*th); w = V(r0.i, 16) if r0.k == "v" else tmp; o = []
    if r0.k == "a": o += [valu("v_accvgpr_read_b32", w[i], A(r0.i + i)) for i in range(16)]
    o += [valu("v_pk_mul_f32", w[2*i:2*i + 2], w[2*i:2*i + 2], rl[2*(i & 1):2*(i & 1) + 2]) for i in range(8)]
    o += [valu("v_cvt_pk_bf16_f32", y[2*r + k], w[8*k + r], w[8*k + 4 + r]) for r in range(4) for k in range(2)]
    o += [ds_write2st64(ow, y[4*k:4*k + 2], y[4*k + 2:4*k + 4], 8*b + 4*th + 2*k, 8*b + 4*th + 2*k + 1, blk(aO, h, b)) for k in range(2)]
    return o

def transition():
    s = seg("trans"); path.append((s, {"J": 15}))
    E(stamp_now(), comment("---- head 0: last PV; switch to head 1"))
    vf = VF15
    F0 = sum(map(int, O_.ps)); assert F0 % 4 == 0 and F0 <= 12 and O_.ps[:4] == "0000" and O_.ps[14] == "0"
    raw0 = V(16, 4)
    def qrd(b): return [ds_read("ds_read_b128", Qreg(b, n), qa[n], b*4096, blk(aQ, 1, b)) for n in range(4) if 4*b + n != F0]
    rc = [negM(4), negM(5)]
    rl = V(72, 4); y = V(76, 8)
    npre = sum(map(int, O_.qs)); assert npre >= 8
    more = piecemeal([[x for k, x in enumerate(q_dma_block(1, b)) if k < 2 or 4*b + k - 2 >= npre] for b in range(npre//4, NB)]
                     + [kv_group(15, d) for d in (1, 2, 3)])
    vr = [vread(15, 0, t, a, vf[t]) for t in range(8) for a in range(2)]
    pv, pst = pv_mfmas(1, vf, True)
    sc = Sched(pv)
    g = 8
    for grp in more(O_.tq):
        for i, x in enumerate(grp):
            if x.kind not in MEM: sc.fix(x, g - 3 if len(grp) - i > 3 else g - 2)
            else: sc.fix(x, g); g += O_.tstep
    sc.add(wait(lgkm=vf[:2]), 4, pst[0] - 1)
    p = sc.seq([wait(vm=blk(aQ, 1, F0//4)), ds_read("ds_read_b128", raw0, qa[0], F0*1024, blk(aQ, 1, F0//4))], 0); wq = sc.add(wait(lgkm=[raw0]), 0, 10, [(p, 1, 6)])
    p = sc.seq(vr[4:8], 0, None, p); sc.add(wait(lgkm=vf[2:4]), 0, pst[1] - 1, [(p, 1, 6)])
    p = sc.seq(vr[8:], 0, None, p); sc.add(wait(lgkm=vf[4:]), 0, pst[2] - 1, [(p, 1, 6)])
    p = sc.seq([kread(15, 1, 1, k, F(4 + k)) for k in range(4)] + qrd(0) + [wait(vm=blk(aQ, 1, 1))] + qrd(1), 24, 46, p)
    sc.fix(wait(lgkm=0), 53); sc.fix(barrier(), 53)
    sc.run()
    lv = l_ops(0, 0, rc[0], V(60)) + l_ops(0, 3, rc[1], V(61)) + [valu("v_add_f32", V(60), V(60), V(61))]; ls = l_flag(0, V(60))
    st = scale_frag(raw0, Qreg(F0//4, 0), V(0, 8), V(8, 4), pk=False)
    rest = sc.pour((lv, 10), (st, wq.gap + 1)); sc.emit(); E(rest); rest = []
    def site(k):
        c = [int(x) for x in O_.osched] + [0]; p0 = sum(c[:k]); o = more(int(O_.tsched[k]) if O_.tsched else O_.tper)
        if c[k]:
            o += [salu("s_mov_b32", sT1, p0*1024), wait(lgkm=[X[(p0 + i) % 4] for i in range(c[k])])]
            o += [vstore(X[(p0 + i) % 4], vlin, sO, sT1, i*1024, O_.late_flags) for i in range(c[k])]
        p1 = p0 + c[k]; assert (p1 + c[k + 1] + 3)//4 <= (k + 1)//2 or not c[k + 1]
        rd = [x for p in range(p1, p1 + c[k + 1]) for x in o_read(aO(0, p), p, X[p % 4])]
        for x in rd: x.m["slip"] = O_.slip
        return o + rd
    first = sm_split(0, O_.ne1)[0]
    def finish(b): return rowmax_ops(b)[1] + delay_cvts([x for bb, x in first if bb == b])
    for b in range(NB):
        E(comment(f"---- switch block {b}"), stamp_now() if O_.probe == 1 else None)
        fs = range(max(F0 + 1, 4*b + 1), min(4*b + 5, 4*NB))
        mf = []; fl = []
        for f in fs:
            m, x = pm(f); mf += m; fl.append(x)
        qk = qk_first(b)
        if b == NB - 1: qk = [qk[k] for k in (0, 1, 2)] + [m for _, m in chain(b, 1, [F(4 + s_) for s_ in range(4)], 0, False)][:3] + [qk[3]]; \
                        qk.append(mfma(Sreg(b, 1), F(7), Qreg(b, 3), Sreg(b, 1)))
        sc = Sched(mf + qk)
        for k, x in enumerate(fl):
            for j, v in enumerate(x): sc.put(4*(k + 1) + j//2, v)
        h0, h1 = epi_half(0, b, 0, rl, V(176, 16), y), epi_half(0, b, 1, rl, V(192, 16), y)
        if O_.tight:
            assert npre >= 16; lt = int(npre < 24 or O_.lt)
            for bb, g0 in {0: [(2, 0), (3, len(mf) + 4)], 1 + lt: [(4, 0)], 2 + lt: [(5, 0)]}.get(b, []):
                if bb != 3: E(wait(vm=blk(aQ, 1, max(bb, 3))))
                for n, x in enumerate(qrd(bb)): sc.put(g0 + n, x)
            if 1 <= b < NB - 1: E(wait(lgkm=[Qreg(b + 1, n) for n in range(4)]))
            acc = [x for x in h0 + h1 if x.m.get("op") == "v_accvgpr_read_b32"]
            mx = rowmax_ops(b - 1)[0] if b else ls[:1]
            left = sc.pour((mx, 0), (acc, 0)); sc.emit()
            E([x for x in left if x not in acc], ls[2:] if b == 0 else None)
            h0, h1 = [[x for x in h if x not in acc or x in left] for h in (h0, h1)]
        else:
            if 1 <= b < NB - 1:
                sc.put(0, wait(vm=blk(aQ, 1, b + 1)))
                for n, x in enumerate(qrd(b + 1)): sc.put(1 + n, x)
                sc.put(11, wait(lgkm=[Qreg(b + 1, n) for n in range(4)]))
            rest = sc.pour((rowmax_ops(b - 1)[0] if b else rest, 0)); sc.emit(); E(rest, ls if b == 0 else None)
        if b == NB - 1: E([kread(15, 2, 0, s_, F(s_)) for s_ in range(4)])
        E(l_bcast(b, rc[b//3], rl), h0, site(2*b), finish(b - 1) if b else None, h1, site(2*b + 1))
    assert more.left() == 0
    E(rowmax_ops(NB - 1)[0][:4] if O_.tight else [rowmax_ops(NB - 1)[0], finish(NB - 1)])
    E(salu("s_mov_b32", sCnt, 1), wait(lgkm=[F(s_) for s_ in range(4)]), stamp_now())
    slip_reads(cur)

def slip_reads(ins):
    out = []; pend = []; n = 0
    for i, x in enumerate(ins):
        if x.m.get("slip"): pend.append(x); n = 0; continue
        assert not (pend and x.kind in ("vst", "dsw"))
        out.append(x)
        if pend and x.kind == "mfma":
            n = -99
            if ins[i + 1].kind not in MEM: out.append(pend.pop(0))
        elif pend and x.kind in VAL:
            n += 1
            if n == 8: out += pend; pend = []
    assert not pend
    ins[:] = out

def endgame():
    s = seg("end"); path.append((s, {"J": 29}))
    E(stamp_now())
    carry = []
    for ps, H in enumerate(([3, 4, 5], [0, 1, 2])):
        E(comment(f"---- pass {ps}"))
        subs = [("Q", 1, 0), ("Q", 1, 1), ("P", 0, 0), ("P", 0, 1), ("Q", 2, 0), ("Q", 2, 1), ("P", 1, 0), ("P", 1, 1), ("P", 2, 0), ("P", 2, 1)]
        FA, FB = [F(k) for k in range(4)], [F(4 + k) for k in range(4)]
        G = [[Qreg(3 + n, k) for k in range(4)] for n in range(3)]; Hh = [[A(176 + 16*n + 4*k, 4) for k in range(4)] for n in range(5)]
        fr = [FA, FB, FA, FB, FA, FB, FA] + G if ps == 0 else [FA, FB] + Hh + G
        mf = []; use = []; cend = {}; cstart = {}; pstart = {}; bstart = {}
        for i, (kind, d, x) in enumerate(subs):
            u = {}
            if kind == "Q":
                for n, b in enumerate(H):
                    cstart[(d, b, x)] = len(mf)
                    for s_, m in chain(b, x, fr[i], negM(b), n & 1): u.setdefault(s_, []).append(len(mf)); mf.append(m)
                    cend[(d, b, x)] = len(mf) - 1
            elif d == 2:
                if x == 0:
                    u2 = {}
                    for n, b in enumerate(H):
                        bstart[b] = len(mf); mf.append(rowsum(1, b))
                        for t in range(8):
                            (u if t < 4 else u2).setdefault(t & 3, []).append(len(mf))
                            mf.append(mfma(Oreg(b, t), Preg(1, b), fr[i + (t >> 2)][t & 3], Oreg(b, t)))
                else: u = u2
            else:
                par = (d + 1) & 1
                if x == 0: pstart[d] = len(mf)
                for hh in range(2):
                    for t, m in pv_pair(par, H if hh == 0 else H[::-1], 4*x + 2*hh, fr[i][2*hh:2*hh + 2], False, H[2*x + hh:2*x + hh + 1]):
                        if t is not None: u.setdefault(t & 3, []).append(len(mf))
                        mf.append(m)
            use.append(u)
        sc = Sched(mf); bar = {}
        if ps == 0:
            for d, g, keys in ((0, 9, [rV(0), rK(2)]), (1, use[4][1][-1], [rV(1), rV(2)])):
                sc.fix(wait(vm=keys), g)
                bar[d] = bar[2] = sc.fix(barrier(), g)
        pcs = [(0, q) for q in late_pieces(2) + late_pieces(3)] if ps == 0 else [(0, q) for q in late_pieces(4)] + carry
        taken = {t.gap + k for t in bar.values() for k in (-1, 0, 1)}
        NX = 7; prev_st = [None]*NX; pst = None; base = None
        for i, (h, q) in enumerate(pcs):
            g = O_.p0g + (len(mf) - 4 - O_.p0g)*i//max(1, len(pcs) - 1) if ps == 0 else int(O_.p1g + (len(mf) - 3 - O_.p1g)*(i/(len(pcs) - 1))**O_.p1e)
            while g in taken or g - 1 in taken: g += 1
            off = h*98304 + q*1024; xr = X[i % NX]
            if base is None or not 0 <= off - base < 4096:
                base = off; sc.add(salu("s_mov_b32", sSide, base), 0, g - 1, [(pst, 1, 1)])
            if ps or i >= NPRE:
                r = sc.seq(o_read(aO(h, q), q, xr), g - 60, g - 8, prev_st[i % NX])
                sc.add(wait(lgkm=[xr]), 0, g - 1, [(r, 1, 7)])
            pst = prev_st[i % NX] = sc.fix(vstore(xr, vlin, sO, sSide, off - base, O_.h0_flags if h else O_.late_flags), g)
        prev = None
        for i, (kind, d, x) in enumerate(subs):
            if i == 0 or (ps == 1 and (i == 1 or i >= 7)): continue
            tight = ps == 0 and i < 7
            for k in range(4):
                lo = (use[i - 2][k][-1] if i >= 2 else 0) if tight else (cend[(2, 3 + i - 7, 1)] if ps == 0 else 0)
                rds = [kread(29, d, x, k, fr[i][k])] if kind == "Q" else [vread(29, d, 4*x + k, a, fr[i][k]) for a in range(2)]
                bp = bar.get(d if kind == "P" else (0 if d == 2 else None))
                for r in rds: prev = sc.add(r, lo, None, [(prev, 1, 1), (bp, 1, 1)])
                if tight and kind == "P" and k & 1: sc.add(wait(lgkm=fr[i][k - 1:k + 1]), 0, min(use[i][k - 1][0], use[i][k][0]) - 1, [(prev, 1, 6)])
            if not (tight and kind == "P"): sc.add(wait(lgkm=fr[i]), 0, use[i][0][0] - 1, [(prev, 1, 6)])
        if ps == 0:
            for a in range(2):
                for k in range(4): prev = sc.add(kread(29, 1, a, k, F(4*a + k)), use[6][k][-1], None, [(prev, 1, 1)])
        grp = [([x for bb, x in sm_split(1, NE_A, END_ORDER)[1] if bb == b], 0, cstart[(1, b, 1)] - 1) for b in H if b >= O_.tl0]
        for a in range(2):
            for k, b in enumerate(H): grp.append((sm_ops(0, b, a), cend[(1, b, a)] + 4, min(pstart[1] - 2 + 2*k, cstart[(2, b, a)] - 1)))
        sc.sm(grp)
        order = [(H[0], 0), (H[1], 0), (H[0], 1), (H[2], 0), (H[1], 1), (H[2], 1)]
        sc.sm([(sm_ops(1, b, a), cend[(2, b, a)] + 4, bstart[b] - 2) for b, a in order]
              + ([(sm_ops(1, b, 1), 100, len(mf) - 1) for b in range(O_.tl0)] if ps == 0 else []), 2.4)
        sc.run(); sc.polish(200000)
        rc, rl, t1 = negM(H[0]), negM(H[1]), negM(H[2])[0]
        rest = sc.pour((l_ops(1, H[0], rc, t1), bstart[H[2]] + 4)); sc.emit()
        E(rest, l_flag(1, t1), stamp_now(), comment("---- epilogue"))
        dsts = [X[:4], [F(4 + i) for i in range(4)]]
        pend = []; rds = []
        for k, b in enumerate(H):
            E(l_bcast(b, rc, rl))
            for th in range(2):
                ep = epi_half(1, b, th, rl, V(24, 16), V(40, 8))
                if rds and th == 0:
                    n = O_.rdp
                    for q in range(0, 4, O_.rdn): E(ep[:n], rds[q:q + O_.rdn]); ep = ep[n:]
                    rds = []
                E(ep)
                E(pend[:2]); del pend[:2]
            if ps == 0 and k > 0: carry += [(1, 4*b + i) for i in range(4)]; continue
            d_ = dsts[k & 1]
            rds = [o_read(aO(1, 4*b + i), 4*b + i, d_[i]) for i in range(4)]
            if not O_.rdp or ps == 1: E(rds); rds = []
            sts = [vstore(d_[i], vlin, sO, sSide, i*1024, (O_.last_flags if k >= O_.lastk else O_.fin_flags) if ps else O_.h0_flags) for i in range(4)]
            pre = [salu("s_mov_b32", sSide, 98304 + b*4096), wait(lgkm=d_)]
            pend = [pre + [sts[0]], None, sts[1], None, sts[2], None, sts[3]] if ps == 0 else [pre + [sts[0]], sts[1], sts[2], sts[3]]
        E(pend, wait(lgkm=0), stamp_now())

def slow_path():
    sH, sB, sI, sKo, sQo = S(4), S(5), S(6), S(7), S(8)
    Qf = [V(4*s, 4) for s in range(4)]; Kf = [V(16 + 4*i, 4) for i in range(8)]; St = [V(48, 4), V(52, 4)]; Pf = V(56, 4)
    nm = V(60, 4); Vf = V(64, 4); Of = [V(68 + 4*t, 4) for t in range(8)]; L = V(100, 4); w = V(104, 8)
    ones = V(120, 4)
    vrow, vk, vv, vtr, vst_, t0, t1 = V(112), V(113), V(114), V(115), V(116), V(117), V(118)
    def S_(name, J=0):
        s = seg(name); return s
    s0 = S_("slow0")
    E(comment("---- fallback: a row sum left the safe range, redo this wave's rows with the true row max"),
      label("L_slow"), wait(vm=0, lgkm=0),
      valu("v_mbcnt_lo_u32_b32", t0, -1, 0), valu("v_mbcnt_hi_u32_b32", t0, -1, t0), valu("v_lshlrev_b32", vlin, 4, t0),
      [valu("v_mov_b32", ones[r], "0x3f803f80") for r in range(4)],
      valu("v_bfe_u32", t0, vlin, 4, 4), valu("v_lshrrev_b32", t1, 8, vlin),
      valu("v_lshlrev_b32", vrow, 8, t0), valu("v_lshl_add_u32", vst_, t1, 3, vrow), valu("v_lshl_add_u32", vrow, t1, 4, vrow),
      valu("v_lshrrev_b32", vtr, 2, t0), valu("v_lshl_add_u32", vtr, t1, 2, vtr), valu("v_lshlrev_b32", vtr, 8, vtr),
      valu("v_and_b32", t0, 3, t0), valu("v_lshl_add_u32", vtr, t0, 3, vtr), valu("v_add_u32", vtr, sStg, vtr),
      salu("s_mov_b32", sH, 0))
    s1 = S_("slow_head")
    E(label("L_sl_head"), salu("s_lshr_b32", sT0, sFlag, sH), salu("s_and_b32", sT0, sT0, 1), raw("s_cbranch_scc0 L_sl_next", "salu", {"scc"}),
      salu("s_lshl_b32", sKo, sH, 17), salu("s_mul_i32", sQo, sH, 98304), salu("s_mov_b32", sB, 0))
    s2 = S_("slow_blk")
    E(label("L_sl_blk"))
    for s in range(4): E(vload(Kf[s], vrow, sQ, sQo, 64*s))
    E(wait(vm=0))
    for s in range(4): E(scale_frag(Kf[s], Qf[s], w, None))
    E(valu("v_mov_b32", nm[0], "0xff800000"), valu("v_add_u32", vk, sKo, vrow), salu("s_mov_b32", sI, 32))
    s3 = S_("slow_p1")
    E(label("L_sl_p1"))
    for s in range(4): E(gload(Kf[s], vk, sKb, 64*s))
    E(valu("v_add_u32", vk, 4096, vk), wait(vm=0))
    for s in range(4): E(mfma(St[0], Kf[s], Qf[s], 0 if s == 0 else St[0]))
    E(salu("s_sub_u32", sI, sI, 1), scmp("s_cmp_lg_u32", sI, 0), nop(7),
      valu("v_max3_f32", nm[0], nm[0], St[0][0], St[0][1]), valu("v_max3_f32", nm[0], nm[0], St[0][2], St[0][3]),
      raw("s_cbranch_scc1 L_sl_p1", "salu", {"scc"}))
    s4 = S_("slow_mid")
    E(xlane_max(nm[0], nm[1]), [valu("v_sub_f32", nm[r], 0, nm[0]) for r in (1, 2, 3, 0)])
    for r in range(36): E(valu("v_mov_b32", V(68 + r), 0))
    E(valu("v_add_u32", vk, sKo, vrow), valu("v_add_u32", vv, sKo, vlin), valu("v_add_u32", vv, 1024 + 16384, vv), salu("s_mov_b32", sI, 16))
    s5 = S_("slow_p2")
    E(label("L_sl_p2"))
    key = (("stg", "slow"), ("Vs",), False)
    for half in range(2):
        E(salu("s_add_u32", "m0", sStg, 4096*half))
        for s in range(4): E(gload(Kf[4*half + s], vk, sKb, 64*s))
        for k in range(4): E(gdma(vv, sVb, 1024*k, key, ""))
        E(valu("v_add_u32", vk, 4096, vk), valu("v_add_u32", vv, 4096, vv))
    E(wait(vm=0))
    for a in range(2):
        for s in range(4): E(mfma(St[a], Kf[4*a + s], Qf[s], nm if s == 0 else St[a]))
    E(nop(7))
    for r in range(8): E(valu("v_exp_f32", V(48 + r), V(48 + r)))
    for r in range(4): E(valu("v_cvt_pk_bf16_f32", Pf[r], V(48 + 2*r), V(49 + 2*r)))
    E(mfma(L, ones, Pf, L))
    for t in range(8):
        for a in range(2): E(ds_read("ds_read_b64_tr_b16", Vf[2*a:2*a + 2], vtr, a*4096 + 32*t, key))
        E(wait(lgkm=0), mfma(Of[t], Vf, Pf, Of[t]), nop(1))
    E(salu("s_sub_u32", sI, sI, 1), scmp("s_cmp_lg_u32", sI, 0), raw("s_cbranch_scc1 L_sl_p2", "salu", {"scc"}))
    s6 = S_("slow_epi")
    E(nop(7), valu("v_rcp_f32", t0, L[0]), nop(0))
    for t in range(8):
        for r in range(4): E(valu("v_mul_f32", Of[t][r], t0, Of[t][r]))
        E(valu("v_cvt_pk_bf16_f32", Of[t][0], Of[t][0], Of[t][1]), valu("v_cvt_pk_bf16_f32", Of[t][1], Of[t][2], Of[t][3]),
          vstore(Of[t][0:2], vst_, sO, sQo, 32*t, "", "buffer_store_dwordx2"))
    E(salu("s_add_u32", sQo, sQo, 4096), salu("s_add_u32", sB, sB, 1), scmp("s_cmp_lt_u32", sB, NB), raw("s_cbranch_scc1 L_sl_blk", "salu", {"scc"}))
    s7 = S_("slow_next")
    E(label("L_sl_next"), salu("s_add_u32", sH, sH, 1), scmp("s_cmp_lt_u32", sH, 2), raw("s_cbranch_scc1 L_sl_head", "salu", {"scc"}))
    blkp = [s2, s3, s3, s4, s5, s5, s6]
    path2.extend((x, {"J": 0}) for x in [s0, s1] + blkp + blkp + [s7, s1] + blkp + [s7])

def finish():
    if O_.diag:
        a, b = [int(x) for x in O_.diag.split(":")]
        E(wait(vm=0), raw("s_memrealtime s[42:43]", "smem", (), rs(S(42, 2))), wait(lgkm=0), salu("s_mov_b32", S(47), S(42)),
          salu("s_sub_u32", sT0, S(STAMP0 + b), S(STAMP0 + a)), salu("s_lshr_b32", sT0, sT0, 3 if O_.stamps == 1 else 0),
          salu("s_add_u32", sT0, sT0, 7000),
          label("L_spin"), raw("s_memrealtime s[42:43]", "smem", (), rs(S(42, 2))), wait(lgkm=0),
          salu("s_sub_u32", S(42), S(42), S(46)), scmp("s_cmp_lt_u32", S(42), sT0), raw("s_cbranch_scc1 L_spin", "salu", {"scc"}))
    elif O_.stamps:
        E(wait(vm=0), raw("s_memrealtime s[42:43]", "smem", (), rs(S(42, 2))), wait(lgkm=0), salu("s_mov_b32", S(47), S(42)))
        E(salu("s_lshl_b32", sT0, S(2), 2), salu("s_add_u32", sT0, sT0, sW), salu("s_lshl_b32", sT0, sT0, 8))
        E(valu("v_mov_b32", V(1), sT0))
        for k in range(nstamp[0] + 2):
            E(valu("v_mov_b32", V(2), S(46 + k)),
              Inst(f"global_store_dword v1, v2, s[44:45] offset:{4*k}", "vst", rs(V(1), V(2), S(44, 2)), (), data=set()), nop(1))
    if O_.stamps and not O_.diag:
        E(raw("s_getreg_b32 s42, hwreg(HW_REG_XCC_ID)", "salu", (), rs(S(42))), valu("v_mov_b32", V(1), sT0), valu("v_mov_b32", V(2), S(42)),
          Inst("global_store_dword v1, v2, s[44:45] offset:252", "vst", rs(V(1), V(2), S(44, 2)), (), data=set()))
    E(scmp("s_cmp_eq_u32", sFlag, 0), raw("s_cbranch_scc1 L_end", "salu", {"scc"}), label("L_fast_end"))

def build():
    s = seg("start"); path.append((s, {"J": 0})); startup()
    for J in range(4): straight(J)
    if O_.probe == 4: E(stamp_now())
    if not O_.unr: loop4("A", 4, 2)
    for J in range(4 if O_.unr else 12, 15): straight(J)
    transition()
    straight(16)
    loop4("M", 17, 2)
    for J in range(25, 29): straight(J, stamp_now() if J == 28 or (J == 26 and O_.probe == 4) else None)
    endgame()
    finish()
    if O_.slow: slow_path()
    seg("exit"); E(label("L_end"))
    def trace(): return [(i, mkctx(c)) for sidx, c in path + path2 for i in segs[sidx][1]]
    for rnd in range(5):
        fix = {}
        resolve_and_check(trace(), fix=fix)
        for sg in segs:
            new = []
            for i in sg[1]:
                if i.kind == "wait" and i.m["nvm"] in (None, 63) and i.m["nlg"] in (None, 15): fix[0] = 1; continue
                if id(i) in fix: new.append(nop(fix[id(i)] - 1))
                new.append(i)
            sg[1][:] = new
        if not fix: break
    resolve_and_check(trace(), verbose=True)
    if O_.stamps:
        tr = [i for sidx, c in path for i in segs[sidx][1]]; cuts = [k for k, i in enumerate(tr) if i.kind == "smem" and "s[42:43]" in i.text]
        print("  est between stamps:", [cost_estimate(tr[a:b]) for a, b in zip(cuts, cuts[1:])])
    for name, ins in segs:
        if not name.startswith("slow"): print(f"  seg {name:8s} insts {len(ins):5d} est cycles {cost_estimate(ins):6d} nops {sum(1 for i in ins if i.kind == 'nop')}")

HEAD = """; MHA forward, B=16 H=32 Sq=384 Sk=512 D=128, bf16 in/out.  Written with the author's own generator script.
; K/V stream exactly once through a 4-slot LDS ring (LDS-DMA, one barrier per tile); Q and O pass through a per-wave
; staging area (O is transposed there so that whole 128-byte lines are stored).
; Softmax: Q is pre-scaled by log2(e)/sqrt(D).  Each row's max over its first 32 keys is subtracted through the MFMA
; C operand (so every row sum is >= 1, nothing can underflow); the row sums come from an MFMA against a ones column.
; Guard: a row sum that is NaN or >= 2^64 flags the wave, which then redoes its rows with the true row max (L_slow).
; @launch grid=(256,1,1) block=(256,1,1) lds=163840
.amdgcn_target "amdgcn-amd-amdhsa--gfx950"
.text
.globl standalone__mha_softmax__near_ridge_kernel
.p2align 8
.type standalone__mha_softmax__near_ridge_kernel,@function
standalone__mha_softmax__near_ridge_kernel:
"""
TAIL = """    s_endpgm
.section .rodata,"a"
.p2align 6
.amdhsa_kernel standalone__mha_softmax__near_ridge_kernel
  .amdhsa_next_free_vgpr 512
  .amdhsa_next_free_sgpr 102
  .amdhsa_accum_offset 256
  .amdhsa_group_segment_fixed_size 0
  .amdhsa_kernarg_size 48
  .amdhsa_user_sgpr_count 2
  .amdhsa_user_sgpr_kernarg_segment_ptr 1
  .amdhsa_system_sgpr_workgroup_id_x 1
.end_amdhsa_kernel
"""
def insert_pads(text):
    import subprocess, re, tempfile, os
    def offsets(npads):
        d = tempfile.mkdtemp(); t = text()
        t = t.replace("L_padret:", "L_padret:\n" + "".join(f"L_pad{k}:\n" for k in range(npads + 1, 40)))
        open(d + "/a.s", "w").write(t)
        subprocess.run(["clang", "-x", "assembler", "-target", "amdgcn-amd-amdhsa", "-mcpu=gfx950", "-c", d + "/a.s", "-o", d + "/a.o"], check=True)
        dis = subprocess.run(["llvm-objdump", "-d", "--mcpu=gfx950", d + "/a.o"], capture_output=True, text=True).stdout
        sym = subprocess.run(["llvm-readelf", "-s", d + "/a.o"], capture_output=True, text=True).stdout
        main = int(re.search(r"([0-9a-f]{16}) .* L_main$", sym, re.M).group(1), 16)
        ad = [(int(m.group(2), 16), m.group(1)) for m in re.finditer(r"^\s+(\S+).*// ([0-9A-F]{12}):", dis, re.M)]
        ad = [x for x in ad if x[0] >= main]
        flat = [(sg, k) for sg in segs for k in range(len(sg[1]))]
        flat = flat[[i for i, (sg, k) in enumerate(flat) if sg[1][k].text == "L_main:"][0]:]
        o = []; j = 0
        for sg, k in flat:
            x = sg[1][k]
            if x.kind == "label":
                if x.text == "L_fast_end:": break
                if x.text.startswith(".p2align") and ad[j][0] % 8: j += 1
                continue
            assert ad[j][1].startswith(x.text.split()[0][:12]), (ad[j], x.text)
            o.append((ad[j][0] - ad[0][0], sg, k)); j += 1
        return o
    page = 1; pads = []
    while True:
        off = offsets(page - 1)
        cand = [n for n, (a, sg, k) in enumerate(off) if 4096*page <= a <= 4096*page + 56]
        if not cand: break
        def score(n):
            a, sg, k = off[n]; lo = max(0, k - 8); w = sg[1][lo:k + 8]
            return cost_estimate(w[:k - lo] + [raw("pad")] + w[k - lo:]) - cost_estimate(w)
        n = min(cand, key=score); _, sg, k = off[n]
        p = raw(f"s_cbranch_vccz L_pad{page + 4}"); pads.append(p)
        sg[1][k:k] = [label(f"L_pad{page}"), p]
        page += 1
    for i, p in enumerate(pads):
        if i + 1 + 4 >= page: p.text = "s_cbranch_vccz L_padret"
    assert page > 4
    print(f"  {page - 1} page pads")

if __name__ == "__main__":
    out = sys.argv[1]
    for a in sys.argv[2:]:
        k, v = a.split("=")
        setattr(O_, k, type(getattr(O_, k))(v))
    build()
    def text(): return HEAD + "\n".join((i.text if i.kind == "label" else "    " + i.text) for _, ins in segs for i in ins) + "\n" + TAIL
    if O_.pads: insert_pads(text)
    open(out, "w").write(text())
    import subprocess
    r = subprocess.run([sys.executable, "cdna_unwritten_srd_check.py", out], capture_output=True, text=True)
    print("  check:", r.stdout.strip()[-300:], r.stderr.strip()[-300:])
```

```python
import sys, math, struct, random
from ir import *

class Opt:
    stamps = 0; diag = ""; probe = 0; force = 0
    late_flags = "sc1"; h0_flags = "sc1"; fin_flags = "sc1"; fq = "nt"; fk = "nt"; fv = "nt"
    n0 = 14
    lead0 = "80,85,90,100,123,123,123,123,123,123,123,123,123,123,145"
    qs = "001122222222104"
    tq = 4; tstep = 12; tper = 2
    olate = "26552"
    unr = 0
    dsp1 = 5; jsp = 27
    xst = ""; xpar = 0
    rdp = 8; rdn = 4; slip = 1
    last_flags = "sc1"; lastk = 2
    amp = 0
    lt = 1; gq14 = 27
    psp = 2; opt = 1; nea = 40
    g11 = 56; g12 = 16; dsp = 5; p0g = 6; p1g = 10; p1e = 1.0; tl0 = 1
    osched = "000000220000"; tsched = "111222000000"
    ne1 = 36
    pads = 2
    mq0 = 0
    tight = 1
    ps = "000011111111000"
    pvo = "bs2"; qks = 1; slow = 1
O_ = Opt()

NB = 6
def f32bits(x): return struct.unpack("<I", struct.pack("<f", x))[0]
CSCALE = f32bits(math.log2(math.e) / math.sqrt(128.0))
THRESH = f32bits(2.0 ** 64)
def bf16(x):
    u = f32bits(x); return (u + 0x7fff + ((u >> 16) & 1)) >> 16
C_HI = bf16(math.log2(math.e) / math.sqrt(128.0))
C_LO = bf16(math.log2(math.e) / math.sqrt(128.0) - struct.unpack("<f", struct.pack("<I", C_HI << 16))[0])

def Sreg(b, a): return V(8*b + 4*a, 4)
def Preg(par, b): return V(48 + 24*par + 4*b, 4)
def negM(b): return V(96 + 4*b, 4)
kaddr = [V(120 + s) for s in range(4)]
vaddr = [V(124 + t) for t in range(8)]
vkv = V(132); vsd0 = V(133); vsd1 = V(134); vlin = V(135)
qa = [V(136 + s) for s in range(4)]
ow = V(140)
ovr = V(141)
def Oreg(b, t):
    n = 8*b + t
    return V(144 + 4*n, 4) if n < 28 else A(176 + 4*(n - 28), 4)
def Qreg(b, s): return A(16*b + 4*s, 4)
def F(i): return A(96 + 4*i, 4)
def lacc(b): return A(128 + 4*(b//3), 4)
def sel(b): return A(136 + 4*(b % 3), 4)
X = [A(148 + 4*k, 4) for k in range(7)]
CS = A(164, 10)
sQ, sO = S(12, 4), S(24, 4); sKb, sVb, sVx = S(16, 2), S(22, 2), S(18, 2)
sW = S(28); sM0 = S(30); sStg = S(31); sSide = S(32); sT0 = S(33); sT1 = S(34); sT2 = S(35)
sFlag = S(36); sThr = S(37); sC = S(38, 2); sCmp = S(40, 2); sStamp = S(42, 2); sCnt = S(3); sQb = S(20, 2)
STAMP0 = 48

def aK(J): return (("ring", (J - 2) % 4, "K"), ("K", J), True)
def aV(J): return (("ring", J % 4, "V"), ("V", J), True) if J < 31 else (("ring", 2, "K"), ("V", J), True)
def rK(d): return lambda c: aK(c["J"] + d)
def rV(d): return lambda c: aV(c["J"] + d)
def aQ(h, p): return (("stg", p), ("Q", h), False)
def aO(h, p): return (("stg", p), ("O", h), False)
def blk(f, h, b): return [f(h, 4*b + i) for i in range(4)]
def mkctx(c): return lambda r: r(c) if callable(r) else r

segs = []; path = []; path2 = []; cur = None
def seg(name):
    global cur
    cur = []; segs.append([name, cur]); return len(segs) - 1
def E(*xs):
    for x in xs:
        if x is None: continue
        if isinstance(x, (list, tuple)): E(*x)
        else: cur.append(x)
nstamp = [0]
def stamp_now():
    if O_.stamps not in (1, 2): return []
    k = nstamp[0]; nstamp[0] += 1
    op = "s_memtime" if O_.stamps == 1 else "s_memrealtime"
    return [raw(f"{op} {sStamp}", "smem", (), rs(sStamp)), wait(lgkm=0), salu("s_mov_b32", S(STAMP0 + k), sStamp[0])]

MEM = ("dsr", "dsw", "dma", "vld", "vst"); VAL = ("valu", "trans")
class Task:
    count = 0
    def __init__(s, x, lo, hi, preds):
        s.x, s.lo, s.hi, s.preds, s.gap = x, lo, hi, preds, None
        s.lo0, s.hi0 = lo, hi; Task.count += 1; x.m["seq"] = Task.count
class Sched:
    def __init__(s, mf):
        s.mf = mf; s.n = len(mf); s.g = [[] for _ in mf]; s.t = []; s.done = []; s.own = set()
        s.cap = [24 if m.m["big"] else 8 for m in mf]; s.novalu = set()
    def cost(s, x): return 8 if x.kind == "trans" or x.m.get("perm") else 4
    def fits(s, g, x):
        if s.cap[g] < s.cost(x): return False
        if x.kind in MEM and any(y.kind in MEM for y in s.g[g]): return False
        if x.kind in VAL and g in s.novalu: return False
        return True
    def put(s, g, x): s.g[g].append(x); s.cap[g] -= s.cost(x)
    def fix(s, x, g):
        t = Task(x, g, g, []); t.gap = g; s.put(g, x)
        if x.kind in ("dma", "vst", "vld"): s.cap[g] = 0; s.novalu.add(g - 1); s.own.add(g)
        if x.kind in ("barrier", "dsw") or x.m.get("last"): s.cap[g] = 0; s.own.add(g)
        return t
    def add(s, x, lo=0, hi=None, preds=()):
        t = Task(x, max(lo, 0), s.n - 1 if hi is None else min(hi, s.n - 1), [p for p in preds if p[0] is not None]); s.t.append(t); return t
    def seq(s, xs, lo=0, hi=None, after=None, hard=1):
        p = after
        for x in xs: p = s.add(x, lo, hi, [(p, hard, hard)])
        return p
    def sm(s, groups, smax=2.0):
        ex = [(x, lo, hi) for ops, lo, hi in groups for x in ops if x.kind == "trans"]
        sig = smax
        while True:
            pos = []; t = -9.0; ok = True
            for x, lo, hi in ex:
                t = max(lo, t + sig); g = int(t)
                while g < s.n and (not s.fits(g, x) or (pos and g <= pos[-1])): g += 1
                if g > hi - 1: ok = False; break
                pos.append(g); t = max(t, g - 0.5)
            if ok: break
            sig -= 0.05
            assert sig > 0.3, "softmax does not fit"
        k = 0
        for ops, lo, hi in groups:
            e = []
            for x in ops:
                if x.kind == "trans":
                    t = s.fix(x, pos[k]); t.lo0, t.hi0 = lo, hi - 1; s.done.append(t); e.append(t); k += 1
                else: s.add(x, lo, min(hi, e[-1].gap + 5), [(e[-1], 1, 1), (e[-2], 1, 1)]).hi0 = min(hi, s.n - 1)
    def run(s):
        for t in reversed(s.t):
            for p, h, so in t.preds:
                if p.gap is None: p.hi = min(p.hi, t.hi - so)
        for t in s.t:
            for p, h, so in t.preds: t.lo = max(t.lo, p.lo + h)
            t.hi = max(t.hi, t.lo)
        left = list(s.t)
        for g in range(s.n):
            while True:
                rdy = [t for t in left if t.lo <= g and all(p.gap is not None and g >= p.gap + h for p, h, so in t.preds)]
                rdy = [t for t in rdy if t.hi <= g or all(g >= p.gap + so for p, h, so in t.preds)]
                rdy.sort(key=lambda t: t.hi)
                pick = next((t for t in rdy if t.hi <= g or s.fits(g, t.x)), None)
                if pick is None: break
                s.put(g, pick.x); pick.gap = g; left.remove(pick)
        assert not left, left[0].x
        s.done += s.t; s.t = []
    def polish(s, iters=60000):
        if not O_.opt: return
        rnd = random.Random(1); T = s.done; succ = {id(t): [] for t in T}
        for t in T:
            t.dp = [(p, min(so, t.gap - p.gap)) for p, h, so in t.preds]
            for p, d in t.dp:
                if id(p) in succ: succ[id(p)].append((t, d))
            t.hi0 = max(t.hi0, t.gap); t.lo0 = min(t.lo0, t.gap)
        drain = [g for g in range(s.n) if any(x.kind == "wait" and x.m["lgkm"] == 0 for x in s.g[g])]
        full = [24 if m.m["big"] else 8 for m in s.mf]; base = {g: [x for x in s.g[g] if all(x is not t.x for t in T)] for g in s.own}
        def over(g, xs):
            if g in s.own: return sum(s.cost(x) for x in xs if all(x is not y for y in base[g]))
            c = sum(s.cost(x) for x in xs) + 4*max(0, sum(x.kind in MEM for x in xs) - 1)
            o = max(0, c - full[g])
            if g in s.novalu and c >= 8 and any(x.kind in VAL for x in xs): o += 4
            return o
        ov = [over(g, s.g[g]) for g in range(s.n)]
        for it in range(iters):
            if not any(ov): break
            t = rnd.choice(T); a = t.gap
            lo = max([t.lo0] + [p.gap + d for p, d in t.dp]); hi = min([t.hi0] + [q.gap - d for q, d in succ[id(t)]])
            b = rnd.randint(max(lo, a - 6), min(hi, a + 6)) if lo <= hi else a
            if b == a or (t.x.kind == "dsr" and any(0 <= g - b < 7 and not (b < a <= g) for g in drain)): continue
            xa = [x for x in s.g[a] if x is not t.x]; xb = s.g[b] + [t.x]
            oa, ob = over(a, xa), over(b, xb); dl = oa + ob - ov[a] - ov[b]
            if dl <= 0 or rnd.random() < math.exp(-dl/(1.2*(1 - it/iters) + 1e-9)):
                s.g[a], s.g[b], ov[a], ov[b], t.gap = xa, xb, oa, ob, b
                s.cap[a] += s.cost(t.x); s.cap[b] -= s.cost(t.x)
    def pour(s, *streams):
        st = [[list(xs), lo] for xs, lo in streams]
        for g in range(s.n):
            again = True
            while again:
                again = False
                for q in st:
                    if q[0] and q[1] <= g and s.fits(g, q[0][0]): s.put(g, q[0].pop(0)); again = True; break
        return [x for q in st for x in q[0]]
    def emit(s):
        for m, g in zip(s.mf, s.g):
            key = lambda x: (3 if x.m.get("last") else (2 if x.kind in VAL else (0 if x.kind in MEM else 1)), x.m.get("seq", 1 << 30))
            E(m, sorted(g, key=key))

def kread(J, d, a, s, dst): return ds_read("ds_read_b128", dst, kaddr[s], ((J + d - 2) % 4)*16384 + a*8192, rK(d))
def vread(J, d, t, a, dst):
    return ds_read("ds_read_b64_tr_b16", dst[2*a:2*a+2], vaddr[t], (((J + d) % 4)*16384 if J + d < 31 else 32768 - 1024) + a*8192, rV(d))
def kv_group(J, d, withV=True):
    o = [salu("s_add_u32", "m0", sM0, ((J + d) % 4)*16384)]
    for im in (0, 2048):
        if withV: o.append(gdma(vkv, sVb, im + 1024, rV(d), O_.fv))
        o.append(gdma(vkv, sKb, im, rK(d + 2), O_.fk) if J + d < 30 else gdma(vkv, sVx, im, rV(d + 1), O_.fv))
    return o + [kv_step()]
def kv_step(): return valu("v_add_u32", vkv, 8192, vkv)
def q_dma_block(h, b):
    o = [salu("s_add_u32", "m0", sStg, b*4096), salu("s_mov_b32", sSide, h*98304 + b*4096)]
    for i in range(4): o.append(dma(vsd1 if i & 1 else vsd0, sQ, sSide, i*1024, aQ(h, 4*b + i), O_.fq))
    return o
def piecemeal(groups):
    st = []; pre = []
    for grp in groups:
        for x in grp:
            if x.kind in MEM: st.append(pre + [x]); pre = []
            else: pre.append(x)
    if pre: st[-1] += pre
    def more(n):
        o = st[:n]; del st[:n]; return o
    more.left = lambda: len(st)
    return more

def sm_ops(par, b, a):
    s = Sreg(b, a); p = Preg(par, b)
    return [valu("v_exp_f32", s[0], s[0]), valu("v_exp_f32", s[1], s[1]), valu("v_cvt_pk_bf16_f32", p[2*a], s[0], s[1]),
            valu("v_exp_f32", s[2], s[2]), valu("v_exp_f32", s[3], s[3]), valu("v_cvt_pk_bf16_f32", p[2*a+1], s[2], s[3])]
NE_A = 40
def sm_split(par, ne=NE_A, order=range(NB)):
    st = []
    for a in range(2):
        for b in (order if a else range(NB)): st += [(b, x) for x in sm_ops(par, b, a)]
    k = ne // 2 * 3
    return st[:k], st[k:]
def delay_cvts(xs):
    o = []; pend = []
    for x in xs:
        if x.kind == "trans":
            o.append(x)
            if pend: o.append(pend.pop(0))
        else: pend.append(x)
    return o + pend
def xlane_max(m, t):
    o = []
    for op in ("v_permlane32_swap_b32", "v_permlane16_swap_b32"):
        o += [valu("v_mov_b32", t, m), swap(op, m, t), valu("v_max_f32", m, m, t)]
    return o
def rowmax_ops(b):
    m, t = negM(b)[0], negM(b)[1]; sv = lambda r: V(8*b + r)
    o = [valu("v_max3_f32", m, sv(0), sv(1), sv(2)), valu("v_max3_f32", t, sv(3), sv(4), sv(5)),
         valu("v_max3_f32", m, m, sv(6), sv(7)), valu("v_max_f32", m, m, t)] + xlane_max(m, t)
    o += [valu("v_sub_f32", negM(b)[r], 0, m) for r in (1, 2, 3, 0)]
    return o, [valu("v_pk_add_f32", V(8*b + 2*r, 2), V(8*b + 2*r, 2), negM(b)[0:2]) for r in range(4)]
def scale_frag(x, dst, w, y, pk=True):
    o = []
    if pk:
        for r in range(4): o += [valu("v_lshlrev_b32", w[2*r], 16, x[r]), valu("v_and_b32", w[2*r+1], "0xffff0000", x[r])]
        for r in range(4): o.append(valu("v_pk_mul_f32", w[2*r:2*r+2], w[2*r:2*r+2], sC))
    else:
        for r in range(4):
            o += [valu("v_lshlrev_b32", w[2*r], 16, x[r]), valu("v_and_b32", w[2*r+1], "0xffff0000", x[r]),
                  valu("v_mul_f32", w[2*r], sC[0], w[2*r]), valu("v_mul_f32", w[2*r+1], sC[0], w[2*r+1])]
    if dst.k == "v": return o + [valu("v_cvt_pk_bf16_f32", dst[r], w[2*r], w[2*r+1]) for r in range(4)]
    for r in range(4): o.append(valu("v_cvt_pk_bf16_f32", y[r], w[2*r], w[2*r+1]))
    for r in range(4): o.append(valu("v_accvgpr_write_b32", dst[r], y[r]))
    return o
def chain(b, a, fr, c0, rev):
    return [(s, mfma(Sreg(b, a), fr[s], Qreg(b, s), c0 if n == 0 else Sreg(b, a))) for n, s in enumerate(range(3, -1, -1) if rev and O_.qks else range(4))]
def qk_first(b): return [m for a in range(2) for _, m in chain(b, a, [F(4*a + s) for s in range(4)], 0, a)]
def pv_pair(par, bs, t0, fr, init, sums):
    o = []
    if O_.pvo in ("t", "ts"):
        bs = sorted(bs)
        if 5 in sums and init: sums = []; o += [(None, rowsum(par, 5, init)), (None, rowsum(par, 4, init))]
        for k in range(2):
            for b in (bs if k == 0 or O_.pvo == "t" else bs[::-1]):
                o.append((t0 + k, mfma(Oreg(b, t0 + k), Preg(par, b), fr[k], 0 if init else Oreg(b, t0 + k))))
                if k == 0 and b in sums: o.append((None, rowsum(par, b, init)))
        return o
    for n, b in enumerate(bs):
        for k in ((0, 1) if n % 2 == 0 or O_.pvo == "pp2" else (1, 0)): o.append((t0 + k, mfma(Oreg(b, t0 + k), Preg(par, b), fr[k], 0 if init else Oreg(b, t0 + k))))
        if b in sums: o.insert(len(o) - 1, (None, rowsum(par, b, init)))
    return o
def rowsum(par, b, init=False): return mfma(lacc(b), Preg(par, b), sel(b), 0 if init and b in (0, 5) else lacc(b))

def pm(f):
    q = Qreg(f//4, f % 4); d = V(76 + 8*(f & 1), 8); t = V(92, 4)
    mf = [mfma(d[0:4], CS[2:6], q, 0), mfma(d[0:4], CS[6:10], q, d[0:4]), mfma(d[4:8], CS[0:4], q, 0), mfma(d[4:8], CS[4:8], q, d[4:8])]
    fl = []
    for hh in range(2):
        fl += [valu("v_cvt_pk_bf16_f32", t[2*hh + k], d[4*hh + 2*k], d[4*hh + 2*k + 1]) for k in range(2)]
        fl += [valu("v_accvgpr_write_b32", q[2*hh + k], t[2*hh + k]) for k in range(2)]
    return mf, fl

def startup():
    v0, vl, vi, vu, t0, t1, t2 = V(0), V(1), V(2), V(3), V(4), V(5), V(6)
    E(comment("---- setup"),
      raw("s_load_dwordx4 s[4:7], s[0:1], 0", "smem", (), rs(S(4, 4))),
      raw("s_load_dwordx4 s[8:11], s[0:1], 16", "smem", (), rs(S(8, 4))),
      scmp("s_cmp_ge_u32", S(2), 256), raw("s_cbranch_scc1 L_end", "salu", {"scc"}))
    if O_.stamps:
        E(raw("s_load_dwordx2 s[44:45], s[0:1], 40", "smem", (), rs(S(44, 2))),
          raw("s_memrealtime s[46:47]", "smem", (), rs(S(46, 2))))
    E(comment("pull the kernel's own code into L2 (one dword per 128-byte line)"),
      raw("s_getpc_b64 s[40:41]", "salu", (), rs(S(40, 2))), label("L_pc"),
      valu("v_lshlrev_b32", t0, 7, v0), valu("v_min_u32", t1, "L_fast_end-L_pc", t0),
      Inst(f"global_load_dword v7, {t1}, s[40:41]", "vld", rs(t1, S(40, 2)), rs(V(7))),
      valu("v_add_u32", t0, 32768, t0), valu("v_min_u32", t1, "L_fast_end-L_pc", t0),
      Inst(f"global_load_dword v8, {t1}, s[40:41]", "vld", rs(t1, S(40, 2)), rs(V(8))))
    E(valu("v_lshrrev_b32", t1, 6, v0), valu("v_and_b32", vl, 63, v0),
      valu("v_readfirstlane_b32", sW, t1),
      valu("v_and_b32", vi, 15, vl), valu("v_lshrrev_b32", vu, 4, vl),
      valu("v_lshlrev_b32", t0, 1, vu), valu("v_xor_b32", t0, t0, vi), valu("v_lshlrev_b32", t0, 4, t0),
      valu("v_lshl_add_u32", vsd0, vu, 8, t0), valu("v_xor_b32", vsd1, 128, vsd0),
      salu("s_and_b32", sT0, sW, 1), salu("s_lshr_b32", sT1, sW, 1),
      salu("s_lshl_b32", sT2, sT0, 7), salu("s_lshl_b32", sT0, sT0, 10), salu("s_lshl_b32", sT1, sT1, 12),
      salu("s_add_u32", sT0, sT0, sT1),
      valu("v_xor_b32", vkv, sT2, vsd0), valu("v_add_u32", vkv, sT0, vkv),
      salu("s_lshl_b32", sM0, sW, 12), salu("s_mul_i32", sStg, sW, 24576),
      salu("s_mul_i32", sT0, S(2), 196608), salu("s_add_u32", sT0, sT0, sStg), salu("s_add_u32", sStg, sStg, 65536),
      salu("s_lshl_b32", sT1, S(2), 18),
      salu("s_mov_b32", sQ[2], 98304 + 24576), salu("s_mov_b32", sQ[3], "0x20000"),
      wait(lgkm=0),
      salu("s_add_u32", sKb[0], S(6), sT1), salu("s_addc_u32", sKb[1], S(7), 0),
      salu("s_add_u32", sQ[0], S(4), sT0), salu("s_addc_u32", sQ[1], S(5), 0), salu("s_and_b32", sQ[1], sQ[1], "0xffff"))
    g0 = kv_group(0, 0); g0 = [g0[k] for k in (0, 1, 3, 2, 4, 5)]
    more = piecemeal([kv_group(0, -2, False)] + [q_dma_block(0, b) for b in range(NB)] + [kv_group(0, -1, False), g0])
    n_iss = 0
    if O_.xst: E(comment("start-up is bandwidth bound: the dies that clock lower under load (speed only) are served first"),
                 raw(f"s_getreg_b32 {sT2}, hwreg(HW_REG_XCC_ID, 0, 1)", "salu", (), rs(sT2)))
    for k, ch in enumerate(O_.xst):
        E(more(int(ch)), scmp("s_cmp_eq_u32", sT2, O_.xpar), raw(f"s_cbranch_scc0 L_st{k}", "salu", {"scc"}),
          raw("s_waitcnt vmcnt(0)"), label(f"L_st{k}")); n_iss += int(ch)
    E(more(10 - n_iss))
    if O_.pads == 2: E(stamp_now() if O_.probe == 5 else None, raw("s_branch L_main"), raw(".p2align 12", "label"), label("L_main"), stamp_now() if O_.probe == 5 else None)
    E(salu("s_add_u32", sVb[0], S(8), sT1), salu("s_addc_u32", sVb[1], S(9), 0),
      salu("s_sub_u32", sVb[0], sVb[0], 1024 + 16384), salu("s_subb_u32", sVb[1], sVb[1], 0),
      salu("s_add_u32", sO[0], S(10), sT0), salu("s_addc_u32", sO[1], S(11), 0), salu("s_and_b32", sO[1], sO[1], "0xffff"),
      salu("s_mov_b32", sO[2], 98304 + 24576), salu("s_mov_b32", sO[3], "0x20000"),
      salu("s_add_u32", sVx[0], sVb[0], 1024 + 8192), salu("s_addc_u32", sVx[1], sVb[1], 0),
      salu("s_mov_b32", sC[0], hex(CSCALE)), salu("s_mov_b32", sC[1], hex(CSCALE)),
      salu("s_mov_b32", sThr, hex(THRESH)), salu("s_mov_b32", sFlag, O_.force),
      salu("s_add_u32", sQb[0], sQ[0], 98304), salu("s_addc_u32", sQb[1], sQ[1], 0))
    E(valu("v_and_b32", t0, 7, vi), valu("v_lshlrev_b32", t0, 1, t0), valu("v_xor_b32", t0, t0, vu), valu("v_lshlrev_b32", t0, 4, t0),
      valu("v_lshl_add_u32", t2, vi, 8, t0), valu("v_add_u32", qa[0], sStg, t2),
      valu("v_and_b32", t1, 3, vi), valu("v_lshl_add_u32", t0, t1, 8, t0),
      valu("v_lshrrev_b32", t1, 3, vi), valu("v_lshl_add_u32", t0, t1, 11, t0),
      valu("v_bfe_u32", t1, vi, 2, 1), valu("v_lshl_add_u32", kaddr[0], t1, 12, t0))
    for s in range(1, 4): E(valu("v_xor_b32", kaddr[s], s << 6, kaddr[0]), valu("v_xor_b32", qa[s], s << 6, qa[0]))
    E(valu("v_lshrrev_b32", t1, 2, vi), valu("v_and_b32", t2, 1, vu), valu("v_lshl_add_u32", t0, t2, 2, t1),
      valu("v_lshlrev_b32", t0, 5, t0), valu("v_lshl_add_u32", t0, t1, 8, t0), valu("v_lshl_add_u32", t0, t2, 12, t0),
      valu("v_lshrrev_b32", t2, 1, vu), valu("v_lshl_add_u32", t0, t2, 11, t0),
      valu("v_and_b32", t1, 3, vi), valu("v_lshl_add_u32", t0, t1, 3, t0), valu("v_add_u32", vaddr[0], 1024, t0))
    for t in range(1, 8): E(valu("v_xor_b32", vaddr[t], t << 5, vaddr[0]))
    E(valu("v_mov_b32", t2, "0x3f803f80"))
    for k in range(3):
        E(Inst(f"v_cmp_eq_u32 vcc, {k}, {vi}", "valu", rs(vi), {"vcc"}), nop(1), Inst(f"v_cndmask_b32 {t0}, 0, {t2}, vcc", "valu", rs(t2, "vcc"), rs(t0)),
          [valu("v_accvgpr_write_b32", sel(k)[r], t0) for r in range(4)])
    E(valu("v_lshrrev_b32", t0, 1, vi), valu("v_lshlrev_b32", t1, 1, vu), valu("v_sub_u32", t0, t0, t1),
      valu("v_and_b32", t1, 1, vi), valu("v_lshlrev_b32", t1, 4, t1))
    for k in range(2):
        E(Inst(f"v_cmp_eq_u32 vcc, {k}, {t0}", "valu", rs(t0), {"vcc"}))
        for j, c in enumerate((C_HI, C_LO)):
            E(valu("v_mov_b32", t2, hex(c)), valu("v_lshlrev_b32", t2, t1, t2), Inst(f"v_cndmask_b32 {t2}, 0, {t2}, vcc", "valu", rs(t2, "vcc"), rs(t2)),
              valu("v_accvgpr_write_b32", CS[2 + 4*j + k], t2))
    E([valu("v_accvgpr_write_b32", CS[k], 0) for k in (0, 1, 4, 5, 8, 9)])
    E(valu("v_lshlrev_b32", t0, 3, vl), valu("v_add_u32", ow, sStg, t0),
      valu("v_bfe_u32", t1, vi, 1, 1), valu("v_lshl_add_u32", t0, t1, 2, vu), valu("v_lshlrev_b32", t0, 9, t0),
      valu("v_and_b32", t1, 1, vi), valu("v_lshl_add_u32", t0, t1, 6, t0), valu("v_lshrrev_b32", t1, 2, vi),
      valu("v_lshl_add_u32", t0, t1, 3, t0), valu("v_add_u32", ovr, sStg, t0),
      valu("v_and_b32", t2, 3, vi), valu("v_lshlrev_b32", t0, 5, t2), valu("v_lshl_add_u32", t0, vu, 8, t0),
      valu("v_and_b32", t2, 1, t1), valu("v_lshl_add_u32", t0, t2, 4, t0), valu("v_lshrrev_b32", t2, 1, t1), valu("v_lshl_add_u32", vlin, t2, 7, t0))
    E(more(O_.n0 - 10), stamp_now())
    E(comment("---- first K tile"), wait(vm=[aK(0)]), barrier())
    for a in range(2):
        for s in range(4): E(kread(0, 0, a, s, F(4*a + s)))
    if O_.pads:
        E(comment("visit the start of each code page once (wave w: pages w+1, w+5, ..); every stop jumps straight on while vcc = 0"),
          stamp_now() if O_.probe == 5 else None, raw("s_mov_b64 vcc, 0"))
        for w in range(3): E(scmp("s_cmp_eq_u32", sW, w), raw(f"s_cbranch_scc1 L_pad{w + 1}", "salu", {"scc"}))
        E(raw("s_branch L_pad4"), [raw(".p2align 12", "label"), label("L_main")] if O_.pads == 1 else None, label("L_padret"), raw("s_mov_b64 vcc, -1"), stamp_now() if O_.probe == 5 else None)
    rawr = lambda s: V(72 + 4*s, 4)
    for b in range(NB):
        E(comment(f"---- start-up block {b}"), wait(vm=blk(aQ, 0, b)), stamp_now() if O_.probe == 2 else None)
        if O_.mq0:
            for s in range(4): E(ds_read("ds_read_b128", Qreg(b, s), qa[s], b*4096, blk(aQ, 0, b)))
            E(more(2), wait(lgkm=[Qreg(b, 0)] + ([F(k) for k in range(8)] if b == 0 else [])))
            pms = [pm(4*b + n) for n in range(4)]
            sc = Sched([m for mf, _ in pms for m in mf])
            sc.put(2, wait(lgkm=0))
            for n in range(3):
                for j, v in enumerate(pms[n][1]): sc.put(4*(n + 1) + j//2, v)
            sc.emit(); E(more(2), pms[3][1])
        else:
            for s in range(4): E(ds_read("ds_read_b128", rawr(s), qa[s], b*4096, blk(aQ, 0, b)))
            for s in range(4):
                E(wait(lgkm=[rawr(s)] + ([F(k) for k in range(8)] if b == 0 else [])))
                E(more(1), scale_frag(rawr(s), Qreg(b, s), V(88, 8), Sreg(b, s & 1)))
        qk = qk_first(b)
        if b < NB - 1: E(qk, rowmax_ops(b), delay_cvts(sm_ops(0, b, 0) + sm_ops(0, b, 1)))
    assert more.left() == 0
    E(qk[:4], wait(vm=[aK(1)]), barrier())
    for s in range(4): E(qk[4 + s], kread(0, 1, 0, s, F(s)))
    E(salu("s_mov_b32", sSide, sStg), salu("s_mov_b32", sCnt, 1), rowmax_ops(NB - 1)[0][:4], wait(lgkm=[F(s) for s in range(4)]), stamp_now())

def o_read(key, p, dst):
    return [ds_read("ds_read_b64_tr_b16", dst[2*hi:2*hi + 2], ovr, (p >> 2)*4096 + (p & 3)*128 + hi*32, key) for hi in range(2)]
def pv_mfmas(par, frags, sums_first=False, init=False):
    mf = [rowsum(par, b) for b in range(NB)] if sums_first else []; st = []
    for h in range(4):
        st.append(len(mf))
        sums = [] if sums_first else [(0, 1), (5, 4), (2,), (3,)][h]
        mf += [m for _, m in pv_pair(par, range(NB) if h % 2 == 0 else range(NB - 1, -1, -1), 2*h, frags[2*h:2*h + 2], init, sums)]
    return mf, st
def late_pieces(k):
    cnt = [int(c, 16) for c in O_.olate]; ne = sum(map(int, O_.osched)); assert sum(cnt) == 24 - ne and sum(cnt[:4]) >= 12
    return (list(range(12, 24)) + list(range(ne, 12)))[sum(cnt[:k]):sum(cnt[:k + 1])]
def kv_plan(J):
    if J >= 16: return [(3, 27)] if J < 28 else []
    o = []
    for k, lead in enumerate(int(x) for x in O_.lead0.split(",")):
        Jk, g = divmod(102*(k + 1) + 23 - lead, 102)
        assert 2 <= g <= 82
        if Jk == J: o.append((k + 1 - J, g))
    return o
END_ORDER = (2, 3, 4, 5, 0, 1)
NPRE = 2
VF15 = [Qreg(4 + t//4, t % 4) for t in range(8)]

def iteration(J, ctl=()):
    par = J & 1; j = J % 16
    mf = [m for a in range(2) for b in range(NB) for _, m in chain(b, a, [F(4*a + s) for s in range(4)], negM(b), b & 1)]
    pv, pst = pv_mfmas(par, [F(t) for t in range(8)], init=(j == 0))
    mf += pv; pst = [48 + x for x in pst]
    sc = Sched(mf)
    for x in ctl: sc.fix(x, 101)
    if ctl: sc.cap[101] = 0
    for s in range(4): sc.fix(kread(J, 1, 1, s, F(4 + s)), [1, 6, 11, 13][s])
    tb2 = None
    if J == 0:
        sc.fix(wait(vm=[rV(0)], lgkm=0), 23); tb = sc.fix(barrier(), 23)
        sc.fix(wait(vm=[rK(2)]), 72); tb2 = sc.fix(barrier(), 72)
    else:
        sc.fix(wait(vm=[rV(0), rK(2)], lgkm=0), 23); tb = sc.fix(barrier(), 23)
    if J == 0 or (J == 16 and O_.tight):
        b = NB - 1; t = sc.seq(rowmax_ops(b)[0][4:], 0, 8, hard=0)
        sub = [sc.add(valu("v_add_f32", V(8*b + r), V(8*b + r), negM(b)[1]), 0, 10 if r < 4 else 22, [(t, 0, 0)]) for r in range(8)]
        sc.run(); sc.done = []
    plan = kv_plan(J); busy = []
    for n_, (d, g0) in enumerate(plan):
        ops = kv_group(J, d); g = g0
        while sc.cap[g - 2] < 4: g += 1
        sc.fix(ops[0], g - 2)
        for x in ops[1:5]:
            while sc.cap[g] < 8 or sc.cap[g - 1] == 0 or sc.cap[g + 1] == 0 or any(y.kind in VAL for y in sc.g[g - 1]): g += 1
            td = sc.fix(x, g); g += O_.dsp1 if 16 <= J < O_.jsp else O_.dsp
        busy.append((g0 - 3, td.gap + 1))
        sc.add(ops[5], 0, 100 if n_ + 1 == len(plan) else plan[n_ + 1][1] - 1, [(td, 1, 1)])
    nq = int(O_.qs[J]) if J < 15 else 0
    if nq:
        p0 = sum(map(int, O_.qs[:J])); g0 = max([50] + [hi + 6 for lo, hi in busy if lo < 50]) if J != 14 else O_.gq14
        qsp = 12 if nq < 3 else 9
        assert all(hi < g0 - 2 or lo > g0 + qsp*(nq - 1) for lo, hi in busy)
        tm = sc.fix(salu("s_mov_b32", "m0", sSide), g0 - 2)
        for k in range(nq):
            t = sc.fix(gdma(vsd1 if (p0 + k) & 1 else vsd0, sQb, k*1024, (lambda k: lambda c: aQ(1, sum(map(int, O_.qs[:c["J"]])) + k))(k), O_.fq), g0 + qsp*k)
        sc.add(salu("s_add_u32", sSide, sSide, 1024*nq), 0, 99, [(tm, 1, 1)])
        g = t.gap + 1
        while sc.cap[g] < 8: g += 1
        sc.fix(salu("s_add_u32", sQb[0], sQb[0], 1024*nq), g); sc.fix(salu("s_addc_u32", sQb[1], sQb[1], 0), g); sc.own.add(g)
    npz = int(O_.ps[J]) if J < 15 else 0
    if npz:
        tot = lambda a, b_: sum(map(int, O_.ps[a:b_]))
        rel = tot(0, J) if O_.unr else (tot(4, J) if J < 12 else tot(12, J))
        raw_, tt = V(142, 2), V(138, 2); p = None; span = 96//(2*npz)
        for k in range(2*npz):
            key = (lambda k: lambda c: aQ(1, tot(0, c["J"]) + k//2))(k)
            off = (rel + k//2)*1024 + (k & 1)*512; lo = 2 + span*k; gw = lo + span - 1
            while sc.cap[gw] < 8 or sc.cap[gw + 1] == 0 or gw in sc.novalu: gw -= 1
            if k % 2 == 0: p = sc.add(wait(vm=[key]), lo, None, [(p, 1, 1)])
            p = sc.add(ds_read("ds_read_b64", raw_, ow, off, key), lo, None, [(p, 1, 1)])
            p = sc.add(wait(lgkm=[raw_]), lo, None, [(p, 1, 7)])
            for r in range(2):
                ops = [valu("v_lshlrev_b32", tt[0], 16, raw_[r]), valu("v_and_b32", tt[1], "0xffff0000", raw_[r]), valu("v_mul_f32", tt[0], sC[0], tt[0]),
                       valu("v_mul_f32", tt[1], sC[0], tt[1]), valu("v_cvt_pk_bf16_f32", raw_[r], tt[0], tt[1])]
                for i, x in enumerate(ops): p = sc.add(x, lo, gw - 1 - (9 - 5*r - i)*O_.psp, [(p, 1 if i + r == 0 else 0, 1 if i + r == 0 else 0)])
            p = sc.fix(ds_write("ds_write_b64", ow, raw_, off, key), gw); sc.cap[gw] = 0
        if J == 7 and not O_.unr: sc.add(valu("v_add_u32", ow, 1024*tot(4, 8), ow), 0, 100, [(p, 1, 1)])
    if J == 14 and int(O_.ps):
        if not O_.unr: sc.add(valu("v_subrev_u32", ow, 1024*sum(map(int, O_.ps[:12])), ow), 0, 40)
        for s in (2, 3): sc.add(valu("v_xor_b32", qa[s], s << 6, qa[0]), 0, 40)
    if J in (27, 28):
        ps = late_pieces(J - 27); g0 = [O_.g11, O_.g12][J - 27]
        base = t = None
        for i, p in enumerate(ps):
            g = g0 + (96 - g0)*i//max(1, len(ps) - 1)
            while g in (22, 23, 24) or sc.cap[g] < 8 or sc.cap[g - 1] == 0 or sc.cap[g + 1] == 0: g += 1
            t = sc.seq(o_read(aO(0, p), p, X[i]), 0, g - 8, t); sc.add(wait(lgkm=[X[i]]), 0, g - 1, [(t, 1, 6)])
            if base is None or not 0 <= p - base < 4: base = p; sc.fix(salu("s_mov_b32", sSide, p*1024), g - 1)
            sc.fix(vstore(X[i], vlin, sO, sSide, (p - base)*1024, O_.late_flags), g)
    p = tb
    for t in range(8):
        for a in range(2): p = sc.add(vread(J, 0, t, a, F(t)), 24 if t < 4 else 48, None, [(p, 1, 1)])
        if t in (1, 3): sc.add(wait(lgkm=[F(t - 1), F(t)]), 0, pst[t//2] - 1, [(p, 1, 8)])
    sc.add(wait(lgkm=[F(4), F(5), F(6), F(7)]), 0, pst[2] - 1, [(p, 1, 8)])
    for s in range(4): p = sc.add(kread(J, 2, 0, s, F(s)), pst[2], None if J != 14 else 90, [(p, 1, 1), (tb2, 1, 1)])
    if J == 28:
        pre = late_pieces(2)[:NPRE]
        p = sc.seq([x for i, q in enumerate(pre) for x in o_read(aO(0, q), q, X[i])], 60, None, p)
    if J != 14: sc.add(wait(lgkm=[F(s) for s in range(4)] + (X[:NPRE] if J == 28 else [])), 0, 101 if J == 28 else 100, [(p, 1, 8 if J != 28 else 5)])
    else:
        sc.fix(wait(vm=[rV(1), rK(3)] + blk(aQ, 1, 0)), 92); t = sc.fix(barrier(), 92)
        for k in range(4): sc.fix(vread(J, 1, k//2, k & 1, VF15[k//2]), 93 + 2*k)
    nxt = lambda ne: [x for _, x in sm_split(1 - par, ne, END_ORDER if J == 28 else range(NB))[0]]
    if J == 0:
        b = NB - 1
        sc.sm([(sm_ops(0, b, 0), sub[3].gap + 1, 19), (sm_ops(0, b, 1), sub[7].gap + 1, 43), (nxt(NE_A), 24, 100)])
    elif J == 16 and O_.tight:
        tail = sm_split(0, O_.ne1)[1]; b = NB - 1
        sc.sm([(sm_ops(0, b, 0), sub[3].gap + 1, 19)] + [([x for bb, x in tail if bb == k], sub[7].gap + 1, 23 + 4*k) for k in range(NB) if any(bb == k for bb, _ in tail)]
              + [(nxt(NE_A), 24, 100)])
    elif J == 16:
        tail = sm_split(0, O_.ne1)[1]
        sc.sm([([x for bb, x in tail if bb == b], 0, 23 + 4*b) for b in range(NB) if any(bb == b for bb, _ in tail)] + [(nxt(NE_A), 24, 100)])
    elif J == 14:
        sc.sm([([x for _, x in sm_split(par)[1]], 0, 30)] + [(sm_ops(1, b, a), 24*a + 4*b + 8, 101) for a in range(2) for b in range(NB)])
    else:
        sc.sm([([x for _, x in sm_split(par)[1]], 0, 30)], 2.4)
        sc.sm([(nxt(NE_A), 24, 100)])
    for t in sc.done + sc.t:
        if t.x.m.get("op") in ("v_exp_f32", "v_cvt_pk_bf16_f32") and t.lo0 == 24:
            r = min(int(x[1:]) for x in t.x.rd); t.lo0 = 24*((r >> 2) & 1) + 4*(r >> 3) + (9 if t.x.kind == "trans" else 10)
    sc.run(); sc.polish(); sc.emit()

def straight(J, *pre):
    s = seg(f"J{J}"); path.append((s, {"J": J})); E(comment(f"---- head {J//16}, key tile {J % 16}"), pre); iteration(J)
def loop4(name, J0, passes):
    ss = []
    for k in range(4):
        ss.append(seg(f"{name}{k}"))
        if k == 0: E(raw(".p2align 3", "label"), label(f"L_{name}"))
        d = salu("s_sub_u32", sCnt, sCnt, 1); d.m["last"] = True
        iteration(J0 + k, [d, raw(f"s_cbranch_scc0 L_{name}", "salu", {"scc"}, (), last=True)] if k == 3 else [])
        for n in range(1, passes): assert kv_plan(J0 + k) == kv_plan(J0 + k + 4*n) and (J0 > 15 or (O_.qs[J0 + k], O_.ps[J0 + k]) == (O_.qs[J0 + k + 4*n], O_.ps[J0 + k + 4*n]))
    assert J0 > 15 or sum(map(int, O_.qs[J0:J0 + 4])) % 2 == 0
    for n in range(4*passes): path.append((ss[n % 4], {"J": J0 + n}))

def l_ops(h, b0, r, t1):
    o = [valu("v_accvgpr_read_b32", r[k], lacc(b0)[k]) for k in range(4)]
    o += [valu("v_add_f32", t1, r[0], r[1]), valu("v_add_f32", t1, t1, r[2]), valu("v_add_f32", t1, t1, r[3])]
    o += [valu("v_rcp_f32", r[k], r[k]) for k in range(4)]
    return o
def l_flag(h, t1):
    return [Inst(f"v_cmp_nlt_f32 {sCmp}, {t1}, {sThr}", "valu", rs(t1, sThr), rs(sCmp)), nop(0),
            scmp("s_cmp_lg_u64", sCmp, 0), salu("s_cselect_b32", sT0, 1 << h, 0), salu("s_or_b32", sFlag, sFlag, sT0)]
def l_bcast(b, r, dst):
    o = [valu("v_mov_b64_dpp", dst[2*k:2*k + 2], r[2*k:2*k + 2], mods=f"row_newbcast:{b % 3} row_mask:0xf bank_mask:0xf") for k in range(2)]
    for x in o: x.m["dpp"] = True
    return o
def epi_half(h, b, th, rl, tmp, y):
    r0 = Oreg(b, 4*th); w = V(r0.i, 16) if r0.k == "v" else tmp; o = []
    if r0.k == "a": o += [valu("v_accvgpr_read_b32", w[i], A(r0.i + i)) for i in range(16)]
    o += [valu("v_pk_mul_f32", w[2*i:2*i + 2], w[2*i:2*i + 2], rl[2*(i & 1):2*(i & 1) + 2]) for i in range(8)]
    o += [valu("v_cvt_pk_bf16_f32", y[2*r + k], w[8*k + r], w[8*k + 4 + r]) for r in range(4) for k in range(2)]
    o += [ds_write2st64(ow, y[4*k:4*k + 2], y[4*k + 2:4*k + 4], 8*b + 4*th + 2*k, 8*b + 4*th + 2*k + 1, blk(aO, h, b)) for k in range(2)]
    return o

def transition():
    s = seg("trans"); path.append((s, {"J": 15}))
    E(stamp_now(), comment("---- head 0: last PV; switch to head 1"))
    vf = VF15
    F0 = sum(map(int, O_.ps)); assert F0 % 4 == 0 and F0 <= 12 and O_.ps[:4] == "0000" and O_.ps[14] == "0"
    raw0 = V(16, 4)
    def qrd(b): return [ds_read("ds_read_b128", Qreg(b, n), qa[n], b*4096, blk(aQ, 1, b)) for n in range(4) if 4*b + n != F0]
    rc = [negM(4), negM(5)]
    rl = V(72, 4); y = V(76, 8)
    npre = sum(map(int, O_.qs)); assert npre >= 8
    more = piecemeal([[x for k, x in enumerate(q_dma_block(1, b)) if k < 2 or 4*b + k - 2 >= npre] for b in range(npre//4, NB)]
                     + [kv_group(15, d) for d in (1, 2, 3)])
    vr = [vread(15, 0, t, a, vf[t]) for t in range(8) for a in range(2)]
    pv, pst = pv_mfmas(1, vf, True)
    sc = Sched(pv)
    g = 8
    for grp in more(O_.tq):
        for i, x in enumerate(grp):
            if x.kind not in MEM: sc.fix(x, g - 3 if len(grp) - i > 3 else g - 2)
            else: sc.fix(x, g); g += O_.tstep
    sc.add(wait(lgkm=vf[:2]), 4, pst[0] - 1)
    p = sc.seq([wait(vm=blk(aQ, 1, F0//4)), ds_read("ds_read_b128", raw0, qa[0], F0*1024, blk(aQ, 1, F0//4))], 0); wq = sc.add(wait(lgkm=[raw0]), 0, 10, [(p, 1, 6)])
    p = sc.seq(vr[4:8], 0, None, p); sc.add(wait(lgkm=vf[2:4]), 0, pst[1] - 1, [(p, 1, 6)])
    p = sc.seq(vr[8:], 0, None, p); sc.add(wait(lgkm=vf[4:]), 0, pst[2] - 1, [(p, 1, 6)])
    p = sc.seq([kread(15, 1, 1, k, F(4 + k)) for k in range(4)] + qrd(0) + [wait(vm=blk(aQ, 1, 1))] + qrd(1), 24, 46, p)
    sc.fix(wait(lgkm=0), 53); sc.fix(barrier(), 53)
    sc.run()
    lv = l_ops(0, 0, rc[0], V(60)) + l_ops(0, 3, rc[1], V(61)) + [valu("v_add_f32", V(60), V(60), V(61))]; ls = l_flag(0, V(60))
    st = scale_frag(raw0, Qreg(F0//4, 0), V(0, 8), V(8, 4), pk=False)
    rest = sc.pour((lv, 10), (st, wq.gap + 1)); sc.emit(); E(rest); rest = []
    def site(k):
        c = [int(x) for x in O_.osched] + [0]; p0 = sum(c[:k]); o = more(int(O_.tsched[k]) if O_.tsched else O_.tper)
        if c[k]:
            o += [salu("s_mov_b32", sT1, p0*1024), wait(lgkm=[X[(p0 + i) % 4] for i in range(c[k])])]
            o += [vstore(X[(p0 + i) % 4], vlin, sO, sT1, i*1024, O_.late_flags) for i in range(c[k])]
        p1 = p0 + c[k]; assert (p1 + c[k + 1] + 3)//4 <= (k + 1)//2 or not c[k + 1]
        rd = [x for p in range(p1, p1 + c[k + 1]) for x in o_read(aO(0, p), p, X[p % 4])]
        for x in rd: x.m["slip"] = O_.slip
        return o + rd
    first = sm_split(0, O_.ne1)[0]
    def finish(b): return rowmax_ops(b)[1] + delay_cvts([x for bb, x in first if bb == b])
    for b in range(NB):
        E(comment(f"---- switch block {b}"), stamp_now() if O_.probe == 1 else None)
        fs = range(max(F0 + 1, 4*b + 1), min(4*b + 5, 4*NB))
        mf = []; fl = []
        for f in fs:
            m, x = pm(f); mf += m; fl.append(x)
        qk = qk_first(b)
        if b == NB - 1: qk = [qk[k] for k in (0, 1, 2)] + [m for _, m in chain(b, 1, [F(4 + s_) for s_ in range(4)], 0, False)][:3] + [qk[3]]; \
                        qk.append(mfma(Sreg(b, 1), F(7), Qreg(b, 3), Sreg(b, 1)))
        sc = Sched(mf + qk)
        for k, x in enumerate(fl):
            for j, v in enumerate(x): sc.put(4*(k + 1) + j//2, v)
        h0, h1 = epi_half(0, b, 0, rl, V(176, 16), y), epi_half(0, b, 1, rl, V(192, 16), y)
        if O_.tight:
            assert npre >= 16; lt = int(npre < 24 or O_.lt)
            for bb, g0 in {0: [(2, 0), (3, len(mf) + 4)], 1 + lt: [(4, 0)], 2 + lt: [(5, 0)]}.get(b, []):
                if bb != 3: E(wait(vm=blk(aQ, 1, max(bb, 3))))
                for n, x in enumerate(qrd(bb)): sc.put(g0 + n, x)
            if 1 <= b < NB - 1: E(wait(lgkm=[Qreg(b + 1, n) for n in range(4)]))
            acc = [x for x in h0 + h1 if x.m.get("op") == "v_accvgpr_read_b32"]
            mx = rowmax_ops(b - 1)[0] if b else ls[:1]
            left = sc.pour((mx, 0), (acc, 0)); sc.emit()
            E([x for x in left if x not in acc], ls[2:] if b == 0 else None)
            h0, h1 = [[x for x in h if x not in acc or x in left] for h in (h0, h1)]
        else:
            if 1 <= b < NB - 1:
                sc.put(0, wait(vm=blk(aQ, 1, b + 1)))
                for n, x in enumerate(qrd(b + 1)): sc.put(1 + n, x)
                sc.put(11, wait(lgkm=[Qreg(b + 1, n) for n in range(4)]))
            rest = sc.pour((rowmax_ops(b - 1)[0] if b else rest, 0)); sc.emit(); E(rest, ls if b == 0 else None)
        if b == NB - 1: E([kread(15, 2, 0, s_, F(s_)) for s_ in range(4)])
        E(l_bcast(b, rc[b//3], rl), h0, site(2*b), finish(b - 1) if b else None, h1, site(2*b + 1))
    assert more.left() == 0
    E(rowmax_ops(NB - 1)[0][:4] if O_.tight else [rowmax_ops(NB - 1)[0], finish(NB - 1)])
    E(salu("s_mov_b32", sCnt, 1), wait(lgkm=[F(s_) for s_ in range(4)]), stamp_now())
    slip_reads(cur)

def slip_reads(ins):
    out = []; pend = []; n = 0
    for i, x in enumerate(ins):
        if x.m.get("slip"): pend.append(x); n = 0; continue
        assert not (pend and x.kind in ("vst", "dsw"))
        out.append(x)
        if pend and x.kind == "mfma":
            n = -99
            if ins[i + 1].kind not in MEM: out.append(pend.pop(0))
        elif pend and x.kind in VAL:
            n += 1
            if n == 8: out += pend; pend = []
    assert not pend
    ins[:] = out

def endgame():
    s = seg("end"); path.append((s, {"J": 29}))
    E(stamp_now())
    carry = []
    for ps, H in enumerate(([3, 4, 5], [0, 1, 2])):
        E(comment(f"---- pass {ps}"))
        subs = [("Q", 1, 0), ("Q", 1, 1), ("P", 0, 0), ("P", 0, 1), ("Q", 2, 0), ("Q", 2, 1), ("P", 1, 0), ("P", 1, 1), ("P", 2, 0), ("P", 2, 1)]
        FA, FB = [F(k) for k in range(4)], [F(4 + k) for k in range(4)]
        G = [[Qreg(3 + n, k) for k in range(4)] for n in range(3)]; Hh = [[A(176 + 16*n + 4*k, 4) for k in range(4)] for n in range(5)]
        fr = [FA, FB, FA, FB, FA, FB, FA] + G if ps == 0 else [FA, FB] + Hh + G
        mf = []; use = []; cend = {}; cstart = {}; pstart = {}; bstart = {}
        for i, (kind, d, x) in enumerate(subs):
            u = {}
            if kind == "Q":
                for n, b in enumerate(H):
                    cstart[(d, b, x)] = len(mf)
                    for s_, m in chain(b, x, fr[i], negM(b), n & 1): u.setdefault(s_, []).append(len(mf)); mf.append(m)
                    cend[(d, b, x)] = len(mf) - 1
            elif d == 2:
                if x == 0:
                    u2 = {}
                    for n, b in enumerate(H):
                        bstart[b] = len(mf); mf.append(rowsum(1, b))
                        for t in range(8):
                            (u if t < 4 else u2).setdefault(t & 3, []).append(len(mf))
                            mf.append(mfma(Oreg(b, t), Preg(1, b), fr[i + (t >> 2)][t & 3], Oreg(b, t)))
                else: u = u2
            else:
                par = (d + 1) & 1
                if x == 0: pstart[d] = len(mf)
                for hh in range(2):
                    for t, m in pv_pair(par, H if hh == 0 else H[::-1], 4*x + 2*hh, fr[i][2*hh:2*hh + 2], False, H[2*x + hh:2*x + hh + 1]):
                        if t is not None: u.setdefault(t & 3, []).append(len(mf))
                        mf.append(m)
            use.append(u)
        sc = Sched(mf); bar = {}
        if ps == 0:
            for d, g, keys in ((0, 9, [rV(0), rK(2)]), (1, use[4][1][-1], [rV(1), rV(2)])):
                sc.fix(wait(vm=keys), g)
                bar[d] = bar[2] = sc.fix(barrier(), g)
        pcs = [(0, q) for q in late_pieces(2) + late_pieces(3)] if ps == 0 else [(0, q) for q in late_pieces(4)] + carry
        taken = {t.gap + k for t in bar.values() for k in (-1, 0, 1)}
        NX = 7; prev_st = [None]*NX; pst = None; base = None
        for i, (h, q) in enumerate(pcs):
            g = O_.p0g + (len(mf) - 4 - O_.p0g)*i//max(1, len(pcs) - 1) if ps == 0 else int(O_.p1g + (len(mf) - 3 - O_.p1g)*(i/(len(pcs) - 1))**O_.p1e)
            while g in taken or g - 1 in taken: g += 1
            off = h*98304 + q*1024; xr = X[i % NX]
            if base is None or not 0 <= off - base < 4096:
                base = off; sc.add(salu("s_mov_b32", sSide, base), 0, g - 1, [(pst, 1, 1)])
            if ps or i >= NPRE:
                r = sc.seq(o_read(aO(h, q), q, xr), g - 60, g - 8, prev_st[i % NX])
                sc.add(wait(lgkm=[xr]), 0, g - 1, [(r, 1, 7)])
            pst = prev_st[i % NX] = sc.fix(vstore(xr, vlin, sO, sSide, off - base, O_.h0_flags if h else O_.late_flags), g)
        prev = None
        for i, (kind, d, x) in enumerate(subs):
            if i == 0 or (ps == 1 and (i == 1 or i >= 7)): continue
            tight = ps == 0 and i < 7
            for k in range(4):
                lo = (use[i - 2][k][-1] if i >= 2 else 0) if tight else (cend[(2, 3 + i - 7, 1)] if ps == 0 else 0)
                rds = [kread(29, d, x, k, fr[i][k])] if kind == "Q" else [vread(29, d, 4*x + k, a, fr[i][k]) for a in range(2)]
                bp = bar.get(d if kind == "P" else (0 if d == 2 else None))
                for r in rds: prev = sc.add(r, lo, None, [(prev, 1, 1), (bp, 1, 1)])
                if tight and kind == "P" and k & 1: sc.add(wait(lgkm=fr[i][k - 1:k + 1]), 0, min(use[i][k - 1][0], use[i][k][0]) - 1, [(prev, 1, 6)])
            if not (tight and kind == "P"): sc.add(wait(lgkm=fr[i]), 0, use[i][0][0] - 1, [(prev, 1, 6)])
        if ps == 0:
            for a in range(2):
                for k in range(4): prev = sc.add(kread(29, 1, a, k, F(4*a + k)), use[6][k][-1], None, [(prev, 1, 1)])
        grp = [([x for bb, x in sm_split(1, NE_A, END_ORDER)[1] if bb == b], 0, cstart[(1, b, 1)] - 1) for b in H if b >= O_.tl0]
        for a in range(2):
            for k, b in enumerate(H): grp.append((sm_ops(0, b, a), cend[(1, b, a)] + 4, min(pstart[1] - 2 + 2*k, cstart[(2, b, a)] - 1)))
        sc.sm(grp)
        order = [(H[0], 0), (H[1], 0), (H[0], 1), (H[2], 0), (H[1], 1), (H[2], 1)]
        sc.sm([(sm_ops(1, b, a), cend[(2, b, a)] + 4, bstart[b] - 2) for b, a in order]
              + ([(sm_ops(1, b, 1), 100, len(mf) - 1) for b in range(O_.tl0)] if ps == 0 else []), 2.4)
        sc.run(); sc.polish(200000)
        rc, rl, t1 = negM(H[0]), negM(H[1]), negM(H[2])[0]
        rest = sc.pour((l_ops(1, H[0], rc, t1), bstart[H[2]] + 4)); sc.emit()
        E(rest, l_flag(1, t1), stamp_now(), comment("---- epilogue"))
        dsts = [X[:4], [F(4 + i) for i in range(4)]]
        pend = []; rds = []
        for k, b in enumerate(H):
            E(l_bcast(b, rc, rl))
            for th in range(2):
                ep = epi_half(1, b, th, rl, V(24, 16), V(40, 8))
                if rds and th == 0:
                    n = O_.rdp
                    for q in range(0, 4, O_.rdn): E(ep[:n], rds[q:q + O_.rdn]); ep = ep[n:]
                    rds = []
                E(ep)
                E(pend[:2]); del pend[:2]
            if ps == 0 and k > 0: carry += [(1, 4*b + i) for i in range(4)]; continue
            d_ = dsts[k & 1]
            rds = [o_read(aO(1, 4*b + i), 4*b + i, d_[i]) for i in range(4)]
            if not O_.rdp or ps == 1: E(rds); rds = []
            sts = [vstore(d_[i], vlin, sO, sSide, i*1024, (O_.last_flags if k >= O_.lastk else O_.fin_flags) if ps else O_.h0_flags) for i in range(4)]
            pre = [salu("s_mov_b32", sSide, 98304 + b*4096), wait(lgkm=d_)]
            pend = [pre + [sts[0]], None, sts[1], None, sts[2], None, sts[3]] if ps == 0 else [pre + [sts[0]], sts[1], sts[2], sts[3]]
        E(pend, wait(lgkm=0), stamp_now())

def slow_path():
    sH, sB, sI, sKo, sQo = S(4), S(5), S(6), S(7), S(8)
    Qf = [V(4*s, 4) for s in range(4)]; Kf = [V(16 + 4*i, 4) for i in range(8)]; St = [V(48, 4), V(52, 4)]; Pf = V(56, 4)
    nm = V(60, 4); Vf = V(64, 4); Of = [V(68 + 4*t, 4) for t in range(8)]; L = V(100, 4); w = V(104, 8)
    ones = V(120, 4)
    vrow, vk, vv, vtr, vst_, t0, t1 = V(112), V(113), V(114), V(115), V(116), V(117), V(118)
    def S_(name, J=0):
        s = seg(name); return s
    s0 = S_("slow0")
    E(comment("---- fallback: a row sum left the safe range, redo this wave's rows with the true row max"),
      label("L_slow"), wait(vm=0, lgkm=0),
      valu("v_mbcnt_lo_u32_b32", t0, -1, 0), valu("v_mbcnt_hi_u32_b32", t0, -1, t0), valu("v_lshlrev_b32", vlin, 4, t0),
      [valu("v_mov_b32", ones[r], "0x3f803f80") for r in range(4)],
      valu("v_bfe_u32", t0, vlin, 4, 4), valu("v_lshrrev_b32", t1, 8, vlin),
      valu("v_lshlrev_b32", vrow, 8, t0), valu("v_lshl_add_u32", vst_, t1, 3, vrow), valu("v_lshl_add_u32", vrow, t1, 4, vrow),
      valu("v_lshrrev_b32", vtr, 2, t0), valu("v_lshl_add_u32", vtr, t1, 2, vtr), valu("v_lshlrev_b32", vtr, 8, vtr),
      valu("v_and_b32", t0, 3, t0), valu("v_lshl_add_u32", vtr, t0, 3, vtr), valu("v_add_u32", vtr, sStg, vtr),
      salu("s_mov_b32", sH, 0))
    s1 = S_("slow_head")
    E(label("L_sl_head"), salu("s_lshr_b32", sT0, sFlag, sH), salu("s_and_b32", sT0, sT0, 1), raw("s_cbranch_scc0 L_sl_next", "salu", {"scc"}),
      salu("s_lshl_b32", sKo, sH, 17), salu("s_mul_i32", sQo, sH, 98304), salu("s_mov_b32", sB, 0))
    s2 = S_("slow_blk")
    E(label("L_sl_blk"))
    for s in range(4): E(vload(Kf[s], vrow, sQ, sQo, 64*s))
    E(wait(vm=0))
    for s in range(4): E(scale_frag(Kf[s], Qf[s], w, None))
    E(valu("v_mov_b32", nm[0], "0xff800000"), valu("v_add_u32", vk, sKo, vrow), salu("s_mov_b32", sI, 32))
    s3 = S_("slow_p1")
    E(label("L_sl_p1"))
    for s in range(4): E(gload(Kf[s], vk, sKb, 64*s))
    E(valu("v_add_u32", vk, 4096, vk), wait(vm=0))
    for s in range(4): E(mfma(St[0], Kf[s], Qf[s], 0 if s == 0 else St[0]))
    E(salu("s_sub_u32", sI, sI, 1), scmp("s_cmp_lg_u32", sI, 0), nop(7),
      valu("v_max3_f32", nm[0], nm[0], St[0][0], St[0][1]), valu("v_max3_f32", nm[0], nm[0], St[0][2], St[0][3]),
      raw("s_cbranch_scc1 L_sl_p1", "salu", {"scc"}))
    s4 = S_("slow_mid")
    E(xlane_max(nm[0], nm[1]), [valu("v_sub_f32", nm[r], 0, nm[0]) for r in (1, 2, 3, 0)])
    for r in range(36): E(valu("v_mov_b32", V(68 + r), 0))
    E(valu("v_add_u32", vk, sKo, vrow), valu("v_add_u32", vv, sKo, vlin), valu("v_add_u32", vv, 1024 + 16384, vv), salu("s_mov_b32", sI, 16))
    s5 = S_("slow_p2")
    E(label("L_sl_p2"))
    key = (("stg", "slow"), ("Vs",), False)
    for half in range(2):
        E(salu("s_add_u32", "m0", sStg, 4096*half))
        for s in range(4): E(gload(Kf[4*half + s], vk, sKb, 64*s))
        for k in range(4): E(gdma(vv, sVb, 1024*k, key, ""))
        E(valu("v_add_u32", vk, 4096, vk), valu("v_add_u32", vv, 4096, vv))
    E(wait(vm=0))
    for a in range(2):
        for s in range(4): E(mfma(St[a], Kf[4*a + s], Qf[s], nm if s == 0 else St[a]))
    E(nop(7))
    for r in range(8): E(valu("v_exp_f32", V(48 + r), V(48 + r)))
    for r in range(4): E(valu("v_cvt_pk_bf16_f32", Pf[r], V(48 + 2*r), V(49 + 2*r)))
    E(mfma(L, ones, Pf, L))
    for t in range(8):
        for a in range(2): E(ds_read("ds_read_b64_tr_b16", Vf[2*a:2*a + 2], vtr, a*4096 + 32*t, key))
        E(wait(lgkm=0), mfma(Of[t], Vf, Pf, Of[t]), nop(1))
    E(salu("s_sub_u32", sI, sI, 1), scmp("s_cmp_lg_u32", sI, 0), raw("s_cbranch_scc1 L_sl_p2", "salu", {"scc"}))
    s6 = S_("slow_epi")
    E(nop(7), valu("v_rcp_f32", t0, L[0]), nop(0))
    for t in range(8):
        for r in range(4): E(valu("v_mul_f32", Of[t][r], t0, Of[t][r]))
        E(valu("v_cvt_pk_bf16_f32", Of[t][0], Of[t][0], Of[t][1]), valu("v_cvt_pk_bf16_f32", Of[t][1], Of[t][2], Of[t][3]),
          vstore(Of[t][0:2], vst_, sO, sQo, 32*t, "", "buffer_store_dwordx2"))
    E(salu("s_add_u32", sQo, sQo, 4096), salu("s_add_u32", sB, sB, 1), scmp("s_cmp_lt_u32", sB, NB), raw("s_cbranch_scc1 L_sl_blk", "salu", {"scc"}))
    s7 = S_("slow_next")
    E(label("L_sl_next"), salu("s_add_u32", sH, sH, 1), scmp("s_cmp_lt_u32", sH, 2), raw("s_cbranch_scc1 L_sl_head", "salu", {"scc"}))
    blkp = [s2, s3, s3, s4, s5, s5, s6]
    path2.extend((x, {"J": 0}) for x in [s0, s1] + blkp + blkp + [s7, s1] + blkp + [s7])

def finish():
    if O_.diag:
        a, b = [int(x) for x in O_.diag.split(":")]
        E(wait(vm=0), raw("s_memrealtime s[42:43]", "smem", (), rs(S(42, 2))), wait(lgkm=0), salu("s_mov_b32", S(47), S(42)),
          salu("s_sub_u32", sT0, S(STAMP0 + b), S(STAMP0 + a)), salu("s_lshr_b32", sT0, sT0, 3 if O_.stamps == 1 else 0), salu("s_lshl_b32", sT0, sT0, O_.amp),
          salu("s_add_u32", sT0, sT0, 7000),
          label("L_spin"), raw("s_memrealtime s[42:43]", "smem", (), rs(S(42, 2))), wait(lgkm=0),
          salu("s_sub_u32", S(42), S(42), S(46)), scmp("s_cmp_lt_u32", S(42), sT0), raw("s_cbranch_scc1 L_spin", "salu", {"scc"}))
    elif O_.stamps:
        E(wait(vm=0), raw("s_memrealtime s[42:43]", "smem", (), rs(S(42, 2))), wait(lgkm=0), salu("s_mov_b32", S(47), S(42)))
        E(salu("s_lshl_b32", sT0, S(2), 2), salu("s_add_u32", sT0, sT0, sW), salu("s_lshl_b32", sT0, sT0, 8))
        E(valu("v_mov_b32", V(1), sT0))
        for k in range(nstamp[0] + 2):
            E(valu("v_mov_b32", V(2), S(46 + k)),
              Inst(f"global_store_dword v1, v2, s[44:45] offset:{4*k}", "vst", rs(V(1), V(2), S(44, 2)), (), data=set()), nop(1))
    if O_.stamps and not O_.diag:
        E(raw("s_getreg_b32 s42, hwreg(HW_REG_XCC_ID)", "salu", (), rs(S(42))), valu("v_mov_b32", V(1), sT0), valu("v_mov_b32", V(2), S(42)),
          Inst("global_store_dword v1, v2, s[44:45] offset:252", "vst", rs(V(1), V(2), S(44, 2)), (), data=set()))
    E(scmp("s_cmp_eq_u32", sFlag, 0), raw("s_cbranch_scc1 L_end", "salu", {"scc"}), label("L_fast_end"))

def build():
    s = seg("start"); path.append((s, {"J": 0})); startup()
    for J in range(4): straight(J)
    if O_.probe == 4: E(stamp_now())
    if not O_.unr: loop4("A", 4, 2)
    for J in range(4 if O_.unr else 12, 15): straight(J)
    transition()
    straight(16)
    loop4("M", 17, 2)
    for J in range(25, 29): straight(J, stamp_now() if J == 28 or (J == 26 and O_.probe == 4) else None)
    endgame()
    finish()
    if O_.slow: slow_path()
    seg("exit"); E(label("L_end"))
    def trace(): return [(i, mkctx(c)) for sidx, c in path + path2 for i in segs[sidx][1]]
    for rnd in range(5):
        fix = {}
        resolve_and_check(trace(), fix=fix)
        for sg in segs:
            new = []
            for i in sg[1]:
                if i.kind == "wait" and i.m["nvm"] in (None, 63) and i.m["nlg"] in (None, 15): fix[0] = 1; continue
                if id(i) in fix: new.append(nop(fix[id(i)] - 1))
                new.append(i)
            sg[1][:] = new
        if not fix: break
    resolve_and_check(trace(), verbose=True)
    if O_.stamps:
        tr = [i for sidx, c in path for i in segs[sidx][1]]; cuts = [k for k, i in enumerate(tr) if i.kind == "smem" and "s[42:43]" in i.text]
        print("  est between stamps:", [cost_estimate(tr[a:b]) for a, b in zip(cuts, cuts[1:])])
    for name, ins in segs:
        if not name.startswith("slow"): print(f"  seg {name:8s} insts {len(ins):5d} est cycles {cost_estimate(ins):6d} nops {sum(1 for i in ins if i.kind == 'nop')}")

HEAD = """; MHA forward, B=16 H=32 Sq=384 Sk=512 D=128, bf16 in/out.  Written with the author's own generator script.
; K/V stream exactly once through a 4-slot LDS ring (LDS-DMA, one barrier per tile); Q and O pass through a per-wave
; staging area (O is transposed there so that whole 128-byte lines are stored).
; Softmax: Q is pre-scaled by log2(e)/sqrt(D).  Each row's max over its first 32 keys is subtracted through the MFMA
; C operand (so every row sum is >= 1, nothing can underflow); the row sums come from an MFMA against a ones column.
; Guard: a row sum that is NaN or >= 2^64 flags the wave, which then redoes its rows with the true row max (L_slow).
; @launch grid=(256,1,1) block=(256,1,1) lds=163840
.amdgcn_target "amdgcn-amd-amdhsa--gfx950"
.text
.globl standalone__mha_softmax__near_ridge_kernel
.p2align 8
.type standalone__mha_softmax__near_ridge_kernel,@function
standalone__mha_softmax__near_ridge_kernel:
"""
TAIL = """    s_endpgm
.section .rodata,"a"
.p2align 6
.amdhsa_kernel standalone__mha_softmax__near_ridge_kernel
  .amdhsa_next_free_vgpr 512
  .amdhsa_next_free_sgpr 102
  .amdhsa_accum_offset 256
  .amdhsa_group_segment_fixed_size 0
  .amdhsa_kernarg_size 48
  .amdhsa_user_sgpr_count 2
  .amdhsa_user_sgpr_kernarg_segment_ptr 1
  .amdhsa_system_sgpr_workgroup_id_x 1
.end_amdhsa_kernel
"""
def insert_pads(text):
    import subprocess, re, tempfile, os
    def offsets(npads):
        d = tempfile.mkdtemp(); t = text()
        t = t.replace("L_padret:", "L_padret:\n" + "".join(f"L_pad{k}:\n" for k in range(npads + 1, 40)))
        open(d + "/a.s", "w").write(t)
        subprocess.run(["clang", "-x", "assembler", "-target", "amdgcn-amd-amdhsa", "-mcpu=gfx950", "-c", d + "/a.s", "-o", d + "/a.o"], check=True)
        dis = subprocess.run(["llvm-objdump", "-d", "--mcpu=gfx950", d + "/a.o"], capture_output=True, text=True).stdout
        sym = subprocess.run(["llvm-readelf", "-s", d + "/a.o"], capture_output=True, text=True).stdout
        main = int(re.search(r"([0-9a-f]{16}) .* L_main$", sym, re.M).group(1), 16)
        ad = [(int(m.group(2), 16), m.group(1)) for m in re.finditer(r"^\s+(\S+).*// ([0-9A-F]{12}):", dis, re.M)]
        ad = [x for x in ad if x[0] >= main]
        flat = [(sg, k) for sg in segs for k in range(len(sg[1]))]
        flat = flat[[i for i, (sg, k) in enumerate(flat) if sg[1][k].text == "L_main:"][0]:]
        o = []; j = 0
        for sg, k in flat:
            x = sg[1][k]
            if x.kind == "label":
                if x.text == "L_fast_end:": break
                if x.text.startswith(".p2align") and ad[j][0] % 8: j += 1
                continue
            assert ad[j][1].startswith(x.text.split()[0][:12]), (ad[j], x.text)
            o.append((ad[j][0] - ad[0][0], sg, k)); j += 1
        return o
    page = 1; pads = []
    while True:
        off = offsets(page - 1)
        cand = [n for n, (a, sg, k) in enumerate(off) if 4096*page <= a <= 4096*page + 56]
        if not cand: break
        def score(n):
            a, sg, k = off[n]; lo = max(0, k - 8); w = sg[1][lo:k + 8]
            return cost_estimate(w[:k - lo] + [raw("pad")] + w[k - lo:]) - cost_estimate(w)
        n = min(cand, key=score); _, sg, k = off[n]
        p = raw(f"s_cbranch_vccz L_pad{page + 4}"); pads.append(p)
        sg[1][k:k] = [label(f"L_pad{page}"), p]
        page += 1
    for i, p in enumerate(pads):
        if i + 1 + 4 >= page: p.text = "s_cbranch_vccz L_padret"
    assert page > 4
    print(f"  {page - 1} page pads")

if __name__ == "__main__":
    out = sys.argv[1]
    for a in sys.argv[2:]:
        k, v = a.split("=")
        setattr(O_, k, type(getattr(O_, k))(v))
    build()
    def text(): return HEAD + "\n".join((i.text if i.kind == "label" else "    " + i.text) for _, ins in segs for i in ins) + "\n" + TAIL
    if O_.pads: insert_pads(text)
    open(out, "w").write(text())
    import subprocess
    r = subprocess.run([sys.executable, "cdna_unwritten_srd_check.py", out], capture_output=True, text=True)
    print("  check:", r.stdout.strip()[-300:], r.stderr.strip()[-300:])
```

```python
import sys, math, struct, random
from ir import *

class Opt:
    stamps = 0; diag = ""; probe = 0; force = 0
    late_flags = "sc1"; h0_flags = "sc1"; fin_flags = "sc1"; fq = "nt"; fk = "nt"; fv = "nt"
    n0 = 14
    lead0 = "80,85,90,100,123,123,123,123,123,123,123,123,123,123,145"
    qs = "001122222222104"
    tq = 4; tstep = 12; tper = 2
    olate = "26552"
    unr = 0
    dsp1 = 5; jsp = 27
    xst = ""; xpar = 0
    rdp = 8; rdn = 4; slip = 1
    last_flags = "sc1"; lastk = 2
    amp = 0
    pfs = 4; early = 1; vis = "ee0"
    lt = 1; gq14 = 27
    psp = 2; opt = 1; nea = 40
    g11 = 56; g12 = 16; dsp = 5; p0g = 6; p1g = 10; p1e = 1.0; tl0 = 1
    osched = "000000220000"; tsched = "111222000000"
    ne1 = 36
    pads = 2
    mq0 = 0
    tight = 1
    ps = "000011111111000"
    pvo = "bs2"; qks = 1; slow = 1
O_ = Opt()

NB = 6
def f32bits(x): return struct.unpack("<I", struct.pack("<f", x))[0]
CSCALE = f32bits(math.log2(math.e) / math.sqrt(128.0))
THRESH = f32bits(2.0 ** 64)
def bf16(x):
    u = f32bits(x); return (u + 0x7fff + ((u >> 16) & 1)) >> 16
C_HI = bf16(math.log2(math.e) / math.sqrt(128.0))
C_LO = bf16(math.log2(math.e) / math.sqrt(128.0) - struct.unpack("<f", struct.pack("<I", C_HI << 16))[0])

def Sreg(b, a): return V(8*b + 4*a, 4)
def Preg(par, b): return V(48 + 24*par + 4*b, 4)
def negM(b): return V(96 + 4*b, 4)
kaddr = [V(120 + s) for s in range(4)]
vaddr = [V(124 + t) for t in range(8)]
vkv = V(132); vsd0 = V(133); vsd1 = V(134); vlin = V(135)
qa = [V(136 + s) for s in range(4)]
ow = V(140)
ovr = V(141)
def Oreg(b, t):
    n = 8*b + t
    return V(144 + 4*n, 4) if n < 28 else A(176 + 4*(n - 28), 4)
def Qreg(b, s): return A(16*b + 4*s, 4)
def F(i): return A(96 + 4*i, 4)
def lacc(b): return A(128 + 4*(b//3), 4)
def sel(b): return A(136 + 4*(b % 3), 4)
X = [A(148 + 4*k, 4) for k in range(7)]
CS = A(164, 10)
sQ, sO = S(12, 4), S(24, 4); sKb, sVb, sVx = S(16, 2), S(22, 2), S(18, 2)
sW = S(28); sM0 = S(30); sStg = S(31); sSide = S(32); sT0 = S(33); sT1 = S(34); sT2 = S(35)
sFlag = S(36); sThr = S(37); sC = S(38, 2); sCmp = S(40, 2); sStamp = S(42, 2); sCnt = S(3); sQb = S(20, 2)
STAMP0 = 48

def aK(J): return (("ring", (J - 2) % 4, "K"), ("K", J), True)
def aV(J): return (("ring", J % 4, "V"), ("V", J), True) if J < 31 else (("ring", 2, "K"), ("V", J), True)
def rK(d): return lambda c: aK(c["J"] + d)
def rV(d): return lambda c: aV(c["J"] + d)
def aQ(h, p): return (("stg", p), ("Q", h), False)
def aO(h, p): return (("stg", p), ("O", h), False)
def blk(f, h, b): return [f(h, 4*b + i) for i in range(4)]
def mkctx(c): return lambda r: r(c) if callable(r) else r

segs = []; path = []; path2 = []; cur = None
def seg(name):
    global cur
    cur = []; segs.append([name, cur]); return len(segs) - 1
def E(*xs):
    for x in xs:
        if x is None: continue
        if isinstance(x, (list, tuple)): E(*x)
        else: cur.append(x)
nstamp = [0]
def stamp_now():
    if O_.stamps not in (1, 2): return []
    k = nstamp[0]; nstamp[0] += 1
    op = "s_memtime" if O_.stamps == 1 else "s_memrealtime"
    return [raw(f"{op} {sStamp}", "smem", (), rs(sStamp)), wait(lgkm=0), salu("s_mov_b32", S(STAMP0 + k), sStamp[0])]

MEM = ("dsr", "dsw", "dma", "vld", "vst"); VAL = ("valu", "trans")
class Task:
    count = 0
    def __init__(s, x, lo, hi, preds):
        s.x, s.lo, s.hi, s.preds, s.gap = x, lo, hi, preds, None
        s.lo0, s.hi0 = lo, hi; Task.count += 1; x.m["seq"] = Task.count
class Sched:
    def __init__(s, mf):
        s.mf = mf; s.n = len(mf); s.g = [[] for _ in mf]; s.t = []; s.done = []; s.own = set()
        s.cap = [24 if m.m["big"] else 8 for m in mf]; s.novalu = set()
    def cost(s, x): return 8 if x.kind == "trans" or x.m.get("perm") else 4
    def fits(s, g, x):
        if s.cap[g] < s.cost(x): return False
        if x.kind in MEM and any(y.kind in MEM for y in s.g[g]): return False
        if x.kind in VAL and g in s.novalu: return False
        return True
    def put(s, g, x): s.g[g].append(x); s.cap[g] -= s.cost(x)
    def fix(s, x, g):
        t = Task(x, g, g, []); t.gap = g; s.put(g, x)
        if x.kind in ("dma", "vst", "vld"): s.cap[g] = 0; s.novalu.add(g - 1); s.own.add(g)
        if x.kind in ("barrier", "dsw") or x.m.get("last"): s.cap[g] = 0; s.own.add(g)
        return t
    def add(s, x, lo=0, hi=None, preds=()):
        t = Task(x, max(lo, 0), s.n - 1 if hi is None else min(hi, s.n - 1), [p for p in preds if p[0] is not None]); s.t.append(t); return t
    def seq(s, xs, lo=0, hi=None, after=None, hard=1):
        p = after
        for x in xs: p = s.add(x, lo, hi, [(p, hard, hard)])
        return p
    def sm(s, groups, smax=2.0):
        ex = [(x, lo, hi) for ops, lo, hi in groups for x in ops if x.kind == "trans"]
        sig = smax
        while True:
            pos = []; t = -9.0; ok = True
            for x, lo, hi in ex:
                t = max(lo, t + sig); g = int(t)
                while g < s.n and (not s.fits(g, x) or (pos and g <= pos[-1])): g += 1
                if g > hi - 1: ok = False; break
                pos.append(g); t = max(t, g - 0.5)
            if ok: break
            sig -= 0.05
            assert sig > 0.3, "softmax does not fit"
        k = 0
        for ops, lo, hi in groups:
            e = []
            for x in ops:
                if x.kind == "trans":
                    t = s.fix(x, pos[k]); t.lo0, t.hi0 = lo, hi - 1; s.done.append(t); e.append(t); k += 1
                else: s.add(x, lo, min(hi, e[-1].gap + 5), [(e[-1], 1, 1), (e[-2], 1, 1)]).hi0 = min(hi, s.n - 1)
    def run(s):
        for t in reversed(s.t):
            for p, h, so in t.preds:
                if p.gap is None: p.hi = min(p.hi, t.hi - so)
        for t in s.t:
            for p, h, so in t.preds: t.lo = max(t.lo, p.lo + h)
            t.hi = max(t.hi, t.lo)
        left = list(s.t)
        for g in range(s.n):
            while True:
                rdy = [t for t in left if t.lo <= g and all(p.gap is not None and g >= p.gap + h for p, h, so in t.preds)]
                rdy = [t for t in rdy if t.hi <= g or all(g >= p.gap + so for p, h, so in t.preds)]
                rdy.sort(key=lambda t: t.hi)
                pick = next((t for t in rdy if t.hi <= g or s.fits(g, t.x)), None)
                if pick is None: break
                s.put(g, pick.x); pick.gap = g; left.remove(pick)
        assert not left, left[0].x
        s.done += s.t; s.t = []
    def polish(s, iters=60000):
        if not O_.opt: return
        rnd = random.Random(1); T = s.done; succ = {id(t): [] for t in T}
        for t in T:
            t.dp = [(p, min(so, t.gap - p.gap)) for p, h, so in t.preds]
            for p, d in t.dp:
                if id(p) in succ: succ[id(p)].append((t, d))
            t.hi0 = max(t.hi0, t.gap); t.lo0 = min(t.lo0, t.gap)
        drain = [g for g in range(s.n) if any(x.kind == "wait" and x.m["lgkm"] == 0 for x in s.g[g])]
        full = [24 if m.m["big"] else 8 for m in s.mf]; base = {g: [x for x in s.g[g] if all(x is not t.x for t in T)] for g in s.own}
        def over(g, xs):
            if g in s.own: return sum(s.cost(x) for x in xs if all(x is not y for y in base[g]))
            c = sum(s.cost(x) for x in xs) + 4*max(0, sum(x.kind in MEM for x in xs) - 1)
            o = max(0, c - full[g])
            if g in s.novalu and c >= 8 and any(x.kind in VAL for x in xs): o += 4
            return o
        ov = [over(g, s.g[g]) for g in range(s.n)]
        for it in range(iters):
            if not any(ov): break
            t = rnd.choice(T); a = t.gap
            lo = max([t.lo0] + [p.gap + d for p, d in t.dp]); hi = min([t.hi0] + [q.gap - d for q, d in succ[id(t)]])
            b = rnd.randint(max(lo, a - 6), min(hi, a + 6)) if lo <= hi else a
            if b == a or (t.x.kind == "dsr" and any(0 <= g - b < 7 and not (b < a <= g) for g in drain)): continue
            xa = [x for x in s.g[a] if x is not t.x]; xb = s.g[b] + [t.x]
            oa, ob = over(a, xa), over(b, xb); dl = oa + ob - ov[a] - ov[b]
            if dl <= 0 or rnd.random() < math.exp(-dl/(1.2*(1 - it/iters) + 1e-9)):
                s.g[a], s.g[b], ov[a], ov[b], t.gap = xa, xb, oa, ob, b
                s.cap[a] += s.cost(t.x); s.cap[b] -= s.cost(t.x)
    def pour(s, *streams):
        st = [[list(xs), lo] for xs, lo in streams]
        for g in range(s.n):
            again = True
            while again:
                again = False
                for q in st:
                    if q[0] and q[1] <= g and s.fits(g, q[0][0]): s.put(g, q[0].pop(0)); again = True; break
        return [x for q in st for x in q[0]]
    def emit(s):
        for m, g in zip(s.mf, s.g):
            key = lambda x: (3 if x.m.get("last") else (2 if x.kind in VAL else (0 if x.kind in MEM else 1)), x.m.get("seq", 1 << 30))
            E(m, sorted(g, key=key))

def kread(J, d, a, s, dst): return ds_read("ds_read_b128", dst, kaddr[s], ((J + d - 2) % 4)*16384 + a*8192, rK(d))
def vread(J, d, t, a, dst):
    return ds_read("ds_read_b64_tr_b16", dst[2*a:2*a+2], vaddr[t], (((J + d) % 4)*16384 if J + d < 31 else 32768 - 1024) + a*8192, rV(d))
def kv_group(J, d, withV=True):
    o = [salu("s_add_u32", "m0", sM0, ((J + d) % 4)*16384)]
    for im in (0, 2048):
        if withV: o.append(gdma(vkv, sVb, im + 1024, rV(d), O_.fv))
        o.append(gdma(vkv, sKb, im, rK(d + 2), O_.fk) if J + d < 30 else gdma(vkv, sVx, im, rV(d + 1), O_.fv))
    return o + [kv_step()]
def kv_step(): return valu("v_add_u32", vkv, 8192, vkv)
def q_dma_block(h, b):
    o = [salu("s_add_u32", "m0", sStg, b*4096), salu("s_mov_b32", sSide, h*98304 + b*4096)]
    for i in range(4): o.append(dma(vsd1 if i & 1 else vsd0, sQ, sSide, i*1024, aQ(h, 4*b + i), O_.fq))
    return o
def piecemeal(groups):
    st = []; pre = []
    for grp in groups:
        for x in grp:
            if x.kind in MEM: st.append(pre + [x]); pre = []
            else: pre.append(x)
    if pre: st[-1] += pre
    def more(n):
        o = st[:n]; del st[:n]; return o
    more.left = lambda: len(st)
    return more

def sm_ops(par, b, a):
    s = Sreg(b, a); p = Preg(par, b)
    return [valu("v_exp_f32", s[0], s[0]), valu("v_exp_f32", s[1], s[1]), valu("v_cvt_pk_bf16_f32", p[2*a], s[0], s[1]),
            valu("v_exp_f32", s[2], s[2]), valu("v_exp_f32", s[3], s[3]), valu("v_cvt_pk_bf16_f32", p[2*a+1], s[2], s[3])]
NE_A = 40
def sm_split(par, ne=NE_A, order=range(NB)):
    st = []
    for a in range(2):
        for b in (order if a else range(NB)): st += [(b, x) for x in sm_ops(par, b, a)]
    k = ne // 2 * 3
    return st[:k], st[k:]
def delay_cvts(xs):
    o = []; pend = []
    for x in xs:
        if x.kind == "trans":
            o.append(x)
            if pend: o.append(pend.pop(0))
        else: pend.append(x)
    return o + pend
def xlane_max(m, t):
    o = []
    for op in ("v_permlane32_swap_b32", "v_permlane16_swap_b32"):
        o += [valu("v_mov_b32", t, m), swap(op, m, t), valu("v_max_f32", m, m, t)]
    return o
def rowmax_ops(b):
    m, t = negM(b)[0], negM(b)[1]; sv = lambda r: V(8*b + r)
    o = [valu("v_max3_f32", m, sv(0), sv(1), sv(2)), valu("v_max3_f32", t, sv(3), sv(4), sv(5)),
         valu("v_max3_f32", m, m, sv(6), sv(7)), valu("v_max_f32", m, m, t)] + xlane_max(m, t)
    o += [valu("v_sub_f32", negM(b)[r], 0, m) for r in (1, 2, 3, 0)]
    return o, [valu("v_pk_add_f32", V(8*b + 2*r, 2), V(8*b + 2*r, 2), negM(b)[0:2]) for r in range(4)]
def scale_frag(x, dst, w, y, pk=True):
    o = []
    if pk:
        for r in range(4): o += [valu("v_lshlrev_b32", w[2*r], 16, x[r]), valu("v_and_b32", w[2*r+1], "0xffff0000", x[r])]
        for r in range(4): o.append(valu("v_pk_mul_f32", w[2*r:2*r+2], w[2*r:2*r+2], sC))
    else:
        for r in range(4):
            o += [valu("v_lshlrev_b32", w[2*r], 16, x[r]), valu("v_and_b32", w[2*r+1], "0xffff0000", x[r]),
                  valu("v_mul_f32", w[2*r], sC[0], w[2*r]), valu("v_mul_f32", w[2*r+1], sC[0], w[2*r+1])]
    if dst.k == "v": return o + [valu("v_cvt_pk_bf16_f32", dst[r], w[2*r], w[2*r+1]) for r in range(4)]
    for r in range(4): o.append(valu("v_cvt_pk_bf16_f32", y[r], w[2*r], w[2*r+1]))
    for r in range(4): o.append(valu("v_accvgpr_write_b32", dst[r], y[r]))
    return o
def chain(b, a, fr, c0, rev):
    return [(s, mfma(Sreg(b, a), fr[s], Qreg(b, s), c0 if n == 0 else Sreg(b, a))) for n, s in enumerate(range(3, -1, -1) if rev and O_.qks else range(4))]
def qk_first(b): return [m for a in range(2) for _, m in chain(b, a, [F(4*a + s) for s in range(4)], 0, a)]
def pv_pair(par, bs, t0, fr, init, sums):
    o = []
    if O_.pvo in ("t", "ts"):
        bs = sorted(bs)
        if 5 in sums and init: sums = []; o += [(None, rowsum(par, 5, init)), (None, rowsum(par, 4, init))]
        for k in range(2):
            for b in (bs if k == 0 or O_.pvo == "t" else bs[::-1]):
                o.append((t0 + k, mfma(Oreg(b, t0 + k), Preg(par, b), fr[k], 0 if init else Oreg(b, t0 + k))))
                if k == 0 and b in sums: o.append((None, rowsum(par, b, init)))
        return o
    for n, b in enumerate(bs):
        for k in ((0, 1) if n % 2 == 0 or O_.pvo == "pp2" else (1, 0)): o.append((t0 + k, mfma(Oreg(b, t0 + k), Preg(par, b), fr[k], 0 if init else Oreg(b, t0 + k))))
        if b in sums: o.insert(len(o) - 1, (None, rowsum(par, b, init)))
    return o
def rowsum(par, b, init=False): return mfma(lacc(b), Preg(par, b), sel(b), 0 if init and b in (0, 5) else lacc(b))

def pm(f):
    q = Qreg(f//4, f % 4); d = V(76 + 8*(f & 1), 8); t = V(92, 4)
    mf = [mfma(d[0:4], CS[2:6], q, 0), mfma(d[0:4], CS[6:10], q, d[0:4]), mfma(d[4:8], CS[0:4], q, 0), mfma(d[4:8], CS[4:8], q, d[4:8])]
    fl = []
    for hh in range(2):
        fl += [valu("v_cvt_pk_bf16_f32", t[2*hh + k], d[4*hh + 2*k], d[4*hh + 2*k + 1]) for k in range(2)]
        fl += [valu("v_accvgpr_write_b32", q[2*hh + k], t[2*hh + k]) for k in range(2)]
    return mf, fl

def startup():
    v0, vl, vi, vu, t0, t1, t2 = V(0), V(1), V(2), V(3), V(4), V(5), V(6)
    E(comment("---- setup"),
      raw("s_load_dwordx4 s[4:7], s[0:1], 0", "smem", (), rs(S(4, 4))),
      raw("s_load_dwordx4 s[8:11], s[0:1], 16", "smem", (), rs(S(8, 4))),
      scmp("s_cmp_ge_u32", S(2), 256), raw("s_cbranch_scc1 L_end", "salu", {"scc"}))
    if O_.stamps:
        E(raw("s_load_dwordx2 s[44:45], s[0:1], 40", "smem", (), rs(S(44, 2))),
          raw("s_memrealtime s[46:47]", "smem", (), rs(S(46, 2))))
    if O_.pfs == 0:
        E(comment("pull the kernel's own code into L2 (one dword per 128-byte line)"),
          raw("s_getpc_b64 s[40:41]", "salu", (), rs(S(40, 2))), label("L_pc"),
          valu("v_lshlrev_b32", t0, 7, v0), valu("v_min_u32", t1, "L_fast_end-L_pc", t0),
          Inst(f"global_load_dword v7, {t1}, s[40:41]", "vld", rs(t1, S(40, 2)), rs(V(7))),
          valu("v_add_u32", t0, 32768, t0), valu("v_min_u32", t1, "L_fast_end-L_pc", t0),
          Inst(f"global_load_dword v8, {t1}, s[40:41]", "vld", rs(t1, S(40, 2)), rs(V(8))))
    else:
        sh = O_.pfs
        E(comment("pull the kernel's own code into L2; the workgroups that usually share an L2 take a slice each (speed only)"),
          raw("s_getpc_b64 s[40:41]", "salu", (), rs(S(40, 2))), label("L_pc"),
          raw(f"s_bfe_u32 {sT0}, s2, {hex((sh << 16) + 3)}", "salu", (), rs(sT0) | {"scc"}), salu("s_lshl_b32", sT0, sT0, 16 - sh),
          valu("v_lshlrev_b32", t0, 8 - sh, v0), valu("v_add_u32", t0, sT0, t0), valu("v_min_u32", t1, "L_fast_end-L_pc", t0),
          Inst(f"global_load_dword v7, {t1}, s[40:41]", "vld", rs(t1, S(40, 2)), rs(V(7))))
    E(valu("v_lshrrev_b32", t1, 6, v0), valu("v_and_b32", vl, 63, v0),
      valu("v_readfirstlane_b32", sW, t1),
      valu("v_and_b32", vi, 15, vl), valu("v_lshrrev_b32", vu, 4, vl),
      valu("v_lshlrev_b32", t0, 1, vu), valu("v_xor_b32", t0, t0, vi), valu("v_lshlrev_b32", t0, 4, t0),
      valu("v_lshl_add_u32", vsd0, vu, 8, t0), valu("v_xor_b32", vsd1, 128, vsd0),
      salu("s_and_b32", sT0, sW, 1), salu("s_lshr_b32", sT1, sW, 1),
      salu("s_lshl_b32", sT2, sT0, 7), salu("s_lshl_b32", sT0, sT0, 10), salu("s_lshl_b32", sT1, sT1, 12),
      salu("s_add_u32", sT0, sT0, sT1),
      valu("v_xor_b32", vkv, sT2, vsd0), valu("v_add_u32", vkv, sT0, vkv),
      salu("s_lshl_b32", sM0, sW, 12), salu("s_mul_i32", sStg, sW, 24576),
      salu("s_mul_i32", sT0, S(2), 196608), salu("s_add_u32", sT0, sT0, sStg), salu("s_add_u32", sStg, sStg, 65536),
      salu("s_lshl_b32", sT1, S(2), 18),
      salu("s_mov_b32", sQ[2], 98304 + 24576), salu("s_mov_b32", sQ[3], "0x20000"),
      wait(lgkm=0),
      salu("s_add_u32", sKb[0], S(6), sT1), salu("s_addc_u32", sKb[1], S(7), 0),
      salu("s_add_u32", sQ[0], S(4), sT0), salu("s_addc_u32", sQ[1], S(5), 0), salu("s_and_b32", sQ[1], sQ[1], "0xffff"))
    g0 = kv_group(0, 0); g0 = [g0[k] for k in (0, 1, 3, 2, 4, 5)]
    more = piecemeal([kv_group(0, -2, False)] + [q_dma_block(0, b) for b in range(NB)] + [kv_group(0, -1, False), g0])
    n_iss = 0
    if O_.xst: E(comment("start-up is bandwidth bound: the dies that clock lower under load (speed only) are served first"),
                 raw(f"s_getreg_b32 {sT2}, hwreg(HW_REG_XCC_ID, 0, 1)", "salu", (), rs(sT2)))
    for k, ch in enumerate(O_.xst):
        E(more(int(ch)), scmp("s_cmp_eq_u32", sT2, O_.xpar), raw(f"s_cbranch_scc0 L_st{k}", "salu", {"scc"}),
          raw("s_waitcnt vmcnt(0)"), label(f"L_st{k}")); n_iss += int(ch)
    E(more(10 - n_iss))
    if O_.pads == 2: E(stamp_now() if O_.probe == 5 else None, raw("s_branch L_main"), raw(".p2align 12", "label"), label("L_main"), stamp_now() if O_.probe == 5 else None)
    E(salu("s_add_u32", sVb[0], S(8), sT1), salu("s_addc_u32", sVb[1], S(9), 0),
      salu("s_sub_u32", sVb[0], sVb[0], 1024 + 16384), salu("s_subb_u32", sVb[1], sVb[1], 0),
      salu("s_add_u32", sO[0], S(10), sT0), salu("s_addc_u32", sO[1], S(11), 0), salu("s_and_b32", sO[1], sO[1], "0xffff"),
      salu("s_mov_b32", sO[2], 98304 + 24576), salu("s_mov_b32", sO[3], "0x20000"),
      salu("s_add_u32", sVx[0], sVb[0], 1024 + 8192), salu("s_addc_u32", sVx[1], sVb[1], 0),
      salu("s_mov_b32", sC[0], hex(CSCALE)), salu("s_mov_b32", sC[1], hex(CSCALE)),
      salu("s_mov_b32", sThr, hex(THRESH)), salu("s_mov_b32", sFlag, O_.force),
      salu("s_add_u32", sQb[0], sQ[0], 98304), salu("s_addc_u32", sQb[1], sQ[1], 0))
    E(valu("v_and_b32", t0, 7, vi), valu("v_lshlrev_b32", t0, 1, t0), valu("v_xor_b32", t0, t0, vu), valu("v_lshlrev_b32", t0, 4, t0),
      valu("v_lshl_add_u32", t2, vi, 8, t0), valu("v_add_u32", qa[0], sStg, t2),
      valu("v_and_b32", t1, 3, vi), valu("v_lshl_add_u32", t0, t1, 8, t0),
      valu("v_lshrrev_b32", t1, 3, vi), valu("v_lshl_add_u32", t0, t1, 11, t0),
      valu("v_bfe_u32", t1, vi, 2, 1), valu("v_lshl_add_u32", kaddr[0], t1, 12, t0))
    for s in range(1, 4): E(valu("v_xor_b32", kaddr[s], s << 6, kaddr[0]), valu("v_xor_b32", qa[s], s << 6, qa[0]))
    E(valu("v_lshrrev_b32", t1, 2, vi), valu("v_and_b32", t2, 1, vu), valu("v_lshl_add_u32", t0, t2, 2, t1),
      valu("v_lshlrev_b32", t0, 5, t0), valu("v_lshl_add_u32", t0, t1, 8, t0), valu("v_lshl_add_u32", t0, t2, 12, t0),
      valu("v_lshrrev_b32", t2, 1, vu), valu("v_lshl_add_u32", t0, t2, 11, t0),
      valu("v_and_b32", t1, 3, vi), valu("v_lshl_add_u32", t0, t1, 3, t0), valu("v_add_u32", vaddr[0], 1024, t0))
    for t in range(1, 8): E(valu("v_xor_b32", vaddr[t], t << 5, vaddr[0]))
    E(valu("v_mov_b32", t2, "0x3f803f80"))
    for k in range(3):
        E(Inst(f"v_cmp_eq_u32 vcc, {k}, {vi}", "valu", rs(vi), {"vcc"}), nop(1), Inst(f"v_cndmask_b32 {t0}, 0, {t2}, vcc", "valu", rs(t2, "vcc"), rs(t0)),
          [valu("v_accvgpr_write_b32", sel(k)[r], t0) for r in range(4)])
    E(valu("v_lshrrev_b32", t0, 1, vi), valu("v_lshlrev_b32", t1, 1, vu), valu("v_sub_u32", t0, t0, t1),
      valu("v_and_b32", t1, 1, vi), valu("v_lshlrev_b32", t1, 4, t1))
    for k in range(2):
        E(Inst(f"v_cmp_eq_u32 vcc, {k}, {t0}", "valu", rs(t0), {"vcc"}))
        for j, c in enumerate((C_HI, C_LO)):
            E(valu("v_mov_b32", t2, hex(c)), valu("v_lshlrev_b32", t2, t1, t2), Inst(f"v_cndmask_b32 {t2}, 0, {t2}, vcc", "valu", rs(t2, "vcc"), rs(t2)),
              valu("v_accvgpr_write_b32", CS[2 + 4*j + k], t2))
    E([valu("v_accvgpr_write_b32", CS[k], 0) for k in (0, 1, 4, 5, 8, 9)])
    E(valu("v_lshlrev_b32", t0, 3, vl), valu("v_add_u32", ow, sStg, t0),
      valu("v_bfe_u32", t1, vi, 1, 1), valu("v_lshl_add_u32", t0, t1, 2, vu), valu("v_lshlrev_b32", t0, 9, t0),
      valu("v_and_b32", t1, 1, vi), valu("v_lshl_add_u32", t0, t1, 6, t0), valu("v_lshrrev_b32", t1, 2, vi),
      valu("v_lshl_add_u32", t0, t1, 3, t0), valu("v_add_u32", ovr, sStg, t0),
      valu("v_and_b32", t2, 3, vi), valu("v_lshlrev_b32", t0, 5, t2), valu("v_lshl_add_u32", t0, vu, 8, t0),
      valu("v_and_b32", t2, 1, t1), valu("v_lshl_add_u32", t0, t2, 4, t0), valu("v_lshrrev_b32", t2, 1, t1), valu("v_lshl_add_u32", vlin, t2, 7, t0))
    E(more(O_.n0 - 10), stamp_now())
    def first_k():
        E(comment("---- first K tile"), wait(vm=[aK(0)]), barrier())
        for a in range(2):
            for s in range(4): E(kread(0, 0, a, s, F(4*a + s)))
    if not O_.early: first_k()
    def visit(g):
        o = [comment(f"touch code pages {4*g + 1}..{4*g + 4}, one per wave"), stamp_now() if O_.probe == 5 and g == 0 else None, raw("s_mov_b64 vcc, 0")]
        for w in range(3): o += [scmp("s_cmp_eq_u32", sW, w), raw(f"s_cbranch_scc1 L_pad{4*g + w + 1}", "salu", {"scc"})]
        return o + [raw(f"s_branch L_pad{4*g + 4}"), label(f"L_padret{g}"), raw("s_mov_b64 vcc, -1"), stamp_now() if O_.probe == 5 and g == 0 else None]
    vis = lambda where: [visit(g) for g, c in enumerate(O_.vis) if c == where]
    E(vis("e"))
    if O_.early: first_k()
    rawr = lambda s: V(72 + 4*s, 4)
    for b in range(NB):
        E(comment(f"---- start-up block {b}"), wait(vm=blk(aQ, 0, b)), stamp_now() if O_.probe == 2 else None)
        if O_.mq0:
            for s in range(4): E(ds_read("ds_read_b128", Qreg(b, s), qa[s], b*4096, blk(aQ, 0, b)))
            E(more(2), wait(lgkm=[Qreg(b, 0)] + ([F(k) for k in range(8)] if b == 0 else [])))
            pms = [pm(4*b + n) for n in range(4)]
            sc = Sched([m for mf, _ in pms for m in mf])
            sc.put(2, wait(lgkm=0))
            for n in range(3):
                for j, v in enumerate(pms[n][1]): sc.put(4*(n + 1) + j//2, v)
            sc.emit(); E(more(2), pms[3][1])
        else:
            for s in range(4): E(ds_read("ds_read_b128", rawr(s), qa[s], b*4096, blk(aQ, 0, b)))
            for s in range(4):
                E(wait(lgkm=[rawr(s)] + ([F(k) for k in range(8)] if b == 0 else [])))
                E(more(1), scale_frag(rawr(s), Qreg(b, s), V(88, 8), Sreg(b, s & 1)))
        qk = qk_first(b)
        if b < NB - 1: E(qk, rowmax_ops(b), delay_cvts(sm_ops(0, b, 0) + sm_ops(0, b, 1)), vis(str(b)))
    assert more.left() == 0
    E(qk[:4], wait(vm=[aK(1)]), barrier())
    for s in range(4): E(qk[4 + s], kread(0, 1, 0, s, F(s)))
    E(salu("s_mov_b32", sSide, sStg), salu("s_mov_b32", sCnt, 1), rowmax_ops(NB - 1)[0][:4], wait(lgkm=[F(s) for s in range(4)]), stamp_now())

def o_read(key, p, dst):
    return [ds_read("ds_read_b64_tr_b16", dst[2*hi:2*hi + 2], ovr, (p >> 2)*4096 + (p & 3)*128 + hi*32, key) for hi in range(2)]
def pv_mfmas(par, frags, sums_first=False, init=False):
    mf = [rowsum(par, b) for b in range(NB)] if sums_first else []; st = []
    for h in range(4):
        st.append(len(mf))
        sums = [] if sums_first else [(0, 1), (5, 4), (2,), (3,)][h]
        mf += [m for _, m in pv_pair(par, range(NB) if h % 2 == 0 else range(NB - 1, -1, -1), 2*h, frags[2*h:2*h + 2], init, sums)]
    return mf, st
def late_pieces(k):
    cnt = [int(c, 16) for c in O_.olate]; ne = sum(map(int, O_.osched)); assert sum(cnt) == 24 - ne and sum(cnt[:4]) >= 12
    return (list(range(12, 24)) + list(range(ne, 12)))[sum(cnt[:k]):sum(cnt[:k + 1])]
def kv_plan(J):
    if J >= 16: return [(3, 27)] if J < 28 else []
    o = []
    for k, lead in enumerate(int(x) for x in O_.lead0.split(",")):
        Jk, g = divmod(102*(k + 1) + 23 - lead, 102)
        assert 2 <= g <= 82
        if Jk == J: o.append((k + 1 - J, g))
    return o
END_ORDER = (2, 3, 4, 5, 0, 1)
NPRE = 2
VF15 = [Qreg(4 + t//4, t % 4) for t in range(8)]

def iteration(J, ctl=()):
    par = J & 1; j = J % 16
    mf = [m for a in range(2) for b in range(NB) for _, m in chain(b, a, [F(4*a + s) for s in range(4)], negM(b), b & 1)]
    pv, pst = pv_mfmas(par, [F(t) for t in range(8)], init=(j == 0))
    mf += pv; pst = [48 + x for x in pst]
    sc = Sched(mf)
    for x in ctl: sc.fix(x, 101)
    if ctl: sc.cap[101] = 0
    for s in range(4): sc.fix(kread(J, 1, 1, s, F(4 + s)), [1, 6, 11, 13][s])
    tb2 = None
    if J == 0:
        sc.fix(wait(vm=[rV(0)], lgkm=0), 23); tb = sc.fix(barrier(), 23)
        sc.fix(wait(vm=[rK(2)]), 72); tb2 = sc.fix(barrier(), 72)
    else:
        sc.fix(wait(vm=[rV(0), rK(2)], lgkm=0), 23); tb = sc.fix(barrier(), 23)
    if J == 0 or (J == 16 and O_.tight):
        b = NB - 1; t = sc.seq(rowmax_ops(b)[0][4:], 0, 8, hard=0)
        sub = [sc.add(valu("v_add_f32", V(8*b + r), V(8*b + r), negM(b)[1]), 0, 10 if r < 4 else 22, [(t, 0, 0)]) for r in range(8)]
        sc.run(); sc.done = []
    plan = kv_plan(J); busy = []
    for n_, (d, g0) in enumerate(plan):
        ops = kv_group(J, d); g = g0
        while sc.cap[g - 2] < 4: g += 1
        sc.fix(ops[0], g - 2)
        for x in ops[1:5]:
            while sc.cap[g] < 8 or sc.cap[g - 1] == 0 or sc.cap[g + 1] == 0 or any(y.kind in VAL for y in sc.g[g - 1]): g += 1
            td = sc.fix(x, g); g += O_.dsp1 if 16 <= J < O_.jsp else O_.dsp
        busy.append((g0 - 3, td.gap + 1))
        sc.add(ops[5], 0, 100 if n_ + 1 == len(plan) else plan[n_ + 1][1] - 1, [(td, 1, 1)])
    nq = int(O_.qs[J]) if J < 15 else 0
    if nq:
        p0 = sum(map(int, O_.qs[:J])); g0 = max([50] + [hi + 6 for lo, hi in busy if lo < 50]) if J != 14 else O_.gq14
        qsp = 12 if nq < 3 else 9
        assert all(hi < g0 - 2 or lo > g0 + qsp*(nq - 1) for lo, hi in busy)
        tm = sc.fix(salu("s_mov_b32", "m0", sSide), g0 - 2)
        for k in range(nq):
            t = sc.fix(gdma(vsd1 if (p0 + k) & 1 else vsd0, sQb, k*1024, (lambda k: lambda c: aQ(1, sum(map(int, O_.qs[:c["J"]])) + k))(k), O_.fq), g0 + qsp*k)
        sc.add(salu("s_add_u32", sSide, sSide, 1024*nq), 0, 99, [(tm, 1, 1)])
        g = t.gap + 1
        while sc.cap[g] < 8: g += 1
        sc.fix(salu("s_add_u32", sQb[0], sQb[0], 1024*nq), g); sc.fix(salu("s_addc_u32", sQb[1], sQb[1], 0), g); sc.own.add(g)
    npz = int(O_.ps[J]) if J < 15 else 0
    if npz:
        tot = lambda a, b_: sum(map(int, O_.ps[a:b_]))
        rel = tot(0, J) if O_.unr else (tot(4, J) if J < 12 else tot(12, J))
        raw_, tt = V(142, 2), V(138, 2); p = None; span = 96//(2*npz)
        for k in range(2*npz):
            key = (lambda k: lambda c: aQ(1, tot(0, c["J"]) + k//2))(k)
            off = (rel + k//2)*1024 + (k & 1)*512; lo = 2 + span*k; gw = lo + span - 1
            while sc.cap[gw] < 8 or sc.cap[gw + 1] == 0 or gw in sc.novalu: gw -= 1
            if k % 2 == 0: p = sc.add(wait(vm=[key]), lo, None, [(p, 1, 1)])
            p = sc.add(ds_read("ds_read_b64", raw_, ow, off, key), lo, None, [(p, 1, 1)])
            p = sc.add(wait(lgkm=[raw_]), lo, None, [(p, 1, 7)])
            for r in range(2):
                ops = [valu("v_lshlrev_b32", tt[0], 16, raw_[r]), valu("v_and_b32", tt[1], "0xffff0000", raw_[r]), valu("v_mul_f32", tt[0], sC[0], tt[0]),
                       valu("v_mul_f32", tt[1], sC[0], tt[1]), valu("v_cvt_pk_bf16_f32", raw_[r], tt[0], tt[1])]
                for i, x in enumerate(ops): p = sc.add(x, lo, gw - 1 - (9 - 5*r - i)*O_.psp, [(p, 1 if i + r == 0 else 0, 1 if i + r == 0 else 0)])
            p = sc.fix(ds_write("ds_write_b64", ow, raw_, off, key), gw); sc.cap[gw] = 0
        if J == 7 and not O_.unr: sc.add(valu("v_add_u32", ow, 1024*tot(4, 8), ow), 0, 100, [(p, 1, 1)])
    if J == 14 and int(O_.ps):
        if not O_.unr: sc.add(valu("v_subrev_u32", ow, 1024*sum(map(int, O_.ps[:12])), ow), 0, 40)
        for s in (2, 3): sc.add(valu("v_xor_b32", qa[s], s << 6, qa[0]), 0, 40)
    if J in (27, 28):
        ps = late_pieces(J - 27); g0 = [O_.g11, O_.g12][J - 27]
        base = t = None
        for i, p in enumerate(ps):
            g = g0 + (96 - g0)*i//max(1, len(ps) - 1)
            while g in (22, 23, 24) or sc.cap[g] < 8 or sc.cap[g - 1] == 0 or sc.cap[g + 1] == 0: g += 1
            t = sc.seq(o_read(aO(0, p), p, X[i]), 0, g - 8, t); sc.add(wait(lgkm=[X[i]]), 0, g - 1, [(t, 1, 6)])
            if base is None or not 0 <= p - base < 4: base = p; sc.fix(salu("s_mov_b32", sSide, p*1024), g - 1)
            sc.fix(vstore(X[i], vlin, sO, sSide, (p - base)*1024, O_.late_flags), g)
    p = tb
    for t in range(8):
        for a in range(2): p = sc.add(vread(J, 0, t, a, F(t)), 24 if t < 4 else 48, None, [(p, 1, 1)])
        if t in (1, 3): sc.add(wait(lgkm=[F(t - 1), F(t)]), 0, pst[t//2] - 1, [(p, 1, 8)])
    sc.add(wait(lgkm=[F(4), F(5), F(6), F(7)]), 0, pst[2] - 1, [(p, 1, 8)])
    for s in range(4): p = sc.add(kread(J, 2, 0, s, F(s)), pst[2], None if J != 14 else 90, [(p, 1, 1), (tb2, 1, 1)])
    if J == 28:
        pre = late_pieces(2)[:NPRE]
        p = sc.seq([x for i, q in enumerate(pre) for x in o_read(aO(0, q), q, X[i])], 60, None, p)
    if J != 14: sc.add(wait(lgkm=[F(s) for s in range(4)] + (X[:NPRE] if J == 28 else [])), 0, 101 if J == 28 else 100, [(p, 1, 8 if J != 28 else 5)])
    else:
        sc.fix(wait(vm=[rV(1), rK(3)] + blk(aQ, 1, 0)), 92); t = sc.fix(barrier(), 92)
        for k in range(4): sc.fix(vread(J, 1, k//2, k & 1, VF15[k//2]), 93 + 2*k)
    nxt = lambda ne: [x for _, x in sm_split(1 - par, ne, END_ORDER if J == 28 else range(NB))[0]]
    if J == 0:
        b = NB - 1
        sc.sm([(sm_ops(0, b, 0), sub[3].gap + 1, 19), (sm_ops(0, b, 1), sub[7].gap + 1, 43), (nxt(NE_A), 24, 100)])
    elif J == 16 and O_.tight:
        tail = sm_split(0, O_.ne1)[1]; b = NB - 1
        sc.sm([(sm_ops(0, b, 0), sub[3].gap + 1, 19)] + [([x for bb, x in tail if bb == k], sub[7].gap + 1, 23 + 4*k) for k in range(NB) if any(bb == k for bb, _ in tail)]
              + [(nxt(NE_A), 24, 100)])
    elif J == 16:
        tail = sm_split(0, O_.ne1)[1]
        sc.sm([([x for bb, x in tail if bb == b], 0, 23 + 4*b) for b in range(NB) if any(bb == b for bb, _ in tail)] + [(nxt(NE_A), 24, 100)])
    elif J == 14:
        sc.sm([([x for _, x in sm_split(par)[1]], 0, 30)] + [(sm_ops(1, b, a), 24*a + 4*b + 8, 101) for a in range(2) for b in range(NB)])
    else:
        sc.sm([([x for _, x in sm_split(par)[1]], 0, 30)], 2.4)
        sc.sm([(nxt(NE_A), 24, 100)])
    for t in sc.done + sc.t:
        if t.x.m.get("op") in ("v_exp_f32", "v_cvt_pk_bf16_f32") and t.lo0 == 24:
            r = min(int(x[1:]) for x in t.x.rd); t.lo0 = 24*((r >> 2) & 1) + 4*(r >> 3) + (9 if t.x.kind == "trans" else 10)
    sc.run(); sc.polish(); sc.emit()

def straight(J, *pre):
    s = seg(f"J{J}"); path.append((s, {"J": J})); E(comment(f"---- head {J//16}, key tile {J % 16}"), pre); iteration(J)
def loop4(name, J0, passes):
    ss = []
    for k in range(4):
        ss.append(seg(f"{name}{k}"))
        if k == 0: E(raw(".p2align 3", "label"), label(f"L_{name}"))
        d = salu("s_sub_u32", sCnt, sCnt, 1); d.m["last"] = True
        iteration(J0 + k, [d, raw(f"s_cbranch_scc0 L_{name}", "salu", {"scc"}, (), last=True)] if k == 3 else [])
        for n in range(1, passes): assert kv_plan(J0 + k) == kv_plan(J0 + k + 4*n) and (J0 > 15 or (O_.qs[J0 + k], O_.ps[J0 + k]) == (O_.qs[J0 + k + 4*n], O_.ps[J0 + k + 4*n]))
    assert J0 > 15 or sum(map(int, O_.qs[J0:J0 + 4])) % 2 == 0
    for n in range(4*passes): path.append((ss[n % 4], {"J": J0 + n}))

def l_ops(h, b0, r, t1):
    o = [valu("v_accvgpr_read_b32", r[k], lacc(b0)[k]) for k in range(4)]
    o += [valu("v_add_f32", t1, r[0], r[1]), valu("v_add_f32", t1, t1, r[2]), valu("v_add_f32", t1, t1, r[3])]
    o += [valu("v_rcp_f32", r[k], r[k]) for k in range(4)]
    return o
def l_flag(h, t1):
    return [Inst(f"v_cmp_nlt_f32 {sCmp}, {t1}, {sThr}", "valu", rs(t1, sThr), rs(sCmp)), nop(0),
            scmp("s_cmp_lg_u64", sCmp, 0), salu("s_cselect_b32", sT0, 1 << h, 0), salu("s_or_b32", sFlag, sFlag, sT0)]
def l_bcast(b, r, dst):
    o = [valu("v_mov_b64_dpp", dst[2*k:2*k + 2], r[2*k:2*k + 2], mods=f"row_newbcast:{b % 3} row_mask:0xf bank_mask:0xf") for k in range(2)]
    for x in o: x.m["dpp"] = True
    return o
def epi_half(h, b, th, rl, tmp, y):
    r0 = Oreg(b, 4*th); w = V(r0.i, 16) if r0.k == "v" else tmp; o = []
    if r0.k == "a": o += [valu("v_accvgpr_read_b32", w[i], A(r0.i + i)) for i in range(16)]
    o += [valu("v_pk_mul_f32", w[2*i:2*i + 2], w[2*i:2*i + 2], rl[2*(i & 1):2*(i & 1) + 2]) for i in range(8)]
    o += [valu("v_cvt_pk_bf16_f32", y[2*r + k], w[8*k + r], w[8*k + 4 + r]) for r in range(4) for k in range(2)]
    o += [ds_write2st64(ow, y[4*k:4*k + 2], y[4*k + 2:4*k + 4], 8*b + 4*th + 2*k, 8*b + 4*th + 2*k + 1, blk(aO, h, b)) for k in range(2)]
    return o

def transition():
    s = seg("trans"); path.append((s, {"J": 15}))
    E(stamp_now(), comment("---- head 0: last PV; switch to head 1"))
    vf = VF15
    F0 = sum(map(int, O_.ps)); assert F0 % 4 == 0 and F0 <= 12 and O_.ps[:4] == "0000" and O_.ps[14] == "0"
    raw0 = V(16, 4)
    def qrd(b): return [ds_read("ds_read_b128", Qreg(b, n), qa[n], b*4096, blk(aQ, 1, b)) for n in range(4) if 4*b + n != F0]
    rc = [negM(4), negM(5)]
    rl = V(72, 4); y = V(76, 8)
    npre = sum(map(int, O_.qs)); assert npre >= 8
    more = piecemeal([[x for k, x in enumerate(q_dma_block(1, b)) if k < 2 or 4*b + k - 2 >= npre] for b in range(npre//4, NB)]
                     + [kv_group(15, d) for d in (1, 2, 3)])
    vr = [vread(15, 0, t, a, vf[t]) for t in range(8) for a in range(2)]
    pv, pst = pv_mfmas(1, vf, True)
    sc = Sched(pv)
    g = 8
    for grp in more(O_.tq):
        for i, x in enumerate(grp):
            if x.kind not in MEM: sc.fix(x, g - 3 if len(grp) - i > 3 else g - 2)
            else: sc.fix(x, g); g += O_.tstep
    sc.add(wait(lgkm=vf[:2]), 4, pst[0] - 1)
    p = sc.seq([wait(vm=blk(aQ, 1, F0//4)), ds_read("ds_read_b128", raw0, qa[0], F0*1024, blk(aQ, 1, F0//4))], 0); wq = sc.add(wait(lgkm=[raw0]), 0, 10, [(p, 1, 6)])
    p = sc.seq(vr[4:8], 0, None, p); sc.add(wait(lgkm=vf[2:4]), 0, pst[1] - 1, [(p, 1, 6)])
    p = sc.seq(vr[8:], 0, None, p); sc.add(wait(lgkm=vf[4:]), 0, pst[2] - 1, [(p, 1, 6)])
    p = sc.seq([kread(15, 1, 1, k, F(4 + k)) for k in range(4)] + qrd(0) + [wait(vm=blk(aQ, 1, 1))] + qrd(1), 24, 46, p)
    sc.fix(wait(lgkm=0), 53); sc.fix(barrier(), 53)
    sc.run()
    lv = l_ops(0, 0, rc[0], V(60)) + l_ops(0, 3, rc[1], V(61)) + [valu("v_add_f32", V(60), V(60), V(61))]; ls = l_flag(0, V(60))
    st = scale_frag(raw0, Qreg(F0//4, 0), V(0, 8), V(8, 4), pk=False)
    rest = sc.pour((lv, 10), (st, wq.gap + 1)); sc.emit(); E(rest); rest = []
    def site(k):
        c = [int(x) for x in O_.osched] + [0]; p0 = sum(c[:k]); o = more(int(O_.tsched[k]) if O_.tsched else O_.tper)
        if c[k]:
            o += [salu("s_mov_b32", sT1, p0*1024), wait(lgkm=[X[(p0 + i) % 4] for i in range(c[k])])]
            o += [vstore(X[(p0 + i) % 4], vlin, sO, sT1, i*1024, O_.late_flags) for i in range(c[k])]
        p1 = p0 + c[k]; assert (p1 + c[k + 1] + 3)//4 <= (k + 1)//2 or not c[k + 1]
        rd = [x for p in range(p1, p1 + c[k + 1]) for x in o_read(aO(0, p), p, X[p % 4])]
        for x in rd: x.m["slip"] = O_.slip
        return o + rd
    first = sm_split(0, O_.ne1)[0]
    def finish(b): return rowmax_ops(b)[1] + delay_cvts([x for bb, x in first if bb == b])
    for b in range(NB):
        E(comment(f"---- switch block {b}"), stamp_now() if O_.probe == 1 else None)
        fs = range(max(F0 + 1, 4*b + 1), min(4*b + 5, 4*NB))
        mf = []; fl = []
        for f in fs:
            m, x = pm(f); mf += m; fl.append(x)
        qk = qk_first(b)
        if b == NB - 1: qk = [qk[k] for k in (0, 1, 2)] + [m for _, m in chain(b, 1, [F(4 + s_) for s_ in range(4)], 0, False)][:3] + [qk[3]]; \
                        qk.append(mfma(Sreg(b, 1), F(7), Qreg(b, 3), Sreg(b, 1)))
        sc = Sched(mf + qk)
        for k, x in enumerate(fl):
            for j, v in enumerate(x): sc.put(4*(k + 1) + j//2, v)
        h0, h1 = epi_half(0, b, 0, rl, V(176, 16), y), epi_half(0, b, 1, rl, V(192, 16), y)
        if O_.tight:
            assert npre >= 16; lt = int(npre < 24 or O_.lt)
            for bb, g0 in {0: [(2, 0), (3, len(mf) + 4)], 1 + lt: [(4, 0)], 2 + lt: [(5, 0)]}.get(b, []):
                if bb != 3: E(wait(vm=blk(aQ, 1, max(bb, 3))))
                for n, x in enumerate(qrd(bb)): sc.put(g0 + n, x)
            if 1 <= b < NB - 1: E(wait(lgkm=[Qreg(b + 1, n) for n in range(4)]))
            acc = [x for x in h0 + h1 if x.m.get("op") == "v_accvgpr_read_b32"]
            mx = rowmax_ops(b - 1)[0] if b else ls[:1]
            left = sc.pour((mx, 0), (acc, 0)); sc.emit()
            E([x for x in left if x not in acc], ls[2:] if b == 0 else None)
            h0, h1 = [[x for x in h if x not in acc or x in left] for h in (h0, h1)]
        else:
            if 1 <= b < NB - 1:
                sc.put(0, wait(vm=blk(aQ, 1, b + 1)))
                for n, x in enumerate(qrd(b + 1)): sc.put(1 + n, x)
                sc.put(11, wait(lgkm=[Qreg(b + 1, n) for n in range(4)]))
            rest = sc.pour((rowmax_ops(b - 1)[0] if b else rest, 0)); sc.emit(); E(rest, ls if b == 0 else None)
        if b == NB - 1: E([kread(15, 2, 0, s_, F(s_)) for s_ in range(4)])
        E(l_bcast(b, rc[b//3], rl), h0, site(2*b), finish(b - 1) if b else None, h1, site(2*b + 1))
    assert more.left() == 0
    E(rowmax_ops(NB - 1)[0][:4] if O_.tight else [rowmax_ops(NB - 1)[0], finish(NB - 1)])
    E(salu("s_mov_b32", sCnt, 1), wait(lgkm=[F(s_) for s_ in range(4)]), stamp_now())
    slip_reads(cur)

def slip_reads(ins):
    out = []; pend = []; n = 0
    for i, x in enumerate(ins):
        if x.m.get("slip"): pend.append(x); n = 0; continue
        assert not (pend and x.kind in ("vst", "dsw"))
        out.append(x)
        if pend and x.kind == "mfma":
            n = -99
            if ins[i + 1].kind not in MEM: out.append(pend.pop(0))
        elif pend and x.kind in VAL:
            n += 1
            if n == 8: out += pend; pend = []
    assert not pend
    ins[:] = out

def endgame():
    s = seg("end"); path.append((s, {"J": 29}))
    E(stamp_now())
    carry = []
    for ps, H in enumerate(([3, 4, 5], [0, 1, 2])):
        E(comment(f"---- pass {ps}"))
        subs = [("Q", 1, 0), ("Q", 1, 1), ("P", 0, 0), ("P", 0, 1), ("Q", 2, 0), ("Q", 2, 1), ("P", 1, 0), ("P", 1, 1), ("P", 2, 0), ("P", 2, 1)]
        FA, FB = [F(k) for k in range(4)], [F(4 + k) for k in range(4)]
        G = [[Qreg(3 + n, k) for k in range(4)] for n in range(3)]; Hh = [[A(176 + 16*n + 4*k, 4) for k in range(4)] for n in range(5)]
        fr = [FA, FB, FA, FB, FA, FB, FA] + G if ps == 0 else [FA, FB] + Hh + G
        mf = []; use = []; cend = {}; cstart = {}; pstart = {}; bstart = {}
        for i, (kind, d, x) in enumerate(subs):
            u = {}
            if kind == "Q":
                for n, b in enumerate(H):
                    cstart[(d, b, x)] = len(mf)
                    for s_, m in chain(b, x, fr[i], negM(b), n & 1): u.setdefault(s_, []).append(len(mf)); mf.append(m)
                    cend[(d, b, x)] = len(mf) - 1
            elif d == 2:
                if x == 0:
                    u2 = {}
                    for n, b in enumerate(H):
                        bstart[b] = len(mf); mf.append(rowsum(1, b))
                        for t in range(8):
                            (u if t < 4 else u2).setdefault(t & 3, []).append(len(mf))
                            mf.append(mfma(Oreg(b, t), Preg(1, b), fr[i + (t >> 2)][t & 3], Oreg(b, t)))
                else: u = u2
            else:
                par = (d + 1) & 1
                if x == 0: pstart[d] = len(mf)
                for hh in range(2):
                    for t, m in pv_pair(par, H if hh == 0 else H[::-1], 4*x + 2*hh, fr[i][2*hh:2*hh + 2], False, H[2*x + hh:2*x + hh + 1]):
                        if t is not None: u.setdefault(t & 3, []).append(len(mf))
                        mf.append(m)
            use.append(u)
        sc = Sched(mf); bar = {}
        if ps == 0:
            for d, g, keys in ((0, 9, [rV(0), rK(2)]), (1, use[4][1][-1], [rV(1), rV(2)])):
                sc.fix(wait(vm=keys), g)
                bar[d] = bar[2] = sc.fix(barrier(), g)
        pcs = [(0, q) for q in late_pieces(2) + late_pieces(3)] if ps == 0 else [(0, q) for q in late_pieces(4)] + carry
        taken = {t.gap + k for t in bar.values() for k in (-1, 0, 1)}
        NX = 7; prev_st = [None]*NX; pst = None; base = None
        for i, (h, q) in enumerate(pcs):
            g = O_.p0g + (len(mf) - 4 - O_.p0g)*i//max(1, len(pcs) - 1) if ps == 0 else int(O_.p1g + (len(mf) - 3 - O_.p1g)*(i/(len(pcs) - 1))**O_.p1e)
            while g in taken or g - 1 in taken: g += 1
            off = h*98304 + q*1024; xr = X[i % NX]
            if base is None or not 0 <= off - base < 4096:
                base = off; sc.add(salu("s_mov_b32", sSide, base), 0, g - 1, [(pst, 1, 1)])
            if ps or i >= NPRE:
                r = sc.seq(o_read(aO(h, q), q, xr), g - 60, g - 8, prev_st[i % NX])
                sc.add(wait(lgkm=[xr]), 0, g - 1, [(r, 1, 7)])
            pst = prev_st[i % NX] = sc.fix(vstore(xr, vlin, sO, sSide, off - base, O_.h0_flags if h else O_.late_flags), g)
        prev = None
        for i, (kind, d, x) in enumerate(subs):
            if i == 0 or (ps == 1 and (i == 1 or i >= 7)): continue
            tight = ps == 0 and i < 7
            for k in range(4):
                lo = (use[i - 2][k][-1] if i >= 2 else 0) if tight else (cend[(2, 3 + i - 7, 1)] if ps == 0 else 0)
                rds = [kread(29, d, x, k, fr[i][k])] if kind == "Q" else [vread(29, d, 4*x + k, a, fr[i][k]) for a in range(2)]
                bp = bar.get(d if kind == "P" else (0 if d == 2 else None))
                for r in rds: prev = sc.add(r, lo, None, [(prev, 1, 1), (bp, 1, 1)])
                if tight and kind == "P" and k & 1: sc.add(wait(lgkm=fr[i][k - 1:k + 1]), 0, min(use[i][k - 1][0], use[i][k][0]) - 1, [(prev, 1, 6)])
            if not (tight and kind == "P"): sc.add(wait(lgkm=fr[i]), 0, use[i][0][0] - 1, [(prev, 1, 6)])
        if ps == 0:
            for a in range(2):
                for k in range(4): prev = sc.add(kread(29, 1, a, k, F(4*a + k)), use[6][k][-1], None, [(prev, 1, 1)])
        grp = [([x for bb, x in sm_split(1, NE_A, END_ORDER)[1] if bb == b], 0, cstart[(1, b, 1)] - 1) for b in H if b >= O_.tl0]
        for a in range(2):
            for k, b in enumerate(H): grp.append((sm_ops(0, b, a), cend[(1, b, a)] + 4, min(pstart[1] - 2 + 2*k, cstart[(2, b, a)] - 1)))
        sc.sm(grp)
        order = [(H[0], 0), (H[1], 0), (H[0], 1), (H[2], 0), (H[1], 1), (H[2], 1)]
        sc.sm([(sm_ops(1, b, a), cend[(2, b, a)] + 4, bstart[b] - 2) for b, a in order]
              + ([(sm_ops(1, b, 1), 100, len(mf) - 1) for b in range(O_.tl0)] if ps == 0 else []), 2.4)
        sc.run(); sc.polish(200000)
        rc, rl, t1 = negM(H[0]), negM(H[1]), negM(H[2])[0]
        rest = sc.pour((l_ops(1, H[0], rc, t1), bstart[H[2]] + 4)); sc.emit()
        E(rest, l_flag(1, t1), stamp_now(), comment("---- epilogue"))
        dsts = [X[:4], [F(4 + i) for i in range(4)]]
        pend = []; rds = []
        for k, b in enumerate(H):
            E(l_bcast(b, rc, rl))
            for th in range(2):
                ep = epi_half(1, b, th, rl, V(24, 16), V(40, 8))
                if rds and th == 0:
                    n = O_.rdp
                    for q in range(0, 4, O_.rdn): E(ep[:n], rds[q:q + O_.rdn]); ep = ep[n:]
                    rds = []
                E(ep)
                E(pend[:2]); del pend[:2]
            if ps == 0 and k > 0: carry += [(1, 4*b + i) for i in range(4)]; continue
            d_ = dsts[k & 1]
            rds = [o_read(aO(1, 4*b + i), 4*b + i, d_[i]) for i in range(4)]
            if not O_.rdp or ps == 1: E(rds); rds = []
            sts = [vstore(d_[i], vlin, sO, sSide, i*1024, (O_.last_flags if k >= O_.lastk else O_.fin_flags) if ps else O_.h0_flags) for i in range(4)]
            pre = [salu("s_mov_b32", sSide, 98304 + b*4096), wait(lgkm=d_)]
            pend = [pre + [sts[0]], None, sts[1], None, sts[2], None, sts[3]] if ps == 0 else [pre + [sts[0]], sts[1], sts[2], sts[3]]
        E(pend, wait(lgkm=0), stamp_now())

def slow_path():
    sH, sB, sI, sKo, sQo = S(4), S(5), S(6), S(7), S(8)
    Qf = [V(4*s, 4) for s in range(4)]; Kf = [V(16 + 4*i, 4) for i in range(8)]; St = [V(48, 4), V(52, 4)]; Pf = V(56, 4)
    nm = V(60, 4); Vf = V(64, 4); Of = [V(68 + 4*t, 4) for t in range(8)]; L = V(100, 4); w = V(104, 8)
    ones = V(120, 4)
    vrow, vk, vv, vtr, vst_, t0, t1 = V(112), V(113), V(114), V(115), V(116), V(117), V(118)
    def S_(name, J=0):
        s = seg(name); return s
    s0 = S_("slow0")
    E(comment("---- fallback: a row sum left the safe range, redo this wave's rows with the true row max"),
      label("L_slow"), wait(vm=0, lgkm=0),
      valu("v_mbcnt_lo_u32_b32", t0, -1, 0), valu("v_mbcnt_hi_u32_b32", t0, -1, t0), valu("v_lshlrev_b32", vlin, 4, t0),
      [valu("v_mov_b32", ones[r], "0x3f803f80") for r in range(4)],
      valu("v_bfe_u32", t0, vlin, 4, 4), valu("v_lshrrev_b32", t1, 8, vlin),
      valu("v_lshlrev_b32", vrow, 8, t0), valu("v_lshl_add_u32", vst_, t1, 3, vrow), valu("v_lshl_add_u32", vrow, t1, 4, vrow),
      valu("v_lshrrev_b32", vtr, 2, t0), valu("v_lshl_add_u32", vtr, t1, 2, vtr), valu("v_lshlrev_b32", vtr, 8, vtr),
      valu("v_and_b32", t0, 3, t0), valu("v_lshl_add_u32", vtr, t0, 3, vtr), valu("v_add_u32", vtr, sStg, vtr),
      salu("s_mov_b32", sH, 0))
    s1 = S_("slow_head")
    E(label("L_sl_head"), salu("s_lshr_b32", sT0, sFlag, sH), salu("s_and_b32", sT0, sT0, 1), raw("s_cbranch_scc0 L_sl_next", "salu", {"scc"}),
      salu("s_lshl_b32", sKo, sH, 17), salu("s_mul_i32", sQo, sH, 98304), salu("s_mov_b32", sB, 0))
    s2 = S_("slow_blk")
    E(label("L_sl_blk"))
    for s in range(4): E(vload(Kf[s], vrow, sQ, sQo, 64*s))
    E(wait(vm=0))
    for s in range(4): E(scale_frag(Kf[s], Qf[s], w, None))
    E(valu("v_mov_b32", nm[0], "0xff800000"), valu("v_add_u32", vk, sKo, vrow), salu("s_mov_b32", sI, 32))
    s3 = S_("slow_p1")
    E(label("L_sl_p1"))
    for s in range(4): E(gload(Kf[s], vk, sKb, 64*s))
    E(valu("v_add_u32", vk, 4096, vk), wait(vm=0))
    for s in range(4): E(mfma(St[0], Kf[s], Qf[s], 0 if s == 0 else St[0]))
    E(salu("s_sub_u32", sI, sI, 1), scmp("s_cmp_lg_u32", sI, 0), nop(7),
      valu("v_max3_f32", nm[0], nm[0], St[0][0], St[0][1]), valu("v_max3_f32", nm[0], nm[0], St[0][2], St[0][3]),
      raw("s_cbranch_scc1 L_sl_p1", "salu", {"scc"}))
    s4 = S_("slow_mid")
    E(xlane_max(nm[0], nm[1]), [valu("v_sub_f32", nm[r], 0, nm[0]) for r in (1, 2, 3, 0)])
    for r in range(36): E(valu("v_mov_b32", V(68 + r), 0))
    E(valu("v_add_u32", vk, sKo, vrow), valu("v_add_u32", vv, sKo, vlin), valu("v_add_u32", vv, 1024 + 16384, vv), salu("s_mov_b32", sI, 16))
    s5 = S_("slow_p2")
    E(label("L_sl_p2"))
    key = (("stg", "slow"), ("Vs",), False)
    for half in range(2):
        E(salu("s_add_u32", "m0", sStg, 4096*half))
        for s in range(4): E(gload(Kf[4*half + s], vk, sKb, 64*s))
        for k in range(4): E(gdma(vv, sVb, 1024*k, key, ""))
        E(valu("v_add_u32", vk, 4096, vk), valu("v_add_u32", vv, 4096, vv))
    E(wait(vm=0))
    for a in range(2):
        for s in range(4): E(mfma(St[a], Kf[4*a + s], Qf[s], nm if s == 0 else St[a]))
    E(nop(7))
    for r in range(8): E(valu("v_exp_f32", V(48 + r), V(48 + r)))
    for r in range(4): E(valu("v_cvt_pk_bf16_f32", Pf[r], V(48 + 2*r), V(49 + 2*r)))
    E(mfma(L, ones, Pf, L))
    for t in range(8):
        for a in range(2): E(ds_read("ds_read_b64_tr_b16", Vf[2*a:2*a + 2], vtr, a*4096 + 32*t, key))
        E(wait(lgkm=0), mfma(Of[t], Vf, Pf, Of[t]), nop(1))
    E(salu("s_sub_u32", sI, sI, 1), scmp("s_cmp_lg_u32", sI, 0), raw("s_cbranch_scc1 L_sl_p2", "salu", {"scc"}))
    s6 = S_("slow_epi")
    E(nop(7), valu("v_rcp_f32", t0, L[0]), nop(0))
    for t in range(8):
        for r in range(4): E(valu("v_mul_f32", Of[t][r], t0, Of[t][r]))
        E(valu("v_cvt_pk_bf16_f32", Of[t][0], Of[t][0], Of[t][1]), valu("v_cvt_pk_bf16_f32", Of[t][1], Of[t][2], Of[t][3]),
          vstore(Of[t][0:2], vst_, sO, sQo, 32*t, "", "buffer_store_dwordx2"))
    E(salu("s_add_u32", sQo, sQo, 4096), salu("s_add_u32", sB, sB, 1), scmp("s_cmp_lt_u32", sB, NB), raw("s_cbranch_scc1 L_sl_blk", "salu", {"scc"}))
    s7 = S_("slow_next")
    E(label("L_sl_next"), salu("s_add_u32", sH, sH, 1), scmp("s_cmp_lt_u32", sH, 2), raw("s_cbranch_scc1 L_sl_head", "salu", {"scc"}))
    blkp = [s2, s3, s3, s4, s5, s5, s6]
    path2.extend((x, {"J": 0}) for x in [s0, s1] + blkp + blkp + [s7, s1] + blkp + [s7])

def finish():
    if O_.diag:
        a, b = [int(x) for x in O_.diag.split(":")]
        E(wait(vm=0), raw("s_memrealtime s[42:43]", "smem", (), rs(S(42, 2))), wait(lgkm=0), salu("s_mov_b32", S(47), S(42)),
          salu("s_sub_u32", sT0, S(STAMP0 + b), S(STAMP0 + a)), salu("s_lshr_b32", sT0, sT0, 3 if O_.stamps == 1 else 0), salu("s_lshl_b32", sT0, sT0, O_.amp),
          salu("s_add_u32", sT0, sT0, 7000),
          label("L_spin"), raw("s_memrealtime s[42:43]", "smem", (), rs(S(42, 2))), wait(lgkm=0),
          salu("s_sub_u32", S(42), S(42), S(46)), scmp("s_cmp_lt_u32", S(42), sT0), raw("s_cbranch_scc1 L_spin", "salu", {"scc"}))
    elif O_.stamps:
        E(wait(vm=0), raw("s_memrealtime s[42:43]", "smem", (), rs(S(42, 2))), wait(lgkm=0), salu("s_mov_b32", S(47), S(42)))
        E(salu("s_lshl_b32", sT0, S(2), 2), salu("s_add_u32", sT0, sT0, sW), salu("s_lshl_b32", sT0, sT0, 8))
        E(valu("v_mov_b32", V(1), sT0))
        for k in range(nstamp[0] + 2):
            E(valu("v_mov_b32", V(2), S(46 + k)),
              Inst(f"global_store_dword v1, v2, s[44:45] offset:{4*k}", "vst", rs(V(1), V(2), S(44, 2)), (), data=set()), nop(1))
    if O_.stamps and not O_.diag:
        E(raw("s_getreg_b32 s42, hwreg(HW_REG_XCC_ID)", "salu", (), rs(S(42))), valu("v_mov_b32", V(1), sT0), valu("v_mov_b32", V(2), S(42)),
          Inst("global_store_dword v1, v2, s[44:45] offset:252", "vst", rs(V(1), V(2), S(44, 2)), (), data=set()))
    E(scmp("s_cmp_eq_u32", sFlag, 0), raw("s_cbranch_scc1 L_end", "salu", {"scc"}), label("L_fast_end"))

def build():
    s = seg("start"); path.append((s, {"J": 0})); startup()
    for J in range(4): straight(J)
    if O_.probe == 4: E(stamp_now())
    if not O_.unr: loop4("A", 4, 2)
    for J in range(4 if O_.unr else 12, 15): straight(J)
    transition()
    straight(16)
    loop4("M", 17, 2)
    for J in range(25, 29): straight(J, stamp_now() if J == 28 or (J == 26 and O_.probe == 4) else None)
    endgame()
    finish()
    if O_.slow: slow_path()
    seg("exit"); E(label("L_end"))
    def trace(): return [(i, mkctx(c)) for sidx, c in path + path2 for i in segs[sidx][1]]
    for rnd in range(5):
        fix = {}
        resolve_and_check(trace(), fix=fix)
        for sg in segs:
            new = []
            for i in sg[1]:
                if i.kind == "wait" and i.m["nvm"] in (None, 63) and i.m["nlg"] in (None, 15): fix[0] = 1; continue
                if id(i) in fix: new.append(nop(fix[id(i)] - 1))
                new.append(i)
            sg[1][:] = new
        if not fix: break
    resolve_and_check(trace(), verbose=True)
    if O_.stamps:
        tr = [i for sidx, c in path for i in segs[sidx][1]]; cuts = [k for k, i in enumerate(tr) if i.kind == "smem" and "s[42:43]" in i.text]
        print("  est between stamps:", [cost_estimate(tr[a:b]) for a, b in zip(cuts, cuts[1:])])
    for name, ins in segs:
        if not name.startswith("slow"): print(f"  seg {name:8s} insts {len(ins):5d} est cycles {cost_estimate(ins):6d} nops {sum(1 for i in ins if i.kind == 'nop')}")

HEAD = """; MHA forward, B=16 H=32 Sq=384 Sk=512 D=128, bf16 in/out.  Written with the author's own generator script.
; K/V stream exactly once through a 4-slot LDS ring (LDS-DMA, one barrier per tile); Q and O pass through a per-wave
; staging area (O is transposed there so that whole 128-byte lines are stored).
; Softmax: Q is pre-scaled by log2(e)/sqrt(D).  Each row's max over its first 32 keys is subtracted through the MFMA
; C operand (so every row sum is >= 1, nothing can underflow); the row sums come from an MFMA against a ones column.
; Guard: a row sum that is NaN or >= 2^64 flags the wave, which then redoes its rows with the true row max (L_slow).
; @launch grid=(256,1,1) block=(256,1,1) lds=163840
.amdgcn_target "amdgcn-amd-amdhsa--gfx950"
.text
.globl standalone__mha_softmax__near_ridge_kernel
.p2align 8
.type standalone__mha_softmax__near_ridge_kernel,@function
standalone__mha_softmax__near_ridge_kernel:
"""
TAIL = """    s_endpgm
.section .rodata,"a"
.p2align 6
.amdhsa_kernel standalone__mha_softmax__near_ridge_kernel
  .amdhsa_next_free_vgpr 512
  .amdhsa_next_free_sgpr 102
  .amdhsa_accum_offset 256
  .amdhsa_group_segment_fixed_size 0
  .amdhsa_kernarg_size 48
  .amdhsa_user_sgpr_count 2
  .amdhsa_user_sgpr_kernarg_segment_ptr 1
  .amdhsa_system_sgpr_workgroup_id_x 1
.end_amdhsa_kernel
"""
def insert_pads(text):
    import subprocess, re, tempfile, os
    def offsets(npads):
        d = tempfile.mkdtemp(); t = text()
        t = t.replace("L_padret0:", "L_padret0:\n" + "".join(f"L_pad{k}:\n" for k in range(npads + 1, 40)))
        open(d + "/a.s", "w").write(t)
        subprocess.run(["clang", "-x", "assembler", "-target", "amdgcn-amd-amdhsa", "-mcpu=gfx950", "-c", d + "/a.s", "-o", d + "/a.o"], check=True)
        dis = subprocess.run(["llvm-objdump", "-d", "--mcpu=gfx950", d + "/a.o"], capture_output=True, text=True).stdout
        sym = subprocess.run(["llvm-readelf", "-s", d + "/a.o"], capture_output=True, text=True).stdout
        main = int(re.search(r"([0-9a-f]{16}) .* L_main$", sym, re.M).group(1), 16)
        ad = [(int(m.group(2), 16), m.group(1)) for m in re.finditer(r"^\s+(\S+).*// ([0-9A-F]{12}):", dis, re.M)]
        ad = [x for x in ad if x[0] >= main]
        flat = [(sg, k) for sg in segs for k in range(len(sg[1]))]
        flat = flat[[i for i, (sg, k) in enumerate(flat) if sg[1][k].text == "L_main:"][0]:]
        o = []; j = 0
        for sg, k in flat:
            x = sg[1][k]
            if x.kind == "label":
                if x.text == "L_fast_end:": break
                if x.text.startswith(".p2align") and ad[j][0] % 8: j += 1
                continue
            assert ad[j][1].startswith(x.text.split()[0][:12]), (ad[j], x.text)
            o.append((ad[j][0] - ad[0][0], sg, k)); j += 1
        return o
    page = 1; pads = []
    while True:
        off = offsets(page - 1)
        cand = [n for n, (a, sg, k) in enumerate(off) if 4096*page <= a <= 4096*page + 56]
        if not cand: break
        def score(n):
            a, sg, k = off[n]; lo = max(0, k - 8); w = sg[1][lo:k + 8]
            return cost_estimate(w[:k - lo] + [raw("pad")] + w[k - lo:]) - cost_estimate(w)
        n = min(cand, key=score); _, sg, k = off[n]
        p = raw(f"s_cbranch_vccz L_padret{(page - 1)//4}"); pads.append(p)
        sg[1][k:k] = [label(f"L_pad{page}"), p]
        page += 1
    assert (page + 2)//4 == len(O_.vis), page
    for k in range(page, 4*len(O_.vis) + 1):
        for _, ins in segs:
            for x in ins:
                if x.text.endswith(f" L_pad{k}"): x.text = x.text.replace(f"L_pad{k}", f"L_padret{(k - 1)//4}")
    z = True
    for _, ins in segs:
        for x in ins:
            if x.text.startswith("s_mov_b64 vcc"): z = x.text.endswith(" 0")
            assert not (z and "vccz" in x.text) and not ("vcc" in x.wr and not z)
    print(f"  {page - 1} page pads")

if __name__ == "__main__":
    out = sys.argv[1]
    for a in sys.argv[2:]:
        k, v = a.split("=")
        setattr(O_, k, type(getattr(O_, k))(v))
    build()
    def text(): return HEAD + "\n".join((i.text if i.kind == "label" else "    " + i.text) for _, ins in segs for i in ins) + "\n" + TAIL
    if O_.pads: insert_pads(text)
    open(out, "w").write(text())
    import subprocess
    r = subprocess.run([sys.executable, "cdna_unwritten_srd_check.py", out], capture_output=True, text=True)
    print("  check:", r.stdout.strip()[-300:], r.stderr.strip()[-300:])
```

```python
class Reg:
    __slots__ = ("k", "i", "n")
    def __init__(s, k, i, n=1): s.k, s.i, s.n = k, i, n
    def __str__(s): return f"{s.k}{s.i}" if s.n == 1 else f"{s.k}[{s.i}:{s.i+s.n-1}]"
    __repr__ = __str__
    def set(s): return {f"{s.k}{s.i+j}" for j in range(s.n)}
    def __getitem__(s, j):
        if isinstance(j, slice):
            a = j.start or 0; b = s.n if j.stop is None else j.stop
            assert 0 <= a < b <= s.n
            return Reg(s.k, s.i + a, b - a)
        assert 0 <= j < s.n
        return Reg(s.k, s.i + j, 1)
def V(i, n=1): return Reg("v", i, n)
def A(i, n=1): return Reg("a", i, n)
def S(i, n=1): return Reg("s", i, n)
def rs(*xs):
    o = set()
    for x in xs:
        if isinstance(x, Reg): o |= x.set()
        elif isinstance(x, str) and x in ("m0", "vcc", "scc", "exec"): o.add(x)
    return o

class Inst:
    def __init__(s, text, kind, rd=(), wr=(), **m):
        s.text, s.kind, s.rd, s.wr, s.m = text, kind, set(rd), set(wr), m
    def __repr__(s): return s.text

TRANS = ("v_exp_f32", "v_rcp_f32", "v_log_f32", "v_rsq_f32", "v_sqrt_f32")
def valu(op, d, *src, mods="", rmw=False, extra_rd=(), extra_wr=()):
    t = f"{op} {d}, " + ", ".join(str(x) for x in src) + (" " + mods if mods else "")
    kind = "trans" if op in TRANS else "valu"
    rd = rs(*src) | set(extra_rd)
    if rmw: rd |= rs(d)
    return Inst(t, kind, rd, rs(d) | set(extra_wr), op=op)
def swap(op, x, y):
    return Inst(f"{op} {x}, {y}", "valu", rs(x, y), rs(x, y), op=op, perm=True)
def mfma(d, a, b, c, big=False):
    op = "v_mfma_f32_32x32x16_bf16" if big else "v_mfma_f32_16x16x32_bf16"
    assert d.n == (16 if big else 4) and a.n == 4 and b.n == 4
    if isinstance(c, Reg): assert c.k == d.k and c.n == d.n
    return Inst(f"{op} {d}, {a}, {b}, {c}", "mfma", rs(a, b, c), rs(d), big=big, d=str(d), c=str(c),
                ab=rs(a, b), cs=rs(c))
def salu(op, d, *src):
    t = f"{op} {d}" + "".join(f", {x}" for x in src)
    wr = rs(d)
    if op not in ("s_mov_b32", "s_mov_b64", "s_mul_i32", "s_getpc_b64", "s_cselect_b32", "s_mul_hi_u32"): wr = wr | {"scc"}
    rd = rs(*src)
    if op in ("s_addc_u32", "s_subb_u32", "s_cselect_b32"): rd.add("scc")
    return Inst(t, "salu", rd, wr)
def scmp(op, a, b): return Inst(f"{op} {a}, {b}", "salu", rs(a, b), {"scc"})
def raw(text, kind="salu", rd=(), wr=(), **m): return Inst(text, kind, rd, wr, **m)
def nop(n): return Inst(f"s_nop {n}", "nop", w=n + 1)
def label(n): return Inst(f"{n}:", "label")
def comment(t): return Inst(f"; {t}", "label")
def ds_read(op, d, addr, off, reg=None):
    assert 0 <= off < 65536
    return Inst(f"{op} {d}, {addr}" + (f" offset:{off}" if off else ""), "dsr", rs(addr), rs(d), reg=reg)
def ds_write(op, addr, data, off, reg=None):
    assert 0 <= off < 65536
    return Inst(f"{op} {addr}, {data}" + (f" offset:{off}" if off else ""), "dsw", rs(addr, data), (), reg=reg)
def ds_write2st64(addr, d0, d1, o0, o1, reg=None):
    assert 0 <= o0 < 256 and 0 <= o1 < 256
    return Inst(f"ds_write2st64_b64 {addr}, {d0}, {d1} offset0:{o0} offset1:{o1}", "dsw", rs(addr, d0, d1), (), reg=reg, wide=True)
def dma(voff, srd, soff, imm, reg, flags="nt"):
    assert 0 <= imm < 4096
    return Inst(f"buffer_load_dwordx4 {voff}, {srd}, {soff} offen" + (f" offset:{imm}" if imm else "") + f" {flags} lds",
                "dma", rs(voff, srd, soff, "m0"), (), reg=reg)
def gdma(voff, base, imm, reg, flags="nt"):
    assert 0 <= imm < 4096
    return Inst(f"global_load_lds_dwordx4 {voff}, {base}" + (f" offset:{imm}" if imm else "") + f" {flags}",
                "dma", rs(voff, base, "m0"), (), reg=reg, glob=True)
def gload(d, voff, base, imm):
    return Inst(f"global_load_dwordx4 {d}, {voff}, {base}" + (f" offset:{imm}" if imm else ""), "vld", rs(voff, base), rs(d))
def vload(d, voff, srd, soff, imm, flags=""):
    return Inst(f"buffer_load_dwordx4 {d}, {voff}, {srd}, {soff} offen" + (f" offset:{imm}" if imm else "") + f" {flags}",
                "vld", rs(voff, srd, soff), rs(d))
def vstore(data, voff, srd, soff, imm, flags="", op="buffer_store_dwordx4"):
    assert 0 <= imm < 4096
    return Inst(f"{op} {data}, {voff}, {srd}, {soff} offen" + (f" offset:{imm}" if imm else "") + f" {flags}",
                "vst", rs(data, voff, srd, soff), (), data=rs(data))
def wait(vm=None, lgkm=None):
    return Inst("s_waitcnt ?", "wait", vm=vm, lgkm=lgkm)
def barrier(): return Inst("s_barrier", "barrier")

class CheckError(Exception): pass

def resolve_and_check(trace, verbose=False, fix=None, frozen=False):
    def absreg(inst, ctx):
        r = inst.m.get("reg")
        return None if r is None else ctx(r)
    for inst, ctx in trace:
        if inst.kind == "wait" and not frozen: inst.m["nvm"] = None; inst.m["nlg"] = None
        if inst.kind == "wait" and frozen and "nvm" not in inst.m:
            inst.m["nvm"], inst.m["nlg"] = inst.m["vm"], inst.m["lgkm"]
            assert all(x is None or isinstance(x, int) for x in (inst.m["nvm"], inst.m["nlg"]))
    for rnd in range(0 if frozen else 2):
        vq, lq = [], []
        for inst, ctx in trace:
            k = inst.kind
            if k in ("dma", "vld", "vst"): vq.append((inst, absreg(inst, ctx)))
            elif k in ("dsr", "dsw"): lq.append(inst)
            elif k == "smem": lq.append(inst); lq.append(inst)
            elif k == "wait":
                vm, lg = inst.m["vm"], inst.m["lgkm"]
                if vm is not None:
                    if isinstance(vm, int): n = vm
                    else:
                        keys = [ctx(x) for x in vm if not isinstance(x, Reg)]
                        regs = rs(*[x for x in vm if isinstance(x, Reg)])
                        n = 63
                        for idx, (q, ar) in enumerate(vq):
                            if (ar is not None and ar in keys) or (q.wr & regs): n = min(n, 62, len(vq) - 1 - idx)
                    o = inst.m["nvm"]; inst.m["nvm"] = n if o is None else min(o, n)
                    n = inst.m["nvm"]
                    if len(vq) > n: vq = vq[len(vq) - n:]
                if lg is not None:
                    if isinstance(lg, int): n = lg
                    else:
                        regs = rs(*lg); n = 15
                        for idx, q in enumerate(lq):
                            if q.wr & regs: n = min(n, 14, len(lq) - 1 - idx)
                        if any(q.kind == "smem" for q in lq): n = 0
                    o = inst.m["nlg"]; inst.m["nlg"] = n if o is None else min(o, n)
                    n = inst.m["nlg"]
                    if len(lq) > n: lq = lq[len(lq) - n:]
    for inst, ctx in trace:
        if inst.kind == "wait":
            p = []
            if inst.m["nvm"] is not None: p.append(f"vmcnt({inst.m['nvm']})")
            if inst.m["nlg"] is not None: p.append(f"lgkmcnt({inst.m['nlg']})")
            inst.text = "s_waitcnt " + " ".join(p)
    errs = []
    def err(i, msg): errs.append(f"[{i}] {trace[i][0].text}: {msg}")
    vq, lq = [], []
    region = {}
    epoch = 0
    hist = []
    pos = 0
    maxv = maxl = 0
    for i, (inst, ctx) in enumerate(trace):
        k = inst.kind
        if k == "label": continue
        touched = inst.rd | inst.wr
        for q in lq:
            if q[0].wr & touched: err(i, f"touches pending lgkm dest of '{q[0].text}'")
        for q in vq:
            if q[0].wr & touched: err(i, f"touches pending vm dest of '{q[0].text}'")
        for (pp, p) in reversed(hist):
            d = pos - pp
            if d > 20: break
            need = 0; why = ""
            pk = p.kind
            if pk in ("valu", "trans"):
                vw = {r for r in p.wr if r[0] in "va" and r != "vcc"}
                sw = {r for r in p.wr if r[0] == "s" or r == "vcc"} - {"scc"}
                if k == "mfma" and vw & inst.rd: need, why = 2, "valu->mfma"
                if k in ("valu", "trans") and pk == "trans" and vw & inst.rd: need, why = max(need, 1), "trans->valu"
                if (inst.m.get("perm") or inst.m.get("dpp")) and vw & inst.rd: need, why = max(need, 2), "valu->permlane/dpp"
                if inst.m.get("op") in ("v_readfirstlane_b32", "v_readlane_b32") and vw & inst.rd: need, why = max(need, 1), "valu->readlane"
                if k in ("valu", "trans") and sw & inst.rd: need, why = max(need, 2), "valu sgpr->valu"
                if k in ("dma", "vld", "vst") and sw & inst.rd: need, why = max(need, 5), "valu sgpr->vmem"
                if "exec" in p.wr and k == "mfma": need, why = max(need, 4), "exec->mfma"
            if pk == "mfma":
                big = p.m["big"]
                if k == "mfma":
                    if p.wr & inst.m["ab"]: need, why = (12 if big else 8), "mfma D->AB"
                    if p.wr & inst.m["cs"] and not (p.m["d"] == inst.m["c"] and big == inst.m["big"]):
                        need, why = max(need, 10 if big else 6), "mfma D->C overlap"
                    if p.wr & inst.wr and not (p.m["d"] == inst.m["c"] and big == inst.m["big"]) and big != inst.m["big"]:
                        need, why = max(need, 10), "mfma WAW shape"
                elif k in ("valu", "trans", "dsr", "dsw", "dma", "vld", "vst"):
                    if p.wr & touched: need, why = (12 if big else 8), "mfma D->other"
                    if p.m["cs"] & inst.wr: need, why = max(need, 7 if big else 3), "mfma C WAR"
            if pk == "salu" and "m0" in p.wr and k == "dma": need, why = 1, "m0->dma"
            if pk == "vst" and p.m["data"] & inst.wr: need, why = 2, "store data WAR"
            if need > d:
                if fix is not None: fix[id(inst)] = max(fix.get(id(inst), 0), need - d)
                else: err(i, f"hazard {why} after '{p.text}': have {d} need {need}")
        ar = absreg(inst, ctx)
        if k == "dma":
            phys, content, shared = ar
            st = region.setdefault(phys, dict(content=None, pend=0, vis=True, rd_out=0, rd_epoch=-1))
            if st["content"] != content:
                if st["rd_out"]: err(i, f"DMA into {phys} with reads outstanding")
                if shared and st["rd_epoch"] >= epoch: err(i, f"DMA into {phys}: last reads not separated by a barrier")
                if st["pend"]: err(i, f"DMA into {phys} over pending DMA of other content")
            st["content"] = content; st["pend"] += 1; st["vis"] = False; st["shared"] = shared
            vq.append((inst, phys))
        elif k in ("vld", "vst"): vq.append((inst, None))
        elif k == "dsr":
            ph = []
            if ar is not None:
                for (phys, content, shared) in (ar if isinstance(ar, list) else [ar]):
                    st = region.get(phys)
                    if st is None or st["content"] != content: err(i, f"reads {phys} expecting {content}, has {st and st['content']}")
                    elif st["pend"] or not st["vis"]: err(i, f"reads {phys} before visible (pend={st['pend']})")
                    if st is not None: st["rd_out"] += 1; ph.append(phys)
            lq.append((inst, ph))
        elif k == "dsw":
            if ar is not None:
                for (phys, content, shared) in (ar if isinstance(ar, list) else [ar]):
                    st = region.setdefault(phys, dict(content=None, pend=0, vis=True, rd_out=0, rd_epoch=-1))
                    assert not shared
                    if st["pend"]: err(i, f"ds_write into {phys} with DMA pending")
                    st["content"] = content; st["vis"] = True; st["shared"] = False
            lq.append((inst, []))
        elif k == "smem": lq.append((inst, [])); lq.append((inst, []))
        elif k == "wait":
            n = inst.m["nvm"]
            if n is not None:
                while len(vq) > n:
                    q, phys = vq.pop(0)
                    if phys is not None:
                        st = region[phys]; st["pend"] -= 1
                        if st["pend"] == 0 and not st["shared"]: st["vis"] = True
            n = inst.m["nlg"]
            if n is not None:
                if n > 0 and any(q[0].kind == "smem" for q in lq): err(i, "counted lgkm wait with smem outstanding")
                while len(lq) > n:
                    q, ph = lq.pop(0)
                    for phys in ph:
                        region[phys]["rd_out"] -= 1; region[phys]["rd_epoch"] = epoch
        elif k == "barrier":
            epoch += 1
            for st in region.values():
                if st["pend"] == 0: st["vis"] = True
        maxv = max(maxv, len(vq)); maxl = max(maxl, len(lq))
        if len(vq) > 63: err(i, "vmcnt overflow")
        w = inst.m.get("w", 1)
        pos += w
        hist.append((pos, inst))
        if len(hist) > 40: hist.pop(0)
    if verbose: print(f"trace {len(trace)} insts, max vm {maxv}, max lgkm {maxl}, barriers {epoch}")
    if errs:
        raise CheckError("\n".join(errs[:8]) + f"\n({len(errs)} errors)")


def cost_estimate(insts):
    t = 0; mf_free = 0; prev = None; valu_end = -99
    for x in insts:
        k = x.kind
        if k == "label": continue
        if k == "mfma":
            t = max(t, mf_free); mf_free = t + (32 if x.m["big"] else 16); t += 8
        elif k == "trans" or x.m.get("perm"): t += 8; valu_end = t
        elif k == "nop": t += 4 * x.m["w"]
        elif k in ("dsr", "dsw"):
            t = max(t, valu_end + 8) + (8 if prev == "dsr" else 4) + ((16 if x.m.get("wide") else 8) if k == "dsw" else 0)
        elif k in ("dma", "vld", "vst"):
            t = max(t, valu_end + 12) + (24 if k == "vst" else (8 if x.m.get("glob") else 12))
        elif k == "barrier": t += 30
        elif k == "valu":
            if x.m.get("op", "").startswith("v_pk_"): t = max(t, mf_free + 4)
            t += 4; valu_end = t
        else: t += 4
        prev = k
    return max(t, mf_free)
```

```python
import sys, math, struct, random
from ir import *

class Opt:
    stamps = 0; diag = ""; probe = 0; force = 0
    late_flags = "sc1"; h0_flags = "sc1"; fin_flags = "sc1"; fq = "nt"; fk = "nt"; fv = "nt"
    n0 = 14
    lead0 = "90,90,100,110,123,123,123,123,123,123,123,123,123,123,145"
    qs = "001122222222104"
    tq = 4; tstep = 12; tper = 2
    olate = "25540"
    unr = 0
    dsp1 = 5; jsp = 27
    lazy = 2; lk = 3; lw = 0; l4 = 0; xpar = 0
    rdp = 8; rdn = 4; slip = 1
    last_flags = "sc1"; lastk = 2
    amp = 0
    pfs = 4; early = 1; vis = "eee"
    oe = "00"; om = 2
    lt = 1; gq14 = 27
    psp = 2; opt = 1; nea = 40
    g11 = 56; g12 = 16; dsp = 5; p0g = 6; p1g = 10; p1e = 1.0; tl0 = 1
    osched = "000000220000"; tsched = "111222000000"
    ne1 = 36
    pads = 2
    mq0 = 0
    tight = 1
    ps = "000011111111000"
    pvo = "bs2"; qks = 1; slow = 1
O_ = Opt()

NB = 6
def f32bits(x): return struct.unpack("<I", struct.pack("<f", x))[0]
CSCALE = f32bits(math.log2(math.e) / math.sqrt(128.0))
THRESH = f32bits(2.0 ** 64)
def bf16(x):
    u = f32bits(x); return (u + 0x7fff + ((u >> 16) & 1)) >> 16
C_HI = bf16(math.log2(math.e) / math.sqrt(128.0))
C_LO = bf16(math.log2(math.e) / math.sqrt(128.0) - struct.unpack("<f", struct.pack("<I", C_HI << 16))[0])

def Sreg(b, a): return V(8*b + 4*a, 4)
def Preg(par, b): return V(48 + 24*par + 4*b, 4)
def negM(b): return V(96 + 4*b, 4)
kaddr = [V(120 + s) for s in range(4)]
vaddr = [V(124 + t) for t in range(8)]
vkv = V(132); vsd0 = V(133); vsd1 = V(134); vlin = V(135)
qa = [V(136 + s) for s in range(4)]
ow = V(140)
ovr = V(141)
def Oreg(b, t):
    n = 8*b + t
    return V(144 + 4*n, 4) if n < 28 else A(176 + 4*(n - 28), 4)
def Qreg(b, s): return A(16*b + 4*s, 4)
def F(i): return A(96 + 4*i, 4)
def lacc(b): return A(128 + 4*(b//3), 4)
def sel(b): return A(136 + 4*(b % 3), 4)
X = [A(148 + 4*k, 4) for k in range(7)]
CS = A(164, 10)
sQ, sO = S(12, 4), S(24, 4); sKb, sVb, sVx = S(16, 2), S(22, 2), S(18, 2)
sW = S(28); sM0 = S(30); sStg = S(31); sSide = S(32); sT0 = S(33); sT1 = S(34); sT2 = S(35)
sFlag = S(36); sThr = S(37); sC = S(38, 2); sCmp = S(40, 2); sStamp = S(42, 2); sCnt = S(3); sQb = S(20, 2); sXp = S(29)
STAMP0 = 48

def aK(J): return (("ring", (J - 2) % 4, "K"), ("K", J), True)
def aV(J): return (("ring", J % 4, "V"), ("V", J), True) if J < 31 else (("ring", 2, "K"), ("V", J), True)
def rK(d): return lambda c: aK(c["J"] + d)
def rV(d): return lambda c: aV(c["J"] + d)
def aQ(h, p): return (("stg", p), ("Q", h), False)
def aO(h, p): return (("stg", p), ("O", h), False)
def blk(f, h, b): return [f(h, 4*b + i) for i in range(4)]
def mkctx(c): return lambda r: r(c) if callable(r) else r

segs = []; path = []; path2 = []; cur = None
def seg(name):
    global cur
    cur = []; segs.append([name, cur]); return len(segs) - 1
def E(*xs):
    for x in xs:
        if x is None: continue
        if isinstance(x, (list, tuple)): E(*x)
        else: cur.append(x)
nstamp = [0]
def stamp_now():
    if O_.stamps not in (1, 2): return []
    k = nstamp[0]; nstamp[0] += 1
    op = "s_memtime" if O_.stamps == 1 else "s_memrealtime"
    return [raw(f"{op} {sStamp}", "smem", (), rs(sStamp)), wait(lgkm=0), salu("s_mov_b32", S(STAMP0 + k), sStamp[0])]

MEM = ("dsr", "dsw", "dma", "vld", "vst"); VAL = ("valu", "trans")
class Task:
    count = 0
    def __init__(s, x, lo, hi, preds):
        s.x, s.lo, s.hi, s.preds, s.gap = x, lo, hi, preds, None
        s.lo0, s.hi0 = lo, hi; Task.count += 1; x.m["seq"] = Task.count
class Sched:
    def __init__(s, mf):
        s.mf = mf; s.n = len(mf); s.g = [[] for _ in mf]; s.t = []; s.done = []; s.own = set()
        s.cap = [24 if m.m["big"] else 8 for m in mf]; s.novalu = set()
    def cost(s, x): return 8 if x.kind == "trans" or x.m.get("perm") else 4
    def fits(s, g, x):
        if s.cap[g] < s.cost(x): return False
        if x.kind in MEM and any(y.kind in MEM for y in s.g[g]): return False
        if x.kind in VAL and g in s.novalu: return False
        return True
    def put(s, g, x): s.g[g].append(x); s.cap[g] -= s.cost(x)
    def fix(s, x, g):
        t = Task(x, g, g, []); t.gap = g; s.put(g, x)
        if x.kind in ("dma", "vst", "vld"): s.cap[g] = 0; s.novalu.add(g - 1); s.own.add(g)
        if x.kind in ("barrier", "dsw") or x.m.get("last"): s.cap[g] = 0; s.own.add(g)
        return t
    def add(s, x, lo=0, hi=None, preds=()):
        t = Task(x, max(lo, 0), s.n - 1 if hi is None else min(hi, s.n - 1), [p for p in preds if p[0] is not None]); s.t.append(t); return t
    def seq(s, xs, lo=0, hi=None, after=None, hard=1):
        p = after
        for x in xs: p = s.add(x, lo, hi, [(p, hard, hard)])
        return p
    def sm(s, groups, smax=2.0):
        ex = [(x, lo, hi) for ops, lo, hi in groups for x in ops if x.kind == "trans"]
        sig = smax
        while True:
            pos = []; t = -9.0; ok = True
            for x, lo, hi in ex:
                t = max(lo, t + sig); g = int(t)
                while g < s.n and (not s.fits(g, x) or (pos and g <= pos[-1])): g += 1
                if g > hi - 1: ok = False; break
                pos.append(g); t = max(t, g - 0.5)
            if ok: break
            sig -= 0.05
            assert sig > 0.3, "softmax does not fit"
        k = 0
        for ops, lo, hi in groups:
            e = []
            for x in ops:
                if x.kind == "trans":
                    t = s.fix(x, pos[k]); t.lo0, t.hi0 = lo, hi - 1; s.done.append(t); e.append(t); k += 1
                else: s.add(x, lo, min(hi, e[-1].gap + 5), [(e[-1], 1, 1), (e[-2], 1, 1)]).hi0 = min(hi, s.n - 1)
    def run(s):
        for t in reversed(s.t):
            for p, h, so in t.preds:
                if p.gap is None: p.hi = min(p.hi, t.hi - so)
        for t in s.t:
            for p, h, so in t.preds: t.lo = max(t.lo, p.lo + h)
            t.hi = max(t.hi, t.lo)
        left = list(s.t)
        for g in range(s.n):
            while True:
                rdy = [t for t in left if t.lo <= g and all(p.gap is not None and g >= p.gap + h for p, h, so in t.preds)]
                rdy = [t for t in rdy if t.hi <= g or all(g >= p.gap + so for p, h, so in t.preds)]
                rdy.sort(key=lambda t: t.hi)
                pick = next((t for t in rdy if t.hi <= g or s.fits(g, t.x)), None)
                if pick is None: break
                s.put(g, pick.x); pick.gap = g; left.remove(pick)
        assert not left, left[0].x
        s.done += s.t; s.t = []
    def polish(s, iters=60000):
        if not O_.opt: return
        rnd = random.Random(1); T = s.done; succ = {id(t): [] for t in T}
        for t in T:
            t.dp = [(p, min(so, t.gap - p.gap)) for p, h, so in t.preds]
            for p, d in t.dp:
                if id(p) in succ: succ[id(p)].append((t, d))
            t.hi0 = max(t.hi0, t.gap); t.lo0 = min(t.lo0, t.gap)
        drain = [g for g in range(s.n) if any(x.kind == "wait" and x.m["lgkm"] == 0 for x in s.g[g])]
        full = [24 if m.m["big"] else 8 for m in s.mf]; base = {g: [x for x in s.g[g] if all(x is not t.x for t in T)] for g in s.own}
        def over(g, xs):
            if g in s.own: return sum(s.cost(x) for x in xs if all(x is not y for y in base[g]))
            c = sum(s.cost(x) for x in xs) + 4*max(0, sum(x.kind in MEM for x in xs) - 1)
            o = max(0, c - full[g])
            if g in s.novalu and c >= 8 and any(x.kind in VAL for x in xs): o += 4
            return o
        ov = [over(g, s.g[g]) for g in range(s.n)]
        for it in range(iters):
            if not any(ov): break
            t = rnd.choice(T); a = t.gap
            lo = max([t.lo0] + [p.gap + d for p, d in t.dp]); hi = min([t.hi0] + [q.gap - d for q, d in succ[id(t)]])
            b = rnd.randint(max(lo, a - 6), min(hi, a + 6)) if lo <= hi else a
            if b == a or (t.x.kind == "dsr" and any(0 <= g - b < 7 and not (b < a <= g) for g in drain)): continue
            xa = [x for x in s.g[a] if x is not t.x]; xb = s.g[b] + [t.x]
            oa, ob = over(a, xa), over(b, xb); dl = oa + ob - ov[a] - ov[b]
            if dl <= 0 or rnd.random() < math.exp(-dl/(1.2*(1 - it/iters) + 1e-9)):
                s.g[a], s.g[b], ov[a], ov[b], t.gap = xa, xb, oa, ob, b
                s.cap[a] += s.cost(t.x); s.cap[b] -= s.cost(t.x)
    def pour(s, *streams):
        st = [[list(xs), lo] for xs, lo in streams]
        for g in range(s.n):
            again = True
            while again:
                again = False
                for q in st:
                    if q[0] and q[1] <= g and s.fits(g, q[0][0]): s.put(g, q[0].pop(0)); again = True; break
        return [x for q in st for x in q[0]]
    def emit(s):
        for m, g in zip(s.mf, s.g):
            key = lambda x: (3 if x.m.get("last") else (2 if x.kind in VAL else (0 if x.kind in MEM else 1)), x.m.get("seq", 1 << 30))
            E(m, sorted(g, key=key))

def kread(J, d, a, s, dst): return ds_read("ds_read_b128", dst, kaddr[s], ((J + d - 2) % 4)*16384 + a*8192, rK(d))
def vread(J, d, t, a, dst):
    return ds_read("ds_read_b64_tr_b16", dst[2*a:2*a+2], vaddr[t], (((J + d) % 4)*16384 if J + d < 31 else 32768 - 1024) + a*8192, rV(d))
def kv_group(J, d, withV=True):
    o = [salu("s_add_u32", "m0", sM0, ((J + d) % 4)*16384)]
    for im in (0, 2048):
        if withV: o.append(gdma(vkv, sVb, im + 1024, rV(d), O_.fv))
        o.append(gdma(vkv, sKb, im, rK(d + 2), O_.fk) if J + d < 30 else gdma(vkv, sVx, im, rV(d + 1), O_.fv))
    return o + [kv_step()]
def kv_step(): return valu("v_add_u32", vkv, 8192, vkv)
def q_dma_block(h, b):
    o = [salu("s_add_u32", "m0", sStg, b*4096), salu("s_mov_b32", sSide, h*98304 + b*4096)]
    for i in range(4): o.append(dma(vsd1 if i & 1 else vsd0, sQ, sSide, i*1024, aQ(h, 4*b + i), O_.fq))
    return o
def q0_block(be, bl):
    o = [salu("s_add_u32", sSide, sSide, 4096), salu("s_add_u32", "m0", sStg, sSide), nop(0)]
    for i in range(4): o.append(dma(vsd1 if i & 1 else vsd0, sQ, sSide, i*1024, (lambda i: lambda c: aQ(0, 4*(bl if c.get("lazy") else be) + i))(i), O_.fq))
    return o
def piecemeal(groups):
    st = []; pre = []
    for grp in groups:
        for x in grp:
            if x.kind in MEM: st.append(pre + [x]); pre = []
            else: pre.append(x)
    if pre: st[-1] += pre
    def more(n):
        o = st[:n]; del st[:n]; return o
    more.left = lambda: len(st)
    return more

def sm_ops(par, b, a):
    s = Sreg(b, a); p = Preg(par, b)
    return [valu("v_exp_f32", s[0], s[0]), valu("v_exp_f32", s[1], s[1]), valu("v_cvt_pk_bf16_f32", p[2*a], s[0], s[1]),
            valu("v_exp_f32", s[2], s[2]), valu("v_exp_f32", s[3], s[3]), valu("v_cvt_pk_bf16_f32", p[2*a+1], s[2], s[3])]
NE_A = 40
def sm_split(par, ne=NE_A, order=range(NB)):
    st = []
    for a in range(2):
        for b in (order if a else range(NB)): st += [(b, x) for x in sm_ops(par, b, a)]
    k = ne // 2 * 3
    return st[:k], st[k:]
def delay_cvts(xs):
    o = []; pend = []
    for x in xs:
        if x.kind == "trans":
            o.append(x)
            if pend: o.append(pend.pop(0))
        else: pend.append(x)
    return o + pend
def xlane_max(m, t):
    o = []
    for op in ("v_permlane32_swap_b32", "v_permlane16_swap_b32"):
        o += [valu("v_mov_b32", t, m), swap(op, m, t), valu("v_max_f32", m, m, t)]
    return o
def rowmax_ops(b):
    m, t = negM(b)[0], negM(b)[1]; sv = lambda r: V(8*b + r)
    o = [valu("v_max3_f32", m, sv(0), sv(1), sv(2)), valu("v_max3_f32", t, sv(3), sv(4), sv(5)),
         valu("v_max3_f32", m, m, sv(6), sv(7)), valu("v_max_f32", m, m, t)] + xlane_max(m, t)
    o += [valu("v_sub_f32", negM(b)[r], 0, m) for r in (1, 2, 3, 0)]
    return o, [valu("v_pk_add_f32", V(8*b + 2*r, 2), V(8*b + 2*r, 2), negM(b)[0:2]) for r in range(4)]
def scale_frag(x, dst, w, y, pk=True):
    o = []
    if pk:
        for r in range(4): o += [valu("v_lshlrev_b32", w[2*r], 16, x[r]), valu("v_and_b32", w[2*r+1], "0xffff0000", x[r])]
        for r in range(4): o.append(valu("v_pk_mul_f32", w[2*r:2*r+2], w[2*r:2*r+2], sC))
    else:
        for r in range(4):
            o += [valu("v_lshlrev_b32", w[2*r], 16, x[r]), valu("v_and_b32", w[2*r+1], "0xffff0000", x[r]),
                  valu("v_mul_f32", w[2*r], sC[0], w[2*r]), valu("v_mul_f32", w[2*r+1], sC[0], w[2*r+1])]
    if dst.k == "v": return o + [valu("v_cvt_pk_bf16_f32", dst[r], w[2*r], w[2*r+1]) for r in range(4)]
    for r in range(4): o.append(valu("v_cvt_pk_bf16_f32", y[r], w[2*r], w[2*r+1]))
    for r in range(4): o.append(valu("v_accvgpr_write_b32", dst[r], y[r]))
    return o
def chain(b, a, fr, c0, rev):
    return [(s, mfma(Sreg(b, a), fr[s], Qreg(b, s), c0 if n == 0 else Sreg(b, a))) for n, s in enumerate(range(3, -1, -1) if rev and O_.qks else range(4))]
def qk_first(b): return [m for a in range(2) for _, m in chain(b, a, [F(4*a + s) for s in range(4)], 0, a)]
def pv_pair(par, bs, t0, fr, init, sums):
    o = []
    if O_.pvo in ("t", "ts"):
        bs = sorted(bs)
        if 5 in sums and init: sums = []; o += [(None, rowsum(par, 5, init)), (None, rowsum(par, 4, init))]
        for k in range(2):
            for b in (bs if k == 0 or O_.pvo == "t" else bs[::-1]):
                o.append((t0 + k, mfma(Oreg(b, t0 + k), Preg(par, b), fr[k], 0 if init else Oreg(b, t0 + k))))
                if k == 0 and b in sums: o.append((None, rowsum(par, b, init)))
        return o
    for n, b in enumerate(bs):
        for k in ((0, 1) if n % 2 == 0 or O_.pvo == "pp2" else (1, 0)): o.append((t0 + k, mfma(Oreg(b, t0 + k), Preg(par, b), fr[k], 0 if init else Oreg(b, t0 + k))))
        if b in sums: o.insert(len(o) - 1, (None, rowsum(par, b, init)))
    return o
def rowsum(par, b, init=False): return mfma(lacc(b), Preg(par, b), sel(b), 0 if init and b in (0, 5) else lacc(b))

def pm(f):
    q = Qreg(f//4, f % 4); d = V(76 + 8*(f & 1), 8); t = V(92, 4)
    mf = [mfma(d[0:4], CS[2:6], q, 0), mfma(d[0:4], CS[6:10], q, d[0:4]), mfma(d[4:8], CS[0:4], q, 0), mfma(d[4:8], CS[4:8], q, d[4:8])]
    fl = []
    for hh in range(2):
        fl += [valu("v_cvt_pk_bf16_f32", t[2*hh + k], d[4*hh + 2*k], d[4*hh + 2*k + 1]) for k in range(2)]
        fl += [valu("v_accvgpr_write_b32", q[2*hh + k], t[2*hh + k]) for k in range(2)]
    return mf, fl

def startup():
    v0, vl, vi, vu, t0, t1, t2 = V(0), V(1), V(2), V(3), V(4), V(5), V(6)
    E(comment("---- setup"),
      raw("s_load_dwordx4 s[4:7], s[0:1], 0", "smem", (), rs(S(4, 4))),
      raw("s_load_dwordx4 s[8:11], s[0:1], 16", "smem", (), rs(S(8, 4))),
      scmp("s_cmp_ge_u32", S(2), 256), raw("s_cbranch_scc1 L_end", "salu", {"scc"}))
    if O_.stamps:
        E(raw("s_load_dwordx2 s[44:45], s[0:1], 40", "smem", (), rs(S(44, 2))),
          raw("s_memrealtime s[46:47]", "smem", (), rs(S(46, 2))))
    if O_.pfs == 0:
        E(comment("pull the kernel's own code into L2 (one dword per 128-byte line)"),
          raw("s_getpc_b64 s[40:41]", "salu", (), rs(S(40, 2))), label("L_pc"),
          valu("v_lshlrev_b32", t0, 7, v0), valu("v_min_u32", t1, "L_fast_end-L_pc", t0),
          Inst(f"global_load_dword v7, {t1}, s[40:41]", "vld", rs(t1, S(40, 2)), rs(V(7))),
          valu("v_add_u32", t0, 32768, t0), valu("v_min_u32", t1, "L_fast_end-L_pc", t0),
          Inst(f"global_load_dword v8, {t1}, s[40:41]", "vld", rs(t1, S(40, 2)), rs(V(8))))
    else:
        sh = O_.pfs
        E(comment("pull the kernel's own code into L2; the workgroups that usually share an L2 take a slice each (speed only)"),
          raw("s_getpc_b64 s[40:41]", "salu", (), rs(S(40, 2))), label("L_pc"),
          raw(f"s_bfe_u32 {sT0}, s2, {hex((sh << 16) + 3)}", "salu", (), rs(sT0) | {"scc"}), salu("s_lshl_b32", sT0, sT0, 16 - sh),
          valu("v_lshlrev_b32", t0, 8 - sh, v0), valu("v_add_u32", t0, sT0, t0), valu("v_min_u32", t1, "L_fast_end-L_pc", t0),
          Inst(f"global_load_dword v7, {t1}, s[40:41]", "vld", rs(t1, S(40, 2)), rs(V(7))))
    E(valu("v_lshrrev_b32", t1, 6, v0), valu("v_and_b32", vl, 63, v0),
      valu("v_readfirstlane_b32", sW, t1),
      valu("v_and_b32", vi, 15, vl), valu("v_lshrrev_b32", vu, 4, vl),
      valu("v_lshlrev_b32", t0, 1, vu), valu("v_xor_b32", t0, t0, vi), valu("v_lshlrev_b32", t0, 4, t0),
      valu("v_lshl_add_u32", vsd0, vu, 8, t0), valu("v_xor_b32", vsd1, 128, vsd0),
      salu("s_and_b32", sT0, sW, 1), salu("s_lshr_b32", sT1, sW, 1),
      salu("s_lshl_b32", sT2, sT0, 7), salu("s_lshl_b32", sT0, sT0, 10), salu("s_lshl_b32", sT1, sT1, 12),
      salu("s_add_u32", sT0, sT0, sT1),
      valu("v_xor_b32", vkv, sT2, vsd0), valu("v_add_u32", vkv, sT0, vkv),
      salu("s_lshl_b32", sM0, sW, 12), salu("s_mul_i32", sStg, sW, 24576),
      salu("s_mul_i32", sT0, S(2), 196608), salu("s_add_u32", sT0, sT0, sStg), salu("s_add_u32", sStg, sStg, 65536),
      salu("s_lshl_b32", sT1, S(2), 18),
      salu("s_mov_b32", sQ[2], 98304 + 24576), salu("s_mov_b32", sQ[3], "0x20000"),
      wait(lgkm=0), stamp_now() if O_.probe == 2 else None,
      salu("s_add_u32", sKb[0], S(6), sT1), salu("s_addc_u32", sKb[1], S(7), 0),
      salu("s_add_u32", sQ[0], S(4), sT0), salu("s_addc_u32", sQ[1], S(5), 0), salu("s_and_b32", sQ[1], sQ[1], "0xffff"))
    g0 = kv_group(0, 0); g0 = [g0[k] for k in (0, 1, 3, 2, 4, 5)]
    more = piecemeal([kv_group(0, -2, False)[:-1]] + [q0_block(b, b - O_.lazy if 3 <= b < 3 + O_.lk else b) for b in range(NB)] + [kv_group(0, -1, False), g0])
    assert O_.n0 == 14 and O_.early
    def only(kind, name, *xs):
        if not O_.lazy:
            if kind == "eager": E(xs)
            return
        E(scmp("s_cmp_eq_u32", sXp, O_.xpar), raw(f"s_cbranch_scc{int(kind == 'eager')} L_{name}", "salu", {"scc"}))
        n = len(cur); E(xs)
        for x in cur[n:]: x.m["only"] = kind
        E(label(f"L_{name}"))
    E(salu("s_mov_b32", sSide, -4096), more(2), kv_step(), more(4))
    if O_.lazy: E(comment("Start-up is bandwidth bound.  Odd dies clock lower under load, so they prefetch Q three blocks ahead while"),
                  comment("the even ones start with a shorter lead: all dies then finish closer together (speed only)."),
                  raw(f"s_getreg_b32 {sXp}, hwreg(HW_REG_XCC_ID, 0, 1)", "salu", (), rs(sXp)))
    if O_.lazy == 2: only("eager", "e1", more(4))
    else: E(more(4))
    if O_.pads == 2: E(stamp_now() if O_.probe == 5 else None, raw("s_branch L_main"), raw(".p2align 12", "label"), label("L_main"), stamp_now() if O_.probe == 5 else None)
    E(salu("s_add_u32", sVb[0], S(8), sT1), salu("s_addc_u32", sVb[1], S(9), 0),
      salu("s_sub_u32", sVb[0], sVb[0], 1024 + 16384), salu("s_subb_u32", sVb[1], sVb[1], 0),
      salu("s_add_u32", sO[0], S(10), sT0), salu("s_addc_u32", sO[1], S(11), 0), salu("s_and_b32", sO[1], sO[1], "0xffff"),
      salu("s_mov_b32", sO[2], 98304 + 24576), salu("s_mov_b32", sO[3], "0x20000"),
      salu("s_add_u32", sVx[0], sVb[0], 1024 + 8192), salu("s_addc_u32", sVx[1], sVb[1], 0),
      salu("s_mov_b32", sC[0], hex(CSCALE)), salu("s_mov_b32", sC[1], hex(CSCALE)),
      salu("s_mov_b32", sThr, hex(THRESH)), salu("s_mov_b32", sFlag, O_.force),
      salu("s_add_u32", sQb[0], sQ[0], 98304), salu("s_addc_u32", sQb[1], sQ[1], 0))
    E(valu("v_and_b32", t0, 7, vi), valu("v_lshlrev_b32", t0, 1, t0), valu("v_xor_b32", t0, t0, vu), valu("v_lshlrev_b32", t0, 4, t0),
      valu("v_lshl_add_u32", t2, vi, 8, t0), valu("v_add_u32", qa[0], sStg, t2),
      valu("v_and_b32", t1, 3, vi), valu("v_lshl_add_u32", t0, t1, 8, t0),
      valu("v_lshrrev_b32", t1, 3, vi), valu("v_lshl_add_u32", t0, t1, 11, t0),
      valu("v_bfe_u32", t1, vi, 2, 1), valu("v_lshl_add_u32", kaddr[0], t1, 12, t0))
    for s in range(1, 4): E(valu("v_xor_b32", kaddr[s], s << 6, kaddr[0]), valu("v_xor_b32", qa[s], s << 6, qa[0]))
    E(valu("v_lshrrev_b32", t1, 2, vi), valu("v_and_b32", t2, 1, vu), valu("v_lshl_add_u32", t0, t2, 2, t1),
      valu("v_lshlrev_b32", t0, 5, t0), valu("v_lshl_add_u32", t0, t1, 8, t0), valu("v_lshl_add_u32", t0, t2, 12, t0),
      valu("v_lshrrev_b32", t2, 1, vu), valu("v_lshl_add_u32", t0, t2, 11, t0),
      valu("v_and_b32", t1, 3, vi), valu("v_lshl_add_u32", t0, t1, 3, t0), valu("v_add_u32", vaddr[0], 1024, t0))
    for t in range(1, 8): E(valu("v_xor_b32", vaddr[t], t << 5, vaddr[0]))
    E(valu("v_mov_b32", t2, "0x3f803f80"))
    for k in range(3):
        E(Inst(f"v_cmp_eq_u32 vcc, {k}, {vi}", "valu", rs(vi), {"vcc"}), nop(1), Inst(f"v_cndmask_b32 {t0}, 0, {t2}, vcc", "valu", rs(t2, "vcc"), rs(t0)),
          [valu("v_accvgpr_write_b32", sel(k)[r], t0) for r in range(4)])
    E(valu("v_lshrrev_b32", t0, 1, vi), valu("v_lshlrev_b32", t1, 1, vu), valu("v_sub_u32", t0, t0, t1),
      valu("v_and_b32", t1, 1, vi), valu("v_lshlrev_b32", t1, 4, t1))
    for k in range(2):
        E(Inst(f"v_cmp_eq_u32 vcc, {k}, {t0}", "valu", rs(t0), {"vcc"}))
        for j, c in enumerate((C_HI, C_LO)):
            E(valu("v_mov_b32", t2, hex(c)), valu("v_lshlrev_b32", t2, t1, t2), Inst(f"v_cndmask_b32 {t2}, 0, {t2}, vcc", "valu", rs(t2, "vcc"), rs(t2)),
              valu("v_accvgpr_write_b32", CS[2 + 4*j + k], t2))
    E([valu("v_accvgpr_write_b32", CS[k], 0) for k in (0, 1, 4, 5, 8, 9)])
    E(valu("v_lshlrev_b32", t0, 3, vl), valu("v_add_u32", ow, sStg, t0),
      valu("v_bfe_u32", t1, vi, 1, 1), valu("v_lshl_add_u32", t0, t1, 2, vu), valu("v_lshlrev_b32", t0, 9, t0),
      valu("v_and_b32", t1, 1, vi), valu("v_lshl_add_u32", t0, t1, 6, t0), valu("v_lshrrev_b32", t1, 2, vi),
      valu("v_lshl_add_u32", t0, t1, 3, t0), valu("v_add_u32", ovr, sStg, t0),
      valu("v_and_b32", t2, 3, vi), valu("v_lshlrev_b32", t0, 5, t2), valu("v_lshl_add_u32", t0, vu, 8, t0),
      valu("v_and_b32", t2, 1, t1), valu("v_lshl_add_u32", t0, t2, 4, t0), valu("v_lshrrev_b32", t2, 1, t1), valu("v_lshl_add_u32", vlin, t2, 7, t0))
    only("eager", "e2", more(4)); E(stamp_now())
    def first_k():
        E(comment("---- first K tile"), wait(vm=[aK(0)]), stamp_now() if O_.probe == 2 else None, barrier())
        for a in range(2):
            for s in range(4): E(kread(0, 0, a, s, F(4*a + s)))
    if not O_.early: first_k()
    def visit(g):
        o = [comment(f"touch code pages {4*g + 1}..{4*g + 4}, one per wave"), stamp_now() if O_.probe == 5 and g == 0 else None, raw("s_mov_b64 vcc, 0")]
        for w in range(3): o += [scmp("s_cmp_eq_u32", sW, w), raw(f"s_cbranch_scc1 L_pad{4*g + w + 1}", "salu", {"scc"})]
        return o + [raw(f"s_branch L_pad{4*g + 4}"), label(f"L_padret{g}"), raw("s_mov_b64 vcc, -1"), stamp_now() if O_.probe == 5 and g == 0 else None]
    vis = lambda where: [visit(g) for g, c in enumerate(O_.vis) if c == where]
    E(vis("e"))
    only("lazy", "lk", wait(vm=12 - 4*O_.lazy))
    first_k()
    rawr = lambda s: V(72 + 4*s, 4)
    for b in range(NB):
        if b < O_.lk: only("lazy", f"l{b}", wait(vm=8 - 4*O_.lazy))
        if b == O_.lk and not O_.l4: only("lazy", f"l{b}", (wait(vm=8 - 4*O_.lazy) if O_.lw else None), [q0_block(None, b + 3 - O_.lazy + k) for k in range(O_.lazy)])
        if O_.l4 and b == 3: only("lazy", "l3", wait(vm=0), q0_block(None, 4))
        if O_.l4 and b == 4:
            g1 = kv_group(0, -1, False); g2 = kv_group(0, 0)
            only("lazy", "l4", (wait(vm=0) if O_.l4 == 2 else None), q0_block(None, 5), g1[0], nop(0), g1[1:], g2[0], nop(0), g2[1], g2[3])
        E(comment(f"---- start-up block {b}"), wait(vm=blk(aQ, 0, b)), stamp_now() if O_.probe == 2 else None)
        if O_.mq0:
            for s in range(4): E(ds_read("ds_read_b128", Qreg(b, s), qa[s], b*4096, blk(aQ, 0, b)))
            E(more(2), wait(lgkm=[Qreg(b, 0)] + ([F(k) for k in range(8)] if b == 0 else [])))
            pms = [pm(4*b + n) for n in range(4)]
            sc = Sched([m for mf, _ in pms for m in mf])
            sc.put(2, wait(lgkm=0))
            for n in range(3):
                for j, v in enumerate(pms[n][1]): sc.put(4*(n + 1) + j//2, v)
            sc.emit(); E(more(2), pms[3][1])
        else:
            for s in range(4): E(ds_read("ds_read_b128", rawr(s), qa[s], b*4096, blk(aQ, 0, b)))
            for s in range(4):
                E(wait(lgkm=[rawr(s)] + ([F(k) for k in range(8)] if b == 0 else [])))
                if O_.l4 and b == 3: only("eager", f"e3{s}", more(1))
                else: E(more(1))
                E(scale_frag(rawr(s), Qreg(b, s), V(88, 8), Sreg(b, s & 1)))
        qk = qk_first(b)
        if b < NB - 1: E(qk, rowmax_ops(b), delay_cvts(sm_ops(0, b, 0) + sm_ops(0, b, 1)), vis(str(b)))
    assert more.left() == 0
    E(qk[:4], wait(vm=[aK(1)]), barrier())
    for s in range(4): E(qk[4 + s], kread(0, 1, 0, s, F(s)))
    E(salu("s_mov_b32", sSide, sStg), salu("s_mov_b32", sCnt, 1), rowmax_ops(NB - 1)[0][:4], wait(lgkm=[F(s) for s in range(4)]), stamp_now())

def o_read(key, p, dst):
    return [ds_read("ds_read_b64_tr_b16", dst[2*hi:2*hi + 2], ovr, (p >> 2)*4096 + (p & 3)*128 + hi*32, key) for hi in range(2)]
def pv_mfmas(par, frags, sums_first=False, init=False):
    mf = [rowsum(par, b) for b in range(NB)] if sums_first else []; st = []
    for h in range(4):
        st.append(len(mf))
        sums = [] if sums_first else [(0, 1), (5, 4), (2,), (3,)][h]
        mf += [m for _, m in pv_pair(par, range(NB) if h % 2 == 0 else range(NB - 1, -1, -1), 2*h, frags[2*h:2*h + 2], init, sums)]
    return mf, st
def late_pieces(k):
    cnt = [int(c, 16) for c in O_.oe + O_.olate]; ne = sum(map(int, O_.osched)) + 2*O_.om; k += 2
    assert sum(cnt) == 24 - ne and sum(cnt[:6]) >= 12
    return (list(range(12, 24)) + list(range(ne, 12)))[sum(cnt[:k]):sum(cnt[:k + 1])]
def kv_plan(J):
    if J >= 16: return [(3, 27)] if J < 28 else []
    o = []
    for k, lead in enumerate(int(x) for x in O_.lead0.split(",")):
        Jk, g = divmod(102*(k + 1) + 23 - lead, 102)
        assert 2 <= g <= 82
        if Jk == J: o.append((k + 1 - J, g))
    return o
END_ORDER = (2, 3, 4, 5, 0, 1)
NPRE = 2
VF15 = [Qreg(4 + t//4, t % 4) for t in range(8)]

def iteration(J, ctl=()):
    par = J & 1; j = J % 16
    mf = [m for a in range(2) for b in range(NB) for _, m in chain(b, a, [F(4*a + s) for s in range(4)], negM(b), b & 1)]
    pv, pst = pv_mfmas(par, [F(t) for t in range(8)], init=(j == 0))
    mf += pv; pst = [48 + x for x in pst]
    sc = Sched(mf)
    for x in ctl: sc.fix(x, 101)
    if ctl: sc.cap[101] = 0
    for s in range(4): sc.fix(kread(J, 1, 1, s, F(4 + s)), [1, 6, 11, 13][s])
    tb2 = None
    if J == 0:
        sc.fix(wait(vm=[rV(0)], lgkm=0), 23); tb = sc.fix(barrier(), 23)
        sc.fix(wait(vm=[rK(2)]), 72); tb2 = sc.fix(barrier(), 72)
    else:
        sc.fix(wait(vm=[rV(0), rK(2)], lgkm=0), 23); tb = sc.fix(barrier(), 23)
    if J == 0 or (J == 16 and O_.tight):
        b = NB - 1; t = sc.seq(rowmax_ops(b)[0][4:], 0, 8, hard=0)
        sub = [sc.add(valu("v_add_f32", V(8*b + r), V(8*b + r), negM(b)[1]), 0, 10 if r < 4 else 22, [(t, 0, 0)]) for r in range(8)]
        sc.run(); sc.done = []
    plan = kv_plan(J); busy = []
    for n_, (d, g0) in enumerate(plan):
        ops = kv_group(J, d); g = g0
        while sc.cap[g - 2] < 4: g += 1
        sc.fix(ops[0], g - 2)
        for x in ops[1:5]:
            while sc.cap[g] < 8 or sc.cap[g - 1] == 0 or sc.cap[g + 1] == 0 or any(y.kind in VAL for y in sc.g[g - 1]): g += 1
            td = sc.fix(x, g); g += O_.dsp1 if 16 <= J < O_.jsp else O_.dsp
        busy.append((g0 - 3, td.gap + 1))
        sc.add(ops[5], 0, 100 if n_ + 1 == len(plan) else plan[n_ + 1][1] - 1, [(td, 1, 1)])
    nq = int(O_.qs[J]) if J < 15 else 0
    if nq:
        p0 = sum(map(int, O_.qs[:J])); g0 = max([50] + [hi + 6 for lo, hi in busy if lo < 50]) if J != 14 else O_.gq14
        qsp = 12 if nq < 3 else 9
        assert all(hi < g0 - 2 or lo > g0 + qsp*(nq - 1) for lo, hi in busy)
        tm = sc.fix(salu("s_mov_b32", "m0", sSide), g0 - 2)
        for k in range(nq):
            t = sc.fix(gdma(vsd1 if (p0 + k) & 1 else vsd0, sQb, k*1024, (lambda k: lambda c: aQ(1, sum(map(int, O_.qs[:c["J"]])) + k))(k), O_.fq), g0 + qsp*k)
        sc.add(salu("s_add_u32", sSide, sSide, 1024*nq), 0, 99, [(tm, 1, 1)])
        g = t.gap + 1
        while sc.cap[g] < 8: g += 1
        sc.fix(salu("s_add_u32", sQb[0], sQb[0], 1024*nq), g); sc.fix(salu("s_addc_u32", sQb[1], sQb[1], 0), g); sc.own.add(g)
    npz = int(O_.ps[J]) if J < 15 else 0
    if npz:
        tot = lambda a, b_: sum(map(int, O_.ps[a:b_]))
        rel = tot(0, J) if O_.unr else (tot(4, J) if J < 12 else tot(12, J))
        raw_, tt = V(142, 2), V(138, 2); p = None; span = 96//(2*npz)
        for k in range(2*npz):
            key = (lambda k: lambda c: aQ(1, tot(0, c["J"]) + k//2))(k)
            off = (rel + k//2)*1024 + (k & 1)*512; lo = 2 + span*k; gw = lo + span - 1
            while sc.cap[gw] < 8 or sc.cap[gw + 1] == 0 or gw in sc.novalu: gw -= 1
            if k % 2 == 0: p = sc.add(wait(vm=[key]), lo, None, [(p, 1, 1)])
            p = sc.add(ds_read("ds_read_b64", raw_, ow, off, key), lo, None, [(p, 1, 1)])
            p = sc.add(wait(lgkm=[raw_]), lo, None, [(p, 1, 7)])
            for r in range(2):
                ops = [valu("v_lshlrev_b32", tt[0], 16, raw_[r]), valu("v_and_b32", tt[1], "0xffff0000", raw_[r]), valu("v_mul_f32", tt[0], sC[0], tt[0]),
                       valu("v_mul_f32", tt[1], sC[0], tt[1]), valu("v_cvt_pk_bf16_f32", raw_[r], tt[0], tt[1])]
                for i, x in enumerate(ops): p = sc.add(x, lo, gw - 1 - (9 - 5*r - i)*O_.psp, [(p, 1 if i + r == 0 else 0, 1 if i + r == 0 else 0)])
            p = sc.fix(ds_write("ds_write_b64", ow, raw_, off, key), gw); sc.cap[gw] = 0
        if J == 7 and not O_.unr: sc.add(valu("v_add_u32", ow, 1024*tot(4, 8), ow), 0, 100, [(p, 1, 1)])
    if J == 14 and int(O_.ps):
        if not O_.unr: sc.add(valu("v_subrev_u32", ow, 1024*sum(map(int, O_.ps[:12])), ow), 0, 40)
        for s in (2, 3): sc.add(valu("v_xor_b32", qa[s], s << 6, qa[0]), 0, 40)
    if J == 20 and O_.om:
        n0_ = sum(map(int, O_.osched)); assert n0_ == 4 and O_.om <= 2
        t = None
        for i in range(O_.om):
            g = 60 + 20*i
            t = sc.seq(o_read((lambda i: lambda c: aO(0, n0_ + O_.om*((c["J"] - 20)//4) + i))(i), n0_ + i, X[i]), 0, g - 8, t); sc.add(wait(lgkm=[X[i]]), 0, g - 1, [(t, 1, 6)])
            ts_ = sc.fix(vstore(X[i], vlin, sO, sSide, i*1024, O_.late_flags), g)
        sc.add(salu("s_add_u32", sSide, sSide, 1024*O_.om), 0, 99, [(ts_, 1, 1)])
        sc.add(valu("v_add_u32", ovr, 128*O_.om, ovr), 0, 99, [(t, 1, 1)])
    if J == 16 and O_.om: sc.add(salu("s_mov_b32", sSide, 4096), 0, 99)
    if J == 25 and O_.om: sc.fix(valu("v_subrev_u32", ovr, 256*O_.om, ovr), 0)
    if J in (25, 26, 27, 28):
        ps = late_pieces(J - 27); g0 = [60, 60, O_.g11, O_.g12][J - 25]
        base = t = None
        for i, p in enumerate(ps):
            g = g0 + (96 - g0)*i//max(1, len(ps) - 1)
            while g in (22, 23, 24) or sc.cap[g] < 8 or sc.cap[g - 1] == 0 or sc.cap[g + 1] == 0: g += 1
            t = sc.seq(o_read(aO(0, p), p, X[i]), 1 if J == 25 else 0, g - 8, t); sc.add(wait(lgkm=[X[i]]), 0, g - 1, [(t, 1, 6)])
            if base is None or not 0 <= p - base < 4: base = p; sc.fix(salu("s_mov_b32", sSide, p*1024), g - 1)
            sc.fix(vstore(X[i], vlin, sO, sSide, (p - base)*1024, O_.late_flags), g)
    p = tb
    for t in range(8):
        for a in range(2): p = sc.add(vread(J, 0, t, a, F(t)), 24 if t < 4 else 48, None, [(p, 1, 1)])
        if t in (1, 3): sc.add(wait(lgkm=[F(t - 1), F(t)]), 0, pst[t//2] - 1, [(p, 1, 8)])
    sc.add(wait(lgkm=[F(4), F(5), F(6), F(7)]), 0, pst[2] - 1, [(p, 1, 8)])
    for s in range(4): p = sc.add(kread(J, 2, 0, s, F(s)), pst[2], None if J != 14 else 90, [(p, 1, 1), (tb2, 1, 1)])
    if J == 28:
        pre = late_pieces(2)[:NPRE]
        p = sc.seq([x for i, q in enumerate(pre) for x in o_read(aO(0, q), q, X[i])], 60, None, p)
    if J != 14: sc.add(wait(lgkm=[F(s) for s in range(4)] + (X[:NPRE] if J == 28 else [])), 0, 101 if J == 28 else 100, [(p, 1, 8 if J != 28 else 5)])
    else:
        sc.fix(wait(vm=[rV(1), rK(3)] + blk(aQ, 1, 0)), 92); t = sc.fix(barrier(), 92)
        for k in range(4): sc.fix(vread(J, 1, k//2, k & 1, VF15[k//2]), 93 + 2*k)
    nxt = lambda ne: [x for _, x in sm_split(1 - par, ne, END_ORDER if J == 28 else range(NB))[0]]
    if J == 0:
        b = NB - 1
        sc.sm([(sm_ops(0, b, 0), sub[3].gap + 1, 19), (sm_ops(0, b, 1), sub[7].gap + 1, 43), (nxt(NE_A), 24, 100)])
    elif J == 16 and O_.tight:
        tail = sm_split(0, O_.ne1)[1]; b = NB - 1
        sc.sm([(sm_ops(0, b, 0), sub[3].gap + 1, 19)] + [([x for bb, x in tail if bb == k], sub[7].gap + 1, 23 + 4*k) for k in range(NB) if any(bb == k for bb, _ in tail)]
              + [(nxt(NE_A), 24, 100)])
    elif J == 16:
        tail = sm_split(0, O_.ne1)[1]
        sc.sm([([x for bb, x in tail if bb == b], 0, 23 + 4*b) for b in range(NB) if any(bb == b for bb, _ in tail)] + [(nxt(NE_A), 24, 100)])
    elif J == 14:
        sc.sm([([x for _, x in sm_split(par)[1]], 0, 30)] + [(sm_ops(1, b, a), 24*a + 4*b + 8, 101) for a in range(2) for b in range(NB)])
    else:
        sc.sm([([x for _, x in sm_split(par)[1]], 0, 30)], 2.4)
        sc.sm([(nxt(NE_A), 24, 100)])
    for t in sc.done + sc.t:
        if t.x.m.get("op") in ("v_exp_f32", "v_cvt_pk_bf16_f32") and t.lo0 == 24:
            r = min(int(x[1:]) for x in t.x.rd); t.lo0 = 24*((r >> 2) & 1) + 4*(r >> 3) + (9 if t.x.kind == "trans" else 10)
    sc.run(); sc.polish(); sc.emit()

def straight(J, *pre):
    s = seg(f"J{J}"); path.append((s, {"J": J})); E(comment(f"---- head {J//16}, key tile {J % 16}"), pre); iteration(J)
def loop4(name, J0, passes):
    ss = []
    for k in range(4):
        ss.append(seg(f"{name}{k}"))
        if k == 0: E(raw(".p2align 3", "label"), label(f"L_{name}"))
        d = salu("s_sub_u32", sCnt, sCnt, 1); d.m["last"] = True
        iteration(J0 + k, [d, raw(f"s_cbranch_scc0 L_{name}", "salu", {"scc"}, (), last=True)] if k == 3 else [])
        for n in range(1, passes): assert kv_plan(J0 + k) == kv_plan(J0 + k + 4*n) and (J0 > 15 or (O_.qs[J0 + k], O_.ps[J0 + k]) == (O_.qs[J0 + k + 4*n], O_.ps[J0 + k + 4*n]))
    assert J0 > 15 or sum(map(int, O_.qs[J0:J0 + 4])) % 2 == 0
    for n in range(4*passes): path.append((ss[n % 4], {"J": J0 + n}))

def l_ops(h, b0, r, t1):
    o = [valu("v_accvgpr_read_b32", r[k], lacc(b0)[k]) for k in range(4)]
    o += [valu("v_add_f32", t1, r[0], r[1]), valu("v_add_f32", t1, t1, r[2]), valu("v_add_f32", t1, t1, r[3])]
    o += [valu("v_rcp_f32", r[k], r[k]) for k in range(4)]
    return o
def l_flag(h, t1):
    return [Inst(f"v_cmp_nlt_f32 {sCmp}, {t1}, {sThr}", "valu", rs(t1, sThr), rs(sCmp)), nop(0),
            scmp("s_cmp_lg_u64", sCmp, 0), salu("s_cselect_b32", sT0, 1 << h, 0), salu("s_or_b32", sFlag, sFlag, sT0)]
def l_bcast(b, r, dst):
    o = [valu("v_mov_b64_dpp", dst[2*k:2*k + 2], r[2*k:2*k + 2], mods=f"row_newbcast:{b % 3} row_mask:0xf bank_mask:0xf") for k in range(2)]
    for x in o: x.m["dpp"] = True
    return o
def epi_half(h, b, th, rl, tmp, y):
    r0 = Oreg(b, 4*th); w = V(r0.i, 16) if r0.k == "v" else tmp; o = []
    if r0.k == "a": o += [valu("v_accvgpr_read_b32", w[i], A(r0.i + i)) for i in range(16)]
    o += [valu("v_pk_mul_f32", w[2*i:2*i + 2], w[2*i:2*i + 2], rl[2*(i & 1):2*(i & 1) + 2]) for i in range(8)]
    o += [valu("v_cvt_pk_bf16_f32", y[2*r + k], w[8*k + r], w[8*k + 4 + r]) for r in range(4) for k in range(2)]
    o += [ds_write2st64(ow, y[4*k:4*k + 2], y[4*k + 2:4*k + 4], 8*b + 4*th + 2*k, 8*b + 4*th + 2*k + 1, blk(aO, h, b)) for k in range(2)]
    return o

def transition():
    s = seg("trans"); path.append((s, {"J": 15}))
    E(stamp_now(), comment("---- head 0: last PV; switch to head 1"))
    vf = VF15
    F0 = sum(map(int, O_.ps)); assert F0 % 4 == 0 and F0 <= 12 and O_.ps[:4] == "0000" and O_.ps[14] == "0"
    raw0 = V(16, 4)
    def qrd(b): return [ds_read("ds_read_b128", Qreg(b, n), qa[n], b*4096, blk(aQ, 1, b)) for n in range(4) if 4*b + n != F0]
    rc = [negM(4), negM(5)]
    rl = V(72, 4); y = V(76, 8)
    npre = sum(map(int, O_.qs)); assert npre >= 8
    more = piecemeal([[x for k, x in enumerate(q_dma_block(1, b)) if k < 2 or 4*b + k - 2 >= npre] for b in range(npre//4, NB)]
                     + [kv_group(15, d) for d in (1, 2, 3)])
    vr = [vread(15, 0, t, a, vf[t]) for t in range(8) for a in range(2)]
    pv, pst = pv_mfmas(1, vf, True)
    sc = Sched(pv)
    g = 8
    for grp in more(O_.tq):
        for i, x in enumerate(grp):
            if x.kind not in MEM: sc.fix(x, g - 3 if len(grp) - i > 3 else g - 2)
            else: sc.fix(x, g); g += O_.tstep
    sc.add(wait(lgkm=vf[:2]), 4, pst[0] - 1)
    p = sc.seq([wait(vm=blk(aQ, 1, F0//4)), ds_read("ds_read_b128", raw0, qa[0], F0*1024, blk(aQ, 1, F0//4))], 0); wq = sc.add(wait(lgkm=[raw0]), 0, 10, [(p, 1, 6)])
    p = sc.seq(vr[4:8], 0, None, p); sc.add(wait(lgkm=vf[2:4]), 0, pst[1] - 1, [(p, 1, 6)])
    p = sc.seq(vr[8:], 0, None, p); sc.add(wait(lgkm=vf[4:]), 0, pst[2] - 1, [(p, 1, 6)])
    p = sc.seq([kread(15, 1, 1, k, F(4 + k)) for k in range(4)] + qrd(0) + [wait(vm=blk(aQ, 1, 1))] + qrd(1), 24, 46, p)
    sc.fix(wait(lgkm=0), 53); sc.fix(barrier(), 53)
    sc.run()
    lv = l_ops(0, 0, rc[0], V(60)) + l_ops(0, 3, rc[1], V(61)) + [valu("v_add_f32", V(60), V(60), V(61))]; ls = l_flag(0, V(60))
    st = scale_frag(raw0, Qreg(F0//4, 0), V(0, 8), V(8, 4), pk=False)
    rest = sc.pour((lv, 10), (st, wq.gap + 1)); sc.emit(); E(rest); rest = []
    def site(k):
        c = [int(x) for x in O_.osched] + [0]; p0 = sum(c[:k]); o = more(int(O_.tsched[k]) if O_.tsched else O_.tper)
        if c[k]:
            o += [salu("s_mov_b32", sT1, p0*1024), wait(lgkm=[X[(p0 + i) % 4] for i in range(c[k])])]
            o += [vstore(X[(p0 + i) % 4], vlin, sO, sT1, i*1024, O_.late_flags) for i in range(c[k])]
        p1 = p0 + c[k]; assert (p1 + c[k + 1] + 3)//4 <= (k + 1)//2 or not c[k + 1]
        rd = [x for p in range(p1, p1 + c[k + 1]) for x in o_read(aO(0, p), p, X[p % 4])]
        for x in rd: x.m["slip"] = O_.slip
        return o + rd
    first = sm_split(0, O_.ne1)[0]
    def finish(b): return rowmax_ops(b)[1] + delay_cvts([x for bb, x in first if bb == b])
    for b in range(NB):
        E(comment(f"---- switch block {b}"), stamp_now() if O_.probe == 1 else None)
        fs = range(max(F0 + 1, 4*b + 1), min(4*b + 5, 4*NB))
        mf = []; fl = []
        for f in fs:
            m, x = pm(f); mf += m; fl.append(x)
        qk = qk_first(b)
        if b == NB - 1: qk = [qk[k] for k in (0, 1, 2)] + [m for _, m in chain(b, 1, [F(4 + s_) for s_ in range(4)], 0, False)][:3] + [qk[3]]; \
                        qk.append(mfma(Sreg(b, 1), F(7), Qreg(b, 3), Sreg(b, 1)))
        sc = Sched(mf + qk)
        for k, x in enumerate(fl):
            for j, v in enumerate(x): sc.put(4*(k + 1) + j//2, v)
        h0, h1 = epi_half(0, b, 0, rl, V(176, 16), y), epi_half(0, b, 1, rl, V(192, 16), y)
        if O_.tight:
            assert npre >= 16; lt = int(npre < 24 or O_.lt)
            for bb, g0 in {0: [(2, 0), (3, len(mf) + 4)], 1 + lt: [(4, 0)], 2 + lt: [(5, 0)]}.get(b, []):
                if bb != 3: E(wait(vm=blk(aQ, 1, max(bb, 3))))
                for n, x in enumerate(qrd(bb)): sc.put(g0 + n, x)
            if 1 <= b < NB - 1: E(wait(lgkm=[Qreg(b + 1, n) for n in range(4)]))
            acc = [x for x in h0 + h1 if x.m.get("op") == "v_accvgpr_read_b32"]
            mx = rowmax_ops(b - 1)[0] if b else ls[:1]
            left = sc.pour((mx, 0), (acc, 0)); sc.emit()
            E([x for x in left if x not in acc], ls[2:] if b == 0 else None)
            h0, h1 = [[x for x in h if x not in acc or x in left] for h in (h0, h1)]
        else:
            if 1 <= b < NB - 1:
                sc.put(0, wait(vm=blk(aQ, 1, b + 1)))
                for n, x in enumerate(qrd(b + 1)): sc.put(1 + n, x)
                sc.put(11, wait(lgkm=[Qreg(b + 1, n) for n in range(4)]))
            rest = sc.pour((rowmax_ops(b - 1)[0] if b else rest, 0)); sc.emit(); E(rest, ls if b == 0 else None)
        if b == NB - 1: E([kread(15, 2, 0, s_, F(s_)) for s_ in range(4)])
        E(l_bcast(b, rc[b//3], rl), h0, site(2*b), finish(b - 1) if b else None, h1, site(2*b + 1))
    assert more.left() == 0
    E(rowmax_ops(NB - 1)[0][:4] if O_.tight else [rowmax_ops(NB - 1)[0], finish(NB - 1)])
    E(salu("s_mov_b32", sCnt, 1), wait(lgkm=[F(s_) for s_ in range(4)]), stamp_now())
    slip_reads(cur)

def slip_reads(ins):
    out = []; pend = []; n = 0
    for i, x in enumerate(ins):
        if x.m.get("slip"): pend.append(x); n = 0; continue
        assert not (pend and x.kind in ("vst", "dsw"))
        out.append(x)
        if pend and x.kind == "mfma":
            n = -99
            if ins[i + 1].kind not in MEM: out.append(pend.pop(0))
        elif pend and x.kind in VAL:
            n += 1
            if n == 8: out += pend; pend = []
    assert not pend
    ins[:] = out

def endgame():
    s = seg("end"); path.append((s, {"J": 29}))
    E(stamp_now())
    carry = []
    for ps, H in enumerate(([3, 4, 5], [0, 1, 2])):
        E(comment(f"---- pass {ps}"))
        subs = [("Q", 1, 0), ("Q", 1, 1), ("P", 0, 0), ("P", 0, 1), ("Q", 2, 0), ("Q", 2, 1), ("P", 1, 0), ("P", 1, 1), ("P", 2, 0), ("P", 2, 1)]
        FA, FB = [F(k) for k in range(4)], [F(4 + k) for k in range(4)]
        G = [[Qreg(3 + n, k) for k in range(4)] for n in range(3)]; Hh = [[A(176 + 16*n + 4*k, 4) for k in range(4)] for n in range(5)]
        fr = [FA, FB, FA, FB, FA, FB, FA] + G if ps == 0 else [FA, FB] + Hh + G
        mf = []; use = []; cend = {}; cstart = {}; pstart = {}; bstart = {}
        for i, (kind, d, x) in enumerate(subs):
            u = {}
            if kind == "Q":
                for n, b in enumerate(H):
                    cstart[(d, b, x)] = len(mf)
                    for s_, m in chain(b, x, fr[i], negM(b), n & 1): u.setdefault(s_, []).append(len(mf)); mf.append(m)
                    cend[(d, b, x)] = len(mf) - 1
            elif d == 2:
                if x == 0:
                    u2 = {}
                    for n, b in enumerate(H):
                        bstart[b] = len(mf); mf.append(rowsum(1, b))
                        for t in range(8):
                            (u if t < 4 else u2).setdefault(t & 3, []).append(len(mf))
                            mf.append(mfma(Oreg(b, t), Preg(1, b), fr[i + (t >> 2)][t & 3], Oreg(b, t)))
                else: u = u2
            else:
                par = (d + 1) & 1
                if x == 0: pstart[d] = len(mf)
                for hh in range(2):
                    for t, m in pv_pair(par, H if hh == 0 else H[::-1], 4*x + 2*hh, fr[i][2*hh:2*hh + 2], False, H[2*x + hh:2*x + hh + 1]):
                        if t is not None: u.setdefault(t & 3, []).append(len(mf))
                        mf.append(m)
            use.append(u)
        sc = Sched(mf); bar = {}
        if ps == 0:
            for d, g, keys in ((0, 9, [rV(0), rK(2)]), (1, use[4][1][-1], [rV(1), rV(2)])):
                sc.fix(wait(vm=keys), g)
                bar[d] = bar[2] = sc.fix(barrier(), g)
        pcs = [(0, q) for q in late_pieces(2) + late_pieces(3)] if ps == 0 else [(0, q) for q in late_pieces(4)] + carry
        taken = {t.gap + k for t in bar.values() for k in (-1, 0, 1)}
        NX = 7; prev_st = [None]*NX; pst = None; base = None
        for i, (h, q) in enumerate(pcs):
            g = O_.p0g + (len(mf) - 4 - O_.p0g)*i//max(1, len(pcs) - 1) if ps == 0 else int(O_.p1g + (len(mf) - 3 - O_.p1g)*(i/(len(pcs) - 1))**O_.p1e)
            while g in taken or g - 1 in taken: g += 1
            off = h*98304 + q*1024; xr = X[i % NX]
            if base is None or not 0 <= off - base < 4096:
                base = off; sc.add(salu("s_mov_b32", sSide, base), 0, g - 1, [(pst, 1, 1)])
            if ps or i >= NPRE:
                r = sc.seq(o_read(aO(h, q), q, xr), g - 60, g - 8, prev_st[i % NX])
                sc.add(wait(lgkm=[xr]), 0, g - 1, [(r, 1, 7)])
            pst = prev_st[i % NX] = sc.fix(vstore(xr, vlin, sO, sSide, off - base, O_.h0_flags if h else O_.late_flags), g)
        prev = None
        for i, (kind, d, x) in enumerate(subs):
            if i == 0 or (ps == 1 and (i == 1 or i >= 7)): continue
            tight = ps == 0 and i < 7
            for k in range(4):
                lo = (use[i - 2][k][-1] if i >= 2 else 0) if tight else (cend[(2, 3 + i - 7, 1)] if ps == 0 else 0)
                rds = [kread(29, d, x, k, fr[i][k])] if kind == "Q" else [vread(29, d, 4*x + k, a, fr[i][k]) for a in range(2)]
                bp = bar.get(d if kind == "P" else (0 if d == 2 else None))
                for r in rds: prev = sc.add(r, lo, None, [(prev, 1, 1), (bp, 1, 1)])
                if tight and kind == "P" and k & 1: sc.add(wait(lgkm=fr[i][k - 1:k + 1]), 0, min(use[i][k - 1][0], use[i][k][0]) - 1, [(prev, 1, 6)])
            if not (tight and kind == "P"): sc.add(wait(lgkm=fr[i]), 0, use[i][0][0] - 1, [(prev, 1, 6)])
        if ps == 0:
            for a in range(2):
                for k in range(4): prev = sc.add(kread(29, 1, a, k, F(4*a + k)), use[6][k][-1], None, [(prev, 1, 1)])
        grp = [([x for bb, x in sm_split(1, NE_A, END_ORDER)[1] if bb == b], 0, cstart[(1, b, 1)] - 1) for b in H if b >= O_.tl0]
        for a in range(2):
            for k, b in enumerate(H): grp.append((sm_ops(0, b, a), cend[(1, b, a)] + 4, min(pstart[1] - 2 + 2*k, cstart[(2, b, a)] - 1)))
        sc.sm(grp)
        order = [(H[0], 0), (H[1], 0), (H[0], 1), (H[2], 0), (H[1], 1), (H[2], 1)]
        sc.sm([(sm_ops(1, b, a), cend[(2, b, a)] + 4, bstart[b] - 2) for b, a in order]
              + ([(sm_ops(1, b, 1), 100, len(mf) - 1) for b in range(O_.tl0)] if ps == 0 else []), 2.4)
        sc.run(); sc.polish(200000)
        rc, rl, t1 = negM(H[0]), negM(H[1]), negM(H[2])[0]
        rest = sc.pour((l_ops(1, H[0], rc, t1), bstart[H[2]] + 4)); sc.emit()
        E(rest, l_flag(1, t1), stamp_now(), comment("---- epilogue"))
        dsts = [X[:4], [F(4 + i) for i in range(4)]]
        pend = []; rds = []
        for k, b in enumerate(H):
            E(l_bcast(b, rc, rl))
            for th in range(2):
                ep = epi_half(1, b, th, rl, V(24, 16), V(40, 8))
                if rds and th == 0:
                    n = O_.rdp
                    for q in range(0, 4, O_.rdn): E(ep[:n], rds[q:q + O_.rdn]); ep = ep[n:]
                    rds = []
                E(ep)
                E(pend[:2]); del pend[:2]
            if ps == 0 and k > 0: carry += [(1, 4*b + i) for i in range(4)]; continue
            d_ = dsts[k & 1]
            rds = [o_read(aO(1, 4*b + i), 4*b + i, d_[i]) for i in range(4)]
            if not O_.rdp or ps == 1: E(rds); rds = []
            sts = [vstore(d_[i], vlin, sO, sSide, i*1024, (O_.last_flags if k >= O_.lastk else O_.fin_flags) if ps else O_.h0_flags) for i in range(4)]
            pre = [salu("s_mov_b32", sSide, 98304 + b*4096), wait(lgkm=d_)]
            pend = [pre + [sts[0]], None, sts[1], None, sts[2], None, sts[3]] if ps == 0 else [pre + [sts[0]], sts[1], sts[2], sts[3]]
        E(pend, wait(lgkm=0), stamp_now())

def slow_path():
    sH, sB, sI, sKo, sQo = S(4), S(5), S(6), S(7), S(8)
    Qf = [V(4*s, 4) for s in range(4)]; Kf = [V(16 + 4*i, 4) for i in range(8)]; St = [V(48, 4), V(52, 4)]; Pf = V(56, 4)
    nm = V(60, 4); Vf = V(64, 4); Of = [V(68 + 4*t, 4) for t in range(8)]; L = V(100, 4); w = V(104, 8)
    ones = V(120, 4)
    vrow, vk, vv, vtr, vst_, t0, t1 = V(112), V(113), V(114), V(115), V(116), V(117), V(118)
    def S_(name, J=0):
        s = seg(name); return s
    s0 = S_("slow0")
    E(comment("---- fallback: a row sum left the safe range, redo this wave's rows with the true row max"),
      label("L_slow"), wait(vm=0, lgkm=0),
      valu("v_mbcnt_lo_u32_b32", t0, -1, 0), valu("v_mbcnt_hi_u32_b32", t0, -1, t0), valu("v_lshlrev_b32", vlin, 4, t0),
      [valu("v_mov_b32", ones[r], "0x3f803f80") for r in range(4)],
      valu("v_bfe_u32", t0, vlin, 4, 4), valu("v_lshrrev_b32", t1, 8, vlin),
      valu("v_lshlrev_b32", vrow, 8, t0), valu("v_lshl_add_u32", vst_, t1, 3, vrow), valu("v_lshl_add_u32", vrow, t1, 4, vrow),
      valu("v_lshrrev_b32", vtr, 2, t0), valu("v_lshl_add_u32", vtr, t1, 2, vtr), valu("v_lshlrev_b32", vtr, 8, vtr),
      valu("v_and_b32", t0, 3, t0), valu("v_lshl_add_u32", vtr, t0, 3, vtr), valu("v_add_u32", vtr, sStg, vtr),
      salu("s_mov_b32", sH, 0))
    s1 = S_("slow_head")
    E(label("L_sl_head"), salu("s_lshr_b32", sT0, sFlag, sH), salu("s_and_b32", sT0, sT0, 1), raw("s_cbranch_scc0 L_sl_next", "salu", {"scc"}),
      salu("s_lshl_b32", sKo, sH, 17), salu("s_mul_i32", sQo, sH, 98304), salu("s_mov_b32", sB, 0))
    s2 = S_("slow_blk")
    E(label("L_sl_blk"))
    for s in range(4): E(vload(Kf[s], vrow, sQ, sQo, 64*s))
    E(wait(vm=0))
    for s in range(4): E(scale_frag(Kf[s], Qf[s], w, None))
    E(valu("v_mov_b32", nm[0], "0xff800000"), valu("v_add_u32", vk, sKo, vrow), salu("s_mov_b32", sI, 32))
    s3 = S_("slow_p1")
    E(label("L_sl_p1"))
    for s in range(4): E(gload(Kf[s], vk, sKb, 64*s))
    E(valu("v_add_u32", vk, 4096, vk), wait(vm=0))
    for s in range(4): E(mfma(St[0], Kf[s], Qf[s], 0 if s == 0 else St[0]))
    E(salu("s_sub_u32", sI, sI, 1), scmp("s_cmp_lg_u32", sI, 0), nop(7),
      valu("v_max3_f32", nm[0], nm[0], St[0][0], St[0][1]), valu("v_max3_f32", nm[0], nm[0], St[0][2], St[0][3]),
      raw("s_cbranch_scc1 L_sl_p1", "salu", {"scc"}))
    s4 = S_("slow_mid")
    E(xlane_max(nm[0], nm[1]), [valu("v_sub_f32", nm[r], 0, nm[0]) for r in (1, 2, 3, 0)])
    for r in range(36): E(valu("v_mov_b32", V(68 + r), 0))
    E(valu("v_add_u32", vk, sKo, vrow), valu("v_add_u32", vv, sKo, vlin), valu("v_add_u32", vv, 1024 + 16384, vv), salu("s_mov_b32", sI, 16))
    s5 = S_("slow_p2")
    E(label("L_sl_p2"))
    key = (("stg", "slow"), ("Vs",), False)
    for half in range(2):
        E(salu("s_add_u32", "m0", sStg, 4096*half))
        for s in range(4): E(gload(Kf[4*half + s], vk, sKb, 64*s))
        for k in range(4): E(gdma(vv, sVb, 1024*k, key, ""))
        E(valu("v_add_u32", vk, 4096, vk), valu("v_add_u32", vv, 4096, vv))
    E(wait(vm=0))
    for a in range(2):
        for s in range(4): E(mfma(St[a], Kf[4*a + s], Qf[s], nm if s == 0 else St[a]))
    E(nop(7))
    for r in range(8): E(valu("v_exp_f32", V(48 + r), V(48 + r)))
    for r in range(4): E(valu("v_cvt_pk_bf16_f32", Pf[r], V(48 + 2*r), V(49 + 2*r)))
    E(mfma(L, ones, Pf, L))
    for t in range(8):
        for a in range(2): E(ds_read("ds_read_b64_tr_b16", Vf[2*a:2*a + 2], vtr, a*4096 + 32*t, key))
        E(wait(lgkm=0), mfma(Of[t], Vf, Pf, Of[t]), nop(1))
    E(salu("s_sub_u32", sI, sI, 1), scmp("s_cmp_lg_u32", sI, 0), raw("s_cbranch_scc1 L_sl_p2", "salu", {"scc"}))
    s6 = S_("slow_epi")
    E(nop(7), valu("v_rcp_f32", t0, L[0]), nop(0))
    for t in range(8):
        for r in range(4): E(valu("v_mul_f32", Of[t][r], t0, Of[t][r]))
        E(valu("v_cvt_pk_bf16_f32", Of[t][0], Of[t][0], Of[t][1]), valu("v_cvt_pk_bf16_f32", Of[t][1], Of[t][2], Of[t][3]),
          vstore(Of[t][0:2], vst_, sO, sQo, 32*t, "", "buffer_store_dwordx2"))
    E(salu("s_add_u32", sQo, sQo, 4096), salu("s_add_u32", sB, sB, 1), scmp("s_cmp_lt_u32", sB, NB), raw("s_cbranch_scc1 L_sl_blk", "salu", {"scc"}))
    s7 = S_("slow_next")
    E(label("L_sl_next"), salu("s_add_u32", sH, sH, 1), scmp("s_cmp_lt_u32", sH, 2), raw("s_cbranch_scc1 L_sl_head", "salu", {"scc"}))
    blkp = [s2, s3, s3, s4, s5, s5, s6]
    path2.extend((x, {"J": 0}) for x in [s0, s1] + blkp + blkp + [s7, s1] + blkp + [s7])

def finish():
    if O_.diag:
        a, b = [int(x) for x in O_.diag.split(":")]
        E(wait(vm=0), raw("s_memrealtime s[42:43]", "smem", (), rs(S(42, 2))), wait(lgkm=0), salu("s_mov_b32", S(47), S(42)),
          salu("s_sub_u32", sT0, S(STAMP0 + b), S(STAMP0 + a)), salu("s_lshr_b32", sT0, sT0, 3 if O_.stamps == 1 else 0), salu("s_lshl_b32", sT0, sT0, O_.amp),
          salu("s_add_u32", sT0, sT0, 7000),
          label("L_spin"), raw("s_memrealtime s[42:43]", "smem", (), rs(S(42, 2))), wait(lgkm=0),
          salu("s_sub_u32", S(42), S(42), S(46)), scmp("s_cmp_lt_u32", S(42), sT0), raw("s_cbranch_scc1 L_spin", "salu", {"scc"}))
    elif O_.stamps:
        E(wait(vm=0), raw("s_memrealtime s[42:43]", "smem", (), rs(S(42, 2))), wait(lgkm=0), salu("s_mov_b32", S(47), S(42)))
        E(salu("s_lshl_b32", sT0, S(2), 2), salu("s_add_u32", sT0, sT0, sW), salu("s_lshl_b32", sT0, sT0, 8))
        E(valu("v_mov_b32", V(1), sT0))
        for k in range(nstamp[0] + 2):
            E(valu("v_mov_b32", V(2), S(46 + k)),
              Inst(f"global_store_dword v1, v2, s[44:45] offset:{4*k}", "vst", rs(V(1), V(2), S(44, 2)), (), data=set()), nop(1))
    if O_.stamps and not O_.diag:
        E(raw("s_getreg_b32 s42, hwreg(HW_REG_XCC_ID)", "salu", (), rs(S(42))), valu("v_mov_b32", V(1), sT0), valu("v_mov_b32", V(2), S(42)),
          Inst("global_store_dword v1, v2, s[44:45] offset:252", "vst", rs(V(1), V(2), S(44, 2)), (), data=set()))
    E(scmp("s_cmp_eq_u32", sFlag, 0), raw("s_cbranch_scc1 L_end", "salu", {"scc"}), label("L_fast_end"))

def build():
    s = seg("start"); path.append((s, {"J": 0})); startup()
    for J in range(4): straight(J)
    if O_.probe == 4: E(stamp_now())
    if not O_.unr: loop4("A", 4, 2)
    for J in range(4 if O_.unr else 12, 15): straight(J)
    transition()
    straight(16)
    loop4("M", 17, 2)
    for J in range(25, 29): straight(J, stamp_now() if J == 28 or (J == 26 and O_.probe == 4) else None)
    endgame()
    finish()
    if O_.slow: slow_path()
    seg("exit"); E(label("L_end"))
    def trace(skip="lazy"): return [(i, mkctx(dict(c, lazy=skip == "eager" and O_.lazy))) for sidx, c in path + path2 for i in segs[sidx][1] if i.m.get("only") != skip]
    for rnd in range(5):
        fix = {}
        resolve_and_check(trace(), fix=fix)
        for sg in segs:
            new = []
            for i in sg[1]:
                if i.kind == "wait" and not i.m.get("only") and i.m["nvm"] in (None, 63) and i.m["nlg"] in (None, 15): fix[0] = 1; continue
                if id(i) in fix: new.append(nop(fix[id(i)] - 1)); new[-1].m["only"] = i.m.get("only")
                new.append(i)
            sg[1][:] = new
        if not fix: break
    resolve_and_check(trace(), verbose=True)
    resolve_and_check(trace("eager"), frozen=True)
    if O_.stamps:
        tr = [i for sidx, c in path for i in segs[sidx][1]]; cuts = [k for k, i in enumerate(tr) if i.kind == "smem" and "s[42:43]" in i.text]
        print("  est between stamps:", [cost_estimate(tr[a:b]) for a, b in zip(cuts, cuts[1:])])
    for name, ins in segs:
        if not name.startswith("slow"): print(f"  seg {name:8s} insts {len(ins):5d} est cycles {cost_estimate(ins):6d} nops {sum(1 for i in ins if i.kind == 'nop')}")

HEAD = """; MHA forward, B=16 H=32 Sq=384 Sk=512 D=128, bf16 in/out.  Written with the author's own generator script.
; K/V stream exactly once through a 4-slot LDS ring (LDS-DMA, one barrier per tile); Q and O pass through a per-wave
; staging area (O is transposed there so that whole 128-byte lines are stored).
; Softmax: Q is pre-scaled by log2(e)/sqrt(D).  Each row's max over its first 32 keys is subtracted through the MFMA
; C operand (so every row sum is >= 1, nothing can underflow); the row sums come from an MFMA against a ones column.
; Guard: a row sum that is NaN or >= 2^64 flags the wave, which then redoes its rows with the true row max (L_slow).
; @launch grid=(256,1,1) block=(256,1,1) lds=163840
.amdgcn_target "amdgcn-amd-amdhsa--gfx950"
.text
.globl standalone__mha_softmax__near_ridge_kernel
.p2align 8
.type standalone__mha_softmax__near_ridge_kernel,@function
standalone__mha_softmax__near_ridge_kernel:
"""
TAIL = """    s_endpgm
.section .rodata,"a"
.p2align 6
.amdhsa_kernel standalone__mha_softmax__near_ridge_kernel
  .amdhsa_next_free_vgpr 512
  .amdhsa_next_free_sgpr 102
  .amdhsa_accum_offset 256
  .amdhsa_group_segment_fixed_size 0
  .amdhsa_kernarg_size 48
  .amdhsa_user_sgpr_count 2
  .amdhsa_user_sgpr_kernarg_segment_ptr 1
  .amdhsa_system_sgpr_workgroup_id_x 1
.end_amdhsa_kernel
"""
def insert_pads(text):
    import subprocess, re, tempfile, os
    def offsets(npads):
        d = tempfile.mkdtemp(); t = text()
        t = t.replace("L_padret0:", "L_padret0:\n" + "".join(f"L_pad{k}:\n" for k in range(npads + 1, 40)))
        open(d + "/a.s", "w").write(t)
        subprocess.run(["clang", "-x", "assembler", "-target", "amdgcn-amd-amdhsa", "-mcpu=gfx950", "-c", d + "/a.s", "-o", d + "/a.o"], check=True)
        dis = subprocess.run(["llvm-objdump", "-d", "--mcpu=gfx950", d + "/a.o"], capture_output=True, text=True).stdout
        sym = subprocess.run(["llvm-readelf", "-s", d + "/a.o"], capture_output=True, text=True).stdout
        main = int(re.search(r"([0-9a-f]{16}) .* L_main$", sym, re.M).group(1), 16)
        ad = [(int(m.group(2), 16), m.group(1)) for m in re.finditer(r"^\s+(\S+).*// ([0-9A-F]{12}):", dis, re.M)]
        ad = [x for x in ad if x[0] >= main]
        flat = [(sg, k) for sg in segs for k in range(len(sg[1]))]
        flat = flat[[i for i, (sg, k) in enumerate(flat) if sg[1][k].text == "L_main:"][0]:]
        o = []; j = 0
        for sg, k in flat:
            x = sg[1][k]
            if x.kind == "label":
                if x.text == "L_fast_end:": break
                if x.text.startswith(".p2align") and ad[j][0] % 8: j += 1
                continue
            assert ad[j][1].startswith(x.text.split()[0][:12]), (ad[j], x.text)
            o.append((ad[j][0] - ad[0][0], sg, k)); j += 1
        return o
    page = 1; pads = []
    while True:
        off = offsets(page - 1)
        cand = [n for n, (a, sg, k) in enumerate(off) if 4096*page <= a <= 4096*page + 56]
        if not cand: break
        def score(n):
            a, sg, k = off[n]; lo = max(0, k - 8); w = sg[1][lo:k + 8]
            return cost_estimate(w[:k - lo] + [raw("pad")] + w[k - lo:]) - cost_estimate(w)
        n = min(cand, key=score); _, sg, k = off[n]
        p = raw(f"s_cbranch_vccz L_padret{(page - 1)//4}"); pads.append(p)
        sg[1][k:k] = [label(f"L_pad{page}"), p]
        page += 1
    assert (page + 2)//4 == len(O_.vis), page
    for k in range(page, 4*len(O_.vis) + 1):
        for _, ins in segs:
            for x in ins:
                if x.text.endswith(f" L_pad{k}"): x.text = x.text.replace(f"L_pad{k}", f"L_padret{(k - 1)//4}")
    z = True
    for _, ins in segs:
        for x in ins:
            if x.text.startswith("s_mov_b64 vcc"): z = x.text.endswith(" 0")
            assert not (z and "vccz" in x.text) and not ("vcc" in x.wr and not z)
    print(f"  {page - 1} page pads")

if __name__ == "__main__":
    out = sys.argv[1]
    for a in sys.argv[2:]:
        k, v = a.split("=")
        setattr(O_, k, type(getattr(O_, k))(v))
    build()
    def text(): return HEAD + "\n".join((i.text if i.kind == "label" else "    " + i.text) for _, ins in segs for i in ins) + "\n" + TAIL
    if O_.pads: insert_pads(text)
    open(out, "w").write(text())
    import subprocess
    r = subprocess.run([sys.executable, "cdna_unwritten_srd_check.py", out], capture_output=True, text=True)
    print("  check:", r.stdout.strip()[-300:], r.stderr.strip()[-300:])
```
